```python
import torch

def _softmax(x, axis=-1):
    return torch.softmax(x, dim=axis)
def _gelu(x):
    return torch.nn.functional.gelu(x, approximate="tanh")
def _silu(x):
    return torch.nn.functional.silu(x)
def _sigmoid(x):
    return torch.sigmoid(x)
def _layernorm(x, axis=-1, eps=1e-5):
    m = x.mean(dim=axis, keepdim=True)
    v = x.var(dim=axis, keepdim=True, unbiased=False)
    return (x - m) / torch.sqrt(v + eps)
def _scatter_add(tgt, idx, src, axis=0):
    return tgt.clone().index_add_(axis, idx, src)
def _segment_sum(src, seg, n):
    out = torch.zeros((n,) + src.shape[1:], dtype=src.dtype)
    return out.index_add_(0, seg, src)
def _pad(x, pw):
    flat = tuple(v for pair in reversed(pw) for v in pair)
    return torch.nn.functional.pad(x, flat)

kernel_name = 'parallel_sum__ssm_conv_s4__swiglu_ffn__prompt'

def setup_inputs():

    _w = (lambda a: (lambda t: t.to(torch.bfloat16) if t.is_floating_point() else t)(torch.as_tensor(a)))
    def _A_setup():
        B, L, D, N = 1, 2048, 640, 192
        A_re = -(lambda _x: torch.exp(torch.as_tensor(_x)))((lambda *s: torch.randn(*s, dtype=torch.bfloat16) * 3.2)(D, N))
        A_im = torch.pi * (lambda *s: torch.randn(*s, dtype=torch.bfloat16) * 0.2)(D, N)
        B_re = (lambda *s: torch.randn(*s, dtype=torch.bfloat16) * 0.4)(D, N)
        B_im = (lambda *s: torch.randn(*s, dtype=torch.bfloat16) * 0.4)(D, N)
        C_re = (lambda *s: torch.randn(*s, dtype=torch.bfloat16) * 0.4)(D, N)
        C_im = (lambda *s: torch.randn(*s, dtype=torch.bfloat16) * 0.4)(D, N)
        log_dt = (lambda *s: torch.randn(*s, dtype=torch.bfloat16) * 0.2)(D) * 0.5 - 4.0
        Dskip = (lambda *s: torch.randn(*s, dtype=torch.bfloat16) * 0.4)(D)
        return {
            "u": _w((lambda *s: torch.randn(*s, dtype=torch.bfloat16) * 0.05)(B, L, D)),
            "A_re": _w(A_re),
            "A_im": _w(A_im),
            "B_re": _w(B_re),
            "B_im": _w(B_im),
            "C_re": _w(C_re),
            "C_im": _w(C_im),
            "log_dt": _w(log_dt),
            "Dskip": _w(Dskip),
        }
    _A_in = _A_setup()

    def _B_setup():
        B, S, D, F = 1, 2048, 640, 1536
        return {
            "x": _w((lambda *s: torch.randn(*s, dtype=torch.bfloat16) * 0.05)(B, S, D)),
            "w_gate": _w((lambda *s: torch.randn(*s, dtype=torch.bfloat16) * 0.05)(D, F)),
            "w_up": _w((lambda *s: torch.randn(*s, dtype=torch.bfloat16) * 0.05)(D, F)),
            "w_down": _w((lambda *s: torch.randn(*s, dtype=torch.bfloat16) * 0.05)(F, D)),
        }
    _B_in = _B_setup()

    return {
        "A_u": _A_in["u"],
        "A_A_re": _A_in["A_re"],
        "A_A_im": _A_in["A_im"],
        "A_B_re": _A_in["B_re"],
        "A_B_im": _A_in["B_im"],
        "A_C_re": _A_in["C_re"],
        "A_C_im": _A_in["C_im"],
        "A_log_dt": _A_in["log_dt"],
        "A_Dskip": _A_in["Dskip"],
        "B_x": _B_in["x"],
        "B_w_gate": _B_in["w_gate"],
        "B_w_up": _B_in["w_up"],
        "B_w_down": _B_in["w_down"],
    }

def reference(A_u, A_A_re, A_A_im, A_B_re, A_B_im, A_C_re, A_C_im, A_log_dt, A_Dskip, B_x, B_w_gate, B_w_up, B_w_down):
    def _A_ref(u, A_re, A_im, B_re, B_im, C_re, C_im, log_dt, Dskip):
        Bsz, L, D = u.shape
        dt = torch.exp(log_dt)[:, None]
        A = A_re + 1j * A_im
        Bc = B_re + 1j * B_im
        Cc = C_re + 1j * C_im
        logdA = dt * A
        dB = dt * Bc
        l = (lambda x, dt: x.to(dt))(torch.arange(L), A_re.dtype)
        P = torch.exp(logdA[:, :, None] * l[None, None, :])
        K = torch.einsum("dn,dnl,dn->dl", Cc, P, dB).real
        L2 = 2 * L
        Kp = _pad(K, ((0, 0), (0, L)))
        up = (lambda x, *d: x.permute(*d))(u, 0, 2, 1)
        up = _pad(up, ((0, 0), (0, 0), (0, L)))
        Kf = (lambda x, axes=(-2,-1): torch.fft.rfft2(x.float(), dim=axes))(Kp[:, None, :], axes=(-2, -1))
        Uf = (lambda x, axes=(-2,-1): torch.fft.rfft2(x.float(), dim=axes))(up[:, :, None, :], axes=(-2, -1))
        Yf = Uf * Kf[None, :, :, :]
        y = (lambda x, s, axes=(-2,-1): torch.fft.irfft2(x, s=s, dim=axes).to(torch.bfloat16))(Yf, (1, L2), axes=(-2, -1))[:, :, 0, :L]
        y = (lambda x, *d: x.permute(*d))(y, 0, 2, 1) + u * Dskip[None, None, :]
        return y

    def _B_ref(x, w_gate, w_up, w_down):
        g = _silu(x @ w_gate)
        u = x @ w_up
        return (g * u) @ w_down

    x = A_u
    xn = _layernorm(x, axis=-1)
    return x + _A_ref(xn, A_A_re, A_A_im, A_B_re, A_B_im, A_C_re, A_C_im, A_log_dt, A_Dskip) + _B_ref(xn, B_w_gate, B_w_up, B_w_down)
```

```python
import sys, math, struct

NAME = "parallel_sum__ssm_conv_s4__swiglu_ffn__prompt"
OPT = dict(fused=False, ts=False)
for a in sys.argv[2:]:
    k, _, v = a.partition("=")
    OPT[k] = int(v) if v else True

WS_XF = 0x000000
WS_XT = 0x280000
WS_HF = 0x500000
WS_AT = 0xB00000
WS_FL = 0xD80000
WS_TS = 0xE00000
WS_SIZE = 0x1000000
FL_XN = WS_FL
FL_H = WS_FL + 0x1000
FL_A = WS_FL + 0x2000

R1 = 16
UPOFF = 3088
SLOT1 = 6176
RING = 0
CTRL = R1 * SLOT1
C_FULL = CTRL
C_PROG = CTRL + 16
C_CNT = CTRL + 32
AUX0 = CTRL + 64
KSTR = 4160
AUX_U = 4 * KSTR
AUXSZ = AUX_U + 4608
LDS_TOTAL = AUX0 + 3 * AUXSZ
LNST = AUX0
LNROW = 1312
SLOT2 = 5120
R2 = 15
XCH = R2 * SLOT2
assert XCH + 20480 <= CTRL
assert LDS_TOTAL <= 163840

LOG2E = 1.4426950408889634


def fbits(x):
    return "0x%08x" % struct.unpack("<I", struct.pack("<f", x))[0]


def v(i, n=1):
    return "v%d" % i if n == 1 else "v[%d:%d]" % (i, i + n - 1)


def s(i, n=1):
    return "s%d" % i if n == 1 else "s[%d:%d]" % (i, i + n - 1)


class Cnt:
    def __init__(self, A, name, mx):
        self.A, self.name, self.mx, self.q = A, name, mx, []

    def issue(self, tag):
        self.q.append(tag)

    def wait(self, tag):
        if tag not in self.q:
            return
        i = len(self.q) - 1 - self.q[::-1].index(tag)
        n = len(self.q) - 1 - i
        self.A("s_waitcnt %s(%d)" % (self.name, min(n, self.mx)))
        self.q = self.q[i + 1:]

    def drain(self):
        self.A("s_waitcnt %s(0)" % self.name)
        self.q = []


class Asm:
    def __init__(self):
        self.L = []
        self.nl = 0
        self.stamps = []

    def __call__(self, t):
        self.L.append("  " + t)

    def label(self, l):
        self.L.append(l + ":")

    def newl(self, p="L"):
        self.nl += 1
        return "%s_%d" % (p, self.nl)

    def c(self, t):
        self.L.append("  ; " + t)

    def ts(self, slot):
        if OPT["ts"]:
            self("s_memrealtime %s" % s(70 + 2 * slot, 2))
            self.stamps.append(slot)

    def end(self):
        if OPT["ts"] and self.stamps:
            self("s_waitcnt lgkmcnt(0)")
            self("s_mov_b64 exec, 1")
            self("s_lshl_b32 s4, s2, 3")
            self("s_add_u32 s4, s4, s3")
            self("s_lshl_b32 s4, s4, 7")
            self("s_add_u32 s4, s4, 0x%x" % WS_TS)
            self("v_mov_b32 v2, 0")
            for sl in self.stamps:
                self("v_mov_b32 v0, %s" % s(70 + 2 * sl))
                self("v_mov_b32 v1, %s" % s(71 + 2 * sl))
                self("buffer_store_dwordx2 v[0:1], v2, s[48:51], s4 offen offset:%d" % (8 * sl))
                self("s_nop 1")
        self("s_endpgm")


P_X, P_ARE, P_AIM, P_BRE, P_BIM, P_CRE, P_CIM, P_LDT, P_DSK, P_BX, P_WG, P_WU, P_WD, P_OUT, P_DBG, P_WS = [16 + 2 * i for i in range(16)]
SC1 = " sc1" if OPT["fused"] else ""


def srd(A, d, ptr, size):
    A("s_mov_b32 %s, %s" % (s(d), s(ptr)))
    A("s_mov_b32 %s, %s" % (s(d + 1), s(ptr + 1)))
    A("s_mov_b32 %s, 0x%x" % (s(d + 2), size))
    A("s_mov_b32 %s, 0x20000" % s(d + 3))


def prologue(A, name, tsslot):
    A.L.append(".globl %s" % name)
    A.L.append(".p2align 8")
    A.L.append(".type %s,@function" % name)
    A.label(name)
    A.stamps = []
    ok = A.newl("Lgo")
    A("s_cmp_lt_u32 s2, 256")
    A("s_cbranch_scc1 %s" % ok)
    A.exit = A.newl("Lexit")
    A.label(A.exit)
    A("s_endpgm")
    A.label(ok)
    A("s_mov_b32 vcc_lo, 0x40000")
    A("s_load_dwordx16 s[16:31], s[0:1], 0")
    A("s_load_dwordx16 s[32:47], s[0:1], 64")
    A.ts(tsslot)
    A("v_lshrrev_b32 v2, 6, v0")
    A("v_and_b32 v1, 63, v0")
    A("v_readfirstlane_b32 s3, v2")
    A("s_waitcnt lgkmcnt(0)")
    srd(A, 48, P_WS, WS_SIZE)


def guard(A):
    A("s_sub_u32 vcc_lo, vcc_lo, 1")
    A("s_cbranch_scc1 %s" % A.exit)


def wave_reduce(A, r, sd):
    for m in ["row_shr:1", "row_shr:2", "row_shr:4", "row_shr:8"]:
        A("s_nop 1")
        A("v_add_f32_dpp %s, %s, %s %s row_mask:0xf bank_mask:0xf" % (v(r), v(r), v(r), m))
    A("s_nop 1")
    A("v_add_f32_dpp %s, %s, %s row_bcast:15 row_mask:0xa bank_mask:0xf" % (v(r), v(r), v(r)))
    A("s_nop 1")
    A("v_add_f32_dpp %s, %s, %s row_bcast:31 row_mask:0xc bank_mask:0xf" % (v(r), v(r), v(r)))
    A("s_nop 1")
    A("v_readlane_b32 %s, %s, 63" % (s(sd), v(r)))
    A("s_nop 1")


def ln_issue(A):
    A("s_lshl_b32 s4, s2, 3")
    A("s_add_u32 s4, s4, s3")
    A("s_mul_i32 s5, s4, 1280")
    A("s_add_u32 s52, %s, s5" % s(P_X))
    A("s_addc_u32 s53, %s, 0" % s(P_X + 1))
    A("s_mov_b32 s54, 1280")
    A("s_mov_b32 s55, 0x20000")
    A("v_lshlrev_b32 v3, 4, v1")
    A("buffer_load_dwordx4 v[4:7], v3, s[52:55], 0 offen")
    A("buffer_load_dwordx4 v[8:11], v3, s[52:55], 0 offen offset:1024")


def ln_compute(A):
    for i in range(8):
        A("v_lshlrev_b32 %s, 16, %s" % (v(12 + 2 * i), v(4 + i)))
        A("v_and_b32 %s, 0xffff0000, %s" % (v(13 + 2 * i), v(4 + i)))
    A("v_add_f32 v28, v12, v13")
    A("v_add_f32 v29, v14, v15")
    for i in range(2, 8):
        A("v_add_f32 v28, v28, %s" % v(12 + 2 * i))
        A("v_add_f32 v29, v29, %s" % v(13 + 2 * i))
    A("v_add_f32 v28, v28, v29")
    wave_reduce(A, 28, 4)
    A("v_mov_b32 v30, %s" % fbits(1.0 / 640))
    A("v_mul_f32 v30, s4, v30")
    A("v_sub_f32 v31, v12, v30")
    A("v_mul_f32 v28, v31, v31")
    A("v_sub_f32 v31, v13, v30")
    A("v_mul_f32 v29, v31, v31")
    for i in range(2, 8):
        A("v_sub_f32 v31, %s, v30" % v(12 + i))
        A("v_fmac_f32 %s, v31, v31" % v(28 + (i & 1)))
    A("s_mov_b64 exec, 0xffff")
    for i in range(8, 16):
        A("v_sub_f32 v31, %s, v30" % v(12 + i))
        A("v_fmac_f32 %s, v31, v31" % v(28 + (i & 1)))
    A("s_mov_b64 exec, -1")
    A("v_add_f32 v28, v28, v29")
    wave_reduce(A, 28, 5)
    A("v_mov_b32 v31, %s" % fbits(1.0 / 640))
    A("v_mul_f32 v31, s5, v31")
    A("v_cvt_pk_bf16_f32 v31, v30, v31")
    A("v_lshlrev_b32 v30, 16, v31")
    A("v_and_b32 v31, 0xffff0000, v31")
    A("v_add_f32 v31, %s, v31" % fbits(1e-5))
    A("v_cvt_pk_bf16_f32 v31, v31, v31")
    A("v_and_b32 v31, 0xffff0000, v31")
    A("v_sqrt_f32 v31, v31")
    A("s_nop 0")
    A("v_cvt_pk_bf16_f32 v31, v31, v31")
    A("v_and_b32 v31, 0xffff0000, v31")
    A("v_rcp_f32 v31, v31")
    for i in range(16):
        A("v_sub_f32 %s, %s, v30" % (v(12 + i), v(12 + i)))
    for i in range(8):
        A("v_cvt_pk_bf16_f32 %s, %s, %s" % (v(4 + i), v(12 + 2 * i), v(13 + 2 * i)))
    for i in range(8):
        A("v_lshlrev_b32 %s, 16, %s" % (v(12 + 2 * i), v(4 + i)))
        A("v_and_b32 %s, 0xffff0000, %s" % (v(13 + 2 * i), v(4 + i)))
    for i in range(16):
        A("v_mul_f32 %s, %s, v31" % (v(12 + i), v(12 + i)))
    for i in range(8):
        A("v_cvt_pk_bf16_f32 %s, %s, %s" % (v(4 + i), v(12 + 2 * i), v(13 + 2 * i)))
    A("s_mul_i32 s4, s3, %d" % LNROW)
    A("s_add_u32 s4, s4, %d" % LNST)
    A("v_add_u32 v3, s4, v3")
    A("ds_write_b128 v3, v[4:7]")
    A("s_mov_b64 exec, 0xffff")
    A("ds_write_b128 v3, v[8:11] offset:1024")
    A("s_mov_b64 exec, -1")
    A("s_waitcnt lgkmcnt(0)")


def ln_store(A):
    lxt, ldone = A.newl("Lxt"), A.newl("Lxs")
    A("s_cmp_ge_u32 s3, 2")
    A("s_cbranch_scc1 %s" % lxt)
    A("v_and_b32 v2, 7, v1")
    A("v_lshrrev_b32 v3, 3, v1")
    A("v_mul_u32_u24 v4, %d, v2" % LNROW)
    A("v_lshl_add_u32 v4, v3, 4, v4")
    A("s_mul_i32 s4, s3, 640")
    A("s_add_u32 s4, s4, %d" % LNST)
    A("v_add_u32 v4, s4, v4")
    for i in range(5):
        A("ds_read_b128 %s, v4 offset:%d" % (v(8 + 4 * i, 4), 128 * i))
    A("v_lshlrev_b32 v2, 4, v2")
    A("v_lshl_add_u32 v2, v3, 9, v2")
    A("s_lshr_b32 s4, s2, 2")
    A("s_mul_i32 s4, s4, 40960")
    A("s_and_b32 s5, s2, 3")
    A("s_lshl_b32 s5, s5, 7")
    A("s_add_u32 s4, s4, s5")
    A("s_mul_i32 s5, s3, 20480")
    A("s_add_u32 s4, s4, s5")
    for i in range(5):
        A("s_waitcnt lgkmcnt(%d)" % (4 - i))
        A("buffer_store_dwordx4 %s, v2, s[48:51], s4 offen%s" % (v(8 + 4 * i, 4), SC1))
        if i < 4:
            A("s_add_u32 s4, s4, 4096")
    A("s_branch %s" % ldone)
    A.label(lxt)
    A("v_bfe_u32 v2, v1, 2, 2")
    A("v_mul_u32_u24 v2, %d, v2" % LNROW)
    A("v_lshrrev_b32 v3, 4, v1")
    A("v_lshl_add_u32 v2, v3, 5, v2")
    A("v_and_b32 v3, 3, v1")
    A("v_lshl_add_u32 v2, v3, 3, v2")
    A("s_sub_u32 s6, s3, 2")
    A("s_mul_i32 s4, s6, 640")
    A("s_add_u32 s4, s4, %d" % LNST)
    A("v_add_u32 v2, s4, v2")
    for i in range(5):
        A("ds_read_b64_tr_b16 %s, v2 offset:%d" % (v(8 + 4 * i, 2), 128 * i))
        A("ds_read_b64_tr_b16 %s, v2 offset:%d" % (v(10 + 4 * i, 2), 128 * i + 4 * LNROW))
    A("v_lshlrev_b32 v3, 4, v1")
    A("s_mul_i32 s4, s2, 10240")
    A("s_mul_i32 s5, s6, 5120")
    A("s_add_u32 s4, s4, s5")
    A("s_add_u32 s4, s4, 0x%x" % WS_XT)
    for i in range(5):
        A("s_waitcnt lgkmcnt(%d)" % (8 - 2 * i))
        A("buffer_store_dwordx4 %s, v3, s[48:51], s4 offen%s" % (v(8 + 4 * i, 4), SC1))
        if i < 4:
            A("s_add_u32 s4, s4, 1024")
    A.label(ldone)


def map_g1(A):
    A("s_and_b32 s4, s2, 7")
    A("s_lshr_b32 s5, s2, 3")
    A("s_and_b32 s60, s4, 1")
    A("s_lshl_b32 s60, s60, 3")
    A("s_and_b32 s6, s5, 7")
    A("s_add_u32 s60, s60, s6")
    A("s_lshr_b32 s61, s4, 1")
    A("s_lshl_b32 s61, s61, 2")
    A("s_lshr_b32 s6, s5, 3")
    A("s_add_u32 s61, s61, s6")


def map_g2(A):
    A("s_and_b32 s4, s2, 7")
    A("s_lshr_b32 s5, s2, 3")
    A("s_lshl_b32 s62, s4, 2")
    A("s_and_b32 s6, s5, 3")
    A("s_add_u32 s62, s62, s6")
    A("s_lshr_b32 s63, s5, 2")


def ctrl_init(A):
    A("v_lshlrev_b32 v2, 2, v1")
    A("v_add_u32 v2, %d, v2" % CTRL)
    A("v_mov_b32 v3, 0")
    A("s_mov_b64 exec, 0xffff")
    A("ds_write_b32 v2, v3")
    A("s_mov_b64 exec, -1")
    A("s_waitcnt lgkmcnt(0)")


def dsmax(A):
    A("s_mov_b64 exec, 1")
    A("ds_max_u32 v20, v21")
    A("s_mov_b64 exec, -1")


def loader_loop(A, nsteps, base, R, slot_bytes, pieces, soff_step, first_done, par):
    n = len(pieces)
    D = 54 // n
    A("s_mov_b32 s65, %d" % first_done)
    A("s_mov_b32 s66, %d" % (RING + (first_done % R) * slot_bytes))
    A("s_mov_b32 s67, %d" % R)
    top, go, poll = A.newl("Lld"), A.newl("Lldgo"), A.newl("Lldpoll")
    A.label(top)
    A("s_cmp_lt_u32 s65, s67")
    A("s_cbranch_scc1 %s" % go)
    A("ds_read_b128 v[24:27], v20 offset:16")
    A("s_waitcnt lgkmcnt(0)")
    A("v_min_u32 v24, v24, v25")
    A("v_min3_u32 v24, v24, v26, v27")
    A("s_nop 0")
    A("v_readfirstlane_b32 s67, v24")
    A("s_add_u32 s67, s67, %d" % (R - base))
    A("s_cmp_lt_u32 s65, s67")
    A("s_cbranch_scc1 %s" % go)
    A("s_waitcnt vmcnt(0)")
    A("s_add_u32 s4, s65, %d" % base)
    A("v_mov_b32 v21, s4")
    dsmax(A)
    A.label(poll)
    guard(A)
    A("s_sleep 1")
    A("ds_read_b128 v[24:27], v20 offset:16")
    A("s_waitcnt lgkmcnt(0)")
    A("v_min_u32 v24, v24, v25")
    A("v_min3_u32 v24, v24, v26, v27")
    A("s_nop 0")
    A("v_readfirstlane_b32 s67, v24")
    A("s_add_u32 s67, s67, %d" % (R - base))
    A("s_cmp_lt_u32 s65, s67")
    A("s_cbranch_scc0 %s" % poll)
    A.label(go)
    for (sr, vo, lo) in pieces:
        A("s_add_u32 m0, s66, %d" % lo)
        A("s_nop 0")
        A("buffer_load_dwordx4 %s, %s, s64 offen lds" % (v(vo), s(sr, 4)))
    A("s_add_u32 s64, s64, %d" % soff_step)
    A("s_add_u32 s66, s66, %d" % slot_bytes)
    A("s_cmp_eq_u32 s66, %d" % (RING + R * slot_bytes))
    A("s_cselect_b32 s66, %d, s66" % RING)
    A("s_add_u32 s65, s65, 1")
    A("s_waitcnt vmcnt(%d)" % (n * D))
    A("s_add_u32 s4, s65, %d" % (base - D))
    A("s_max_i32 s4, s4, 0")
    A("v_mov_b32 v21, s4")
    dsmax(A)
    A("s_cmp_lt_u32 s65, %d" % nsteps)
    A("s_cbranch_scc1 %s" % top)
    for d in range(D - 1, -1, -1):
        A("s_waitcnt vmcnt(%d)" % (n * d))
        A("v_mov_b32 v21, %d" % (base + nsteps - d))
        dsmax(A)


def loader1_setup(A):
    srd(A, 52, P_WG, 640 * 1536 * 2)
    srd(A, 56, P_WU, 640 * 1536 * 2)
    for p in range(3):
        A("v_add_u32 v22, %d, v1" % (64 * p))
        A("v_mul_u32_u24 v23, 43691, v22")
        A("v_lshrrev_b32 v23, 19, v23")
        A("v_mul_u32_u24 v19, 12, v23")
        A("v_sub_u32 v22, v22, v19")
        A("v_mul_u32_u24 v23, 3072, v23")
        A("v_lshl_add_u32 %s, v22, 4, v23" % v(16 + p))
    A("s_mul_i32 s64, s61, 192")
    A("v_mov_b32 v20, %d" % CTRL)


PIECES1 = [(52, 16 + p, 1024 * p) for p in range(3)] + [(56, 16 + p, UPOFF + 1024 * p) for p in range(3)]


def loader1_first(A, n):
    for ks in range(n):
        for (sr, vo, lo) in PIECES1:
            A("s_mov_b32 m0, %d" % (RING + ks * SLOT1 + lo))
            A("s_nop 0")
            A("buffer_load_dwordx4 %s, %s, s64 offen lds" % (v(vo), s(sr, 4)))
        A("s_add_u32 s64, s64, %d" % (16 * 3072))


def loader2_setup(A):
    srd(A, 52, P_WD, 1536 * 640 * 2)
    for p in range(5):
        A("v_add_u32 v22, %d, v1" % (64 * p))
        A("v_mul_u32_u24 v23, 52429, v22")
        A("v_lshrrev_b32 v23, 19, v23")
        A("v_mul_u32_u24 v19, 10, v23")
        A("v_sub_u32 v22, v22, v19")
        A("v_mul_u32_u24 v23, 1280, v23")
        A("v_lshl_add_u32 %s, v22, 4, v23" % v(12 + p))
    A("s_mul_i32 s64, s63, 160")
    A("v_mov_b32 v20, %d" % CTRL)


PIECES2 = [(52, 12 + p, 1024 * p) for p in range(5)]


def full_wait(A, need, vF, vC, sF):
    ok, poll = A.newl("Lfok"), A.newl("Lfpoll")
    A("v_readfirstlane_b32 %s, %s" % (s(sF), v(vF)))
    A("s_cmp_ge_u32 %s, %d" % (s(sF), need))
    A("s_cbranch_scc1 %s" % ok)
    A.label(poll)
    guard(A)
    A("ds_read_b32 %s, %s" % (v(vF), v(vC)))
    A("s_waitcnt lgkmcnt(0)")
    A("v_readfirstlane_b32 %s, %s" % (s(sF), v(vF)))
    A("s_cmp_ge_u32 %s, %d" % (s(sF), need))
    A("s_cbranch_scc0 %s" % poll)
    A.label(ok)


def gemm1(A):
    ACC, WF, XR0, NXR = 160, 136, 12, 31
    vA0, vA1, vC, vF, vP, vXo, vPa = 2, 3, 4, 5, 6, 7, 8
    lg = Cnt(A, "lgkmcnt", 15)
    vm = Cnt(A, "vmcnt", 63)
    A("s_lshl_b32 s8, s60, 2")
    A("s_add_u32 s8, s8, s3")
    A("s_mul_i32 s9, s8, 40960")
    A("v_lshlrev_b32 %s, 4, v1" % v(vXo))

    def xload(ks):
        if ks and ks % 4 == 0:
            A("s_add_u32 s9, s9, 4096")
        A("buffer_load_dwordx4 %s, %s, s[48:51], s9 offen offset:%d%s" % (v(XR0 + 4 * (ks % NXR), 4), v(vXo), 1024 * (ks % 4), SC1))
        vm.issue(("x", ks))
    for ks in range(NXR):
        xload(ks)
    A("v_bfe_u32 v9, v1, 2, 2")
    A("v_lshrrev_b32 v10, 5, v1")
    A("v_lshl_add_u32 v9, v10, 3, v9")
    A("v_mul_u32_u24 %s, 192, v9" % v(vA0))
    A("v_bfe_u32 v9, v1, 4, 1")
    A("v_lshl_add_u32 %s, v9, 5, %s" % (v(vA0), v(vA0)))
    A("v_and_b32 v9, 1, v1")
    A("v_lshl_add_u32 %s, v9, 3, %s" % (v(vA0), v(vA0)))
    A("v_bfe_u32 v9, v1, 1, 1")
    A("v_mul_u32_u24 v9, %d, v9" % UPOFF)
    A("v_add_u32 %s, v9, %s" % (v(vA0), v(vA0)))
    HALF = 8 * SLOT1
    A("v_add_u32 %s, %d, %s" % (v(vA1), HALF, v(vA0)))
    A("v_mov_b32 %s, %d" % (v(vC), CTRL))
    A("s_lshl_b32 s4, s3, 2")
    A("s_add_u32 s4, s4, %d" % C_PROG)
    A("v_mov_b32 %s, s4" % v(vPa))
    A("v_mov_b32 %s, 0" % v(vF))

    def wread(ks, t):
        sl = ks % R1
        off = RING + sl * SLOT1 + 64 * (t >> 1) + 16 * (t & 1)
        b = vA0
        if sl >= 8:
            off -= HALF
            b = vA1
        A("ds_read_b64_tr_b16 %s, %s offset:%d" % (v(WF + 4 * t, 2), v(b), off))
        lg.issue(("w", ks, t, 0))
        A("ds_read_b64_tr_b16 %s, %s offset:%d" % (v(WF + 4 * t + 2, 2), v(b), off + 768))
        lg.issue(("w", ks, t))
    A("s_nop 0")
    full_wait(A, 1, vF, vC, 10)
    A.ts(4)
    for t in range(6):
        wread(0, t)
    for ks in range(40):
        vm.wait(("x", ks))
        for t in range(6):
            lg.wait(("w", ks, t))
            cin = "0" if ks == 0 else v(ACC + 16 * t, 16)
            A("v_mfma_f32_32x32x16_bf16 %s, %s, %s, %s" % (v(ACC + 16 * t, 16), v(WF + 4 * t, 4), v(XR0 + 4 * (ks % NXR), 4), cin))
            if ks + 1 < 40:
                if t == 0:
                    full_wait(A, ks + 2, vF, vC, 10)
                    if ks + 2 < 40:
                        A("ds_read_b32 %s, %s" % (v(vF), v(vC)))
                        lg.issue(("f", ks))
                wread(ks + 1, t)
        A("v_mov_b32 %s, %d" % (v(vP), ks + 1))
        A("ds_write_b32 %s, %s" % (v(vPa), v(vP)))
        lg.issue(("p", ks))
        if ks + NXR < 40:
            xload(ks + NXR)
    A.ts(5)
    A("s_mov_b32 s12, %s" % fbits(-LOG2E))
    A("s_mov_b32 s13, %s" % fbits(-LOG2E))
    A("s_mov_b32 s14, 1.0")
    A("s_mov_b32 s15, 1.0")
    A("s_mul_i32 s9, s8, 96")
    A("s_mul_i32 s4, s61, 6")
    A("s_add_u32 s9, s9, s4")
    A("s_lshl_b32 s9, s9, 10")
    A("s_add_u32 s9, s9, 0x%x" % WS_HF)
    A("s_nop 4")
    T0 = 12
    for t in range(6):
        a = ACC + 16 * t
        tmp = T0 + 16 * (t & 1)
        G = [a, a + 2, a + 8, a + 10]
        U = [a + 4, a + 6, a + 12, a + 14]
        for i in range(4):
            A("v_pk_mul_f32 %s, %s, s[12:13]" % (v(tmp + 2 * i, 2), v(G[i], 2)))
        for i in range(8):
            A("v_exp_f32 %s, %s" % (v(tmp + i), v(tmp + i)))
        for i in range(4):
            A("v_pk_mul_f32 %s, %s, %s" % (v(G[i], 2), v(G[i], 2), v(U[i], 2)))
        for i in range(4):
            A("v_pk_add_f32 %s, %s, s[14:15]" % (v(tmp + 2 * i, 2), v(tmp + 2 * i, 2)))
        for i in range(8):
            A("v_rcp_f32 %s, %s" % (v(tmp + i), v(tmp + i)))
        A("s_nop 0")
        for i in range(4):
            A("v_pk_mul_f32 %s, %s, %s" % (v(G[i], 2), v(G[i], 2), v(tmp + 2 * i, 2)))
        for i in range(4):
            A("v_cvt_pk_bf16_f32 %s, %s, %s" % (v(tmp + 8 + i), v(G[i]), v(G[i] + 1)))
        if t == 4:
            A("s_add_u32 s9, s9, 4096")
        A("buffer_store_dwordx4 %s, %s, s[48:51], s9 offen offset:%d%s" % (v(tmp + 8, 4), v(vXo), 1024 * (t % 4), SC1))
    A.ts(6)


def cmul(A, d, a, f, t):
    A("v_pk_mul_f32 %s, %s, %s op_sel:[0,0] op_sel_hi:[1,0]" % (v(t, 2), v(a, 2), v(f, 2)))
    A("v_pk_fma_f32 %s, %s, %s, %s op_sel:[1,1,0] op_sel_hi:[0,1,1] neg_lo:[1,0,0]" % (v(d, 2), v(a, 2), v(f, 2), v(t, 2)))


def kgen_issue(A):
    for i in range(20):
        A("v_mov_b32 %s, 0" % v(40 + i))
    A("s_mul_i32 s4, s68, 384")
    A("v_lshlrev_b32 v38, 1, v1")
    A("v_add_u32 v38, s4, v38")
    A("s_lshl_b32 s4, s68, 1")
    A("v_mov_b32 v39, s4")
    A("global_load_short_d16_hi v58, v39, %s" % s(P_LDT, 2))
    A("global_load_short_d16_hi v59, v39, %s" % s(P_DSK, 2))
    for c in range(3):
        for i, p in enumerate([P_ARE, P_AIM, P_BRE, P_BIM, P_CRE, P_CIM]):
            A("global_load_short_d16_hi %s, v38, %s offset:%d" % (v(40 + 6 * c + i), s(p, 2), 128 * c))


HI = list(range(8)) + [256, 258, 260, 262, 512, 516, 768, 772, 1024, 1280, 1536, 1792, 2048]
EROW = 272


def kgen(A):
    vW, vR = 60, 61
    DT = 62
    KACC = 64
    E1, E8, E256, WW = 80, 82, 84, 86
    TA, TB = 88, 90
    LO = [92, 94, 96, 98]
    E16 = 100
    Gs = 104
    PK = 146
    FR = 160
    A("v_lshlrev_b32 %s, 2, v1" % v(vW))
    A("v_add_u32 %s, s69, %s" % (v(vW), v(vW)))
    A("v_and_b32 v2, 31, v1")
    A("v_mul_u32_u24 %s, %d, v2" % (v(vR), EROW))
    A("v_lshrrev_b32 v2, 5, v1")
    A("v_lshl_add_u32 %s, v2, 4, %s" % (v(vR), v(vR)))
    A("v_add_u32 %s, s69, %s" % (v(vR), v(vR)))
    A("v_mul_f32 %s, %s, v58" % (v(DT), fbits(LOG2E)))
    A("v_exp_f32 %s, %s" % (v(DT), v(DT)))
    A("s_nop 0")
    A("v_cvt_pk_bf16_f32 %s, %s, %s" % (v(DT), v(DT), v(DT)))
    A("v_and_b32 %s, 0xffff0000, %s" % (v(DT), v(DT)))
    pk = [0]

    def put(row, r, neg):
        p = PK + (pk[0] & 7)
        pk[0] += 1
        A("v_cvt_pk_bf16_f32 %s, %s, %s%s" % (v(p), v(r), "-" if neg else "", v(r + 1)))
        A("ds_write_b32 %s, %s offset:%d" % (v(vW), v(p), row * EROW))
    for c in range(3):
        are, aim, bre, bim, cre, cim = [40 + 6 * c + i for i in range(6)]
        A("v_mul_f32 %s, %s, %s" % (v(are), v(DT), v(are)))
        A("v_mul_f32 %s, %s, %s" % (v(aim), v(DT), v(aim)))
        A("v_mul_f32 %s, %s, %s" % (v(bre), v(DT), v(bre)))
        A("v_mul_f32 %s, %s, %s" % (v(bim), v(DT), v(bim)))
        A("v_mul_f32 %s, %s, %s" % (v(are), fbits(LOG2E), v(are)))
        A("v_mul_f32 %s, %s, %s" % (v(aim), fbits(0.5 / math.pi), v(aim)))
        cmul(A, Gs, cre, bre, TA)
        for (E, l) in [(E1, 1.0), (E8, 8.0), (E256, 256.0)]:
            A("v_mul_f32 %s, %s, %s" % (v(TA), fbits(l), v(are)))
            A("v_mul_f32 %s, %s, %s" % (v(TA + 1), fbits(l), v(aim)))
            A("v_exp_f32 %s, %s" % (v(TA), v(TA)))
            A("v_fract_f32 %s, %s" % (v(TA + 1), v(TA + 1)))
            A("v_cos_f32 %s, %s" % (v(E), v(TA + 1)))
            A("v_sin_f32 %s, %s" % (v(E + 1), v(TA + 1)))
            A("s_nop 0")
            A("v_pk_mul_f32 %s, %s, %s op_sel:[0,0] op_sel_hi:[1,0]" % (v(E, 2), v(E, 2), v(TA, 2)))
        cmul(A, E16, E8, E8, E16)
        A("v_mov_b32 %s, 0x3f80" % v(PK))
        A("ds_write_b32 %s, %s offset:%d" % (v(vW), v(PK), 21 * EROW))
        pk[0] = 1
        put(22, E8, False)
        put(23, E16, False)
        put(0, Gs, True)
        ops = []
        cur = [E16, E8]
        lo_ops = []
        for j in range(3, 32):
            ch = 1 if (j & 1) else 0
            dst = LO[2 * ch + ((j >> 1) & 1)]
            lo_ops.append((dst, cur[ch], E16, 21 + j, False))
            cur[ch] = dst
        G = lambda i: Gs + 2 * i
        hi_ops = [(G(i), G(i - 1), E1, i, True) for i in range(1, 8)]
        src = {8: 0, 9: 2, 10: 4, 11: 6, 12: 8, 13: 10, 14: 12, 15: 13, 16: 14, 17: 16, 18: 17, 19: 18, 20: 19}
        order = [8, 9, 12, 10, 14, 11, 16, 13, 17, 15, 18, 19, 20]
        hi_ops += [(G(i), G(src[i]), E256, i, True) for i in order]
        while lo_ops or hi_ops:
            grp = []
            for _ in range(2):
                if lo_ops:
                    grp.append(lo_ops.pop(0))
            if hi_ops:
                grp.append(hi_ops.pop(0))
            if not lo_ops and hi_ops and len(grp) < 2:
                pass
            for (d, a, f, row, neg) in grp:
                A("v_pk_mul_f32 %s, %s, %s op_sel:[0,0] op_sel_hi:[1,0]" % (v(d, 2), v(a, 2), v(f, 2)))
            for (d, a, f, row, neg) in grp:
                A("v_pk_fma_f32 %s, %s, %s, %s op_sel:[1,1,0] op_sel_hi:[0,1,1] neg_lo:[1,0,0]" % (v(d, 2), v(a, 2), v(f, 2), v(d, 2)))
            for (d, a, f, row, neg) in grp:
                put(row, d, neg)
        A("s_waitcnt lgkmcnt(0)")
        for hf in range(2):
            for k in range(4):
                ks = 4 * hf + k
                A("ds_read_b128 %s, %s offset:%d" % (v(FR + 8 * ks, 4), v(vR), 32 * ks))
                A("ds_read_b128 %s, %s offset:%d" % (v(FR + 8 * ks + 4, 4), v(vR), 32 * ks + 21 * EROW))
            if hf == 0:
                A("s_waitcnt lgkmcnt(6)")
        for ks in range(8):
            A("s_waitcnt lgkmcnt(%d)" % min(15, 2 * (7 - ks)))
            cin = "0" if (c == 0 and ks == 0) else v(KACC, 16)
            A("v_mfma_f32_32x32x16_bf16 %s, %s, %s, %s" % (v(KACC, 16), v(FR + 8 * ks, 4), v(FR + 8 * ks + 4, 4), cin))
    TB0 = AUX_U + 512
    A("v_and_b32 v2, 31, v1")
    A("v_lshrrev_b32 v3, 5, v1")
    A("v_lshlrev_b32 v4, 5, v2")
    A("v_lshl_add_u32 v4, v3, 4, v4")
    A("v_add_u32 v4, s69, v4")
    A("v_lshlrev_b32 v5, 4, v2")
    A("v_add_u32 v5, s69, v5")
    A("v_lshlrev_b32 v6, 3, v2")
    A("v_add_u32 v6, s69, v6")
    A("v_lshlrev_b32 v7, 2, v2")
    A("v_add_u32 v7, s69, v7")
    A("s_nop 7")
    A("s_mov_b64 exec, 1")
    A("v_add_f32 %s, %s, v59" % (v(KACC), v(KACC)))
    A("s_mov_b64 exec, -1")
    A("ds_write_b128 v4, %s offset:%d" % (v(KACC, 4), TB0))
    A("s_mov_b32 exec_hi, 0")
    A("ds_write_b128 v5, %s offset:%d" % (v(KACC + 4, 4), TB0 + 256 * 4))
    for r in range(4):
        A("ds_write_b32 v7, %s offset:%d" % (v(KACC + 8 + r), TB0 + (512 + 32 * r) * 4))
    A("s_mov_b32 exec_lo, 0")
    A("s_mov_b32 exec_hi, -1")
    A("ds_write_b64 v6, %s offset:%d" % (v(KACC + 4, 2), TB0 + 384 * 4))
    A("ds_write_b64 v6, %s offset:%d" % (v(KACC + 6, 2), TB0 + 448 * 4))
    A("ds_write_b32 v7, %s offset:%d" % (v(KACC + 8), TB0 + 640 * 4))
    A("s_mov_b64 exec, -1")
    A("v_mov_b32 v8, 0")
    A("v_mov_b32 v9, 0")
    A("v_lshlrev_b32 v2, 3, v1")
    A("v_add_u32 v2, s69, v2")
    A("ds_write_b64 v2, v[8:9] offset:%d" % AUX_U)
    A("v_lshrrev_b32 v3, 4, v1")
    A("v_mul_u32_u24 v3, %d, v3" % KSTR)
    A("v_and_b32 v4, 15, v1")
    A("v_lshl_add_u32 v3, v4, 2, v3")
    A("v_add_u32 v3, s69, v3")
    A("s_waitcnt lgkmcnt(0)")
    A("ds_write_b32 v3, v8 offset:4096")
    S0, S1, S2, S3 = 10, 16, 20, 24
    A("v_lshlrev_b32 v4, 4, v1")
    A("v_add_u32 v4, s69, v4")
    A("ds_read_b128 %s, v4 offset:%d" % (v(S0 + 2, 4), TB0))
    A("ds_read_b32 %s, v4 offset:%d" % (v(S0), TB0 + 16))
    for (S, b) in [(S1, 256), (S2, 384), (S3, 512)]:
        A("ds_read_b64 %s, v2 offset:%d" % (v(S, 2), TB0 + 4 * b))
        A("ds_read_b32 %s, v2 offset:%d" % (v(S + 2), TB0 + 4 * b + 8))
    A("v_sub_u32 v5, 63, v1")
    A("v_lshlrev_b32 v6, 5, v5")
    A("v_add_u32 v6, s69, v6")
    A("v_lshlrev_b32 v7, 4, v5")
    A("v_add_u32 v7, s69, v7")
    A("v_lshlrev_b32 v5, 3, v5")
    A("v_add_u32 v5, s69, v5")
    A("s_waitcnt lgkmcnt(0)")
    O = 28
    def val3(o):
        return S3 + (0 if o <= 4 else 1 if o <= 11 else 2)
    def val2(o):
        return S2 + (0 if o <= 2 else 1 if o <= 5 else 2)
    for d in range(4):
        o0 = O + 12 * (d & 1)
        for w in range(8):
            A("v_cvt_pk_bf16_f32 %s, %s, %s" % (v(o0 + w), v(val3(d + 15 - 2 * w)), v(val3(d + 14 - 2 * w))))
        for w in range(4):
            A("v_cvt_pk_bf16_f32 %s, %s, %s" % (v(o0 + 8 + w), v(val2(d + 7 - 2 * w)), v(val2(d + 6 - 2 * w))))
        A("ds_write_b128 v6, %s offset:%d" % (v(o0, 4), d * KSTR))
        A("ds_write_b128 v6, %s offset:%d" % (v(o0 + 4, 4), d * KSTR + 16))
        A("ds_write_b128 v7, %s offset:%d" % (v(o0 + 8, 4), d * KSTR + 2048))
    A("v_cvt_pk_bf16_f32 v52, %s, %s" % (v(S2), v(S2)))
    A("ds_write_b32 v7, v52 offset:%d" % (2 * KSTR + 2048 + 16))
    A("ds_write_b32 v7, v52 offset:%d" % (3 * KSTR + 2048 + 16))
    a, b, c = S1, S1 + 1, S1 + 2
    t0, t1, t2, t3, t4 = S0 + 2, S0 + 3, S0 + 4, S0 + 5, S0
    prs = [(c, b), (a, a), (c, c), (b, a), (t3, t2), (t1, t0), (t4, t3), (t2, t1)]
    for i, (x, y) in enumerate(prs):
        A("v_cvt_pk_bf16_f32 %s, %s, %s" % (v(64 + i), v(x), v(y)))
    A("v_cvt_pk_bf16_f32 v72, %s, 0" % v(t0))
    for d in range(2):
        A("ds_write_b64 v5, %s offset:%d" % (v(64 + 2 * d, 2), d * KSTR + 3072))
        A("ds_write_b64 v5, %s offset:%d" % (v(68 + 2 * d, 2), d * KSTR + 3584))
    for d in range(2, 4):
        for (r, off) in [(64 + 2 * (d - 2), 3072), (68 + 2 * (d - 2), 3584)]:
            A("ds_write_b32 v5, %s offset:%d" % (v(r), d * KSTR + off + 4))
            A("ds_write_b32 v5, %s offset:%d" % (v(r + 1), d * KSTR + off + 8))
    A("s_mov_b64 exec, 1")
    A("ds_write_b32 v5, v72 offset:%d" % (1 * KSTR + 3584 + 8))
    A("ds_write_b32 v5, v72 offset:%d" % (3 * KSTR + 3584 + 12))
    A("s_mov_b64 exec, -1")
    A("s_waitcnt lgkmcnt(0)")


def conv(A):
    AF, BF, ACC = 64, 128, 192
    vK, vU = 2, 3
    A("v_mul_u32_u24 v4, 10240, v1")
    A("s_lshl_b32 s4, s68, 4")
    A("s_add_u32 s4, s4, 0x%x" % WS_XT)
    for i in range(4):
        A("buffer_load_dwordx4 %s, v4, s[48:51], s4 offen%s" % (v(16 + 4 * i, 4), SC1))
        if i < 3:
            A("s_add_u32 s4, s4, %d" % (64 * 10240))
    A("v_lshlrev_b32 v5, 4, v1")
    A("v_add_u32 v5, s69, v5")
    A("v_and_b32 v6, 15, v1")
    A("v_lshrrev_b32 v7, 4, v1")
    A("v_add_u32 v8, 1, v6")
    A("v_and_b32 v9, 3, v8")
    A("v_mul_u32_u24 %s, %d, v9" % (v(vK), KSTR))
    A("v_lshrrev_b32 v8, 2, v8")
    A("v_lshlrev_b32 v8, 3, v8")
    A("v_sub_u32 %s, %s, v8" % (v(vK), v(vK)))
    A("v_lshl_add_u32 %s, v7, 4, %s" % (v(vK), v(vK)))
    A("s_add_u32 s4, s69, 32")
    A("v_add_u32 %s, s4, %s" % (v(vK), v(vK)))
    A("v_lshlrev_b32 %s, 5, v6" % v(vU))
    A("v_lshl_add_u32 %s, v7, 4, %s" % (v(vU), v(vU)))
    A("v_add_u32 %s, s69, %s" % (v(vU), v(vU)))
    for i in range(4):
        A("s_waitcnt vmcnt(%d)" % (3 - i))
        A("ds_write_b128 v5, %s offset:%d" % (v(16 + 4 * i, 4), AUX_U + 512 + 1024 * i))
    A("s_waitcnt lgkmcnt(0)")
    A.ts(9)
    lg = Cnt(A, "lgkmcnt", 15)

    def rdA(ph, p):
        r = AF + 32 * (ph & 1) + 4 * p
        off = 64 * (7 - ph) + 512 * (7 - p)
        A("ds_read_b64 %s, %s offset:%d" % (v(r, 2), v(vK), off))
        lg.issue(("a0", ph, p))
        A("ds_read_b64 %s, %s offset:%d" % (v(r + 2, 2), v(vK), off + 8))
        lg.issue(("a", ph, p))

    def rdB(ph, m):
        r = BF + 32 * (ph & 1) + 4 * m
        A("ds_read_b128 %s, %s offset:%d" % (v(r, 4), v(vU), AUX_U + 480 - 64 * ph + 512 * m))
        lg.issue(("b", ph, m))
    def reads(ph):
        L = []
        for i in range(8):
            L.append((rdA, ph, i))
            L.append((rdB, ph, i))
        return L
    pairs = sorted([(p, m) for p in range(8) for m in range(8) if p + m <= 7], key=lambda x: (max(x), x))
    pend = reads(0)
    for _ in range(8):
        f, a1, a2 = pend.pop(0)
        f(a1, a2)
    seen = set()
    for ph in range(8):
        if ph + 1 < 8:
            pend += reads(ph + 1)
        for n, (p, m) in enumerate(pairs):
            while any((f is rdA and a1 == ph and a2 == p) or (f is rdB and a1 == ph and a2 == m) for (f, a1, a2) in pend):
                f, a1, a2 = pend.pop(0)
                f(a1, a2)
            lg.wait(("a", ph, p))
            lg.wait(("b", ph, m))
            q = p + m
            cin = v(ACC + 4 * q, 4) if q in seen else "0"
            seen.add(q)
            A("v_mfma_f32_16x16x32_bf16 %s, %s, %s, %s" % (v(ACC + 4 * q, 4), v(AF + 32 * (ph & 1) + 4 * p, 4), v(BF + 32 * (ph & 1) + 4 * m, 4), cin))
            if pend and (n & 1) == 0 and len(lg.q) <= 12:
                f, a1, a2 = pend.pop(0)
                f(a1, a2)
    A.ts(10)
    A("v_lshlrev_b32 v8, 5, v6")
    A("v_lshl_add_u32 v8, v7, 3, v8")
    A("v_add_u32 v8, s69, v8")
    A("s_nop 7")
    for q in range(8):
        A("v_cvt_pk_bf16_f32 %s, %s, %s" % (v(16 + 2 * q), v(ACC + 4 * q), v(ACC + 4 * q + 1)))
        A("v_cvt_pk_bf16_f32 %s, %s, %s" % (v(17 + 2 * q), v(ACC + 4 * q + 2), v(ACC + 4 * q + 3)))
        A("ds_write_b64 v8, %s offset:%d" % (v(16 + 2 * q, 2), AUX_U + 512 + 512 * q))
    A("s_waitcnt lgkmcnt(0)")
    for i in range(4):
        A("ds_read_b128 %s, v5 offset:%d" % (v(32 + 4 * i, 4), AUX_U + 512 + 1024 * i))
    A("v_lshlrev_b32 v4, 4, v1")
    A("s_lshl_b32 s4, s68, 12")
    A("s_add_u32 s4, s4, 0x%x" % WS_AT)
    for i in range(4):
        A("s_waitcnt lgkmcnt(%d)" % (3 - i))
        A("buffer_store_dwordx4 %s, v4, s[48:51], s4 offen offset:%d%s" % (v(32 + 4 * i, 4), 1024 * i, SC1))
    A.ts(11)


PBUF = 8192


def pprep(A):
    srd(A, 52, P_X, 2048 * 640 * 2)
    A("s_sub_u32 s8, s3, 4")
    A("v_lshrrev_b32 v2, 3, v1")
    A("v_and_b32 v3, 7, v1")
    A("v_lshlrev_b32 v4, 12, v2")
    A("v_lshl_add_u32 v4, v3, 4, v4")
    A("s_mul_i32 s4, s63, 80")
    A("s_lshl_b32 s5, s8, 5")
    A("s_add_u32 s4, s4, s5")
    A("s_lshl_b32 s6, s4, 12")
    A("s_lshl_b32 s5, s62, 7")
    A("s_add_u32 s6, s6, s5")
    A("s_add_u32 s6, s6, 0x%x" % WS_AT)
    A("v_lshrrev_b32 v5, 2, v1")
    A("v_and_b32 v6, 3, v1")
    A("v_mul_u32_u24 v7, 1280, v5")
    A("v_lshl_add_u32 v7, v6, 4, v7")
    A("s_mul_i32 s7, s62, %d" % (64 * 1280))
    A("s_lshl_b32 s5, s4, 1")
    A("s_add_u32 s7, s7, s5")
    for i in range(4):
        A("buffer_load_dwordx4 %s, v7, s[52:55], s7 offen" % v(32 + 4 * i, 4))
        A("s_add_u32 s7, s7, %d" % (16 * 1280))
    return


def pprep2(A):
    AROW = 144
    XROW = 80
    XOFF = 32 * AROW
    for i in range(4):
        A("buffer_load_dwordx4 %s, v4, s[48:51], s6 offen%s" % (v(16 + 4 * i, 4), SC1))
        A("s_add_u32 s6, s6, %d" % (8 * 4096))
    A("v_mul_u32_u24 v8, %d, v2" % AROW)
    A("v_lshl_add_u32 v8, v3, 4, v8")
    A("v_add_u32 v8, s69, v8")
    A("v_mul_u32_u24 v9, %d, v5" % XROW)
    A("v_lshl_add_u32 v9, v6, 4, v9")
    A("v_add_u32 v9, s69, v9")
    A("s_waitcnt vmcnt(4)")
    for i in range(4):
        A("ds_write_b128 v9, %s offset:%d" % (v(32 + 4 * i, 4), XOFF + 16 * XROW * i))
    for i in range(4):
        A("s_waitcnt vmcnt(%d)" % (3 - i))
        A("ds_write_b128 v8, %s offset:%d" % (v(16 + 4 * i, 4), 8 * AROW * i))
    A("v_lshrrev_b32 v10, 2, v1")
    A("v_mul_u32_u24 v10, %d, v10" % AROW)
    A("v_lshl_add_u32 v10, v6, 3, v10")
    A("v_add_u32 v10, s69, v10")
    A("v_and_b32 v11, 15, v1")
    A("v_mul_u32_u24 v11, %d, v11" % XROW)
    A("v_lshrrev_b32 v12, 4, v1")
    A("v_lshl_add_u32 v11, v12, 3, v11")
    A("v_add_u32 v11, s69, v11")
    A("v_lshlrev_b32 v12, 4, v1")
    A("v_add_u32 v12, s69, v12")
    A("s_waitcnt lgkmcnt(0)")
    for c in range(2):
        for st in range(4):
            r = 16 + 16 * c + 4 * st
            A("ds_read_b64_tr_b16 %s, v10 offset:%d" % (v(r, 2), 16 * AROW * c + 32 * st))
            A("ds_read_b64 %s, v11 offset:%d" % (v(r + 2, 2), XOFF + 16 * XROW * st + 32 * c))
        A("s_waitcnt lgkmcnt(0)")
    for c in range(2):
        for st in range(4):
            r = 16 + 16 * c + 4 * st
            o = 48 + 8 * (st & 1)
            for e in range(2):
                A("v_lshlrev_b32 %s, 16, %s" % (v(o + 2 * e), v(r + e)))
                A("v_and_b32 %s, 0xffff0000, %s" % (v(o + 2 * e + 1), v(r + e)))
                A("v_lshlrev_b32 %s, 16, %s" % (v(o + 4 + 2 * e), v(r + 2 + e)))
                A("v_and_b32 %s, 0xffff0000, %s" % (v(o + 4 + 2 * e + 1), v(r + 2 + e)))
            A("v_pk_add_f32 %s, %s, %s" % (v(o, 2), v(o, 2), v(o + 4, 2)))
            A("v_pk_add_f32 %s, %s, %s" % (v(o + 2, 2), v(o + 2, 2), v(o + 6, 2)))
            A("v_cvt_pk_bf16_f32 %s, %s, %s" % (v(o + 4), v(o), v(o + 1)))
            A("v_cvt_pk_bf16_f32 %s, %s, %s" % (v(o + 5), v(o + 2), v(o + 3)))
            for e in range(2):
                A("v_lshlrev_b32 %s, 16, %s" % (v(o + 2 * e), v(o + 4 + e)))
                A("v_and_b32 %s, 0xffff0000, %s" % (v(o + 2 * e + 1), v(o + 4 + e)))
            A("ds_write_b128 v12, %s offset:%d" % (v(o, 4), PBUF + 1024 * (4 * c + st)))
    A("s_waitcnt lgkmcnt(0)")


def gemm2(A, base):
    ACC, WF, HR0, NHR = 216, 196, 12, 23
    vA0, vA1, vC, vF, vP, vHo, vPa = 2, 3, 4, 5, 6, 7, 8
    lg = Cnt(A, "lgkmcnt", 15)
    vm = Cnt(A, "vmcnt", 63)
    A("s_and_b32 s11, s3, 1")
    A("s_lshr_b32 s12, s3, 1")
    A("s_lshl_b32 s8, s62, 1")
    A("s_add_u32 s8, s8, s11")
    A("s_mul_i32 s9, s8, %d" % (96 * 1024))
    A("s_lshl_b32 s4, s12, 11")
    A("s_add_u32 s9, s9, s4")
    A("s_add_u32 s9, s9, 0x%x" % WS_HF)
    A("v_lshrrev_b32 v9, 4, v1")
    A("v_and_b32 v10, 15, v1")
    A("v_lshlrev_b32 %s, 4, v10" % v(vHo))
    A("v_lshl_add_u32 %s, v9, 9, %s" % (v(vHo), v(vHo)))

    def hload(i):
        if i:
            A("s_add_u32 s9, s9, 4096")
        for a in range(2):
            A("buffer_load_dwordx4 %s, %s, s[48:51], s9 offen offset:%d%s" % (v(HR0 + 8 * (i % NHR) + 4 * a, 4), v(vHo), 256 * a, SC1))
            vm.issue(("h", i, a))
    for i in range(NHR):
        hload(i)
    A("v_lshrrev_b32 v9, 2, v1")
    A("v_mul_u32_u24 %s, 160, v9" % v(vA0))
    A("v_and_b32 v9, 3, v1")
    A("v_lshl_add_u32 %s, v9, 3, %s" % (v(vA0), v(vA0)))
    A("v_mov_b32 %s, %d" % (v(vC), CTRL))
    A("s_lshl_b32 s4, s3, 2")
    A("s_add_u32 s4, s4, %d" % C_PROG)
    A("v_mov_b32 %s, s4" % v(vPa))
    A("v_mov_b32 %s, 0" % v(vF))
    A("s_mul_i32 s13, s12, %d" % SLOT2)
    A("s_add_u32 s14, s12, %d" % (base + 1))

    def nextslot():
        A("s_add_u32 s13, s13, %d" % (2 * SLOT2))
        A("s_cmp_ge_u32 s13, %d" % (R2 * SLOT2))
        A("s_cselect_b32 s4, %d, 0" % (R2 * SLOT2))
        A("s_sub_u32 s13, s13, s4")
        A("s_add_u32 s14, s14, 2")

    def fwait():
        ok, poll = A.newl("Lfok"), A.newl("Lfpoll")
        A("v_readfirstlane_b32 s10, %s" % v(vF))
        A("s_cmp_ge_u32 s10, s14")
        A("s_cbranch_scc1 %s" % ok)
        A.label(poll)
        guard(A)
        A("ds_read_b32 %s, %s" % (v(vF), v(vC)))
        A("s_waitcnt lgkmcnt(0)")
        A("v_readfirstlane_b32 s10, %s" % v(vF))
        A("s_cmp_ge_u32 s10, s14")
        A("s_cbranch_scc0 %s" % poll)
        A.label(ok)

    def wread(i, ct):
        A("ds_read_b64_tr_b16 %s, %s offset:%d" % (v(WF + 4 * ct, 2), v(vA1), 32 * ct))
        lg.issue(("w", i, ct, 0))
        A("ds_read_b64_tr_b16 %s, %s offset:%d" % (v(WF + 4 * ct + 2, 2), v(vA1), 32 * ct + 16 * 160))
        lg.issue(("w", i, ct))
    A("v_add_u32 %s, s13, %s" % (v(vA1), v(vA0)))
    fwait()
    A.ts(13)
    for ct in range(5):
        wread(0, ct)
    for i in range(24):
        if i + 1 < 24:
            nextslot()
        for ct in range(5):
            lg.wait(("w", i, ct))
            for a in range(2):
                vm.wait(("h", i, a))
                d = ACC + 20 * a + 4 * ct
                cin = "0" if i == 0 else v(d, 4)
                A("v_mfma_f32_16x16x32_bf16 %s, %s, %s, %s" % (v(d, 4), v(WF + 4 * ct, 4), v(HR0 + 8 * (i % NHR) + 4 * a, 4), cin))
            if i + 1 < 24:
                if ct == 0:
                    A("v_add_u32 %s, s13, %s" % (v(vA1), v(vA0)))
                    fwait()
                    if i + 2 < 24:
                        A("ds_read_b32 %s, %s" % (v(vF), v(vC)))
                        lg.issue(("f", i))
                wread(i + 1, ct)
        A("s_sub_u32 s4, s14, %d" % (1 if i + 1 < 24 else -1))
        A("v_mov_b32 %s, s4" % v(vP))
        A("ds_write_b32 %s, %s" % (v(vPa), v(vP)))
        lg.issue(("p", i))
        if i + NHR < 24:
            hload(i + NHR)
    A.ts(14)
    lsw, ljoin = A.newl("Lsw"), A.newl("Ljoin")
    A("v_lshlrev_b32 v9, 4, v1")
    A("s_mul_i32 s4, s3, 5120")
    A("s_add_u32 s4, s4, %d" % XCH)
    A("v_add_u32 v10, s4, v9")
    A("s_xor_b32 s5, s3, 2")
    A("s_mul_i32 s5, s5, 5120")
    A("s_add_u32 s5, s5, %d" % XCH)
    A("v_add_u32 v11, s5, v9")
    A("s_nop 4")
    A("s_cmp_eq_u32 s12, 0")
    A("s_cbranch_scc1 %s" % lsw)
    for ct in range(5):
        A("ds_write_b128 v10, %s offset:%d" % (v(ACC + 4 * ct, 4), 1024 * ct))
    A("s_waitcnt lgkmcnt(0)")
    for r in range(20):
        A("v_mov_b32 %s, %s" % (v(ACC + r), v(ACC + 20 + r)))
    A("s_branch %s" % ljoin)
    A.label(lsw)
    for ct in range(5):
        A("ds_write_b128 v10, %s offset:%d" % (v(ACC + 20 + 4 * ct, 4), 1024 * ct))
    A.label(ljoin)
    A("s_lshl_b32 s5, s11, 1")
    A("s_add_u32 s5, s5, s12")
    A("s_lshl_b32 s6, s5, 10")
    A("s_add_u32 s6, s6, %d" % (AUX0 + PBUF))
    A("v_add_u32 v12, s6, v9")
    srd(A, 52, P_OUT, 2048 * 640 * 2)
    A("s_waitcnt lgkmcnt(0)")
    A("s_barrier")
    for ct in range(5):
        A("ds_read_b128 %s, v11 offset:%d" % (v(16 + 4 * ct, 4), 1024 * ct))
        A("ds_read_b128 %s, v12 offset:%d" % (v(40 + 4 * ct, 4), (ct >> 1) * AUXSZ + 4096 * (ct & 1)))
    OROW = 176
    A("v_and_b32 v13, 15, v1")
    A("v_mul_u32_u24 v13, %d, v13" % OROW)
    A("v_lshrrev_b32 v14, 4, v1")
    A("v_lshl_add_u32 v13, v14, 3, v13")
    A("s_mul_i32 s4, s3, 4096")
    A("v_add_u32 v13, s4, v13")
    for ct in range(5):
        A("s_waitcnt lgkmcnt(%d)" % (2 * (4 - ct) + ct))
        d = ACC + 4 * ct
        A("v_pk_add_f32 %s, %s, %s" % (v(d, 2), v(d, 2), v(16 + 4 * ct, 2)))
        A("v_pk_add_f32 %s, %s, %s" % (v(d + 2, 2), v(d + 2, 2), v(18 + 4 * ct, 2)))
        A("v_pk_add_f32 %s, %s, %s" % (v(d, 2), v(d, 2), v(40 + 4 * ct, 2)))
        A("v_pk_add_f32 %s, %s, %s" % (v(d + 2, 2), v(d + 2, 2), v(42 + 4 * ct, 2)))
        A("v_cvt_pk_bf16_f32 %s, %s, %s" % (v(64 + 2 * ct), v(d), v(d + 1)))
        A("v_cvt_pk_bf16_f32 %s, %s, %s" % (v(65 + 2 * ct), v(d + 2), v(d + 3)))
        A("ds_write_b64 v13, %s offset:%d" % (v(64 + 2 * ct, 2), 32 * ct))
    for p in range(3):
        A("v_add_u32 v22, %d, v1" % (64 * p))
        A("v_mul_u32_u24 v23, 52429, v22")
        A("v_lshrrev_b32 v23, 19, v23")
        A("v_mul_u32_u24 v24, 10, v23")
        A("v_sub_u32 v22, v22, v24")
        A("v_lshlrev_b32 v22, 4, v22")
        A("v_mul_u32_u24 v24, %d, v23" % OROW)
        A("v_add3_u32 %s, v24, v22, s4" % v(26 + p))
        A("v_mul_u32_u24 v24, 1280, v23")
        A("v_add_u32 %s, v24, v22" % v(30 + p))
    A("s_lshl_b32 s6, s62, 2")
    A("s_add_u32 s6, s6, s5")
    A("s_mul_i32 s6, s6, %d" % (16 * 1280))
    A("s_mul_i32 s7, s63, 160")
    A("s_add_u32 s6, s6, s7")
    A("s_waitcnt lgkmcnt(0)")
    for p in range(3):
        A("ds_read_b128 %s, %s" % (v(80 + 4 * p, 4), v(26 + p)))
    for p in range(3):
        A("s_waitcnt lgkmcnt(%d)" % (2 - p))
        if p == 2:
            A("s_mov_b32 exec_hi, 0")
        A("buffer_store_dwordx4 %s, %s, s[52:55], s6 offen" % (v(80 + 4 * p, 4), v(30 + p)))
    A("s_mov_b64 exec, -1")
    A.ts(15)


def aux_ids(A):
    A("s_sub_u32 s4, s3, 4")
    A("s_mul_i32 s68, s2, 3")
    A("s_add_u32 s68, s68, s4")
    A("s_mul_i32 s69, s4, %d" % AUXSZ)
    A("s_add_u32 s69, s69, %d" % AUX0)


def kdesc(name):
    return """.amdhsa_kernel %s
  .amdhsa_next_free_vgpr 256
  .amdhsa_next_free_sgpr 102
  .amdhsa_accum_offset 256
  .amdhsa_group_segment_fixed_size 0
  .amdhsa_kernarg_size 128
  .amdhsa_user_sgpr_count 2
  .amdhsa_user_sgpr_kernarg_segment_ptr 1
  .amdhsa_system_sgpr_workgroup_id_x 1
.end_amdhsa_kernel
""" % name


def build_multi():
    A = Asm()
    names = ["ln_kernel", "g1_kernel", "g2_kernel"]
    prologue(A, names[0], 0)
    ln_issue(A)
    A("s_waitcnt vmcnt(0)")
    A.ts(1)
    ln_compute(A)
    A("s_barrier")
    l = A.newl("Lend")
    A("s_cmp_ge_u32 s3, 4")
    A("s_cbranch_scc1 %s" % l)
    ln_store(A)
    A.label(l)
    A.ts(2)
    A.end()
    prologue(A, names[1], 3)
    map_g1(A)
    st0 = list(A.stamps)
    laux, lload = A.newl("Laux"), A.newl("Lload")
    A("s_cmp_eq_u32 s3, 7")
    A("s_cbranch_scc1 %s" % lload)
    A("s_cmp_ge_u32 s3, 4")
    A("s_cbranch_scc1 %s" % laux)
    A("s_setprio 2")
    A("s_barrier")
    gemm1(A)
    A.end()
    A.label(lload)
    A.stamps = list(st0)
    A("s_setprio 3")
    loader1_setup(A)
    loader1_first(A, 4)
    ctrl_init(A)
    A("s_barrier")
    loader_loop(A, 40, 0, R1, SLOT1, PIECES1, 16 * 3072, 4, 1)
    A.ts(4)
    A("s_waitcnt lgkmcnt(0)")
    A.end()
    A.label(laux)
    A.stamps = list(st0)
    aux_ids(A)
    A("s_barrier")
    l = A.newl("Lend")
    A("s_cmp_ge_u32 s68, 640")
    A("s_cbranch_scc1 %s" % l)
    kgen_issue(A)
    A("s_waitcnt vmcnt(0)")
    A.ts(7)
    kgen(A)
    A.ts(8)
    conv(A)
    A.end()
    A.label(l)
    A("s_endpgm")
    prologue(A, names[2], 12)
    map_g2(A)
    st0 = list(A.stamps)
    laux, lload = A.newl("Laux"), A.newl("Lload")
    A("s_cmp_eq_u32 s3, 7")
    A("s_cbranch_scc1 %s" % lload)
    A("s_cmp_ge_u32 s3, 4")
    A("s_cbranch_scc1 %s" % laux)
    A("s_setprio 2")
    A("s_barrier")
    gemm2(A, 0)
    A.end()
    A.label(lload)
    A.stamps = list(st0)
    A("s_setprio 3")
    loader2_setup(A)
    ctrl_init(A)
    A("s_barrier")
    loader_loop(A, 48, 0, R2, SLOT2, PIECES2, 32 * 1280, 0, 2)
    A.ts(13)
    A("s_waitcnt lgkmcnt(0)")
    A.end()
    A.label(laux)
    A.stamps = list(st0)
    aux_ids(A)
    A("s_barrier")
    pprep(A)
    pprep2(A)
    A.ts(13)
    A.end()
    hdr = "".join("; @launch kernel=%s grid=(256,1,1) block=(512,1,1) lds=%d\n" % (n, LDS_TOTAL) for n in names)
    return hdr, A, names


def main():
    hdr, A, names = build_multi()
    out = "; generated by gen.py (hand-written generator)\n" + hdr
    out += '.amdgcn_target "amdgcn-amd-amdhsa--gfx950"\n.text\n'
    out += "\n".join(A.L) + "\n"
    out += '.section .rodata,"a"\n'
    for n in names:
        out += ".p2align 6\n" + kdesc(n)
    open(sys.argv[1], "w").write(out)


main()
```

```python
import sys, math, struct

NAME = "parallel_sum__ssm_conv_s4__swiglu_ffn__prompt"
OPT = dict(ts=False)
for a in sys.argv[2:]:
    k, _, v = a.partition("=")
    OPT[k] = int(v) if v else True

WS_ST = 0x000000
WS_CS = 0x010000
WS_XT = 0x280000
WS_HF = 0x500000
WS_AT = 0xB00000
WS_FL = 0xD80000
WS_TS = 0xE00000
WS_WD = 0x1000000
WS_SIZE = 0x1200000
FL_P = WS_FL
FL_H = WS_FL + 0x4000
FL_A = WS_FL + 0x8000

UPOFF = 3088
SLOT1 = 6176
U1 = 2 * SLOT1
NU = 8
RING = 0
CTRL = NU * U1
C_FULL, C_NONCE, C_CSOK, C_PROG5, C_PROG, C_EPI = 0, 4, 8, 12, 16, 32
CSUM = CTRL + 64
AUX0 = CSUM + 768
KSTR = 4160
AUX_U = 4 * KSTR
AUXSZ = AUX_U + 4608
LDS_TOTAL = AUX0 + 3 * AUXSZ
LNROW = 1312
U2 = 10240
XCH = 4 * U1
assert LDS_TOTAL <= 163840

LOG2E = 1.4426950408889634
BUD, NON = "s0", "s1"

def fbits(x):
    return "0x%08x" % struct.unpack("<I", struct.pack("<f", x))[0]


def v(i, n=1):
    return "v%d" % i if n == 1 else "v[%d:%d]" % (i, i + n - 1)


def s(i, n=1):
    return "s%d" % i if n == 1 else "s[%d:%d]" % (i, i + n - 1)


class Cnt:
    def __init__(self, A, name, mx):
        self.A, self.name, self.mx, self.q = A, name, mx, []

    def issue(self, tag):
        self.q.append(tag)

    def wait(self, tag):
        if tag not in self.q:
            return
        i = len(self.q) - 1 - self.q[::-1].index(tag)
        n = len(self.q) - 1 - i
        self.A("s_waitcnt %s(%d)" % (self.name, min(n, self.mx)))
        self.q = self.q[i + 1:]

    def drain(self):
        self.A("s_waitcnt %s(0)" % self.name)
        self.q = []


class Asm:
    def __init__(self):
        self.L = []
        self.nl = 0
        self.stamps = []
        self.cold = []

    def flush_cold(self):
        for f in self.cold:
            f()
        self.cold = []

    def __call__(self, t):
        self.L.append("  " + t)

    def label(self, l):
        self.L.append(l + ":")

    def newl(self, p="L"):
        self.nl += 1
        return "%s_%d" % (p, self.nl)

    def c(self, t):
        self.L.append("  ; " + t)

    def ts(self, slot):
        if OPT["ts"]:
            self("%s %s" % ("s_memtime" if OPT.get("cyc") else "s_memrealtime", s(70 + 2 * slot, 2)))
            self.stamps.append(slot)

    def end(self):
        if OPT["ts"] and self.stamps:
            self("s_waitcnt lgkmcnt(0)")
            self("s_mov_b64 exec, 1")
            self("s_lshl_b32 s4, s2, 3")
            self("s_add_u32 s4, s4, s3")
            self("s_lshl_b32 s4, s4, 7")
            self("s_add_u32 s4, s4, 0x%x" % WS_TS)
            self("v_mov_b32 v2, 0")
            for sl in self.stamps:
                self("v_mov_b32 v0, %s" % s(70 + 2 * sl))
                self("v_mov_b32 v1, %s" % s(71 + 2 * sl))
                self("buffer_store_dwordx2 v[0:1], v2, s[48:51], s4 offen offset:%d" % (8 * sl))
                self("s_nop 1")
        self("s_endpgm")
        self.flush_cold()


P_X, P_ARE, P_AIM, P_BRE, P_BIM, P_CRE, P_CIM, P_LDT, P_DSK, P_BX, P_WG, P_WU, P_WD, P_OUT, P_DBG, P_WS = [16 + 2 * i for i in range(16)]
SC1 = " sc1"
LSC = " sc1"


def srd(A, d, ptr, size):
    A("s_mov_b32 %s, %s" % (s(d), s(ptr)))
    A("s_mov_b32 %s, %s" % (s(d + 1), s(ptr + 1)))
    A("s_mov_b32 %s, 0x%x" % (s(d + 2), size))
    A("s_mov_b32 %s, 0x20000" % s(d + 3))


def prologue(A, name, tsslot):
    A.L.append(".globl %s" % name)
    A.L.append(".p2align 8")
    A.L.append(".type %s,@function" % name)
    A.label(name)
    A.stamps = []
    ok = A.newl("Lgo")
    A("s_cmp_lt_u32 s2, 256")
    A("s_cbranch_scc1 %s" % ok)
    A.exit = A.newl("Lexit")
    A.label(A.exit)
    A("s_endpgm")
    A.label(ok)
    A("s_load_dwordx16 s[16:31], s[0:1], 0")
    A("s_load_dwordx16 s[32:47], s[0:1], 64")
    if OPT["ts"]:
        for i in range(16):
            A("s_mov_b64 %s, 0" % s(70 + 2 * i, 2))
    A.ts(tsslot)
    A("v_lshrrev_b32 v2, 6, v0")
    A("v_and_b32 v1, 63, v0")
    A("v_readfirstlane_b32 s3, v2")
    A("v_and_b32 v2, 15, v0")
    A("v_lshlrev_b32 v2, 2, v2")
    A("v_add_u32 v2, %d, v2" % CTRL)
    A("v_mov_b32 v3, 0")
    A("ds_write_b32 v2, v3")
    map_g1(A)
    map_g2(A)
    A("s_waitcnt lgkmcnt(0)")
    A("s_barrier")
    A("s_mov_b32 %s, 0x40000" % BUD)
    srd(A, 48, P_WS, WS_SIZE)


def guard(A):
    A("s_sub_u32 %s, %s, 1" % (BUD, BUD))
    A("s_cbranch_scc1 %s" % A.exit)


def map_g1(A):
    A("s_and_b32 s4, s2, 7")
    A("s_lshr_b32 s5, s2, 3")
    A("s_and_b32 s60, s4, 1")
    A("s_lshl_b32 s60, s60, 3")
    A("s_and_b32 s6, s5, 7")
    A("s_add_u32 s60, s60, s6")
    A("s_lshr_b32 s61, s4, 1")
    A("s_lshl_b32 s61, s61, 2")
    A("s_lshr_b32 s6, s5, 3")
    A("s_add_u32 s61, s61, s6")


def map_g2(A):
    A("s_and_b32 s4, s2, 7")
    A("s_lshr_b32 s5, s2, 3")
    A("s_lshl_b32 s62, s4, 2")
    A("s_and_b32 s6, s5, 3")
    A("s_add_u32 s62, s62, s6")
    A("s_lshr_b32 s63, s5, 2")


def lds_wait(A, off, cmp, val, vF, vC, sF, have=False, sleep=1):
    ok, poll = A.newl("Lok"), A.newl("Lpoll")

    def loop():
        A.label(poll)
        guard(A)
        A("ds_read_b32 %s, %s offset:%d" % (v(vF), v(vC), off))
        A("s_waitcnt lgkmcnt(0)")
        A("v_readfirstlane_b32 %s, %s" % (sF, v(vF)))
        A("s_cmp_%s_u32 %s, %d" % (cmp, sF, val))
        A("s_cbranch_scc1 %s" % ok)
        A("s_sleep %d" % sleep)
        A("s_branch %s" % poll)
    if have:
        A("v_readfirstlane_b32 %s, %s" % (sF, v(vF)))
        A("s_cmp_%s_u32 %s, %d" % (cmp, sF, val))
        A("s_cbranch_scc0 %s" % poll)
        A.cold.append(loop)
    else:
        loop()
    A.label(ok)


def nonce_lds(A, vt):
    A("v_mov_b32 %s, %d" % (v(vt + 1), CTRL))
    lds_wait(A, C_NONCE, "lg", 0, vt, vt + 1, NON)


def nonce_fetch(A, vt):
    poll = A.newl("Lnp")
    A.label(poll)
    guard(A)
    A("v_mov_b32 %s, 0" % v(vt))
    A("global_load_dword %s, %s, %s sc1" % (v(vt), v(vt), s(P_DBG, 2)))
    A("s_waitcnt vmcnt(0)")
    A("v_readfirstlane_b32 %s, %s" % (NON, v(vt)))
    A("s_cmp_lg_u32 %s, 0" % NON)
    A("s_cbranch_scc0 %s" % poll)
    A("v_mov_b32 %s, %d" % (v(vt + 1), CTRL))
    A("ds_write_b32 %s, %s offset:%d" % (v(vt + 1), v(vt), C_NONCE))


def signal(A, soff, vt):
    A("v_mov_b32 %s, 0" % v(vt))
    A("v_mov_b32 %s, %s" % (v(vt + 1), NON))
    A("s_mov_b64 exec, 1")
    A("buffer_store_dword %s, %s, s[48:51], %s offen sc1" % (v(vt + 1), v(vt), s(soff)))
    A("s_mov_b64 exec, -1")


def poll_flags(A, loads, tags, vt, sleep=2):
    top, done = A.newl("Lgp"), A.newl("Lgd")
    A.label(top)
    guard(A)
    for (r, n, vo, so, imm) in loads:
        op = {1: "dword", 2: "dwordx2", 4: "dwordx4"}[n]
        A("buffer_load_%s %s, %s, s[48:51], %s offen offset:%d sc1" % (op, v(r, n), v(vo), s(so), imm))
    A("s_waitcnt vmcnt(0)")
    tag_check(A, tags, vt, done)
    A("s_sleep %d" % sleep)
    A("s_branch %s" % top)
    A.label(done)


def tag_check(A, tags, vt, done):
    A("v_xor_b32 %s, %s, %s" % (v(vt), NON, v(tags[0])))
    for x in tags[1:]:
        A("v_xor_b32 %s, %s, %s" % (v(vt + 1), NON, v(x)))
        A("v_or_b32 %s, %s, %s" % (v(vt), v(vt), v(vt + 1)))
    A("v_cmp_ne_u32 s[4:5], 0, %s" % v(vt))
    A("s_cmp_eq_u64 s[4:5], 0")
    A("s_cbranch_scc1 %s" % done)


def setexec(A, m):
    A("s_mov_b32 exec_lo, 0x%x" % (m & 0xffffffff))
    A("s_mov_b32 exec_hi, 0x%x" % (m >> 32))


def poll_all(A, first, n, vt):
    A("v_lshlrev_b32 %s, 4, v1" % v(vt))
    A("s_mov_b32 s6, 0x%x" % (FL_P + 1024 * first))
    r0 = vt + 4
    poll_flags(A, [(r0 + 4 * i, 4, vt, 6, 1024 * i) for i in range(n)], list(range(r0, r0 + 4 * n)), vt + 1, 8)


def ln8_issue(A):
    srd(A, 52, P_X, 2048 * 640 * 2)
    A("v_lshrrev_b32 v2, 3, v1")
    A("v_and_b32 v3, 7, v1")
    A("v_mul_u32_u24 v4, 1280, v2")
    A("v_lshl_add_u32 v4, v3, 4, v4")
    A("s_mul_i32 s4, s2, %d" % (8 * 1280))
    for i in range(10):
        A("buffer_load_dwordx4 %s, v4, s[52:55], s4 offen offset:%d" % (v(64 + 4 * i, 4), 128 * i))


def red8(A, r):
    for m in ["quad_perm:[1,0,3,2]", "quad_perm:[2,3,0,1]", "row_half_mirror"]:
        A("s_nop 1")
        A("v_add_f32_dpp %s, %s, %s %s row_mask:0xf bank_mask:0xf" % (v(r), v(r), v(r), m))


def ln8(A):
    X, F = 64, 104
    for i in range(40):
        A("v_lshlrev_b32 %s, 16, %s" % (v(F + 2 * i), v(X + i)))
        A("v_and_b32 %s, 0xffff0000, %s" % (v(F + 2 * i + 1), v(X + i)))
    for i in range(4):
        A("v_add_f32 %s, %s, %s" % (v(6 + i), v(F + i), v(F + 4 + i)))
    for i in range(8, 80):
        A("v_add_f32 %s, %s, %s" % (v(6 + (i & 3)), v(6 + (i & 3)), v(F + i)))
    A("v_add_f32 v6, v6, v7")
    A("v_add_f32 v8, v8, v9")
    A("v_add_f32 v6, v6, v8")
    red8(A, 6)
    A("v_mul_f32 v10, %s, v6" % fbits(1.0 / 640))
    A("v_cvt_pk_bf16_f32 v11, v10, v10")
    A("v_and_b32 v11, 0xffff0000, v11")
    for i in range(80):
        A("v_sub_f32 %s, %s, v11" % (v(F + i), v(F + i)))
    for i in range(80):
        A("%s %s, %s, %s" % ("v_mul_f32" if i < 4 else "v_fmac_f32", v(6 + (i & 3)), v(F + i), v(F + i)))
    A("v_add_f32 v6, v6, v7")
    A("v_add_f32 v8, v8, v9")
    A("v_add_f32 v6, v6, v8")
    red8(A, 6)
    A("v_sub_f32 v10, v10, v11")
    A("v_mul_f32 v6, %s, v6" % fbits(1.0 / 640))
    A("v_fma_f32 v6, -v10, v10, v6")
    A("v_max_f32 v6, 0, v6")
    A("v_cvt_pk_bf16_f32 v6, v6, v6")
    A("v_and_b32 v6, 0xffff0000, v6")
    A("v_add_f32 v6, %s, v6" % fbits(1e-5))
    A("v_cvt_pk_bf16_f32 v6, v6, v6")
    A("v_and_b32 v6, 0xffff0000, v6")
    A("v_sqrt_f32 v6, v6")
    A("s_nop 0")
    A("v_cvt_pk_bf16_f32 v20, v11, v6")
    A("v_and_b32 v6, 0xffff0000, v20")
    A("v_rcp_f32 v6, v6")
    for i in range(40):
        A("v_cvt_pk_bf16_f32 %s, %s, %s" % (v(X + i), v(F + 2 * i), v(F + 2 * i + 1)))
    for i in range(40):
        A("v_lshlrev_b32 %s, 16, %s" % (v(F + 2 * i), v(X + i)))
        A("v_and_b32 %s, 0xffff0000, %s" % (v(F + 2 * i + 1), v(X + i)))
    for i in range(80):
        A("v_mul_f32 %s, %s, v6" % (v(F + i), v(F + i)))
    A("v_mul_u32_u24 v4, %d, v2" % LNROW)
    A("v_lshl_add_u32 v4, v3, 4, v4")
    A("v_add_u32 v4, s69, v4")
    for i in range(10):
        for e in range(4):
            A("v_cvt_pk_bf16_f32 %s, %s, %s" % (v(X + 4 * i + e), v(F + 8 * i + 2 * e), v(F + 8 * i + 2 * e + 1)))
        A("ds_write_b128 v4, %s offset:%d" % (v(X + 4 * i, 4), 128 * i))
    A("v_bfe_u32 v5, v1, 2, 2")
    A("v_mul_u32_u24 v5, %d, v5" % LNROW)
    A("v_lshrrev_b32 v7, 4, v1")
    A("v_lshl_add_u32 v5, v7, 5, v5")
    A("v_and_b32 v7, 3, v1")
    A("v_lshl_add_u32 v5, v7, 3, v5")
    A("v_add_u32 v5, s69, v5")
    A("v_lshlrev_b32 v7, 4, v1")
    A("s_mul_i32 s7, s2, 10240")
    A("s_add_u32 s7, s7, 0x%x" % WS_XT)
    A("s_waitcnt lgkmcnt(0)")
    for h in range(2):
        for i in range(5 * h, 5 * h + 5):
            A("ds_read_b64_tr_b16 %s, v5 offset:%d" % (v(F + 4 * i, 2), 128 * i))
            A("ds_read_b64_tr_b16 %s, v5 offset:%d" % (v(F + 4 * i + 2, 2), 128 * i + 4 * LNROW))
        for i in range(5 * h, 5 * h + 5):
            A("s_waitcnt lgkmcnt(%d)" % (2 * (5 * h + 4 - i)))
            A("buffer_store_dwordx4 %s, v7, s[48:51], s7 offen offset:%d sc1" % (v(F + 4 * i, 4), 1024 * (i % 4)))
            if i % 4 == 3:
                A("s_add_u32 s7, s7, 4096")
    nonce_lds(A, 8)
    A("v_mov_b32 v21, %s" % NON)
    A("s_lshl_b32 s7, s2, 6")
    A("s_add_u32 s7, s7, 0x%x" % WS_ST)
    setexec(A, 0x0101010101010101)
    A("buffer_store_dwordx2 v[20:21], v1, s[48:51], s7 offen sc1")
    A("s_mov_b64 exec, -1")


LV_C, LV_T, LV_Q = 36, 37, 40


def loader_loop(A, first, last, issued0, P, issue):
    top, nopub, noiss, done = [A.newl(x) for x in ["Lld", "Llp", "Lli", "Lle"]]
    mul = next(m for m in range(1, 4096) if all(((x + P - 1) * m) >> 10 == (x + P - 1) // P for x in range(64)))
    maxvm = OPT.get("maxvm", 60)
    A("s_mov_b32 s65, %d" % issued0)
    A("s_mov_b32 s68, %d" % first)
    A("s_mov_b32 s67, %d" % (NU if first == 0 else 0))
    if OPT.get("free") and first == 0:
        A("s_mov_b32 s67, 100")
    A.label(top)
    A("s_getreg_b32 s4, hwreg(HW_REG_IB_STS)")
    A("s_bfe_u32 s5, s4, 0x20016")
    A("s_and_b32 s4, s4, 15")
    A("s_lshl4_add_u32 s4, s5, s4")
    A("s_add_u32 s5, s4, %d" % (P - 1))
    A("s_mul_i32 s5, s5, %d" % mul)
    A("s_lshr_b32 s5, s5, 10")
    A("s_sub_u32 s5, s65, s5")
    A("s_cmp_gt_u32 s5, s68")
    A("s_cbranch_scc0 %s" % nopub)
    A("s_mov_b32 s68, s5")
    A("v_mov_b32 %s, s5" % v(LV_T))
    A("ds_write_b32 %s, %s" % (v(LV_C), v(LV_T)))
    A("s_cmp_ge_u32 s68, %d" % last)
    A("s_cbranch_scc1 %s" % done)
    A.label(nopub)
    A("s_min_u32 s5, s67, %d" % last)
    A("s_cmp_lt_u32 s65, s5")
    A("s_cbranch_scc0 %s" % noiss)
    A("s_cmp_le_u32 s4, %d" % (maxvm - P))
    A("s_cbranch_scc0 %s" % noiss)
    issue(A)
    A("s_add_u32 s65, s65, 1")
    A("s_branch %s" % top)
    A.label(noiss)
    guard(A)
    A("s_sleep %d" % OPT.get("lsl", 1))
    A("ds_read_b128 %s, %s offset:%d" % (v(LV_Q, 4), v(LV_C), C_PROG))
    A("ds_read_b32 %s, %s offset:%d" % (v(LV_T), v(LV_C), C_PROG5))
    A("s_waitcnt lgkmcnt(0)")
    A("v_min3_u32 %s, %s, %s, %s" % (v(LV_Q), v(LV_Q), v(LV_Q + 1), v(LV_T)))
    A("v_min3_u32 %s, %s, %s, %s" % (v(LV_Q), v(LV_Q), v(LV_Q + 2), v(LV_Q + 3)))
    A("s_nop 0")
    A("v_readfirstlane_b32 s67, %s" % v(LV_Q))
    A("s_add_u32 s67, s67, %d" % (100 if (OPT.get("free") and first == 0) else NU))
    A("s_branch %s" % top)
    A.label(done)


def rot1(A, sd):
    A("s_cmp_ge_u32 s60, 10")
    A("s_cselect_b32 %s, 10, 0" % s(sd))
    A("s_sub_u32 %s, s60, %s" % (s(sd), s(sd)))


def loader1_setup(A):
    srd(A, 52, P_WG, 640 * 1536 * 2)
    srd(A, 56, P_WU, 640 * 1536 * 2)
    for p in range(3):
        A("v_add_u32 v40, %d, v1" % (64 * p))
        A("v_mul_u32_u24 v41, 43691, v40")
        A("v_lshrrev_b32 v41, 19, v41")
        A("v_mul_u32_u24 v42, 12, v41")
        A("v_sub_u32 v40, v40, v42")
        A("v_lshrrev_b32 v42, 3, v41")
        A("v_mul_u32_u24 v42, 24, v42")
        A("v_add_u32 v41, v41, v42")
        A("v_mul_u32_u24 v41, 3072, v41")
        A("v_lshl_add_u32 %s, v40, 4, v41" % v(32 + p))
        if p and OPT.get("i1", 1):
            A("v_subrev_u32 %s, %d, %s" % (v(32 + p), 1024 * p, v(32 + p)))
    rot1(A, 4)
    A("s_mul_i32 s64, s61, 192")
    A("s_add_u32 s69, s64, %d" % (640 * 3072))
    A("s_mul_i32 s4, s4, %d" % (64 * 3072))
    A("s_add_u32 s64, s64, s4")
    A("s_mov_b32 s66, %d" % RING)
    A("s_mov_b32 s65, 0")
    A("v_mov_b32 %s, %d" % (v(LV_C), CTRL))


def next_slot(A):
    A("s_add_u32 s66, s66, %d" % U1)
    A("s_cmp_eq_u32 s66, %d" % (RING + NU * U1))
    A("s_cselect_b32 s66, %d, s66" % RING)


def issue1(A):
    if OPT.get("i1", 1):
        for k in range(2):
            A("s_add_u32 m0, s66, %d" % (k * SLOT1))
            if k == 0:
                A("s_add_u32 s6, s64, %d" % (8 * 3072))
            else:
                A("s_bitcmp1_b32 s65, 0")
            so = "s64" if k == 0 else "s6"
            for p in range(3):
                A("buffer_load_dwordx4 %s, s[52:55], %s offen offset:%d lds" % (v(32 + p), so, 1024 * p))
            if k == 1:
                A("s_cselect_b32 s5, %d, 0" % (32 * 3072))
            A("s_add_u32 m0, s66, %d" % (k * SLOT1 + UPOFF))
            if k == 0:
                A("s_nop 0")
            else:
                A("s_add_u32 s64, s6, s5")
            for p in range(3):
                A("buffer_load_dwordx4 %s, s[56:59], %s offen offset:%d lds" % (v(32 + p), so, 1024 * p))
        A("s_add_u32 s64, s64, %d" % (8 * 3072))
        A("s_cmp_ge_u32 s64, s69")
        A("s_cselect_b32 s5, %d, 0" % (640 * 3072))
        A("s_sub_u32 s64, s64, s5")
        next_slot(A)
        return
    for k in range(2):
        for (sr, lo) in [(52, 0), (56, UPOFF)]:
            for p in range(3):
                A("s_add_u32 m0, s66, %d" % (k * SLOT1 + lo + 1024 * p))
                A("s_nop 0")
                A("buffer_load_dwordx4 %s, %s, s64 offen lds" % (v(32 + p), s(sr, 4)))
        A("s_add_u32 s64, s64, %d" % (8 * 3072))
    A("s_bitcmp1_b32 s65, 0")
    A("s_cselect_b32 s5, %d, 0" % (32 * 3072))
    A("s_add_u32 s64, s64, s5")
    A("s_cmp_ge_u32 s64, s69")
    A("s_cselect_b32 s5, %d, 0" % (640 * 3072))
    A("s_sub_u32 s64, s64, s5")
    next_slot(A)


def rot2(A, sd):
    A("s_and_b32 %s, s62, 3" % s(sd))
    A("s_mul_i32 %s, %s, 6" % (s(sd), s(sd)))


def loader2_setup(A):
    rot2(A, 4)
    A("s_mul_i32 s64, s63, %d" % (24 * U2))
    A("s_add_u32 s64, s64, 0x%x" % WS_WD)
    A("s_add_u32 s69, s64, %d" % (24 * U2))
    A("s_mul_i32 s4, s4, %d" % U2)
    A("s_add_u32 s64, s64, s4")
    A("v_lshlrev_b32 v32, 4, v1")


def issue2(A):
    for g in range(3):
        A("s_add_u32 m0, s66, %d" % (4096 * g))
        A("s_add_u32 s5, s64, %d" % (4096 * g))
        for p in range(4 if g < 2 else 2):
            A("buffer_load_dwordx4 v32, s[48:51], s5 offen offset:%d%s lds" % (1024 * p, LSC))
    A("s_add_u32 s64, s64, %d" % U2)
    A("s_cmp_ge_u32 s64, s69")
    A("s_cselect_b32 s5, %d, 0" % (24 * U2))
    A("s_sub_u32 s64, s64, s5")
    next_slot(A)


def colsum_gather(A):
    A("v_lshlrev_b32 v44, 4, v1")
    A("s_mul_i32 s6, s61, 10240")
    A("s_add_u32 s6, s6, 0x%x" % WS_CS)
    A("s_add_u32 s7, s6, 4096")
    A("s_add_u32 s8, s6, 8192")
    poll_flags(A, [(48 + 4 * i, 4, 44, 6 + i // 4, 1024 * (i % 4)) for i in range(10)], [51 + 4 * i for i in range(10)], 45, 4)
    for i in range(1, 10):
        for e in range(3):
            A("v_add_f32 %s, %s, %s" % (v(48 + e), v(48 + e), v(48 + 4 * i + e)))
    A("v_lshlrev_b32 v44, 2, v1")
    A("v_add_u32 v44, %d, v44" % CSUM)
    for e in range(3):
        A("ds_write_b32 v44, %s offset:%d" % (v(48 + e), 256 * e))
    A("v_mov_b32 %s, 1" % v(LV_T))
    A("s_waitcnt lgkmcnt(0)")
    A("ds_write_b32 %s, %s offset:%d" % (v(LV_C), v(LV_T), C_CSOK))


def wd_issue(A):
    srd(A, 56, P_WD, 1536 * 640 * 2)
    A("s_lshl_b32 s4, s2, 1")
    A("s_add_u32 s4, s4, s3")
    A("s_sub_u32 s4, s4, 5")
    A("s_mul_i32 s10, s4, 52429")
    A("s_lshr_b32 s10, s10, 19")
    A("s_mul_i32 s5, s10, 10")
    A("s_sub_u32 s11, s4, s5")
    A("s_mul_i32 s4, s10, %d" % (32 * 1280))
    A("s_lshl_b32 s5, s11, 7")
    A("s_add_u32 s4, s4, s5")
    A("v_lshrrev_b32 v2, 3, v1")
    A("v_mul_u32_u24 v2, 1280, v2")
    A("v_and_b32 v3, 7, v1")
    A("v_lshl_add_u32 v2, v3, 4, v2")
    for p in range(4):
        A("s_add_u32 m0, s69, %d" % (1024 * p))
        A("s_nop 0")
        A("buffer_load_dwordx4 v2, s[56:59], s4 offen lds")
        A("s_add_u32 s4, s4, %d" % (8 * 1280))


def wd_store(A):
    skip = A.newl("Lwd")
    A("s_cmp_ge_u32 s2, 240")
    A("s_cbranch_scc1 %s" % skip)
    A("v_lshrrev_b32 v2, 2, v1")
    A("v_lshlrev_b32 v2, 7, v2")
    A("v_and_b32 v3, 3, v1")
    A("v_lshl_add_u32 v2, v3, 3, v2")
    A("v_add_u32 v2, s69, v2")
    for c in range(4):
        A("ds_read_b64_tr_b16 %s, v2 offset:%d" % (v(8 + 4 * c, 2), 32 * c))
        A("ds_read_b64_tr_b16 %s, v2 offset:%d" % (v(10 + 4 * c, 2), 32 * c + 2048))
    A("v_lshlrev_b32 v3, 4, v1")
    for c in range(4):
        A("s_lshl_b32 s4, s11, 2")
        A("s_add_u32 s4, s4, %d" % c)
        A("s_mul_i32 s5, s4, 52429")
        A("s_lshr_b32 s5, s5, 18")
        A("s_mul_i32 s6, s5, 5")
        A("s_sub_u32 s4, s4, s6")
        A("s_mul_i32 s5, s5, 48")
        A("s_add_u32 s5, s5, s10")
        A("s_mul_i32 s5, s5, 5")
        A("s_add_u32 s4, s4, s5")
        A("s_lshl_b32 s4, s4, 10")
        A("s_add_u32 s4, s4, 0x%x" % WS_WD)
        A("s_waitcnt lgkmcnt(%d)" % (6 - 2 * c))
        A("buffer_store_dwordx4 %s, v3, s[48:51], s4 offen sc1" % v(8 + 4 * c, 4))
    A.label(skip)


G_vA0, G_vA1, G_vC, G_vF, G_vP, G_vXo, G_vPa = 2, 3, 4, 5, 6, 7, 8


def prog(A, val):
    A("v_mov_b32 %s, %d" % (v(G_vP), val))
    A("ds_write_b32 %s, %s" % (v(G_vPa), v(G_vP)))


def full_wait(A, need, have=True):
    if OPT.get("free"):
        return
    lds_wait(A, C_FULL, "ge", need, G_vF, G_vC, "s10", have)


def wfrag_addr(A, d, t):
    A("v_bfe_u32 %s, v1, 2, 2" % v(t))
    A("v_lshrrev_b32 %s, 5, v1" % v(t + 1))
    A("v_lshl_add_u32 %s, %s, 3, %s" % (v(t), v(t + 1), v(t)))
    A("v_mul_u32_u24 %s, 192, %s" % (v(d), v(t)))
    A("v_bfe_u32 %s, v1, 4, 1" % v(t))
    A("v_lshl_add_u32 %s, %s, 5, %s" % (v(d), v(t), v(d)))
    A("v_and_b32 %s, 1, v1" % v(t))
    A("v_lshl_add_u32 %s, %s, 3, %s" % (v(d), v(t), v(d)))
    A("v_bfe_u32 %s, v1, 1, 1" % v(t))
    A("v_mul_u32_u24 %s, %d, %s" % (v(t), UPOFF, v(t)))
    A("v_add_u32 %s, %s, %s" % (v(d), v(t), v(d)))


def colsum_part(A):
    sk = A.newl("Lcs")
    SEL, FR, D = 64, 88, 184
    A("v_mov_b32 v5, %d" % CTRL)
    A("s_cmp_ge_u32 s60, 10")
    A("s_cbranch_scc1 %s" % sk)
    wfrag_addr(A, 2, 3)
    A("v_and_b32 v3, 31, v1")
    A("v_mov_b32 v4, 0x3f803f80")
    for t in range(6):
        A("v_cmp_eq_u32 vcc, %d, v3" % ((t >> 1) + 4 * (t & 1)))
        A("s_nop 1")
        for d in range(4):
            A("v_cndmask_b32 %s, 0, v4, vcc" % v(SEL + 4 * t + d))
    lds_wait(A, C_FULL, "ge", 2, 6, 5, "s10")
    for ks in range(4):
        for t in range(6):
            off = RING + ks * SLOT1 + 64 * (t >> 1) + 16 * (t & 1)
            r = FR + 24 * ks + 4 * t
            A("ds_read_b64_tr_b16 %s, v2 offset:%d" % (v(r, 2), off))
            A("ds_read_b64_tr_b16 %s, v2 offset:%d" % (v(r + 2, 2), off + 768))
        A("s_waitcnt lgkmcnt(0)")
    A("v_mov_b32 v6, 1000")
    A("ds_write_b32 v5, v6 offset:%d" % C_PROG5)
    for ks in range(4):
        for t in range(6):
            cin = "0" if ks + t == 0 else v(D, 16)
            A("v_mfma_f32_32x32x16_bf16 %s, %s, %s, %s" % (v(D, 16), v(SEL + 4 * t, 4), v(FR + 24 * ks + 4 * t, 4), cin))
    A("v_lshlrev_b32 v3, 4, v1")
    A("s_mul_i32 s6, s61, 10")
    A("s_add_u32 s6, s6, s60")
    A("s_lshl_b32 s6, s6, 10")
    A("s_add_u32 s6, s6, 0x%x" % WS_CS)
    nonce_lds(A, 8)
    A("s_nop 15")
    A("v_mov_b32 %s, %s" % (v(D + 3), NON))
    A("buffer_store_dwordx4 %s, v3, s[48:51], s6 offen sc1" % v(D, 4))
    A.label(sk)
    A("v_mov_b32 v6, 1000")
    A("ds_write_b32 v5, v6 offset:%d" % C_PROG5)


def gemm1(A):
    ACC, WF, TT, XR0, NXC = 160, 136, 120, 24, 6
    CS, ST = 12, 18
    XI, XD, TJ = OPT.get("xi", 3), OPT.get("xd", 4), OPT.get("tj", 0)
    vA0, vA1, vC, vF, vP, vXo, vPa = G_vA0, G_vA1, G_vC, G_vF, G_vP, G_vXo, G_vPa
    lg = Cnt(A, "lgkmcnt", 15)
    vm = Cnt(A, "vmcnt", 63)
    srd(A, 52, P_X, 2048 * 640 * 2)
    A("s_lshl_b32 s8, s60, 2")
    A("s_add_u32 s8, s8, s3")
    A("s_mul_i32 s9, s8, %d" % (32 * 1280))
    A("s_add_u32 s11, s9, 1280")
    rot1(A, 4)
    A("s_lshl_b32 s4, s4, 7")
    A("s_add_u32 s9, s9, s4")
    A("v_bfe_u32 v9, v1, 2, 3")
    A("v_mul_u32_u24 %s, %d, v9" % (v(vXo), 4 * 1280))
    A("v_lshrrev_b32 v9, 5, v1")
    A("v_lshl_add_u32 %s, v9, 6, %s" % (v(vXo), v(vXo)))
    A("v_and_b32 v9, 3, v1")
    A("v_lshl_add_u32 %s, v9, 4, %s" % (v(vXo), v(vXo)))
    nx = [0]

    def X(c, i):
        return XR0 + 16 * (c % NXC) + 4 * i

    def xload():
        c = nx[0]
        nx[0] += 1
        for i in range(4):
            if OPT.get("nox"):
                continue
            A("buffer_load_dwordx4 %s, %s, s[52:55], s9 offen offset:%d" % (v(X(c, i), 4), v(vXo), 1280 * i))
            vm.issue(("x", c, i))
        if c < 9:
            A("s_add_u32 s9, s9, 128")
            A("s_cmp_ge_u32 s9, s11")
            A("s_cselect_b32 s4, 1280, 0")
            A("s_sub_u32 s9, s9, s4")
    for c in range(XI):
        xload()
    wfrag_addr(A, vA0, 9)
    HALF = 8 * SLOT1
    A("v_add_u32 %s, %d, %s" % (v(vA1), HALF, v(vA0)))
    A("v_mov_b32 %s, %d" % (v(vC), CTRL))
    A("s_lshl_b32 s4, s3, 2")
    A("s_add_u32 s4, s4, %d" % (CTRL + C_PROG))
    A("v_mov_b32 %s, s4" % v(vPa))
    A("s_mov_b32 s12, 0x55555555")
    A("s_mov_b32 s13, 0x55555555")
    A("s_mov_b32 s14, 0x33333333")
    A("s_mov_b32 s15, 0x33333333")

    def tr_ops(c):
        L = []
        cm = "v_cndmask_b32_dpp %s, %s, %s, vcc quad_perm:%s row_mask:0xf bank_mask:0xf"
        L.append("s_mov_b64 vcc, s[12:13]")
        for i in (0, 2):
            L += [cm % (v(TT + 4 * i + d), v(X(c, i ^ 1) + d), v(X(c, i) + d), "[1,0,3,2]") for d in range(4)]
        L.append("s_not_b64 vcc, vcc")
        for i in (1, 3):
            L += [cm % (v(TT + 4 * i + d), v(X(c, i ^ 1) + d), v(X(c, i) + d), "[1,0,3,2]") for d in range(4)]
        L.append("s_mov_b64 vcc, s[14:15]")
        for i in (0, 1):
            L += [cm % (v(X(c, i) + d), v(TT + 4 * (i ^ 2) + d), v(TT + 4 * i + d), "[2,3,0,1]") for d in range(4)]
        L.append("s_not_b64 vcc, vcc")
        for i in (2, 3):
            L += [cm % (v(X(c, i) + d), v(TT + 4 * (i ^ 2) + d), v(TT + 4 * i + d), "[2,3,0,1]") for d in range(4)]
        return L

    def wread(ks, t):
        if OPT.get("nord"):
            return
        sl = ks % 16
        off = RING + sl * SLOT1 + 64 * (t >> 1) + 16 * (t & 1)
        b = vA0
        if sl >= 8:
            off -= HALF
            b = vA1
        A("ds_read_b64_tr_b16 %s, %s offset:%d" % (v(WF + 4 * t, 2), v(b), off))
        lg.issue(("w", ks, t, 0))
        A("ds_read_b64_tr_b16 %s, %s offset:%d" % (v(WF + 4 * t + 2, 2), v(b), off + 768))
        lg.issue(("w", ks, t))
    vm.wait(("x", 0, 3))
    A.ts(3)
    for o in tr_ops(0):
        A(o)
    full_wait(A, 1, False)
    A.ts(4)
    for t in range(6):
        wread(0, t)
    pend = []
    for ks in range(40):
        c, j = ks // 4, ks % 4
        if j == 0:
            while nx[0] < min(c + XD + 1, 10):
                xload()
            if c == 7:
                A("v_and_b32 v9, 31, v1")
                A("v_lshlrev_b32 v9, 3, v9")
                A("s_lshl_b32 s6, s8, 8")
                A("s_add_u32 s6, s6, 0x%x" % WS_ST)
                A("buffer_load_dwordx2 %s, v9, s[48:51], s6 offen sc1" % v(ST, 2))
                vm.issue("st")
            if ks in (12, 20, 28):
                A.ts(8 + (ks - 12) // 8)
        if j == TJ and c + 1 < 10:
            vm.wait(("x", c + 1, 3))
            pend = tr_ops(c + 1)
        for t in range(6):
            lg.wait(("w", ks, t))
            cin = "0" if ks == 0 else v(ACC + 16 * t, 16)
            if not OPT.get("nomf"):
                A("v_mfma_f32_32x32x16_bf16 %s, %s, %s, %s" % (v(ACC + 16 * t, 16), v(WF + 4 * t, 4), v(X(c, j), 4), cin))
            if ks + 1 < 40:
                if t == 0:
                    if ks % 2 == 1:
                        full_wait(A, (ks + 1) // 2 + 1)
                    elif ks + 2 < 40:
                        A("ds_read_b32 %s, %s" % (v(vF), v(vC)))
                        lg.issue(("f", ks))
                wread(ks + 1, t)
            n = 0
            while pend and n < (2 if TJ else (2 if t % 2 == 0 else 1)):
                o = pend.pop(0)
                A(o)
                n += 0 if o.startswith("s_") else 1
        if j == 3:
            assert not pend
        if ks % 2 == 1:
            prog(A, ks // 2 + 1)
            lg.issue(("p", ks))
    A.ts(5)
    if OPT.get("g1only"):
        return
    nonce_lds(A, 10)
    vm.wait("st")
    ok = A.newl("Lst")
    tag_check(A, [ST + 1], 10, ok)
    poll_flags(A, [(ST, 2, 9, 6, 0)], [ST + 1], 10, 2)
    A.label(ok)
    lds_wait(A, C_CSOK, "lg", 0, vF, vC, "s10")
    NM, C1 = 20, 22
    A("v_lshlrev_b32 %s, 16, %s" % (v(NM), v(ST)))
    A("v_xor_b32 %s, 0x80000000, %s" % (v(NM), v(NM)))
    A("v_and_b32 %s, 0xffff0000, %s" % (v(C1), v(ST)))
    A("v_mul_f32 %s, %s, %s" % (v(NM + 1), v(C1), v(C1)))
    A("v_rcp_f32 %s, %s" % (v(C1), v(C1)))
    A("v_lshrrev_b32 v9, 5, v1")
    A("v_lshlrev_b32 v9, 4, v9")
    A("v_add_u32 v9, %d, v9" % CSUM)
    A("v_mul_f32 %s, %s, %s" % (v(C1), fbits(-LOG2E), v(C1)))
    CR = 24
    for t in range(6):
        if t == 3:
            A("s_waitcnt lgkmcnt(0)")
        for m in range(4):
            A("ds_read_b128 %s, v9 offset:%d" % (v(CR + 16 * t + 4 * m, 4), 128 * t + 32 * m))
    A("s_mul_i32 s9, s8, 96")
    A("s_mul_i32 s4, s61, 6")
    A("s_add_u32 s9, s9, s4")
    A("s_lshl_b32 s9, s9, 10")
    A("s_add_u32 s9, s9, 0x%x" % WS_HF)
    A("v_lshlrev_b32 %s, 4, v1" % v(vXo))
    T0 = 120
    for t in range(6):
        a = ACC + 16 * t
        tmp = T0 + 16 * (t & 1)
        G = [a, a + 2, a + 8, a + 10]
        U = [a + 4, a + 6, a + 12, a + 14]
        if t == 3:
            A("s_waitcnt lgkmcnt(0)")
        for i in range(8):
            A("v_pk_fma_f32 %s, %s, %s, %s op_sel_hi:[1,0,1]" % (v(a + 2 * i, 2), v(CR + 16 * t + 2 * i, 2), v(NM, 2), v(a + 2 * i, 2)))
        for i in range(4):
            A("v_pk_mul_f32 %s, %s, %s op_sel_hi:[1,0]" % (v(tmp + 2 * i, 2), v(G[i], 2), v(C1, 2)))
        for i in range(8):
            A("v_exp_f32 %s, %s" % (v(tmp + i), v(tmp + i)))
        for i in range(4):
            A("v_pk_mul_f32 %s, %s, %s" % (v(G[i], 2), v(G[i], 2), v(U[i], 2)))
        for i in range(4):
            A("v_pk_fma_f32 %s, %s, %s, %s op_sel:[0,1,1] op_sel_hi:[1,1,1]" % (v(tmp + 2 * i, 2), v(tmp + 2 * i, 2), v(NM, 2), v(NM, 2)))
        for i in range(8):
            A("v_rcp_f32 %s, %s" % (v(tmp + i), v(tmp + i)))
        A("s_nop 0")
        for i in range(4):
            A("v_pk_mul_f32 %s, %s, %s" % (v(G[i], 2), v(G[i], 2), v(tmp + 2 * i, 2)))
        for i in range(4):
            A("v_cvt_pk_bf16_f32 %s, %s, %s" % (v(tmp + 8 + i), v(G[i]), v(G[i] + 1)))
        if t == 4:
            A("s_add_u32 s9, s9, 4096")
        A("buffer_store_dwordx4 %s, %s, s[48:51], s9 offen offset:%d sc1" % (v(tmp + 8, 4), v(vXo), 1024 * (t % 4)))
    A("v_mov_b32 %s, 1" % v(vP))
    A("ds_write_b32 %s, %s offset:%d" % (v(vPa), v(vP), C_EPI - C_PROG))
    A.ts(6)
    A("s_lshl_b32 s6, s8, 5")
    A("s_add_u32 s6, s6, s61")
    A("s_lshl_b32 s6, s6, 2")
    A("s_add_u32 s6, s6, 0x%x" % FL_H)
    A("s_waitcnt vmcnt(0)")
    signal(A, 6, 10)
    A.ts(7)


def cmul(A, d, a, f, t):
    assert d != a and d != f
    A("v_mul_f32 %s, %s, %s" % (v(d), v(a), v(f)))
    A("v_mul_f32 %s, %s, %s" % (v(d + 1), v(a + 1), v(f)))
    A("v_fma_f32 %s, -%s, %s, %s" % (v(d), v(a + 1), v(f + 1), v(d)))
    A("v_fmac_f32 %s, %s, %s" % (v(d + 1), v(a), v(f + 1)))


PARAM = 16640 + 512 + 2816


def kgen_issue(A):
    A("v_mov_b32 v58, 0")
    A("v_mov_b32 v59, 0")
    A("s_mul_i32 s4, s68, 384")
    A("v_lshlrev_b32 v38, 4, v1")
    A("v_add_u32 v38, s4, v38")
    A("s_lshl_b32 s4, s68, 1")
    A("v_mov_b32 v39, s4")
    setexec(A, 0xffffff)
    for i, p in enumerate([P_ARE, P_AIM, P_BRE, P_BIM, P_CRE, P_CIM]):
        A("s_add_u32 m0, s69, %d" % (AUX_U + 384 * i))
        A("s_nop 0")
        A("global_load_lds_dwordx4 v38, %s" % s(p, 2))
    A("s_mov_b64 exec, -1")
    A("global_load_short_d16_hi v58, v39, %s" % s(P_LDT, 2))
    A("global_load_short_d16_hi v59, v39, %s" % s(P_DSK, 2))


def kgen_params(A):
    for i in range(18):
        A("v_mov_b32 %s, 0" % v(40 + i))
    A("v_lshlrev_b32 v38, 1, v1")
    A("v_add_u32 v38, s69, v38")
    for c in range(3):
        for i in range(6):
            A("ds_read_u16_d16_hi %s, v38 offset:%d" % (v(40 + 6 * c + i), AUX_U + 384 * i + 128 * c))
        if c == 1:
            A("s_waitcnt lgkmcnt(0)")
    A("s_waitcnt lgkmcnt(0)")


HI = list(range(8)) + [256, 258, 260, 262, 512, 516, 768, 772, 1024, 1280, 1536, 1792, 2048]
EROW = 272


def kgen(A):
    vW, vR = 60, 61
    DT = 62
    KACC = 64
    E1, E8, E256, WW = 80, 82, 84, 86
    TA, TB = 88, 90
    LO = [92, 94, 96, 98]
    E16 = 100
    Gs = 104
    PK = 146
    FR = 160
    A("v_lshlrev_b32 %s, 2, v1" % v(vW))
    A("v_add_u32 %s, s69, %s" % (v(vW), v(vW)))
    A("v_and_b32 v2, 31, v1")
    A("v_mul_u32_u24 %s, %d, v2" % (v(vR), EROW))
    A("v_lshrrev_b32 v2, 5, v1")
    A("v_lshl_add_u32 %s, v2, 4, %s" % (v(vR), v(vR)))
    A("v_add_u32 %s, s69, %s" % (v(vR), v(vR)))
    A("v_mul_f32 %s, %s, v58" % (v(DT), fbits(LOG2E)))
    A("v_exp_f32 %s, %s" % (v(DT), v(DT)))
    A("s_nop 0")
    A("v_cvt_pk_bf16_f32 %s, %s, %s" % (v(DT), v(DT), v(DT)))
    A("v_and_b32 %s, 0xffff0000, %s" % (v(DT), v(DT)))
    pk = [0]

    def put(row, r, neg):
        p = PK + (pk[0] & 7)
        pk[0] += 1
        A("v_cvt_pk_bf16_f32 %s, %s, %s%s" % (v(p), v(r), "-" if neg else "", v(r + 1)))
        A("ds_write_b32 %s, %s offset:%d" % (v(vW), v(p), row * EROW))
    for c in range(3):
        are, aim, bre, bim, cre, cim = [40 + 6 * c + i for i in range(6)]
        A("v_mul_f32 %s, %s, %s" % (v(are), v(DT), v(are)))
        A("v_mul_f32 %s, %s, %s" % (v(aim), v(DT), v(aim)))
        A("v_mul_f32 %s, %s, %s" % (v(bre), v(DT), v(bre)))
        A("v_mul_f32 %s, %s, %s" % (v(bim), v(DT), v(bim)))
        A("v_mul_f32 %s, %s, %s" % (v(are), fbits(LOG2E), v(are)))
        A("v_mul_f32 %s, %s, %s" % (v(aim), fbits(0.5 / math.pi), v(aim)))
        cmul(A, Gs, cre, bre, TA)
        for (E, l) in [(E1, 1.0), (E8, 8.0), (E256, 256.0)]:
            A("v_mul_f32 %s, %s, %s" % (v(TA), fbits(l), v(are)))
            A("v_mul_f32 %s, %s, %s" % (v(TA + 1), fbits(l), v(aim)))
            A("v_exp_f32 %s, %s" % (v(TA), v(TA)))
            A("v_fract_f32 %s, %s" % (v(TA + 1), v(TA + 1)))
            A("v_cos_f32 %s, %s" % (v(E), v(TA + 1)))
            A("v_sin_f32 %s, %s" % (v(E + 1), v(TA + 1)))
            A("s_nop 0")
            A("v_mul_f32 %s, %s, %s" % (v(E), v(E), v(TA)))
            A("v_mul_f32 %s, %s, %s" % (v(E + 1), v(E + 1), v(TA)))
        cmul(A, E16, E8, E8, E16)
        A("v_mov_b32 %s, 0x3f80" % v(PK))
        A("ds_write_b32 %s, %s offset:%d" % (v(vW), v(PK), 21 * EROW))
        pk[0] = 1
        put(22, E8, False)
        put(23, E16, False)
        put(0, Gs, True)
        ops = []
        cur = [E16, E8]
        lo_ops = []
        for j in range(3, 32):
            ch = 1 if (j & 1) else 0
            dst = LO[2 * ch + ((j >> 1) & 1)]
            lo_ops.append((dst, cur[ch], E16, 21 + j, False))
            cur[ch] = dst
        G = lambda i: Gs + 2 * i
        hi_ops = [(G(i), G(i - 1), E1, i, True) for i in range(1, 8)]
        src = {8: 0, 9: 2, 10: 4, 11: 6, 12: 8, 13: 10, 14: 12, 15: 13, 16: 14, 17: 16, 18: 17, 19: 18, 20: 19}
        order = [8, 9, 12, 10, 14, 11, 16, 13, 17, 15, 18, 19, 20]
        hi_ops += [(G(i), G(src[i]), E256, i, True) for i in order]
        while lo_ops or hi_ops:
            grp = []
            for _ in range(2):
                if lo_ops:
                    grp.append(lo_ops.pop(0))
            if hi_ops:
                grp.append(hi_ops.pop(0))
            if not lo_ops and hi_ops and len(grp) < 2:
                pass
            for (d, a, f, row, neg) in grp:
                cmul(A, d, a, f, d)
            for (d, a, f, row, neg) in grp:
                put(row, d, neg)
        A("s_waitcnt lgkmcnt(0)")
        for hf in range(2):
            for k in range(4):
                ks = 4 * hf + k
                A("ds_read_b128 %s, %s offset:%d" % (v(FR + 8 * ks, 4), v(vR), 32 * ks))
                A("ds_read_b128 %s, %s offset:%d" % (v(FR + 8 * ks + 4, 4), v(vR), 32 * ks + 21 * EROW))
            if hf == 0:
                A("s_waitcnt lgkmcnt(6)")
        for ks in range(8):
            A("s_waitcnt lgkmcnt(%d)" % min(15, 2 * (7 - ks)))
            cin = "0" if (c == 0 and ks == 0) else v(KACC, 16)
            A("v_mfma_f32_32x32x16_bf16 %s, %s, %s, %s" % (v(KACC, 16), v(FR + 8 * ks, 4), v(FR + 8 * ks + 4, 4), cin))
    TB0 = AUX_U + 512
    A("v_and_b32 v2, 31, v1")
    A("v_lshrrev_b32 v3, 5, v1")
    A("v_lshlrev_b32 v4, 5, v2")
    A("v_lshl_add_u32 v4, v3, 4, v4")
    A("v_add_u32 v4, s69, v4")
    A("v_lshlrev_b32 v5, 4, v2")
    A("v_add_u32 v5, s69, v5")
    A("v_lshlrev_b32 v6, 3, v2")
    A("v_add_u32 v6, s69, v6")
    A("v_lshlrev_b32 v7, 2, v2")
    A("v_add_u32 v7, s69, v7")
    A("s_nop 7")
    A("s_mov_b64 exec, 1")
    A("v_add_f32 %s, %s, v59" % (v(KACC), v(KACC)))
    A("s_mov_b64 exec, -1")
    A("ds_write_b128 v4, %s offset:%d" % (v(KACC, 4), TB0))
    A("s_mov_b32 exec_hi, 0")
    A("ds_write_b128 v5, %s offset:%d" % (v(KACC + 4, 4), TB0 + 256 * 4))
    for r in range(4):
        A("ds_write_b32 v7, %s offset:%d" % (v(KACC + 8 + r), TB0 + (512 + 32 * r) * 4))
    A("s_mov_b32 exec_lo, 0")
    A("s_mov_b32 exec_hi, -1")
    A("ds_write_b64 v6, %s offset:%d" % (v(KACC + 4, 2), TB0 + 384 * 4))
    A("ds_write_b64 v6, %s offset:%d" % (v(KACC + 6, 2), TB0 + 448 * 4))
    A("ds_write_b32 v7, %s offset:%d" % (v(KACC + 8), TB0 + 640 * 4))
    A("s_mov_b64 exec, -1")
    A("v_mov_b32 v8, 0")
    A("v_mov_b32 v9, 0")
    A("v_lshlrev_b32 v2, 3, v1")
    A("v_add_u32 v2, s69, v2")
    A("ds_write_b64 v2, v[8:9] offset:%d" % AUX_U)
    A("v_lshrrev_b32 v3, 4, v1")
    A("v_mul_u32_u24 v3, %d, v3" % KSTR)
    A("v_and_b32 v4, 15, v1")
    A("v_lshl_add_u32 v3, v4, 2, v3")
    A("v_add_u32 v3, s69, v3")
    A("s_waitcnt lgkmcnt(0)")
    A("ds_write_b32 v3, v8 offset:4096")
    S0, S1, S2, S3 = 10, 16, 20, 24
    A("v_lshlrev_b32 v4, 4, v1")
    A("v_add_u32 v4, s69, v4")
    A("ds_read_b128 %s, v4 offset:%d" % (v(S0 + 2, 4), TB0))
    A("ds_read_b32 %s, v4 offset:%d" % (v(S0), TB0 + 16))
    for (S, b) in [(S1, 256), (S2, 384), (S3, 512)]:
        A("ds_read_b64 %s, v2 offset:%d" % (v(S, 2), TB0 + 4 * b))
        A("ds_read_b32 %s, v2 offset:%d" % (v(S + 2), TB0 + 4 * b + 8))
    A("v_sub_u32 v5, 63, v1")
    A("v_lshlrev_b32 v6, 5, v5")
    A("v_add_u32 v6, s69, v6")
    A("v_lshlrev_b32 v7, 4, v5")
    A("v_add_u32 v7, s69, v7")
    A("v_lshlrev_b32 v5, 3, v5")
    A("v_add_u32 v5, s69, v5")
    A("s_waitcnt lgkmcnt(0)")
    O = 28
    def val3(o):
        return S3 + (0 if o <= 4 else 1 if o <= 11 else 2)
    def val2(o):
        return S2 + (0 if o <= 2 else 1 if o <= 5 else 2)
    for d in range(4):
        o0 = O + 12 * (d & 1)
        for w in range(8):
            A("v_cvt_pk_bf16_f32 %s, %s, %s" % (v(o0 + w), v(val3(d + 15 - 2 * w)), v(val3(d + 14 - 2 * w))))
        for w in range(4):
            A("v_cvt_pk_bf16_f32 %s, %s, %s" % (v(o0 + 8 + w), v(val2(d + 7 - 2 * w)), v(val2(d + 6 - 2 * w))))
        A("ds_write_b128 v6, %s offset:%d" % (v(o0, 4), d * KSTR))
        A("ds_write_b128 v6, %s offset:%d" % (v(o0 + 4, 4), d * KSTR + 16))
        A("ds_write_b128 v7, %s offset:%d" % (v(o0 + 8, 4), d * KSTR + 2048))
    A("v_cvt_pk_bf16_f32 v52, %s, %s" % (v(S2), v(S2)))
    A("ds_write_b32 v7, v52 offset:%d" % (2 * KSTR + 2048 + 16))
    A("ds_write_b32 v7, v52 offset:%d" % (3 * KSTR + 2048 + 16))
    a, b, c = S1, S1 + 1, S1 + 2
    t0, t1, t2, t3, t4 = S0 + 2, S0 + 3, S0 + 4, S0 + 5, S0
    prs = [(c, b), (a, a), (c, c), (b, a), (t3, t2), (t1, t0), (t4, t3), (t2, t1)]
    for i, (x, y) in enumerate(prs):
        A("v_cvt_pk_bf16_f32 %s, %s, %s" % (v(64 + i), v(x), v(y)))
    A("v_cvt_pk_bf16_f32 v72, %s, 0" % v(t0))
    for d in range(2):
        A("ds_write_b64 v5, %s offset:%d" % (v(64 + 2 * d, 2), d * KSTR + 3072))
        A("ds_write_b64 v5, %s offset:%d" % (v(68 + 2 * d, 2), d * KSTR + 3584))
    for d in range(2, 4):
        for (r, off) in [(64 + 2 * (d - 2), 3072), (68 + 2 * (d - 2), 3584)]:
            A("ds_write_b32 v5, %s offset:%d" % (v(r), d * KSTR + off + 4))
            A("ds_write_b32 v5, %s offset:%d" % (v(r + 1), d * KSTR + off + 8))
    A("s_mov_b64 exec, 1")
    A("ds_write_b32 v5, v72 offset:%d" % (1 * KSTR + 3584 + 8))
    A("ds_write_b32 v5, v72 offset:%d" % (3 * KSTR + 3584 + 12))
    A("s_mov_b64 exec, -1")
    A("s_waitcnt lgkmcnt(0)")


def epi_wait(A):
    A("s_lshl_b32 s4, s3, 2")
    A("s_add_u32 s4, s4, %d" % (CTRL - 16))
    A("v_mov_b32 v10, s4")
    lds_wait(A, C_EPI, "lg", 0, 11, 10, "s10", False, 2)


def conv(A):
    AF, BF, ACC = 64, 128, 192
    vK, vU = 2, 3
    A("v_mul_u32_u24 v4, 10240, v1")
    A("s_lshl_b32 s4, s68, 4")
    A("s_add_u32 s4, s4, 0x%x" % WS_XT)
    for i in range(4):
        A("buffer_load_dwordx4 %s, v4, s[48:51], s4 offen%s" % (v(16 + 4 * i, 4), LSC))
        if i < 3:
            A("s_add_u32 s4, s4, %d" % (64 * 10240))
    A("v_lshlrev_b32 v5, 4, v1")
    A("v_add_u32 v5, s69, v5")
    A("v_and_b32 v6, 15, v1")
    A("v_lshrrev_b32 v7, 4, v1")
    A("v_add_u32 v8, 1, v6")
    A("v_and_b32 v9, 3, v8")
    A("v_mul_u32_u24 %s, %d, v9" % (v(vK), KSTR))
    A("v_lshrrev_b32 v8, 2, v8")
    A("v_lshlrev_b32 v8, 3, v8")
    A("v_sub_u32 %s, %s, v8" % (v(vK), v(vK)))
    A("v_lshl_add_u32 %s, v7, 4, %s" % (v(vK), v(vK)))
    A("s_add_u32 s4, s69, 32")
    A("v_add_u32 %s, s4, %s" % (v(vK), v(vK)))
    A("v_lshlrev_b32 %s, 5, v6" % v(vU))
    A("v_lshl_add_u32 %s, v7, 4, %s" % (v(vU), v(vU)))
    A("v_add_u32 %s, s69, %s" % (v(vU), v(vU)))
    for i in range(4):
        A("s_waitcnt vmcnt(%d)" % (3 - i))
        A("ds_write_b128 v5, %s offset:%d" % (v(16 + 4 * i, 4), AUX_U + 512 + 1024 * i))
    A("s_waitcnt lgkmcnt(0)")
    A.ts(9)
    epi_wait(A)
    A.ts(7)
    lg = Cnt(A, "lgkmcnt", 15)

    def rdA(ph, p):
        r = AF + 32 * (ph & 1) + 4 * p
        off = 64 * (7 - ph) + 512 * (7 - p)
        A("ds_read_b64 %s, %s offset:%d" % (v(r, 2), v(vK), off))
        lg.issue(("a0", ph, p))
        A("ds_read_b64 %s, %s offset:%d" % (v(r + 2, 2), v(vK), off + 8))
        lg.issue(("a", ph, p))

    def rdB(ph, m):
        r = BF + 32 * (ph & 1) + 4 * m
        A("ds_read_b128 %s, %s offset:%d" % (v(r, 4), v(vU), AUX_U + 480 - 64 * ph + 512 * m))
        lg.issue(("b", ph, m))
    def reads(ph):
        L = []
        for i in range(8):
            L.append((rdA, ph, i))
            L.append((rdB, ph, i))
        return L
    pairs = sorted([(p, m) for p in range(8) for m in range(8) if p + m <= 7], key=lambda x: (max(x), x))
    pend = reads(0)
    for _ in range(8):
        f, a1, a2 = pend.pop(0)
        f(a1, a2)
    seen = set()
    for ph in range(8):
        if ph + 1 < 8:
            pend += reads(ph + 1)
        for n, (p, m) in enumerate(pairs):
            while any((f is rdA and a1 == ph and a2 == p) or (f is rdB and a1 == ph and a2 == m) for (f, a1, a2) in pend):
                f, a1, a2 = pend.pop(0)
                f(a1, a2)
            lg.wait(("a", ph, p))
            lg.wait(("b", ph, m))
            q = p + m
            cin = v(ACC + 4 * q, 4) if q in seen else "0"
            seen.add(q)
            A("v_mfma_f32_16x16x32_bf16 %s, %s, %s, %s" % (v(ACC + 4 * q, 4), v(AF + 32 * (ph & 1) + 4 * p, 4), v(BF + 32 * (ph & 1) + 4 * m, 4), cin))
            if pend and (n & 1) == 0 and len(lg.q) <= 12:
                f, a1, a2 = pend.pop(0)
                f(a1, a2)
    A.ts(10)
    A("v_lshlrev_b32 v8, 5, v6")
    A("v_lshl_add_u32 v8, v7, 3, v8")
    A("v_add_u32 v8, s69, v8")
    A("s_nop 7")
    for q in range(8):
        A("v_cvt_pk_bf16_f32 %s, %s, %s" % (v(16 + 2 * q), v(ACC + 4 * q), v(ACC + 4 * q + 1)))
        A("v_cvt_pk_bf16_f32 %s, %s, %s" % (v(17 + 2 * q), v(ACC + 4 * q + 2), v(ACC + 4 * q + 3)))
        A("ds_write_b64 v8, %s offset:%d" % (v(16 + 2 * q, 2), AUX_U + 512 + 512 * q))
    A("s_waitcnt lgkmcnt(0)")
    for i in range(4):
        A("ds_read_b128 %s, v5 offset:%d" % (v(32 + 4 * i, 4), AUX_U + 512 + 1024 * i))
    A("v_lshlrev_b32 v4, 4, v1")
    A("s_lshl_b32 s4, s68, 12")
    A("s_add_u32 s4, s4, 0x%x" % WS_AT)
    for i in range(4):
        A("s_waitcnt lgkmcnt(%d)" % (3 - i))
        A("buffer_store_dwordx4 %s, v4, s[48:51], s4 offen offset:%d%s" % (v(32 + 4 * i, 4), 1024 * i, SC1))
    A.ts(11)


PBUF = 8192


def pprep(A):
    srd(A, 52, P_X, 2048 * 640 * 2)
    A("s_sub_u32 s8, s3, 4")
    A("v_lshrrev_b32 v2, 3, v1")
    A("v_and_b32 v3, 7, v1")
    A("v_lshlrev_b32 v4, 12, v2")
    A("v_lshl_add_u32 v4, v3, 4, v4")
    A("s_mul_i32 s4, s63, 80")
    A("s_lshl_b32 s5, s8, 5")
    A("s_add_u32 s4, s4, s5")
    A("s_lshl_b32 s6, s4, 12")
    A("s_lshl_b32 s5, s62, 7")
    A("s_add_u32 s6, s6, s5")
    A("s_add_u32 s6, s6, 0x%x" % WS_AT)
    A("v_lshrrev_b32 v5, 2, v1")
    A("v_and_b32 v6, 3, v1")
    A("v_mul_u32_u24 v7, 1280, v5")
    A("v_lshl_add_u32 v7, v6, 4, v7")
    A("s_mul_i32 s7, s62, %d" % (64 * 1280))
    A("s_lshl_b32 s5, s4, 1")
    A("s_add_u32 s7, s7, s5")
    for i in range(4):
        A("buffer_load_dwordx4 %s, v7, s[52:55], s7 offen" % v(32 + 4 * i, 4))
        A("s_add_u32 s7, s7, %d" % (16 * 1280))
    return


def pprep2(A):
    AROW = 144
    XROW = 80
    XOFF = 32 * AROW
    for i in range(4):
        A("buffer_load_dwordx4 %s, v4, s[48:51], s6 offen%s" % (v(16 + 4 * i, 4), SC1))
        A("s_add_u32 s6, s6, %d" % (8 * 4096))
    A("v_mul_u32_u24 v8, %d, v2" % AROW)
    A("v_lshl_add_u32 v8, v3, 4, v8")
    A("v_add_u32 v8, s69, v8")
    A("v_mul_u32_u24 v9, %d, v5" % XROW)
    A("v_lshl_add_u32 v9, v6, 4, v9")
    A("v_add_u32 v9, s69, v9")
    A("s_waitcnt vmcnt(4)")
    for i in range(4):
        A("ds_write_b128 v9, %s offset:%d" % (v(32 + 4 * i, 4), XOFF + 16 * XROW * i))
    for i in range(4):
        A("s_waitcnt vmcnt(%d)" % (3 - i))
        A("ds_write_b128 v8, %s offset:%d" % (v(16 + 4 * i, 4), 8 * AROW * i))
    A("v_lshrrev_b32 v10, 2, v1")
    A("v_mul_u32_u24 v10, %d, v10" % AROW)
    A("v_lshl_add_u32 v10, v6, 3, v10")
    A("v_add_u32 v10, s69, v10")
    A("v_and_b32 v11, 15, v1")
    A("v_mul_u32_u24 v11, %d, v11" % XROW)
    A("v_lshrrev_b32 v12, 4, v1")
    A("v_lshl_add_u32 v11, v12, 3, v11")
    A("v_add_u32 v11, s69, v11")
    A("v_lshlrev_b32 v12, 4, v1")
    A("v_add_u32 v12, s69, v12")
    A("s_waitcnt lgkmcnt(0)")
    for c in range(2):
        for st in range(4):
            r = 16 + 16 * c + 4 * st
            A("ds_read_b64_tr_b16 %s, v10 offset:%d" % (v(r, 2), 16 * AROW * c + 32 * st))
            A("ds_read_b64 %s, v11 offset:%d" % (v(r + 2, 2), XOFF + 16 * XROW * st + 32 * c))
        A("s_waitcnt lgkmcnt(0)")
    for c in range(2):
        for st in range(4):
            r = 16 + 16 * c + 4 * st
            o = 48 + 8 * (st & 1)
            for e in range(2):
                A("v_lshlrev_b32 %s, 16, %s" % (v(o + 2 * e), v(r + e)))
                A("v_and_b32 %s, 0xffff0000, %s" % (v(o + 2 * e + 1), v(r + e)))
                A("v_lshlrev_b32 %s, 16, %s" % (v(o + 4 + 2 * e), v(r + 2 + e)))
                A("v_and_b32 %s, 0xffff0000, %s" % (v(o + 4 + 2 * e + 1), v(r + 2 + e)))
            for e in range(4):
                A("v_add_f32 %s, %s, %s" % (v(o + e), v(o + e), v(o + 4 + e)))
            A("v_cvt_pk_bf16_f32 %s, %s, %s" % (v(o + 4), v(o), v(o + 1)))
            A("v_cvt_pk_bf16_f32 %s, %s, %s" % (v(o + 5), v(o + 2), v(o + 3)))
            for e in range(2):
                A("v_lshlrev_b32 %s, 16, %s" % (v(o + 2 * e), v(o + 4 + e)))
                A("v_and_b32 %s, 0xffff0000, %s" % (v(o + 2 * e + 1), v(o + 4 + e)))
            A("ds_write_b128 v12, %s offset:%d" % (v(o, 4), PBUF + 1024 * (4 * c + st)))
    A("s_waitcnt lgkmcnt(0)")


def gemm2(A):
    ACC, WF, HR0, NHR = 216, 196, 12, 23
    HI0, HSTEP = OPT.get("hi", 6), OPT.get("hs", 2)
    vA0, vA1, vC, vF, vP, vHo, vPa = G_vA0, G_vA1, G_vC, G_vF, G_vP, G_vXo, G_vPa
    lg = Cnt(A, "lgkmcnt", 15)
    vm = Cnt(A, "vmcnt", 63)
    A("s_and_b32 s11, s3, 1")
    A("s_lshr_b32 s12, s3, 1")
    A("s_lshl_b32 s8, s62, 1")
    A("s_add_u32 s8, s8, s11")
    A("s_mul_i32 s9, s8, %d" % (96 * 1024))
    A("s_lshl_b32 s4, s12, 11")
    A("s_add_u32 s9, s9, s4")
    A("s_add_u32 s9, s9, 0x%x" % WS_HF)
    A("s_add_u32 s13, s9, %d" % (96 * 1024))
    rot2(A, 4)
    A("s_lshl_b32 s4, s4, 12")
    A("s_add_u32 s9, s9, s4")
    A("v_lshrrev_b32 v9, 4, v1")
    A("v_and_b32 v10, 15, v1")
    A("v_lshlrev_b32 %s, 4, v10" % v(vHo))
    A("v_lshl_add_u32 %s, v9, 9, %s" % (v(vHo), v(vHo)))
    A("s_mul_i32 s4, s12, 5120")
    A("v_lshlrev_b32 %s, 4, v1" % v(vA0))
    A("v_add_u32 %s, s4, %s" % (v(vA0), v(vA0)))
    A("v_add_u32 %s, %d, %s" % (v(vA1), 4 * U1, v(vA0)))

    def wread(i, ct):
        sl = (20 + i) % NU
        b, off = vA0, sl * U1 + 1024 * ct
        if sl >= 4:
            b, off = vA1, off - 4 * U1
        A("ds_read_b128 %s, %s offset:%d" % (v(WF + 4 * ct, 4), v(b), off))
        lg.issue(("w", i, ct))
    full_wait(A, 21, False)
    for ct in range(5):
        wread(0, ct)
    A("v_lshlrev_b32 v9, 2, v1")
    A("s_lshl_b32 s6, s8, 7")
    A("s_add_u32 s6, s6, 0x%x" % FL_H)
    setexec(A, 0xffff)
    poll_flags(A, [(12, 1, 9, 6, 0)], [12], 10, OPT.get("sl", 2))
    A("s_mov_b64 exec, -1")
    A.ts(12)
    nh = [0]

    def hload():
        i = nh[0]
        nh[0] += 1
        for a in range(2):
            A("buffer_load_dwordx4 %s, %s, s[48:51], s9 offen offset:%d%s" % (v(HR0 + 8 * (i % NHR) + 4 * a, 4), v(vHo), 256 * a, LSC))
            vm.issue(("h", i, a))
        if i < 23:
            A("s_add_u32 s9, s9, 4096")
            A("s_cmp_ge_u32 s9, s13")
            A("s_cselect_b32 s4, %d, 0" % (96 * 1024))
            A("s_sub_u32 s9, s9, s4")
    for i in range(HI0):
        hload()
    for i in range(24):
        for ct in range(5):
            lg.wait(("w", i, ct))
            for a in range(2):
                vm.wait(("h", i, a))
                if i == 0 and ct == 0 and a == 0:
                    A.ts(13)
                d = ACC + 20 * a + 4 * ct
                cin = "0" if i == 0 else v(d, 4)
                A("v_mfma_f32_16x16x32_bf16 %s, %s, %s, %s" % (v(d, 4), v(WF + 4 * ct, 4), v(HR0 + 8 * (i % NHR) + 4 * a, 4), cin))
            if i + 1 < 24:
                if ct == 0:
                    full_wait(A, 22 + i)
                    if i + 2 < 24:
                        A("ds_read_b32 %s, %s" % (v(vF), v(vC)))
                        lg.issue(("f", i))
                wread(i + 1, ct)
            if ct in (1, 3)[:HSTEP] and nh[0] < 24 and nh[0] < i + NHR:
                hload()
        if i < 18:
            prog(A, 21 + i)
            lg.issue(("p", i))
    A.ts(14)
    pl = A.newl("Lxw")
    A.label(pl)
    guard(A)
    A("ds_read_b128 v[12:15], %s offset:%d" % (v(vC), C_PROG))
    A("s_waitcnt lgkmcnt(0)")
    A("v_min_u32 v12, v12, v13")
    A("v_min3_u32 v12, v12, v14, v15")
    A("s_nop 0")
    A("v_readfirstlane_b32 s10, v12")
    A("s_cmp_ge_u32 s10, 38")
    A("s_cbranch_scc0 %s" % pl)
    lsw, ljoin = A.newl("Lsw"), A.newl("Ljoin")
    A("v_lshlrev_b32 v9, 4, v1")
    A("s_mul_i32 s4, s3, 5120")
    A("s_add_u32 s4, s4, %d" % XCH)
    A("v_add_u32 v10, s4, v9")
    A("s_xor_b32 s5, s3, 2")
    A("s_mul_i32 s5, s5, 5120")
    A("s_add_u32 s5, s5, %d" % XCH)
    A("v_add_u32 v11, s5, v9")
    A("s_nop 4")
    A("s_cmp_eq_u32 s12, 0")
    A("s_cbranch_scc1 %s" % lsw)
    for ct in range(5):
        A("ds_write_b128 v10, %s offset:%d" % (v(ACC + 4 * ct, 4), 1024 * ct))
    A("s_waitcnt lgkmcnt(0)")
    for r in range(20):
        A("v_mov_b32 %s, %s" % (v(ACC + r), v(ACC + 20 + r)))
    A("s_branch %s" % ljoin)
    A.label(lsw)
    for ct in range(5):
        A("ds_write_b128 v10, %s offset:%d" % (v(ACC + 20 + 4 * ct, 4), 1024 * ct))
    A.label(ljoin)
    A("s_lshl_b32 s5, s11, 1")
    A("s_add_u32 s5, s5, s12")
    A("s_lshl_b32 s6, s5, 10")
    A("s_add_u32 s6, s6, %d" % (AUX0 + PBUF))
    A("v_add_u32 v12, s6, v9")
    srd(A, 52, P_OUT, 2048 * 640 * 2)
    A("s_waitcnt lgkmcnt(0)")
    A("s_barrier")
    for ct in range(5):
        A("ds_read_b128 %s, v11 offset:%d" % (v(16 + 4 * ct, 4), 1024 * ct))
        A("ds_read_b128 %s, v12 offset:%d" % (v(40 + 4 * ct, 4), (ct >> 1) * AUXSZ + 4096 * (ct & 1)))
    OROW = 176
    A("v_and_b32 v13, 15, v1")
    A("v_mul_u32_u24 v13, %d, v13" % OROW)
    A("v_lshrrev_b32 v14, 4, v1")
    A("v_lshl_add_u32 v13, v14, 3, v13")
    A("s_mul_i32 s4, s3, 4096")
    A("v_add_u32 v13, s4, v13")
    for ct in range(5):
        A("s_waitcnt lgkmcnt(%d)" % (2 * (4 - ct) + ct))
        d = ACC + 4 * ct
        A("v_pk_add_f32 %s, %s, %s" % (v(d, 2), v(d, 2), v(16 + 4 * ct, 2)))
        A("v_pk_add_f32 %s, %s, %s" % (v(d + 2, 2), v(d + 2, 2), v(18 + 4 * ct, 2)))
        A("v_pk_add_f32 %s, %s, %s" % (v(d, 2), v(d, 2), v(40 + 4 * ct, 2)))
        A("v_pk_add_f32 %s, %s, %s" % (v(d + 2, 2), v(d + 2, 2), v(42 + 4 * ct, 2)))
        A("v_cvt_pk_bf16_f32 %s, %s, %s" % (v(64 + 2 * ct), v(d), v(d + 1)))
        A("v_cvt_pk_bf16_f32 %s, %s, %s" % (v(65 + 2 * ct), v(d + 2), v(d + 3)))
        A("ds_write_b64 v13, %s offset:%d" % (v(64 + 2 * ct, 2), 32 * ct))
    for p in range(3):
        A("v_add_u32 v22, %d, v1" % (64 * p))
        A("v_mul_u32_u24 v23, 52429, v22")
        A("v_lshrrev_b32 v23, 19, v23")
        A("v_mul_u32_u24 v24, 10, v23")
        A("v_sub_u32 v22, v22, v24")
        A("v_lshlrev_b32 v22, 4, v22")
        A("v_mul_u32_u24 v24, %d, v23" % OROW)
        A("v_add3_u32 %s, v24, v22, s4" % v(26 + p))
        A("v_mul_u32_u24 v24, 1280, v23")
        A("v_add_u32 %s, v24, v22" % v(30 + p))
    A("s_lshl_b32 s6, s62, 2")
    A("s_add_u32 s6, s6, s5")
    A("s_mul_i32 s6, s6, %d" % (16 * 1280))
    A("s_mul_i32 s7, s63, 160")
    A("s_add_u32 s6, s6, s7")
    A("s_waitcnt lgkmcnt(0)")
    for p in range(3):
        A("ds_read_b128 %s, %s" % (v(80 + 4 * p, 4), v(26 + p)))
    for p in range(3):
        A("s_waitcnt lgkmcnt(%d)" % (2 - p))
        if p == 2:
            A("s_mov_b32 exec_hi, 0")
        A("buffer_store_dwordx4 %s, %s, s[52:55], s6 offen" % (v(80 + 4 * p, 4), v(30 + p)))
    A("s_mov_b64 exec, -1")
    A.ts(15)


def aux_ids(A):
    A("s_sub_u32 s4, s3, 4")
    A("s_mul_i32 s68, s2, 3")
    A("s_add_u32 s68, s68, s4")
    A("s_mul_i32 s69, s4, %d" % AUXSZ)
    A("s_add_u32 s69, s69, %d" % AUX0)


def kdesc(name):
    return """.amdhsa_kernel %s
  .amdhsa_next_free_vgpr 256
  .amdhsa_next_free_sgpr 102
  .amdhsa_accum_offset 256
  .amdhsa_group_segment_fixed_size 0
  .amdhsa_kernarg_size 128
  .amdhsa_user_sgpr_count 2
  .amdhsa_user_sgpr_kernarg_segment_ptr 1
  .amdhsa_system_sgpr_workgroup_id_x 1
.end_amdhsa_kernel
""" % name


def build_fused():
    A = Asm()
    name = NAME + "_kernel"
    prologue(A, name, 0)
    st0 = list(A.stamps)
    laux, lload = A.newl("Laux"), A.newl("Lload")
    A("s_cmp_eq_u32 s3, 7")
    A("s_cbranch_scc1 %s" % lload)
    A("s_cmp_ge_u32 s3, 4")
    A("s_cbranch_scc1 %s" % laux)
    A("s_setprio 2")
    if not OPT.get("gemmoff"):
        gemm1(A)
        if not OPT.get("g1only"):
            gemm2(A)
    A.end()
    A.label(lload)
    A.stamps = list(st0)
    A("s_setprio 3")
    loader1_setup(A)
    loader_loop(A, 0, 1 if OPT.get("now") else 20, 0, 12, issue1)
    A.ts(2)
    if OPT.get("g1only"):
        A.end()
    nonce_lds(A, 44)
    colsum_gather(A)
    A.ts(5)
    poll_all(A, 1, 2, 44)
    A.ts(3)
    loader2_setup(A)
    loader_loop(A, 20, 44, 20, 10, issue2)
    A.ts(4)
    A("s_waitcnt lgkmcnt(0)")
    A.end()
    A.label(laux)
    A.stamps = list(st0)
    lw56, lj, lpp, ln = A.newl("Lw56"), A.newl("Lj"), A.newl("Lpp"), A.newl("Lnn")
    if OPT.get("auxoff"):
        A("v_mov_b32 v5, %d" % CTRL)
        A("v_mov_b32 v6, 1000")
        A("ds_write_b32 v5, v6 offset:%d" % C_PROG5)
        A("s_endpgm")
    aux_ids(A)
    A("s_min_u32 s68, s68, 639")
    A("s_cmp_ge_u32 s3, 5")
    A("s_cbranch_scc1 %s" % lw56)
    A("s_cmp_lg_u32 s2, 0")
    A("s_cbranch_scc1 %s" % ln)
    A("s_memrealtime s[4:5]")
    A("s_waitcnt lgkmcnt(0)")
    A("s_or_b32 s4, s4, 1")
    A("v_mov_b32 v2, 0")
    A("v_mov_b32 v3, s4")
    A("s_mov_b64 exec, 1")
    A("global_store_dword v2, v3, %s sc1" % s(P_DBG, 2))
    A("s_mov_b64 exec, -1")
    A.label(ln)
    ln8_issue(A)
    kgen_issue(A)
    A("s_waitcnt vmcnt(8)")
    A.ts(1)
    ln8(A)
    A("s_branch %s" % lj)
    A.label(lw56)
    wd_issue(A)
    kgen_issue(A)
    A("s_waitcnt vmcnt(8)")
    A.ts(1)
    wd_store(A)
    l6 = A.newl("L6")
    A("s_cmp_eq_u32 s3, 6")
    A("s_cbranch_scc1 %s" % l6)
    nonce_fetch(A, 4)
    A("s_branch %s" % lj)
    A.label(l6)
    colsum_part(A)
    nonce_lds(A, 4)
    A.label(lj)
    A("s_sub_u32 s6, s3, 4")
    A("s_lshl_b32 s6, s6, 8")
    A("s_add_u32 s6, s6, s2")
    A("s_lshl_b32 s6, s6, 2")
    A("s_add_u32 s6, s6, 0x%x" % FL_P)
    A("s_waitcnt vmcnt(0)")
    signal(A, 6, 10)
    A.ts(2)
    if OPT.get("g1only") == 1:
        A.end()
    aux_ids(A)
    lnc = A.newl("Lnc")
    A("s_cmp_ge_u32 s68, 640")
    A("s_cbranch_scc1 %s" % lnc)
    kgen_params(A)
    kgen(A)
    A.ts(8)
    if OPT.get("g1only") == 2:
        A.label(lnc)
        lnc = A.newl("Lnc")
        A.end()
    poll_all(A, 0, 1, 2)
    conv(A)
    A("s_lshl_b32 s6, s68, 2")
    A("s_add_u32 s6, s6, 0x%x" % FL_A)
    A("s_waitcnt vmcnt(0)")
    signal(A, 6, 10)
    A("s_branch %s" % lpp)
    A.label(lnc)
    A("v_mov_b32 v10, %d" % CTRL)
    lds_wait(A, C_PROG, "ge", 21, 11, 10, "s10", False, 8)
    A.label(lpp)
    A.ts(12)
    pprep(A)
    A("v_lshlrev_b32 v13, 2, v1")
    A("s_lshl_b32 s9, s4, 2")
    A("s_add_u32 s9, s9, 0x%x" % FL_A)
    A("s_cmp_eq_u32 s3, 6")
    A("s_cselect_b32 exec_lo, 0xffff, -1")
    A("s_mov_b32 exec_hi, 0")
    poll_flags(A, [(14, 1, 13, 9, 0)], [14], 15, OPT.get("asl", 6))
    A("s_mov_b64 exec, -1")
    A.ts(13)
    pprep2(A)
    A.ts(14)
    A.end()
    hdr = "; @launch grid=(256,1,1) block=(512,1,1) lds=%d\n" % LDS_TOTAL
    return hdr, A, [name]


def main():
    hdr, A, names = build_fused()
    out = "; generated by gen.py (hand-written generator)\n" + hdr
    out += '.amdgcn_target "amdgcn-amd-amdhsa--gfx950"\n.text\n'
    out += "\n".join(A.L) + "\n"
    out += '.section .rodata,"a"\n'
    for n in names:
        out += ".p2align 6\n" + kdesc(n)
    open(sys.argv[1], "w").write(out)


main()
```

```python
import sys, math, struct

NAME = "parallel_sum__ssm_conv_s4__swiglu_ffn__prompt"
OPT = dict(ts=False)
for a in sys.argv[2:]:
    k, _, v = a.partition("=")
    OPT[k] = int(v) if v else True

WS_ST = 0x000000
WS_CS = 0x010000
WS_XT = 0x280000
WS_HF = 0x500000
WS_AT = 0xB00000
WS_FL = 0xD80000
WS_TS = 0xE00000
WS_WD = 0x1000000
WS_SIZE = 0x1200000
FL_P = WS_FL
FL_H = WS_FL + 0x4000
FL_A = WS_FL + 0x8000

UPOFF = 3088
SLOT1 = 6176
U1 = 2 * SLOT1
NU = 8
RING = 0
CTRL = NU * U1
C_FULL, C_NONCE, C_CSOK, C_PROG5, C_PROG, C_EPI = 0, 4, 8, 12, 16, 32
CSUM = CTRL + 64
AUX0 = CSUM + 768
KSTR = 4160
AUX_U = 4 * KSTR
AUXSZ = AUX_U + 4608
LDS_TOTAL = AUX0 + 3 * AUXSZ
LNROW = 1312
U2 = 10240
XCH = 4 * U1
assert LDS_TOTAL <= 163840

LOG2E = 1.4426950408889634
BUD, NON = "s0", "s1"

def fbits(x):
    return "0x%08x" % struct.unpack("<I", struct.pack("<f", x))[0]


def v(i, n=1):
    return "v%d" % i if n == 1 else "v[%d:%d]" % (i, i + n - 1)


def s(i, n=1):
    return "s%d" % i if n == 1 else "s[%d:%d]" % (i, i + n - 1)


class Cnt:
    def __init__(self, A, name, mx):
        self.A, self.name, self.mx, self.q = A, name, mx, []

    def issue(self, tag):
        self.q.append(tag)

    def wait(self, tag):
        if tag not in self.q:
            return
        i = len(self.q) - 1 - self.q[::-1].index(tag)
        n = len(self.q) - 1 - i
        self.A("s_waitcnt %s(%d)" % (self.name, min(n, self.mx)))
        self.q = self.q[i + 1:]

    def drain(self):
        self.A("s_waitcnt %s(0)" % self.name)
        self.q = []


class Asm:
    def __init__(self):
        self.L = []
        self.nl = 0
        self.stamps = []
        self.cold = []

    def flush_cold(self):
        for f in self.cold:
            f()
        self.cold = []

    def __call__(self, t):
        self.L.append("  " + t)

    def label(self, l):
        self.L.append(l + ":")

    def newl(self, p="L"):
        self.nl += 1
        return "%s_%d" % (p, self.nl)

    def c(self, t):
        self.L.append("  ; " + t)

    def ts(self, slot):
        if OPT["ts"]:
            self("%s %s" % ("s_memtime" if OPT.get("cyc") else "s_memrealtime", s(70 + 2 * slot, 2)))
            self.stamps.append(slot)

    def end(self):
        if OPT.get("dbgts") is not None and self.stamps:
            sk = self.newl("Ldt")
            self("s_waitcnt lgkmcnt(0)")
            self("s_cmp_lg_u32 s2, %d" % OPT.get("dbgwg", 17))
            self("s_cbranch_scc1 %s" % sk)
            self("s_cmp_lg_u32 s3, %d" % OPT["dbgts"])
            self("s_cbranch_scc1 %s" % sk)
            self("s_mov_b64 exec, 1")
            self("v_mov_b32 v2, 0")
            for sl in self.stamps:
                if sl == 0:
                    continue
                self("s_sub_u32 s4, %s, s70" % s(70 + 2 * sl))
                self("v_mov_b32 v0, s4")
                self("global_store_dword v2, v0, %s offset:%d" % (s(44, 2), 4 * sl))
            self.label(sk)
        elif OPT["ts"] and self.stamps:
            self("s_waitcnt lgkmcnt(0)")
            self("s_mov_b64 exec, 1")
            self("s_lshl_b32 s4, s2, 3")
            self("s_add_u32 s4, s4, s3")
            self("s_lshl_b32 s4, s4, 7")
            self("s_add_u32 s4, s4, 0x%x" % WS_TS)
            self("v_mov_b32 v2, 0")
            for sl in self.stamps:
                self("v_mov_b32 v0, %s" % s(70 + 2 * sl))
                self("v_mov_b32 v1, %s" % s(71 + 2 * sl))
                self("buffer_store_dwordx2 v[0:1], v2, s[48:51], s4 offen offset:%d" % (8 * sl))
                self("s_nop 1")
        self("s_endpgm")
        self.flush_cold()


P_X, P_ARE, P_AIM, P_BRE, P_BIM, P_CRE, P_CIM, P_LDT, P_DSK, P_BX, P_WG, P_WU, P_WD, P_OUT, P_DBG, P_WS = [16 + 2 * i for i in range(16)]
SC1 = " sc1"
LSC = " sc1"


def srd(A, d, ptr, size):
    A("s_mov_b32 %s, %s" % (s(d), s(ptr)))
    A("s_mov_b32 %s, %s" % (s(d + 1), s(ptr + 1)))
    A("s_mov_b32 %s, 0x%x" % (s(d + 2), size))
    A("s_mov_b32 %s, 0x20000" % s(d + 3))


def prologue(A, name, tsslot):
    A.L.append(".globl %s" % name)
    A.L.append(".p2align 8")
    A.L.append(".type %s,@function" % name)
    A.label(name)
    A.stamps = []
    ok = A.newl("Lgo")
    A("s_cmp_lt_u32 s2, 256")
    A("s_cbranch_scc1 %s" % ok)
    A.exit = A.newl("Lexit")
    A.label(A.exit)
    A("s_endpgm")
    A.label(ok)
    A("s_load_dwordx16 s[16:31], s[0:1], 0")
    A("s_load_dwordx16 s[32:47], s[0:1], 64")
    if OPT["ts"]:
        for i in range(16):
            A("s_mov_b64 %s, 0" % s(70 + 2 * i, 2))
    A.ts(tsslot)
    A("v_lshrrev_b32 v2, 6, v0")
    A("v_and_b32 v1, 63, v0")
    A("v_readfirstlane_b32 s3, v2")
    A("v_and_b32 v2, 15, v0")
    A("v_lshlrev_b32 v2, 2, v2")
    A("v_add_u32 v2, %d, v2" % CTRL)
    A("v_mov_b32 v3, 0")
    A("ds_write_b32 v2, v3")
    map_g1(A)
    map_g2(A)
    A("s_waitcnt lgkmcnt(0)")
    A("s_barrier")
    A("s_mov_b32 %s, 0x40000" % BUD)
    srd(A, 48, P_WS, WS_SIZE)


def guard(A):
    A("s_sub_u32 %s, %s, 1" % (BUD, BUD))
    A("s_cbranch_scc1 %s" % A.exit)


def map_g1(A):
    A("s_and_b32 s4, s2, 7")
    A("s_lshr_b32 s5, s2, 3")
    A("s_and_b32 s60, s4, 1")
    A("s_lshl_b32 s60, s60, 3")
    A("s_and_b32 s6, s5, 7")
    A("s_add_u32 s60, s60, s6")
    A("s_lshr_b32 s61, s4, 1")
    A("s_lshl_b32 s61, s61, 2")
    A("s_lshr_b32 s6, s5, 3")
    A("s_add_u32 s61, s61, s6")


def map_g2(A):
    A("s_and_b32 s4, s2, 7")
    A("s_lshr_b32 s5, s2, 3")
    A("s_lshl_b32 s62, s4, 2")
    A("s_and_b32 s6, s5, 3")
    A("s_add_u32 s62, s62, s6")
    A("s_lshr_b32 s63, s5, 2")


def lds_wait(A, off, cmp, val, vF, vC, sF, have=False, sleep=1):
    ok, poll = A.newl("Lok"), A.newl("Lpoll")

    def loop():
        A.label(poll)
        guard(A)
        A("ds_read_b32 %s, %s offset:%d" % (v(vF), v(vC), off))
        A("s_waitcnt lgkmcnt(0)")
        A("v_readfirstlane_b32 %s, %s" % (sF, v(vF)))
        A("s_cmp_%s_u32 %s, %d" % (cmp, sF, val))
        A("s_cbranch_scc1 %s" % ok)
        A("s_sleep %d" % sleep)
        A("s_branch %s" % poll)
    if have:
        A("v_readfirstlane_b32 %s, %s" % (sF, v(vF)))
        A("s_cmp_%s_u32 %s, %d" % (cmp, sF, val))
        A("s_cbranch_scc0 %s" % poll)
        A.cold.append(loop)
    else:
        loop()
    A.label(ok)


def nonce_lds(A, vt):
    A("v_mov_b32 %s, %d" % (v(vt + 1), CTRL))
    lds_wait(A, C_NONCE, "lg", 0, vt, vt + 1, NON)


def nonce_fetch(A, vt):
    poll = A.newl("Lnp")
    A.label(poll)
    guard(A)
    A("v_mov_b32 %s, 0" % v(vt))
    A("global_load_dword %s, %s, %s sc1" % (v(vt), v(vt), s(P_DBG, 2)))
    A("s_waitcnt vmcnt(0)")
    A("v_readfirstlane_b32 %s, %s" % (NON, v(vt)))
    A("s_cmp_lg_u32 %s, 0" % NON)
    A("s_cbranch_scc0 %s" % poll)
    A("v_mov_b32 %s, %d" % (v(vt + 1), CTRL))
    A("ds_write_b32 %s, %s offset:%d" % (v(vt + 1), v(vt), C_NONCE))


def signal(A, soff, vt):
    A("v_mov_b32 %s, 0" % v(vt))
    A("v_mov_b32 %s, %s" % (v(vt + 1), NON))
    A("s_mov_b64 exec, 1")
    A("buffer_store_dword %s, %s, s[48:51], %s offen sc1" % (v(vt + 1), v(vt), s(soff)))
    A("s_mov_b64 exec, -1")


def poll_flags(A, loads, tags, vt, sleep=2):
    top, done = A.newl("Lgp"), A.newl("Lgd")
    A.label(top)
    guard(A)
    for (r, n, vo, so, imm) in loads:
        op = {1: "dword", 2: "dwordx2", 4: "dwordx4"}[n]
        A("buffer_load_%s %s, %s, s[48:51], %s offen offset:%d sc1" % (op, v(r, n), v(vo), s(so), imm))
    A("s_waitcnt vmcnt(0)")
    tag_check(A, tags, vt, done)
    A("s_sleep %d" % sleep)
    A("s_branch %s" % top)
    A.label(done)


def tag_check(A, tags, vt, done):
    A("v_xor_b32 %s, %s, %s" % (v(vt), NON, v(tags[0])))
    for x in tags[1:]:
        A("v_xor_b32 %s, %s, %s" % (v(vt + 1), NON, v(x)))
        A("v_or_b32 %s, %s, %s" % (v(vt), v(vt), v(vt + 1)))
    A("v_cmp_ne_u32 s[4:5], 0, %s" % v(vt))
    A("s_cmp_eq_u64 s[4:5], 0")
    A("s_cbranch_scc1 %s" % done)


def setexec(A, m):
    A("s_mov_b32 exec_lo, 0x%x" % (m & 0xffffffff))
    A("s_mov_b32 exec_hi, 0x%x" % (m >> 32))


def poll_all(A, first, n, vt):
    A("v_lshlrev_b32 %s, 4, v1" % v(vt))
    A("s_mov_b32 s6, 0x%x" % (FL_P + 1024 * first))
    r0 = vt + 4
    poll_flags(A, [(r0 + 4 * i, 4, vt, 6, 1024 * i) for i in range(n)], list(range(r0, r0 + 4 * n)), vt + 1, 8)


def ln8_issue(A):
    srd(A, 52, P_X, 2048 * 640 * 2)
    A("v_lshrrev_b32 v2, 3, v1")
    A("v_and_b32 v3, 7, v1")
    A("v_mul_u32_u24 v4, 1280, v2")
    A("v_lshl_add_u32 v4, v3, 4, v4")
    A("s_mul_i32 s4, s2, %d" % (8 * 1280))
    for i in range(10):
        A("buffer_load_dwordx4 %s, v4, s[52:55], s4 offen offset:%d" % (v(64 + 4 * i, 4), 128 * i))


def red8(A, r):
    for m in ["quad_perm:[1,0,3,2]", "quad_perm:[2,3,0,1]", "row_half_mirror"]:
        A("s_nop 1")
        A("v_add_f32_dpp %s, %s, %s %s row_mask:0xf bank_mask:0xf" % (v(r), v(r), v(r), m))


def ln8(A):
    X, F = 64, 104
    for i in range(40):
        A("v_lshlrev_b32 %s, 16, %s" % (v(F + 2 * i), v(X + i)))
        A("v_and_b32 %s, 0xffff0000, %s" % (v(F + 2 * i + 1), v(X + i)))
    for i in range(4):
        A("v_add_f32 %s, %s, %s" % (v(6 + i), v(F + i), v(F + 4 + i)))
    for i in range(8, 80):
        A("v_add_f32 %s, %s, %s" % (v(6 + (i & 3)), v(6 + (i & 3)), v(F + i)))
    A("v_add_f32 v6, v6, v7")
    A("v_add_f32 v8, v8, v9")
    A("v_add_f32 v6, v6, v8")
    red8(A, 6)
    A("v_mul_f32 v10, %s, v6" % fbits(1.0 / 640))
    A("v_cvt_pk_bf16_f32 v11, v10, v10")
    A("v_and_b32 v11, 0xffff0000, v11")
    for i in range(80):
        A("v_sub_f32 %s, %s, v11" % (v(F + i), v(F + i)))
    for i in range(80):
        A("%s %s, %s, %s" % ("v_mul_f32" if i < 4 else "v_fmac_f32", v(6 + (i & 3)), v(F + i), v(F + i)))
    A("v_add_f32 v6, v6, v7")
    A("v_add_f32 v8, v8, v9")
    A("v_add_f32 v6, v6, v8")
    red8(A, 6)
    A("v_sub_f32 v10, v10, v11")
    A("v_mul_f32 v6, %s, v6" % fbits(1.0 / 640))
    A("v_fma_f32 v6, -v10, v10, v6")
    A("v_max_f32 v6, 0, v6")
    A("v_cvt_pk_bf16_f32 v6, v6, v6")
    A("v_and_b32 v6, 0xffff0000, v6")
    A("v_add_f32 v6, %s, v6" % fbits(1e-5))
    A("v_cvt_pk_bf16_f32 v6, v6, v6")
    A("v_and_b32 v6, 0xffff0000, v6")
    A("v_sqrt_f32 v6, v6")
    A("s_nop 0")
    A("v_cvt_pk_bf16_f32 v20, v11, v6")
    A("v_and_b32 v6, 0xffff0000, v20")
    A("v_rcp_f32 v6, v6")
    for i in range(40):
        A("v_cvt_pk_bf16_f32 %s, %s, %s" % (v(X + i), v(F + 2 * i), v(F + 2 * i + 1)))
    for i in range(40):
        A("v_lshlrev_b32 %s, 16, %s" % (v(F + 2 * i), v(X + i)))
        A("v_and_b32 %s, 0xffff0000, %s" % (v(F + 2 * i + 1), v(X + i)))
    for i in range(80):
        A("v_mul_f32 %s, %s, v6" % (v(F + i), v(F + i)))
    A("v_mul_u32_u24 v4, %d, v2" % LNROW)
    A("v_lshl_add_u32 v4, v3, 4, v4")
    A("v_add_u32 v4, s69, v4")
    for i in range(10):
        for e in range(4):
            A("v_cvt_pk_bf16_f32 %s, %s, %s" % (v(X + 4 * i + e), v(F + 8 * i + 2 * e), v(F + 8 * i + 2 * e + 1)))
        A("ds_write_b128 v4, %s offset:%d" % (v(X + 4 * i, 4), 128 * i))
    A("v_bfe_u32 v5, v1, 2, 2")
    A("v_mul_u32_u24 v5, %d, v5" % LNROW)
    A("v_lshrrev_b32 v7, 4, v1")
    A("v_lshl_add_u32 v5, v7, 5, v5")
    A("v_and_b32 v7, 3, v1")
    A("v_lshl_add_u32 v5, v7, 3, v5")
    A("v_add_u32 v5, s69, v5")
    A("v_lshlrev_b32 v7, 4, v1")
    A("s_mul_i32 s7, s2, 10240")
    A("s_add_u32 s7, s7, 0x%x" % WS_XT)
    A("s_waitcnt lgkmcnt(0)")
    for h in range(2):
        for i in range(5 * h, 5 * h + 5):
            A("ds_read_b64_tr_b16 %s, v5 offset:%d" % (v(F + 4 * i, 2), 128 * i))
            A("ds_read_b64_tr_b16 %s, v5 offset:%d" % (v(F + 4 * i + 2, 2), 128 * i + 4 * LNROW))
        for i in range(5 * h, 5 * h + 5):
            A("s_waitcnt lgkmcnt(%d)" % (2 * (5 * h + 4 - i)))
            A("buffer_store_dwordx4 %s, v7, s[48:51], s7 offen offset:%d sc1" % (v(F + 4 * i, 4), 1024 * (i % 4)))
            if i % 4 == 3:
                A("s_add_u32 s7, s7, 4096")
    nonce_lds(A, 8)
    A("v_mov_b32 v21, %s" % NON)
    A("s_lshl_b32 s7, s2, 6")
    A("s_add_u32 s7, s7, 0x%x" % WS_ST)
    setexec(A, 0x0101010101010101)
    A("buffer_store_dwordx2 v[20:21], v1, s[48:51], s7 offen sc1")
    A("s_mov_b64 exec, -1")


LV_C, LV_T, LV_Q = 36, 37, 40


def loader_loop(A, first, last, issued0, P, issue):
    top, nopub, noiss, done = [A.newl(x) for x in ["Lld", "Llp", "Lli", "Lle"]]
    mul = next(m for m in range(1, 4096) if all(((x + P - 1) * m) >> 10 == (x + P - 1) // P for x in range(64)))
    maxvm = OPT.get("maxvm", 60)
    A("s_mov_b32 s65, %d" % issued0)
    A("s_mov_b32 s68, %d" % first)
    A("s_mov_b32 s67, %d" % (NU if first == 0 else 0))
    if OPT.get("free") and first == 0:
        A("s_mov_b32 s67, 100")
    A.label(top)
    A("s_getreg_b32 s4, hwreg(HW_REG_IB_STS)")
    A("s_bfe_u32 s5, s4, 0x20016")
    A("s_and_b32 s4, s4, 15")
    A("s_lshl4_add_u32 s4, s5, s4")
    A("s_add_u32 s5, s4, %d" % (P - 1))
    A("s_mul_i32 s5, s5, %d" % mul)
    A("s_lshr_b32 s5, s5, 10")
    A("s_sub_u32 s5, s65, s5")
    A("s_cmp_gt_u32 s5, s68")
    A("s_cbranch_scc0 %s" % nopub)
    A("s_mov_b32 s68, s5")
    A("v_mov_b32 %s, s5" % v(LV_T))
    A("ds_write_b32 %s, %s" % (v(LV_C), v(LV_T)))
    A("s_cmp_ge_u32 s68, %d" % last)
    A("s_cbranch_scc1 %s" % done)
    A.label(nopub)
    A("s_min_u32 s5, s67, %d" % last)
    A("s_cmp_lt_u32 s65, s5")
    A("s_cbranch_scc0 %s" % noiss)
    A("s_cmp_le_u32 s4, %d" % (maxvm - P))
    A("s_cbranch_scc0 %s" % noiss)
    issue(A)
    A("s_add_u32 s65, s65, 1")
    A("s_branch %s" % top)
    A.label(noiss)
    guard(A)
    A("s_sleep %d" % OPT.get("lsl", 1))
    A("ds_read_b128 %s, %s offset:%d" % (v(LV_Q, 4), v(LV_C), C_PROG))
    A("ds_read_b32 %s, %s offset:%d" % (v(LV_T), v(LV_C), C_PROG5))
    A("s_waitcnt lgkmcnt(0)")
    A("v_min3_u32 %s, %s, %s, %s" % (v(LV_Q), v(LV_Q), v(LV_Q + 1), v(LV_T)))
    A("v_min3_u32 %s, %s, %s, %s" % (v(LV_Q), v(LV_Q), v(LV_Q + 2), v(LV_Q + 3)))
    A("s_nop 0")
    A("v_readfirstlane_b32 s67, %s" % v(LV_Q))
    A("s_add_u32 s67, s67, %d" % (100 if (OPT.get("free") and first == 0) else NU))
    A("s_branch %s" % top)
    A.label(done)


def rot1(A, sd):
    A("s_cmp_ge_u32 s60, 10")
    A("s_cselect_b32 %s, 10, 0" % s(sd))
    A("s_sub_u32 %s, s60, %s" % (s(sd), s(sd)))


def loader1_setup(A):
    srd(A, 52, P_WG, 640 * 1536 * 2)
    srd(A, 56, P_WU, 640 * 1536 * 2)
    for p in range(3):
        A("v_add_u32 v40, %d, v1" % (64 * p))
        A("v_mul_u32_u24 v41, 43691, v40")
        A("v_lshrrev_b32 v41, 19, v41")
        A("v_mul_u32_u24 v42, 12, v41")
        A("v_sub_u32 v40, v40, v42")
        A("v_lshrrev_b32 v42, 3, v41")
        A("v_mul_u32_u24 v42, 24, v42")
        A("v_add_u32 v41, v41, v42")
        A("v_mul_u32_u24 v41, 3072, v41")
        A("v_lshl_add_u32 %s, v40, 4, v41" % v(32 + p))
        if p and OPT.get("i1", 1):
            A("v_subrev_u32 %s, %d, %s" % (v(32 + p), 1024 * p, v(32 + p)))
    rot1(A, 4)
    A("s_mul_i32 s64, s61, 192")
    A("s_add_u32 s69, s64, %d" % (640 * 3072))
    A("s_mul_i32 s4, s4, %d" % (64 * 3072))
    A("s_add_u32 s64, s64, s4")
    A("s_mov_b32 s66, %d" % RING)
    A("s_mov_b32 s65, 0")
    A("v_mov_b32 %s, %d" % (v(LV_C), CTRL))


def next_slot(A):
    A("s_add_u32 s66, s66, %d" % U1)
    A("s_cmp_eq_u32 s66, %d" % (RING + NU * U1))
    A("s_cselect_b32 s66, %d, s66" % RING)


def issue1(A):
    if OPT.get("i1", 1):
        for k in range(2):
            A("s_add_u32 m0, s66, %d" % (k * SLOT1))
            if k == 0:
                A("s_add_u32 s6, s64, %d" % (8 * 3072))
            else:
                A("s_bitcmp1_b32 s65, 0")
            so = "s64" if k == 0 else "s6"
            for p in range(3):
                A("buffer_load_dwordx4 %s, s[52:55], %s offen offset:%d lds" % (v(32 + p), so, 1024 * p))
            if k == 1:
                A("s_cselect_b32 s5, %d, 0" % (32 * 3072))
            A("s_add_u32 m0, s66, %d" % (k * SLOT1 + UPOFF))
            if k == 0:
                A("s_nop 0")
            else:
                A("s_add_u32 s64, s6, s5")
            for p in range(3):
                A("buffer_load_dwordx4 %s, s[56:59], %s offen offset:%d lds" % (v(32 + p), so, 1024 * p))
        A("s_add_u32 s64, s64, %d" % (8 * 3072))
        A("s_cmp_ge_u32 s64, s69")
        A("s_cselect_b32 s5, %d, 0" % (640 * 3072))
        A("s_sub_u32 s64, s64, s5")
        next_slot(A)
        return
    for k in range(2):
        for (sr, lo) in [(52, 0), (56, UPOFF)]:
            for p in range(3):
                A("s_add_u32 m0, s66, %d" % (k * SLOT1 + lo + 1024 * p))
                A("s_nop 0")
                A("buffer_load_dwordx4 %s, %s, s64 offen lds" % (v(32 + p), s(sr, 4)))
        A("s_add_u32 s64, s64, %d" % (8 * 3072))
    A("s_bitcmp1_b32 s65, 0")
    A("s_cselect_b32 s5, %d, 0" % (32 * 3072))
    A("s_add_u32 s64, s64, s5")
    A("s_cmp_ge_u32 s64, s69")
    A("s_cselect_b32 s5, %d, 0" % (640 * 3072))
    A("s_sub_u32 s64, s64, s5")
    next_slot(A)


def rot2(A, sd):
    A("s_and_b32 %s, s62, 3" % s(sd))
    A("s_mul_i32 %s, %s, 6" % (s(sd), s(sd)))


def loader2_setup(A):
    rot2(A, 4)
    A("s_mul_i32 s64, s63, %d" % (24 * U2))
    A("s_add_u32 s64, s64, 0x%x" % WS_WD)
    A("s_add_u32 s69, s64, %d" % (24 * U2))
    A("s_mul_i32 s4, s4, %d" % U2)
    A("s_add_u32 s64, s64, s4")
    A("v_lshlrev_b32 v32, 4, v1")


def issue2(A):
    for g in range(3):
        A("s_add_u32 m0, s66, %d" % (4096 * g))
        A("s_add_u32 s5, s64, %d" % (4096 * g))
        for p in range(4 if g < 2 else 2):
            A("buffer_load_dwordx4 v32, s[48:51], s5 offen offset:%d%s lds" % (1024 * p, LSC))
    A("s_add_u32 s64, s64, %d" % U2)
    A("s_cmp_ge_u32 s64, s69")
    A("s_cselect_b32 s5, %d, 0" % (24 * U2))
    A("s_sub_u32 s64, s64, s5")
    next_slot(A)


def colsum_gather(A):
    A("v_lshlrev_b32 v44, 4, v1")
    A("s_mul_i32 s6, s61, 10240")
    A("s_add_u32 s6, s6, 0x%x" % WS_CS)
    A("s_add_u32 s7, s6, 4096")
    A("s_add_u32 s8, s6, 8192")
    poll_flags(A, [(48 + 4 * i, 4, 44, 6 + i // 4, 1024 * (i % 4)) for i in range(10)], [51 + 4 * i for i in range(10)], 45, 4)
    for i in range(1, 10):
        for e in range(3):
            A("v_add_f32 %s, %s, %s" % (v(48 + e), v(48 + e), v(48 + 4 * i + e)))
    A("v_lshlrev_b32 v44, 2, v1")
    A("v_add_u32 v44, %d, v44" % CSUM)
    for e in range(3):
        A("ds_write_b32 v44, %s offset:%d" % (v(48 + e), 256 * e))
    A("v_mov_b32 %s, 1" % v(LV_T))
    A("s_waitcnt lgkmcnt(0)")
    A("ds_write_b32 %s, %s offset:%d" % (v(LV_C), v(LV_T), C_CSOK))


def wd_issue(A):
    srd(A, 56, P_WD, 1536 * 640 * 2)
    A("s_lshl_b32 s4, s2, 1")
    A("s_add_u32 s4, s4, s3")
    A("s_sub_u32 s4, s4, 5")
    A("s_mul_i32 s10, s4, 52429")
    A("s_lshr_b32 s10, s10, 19")
    A("s_mul_i32 s5, s10, 10")
    A("s_sub_u32 s11, s4, s5")
    A("s_mul_i32 s4, s10, %d" % (32 * 1280))
    A("s_lshl_b32 s5, s11, 7")
    A("s_add_u32 s4, s4, s5")
    A("v_lshrrev_b32 v2, 3, v1")
    A("v_mul_u32_u24 v2, 1280, v2")
    A("v_and_b32 v3, 7, v1")
    A("v_lshl_add_u32 v2, v3, 4, v2")
    for p in range(4):
        A("s_add_u32 m0, s69, %d" % (1024 * p))
        A("s_nop 0")
        A("buffer_load_dwordx4 v2, s[56:59], s4 offen lds")
        A("s_add_u32 s4, s4, %d" % (8 * 1280))


def wd_store(A):
    skip = A.newl("Lwd")
    A("s_cmp_ge_u32 s2, 240")
    A("s_cbranch_scc1 %s" % skip)
    A("v_lshrrev_b32 v2, 2, v1")
    A("v_lshlrev_b32 v2, 7, v2")
    A("v_and_b32 v3, 3, v1")
    A("v_lshl_add_u32 v2, v3, 3, v2")
    A("v_add_u32 v2, s69, v2")
    for c in range(4):
        A("ds_read_b64_tr_b16 %s, v2 offset:%d" % (v(8 + 4 * c, 2), 32 * c))
        A("ds_read_b64_tr_b16 %s, v2 offset:%d" % (v(10 + 4 * c, 2), 32 * c + 2048))
    A("v_lshlrev_b32 v3, 4, v1")
    for c in range(4):
        A("s_lshl_b32 s4, s11, 2")
        A("s_add_u32 s4, s4, %d" % c)
        A("s_mul_i32 s5, s4, 52429")
        A("s_lshr_b32 s5, s5, 18")
        A("s_mul_i32 s6, s5, 5")
        A("s_sub_u32 s4, s4, s6")
        A("s_mul_i32 s5, s5, 48")
        A("s_add_u32 s5, s5, s10")
        A("s_mul_i32 s5, s5, 5")
        A("s_add_u32 s4, s4, s5")
        A("s_lshl_b32 s4, s4, 10")
        A("s_add_u32 s4, s4, 0x%x" % WS_WD)
        A("s_waitcnt lgkmcnt(%d)" % (6 - 2 * c))
        A("buffer_store_dwordx4 %s, v3, s[48:51], s4 offen sc1" % v(8 + 4 * c, 4))
    A.label(skip)


G_vA0, G_vA1, G_vC, G_vF, G_vP, G_vXo, G_vPa = 2, 3, 4, 5, 6, 7, 8


def prog(A, val):
    A("v_mov_b32 %s, %d" % (v(G_vP), val))
    A("ds_write_b32 %s, %s" % (v(G_vPa), v(G_vP)))


def full_wait(A, need, have=True):
    if OPT.get("free"):
        return
    lds_wait(A, C_FULL, "ge", need, G_vF, G_vC, "s10", have)


def wfrag_addr(A, d, t):
    A("v_bfe_u32 %s, v1, 2, 2" % v(t))
    A("v_lshrrev_b32 %s, 5, v1" % v(t + 1))
    A("v_lshl_add_u32 %s, %s, 3, %s" % (v(t), v(t + 1), v(t)))
    A("v_mul_u32_u24 %s, 192, %s" % (v(d), v(t)))
    A("v_bfe_u32 %s, v1, 4, 1" % v(t))
    A("v_lshl_add_u32 %s, %s, 5, %s" % (v(d), v(t), v(d)))
    A("v_and_b32 %s, 1, v1" % v(t))
    A("v_lshl_add_u32 %s, %s, 3, %s" % (v(d), v(t), v(d)))
    A("v_bfe_u32 %s, v1, 1, 1" % v(t))
    A("v_mul_u32_u24 %s, %d, %s" % (v(t), UPOFF, v(t)))
    A("v_add_u32 %s, %s, %s" % (v(d), v(t), v(d)))


def colsum_part(A):
    sk = A.newl("Lcs")
    SEL, FR, D = 64, 88, 184
    A("v_mov_b32 v5, %d" % CTRL)
    A("s_cmp_ge_u32 s60, 10")
    A("s_cbranch_scc1 %s" % sk)
    wfrag_addr(A, 2, 3)
    A("v_and_b32 v3, 31, v1")
    A("v_mov_b32 v4, 0x3f803f80")
    for t in range(6):
        A("v_cmp_eq_u32 vcc, %d, v3" % ((t >> 1) + 4 * (t & 1)))
        A("s_nop 1")
        for d in range(4):
            A("v_cndmask_b32 %s, 0, v4, vcc" % v(SEL + 4 * t + d))
    lds_wait(A, C_FULL, "ge", 2, 6, 5, "s10")
    for ks in range(4):
        for t in range(6):
            off = RING + ks * SLOT1 + 64 * (t >> 1) + 16 * (t & 1)
            r = FR + 24 * ks + 4 * t
            A("ds_read_b64_tr_b16 %s, v2 offset:%d" % (v(r, 2), off))
            A("ds_read_b64_tr_b16 %s, v2 offset:%d" % (v(r + 2, 2), off + 768))
        A("s_waitcnt lgkmcnt(0)")
    A("v_mov_b32 v6, 1000")
    A("ds_write_b32 v5, v6 offset:%d" % C_PROG5)
    for ks in range(4):
        for t in range(6):
            cin = "0" if ks + t == 0 else v(D, 16)
            A("v_mfma_f32_32x32x16_bf16 %s, %s, %s, %s" % (v(D, 16), v(SEL + 4 * t, 4), v(FR + 24 * ks + 4 * t, 4), cin))
    A("v_lshlrev_b32 v3, 4, v1")
    A("s_mul_i32 s6, s61, 10")
    A("s_add_u32 s6, s6, s60")
    A("s_lshl_b32 s6, s6, 10")
    A("s_add_u32 s6, s6, 0x%x" % WS_CS)
    nonce_lds(A, 8)
    A("s_nop 15")
    A("v_mov_b32 %s, %s" % (v(D + 3), NON))
    A("buffer_store_dwordx4 %s, v3, s[48:51], s6 offen sc1" % v(D, 4))
    A.label(sk)
    A("v_mov_b32 v6, 1000")
    A("ds_write_b32 v5, v6 offset:%d" % C_PROG5)


def gemm1(A):
    ACC, WF, TT, XR0, NXC = 160, 136, 120, 24, 6
    CS, ST = 12, 18
    XI, XD, TJ = OPT.get("xi", 3), OPT.get("xd", 4), OPT.get("tj", 0)
    vA0, vA1, vC, vF, vP, vXo, vPa = G_vA0, G_vA1, G_vC, G_vF, G_vP, G_vXo, G_vPa
    lg = Cnt(A, "lgkmcnt", 15)
    vm = Cnt(A, "vmcnt", 63)
    srd(A, 52, P_X, 2048 * 640 * 2)
    A("s_lshl_b32 s8, s60, 2")
    A("s_add_u32 s8, s8, s3")
    A("s_mul_i32 s9, s8, %d" % (32 * 1280))
    A("s_add_u32 s11, s9, 1280")
    rot1(A, 4)
    A("s_lshl_b32 s4, s4, 7")
    A("s_add_u32 s9, s9, s4")
    A("v_bfe_u32 v9, v1, 2, 3")
    A("v_mul_u32_u24 %s, %d, v9" % (v(vXo), 4 * 1280))
    A("v_lshrrev_b32 v9, 5, v1")
    A("v_lshl_add_u32 %s, v9, 6, %s" % (v(vXo), v(vXo)))
    A("v_and_b32 v9, 3, v1")
    A("v_lshl_add_u32 %s, v9, 4, %s" % (v(vXo), v(vXo)))
    nx = [0]

    def X(c, i):
        return XR0 + 16 * (c % NXC) + 4 * i

    def xload():
        c = nx[0]
        nx[0] += 1
        for i in range(4):
            if OPT.get("nox"):
                continue
            A("buffer_load_dwordx4 %s, %s, s[52:55], s9 offen offset:%d" % (v(X(c, i), 4), v(vXo), 1280 * i))
            vm.issue(("x", c, i))
        if c < 9:
            A("s_add_u32 s9, s9, 128")
            A("s_cmp_ge_u32 s9, s11")
            A("s_cselect_b32 s4, 1280, 0")
            A("s_sub_u32 s9, s9, s4")
    for c in range(XI):
        xload()
    wfrag_addr(A, vA0, 9)
    HALF = 8 * SLOT1
    A("v_add_u32 %s, %d, %s" % (v(vA1), HALF, v(vA0)))
    A("v_mov_b32 %s, %d" % (v(vC), CTRL))
    A("s_lshl_b32 s4, s3, 2")
    A("s_add_u32 s4, s4, %d" % (CTRL + C_PROG))
    A("v_mov_b32 %s, s4" % v(vPa))
    A("s_mov_b32 s12, 0x55555555")
    A("s_mov_b32 s13, 0x55555555")
    A("s_mov_b32 s14, 0x33333333")
    A("s_mov_b32 s15, 0x33333333")

    def tr_ops(c):
        L = []
        cm = "v_cndmask_b32_dpp %s, %s, %s, vcc quad_perm:%s row_mask:0xf bank_mask:0xf"
        L.append("s_mov_b64 vcc, s[12:13]")
        for i in (0, 2):
            L += [cm % (v(TT + 4 * i + d), v(X(c, i ^ 1) + d), v(X(c, i) + d), "[1,0,3,2]") for d in range(4)]
        L.append("s_not_b64 vcc, vcc")
        for i in (1, 3):
            L += [cm % (v(TT + 4 * i + d), v(X(c, i ^ 1) + d), v(X(c, i) + d), "[1,0,3,2]") for d in range(4)]
        L.append("s_mov_b64 vcc, s[14:15]")
        for i in (0, 1):
            L += [cm % (v(X(c, i) + d), v(TT + 4 * (i ^ 2) + d), v(TT + 4 * i + d), "[2,3,0,1]") for d in range(4)]
        L.append("s_not_b64 vcc, vcc")
        for i in (2, 3):
            L += [cm % (v(X(c, i) + d), v(TT + 4 * (i ^ 2) + d), v(TT + 4 * i + d), "[2,3,0,1]") for d in range(4)]
        return L

    def wread(ks, t):
        if OPT.get("nord"):
            return
        sl = ks % 16
        off = RING + sl * SLOT1 + 64 * (t >> 1) + 16 * (t & 1)
        b = vA0
        if sl >= 8:
            off -= HALF
            b = vA1
        A("ds_read_b64_tr_b16 %s, %s offset:%d" % (v(WF + 4 * t, 2), v(b), off))
        lg.issue(("w", ks, t, 0))
        A("ds_read_b64_tr_b16 %s, %s offset:%d" % (v(WF + 4 * t + 2, 2), v(b), off + 768))
        lg.issue(("w", ks, t))
    vm.wait(("x", 0, 3))
    A.ts(3)
    for o in tr_ops(0):
        A(o)
    full_wait(A, 1, False)
    A.ts(4)
    for t in range(6):
        wread(0, t)
    pend = []
    for ks in range(40):
        c, j = ks // 4, ks % 4
        if j == 0:
            while nx[0] < min(c + XD + 1, 10):
                xload()
            if c == 7:
                A("v_and_b32 v9, 31, v1")
                A("v_lshlrev_b32 v9, 3, v9")
                A("s_lshl_b32 s6, s8, 8")
                A("s_add_u32 s6, s6, 0x%x" % WS_ST)
                A("buffer_load_dwordx2 %s, v9, s[48:51], s6 offen sc1" % v(ST, 2))
                vm.issue("st")
            if ks in (12, 20, 28):
                A.ts(8 + (ks - 12) // 8)
        if j == TJ and c + 1 < 10:
            vm.wait(("x", c + 1, 3))
            pend = tr_ops(c + 1)
        for t in range(6):
            lg.wait(("w", ks, t))
            cin = "0" if ks == 0 else v(ACC + 16 * t, 16)
            if not OPT.get("nomf"):
                A("v_mfma_f32_32x32x16_bf16 %s, %s, %s, %s" % (v(ACC + 16 * t, 16), v(WF + 4 * t, 4), v(X(c, j), 4), cin))
            if ks + 1 < 40:
                if t == 0:
                    if ks % 2 == 1:
                        full_wait(A, (ks + 1) // 2 + 1)
                    elif ks + 2 < 40:
                        A("ds_read_b32 %s, %s" % (v(vF), v(vC)))
                        lg.issue(("f", ks))
                wread(ks + 1, t)
            n = 0
            while pend and n < (2 if TJ else (2 if t % 2 == 0 else 1)):
                o = pend.pop(0)
                A(o)
                n += 0 if o.startswith("s_") else 1
        if j == 3:
            assert not pend
        if ks % 2 == 1:
            prog(A, ks // 2 + 1)
            lg.issue(("p", ks))
    A.ts(5)
    if OPT.get("g1only"):
        return
    nonce_lds(A, 10)
    vm.wait("st")
    ok = A.newl("Lst")
    tag_check(A, [ST + 1], 10, ok)
    poll_flags(A, [(ST, 2, 9, 6, 0)], [ST + 1], 10, 2)
    A.label(ok)
    lds_wait(A, C_CSOK, "lg", 0, vF, vC, "s10")
    NM, C1 = 20, 22
    A("v_lshlrev_b32 %s, 16, %s" % (v(NM), v(ST)))
    A("v_xor_b32 %s, 0x80000000, %s" % (v(NM), v(NM)))
    A("v_and_b32 %s, 0xffff0000, %s" % (v(C1), v(ST)))
    A("v_mul_f32 %s, %s, %s" % (v(NM + 1), v(C1), v(C1)))
    A("v_rcp_f32 %s, %s" % (v(C1), v(C1)))
    A("v_lshrrev_b32 v9, 5, v1")
    A("v_lshlrev_b32 v9, 4, v9")
    A("v_add_u32 v9, %d, v9" % CSUM)
    A("v_mul_f32 %s, %s, %s" % (v(C1), fbits(-LOG2E), v(C1)))
    CR = 24
    for t in range(6):
        if t == 3:
            A("s_waitcnt lgkmcnt(0)")
        for m in range(4):
            A("ds_read_b128 %s, v9 offset:%d" % (v(CR + 16 * t + 4 * m, 4), 128 * t + 32 * m))
    A("s_mul_i32 s9, s8, 96")
    A("s_mul_i32 s4, s61, 6")
    A("s_add_u32 s9, s9, s4")
    A("s_lshl_b32 s9, s9, 10")
    A("s_add_u32 s9, s9, 0x%x" % WS_HF)
    A("v_lshlrev_b32 %s, 4, v1" % v(vXo))
    T0 = 120
    for t in range(6):
        a = ACC + 16 * t
        tmp = T0 + 16 * (t & 1)
        G = [a, a + 2, a + 8, a + 10]
        U = [a + 4, a + 6, a + 12, a + 14]
        if t == 3:
            A("s_waitcnt lgkmcnt(0)")
        for i in range(8):
            A("v_pk_fma_f32 %s, %s, %s, %s op_sel_hi:[1,0,1]" % (v(a + 2 * i, 2), v(CR + 16 * t + 2 * i, 2), v(NM, 2), v(a + 2 * i, 2)))
        for i in range(4):
            A("v_pk_mul_f32 %s, %s, %s op_sel_hi:[1,0]" % (v(tmp + 2 * i, 2), v(G[i], 2), v(C1, 2)))
        for i in range(8):
            A("v_exp_f32 %s, %s" % (v(tmp + i), v(tmp + i)))
        for i in range(4):
            A("v_pk_mul_f32 %s, %s, %s" % (v(G[i], 2), v(G[i], 2), v(U[i], 2)))
        for i in range(4):
            A("v_pk_fma_f32 %s, %s, %s, %s op_sel:[0,1,1] op_sel_hi:[1,1,1]" % (v(tmp + 2 * i, 2), v(tmp + 2 * i, 2), v(NM, 2), v(NM, 2)))
        for i in range(8):
            A("v_rcp_f32 %s, %s" % (v(tmp + i), v(tmp + i)))
        A("s_nop 0")
        for i in range(4):
            A("v_pk_mul_f32 %s, %s, %s" % (v(G[i], 2), v(G[i], 2), v(tmp + 2 * i, 2)))
        for i in range(4):
            A("v_cvt_pk_bf16_f32 %s, %s, %s" % (v(tmp + 8 + i), v(G[i]), v(G[i] + 1)))
        if t == 4:
            A("s_add_u32 s9, s9, 4096")
        A("buffer_store_dwordx4 %s, %s, s[48:51], s9 offen offset:%d sc1" % (v(tmp + 8, 4), v(vXo), 1024 * (t % 4)))
    A("v_mov_b32 %s, 1" % v(vP))
    A("ds_write_b32 %s, %s offset:%d" % (v(vPa), v(vP), C_EPI - C_PROG))
    A.ts(6)
    A("s_lshl_b32 s6, s8, 5")
    A("s_add_u32 s6, s6, s61")
    A("s_lshl_b32 s6, s6, 2")
    A("s_add_u32 s6, s6, 0x%x" % FL_H)
    A("s_waitcnt vmcnt(0)")
    signal(A, 6, 10)
    A.ts(7)


def cmul(A, d, a, f, t):
    assert d != a and d != f
    A("v_mul_f32 %s, %s, %s" % (v(d), v(a), v(f)))
    A("v_mul_f32 %s, %s, %s" % (v(d + 1), v(a + 1), v(f)))
    A("v_fma_f32 %s, -%s, %s, %s" % (v(d), v(a + 1), v(f + 1), v(d)))
    A("v_fmac_f32 %s, %s, %s" % (v(d + 1), v(a), v(f + 1)))


PARAM = 16640 + 512 + 2816


def kgen_issue(A):
    A("v_mov_b32 v58, 0")
    A("v_mov_b32 v59, 0")
    A("s_mul_i32 s4, s68, 384")
    A("v_lshlrev_b32 v38, 4, v1")
    A("v_add_u32 v38, s4, v38")
    A("s_lshl_b32 s4, s68, 1")
    A("v_mov_b32 v39, s4")
    setexec(A, 0xffffff)
    for i, p in enumerate([P_ARE, P_AIM, P_BRE, P_BIM, P_CRE, P_CIM]):
        A("s_add_u32 m0, s69, %d" % (AUX_U + 384 * i))
        A("s_nop 0")
        A("global_load_lds_dwordx4 v38, %s" % s(p, 2))
    A("s_mov_b64 exec, -1")
    A("global_load_short_d16_hi v58, v39, %s" % s(P_LDT, 2))
    A("global_load_short_d16_hi v59, v39, %s" % s(P_DSK, 2))


def kgen_params(A):
    for i in range(18):
        A("v_mov_b32 %s, 0" % v(40 + i))
    A("v_lshlrev_b32 v38, 1, v1")
    A("v_add_u32 v38, s69, v38")
    for c in range(3):
        for i in range(6):
            A("ds_read_u16_d16_hi %s, v38 offset:%d" % (v(40 + 6 * c + i), AUX_U + 384 * i + 128 * c))
        if c == 1:
            A("s_waitcnt lgkmcnt(0)")
    A("s_waitcnt lgkmcnt(0)")


HI = list(range(8)) + [256, 258, 260, 262, 512, 516, 768, 772, 1024, 1280, 1536, 1792, 2048]
EROW = 272


def kgen(A):
    vW, vR = 60, 61
    DT = 62
    KACC = 64
    E1, E8, E256, WW = 80, 82, 84, 86
    TA, TB = 88, 90
    LO = [92, 94, 96, 98]
    E16 = 100
    Gs = 104
    PK = 146
    FR = 160
    A("v_lshlrev_b32 %s, 2, v1" % v(vW))
    A("v_add_u32 %s, s69, %s" % (v(vW), v(vW)))
    A("v_and_b32 v2, 31, v1")
    A("v_mul_u32_u24 %s, %d, v2" % (v(vR), EROW))
    A("v_lshrrev_b32 v2, 5, v1")
    A("v_lshl_add_u32 %s, v2, 4, %s" % (v(vR), v(vR)))
    A("v_add_u32 %s, s69, %s" % (v(vR), v(vR)))
    A("v_mul_f32 %s, %s, v58" % (v(DT), fbits(LOG2E)))
    A("v_exp_f32 %s, %s" % (v(DT), v(DT)))
    A("s_nop 0")
    A("v_cvt_pk_bf16_f32 %s, %s, %s" % (v(DT), v(DT), v(DT)))
    A("v_and_b32 %s, 0xffff0000, %s" % (v(DT), v(DT)))
    pk = [0]

    def put(row, r, neg):
        p = PK + (pk[0] & 7)
        pk[0] += 1
        A("v_cvt_pk_bf16_f32 %s, %s, %s%s" % (v(p), v(r), "-" if neg else "", v(r + 1)))
        A("ds_write_b32 %s, %s offset:%d" % (v(vW), v(p), row * EROW))
    for c in range(3):
        are, aim, bre, bim, cre, cim = [40 + 6 * c + i for i in range(6)]
        A("v_mul_f32 %s, %s, %s" % (v(are), v(DT), v(are)))
        A("v_mul_f32 %s, %s, %s" % (v(aim), v(DT), v(aim)))
        A("v_mul_f32 %s, %s, %s" % (v(bre), v(DT), v(bre)))
        A("v_mul_f32 %s, %s, %s" % (v(bim), v(DT), v(bim)))
        A("v_mul_f32 %s, %s, %s" % (v(are), fbits(LOG2E), v(are)))
        A("v_mul_f32 %s, %s, %s" % (v(aim), fbits(0.5 / math.pi), v(aim)))
        cmul(A, Gs, cre, bre, TA)
        for (E, l) in [(E1, 1.0), (E8, 8.0), (E256, 256.0)]:
            A("v_mul_f32 %s, %s, %s" % (v(TA), fbits(l), v(are)))
            A("v_mul_f32 %s, %s, %s" % (v(TA + 1), fbits(l), v(aim)))
            A("v_exp_f32 %s, %s" % (v(TA), v(TA)))
            A("v_fract_f32 %s, %s" % (v(TA + 1), v(TA + 1)))
            A("v_cos_f32 %s, %s" % (v(E), v(TA + 1)))
            A("v_sin_f32 %s, %s" % (v(E + 1), v(TA + 1)))
            A("s_nop 0")
            A("v_mul_f32 %s, %s, %s" % (v(E), v(E), v(TA)))
            A("v_mul_f32 %s, %s, %s" % (v(E + 1), v(E + 1), v(TA)))
        cmul(A, E16, E8, E8, E16)
        A("v_mov_b32 %s, 0x3f80" % v(PK))
        A("ds_write_b32 %s, %s offset:%d" % (v(vW), v(PK), 21 * EROW))
        pk[0] = 1
        put(22, E8, False)
        put(23, E16, False)
        put(0, Gs, True)
        ops = []
        cur = [E16, E8]
        lo_ops = []
        for j in range(3, 32):
            ch = 1 if (j & 1) else 0
            dst = LO[2 * ch + ((j >> 1) & 1)]
            lo_ops.append((dst, cur[ch], E16, 21 + j, False))
            cur[ch] = dst
        G = lambda i: Gs + 2 * i
        hi_ops = [(G(i), G(i - 1), E1, i, True) for i in range(1, 8)]
        src = {8: 0, 9: 2, 10: 4, 11: 6, 12: 8, 13: 10, 14: 12, 15: 13, 16: 14, 17: 16, 18: 17, 19: 18, 20: 19}
        order = [8, 9, 12, 10, 14, 11, 16, 13, 17, 15, 18, 19, 20]
        hi_ops += [(G(i), G(src[i]), E256, i, True) for i in order]
        while lo_ops or hi_ops:
            grp = []
            for _ in range(2):
                if lo_ops:
                    grp.append(lo_ops.pop(0))
            if hi_ops:
                grp.append(hi_ops.pop(0))
            if not lo_ops and hi_ops and len(grp) < 2:
                pass
            for (d, a, f, row, neg) in grp:
                cmul(A, d, a, f, d)
            for (d, a, f, row, neg) in grp:
                put(row, d, neg)
        A("s_waitcnt lgkmcnt(0)")
        for hf in range(2):
            for k in range(4):
                ks = 4 * hf + k
                A("ds_read_b128 %s, %s offset:%d" % (v(FR + 8 * ks, 4), v(vR), 32 * ks))
                A("ds_read_b128 %s, %s offset:%d" % (v(FR + 8 * ks + 4, 4), v(vR), 32 * ks + 21 * EROW))
            if hf == 0:
                A("s_waitcnt lgkmcnt(6)")
        for ks in range(8):
            A("s_waitcnt lgkmcnt(%d)" % min(15, 2 * (7 - ks)))
            cin = "0" if (c == 0 and ks == 0) else v(KACC, 16)
            A("v_mfma_f32_32x32x16_bf16 %s, %s, %s, %s" % (v(KACC, 16), v(FR + 8 * ks, 4), v(FR + 8 * ks + 4, 4), cin))
    TB0 = AUX_U + 512
    A("v_and_b32 v2, 31, v1")
    A("v_lshrrev_b32 v3, 5, v1")
    A("v_lshlrev_b32 v4, 5, v2")
    A("v_lshl_add_u32 v4, v3, 4, v4")
    A("v_add_u32 v4, s69, v4")
    A("v_lshlrev_b32 v5, 4, v2")
    A("v_add_u32 v5, s69, v5")
    A("v_lshlrev_b32 v6, 3, v2")
    A("v_add_u32 v6, s69, v6")
    A("v_lshlrev_b32 v7, 2, v2")
    A("v_add_u32 v7, s69, v7")
    A("s_nop 7")
    A("s_mov_b64 exec, 1")
    A("v_add_f32 %s, %s, v59" % (v(KACC), v(KACC)))
    A("s_mov_b64 exec, -1")
    A("ds_write_b128 v4, %s offset:%d" % (v(KACC, 4), TB0))
    A("s_mov_b32 exec_hi, 0")
    A("ds_write_b128 v5, %s offset:%d" % (v(KACC + 4, 4), TB0 + 256 * 4))
    for r in range(4):
        A("ds_write_b32 v7, %s offset:%d" % (v(KACC + 8 + r), TB0 + (512 + 32 * r) * 4))
    A("s_mov_b32 exec_lo, 0")
    A("s_mov_b32 exec_hi, -1")
    A("ds_write_b64 v6, %s offset:%d" % (v(KACC + 4, 2), TB0 + 384 * 4))
    A("ds_write_b64 v6, %s offset:%d" % (v(KACC + 6, 2), TB0 + 448 * 4))
    A("ds_write_b32 v7, %s offset:%d" % (v(KACC + 8), TB0 + 640 * 4))
    A("s_mov_b64 exec, -1")
    A("v_mov_b32 v8, 0")
    A("v_mov_b32 v9, 0")
    A("v_lshlrev_b32 v2, 3, v1")
    A("v_add_u32 v2, s69, v2")
    A("ds_write_b64 v2, v[8:9] offset:%d" % AUX_U)
    A("v_lshrrev_b32 v3, 4, v1")
    A("v_mul_u32_u24 v3, %d, v3" % KSTR)
    A("v_and_b32 v4, 15, v1")
    A("v_lshl_add_u32 v3, v4, 2, v3")
    A("v_add_u32 v3, s69, v3")
    A("s_waitcnt lgkmcnt(0)")
    A("ds_write_b32 v3, v8 offset:4096")
    S0, S1, S2, S3 = 10, 16, 20, 24
    A("v_lshlrev_b32 v4, 4, v1")
    A("v_add_u32 v4, s69, v4")
    A("ds_read_b128 %s, v4 offset:%d" % (v(S0 + 2, 4), TB0))
    A("ds_read_b32 %s, v4 offset:%d" % (v(S0), TB0 + 16))
    for (S, b) in [(S1, 256), (S2, 384), (S3, 512)]:
        A("ds_read_b64 %s, v2 offset:%d" % (v(S, 2), TB0 + 4 * b))
        A("ds_read_b32 %s, v2 offset:%d" % (v(S + 2), TB0 + 4 * b + 8))
    A("v_sub_u32 v5, 63, v1")
    A("v_lshlrev_b32 v6, 5, v5")
    A("v_add_u32 v6, s69, v6")
    A("v_lshlrev_b32 v7, 4, v5")
    A("v_add_u32 v7, s69, v7")
    A("v_lshlrev_b32 v5, 3, v5")
    A("v_add_u32 v5, s69, v5")
    A("s_waitcnt lgkmcnt(0)")
    O = 28
    def val3(o):
        return S3 + (0 if o <= 4 else 1 if o <= 11 else 2)
    def val2(o):
        return S2 + (0 if o <= 2 else 1 if o <= 5 else 2)
    for d in range(4):
        o0 = O + 12 * (d & 1)
        for w in range(8):
            A("v_cvt_pk_bf16_f32 %s, %s, %s" % (v(o0 + w), v(val3(d + 15 - 2 * w)), v(val3(d + 14 - 2 * w))))
        for w in range(4):
            A("v_cvt_pk_bf16_f32 %s, %s, %s" % (v(o0 + 8 + w), v(val2(d + 7 - 2 * w)), v(val2(d + 6 - 2 * w))))
        A("ds_write_b128 v6, %s offset:%d" % (v(o0, 4), d * KSTR))
        A("ds_write_b128 v6, %s offset:%d" % (v(o0 + 4, 4), d * KSTR + 16))
        A("ds_write_b128 v7, %s offset:%d" % (v(o0 + 8, 4), d * KSTR + 2048))
    A("v_cvt_pk_bf16_f32 v52, %s, %s" % (v(S2), v(S2)))
    A("ds_write_b32 v7, v52 offset:%d" % (2 * KSTR + 2048 + 16))
    A("ds_write_b32 v7, v52 offset:%d" % (3 * KSTR + 2048 + 16))
    a, b, c = S1, S1 + 1, S1 + 2
    t0, t1, t2, t3, t4 = S0 + 2, S0 + 3, S0 + 4, S0 + 5, S0
    prs = [(c, b), (a, a), (c, c), (b, a), (t3, t2), (t1, t0), (t4, t3), (t2, t1)]
    for i, (x, y) in enumerate(prs):
        A("v_cvt_pk_bf16_f32 %s, %s, %s" % (v(64 + i), v(x), v(y)))
    A("v_cvt_pk_bf16_f32 v72, %s, 0" % v(t0))
    for d in range(2):
        A("ds_write_b64 v5, %s offset:%d" % (v(64 + 2 * d, 2), d * KSTR + 3072))
        A("ds_write_b64 v5, %s offset:%d" % (v(68 + 2 * d, 2), d * KSTR + 3584))
    for d in range(2, 4):
        for (r, off) in [(64 + 2 * (d - 2), 3072), (68 + 2 * (d - 2), 3584)]:
            A("ds_write_b32 v5, %s offset:%d" % (v(r), d * KSTR + off + 4))
            A("ds_write_b32 v5, %s offset:%d" % (v(r + 1), d * KSTR + off + 8))
    A("s_mov_b64 exec, 1")
    A("ds_write_b32 v5, v72 offset:%d" % (1 * KSTR + 3584 + 8))
    A("ds_write_b32 v5, v72 offset:%d" % (3 * KSTR + 3584 + 12))
    A("s_mov_b64 exec, -1")
    A("s_waitcnt lgkmcnt(0)")


def epi_wait(A):
    A("s_lshl_b32 s4, s3, 2")
    A("s_add_u32 s4, s4, %d" % (CTRL - 16))
    A("v_mov_b32 v10, s4")
    lds_wait(A, C_EPI, "lg", 0, 11, 10, "s10", False, 2)


def conv(A):
    AF, BF, ACC = 64, 128, 192
    vK, vU = 2, 3
    A("v_mul_u32_u24 v4, 10240, v1")
    A("s_lshl_b32 s4, s68, 4")
    A("s_add_u32 s4, s4, 0x%x" % WS_XT)
    for i in range(4):
        A("buffer_load_dwordx4 %s, v4, s[48:51], s4 offen%s" % (v(16 + 4 * i, 4), LSC))
        if i < 3:
            A("s_add_u32 s4, s4, %d" % (64 * 10240))
    A("v_lshlrev_b32 v5, 4, v1")
    A("v_add_u32 v5, s69, v5")
    A("v_and_b32 v6, 15, v1")
    A("v_lshrrev_b32 v7, 4, v1")
    A("v_add_u32 v8, 1, v6")
    A("v_and_b32 v9, 3, v8")
    A("v_mul_u32_u24 %s, %d, v9" % (v(vK), KSTR))
    A("v_lshrrev_b32 v8, 2, v8")
    A("v_lshlrev_b32 v8, 3, v8")
    A("v_sub_u32 %s, %s, v8" % (v(vK), v(vK)))
    A("v_lshl_add_u32 %s, v7, 4, %s" % (v(vK), v(vK)))
    A("s_add_u32 s4, s69, 32")
    A("v_add_u32 %s, s4, %s" % (v(vK), v(vK)))
    A("v_lshlrev_b32 %s, 5, v6" % v(vU))
    A("v_lshl_add_u32 %s, v7, 4, %s" % (v(vU), v(vU)))
    A("v_add_u32 %s, s69, %s" % (v(vU), v(vU)))
    for i in range(4):
        A("s_waitcnt vmcnt(%d)" % (3 - i))
        A("ds_write_b128 v5, %s offset:%d" % (v(16 + 4 * i, 4), AUX_U + 512 + 1024 * i))
    A("s_waitcnt lgkmcnt(0)")
    A.ts(9)
    epi_wait(A)
    A.ts(7)
    lg = Cnt(A, "lgkmcnt", 15)

    def rdA(ph, p):
        r = AF + 32 * (ph & 1) + 4 * p
        off = 64 * (7 - ph) + 512 * (7 - p)
        A("ds_read_b64 %s, %s offset:%d" % (v(r, 2), v(vK), off))
        lg.issue(("a0", ph, p))
        A("ds_read_b64 %s, %s offset:%d" % (v(r + 2, 2), v(vK), off + 8))
        lg.issue(("a", ph, p))

    def rdB(ph, m):
        r = BF + 32 * (ph & 1) + 4 * m
        A("ds_read_b128 %s, %s offset:%d" % (v(r, 4), v(vU), AUX_U + 480 - 64 * ph + 512 * m))
        lg.issue(("b", ph, m))
    def reads(ph):
        L = []
        for i in range(8):
            L.append((rdA, ph, i))
            L.append((rdB, ph, i))
        return L
    pairs = sorted([(p, m) for p in range(8) for m in range(8) if p + m <= 7], key=lambda x: (max(x), x))
    pend = reads(0)
    for _ in range(8):
        f, a1, a2 = pend.pop(0)
        f(a1, a2)
    seen = set()
    for ph in range(8):
        if ph + 1 < 8:
            pend += reads(ph + 1)
        for n, (p, m) in enumerate(pairs):
            while any((f is rdA and a1 == ph and a2 == p) or (f is rdB and a1 == ph and a2 == m) for (f, a1, a2) in pend):
                f, a1, a2 = pend.pop(0)
                f(a1, a2)
            lg.wait(("a", ph, p))
            lg.wait(("b", ph, m))
            q = p + m
            cin = v(ACC + 4 * q, 4) if q in seen else "0"
            seen.add(q)
            A("v_mfma_f32_16x16x32_bf16 %s, %s, %s, %s" % (v(ACC + 4 * q, 4), v(AF + 32 * (ph & 1) + 4 * p, 4), v(BF + 32 * (ph & 1) + 4 * m, 4), cin))
            if pend and (n & 1) == 0 and len(lg.q) <= 12:
                f, a1, a2 = pend.pop(0)
                f(a1, a2)
    A.ts(10)
    A("v_lshlrev_b32 v8, 5, v6")
    A("v_lshl_add_u32 v8, v7, 3, v8")
    A("v_add_u32 v8, s69, v8")
    A("s_nop 7")
    for q in range(8):
        A("v_cvt_pk_bf16_f32 %s, %s, %s" % (v(16 + 2 * q), v(ACC + 4 * q), v(ACC + 4 * q + 1)))
        A("v_cvt_pk_bf16_f32 %s, %s, %s" % (v(17 + 2 * q), v(ACC + 4 * q + 2), v(ACC + 4 * q + 3)))
        A("ds_write_b64 v8, %s offset:%d" % (v(16 + 2 * q, 2), AUX_U + 512 + 512 * q))
    A("s_waitcnt lgkmcnt(0)")
    for i in range(4):
        A("ds_read_b128 %s, v5 offset:%d" % (v(32 + 4 * i, 4), AUX_U + 512 + 1024 * i))
    A("v_lshlrev_b32 v4, 4, v1")
    A("s_lshl_b32 s4, s68, 12")
    A("s_add_u32 s4, s4, 0x%x" % WS_AT)
    for i in range(4):
        A("s_waitcnt lgkmcnt(%d)" % (3 - i))
        A("buffer_store_dwordx4 %s, v4, s[48:51], s4 offen offset:%d%s" % (v(32 + 4 * i, 4), 1024 * i, SC1))
    A.ts(11)


PBUF = 8192


def pprep(A):
    srd(A, 52, P_X, 2048 * 640 * 2)
    A("s_sub_u32 s8, s3, 4")
    A("v_lshrrev_b32 v2, 3, v1")
    A("v_and_b32 v3, 7, v1")
    A("v_lshlrev_b32 v4, 12, v2")
    A("v_lshl_add_u32 v4, v3, 4, v4")
    A("s_mul_i32 s4, s63, 80")
    A("s_lshl_b32 s5, s8, 5")
    A("s_add_u32 s4, s4, s5")
    A("s_lshl_b32 s6, s4, 12")
    A("s_lshl_b32 s5, s62, 7")
    A("s_add_u32 s6, s6, s5")
    A("s_add_u32 s6, s6, 0x%x" % WS_AT)
    A("v_lshrrev_b32 v5, 2, v1")
    A("v_and_b32 v6, 3, v1")
    A("v_mul_u32_u24 v7, 1280, v5")
    A("v_lshl_add_u32 v7, v6, 4, v7")
    A("s_mul_i32 s7, s62, %d" % (64 * 1280))
    A("s_lshl_b32 s5, s4, 1")
    A("s_add_u32 s7, s7, s5")
    for i in range(4):
        A("buffer_load_dwordx4 %s, v7, s[52:55], s7 offen" % v(32 + 4 * i, 4))
        A("s_add_u32 s7, s7, %d" % (16 * 1280))
    return


def pprep2(A):
    AROW = 144
    XROW = 80
    XOFF = 32 * AROW
    for i in range(4):
        A("buffer_load_dwordx4 %s, v4, s[48:51], s6 offen%s" % (v(16 + 4 * i, 4), SC1))
        A("s_add_u32 s6, s6, %d" % (8 * 4096))
    A("v_mul_u32_u24 v8, %d, v2" % AROW)
    A("v_lshl_add_u32 v8, v3, 4, v8")
    A("v_add_u32 v8, s69, v8")
    A("v_mul_u32_u24 v9, %d, v5" % XROW)
    A("v_lshl_add_u32 v9, v6, 4, v9")
    A("v_add_u32 v9, s69, v9")
    A("s_waitcnt vmcnt(4)")
    for i in range(4):
        A("ds_write_b128 v9, %s offset:%d" % (v(32 + 4 * i, 4), XOFF + 16 * XROW * i))
    for i in range(4):
        A("s_waitcnt vmcnt(%d)" % (3 - i))
        A("ds_write_b128 v8, %s offset:%d" % (v(16 + 4 * i, 4), 8 * AROW * i))
    A("v_lshrrev_b32 v10, 2, v1")
    A("v_mul_u32_u24 v10, %d, v10" % AROW)
    A("v_lshl_add_u32 v10, v6, 3, v10")
    A("v_add_u32 v10, s69, v10")
    A("v_and_b32 v11, 15, v1")
    A("v_mul_u32_u24 v11, %d, v11" % XROW)
    A("v_lshrrev_b32 v12, 4, v1")
    A("v_lshl_add_u32 v11, v12, 3, v11")
    A("v_add_u32 v11, s69, v11")
    A("v_lshlrev_b32 v12, 4, v1")
    A("v_add_u32 v12, s69, v12")
    A("s_waitcnt lgkmcnt(0)")
    for c in range(2):
        for st in range(4):
            r = 16 + 16 * c + 4 * st
            A("ds_read_b64_tr_b16 %s, v10 offset:%d" % (v(r, 2), 16 * AROW * c + 32 * st))
            A("ds_read_b64 %s, v11 offset:%d" % (v(r + 2, 2), XOFF + 16 * XROW * st + 32 * c))
        A("s_waitcnt lgkmcnt(0)")
    for c in range(2):
        for st in range(4):
            r = 16 + 16 * c + 4 * st
            o = 48 + 8 * (st & 1)
            for e in range(2):
                A("v_lshlrev_b32 %s, 16, %s" % (v(o + 2 * e), v(r + e)))
                A("v_and_b32 %s, 0xffff0000, %s" % (v(o + 2 * e + 1), v(r + e)))
                A("v_lshlrev_b32 %s, 16, %s" % (v(o + 4 + 2 * e), v(r + 2 + e)))
                A("v_and_b32 %s, 0xffff0000, %s" % (v(o + 4 + 2 * e + 1), v(r + 2 + e)))
            for e in range(4):
                A("v_add_f32 %s, %s, %s" % (v(o + e), v(o + e), v(o + 4 + e)))
            A("v_cvt_pk_bf16_f32 %s, %s, %s" % (v(o + 4), v(o), v(o + 1)))
            A("v_cvt_pk_bf16_f32 %s, %s, %s" % (v(o + 5), v(o + 2), v(o + 3)))
            for e in range(2):
                A("v_lshlrev_b32 %s, 16, %s" % (v(o + 2 * e), v(o + 4 + e)))
                A("v_and_b32 %s, 0xffff0000, %s" % (v(o + 2 * e + 1), v(o + 4 + e)))
            A("ds_write_b128 v12, %s offset:%d" % (v(o, 4), PBUF + 1024 * (4 * c + st)))
    A("s_waitcnt lgkmcnt(0)")


def gemm2(A):
    ACC, WF, HR0, NHR = 216, 196, 12, 23
    HI0, HSTEP = OPT.get("hi", 6), OPT.get("hs", 2)
    vA0, vA1, vC, vF, vP, vHo, vPa = G_vA0, G_vA1, G_vC, G_vF, G_vP, G_vXo, G_vPa
    lg = Cnt(A, "lgkmcnt", 15)
    vm = Cnt(A, "vmcnt", 63)
    A("s_and_b32 s11, s3, 1")
    A("s_lshr_b32 s12, s3, 1")
    A("s_lshl_b32 s8, s62, 1")
    A("s_add_u32 s8, s8, s11")
    A("s_mul_i32 s9, s8, %d" % (96 * 1024))
    A("s_lshl_b32 s4, s12, 11")
    A("s_add_u32 s9, s9, s4")
    A("s_add_u32 s9, s9, 0x%x" % WS_HF)
    A("s_add_u32 s13, s9, %d" % (96 * 1024))
    rot2(A, 4)
    A("s_lshl_b32 s4, s4, 12")
    A("s_add_u32 s9, s9, s4")
    A("v_lshrrev_b32 v9, 4, v1")
    A("v_and_b32 v10, 15, v1")
    A("v_lshlrev_b32 %s, 4, v10" % v(vHo))
    A("v_lshl_add_u32 %s, v9, 9, %s" % (v(vHo), v(vHo)))
    A("s_mul_i32 s4, s12, 5120")
    A("v_lshlrev_b32 %s, 4, v1" % v(vA0))
    A("v_add_u32 %s, s4, %s" % (v(vA0), v(vA0)))
    A("v_add_u32 %s, %d, %s" % (v(vA1), 4 * U1, v(vA0)))

    def wread(i, ct):
        sl = (20 + i) % NU
        b, off = vA0, sl * U1 + 1024 * ct
        if sl >= 4:
            b, off = vA1, off - 4 * U1
        A("ds_read_b128 %s, %s offset:%d" % (v(WF + 4 * ct, 4), v(b), off))
        lg.issue(("w", i, ct))
    full_wait(A, 21, False)
    for ct in range(5):
        wread(0, ct)
    A("v_lshlrev_b32 v9, 2, v1")
    A("s_lshl_b32 s6, s8, 7")
    A("s_add_u32 s6, s6, 0x%x" % FL_H)
    setexec(A, 0xffff)
    poll_flags(A, [(12, 1, 9, 6, 0)], [12], 10, OPT.get("sl", 2))
    A("s_mov_b64 exec, -1")
    A.ts(12)
    nh = [0]

    def hload():
        i = nh[0]
        nh[0] += 1
        for a in range(2):
            A("buffer_load_dwordx4 %s, %s, s[48:51], s9 offen offset:%d%s" % (v(HR0 + 8 * (i % NHR) + 4 * a, 4), v(vHo), 256 * a, LSC))
            vm.issue(("h", i, a))
        if i < 23:
            A("s_add_u32 s9, s9, 4096")
            A("s_cmp_ge_u32 s9, s13")
            A("s_cselect_b32 s4, %d, 0" % (96 * 1024))
            A("s_sub_u32 s9, s9, s4")
    for i in range(HI0):
        hload()
    for i in range(24):
        for ct in range(5):
            lg.wait(("w", i, ct))
            for a in range(2):
                vm.wait(("h", i, a))
                if i == 0 and ct == 0 and a == 0:
                    A.ts(13)
                d = ACC + 20 * a + 4 * ct
                cin = "0" if i == 0 else v(d, 4)
                A("v_mfma_f32_16x16x32_bf16 %s, %s, %s, %s" % (v(d, 4), v(WF + 4 * ct, 4), v(HR0 + 8 * (i % NHR) + 4 * a, 4), cin))
            if i + 1 < 24:
                if ct == 0:
                    full_wait(A, 22 + i)
                    if i + 2 < 24:
                        A("ds_read_b32 %s, %s" % (v(vF), v(vC)))
                        lg.issue(("f", i))
                wread(i + 1, ct)
            if ct in (1, 3)[:HSTEP] and nh[0] < 24 and nh[0] < i + NHR:
                hload()
        if i < 18:
            prog(A, 21 + i)
            lg.issue(("p", i))
    A.ts(14)
    pl = A.newl("Lxw")
    A.label(pl)
    guard(A)
    A("ds_read_b128 v[12:15], %s offset:%d" % (v(vC), C_PROG))
    A("s_waitcnt lgkmcnt(0)")
    A("v_min_u32 v12, v12, v13")
    A("v_min3_u32 v12, v12, v14, v15")
    A("s_nop 0")
    A("v_readfirstlane_b32 s10, v12")
    A("s_cmp_ge_u32 s10, 38")
    A("s_cbranch_scc0 %s" % pl)
    lsw, ljoin = A.newl("Lsw"), A.newl("Ljoin")
    A("v_lshlrev_b32 v9, 4, v1")
    A("s_mul_i32 s4, s3, 5120")
    A("s_add_u32 s4, s4, %d" % XCH)
    A("v_add_u32 v10, s4, v9")
    A("s_xor_b32 s5, s3, 2")
    A("s_mul_i32 s5, s5, 5120")
    A("s_add_u32 s5, s5, %d" % XCH)
    A("v_add_u32 v11, s5, v9")
    A("s_nop 4")
    A("s_cmp_eq_u32 s12, 0")
    A("s_cbranch_scc1 %s" % lsw)
    for ct in range(5):
        A("ds_write_b128 v10, %s offset:%d" % (v(ACC + 4 * ct, 4), 1024 * ct))
    A("s_waitcnt lgkmcnt(0)")
    for r in range(20):
        A("v_mov_b32 %s, %s" % (v(ACC + r), v(ACC + 20 + r)))
    A("s_branch %s" % ljoin)
    A.label(lsw)
    for ct in range(5):
        A("ds_write_b128 v10, %s offset:%d" % (v(ACC + 20 + 4 * ct, 4), 1024 * ct))
    A.label(ljoin)
    A("s_lshl_b32 s5, s11, 1")
    A("s_add_u32 s5, s5, s12")
    A("s_lshl_b32 s6, s5, 10")
    A("s_add_u32 s6, s6, %d" % (AUX0 + PBUF))
    A("v_add_u32 v12, s6, v9")
    srd(A, 52, P_OUT, 2048 * 640 * 2)
    A("s_waitcnt lgkmcnt(0)")
    A("s_barrier")
    for ct in range(5):
        A("ds_read_b128 %s, v11 offset:%d" % (v(16 + 4 * ct, 4), 1024 * ct))
        A("ds_read_b128 %s, v12 offset:%d" % (v(40 + 4 * ct, 4), (ct >> 1) * AUXSZ + 4096 * (ct & 1)))
    OROW = 176
    A("v_and_b32 v13, 15, v1")
    A("v_mul_u32_u24 v13, %d, v13" % OROW)
    A("v_lshrrev_b32 v14, 4, v1")
    A("v_lshl_add_u32 v13, v14, 3, v13")
    A("s_mul_i32 s4, s3, 4096")
    A("v_add_u32 v13, s4, v13")
    for ct in range(5):
        A("s_waitcnt lgkmcnt(%d)" % (2 * (4 - ct) + ct))
        d = ACC + 4 * ct
        A("v_pk_add_f32 %s, %s, %s" % (v(d, 2), v(d, 2), v(16 + 4 * ct, 2)))
        A("v_pk_add_f32 %s, %s, %s" % (v(d + 2, 2), v(d + 2, 2), v(18 + 4 * ct, 2)))
        A("v_pk_add_f32 %s, %s, %s" % (v(d, 2), v(d, 2), v(40 + 4 * ct, 2)))
        A("v_pk_add_f32 %s, %s, %s" % (v(d + 2, 2), v(d + 2, 2), v(42 + 4 * ct, 2)))
        A("v_cvt_pk_bf16_f32 %s, %s, %s" % (v(64 + 2 * ct), v(d), v(d + 1)))
        A("v_cvt_pk_bf16_f32 %s, %s, %s" % (v(65 + 2 * ct), v(d + 2), v(d + 3)))
        A("ds_write_b64 v13, %s offset:%d" % (v(64 + 2 * ct, 2), 32 * ct))
    for p in range(3):
        A("v_add_u32 v22, %d, v1" % (64 * p))
        A("v_mul_u32_u24 v23, 52429, v22")
        A("v_lshrrev_b32 v23, 19, v23")
        A("v_mul_u32_u24 v24, 10, v23")
        A("v_sub_u32 v22, v22, v24")
        A("v_lshlrev_b32 v22, 4, v22")
        A("v_mul_u32_u24 v24, %d, v23" % OROW)
        A("v_add3_u32 %s, v24, v22, s4" % v(26 + p))
        A("v_mul_u32_u24 v24, 1280, v23")
        A("v_add_u32 %s, v24, v22" % v(30 + p))
    A("s_lshl_b32 s6, s62, 2")
    A("s_add_u32 s6, s6, s5")
    A("s_mul_i32 s6, s6, %d" % (16 * 1280))
    A("s_mul_i32 s7, s63, 160")
    A("s_add_u32 s6, s6, s7")
    A("s_waitcnt lgkmcnt(0)")
    for p in range(3):
        A("ds_read_b128 %s, %s" % (v(80 + 4 * p, 4), v(26 + p)))
    for p in range(3):
        A("s_waitcnt lgkmcnt(%d)" % (2 - p))
        if p == 2:
            A("s_mov_b32 exec_hi, 0")
        A("buffer_store_dwordx4 %s, %s, s[52:55], s6 offen" % (v(80 + 4 * p, 4), v(30 + p)))
    A("s_mov_b64 exec, -1")
    A.ts(15)


def aux_ids(A):
    A("s_sub_u32 s4, s3, 4")
    A("s_mul_i32 s68, s2, 3")
    A("s_add_u32 s68, s68, s4")
    A("s_mul_i32 s69, s4, %d" % AUXSZ)
    A("s_add_u32 s69, s69, %d" % AUX0)


def kdesc(name):
    return """.amdhsa_kernel %s
  .amdhsa_next_free_vgpr 256
  .amdhsa_next_free_sgpr 102
  .amdhsa_accum_offset 256
  .amdhsa_group_segment_fixed_size 0
  .amdhsa_kernarg_size 128
  .amdhsa_user_sgpr_count 2
  .amdhsa_user_sgpr_kernarg_segment_ptr 1
  .amdhsa_system_sgpr_workgroup_id_x 1
.end_amdhsa_kernel
""" % name


def build_fused():
    A = Asm()
    name = NAME + "_kernel"
    prologue(A, name, 0)
    st0 = list(A.stamps)
    laux, lload = A.newl("Laux"), A.newl("Lload")
    A("s_cmp_eq_u32 s3, 7")
    A("s_cbranch_scc1 %s" % lload)
    A("s_cmp_ge_u32 s3, 4")
    A("s_cbranch_scc1 %s" % laux)
    A("s_setprio 2")
    if not OPT.get("gemmoff"):
        gemm1(A)
        if not OPT.get("g1only"):
            gemm2(A)
    A.end()
    A.label(lload)
    A.stamps = list(st0)
    A("s_setprio 3")
    loader1_setup(A)
    loader_loop(A, 0, 1 if OPT.get("now") else 20, 0, 12, issue1)
    A.ts(2)
    if OPT.get("g1only"):
        A.end()
    nonce_lds(A, 44)
    colsum_gather(A)
    A.ts(5)
    poll_all(A, 1, 2, 44)
    A.ts(3)
    loader2_setup(A)
    loader_loop(A, 20, 44, 20, 10, issue2)
    A.ts(4)
    A("s_waitcnt lgkmcnt(0)")
    A.end()
    A.label(laux)
    A.stamps = list(st0)
    lw56, lj, lpp, ln = A.newl("Lw56"), A.newl("Lj"), A.newl("Lpp"), A.newl("Lnn")
    if OPT.get("auxoff"):
        A("v_mov_b32 v5, %d" % CTRL)
        A("v_mov_b32 v6, 1000")
        A("ds_write_b32 v5, v6 offset:%d" % C_PROG5)
        A("s_endpgm")
    aux_ids(A)
    A("s_min_u32 s68, s68, 639")
    A("s_cmp_ge_u32 s3, 5")
    A("s_cbranch_scc1 %s" % lw56)
    A("s_cmp_lg_u32 s2, 0")
    A("s_cbranch_scc1 %s" % ln)
    A("s_memrealtime s[4:5]")
    A("s_waitcnt lgkmcnt(0)")
    A("s_or_b32 s4, s4, 1")
    A("v_mov_b32 v2, 0")
    A("v_mov_b32 v3, s4")
    A("s_mov_b64 exec, 1")
    A("global_store_dword v2, v3, %s sc1" % s(P_DBG, 2))
    A("s_mov_b64 exec, -1")
    A.label(ln)
    ln8_issue(A)
    kgen_issue(A)
    A("s_waitcnt vmcnt(8)")
    A.ts(1)
    ln8(A)
    A("s_branch %s" % lj)
    A.label(lw56)
    wd_issue(A)
    kgen_issue(A)
    A("s_waitcnt vmcnt(8)")
    A.ts(1)
    wd_store(A)
    l6 = A.newl("L6")
    A("s_cmp_eq_u32 s3, 6")
    A("s_cbranch_scc1 %s" % l6)
    nonce_fetch(A, 4)
    A("s_branch %s" % lj)
    A.label(l6)
    colsum_part(A)
    nonce_lds(A, 4)
    A.label(lj)
    A("s_sub_u32 s6, s3, 4")
    A("s_lshl_b32 s6, s6, 8")
    A("s_add_u32 s6, s6, s2")
    A("s_lshl_b32 s6, s6, 2")
    A("s_add_u32 s6, s6, 0x%x" % FL_P)
    A("s_waitcnt vmcnt(0)")
    signal(A, 6, 10)
    A.ts(2)
    if OPT.get("g1only") == 1:
        A.end()
    aux_ids(A)
    lnc = A.newl("Lnc")
    A("s_cmp_ge_u32 s68, 640")
    A("s_cbranch_scc1 %s" % lnc)
    kgen_params(A)
    kgen(A)
    A.ts(8)
    if OPT.get("g1only") == 2:
        A.label(lnc)
        lnc = A.newl("Lnc")
        A.end()
    poll_all(A, 0, 1, 2)
    conv(A)
    A("s_lshl_b32 s6, s68, 2")
    A("s_add_u32 s6, s6, 0x%x" % FL_A)
    A("s_waitcnt vmcnt(0)")
    signal(A, 6, 10)
    A("s_branch %s" % lpp)
    A.label(lnc)
    A("v_mov_b32 v10, %d" % CTRL)
    lds_wait(A, C_PROG, "ge", 21, 11, 10, "s10", False, 8)
    A.label(lpp)
    A.ts(12)
    pprep(A)
    A("v_lshlrev_b32 v13, 2, v1")
    A("s_lshl_b32 s9, s4, 2")
    A("s_add_u32 s9, s9, 0x%x" % FL_A)
    A("s_cmp_eq_u32 s3, 6")
    A("s_cselect_b32 exec_lo, 0xffff, -1")
    A("s_mov_b32 exec_hi, 0")
    poll_flags(A, [(14, 1, 13, 9, 0)], [14], 15, OPT.get("asl", 6))
    A("s_mov_b64 exec, -1")
    A.ts(13)
    pprep2(A)
    A.ts(14)
    A.end()
    hdr = "; @launch grid=(256,1,1) block=(512,1,1) lds=%d\n" % LDS_TOTAL
    return hdr, A, [name]


def main():
    hdr, A, names = build_fused()
    out = "; generated by gen.py (hand-written generator)\n" + hdr
    out += '.amdgcn_target "amdgcn-amd-amdhsa--gfx950"\n.text\n'
    out += "\n".join(A.L) + "\n"
    out += '.section .rodata,"a"\n'
    for n in names:
        out += ".p2align 6\n" + kdesc(n)
    open(sys.argv[1], "w").write(out)


main()
```

```python
import sys, math, struct

NAME = "parallel_sum__ssm_conv_s4__swiglu_ffn__prompt"
OPT = dict(ts=False)
for a in sys.argv[2:]:
    k, _, v = a.partition("=")
    OPT[k] = int(v) if v else True

WS_ST = 0x000000
WS_CS = 0x010000
WS_XT = 0x280000
WS_HF = 0x500000
WS_AT = 0xB00000
WS_FL = 0xD80000
WS_TS = 0xE00000
WS_WD = 0x1000000
WS_SIZE = 0x1200000
FL_X = WS_FL
FL_Y = WS_FL + 0x8000
FL_H = WS_FL + 0x10000
FL_A = WS_FL + 0x40000

UPOFF = 3088
SLOT1 = 6176
U1 = 2 * SLOT1
U2 = 10240
CTRL = 0
C_FULL, C_NONCE, C_PROG, C_EPI, C_CSOK, C_CNT, C_GO = 0, 4, 16, 32, 60, 80, 84
CSUM = CTRL + 128
FLG = CSUM + 768 + 256
MAIN = FLG + 256
KSTR = 4160
AUX_U = 4 * KSTR
AUXSZ = AUX_U + 4608
LDS_TOTAL = 163840
AUX0 = LDS_TOTAL - 3 * AUXSZ
ER = 112
STGSZ = 64 * ER
LNROW = 1312
NW, NXC = 6, 4
XRING = MAIN + 3 * U1
STG0 = AUX0 + 5184
STGP = STGSZ + U1
WADDR = [MAIN, MAIN + U1, MAIN + 2 * U1] + [STG0 + j * STGP + STGSZ for j in range(3)]
assert XRING + NXC * 16384 <= STG0 and WADDR[5] + U1 == LDS_TOTAL
for j in range(3):
    assert AUX0 + j * AUXSZ <= STG0 + j * STGP and STG0 + j * STGP + STGSZ <= AUX0 + (j + 1) * AUXSZ
CONV_PROG = 17


def WSLOT(u):
    return WADDR[(u + 1) % NW]


def XSLOT(c):
    return XRING + ((9 - c) % NXC) * 16384


LNST = XSLOT(3)
NS2 = 9
NL2 = 4
NR2 = OPT.get("nr2", 4)


def _g2slots():
    areas = [(WSLOT(u), WSLOT(u) + U1, u + 1) for u in range(20 - NW, 20)]
    areas += [(XSLOT(c), XSLOT(c) + 16384, 2 * c + 2) for c in range(10 - NXC, 10)]
    out = []
    for i in range(NS2):
        lo = AUX0 - (i + 1) * U2
        assert lo >= MAIN
        out.append((max(n for (a, b, n) in areas if a < lo + U2 and lo < b), lo))
    return sorted(out)


G2SLOT = _g2slots()

LOG2E = 1.4426950408889634
BUD, NON = "s0", "s1"

def fbits(x):
    return "0x%08x" % struct.unpack("<I", struct.pack("<f", x))[0]


def v(i, n=1):
    return "v%d" % i if n == 1 else "v[%d:%d]" % (i, i + n - 1)


def s(i, n=1):
    return "s%d" % i if n == 1 else "s[%d:%d]" % (i, i + n - 1)


class Cnt:
    def __init__(self, A, name, mx):
        self.A, self.name, self.mx, self.q = A, name, mx, []

    def issue(self, tag):
        self.q.append(tag)

    def wait(self, tag):
        if tag not in self.q:
            return
        i = len(self.q) - 1 - self.q[::-1].index(tag)
        n = len(self.q) - 1 - i
        self.A("s_waitcnt %s(%d)" % (self.name, min(n, self.mx)))
        self.q = self.q[i + 1:]

    def drain(self):
        self.A("s_waitcnt %s(0)" % self.name)
        self.q = []


class Asm:
    def __init__(self):
        self.L = []
        self.nl = 0
        self.stamps = []
        self.cold = []

    def flush_cold(self):
        for f in self.cold:
            f()
        self.cold = []

    def __call__(self, t):
        self.L.append("  " + t)

    def label(self, l):
        self.L.append(l + ":")

    def newl(self, p="L"):
        self.nl += 1
        return "%s_%d" % (p, self.nl)

    def c(self, t):
        self.L.append("  ; " + t)

    def ts(self, slot):
        if OPT["ts"]:
            self("%s %s" % ("s_memtime" if OPT.get("cyc") else "s_memrealtime", s(70 + 2 * slot, 2)))
            self.stamps.append(slot)

    def end(self):
        if OPT.get("dbgts") is not None and self.stamps:
            sk = self.newl("Ldt")
            self("s_waitcnt lgkmcnt(0)")
            self("s_cmp_lg_u32 s2, %d" % OPT.get("dbgwg", 17))
            self("s_cbranch_scc1 %s" % sk)
            self("s_cmp_lg_u32 s3, %d" % OPT["dbgts"])
            self("s_cbranch_scc1 %s" % sk)
            self("s_mov_b64 exec, 1")
            self("v_mov_b32 v2, 0")
            for sl in self.stamps:
                if sl == 0:
                    continue
                self("s_sub_u32 s4, %s, s70" % s(70 + 2 * sl))
                self("v_mov_b32 v0, s4")
                self("global_store_dword v2, v0, %s offset:%d" % (s(44, 2), 4 * sl))
            self.label(sk)
        elif OPT["ts"] and self.stamps:
            self("s_waitcnt lgkmcnt(0)")
            self("s_mov_b64 exec, 1")
            self("s_lshl_b32 s4, s2, 3")
            self("s_add_u32 s4, s4, s3")
            self("s_lshl_b32 s4, s4, 7")
            self("s_add_u32 s4, s4, 0x%x" % WS_TS)
            self("v_mov_b32 v2, 0")
            for sl in self.stamps:
                self("v_mov_b32 v0, %s" % s(70 + 2 * sl))
                self("v_mov_b32 v1, %s" % s(71 + 2 * sl))
                self("buffer_store_dwordx2 v[0:1], v2, s[48:51], s4 offen offset:%d" % (8 * sl))
                self("s_nop 1")
        self("s_endpgm")
        self.flush_cold()


P_X, P_ARE, P_AIM, P_BRE, P_BIM, P_CRE, P_CIM, P_LDT, P_DSK, P_BX, P_WG, P_WU, P_WD, P_OUT, P_DBG, P_WS = [16 + 2 * i for i in range(16)]
SC1 = " sc1"
LSC = " sc1"


def srd(A, d, ptr, size):
    A("s_mov_b32 %s, %s" % (s(d), s(ptr)))
    A("s_mov_b32 %s, %s" % (s(d + 1), s(ptr + 1)))
    A("s_mov_b32 %s, 0x%x" % (s(d + 2), size))
    A("s_mov_b32 %s, 0x20000" % s(d + 3))


def prologue(A, name, tsslot):
    A.L.append(".globl %s" % name)
    A.L.append(".p2align 8")
    A.L.append(".type %s,@function" % name)
    A.label(name)
    A.stamps = []
    ok = A.newl("Lgo")
    A("s_cmp_lt_u32 s2, 256")
    A("s_cbranch_scc1 %s" % ok)
    A.exit = A.newl("Lexit")
    A.label(A.exit)
    A("s_endpgm")
    A.label(ok)
    A("s_load_dwordx16 s[16:31], s[0:1], 0")
    A("s_load_dwordx16 s[32:47], s[0:1], 64")
    if OPT["ts"]:
        for i in range(16):
            A("s_mov_b64 %s, 0" % s(70 + 2 * i, 2))
    A.ts(tsslot)
    A("v_lshrrev_b32 v2, 6, v0")
    A("v_and_b32 v1, 63, v0")
    A("v_readfirstlane_b32 s3, v2")
    A("v_and_b32 v2, 31, v0")
    A("v_lshlrev_b32 v2, 2, v2")
    A("v_add_u32 v2, %d, v2" % CTRL)
    A("v_mov_b32 v3, 0")
    A("ds_write_b32 v2, v3")
    A("v_lshlrev_b32 v2, 2, v1")
    A("v_mov_b32 v3, 1")
    A("ds_write_b32 v2, v3 offset:%d" % FLG)
    map_g1(A)
    map_g2(A)


def ready(A, early=None):
    A("s_waitcnt lgkmcnt(0)")
    if early:
        early(A)
    A("s_barrier")
    A("s_mov_b32 %s, 0x40000" % BUD)
    srd(A, 48, P_WS, WS_SIZE)


def tlb_warm(A, vt):
    ptrs = [P_X, P_WG, P_WU, P_ARE, P_AIM, P_BRE, P_BIM, P_CRE, P_CIM, P_LDT, P_DSK, P_WD, P_DBG, P_WS]
    A("v_mov_b32 %s, %s" % (v(vt), s(P_X)))
    A("v_mov_b32 %s, %s" % (v(vt + 1), s(P_X + 1)))
    for i, p in enumerate(ptrs):
        if i:
            A("v_writelane_b32 %s, %s, %d" % (v(vt), s(p), i))
            A("v_writelane_b32 %s, %s, %d" % (v(vt + 1), s(p + 1), i))
    A("s_mov_b64 exec, 0x%x" % ((1 << len(ptrs)) - 1))
    A("global_load_dword %s, %s, off" % (v(vt + 2), v(vt, 2)))
    A("s_mov_b64 exec, -1")


def guard(A):
    A("s_sub_u32 %s, %s, 1" % (BUD, BUD))
    A("s_cbranch_scc1 %s" % A.exit)


def map_g1(A):
    A("s_and_b32 s4, s2, 7")
    A("s_lshr_b32 s5, s2, 3")
    A("s_and_b32 s60, s4, 1")
    A("s_lshl_b32 s60, s60, 3")
    A("s_and_b32 s6, s5, 7")
    A("s_add_u32 s60, s60, s6")
    A("s_lshr_b32 s61, s4, 1")
    A("s_lshl_b32 s61, s61, 2")
    A("s_lshr_b32 s6, s5, 3")
    A("s_add_u32 s61, s61, s6")


def map_g2(A):
    A("s_and_b32 s4, s2, 7")
    A("s_lshr_b32 s5, s2, 3")
    if OPT.get("m2", 1) == 0:
        A("s_lshl_b32 s62, s4, 2")
        A("s_and_b32 s6, s5, 3")
        A("s_add_u32 s62, s62, s6")
        A("s_lshr_b32 s63, s5, 2")
    else:
        A("s_lshr_b32 s62, s4, 1")
        A("s_lshl_b32 s62, s62, 3")
        A("s_and_b32 s6, s5, 7")
        A("s_add_u32 s62, s62, s6")
        A("s_and_b32 s63, s4, 1")
        A("s_lshl_b32 s63, s63, 2")
        A("s_lshr_b32 s6, s5, 3")
        A("s_add_u32 s63, s63, s6")


def lds_wait(A, off, cmp, val, vF, vC, sF, have=False, sleep=1):
    ok, poll = A.newl("Lok"), A.newl("Lpoll")

    def loop():
        A.label(poll)
        guard(A)
        if OPT.get("cnt") and have:
            A("s_add_u32 s92, s92, 1")
        A("ds_read_b32 %s, %s offset:%d" % (v(vF), v(vC), off))
        A("s_waitcnt lgkmcnt(0)")
        A("v_readfirstlane_b32 %s, %s" % (sF, v(vF)))
        A("s_cmp_%s_u32 %s, %s" % (cmp, sF, val))
        A("s_cbranch_scc1 %s" % ok)
        A("s_sleep %d" % sleep)
        A("s_branch %s" % poll)
    if have:
        A("v_readfirstlane_b32 %s, %s" % (sF, v(vF)))
        A("s_cmp_%s_u32 %s, %s" % (cmp, sF, val))
        A("s_cbranch_scc0 %s" % poll)
        A.cold.append(loop)
    else:
        loop()
    A.label(ok)


def nonce_lds(A, vt):
    A("v_mov_b32 %s, %d" % (v(vt + 1), CTRL))
    lds_wait(A, C_NONCE, "lg", 0, vt, vt + 1, NON)


def nonce_fetch(A, vt, issued=False):
    poll, chk = A.newl("Lnp"), A.newl("Lnc")
    if issued:
        A("s_branch %s" % chk)
    A.label(poll)
    guard(A)
    A("v_mov_b32 %s, 0" % v(vt))
    A("global_load_dword %s, %s, %s sc1" % (v(vt), v(vt), s(P_DBG, 2)))
    A.label(chk)
    A("s_waitcnt vmcnt(0)")
    A("v_readfirstlane_b32 %s, %s" % (NON, v(vt)))
    A("s_cmp_lg_u32 %s, 0" % NON)
    A("s_cbranch_scc0 %s" % poll)
    A("v_mov_b32 %s, %d" % (v(vt + 1), CTRL))
    A("ds_write_b32 %s, %s offset:%d" % (v(vt + 1), v(vt), C_NONCE))


def signal(A, soff, vt):
    A("v_mov_b32 %s, 0" % v(vt))
    A("v_mov_b32 %s, %s" % (v(vt + 1), NON))
    A("s_mov_b64 exec, 1")
    A("buffer_store_dword %s, %s, s[48:51], %s offen sc1" % (v(vt + 1), v(vt), s(soff)))
    A("s_mov_b64 exec, -1")


def poll_flags(A, loads, tags, vt, sleep=2):
    top, done = A.newl("Lgp"), A.newl("Lgd")
    A.label(top)
    guard(A)
    for (r, n, vo, so, imm) in loads:
        op = {1: "dword", 2: "dwordx2", 4: "dwordx4"}[n]
        A("buffer_load_%s %s, %s, s[48:51], %s offen offset:%d sc1" % (op, v(r, n), v(vo), s(so), imm))
    A("s_waitcnt vmcnt(0)")
    tag_check(A, tags, vt, done)
    A("s_sleep %d" % sleep)
    A("s_branch %s" % top)
    A.label(done)


def tag_check(A, tags, vt, done):
    A("v_xor_b32 %s, %s, %s" % (v(vt), NON, v(tags[0])))
    for x in tags[1:]:
        A("v_xor_b32 %s, %s, %s" % (v(vt + 1), NON, v(x)))
        A("v_or_b32 %s, %s, %s" % (v(vt), v(vt), v(vt + 1)))
    A("v_cmp_ne_u32 s[4:5], 0, %s" % v(vt))
    A("s_cmp_eq_u64 s[4:5], 0")
    A("s_cbranch_scc1 %s" % done)


def setexec(A, m):
    A("s_mov_b32 exec_lo, 0x%x" % (m & 0xffffffff))
    A("s_mov_b32 exec_hi, 0x%x" % (m >> 32))


def poll_all(A):
    A("v_lshlrev_b32 v2, 7, v1")
    A("s_mov_b32 s6, 0x%x" % FL_Y)
    A("s_mov_b64 exec, 0xffff")
    poll_flags(A, [(6, 1, 2, 6, 0)], [6], 3, 4)
    A("s_mov_b64 exec, -1")
    A("v_mov_b32 v2, %d" % CTRL)
    A("v_mov_b32 v3, 1")
    A("ds_write_b32 v2, v3 offset:%d" % C_GO)


def aggregate(A):
    sk = A.newl("Lag")
    A("s_cmp_lt_u32 s2, 240")
    A("s_cbranch_scc1 %s" % sk)
    A("s_cmp_lg_u32 s3, 4")
    A("s_cbranch_scc1 %s" % sk)
    A("v_lshlrev_b32 v2, 7, v1")
    A("s_sub_u32 s7, s2, 240")
    A("s_lshl_b32 s6, s7, 11")
    A("s_add_u32 s6, s6, 0x%x" % FL_X)
    A("s_mov_b64 exec, 0xffff")
    poll_flags(A, [(6, 1, 2, 6, 0)], [6], 3, 4)
    A("s_mov_b64 exec, -1")
    A("s_lshl_b32 s6, s7, 7")
    A("s_add_u32 s6, s6, 0x%x" % FL_Y)
    signal(A, 6, 10)
    A.label(sk)


LN_X, LN_F, LN_T = 104, 144, 224


def ln_issue(A):
    T = LN_T
    A("v_lshrrev_b32 %s, 3, v1" % v(T))
    A("v_and_b32 %s, 7, v1" % v(T + 1))
    A("v_mul_u32_u24 %s, 1280, %s" % (v(T + 2), v(T)))
    A("v_lshl_add_u32 %s, %s, 4, %s" % (v(T + 2), v(T + 1), v(T + 2)))
    A("s_lshl_b32 s4, s60, 4")
    A("s_add_u32 s4, s4, s61")
    A("s_mul_i32 s4, s4, %d" % (8 * 1280))
    for i in range(10):
        A("buffer_load_dwordx4 %s, %s, s[52:55], s4 offen offset:%d" % (v(LN_X + 4 * i, 4), v(T + 2), 128 * i))


def red8(A, r):
    for m in ["quad_perm:[1,0,3,2]", "quad_perm:[2,3,0,1]", "row_half_mirror"]:
        A("s_nop 1")
        A("v_add_f32_dpp %s, %s, %s %s row_mask:0xf bank_mask:0xf" % (v(r), v(r), v(r), m))


def ln8(A):
    X, F, T = LN_X, LN_F, LN_T
    S0, S1, M, R = T + 4, T + 6, T + 8, T + 10
    for i in range(40):
        A("v_lshlrev_b32 %s, 16, %s" % (v(F + 2 * i), v(X + i)))
        A("v_and_b32 %s, 0xffff0000, %s" % (v(F + 2 * i + 1), v(X + i)))
    A("v_pk_add_f32 %s, %s, %s" % (v(S0, 2), v(F, 2), v(F + 2, 2)))
    A("v_pk_add_f32 %s, %s, %s" % (v(S1, 2), v(F + 4, 2), v(F + 6, 2)))
    for i in range(4, 40):
        d = S0 + 2 * (i & 1)
        A("v_pk_add_f32 %s, %s, %s" % (v(d, 2), v(d, 2), v(F + 2 * i, 2)))
    A("v_pk_add_f32 %s, %s, %s" % (v(S0, 2), v(S0, 2), v(S1, 2)))
    A("v_add_f32 %s, %s, %s" % (v(S0), v(S0), v(S0 + 1)))
    red8(A, S0)
    A("v_mul_f32 %s, %s, %s" % (v(M + 1), fbits(1.0 / 640), v(S0)))
    A("v_cvt_pk_bf16_f32 %s, %s, %s" % (v(M), v(M + 1), v(M + 1)))
    A("v_and_b32 %s, 0xffff0000, %s" % (v(M), v(M)))
    for i in range(40):
        A("v_pk_add_f32 %s, %s, %s op_sel_hi:[1,0] neg_lo:[0,1] neg_hi:[0,1]" % (v(F + 2 * i, 2), v(F + 2 * i, 2), v(M, 2)))
    for i in range(40):
        d = S0 + 2 * (i & 1)
        if i < 2:
            A("v_pk_mul_f32 %s, %s, %s" % (v(d, 2), v(F + 2 * i, 2), v(F + 2 * i, 2)))
        else:
            A("v_pk_fma_f32 %s, %s, %s, %s" % (v(d, 2), v(F + 2 * i, 2), v(F + 2 * i, 2), v(d, 2)))
        A("v_cvt_pk_bf16_f32 %s, %s, %s" % (v(X + i), v(F + 2 * i), v(F + 2 * i + 1)))
    A("v_pk_add_f32 %s, %s, %s" % (v(S0, 2), v(S0, 2), v(S1, 2)))
    A("v_add_f32 %s, %s, %s" % (v(S0), v(S0), v(S0 + 1)))
    red8(A, S0)
    A("v_sub_f32 %s, %s, %s" % (v(M + 1), v(M + 1), v(M)))
    A("v_mul_f32 %s, %s, %s" % (v(R), fbits(1.0 / 640), v(S0)))
    A("v_fma_f32 %s, -%s, %s, %s" % (v(R), v(M + 1), v(M + 1), v(R)))
    A("v_max_f32 %s, 0, %s" % (v(R), v(R)))
    A("v_cvt_pk_bf16_f32 %s, %s, %s" % (v(R), v(R), v(R)))
    A("v_and_b32 %s, 0xffff0000, %s" % (v(R), v(R)))
    A("v_add_f32 %s, %s, %s" % (v(R), fbits(1e-5), v(R)))
    A("v_cvt_pk_bf16_f32 %s, %s, %s" % (v(R), v(R), v(R)))
    A("v_and_b32 %s, 0xffff0000, %s" % (v(R), v(R)))
    A("v_sqrt_f32 %s, %s" % (v(R), v(R)))
    A("s_nop 0")
    A("v_cvt_pk_bf16_f32 %s, %s, %s" % (v(S0), v(M), v(R)))
    A("v_and_b32 %s, 0xffff0000, %s" % (v(R), v(S0)))
    A("v_rcp_f32 %s, %s" % (v(R), v(R)))
    for i in range(40):
        A("v_lshlrev_b32 %s, 16, %s" % (v(F + 2 * i), v(X + i)))
        A("v_and_b32 %s, 0xffff0000, %s" % (v(F + 2 * i + 1), v(X + i)))
    A("v_mul_u32_u24 %s, %d, %s" % (v(T + 2), LNROW, v(T)))
    A("v_lshl_add_u32 %s, %s, 4, %s" % (v(T + 2), v(T + 1), v(T + 2)))
    A("v_add_u32 %s, %d, %s" % (v(T + 2), LNST, v(T + 2)))
    for i in range(11):
        if i < 10:
            for e in range(4):
                A("v_pk_mul_f32 %s, %s, %s op_sel_hi:[1,0]" % (v(F + 8 * i + 2 * e, 2), v(F + 8 * i + 2 * e, 2), v(R, 2)))
        if i:
            A("ds_write_b128 %s, %s offset:%d" % (v(T + 2), v(X + 4 * (i - 1), 4), 128 * (i - 1)))
        if i < 10:
            for e in range(4):
                A("v_cvt_pk_bf16_f32 %s, %s, %s" % (v(X + 4 * i + e), v(F + 8 * i + 2 * e), v(F + 8 * i + 2 * e + 1)))


def ln_store(A):
    F, T = LN_F, LN_T
    S0 = T + 4
    a0, a1, a2 = T + 12, T + 13, T + 14
    A("v_bfe_u32 %s, v1, 2, 2" % v(a0))
    A("v_mul_u32_u24 %s, %d, %s" % (v(a0), LNROW, v(a0)))
    A("v_lshrrev_b32 %s, 4, v1" % v(a1))
    A("v_lshl_add_u32 %s, %s, 5, %s" % (v(a0), v(a1), v(a0)))
    A("v_and_b32 %s, 3, v1" % v(a1))
    A("v_lshl_add_u32 %s, %s, 3, %s" % (v(a0), v(a1), v(a0)))
    A("v_add_u32 %s, %d, %s" % (v(a0), LNST, v(a0)))
    for i in range(10):
        A("ds_read_b64_tr_b16 %s, %s offset:%d" % (v(F + 4 * i, 2), v(a0), 128 * i))
        A("ds_read_b64_tr_b16 %s, %s offset:%d" % (v(F + 4 * i + 2, 2), v(a0), 128 * i + 4 * LNROW))
    prog(A, 0)
    A("v_mov_b32 %s, %s" % (v(S0 + 1), NON))
    A("s_lshl_b32 s9, s60, 4")
    A("s_add_u32 s9, s9, s61")
    A("s_lshl_b32 s6, s9, 6")
    A("s_add_u32 s6, s6, 0x%x" % WS_ST)
    setexec(A, 0x0101010101010101)
    A("buffer_store_dwordx2 %s, v1, s[48:51], s6 offen sc1" % v(S0, 2))
    A("s_mov_b64 exec, -1")
    A("v_lshlrev_b32 %s, 4, v1" % v(a0))
    A("s_mul_i32 s7, s9, 10240")
    A("s_add_u32 s7, s7, 0x%x" % WS_XT)
    A("s_waitcnt lgkmcnt(0)")
    for i in range(10):
        A("buffer_store_dwordx4 %s, %s, s[48:51], s7 offen offset:%d sc1" % (v(F + 4 * i, 4), v(a0), 1024 * (i % 4)))
        if i % 4 == 3:
            A("s_add_u32 s7, s7, 4096")


def flag_p(A):
    sk = A.newl("Lf")
    A("v_mov_b32 v10, %d" % CTRL)
    A("v_mov_b32 v11, 1")
    A("s_waitcnt vmcnt(0)")
    A("s_mov_b64 exec, 1")
    A("ds_add_rtn_u32 v11, v10, v11 offset:%d" % C_CNT)
    A("s_mov_b64 exec, -1")
    A("s_waitcnt lgkmcnt(0)")
    A("v_readfirstlane_b32 s4, v11")
    A("s_cmp_lg_u32 s4, 3")
    A("s_cbranch_scc1 %s" % sk)
    A("s_lshl_b32 s6, s2, 7")
    A("s_add_u32 s6, s6, 0x%x" % FL_X)
    signal(A, 6, 10)
    A.label(sk)


LV_C, LV_T, LV_Q = 36, 37, 40


def _schedule():
    B = []
    for u in range(20):
        B.append((u, 1, ("w", u, 12, u - NW + 2 if u >= NW else (1 if u == 5 else 0))))
    for h in range(20):
        c = h >> 1
        need = 2 * (c - NXC) + 3 if c >= NXC else (1 if c == 3 else 0)
        lead = OPT.get("xlead", 1) if c else 0
        B.append((2 * c - lead * (1 - (h & 1)), 0, ("x", h, 8, need)))
    B.sort(key=lambda e: (e[0], e[1]))
    B = [e[2] for e in B]
    for i in range(2 * NL2):
        B.append(("d", i, 10, G2SLOT[i][0] + 1))
    return B


GAPS = {"cur": 4}


class Dma:
    def __init__(self, A, n):
        self.A, self.n, self.k = A, n, 0

    def __call__(self, t):
        self.A(t)
        self.k += 1
        GAP = GAPS["cur"]
        if GAP and (self.k % GAP == 0 or self.k == self.n):
            self.A("buffer_load_dword v35, v27, s[48:51], 0 offen")


SCHED = _schedule()
CUM = [0]
for e in SCHED:
    CUM.append(CUM[-1] + e[2])
NB1 = 40


def _flagafter():
    out = {}
    for u in range(20 + 2 * NL2):
        want = [("d", u - 20)] if u >= 20 else [("w", u), ("x", 2 * (u >> 1)), ("x", 2 * (u >> 1) + 1)]
        i = max(i for i, e in enumerate(SCHED) if (e[0], e[1]) in want)
        out.setdefault(i, []).append(u)
    return out


FLAGAFTER = _flagafter()


def loader_run(A, first, last):
    def rdprog():
        A("ds_read_b128 %s, %s offset:%d" % (v(LV_Q, 4), v(LV_C), C_PROG))

    def getprog():
        A("s_waitcnt lgkmcnt(0)")
        A("v_min_u32 v39, %s, %s" % (v(LV_Q), v(LV_Q + 1)))
        A("v_min3_u32 v39, v39, %s, %s" % (v(LV_Q + 2), v(LV_Q + 3)))
        A("s_nop 0")
        A("v_readfirstlane_b32 s67, v39")
    wait = A.newl("Llw")

    def waitfn():
        A.label(wait)
        guard(A)
        if OPT.get("cnt"):
            A("s_add_u32 s92, s92, 1")
        rdprog()
        getprog()
        A("s_cmp_ge_u32 s67, s9")
        A("s_cbranch_scc0 %s" % wait)
        A("s_setpc_b64 s[34:35]")
    A.cold.append(waitfn)
    known = 0
    rdprog()
    for i in range(first, last):
        kind, idx, P, need = SCHED[i]
        if OPT.get("free") and i < NB1:
            need = 0
        if need > known:
            go = A.newl("Llg")
            getprog()
            A("s_cmp_ge_u32 s67, %d" % need)
            A("s_cbranch_scc1 %s" % go)
            A("s_movk_i32 s9, %d" % need)
            A("s_call_b64 s[34:35], %s" % wait)
            A.label(go)
            known = need
        if OPT.get("cnt") and kind == "w" and idx in (1, 5, 8, 12, 16):
            A.ts({1: 6, 5: 7, 8: 8, 12: 9, 16: 10}[idx])
        nxt = i + 1 < last and SCHED[i + 1][3] > known
        GAPS["cur"] = OPT.get("gap0", 4) if i < OPT.get("gapi", 9) else (OPT.get("gap", 1) if i < NB1 else OPT.get("gap2", 2))
        if i == NB1:
            loader2_setup(A)
            lds_wait(A, C_GO, "lg", 0, 38, LV_C, "s4")
            A.ts(3)
        {"w": issue1, "x": issue_x, "d": issue2}[kind](A, idx, rdprog if nxt else None)
        if i in FLAGAFTER:
            A("s_mov_b32 m0, %d" % (FLG + 4 * max(FLAGAFTER[i]) - 252))
            A("s_nop 0")
            A("buffer_load_dword v27, s[48:51], 0 offen lds")


def rot1(A, sd):
    if OPT.get("rot") == 0:
        A("s_mov_b32 %s, 0" % s(sd))
        return
    if OPT.get("rot") == 2:
        A("s_xor_b32 %s, s60, s61" % s(sd))
        A("s_and_b32 %s, %s, 1" % (s(sd), s(sd)))
        A("s_mul_i32 %s, %s, 5" % (s(sd), s(sd)))
        return
    A("s_and_b32 %s, s61, 3" % s(sd))
    A("s_mul_i32 %s, %s, %d" % (s(sd), s(sd), OPT.get("rnb", 0)))
    A("s_add_u32 %s, %s, s60" % (s(sd), s(sd)))
    for _ in range(2):
        A("s_cmp_ge_u32 %s, 10" % s(sd))
        A("s_cselect_b32 s5, 10, 0")
        A("s_sub_u32 %s, %s, s5" % (s(sd), s(sd)))


def loader1_setup(A):
    for p in range(3):
        A("v_add_u32 v40, %d, v1" % (64 * p))
        A("v_mul_u32_u24 v41, 43691, v40")
        A("v_lshrrev_b32 v41, 19, v41")
        A("v_mul_u32_u24 v42, 12, v41")
        A("v_sub_u32 v40, v40, v42")
        A("v_mul_u32_u24 v41, 3072, v41")
        A("v_lshl_add_u32 %s, v40, 4, v41" % v(32 + p))
        if p:
            A("v_subrev_u32 %s, %d, %s" % (v(32 + p), 1024 * p, v(32 + p)))
    A("v_lshrrev_b32 v40, 3, v1")
    A("v_mul_u32_u24 v40, 1280, v40")
    A("v_and_b32 v41, 7, v1")
    A("v_lshrrev_b32 v42, 4, v1")
    A("v_xor_b32 v41, v41, v42")
    A("v_lshl_add_u32 v28, v41, 4, v40")
    A("v_xor_b32 v29, 64, v28")
    A("v_add_u32 v29, %d, v29" % (8 * 1280 - 1024))
    A("v_add_u32 v30, %d, v28" % (16 * 1280 - 2048))
    A("v_add_u32 v31, %d, v29" % (16 * 1280 - 2048))
    rot1(A, 4)
    A("s_mul_i32 s66, s61, 192")
    A("s_add_u32 s69, s66, %d" % (640 * 3072))
    A("s_mul_i32 s5, s4, %d" % (64 * 3072))
    A("s_add_u32 s64, s66, s5")
    A("s_mul_i32 s10, s60, %d" % (128 * 1280))
    A("s_add_u32 s11, s10, 1280")
    A("s_lshl_b32 s4, s4, 7")
    A("s_add_u32 s65, s10, s4")
    A("v_mov_b32 %s, %d" % (v(LV_C), CTRL))
    A("v_mov_b32 v27, 0x7ffffff0")
    ready(A)
    srd(A, 12, P_X, 2048 * 640 * 2)
    srd(A, 52, P_WG, 640 * 1536 * 2)
    srd(A, 56, P_WU, 640 * 1536 * 2)


def issue_x(A, h, mid):
    base = XSLOT(h >> 1) + (h & 1) * 8192
    D = Dma(A, 8)
    for g in range(2):
        A("s_mov_b32 m0, %d" % (base + 4096 * g))
        A("s_add_u32 s7, s65, %d" % ((64 * (h & 1) + 32 * g) * 1280))
        if g == 1 and mid:
            mid()
        for p in range(4):
            D("buffer_load_dwordx4 %s, s[12:15], s7 offen offset:%d lds" % (v(28 + p), 1024 * p))
    if h & 1:
        A("s_add_u32 s65, s65, 128")
        A("s_cmp_ge_u32 s65, s11")
        A("s_cselect_b32 s65, s10, s65")


def issue1(A, u, mid):
    base = WSLOT(u)
    D = Dma(A, 12)
    for k in range(2):
        so = "s64" if k == 0 else "s6"
        A("s_mov_b32 m0, %d" % (base + k * SLOT1))
        if k == 0:
            A("s_add_u32 s6, s64, %d" % (16 * 3072))
        else:
            A("s_add_u32 s64, s64, %d" % (32 * 3072))
        if k == 1 and mid:
            mid()
        for p in range(3):
            D("buffer_load_dwordx4 %s, s[52:55], %s offen offset:%d lds" % (v(32 + p), so, 1024 * p))
        A("s_mov_b32 m0, %d" % (base + k * SLOT1 + UPOFF))
        if k == 1 and (u & 1):
            A("s_cmp_ge_u32 s64, s69")
            A("s_cselect_b32 s64, s66, s64")
        else:
            A("s_nop 0")
        for p in range(3):
            D("buffer_load_dwordx4 %s, s[56:59], %s offen offset:%d lds" % (v(32 + p), so, 1024 * p))


def rot2(A, sd):
    if OPT.get("m2", 1):
        A("s_and_b32 %s, s62, 7" % s(sd))
        A("s_mul_i32 %s, %s, 3" % (s(sd), s(sd)))
        A("s_lshr_b32 %s, %s, 1" % (s(sd), s(sd)))
    else:
        A("s_and_b32 %s, s62, 3" % s(sd))
        A("s_mul_i32 %s, %s, 3" % (s(sd), s(sd)))


def loader2_setup(A):
    rot2(A, 4)
    A("s_add_u32 s4, s4, %d" % NR2)
    A("s_cmp_ge_u32 s4, 12")
    A("s_cselect_b32 s5, 12, 0")
    A("s_sub_u32 s4, s4, s5")
    A("s_mul_i32 s66, s63, %d" % (48 * 5120))
    A("s_add_u32 s66, s66, 0x%x" % WS_WD)
    A("s_add_u32 s69, s66, %d" % (12 * 5120))
    A("s_mul_i32 s4, s4, 5120")
    A("s_add_u32 s64, s66, s4")
    A("v_lshlrev_b32 v32, 4, v1")
    A("v_add_u32 v33, 4096, v32")


def issue2(A, u, mid):
    base = G2SLOT[u][1]
    D = Dma(A, 10)
    for w in range(2):
        A("s_mov_b32 m0, %d" % (base + 5120 * w))
        A("s_add_u32 s6, s64, %d" % ((2 * (u & 1) + w) * 12 * 5120))
        if w == 1 and mid:
            mid()
        for p in range(4):
            D("buffer_load_dwordx4 v32, s[48:51], s6 offen offset:%d%s lds" % (1024 * p, LSC))
        A("s_mov_b32 m0, %d" % (base + 5120 * w + 4096))
        A("s_nop 0")
        D("buffer_load_dwordx4 v33, s[48:51], s6 offen%s lds" % LSC)
    if u & 1:
        A("s_add_u32 s64, s64, 5120")
        A("s_cmp_ge_u32 s64, s69")
        A("s_cselect_b32 s64, s66, s64")


def colsum_gather(A):
    R = 216
    A("v_lshlrev_b32 v2, 4, v1")
    A("s_mul_i32 s6, s61, 10240")
    A("s_add_u32 s6, s6, 0x%x" % WS_CS)
    A("s_add_u32 s7, s6, 4096")
    A("s_add_u32 s8, s6, 8192")
    poll_flags(A, [(R + 4 * i, 4, 2, 6 + i // 4, 1024 * (i % 4)) for i in range(10)], [R + 3 + 4 * i for i in range(10)], 3, 8)
    for i in range(1, 10):
        for e in range(3):
            A("v_add_f32 %s, %s, %s" % (v(R + e), v(R + e), v(R + 4 * i + e)))
    A("v_lshlrev_b32 v2, 2, v1")
    for e in range(3):
        A("ds_write_b32 v2, %s offset:%d" % (v(R + e), CSUM + 256 * e))
    A("v_mov_b32 v2, %d" % CTRL)
    A("v_mov_b32 v3, 1")
    A("ds_write_b32 v2, v3 offset:%d" % C_CSOK)


WDR = 216


def wd_issue(A):
    T = 200
    srd(A, 56, P_WD, 1536 * 640 * 2)
    A("s_lshl_b32 s4, s2, 1")
    A("s_add_u32 s4, s4, s3")
    A("s_mul_i32 s14, s4, 52429")
    A("s_lshr_b32 s14, s14, 19")
    A("s_mul_i32 s5, s14, 10")
    A("s_sub_u32 s13, s4, s5")
    A("s_mul_i32 s4, s14, %d" % (32 * 1280))
    A("s_lshl_b32 s5, s13, 7")
    A("s_add_u32 s4, s4, s5")
    A("v_lshrrev_b32 %s, 3, v1" % v(T))
    A("v_mul_u32_u24 %s, 1280, %s" % (v(T), v(T)))
    A("v_and_b32 %s, 7, v1" % v(T + 1))
    A("v_lshl_add_u32 %s, %s, 4, %s" % (v(T), v(T + 1), v(T)))
    A("s_lshl_b32 s7, s3, 12")
    A("s_add_u32 s7, s7, %d" % WSLOT(5))
    for p in range(4):
        A("s_add_u32 m0, s7, %d" % (1024 * p))
        A("s_nop 0")
        A("buffer_load_dwordx4 %s, s[56:59], s4 offen lds" % v(T))
        A("s_add_u32 s4, s4, %d" % (8 * 1280))


def wd_relayout(A):
    skip = A.newl("Lwd")
    T = 200
    A("s_waitcnt vmcnt(0)")
    A("s_cmp_ge_u32 s2, 240")
    A("s_cbranch_scc1 %s" % skip)
    A("s_lshl_b32 s7, s3, 12")
    A("s_add_u32 s7, s7, %d" % WSLOT(5))
    A("v_lshrrev_b32 %s, 2, v1" % v(T))
    A("v_lshlrev_b32 %s, 7, %s" % (v(T), v(T)))
    A("v_and_b32 %s, 3, v1" % v(T + 1))
    A("v_lshl_add_u32 %s, %s, 3, %s" % (v(T), v(T + 1), v(T)))
    A("v_add_u32 %s, s7, %s" % (v(T), v(T)))
    A("v_lshlrev_b32 %s, 4, v1" % v(T + 1))
    for c in range(4):
        A("ds_read_b64_tr_b16 %s, %s offset:%d" % (v(WDR + 4 * c, 2), v(T), 32 * c))
        A("ds_read_b64_tr_b16 %s, %s offset:%d" % (v(WDR + 2 + 4 * c, 2), v(T), 32 * c + 2048))
    for c in range(4):
        A("s_lshl_b32 s4, s13, 2")
        A("s_add_u32 s4, s4, %d" % c)
        A("s_mul_i32 s5, s4, 52429")
        A("s_lshr_b32 s5, s5, 18")
        A("s_mul_i32 s6, s5, 5")
        A("s_sub_u32 s4, s4, s6")
        A("s_mul_i32 s5, s5, 48")
        A("s_add_u32 s5, s5, s14")
        A("s_mul_i32 s5, s5, 5")
        A("s_add_u32 s4, s4, s5")
        A("s_lshl_b32 s4, s4, 10")
        A("s_add_u32 s4, s4, 0x%x" % WS_WD)
        A("s_waitcnt lgkmcnt(%d)" % (6 - 2 * c))
        A("buffer_store_dwordx4 %s, %s, s[48:51], s4 offen sc1" % (v(WDR + 4 * c, 4), v(T + 1)))
    A.label(skip)


G_vA0, G_vA1, G_vC, G_vF, G_vP, G_vXo, G_vPa = 2, 3, 4, 5, 6, 7, 8


def prog(A, val):
    A("v_mov_b32 %s, %d" % (v(G_vP), val + 1))
    A("ds_write_b32 %s, %s" % (v(G_vPa), v(G_vP)))


def full_read(A, u):
    A("ds_read_b32 %s, %s offset:%d" % (v(G_vF), v(G_vC), FLG + 4 * u))


def full_wait(A, u, have=True):
    if OPT.get("free"):
        return
    if not getattr(A, "fullfn", None):
        A.fullfn = A.newl("Lfw")

        def fn():
            A.label(A.fullfn)
            guard(A)
            if OPT.get("cnt"):
                A("s_add_u32 s92, s92, 1")
            A("ds_read_b32 %s, v11" % v(G_vF))
            A("s_waitcnt lgkmcnt(0)")
            A("v_readfirstlane_b32 s10, %s" % v(G_vF))
            A("s_cmp_eq_u32 s10, 0")
            A("s_cbranch_scc0 %s" % A.fullfn)
            A("s_setpc_b64 s[34:35]")
        A.cold.append(fn)
    ok = A.newl("Lok")
    if have:
        A("v_readfirstlane_b32 s10, %s" % v(G_vF))
        A("s_cmp_eq_u32 s10, 0")
        A("s_cbranch_scc1 %s" % ok)
    A("v_mov_b32 v11, %d" % (FLG + 4 * u))
    A("s_call_b64 s[34:35], %s" % A.fullfn)
    A.label(ok)


def wfrag_addr(A, d, t):
    A("v_bfe_u32 %s, v1, 2, 2" % v(t))
    A("v_lshrrev_b32 %s, 5, v1" % v(t + 1))
    A("v_lshl_add_u32 %s, %s, 3, %s" % (v(t), v(t + 1), v(t)))
    A("v_mul_u32_u24 %s, 192, %s" % (v(d), v(t)))
    A("v_bfe_u32 %s, v1, 4, 1" % v(t))
    A("v_lshl_add_u32 %s, %s, 5, %s" % (v(d), v(t), v(d)))
    A("v_and_b32 %s, 1, v1" % v(t))
    A("v_lshl_add_u32 %s, %s, 3, %s" % (v(d), v(t), v(d)))
    A("v_bfe_u32 %s, v1, 1, 1" % v(t))
    A("v_mul_u32_u24 %s, %d, %s" % (v(t), UPOFF, v(t)))
    A("v_add_u32 %s, %s, %s" % (v(d), v(t), v(d)))


def phase0(A, nyoung):
    done, l3 = A.newl("Lp0d"), A.newl("Lp03")
    A("s_cmp_eq_u32 s3, 3")
    A("s_cbranch_scc1 %s" % l3)
    A("s_cmp_eq_u32 s3, 2")
    A("s_cbranch_scc1 %s" % done)
    wd_relayout(A)
    A("s_branch %s" % done)
    A.label(l3)
    A("s_waitcnt vmcnt(%d)" % nyoung)
    A.ts(1)
    A("v_mov_b32 v22, 0")
    A("global_load_dword v22, v22, %s sc1" % s(P_DBG, 2))
    ln8(A)
    nonce_fetch(A, 22, True)
    ln_store(A)
    A.label(done)
    A("s_waitcnt lgkmcnt(0)")
    A.ts(2)


def gemm1(A):
    ACC, FB = 160, 100
    SEL, CSD = 64, 80
    ST = 16
    vX = 12
    vA0, vC, vF, vP, vXo, vPa = G_vA0, G_vC, G_vF, G_vP, G_vXo, G_vPa
    lg = Cnt(A, "lgkmcnt", 15)
    A("s_and_b32 s11, s3, 1")
    A("s_lshr_b32 s12, s3, 1")
    A("s_lshl_b32 s8, s60, 1")
    A("s_add_u32 s8, s8, s11")
    wfrag_addr(A, vA0, 9)
    A("s_lshl_b32 s4, s12, 4")
    A("v_add_u32 %s, s4, %s" % (v(vA0), v(vA0)))
    A("v_add_u32 %s, %d, %s" % (v(G_vA1), WADDR[3], v(vA0)))
    A("v_and_b32 v9, 31, v1")
    A("v_bfe_u32 v10, v1, 1, 3")
    A("v_lshrrev_b32 v11, 5, v1")
    A("v_xor_b32 v10, v10, v11")
    A("v_lshlrev_b32 v10, 4, v10")
    A("v_lshl_add_u32 v10, v9, 7, v10")
    A("s_lshl_b32 s4, s11, 13")
    A("s_add_u32 s4, s4, %d" % XRING)
    for j in range(4):
        A("v_xor_b32 %s, %d, v10" % (v(vX + j), 32 * j))
        A("v_add_u32 %s, s4, %s" % (v(vX + j), v(vX + j)))
    A("v_mov_b32 %s, %d" % (v(vC), CTRL))
    A("s_lshl_b32 s4, s3, 2")
    A("s_add_u32 s4, s4, %d" % (CTRL + C_PROG))
    A("v_mov_b32 %s, s4" % v(vPa))
    A("s_lshl_b32 s4, s12, 2")
    A("v_subrev_u32 v9, s4, v9")
    A("v_mov_b32 v10, 0x3f803f80")
    for t in range(3):
        A("v_cmp_eq_u32 vcc, %d, v9" % t)
        A("s_nop 1")
        for d in range(4):
            A("v_cndmask_b32 %s, 0, v10, vcc" % v(SEL + 4 * t + d))

    def early(A):
        sk, l3 = A.newl("Le"), A.newl("Le")
        srd(A, 52, P_X, 2048 * 640 * 2)
        A("s_cmp_eq_u32 s3, 3")
        A("s_cbranch_scc1 %s" % l3)
        A("s_cmp_eq_u32 s3, 2")
        A("s_cbranch_scc1 %s" % sk)
        wd_issue(A)
        A("s_branch %s" % sk)
        A.label(l3)
        ln_issue(A)
        A.label(sk)
    ready(A, early)
    if not OPT.get("auxoff"):
        phase0(A, 0)

    def W(ks, t):
        return FB + 20 * (ks % 3) + 4 * t

    def X(ks, a):
        return FB + 20 * (ks % 3) + 12 + 4 * a

    def wread(ks, t):
        if OPT.get("nowr"):
            return
        off, b = WSLOT(ks >> 1) + (ks & 1) * SLOT1 + 64 * t, vA0
        if off >= WADDR[3]:
            off, b = off - WADDR[3], G_vA1
        A("ds_read_b64_tr_b16 %s, %s offset:%d" % (v(W(ks, t), 2), v(b), off))
        lg.issue(("w", ks, t, 0))
        A("ds_read_b64_tr_b16 %s, %s offset:%d" % (v(W(ks, t) + 2, 2), v(b), off + 768))
        lg.issue(("w", ks, t))

    def xread(ks, a):
        if OPT.get("noxr"):
            return
        A("ds_read_b128 %s, %s offset:%d" % (v(X(ks, a), 4), v(vX + ks % 4), XSLOT(ks >> 2) - XRING + 4096 * a))
        lg.issue(("x", ks, a))

    def reads(ks):
        return [lambda: xread(ks, 0), lambda: wread(ks, 0), lambda: xread(ks, 1), lambda: wread(ks, 1), lambda: wread(ks, 2)]
    prog(A, 0)
    full_wait(A, 0, False)
    A.ts(4)
    E = OPT.get("lead", 3)
    allr = [(ks, i, f) for ks in range(40) for i, f in enumerate(reads(ks))]
    state = {"g": 0, "freshf": False, "prog": 0}

    def next_read():
        if state["g"] >= len(allr):
            return
        ks, i, f = allr[state["g"]]
        state["g"] += 1
        if i == 0 and ks % 2 == 0 and ks > 0:
            lg.wait(("f", ks))
            full_wait(A, ks // 2)
        f()
        if i == OPT.get("fn", 0) and ks % 2 == 1 and ks + 1 < 40:
            full_read(A, (ks + 1) // 2)
            lg.issue(("f", ks + 1))

    def try_prog():
        u = state["prog"]
        last = 10 * u + 9
        if u < 20 and state["g"] > last and ("w", 2 * u + 1, 2) not in lg.q:
            prog(A, u + 1)
            lg.issue(("p", u))
            state["prog"] += 1
    for _ in range(5 + E):
        next_read()
    for ks in range(40):
        if ks == 28:
            A("v_and_b32 v9, 31, v1")
            A("v_lshlrev_b32 v9, 3, v9")
            A("s_lshl_b32 s6, s8, 9")
            A("s_add_u32 s6, s6, 0x%x" % WS_ST)
            A("buffer_load_dwordx2 %s, v9, s[48:51], s6 offen sc1" % v(ST, 2))
            A("buffer_load_dwordx2 %s, v9, s[48:51], s6 offen offset:256 sc1" % v(ST + 2, 2))
        if ks == OPT.get("pubks", 6) and not OPT.get("auxoff"):
            sk, s3 = A.newl("Lcs"), A.newl("Lc3")
            nonce_lds(A, 10)
            lg.q = []
            flag_p(A)
            A("s_cmp_ge_u32 s60, 10")
            A("s_cbranch_scc1 %s" % sk)
            A("s_cmp_lg_u32 s11, 0")
            A("s_cbranch_scc1 %s" % sk)
            A("v_mov_b32 %s, %s" % (v(CSD + 3), NON))
            A("v_lshlrev_b32 v9, 4, v1")
            A("s_mul_i32 s6, s61, 10")
            A("s_add_u32 s6, s6, s60")
            A("s_lshl_b32 s6, s6, 10")
            A("s_add_u32 s6, s6, 0x%x" % WS_CS)
            A("s_sub_u32 exec_lo, s12, 1")
            A("s_not_b32 exec_hi, exec_lo")
            A("buffer_store_dwordx4 %s, v9, s[48:51], s6 offen sc1" % v(CSD, 4))
            A("s_mov_b64 exec, -1")
            A.label(sk)
        if ks in (12, 20, 28):
            A.ts(8 + (ks - 12) // 8)
        n = 0
        for t in range(3):
            for a in range(2):
                lg.wait(("w", ks, t))
                lg.wait(("x", ks, a))
                d = ACC + 48 * a + 16 * t
                cin = "0" if ks == 0 else v(d, 16)
                if OPT.get("nomf"):
                    A("s_nop 7" if OPT["nomf"] == 2 else "s_nop 0")
                else:
                    A("v_mfma_f32_32x32x16_bf16 %s, %s, %s, %s" % (v(d, 16), v(W(ks, t), 4), v(X(ks, a), 4), cin))
                if not OPT.get("noprog"):
                    try_prog()
                if n < 5:
                    next_read()
                n += 1
            if ks < 4:
                cin = "0" if ks + t == 0 else v(CSD, 16)
                A("v_mfma_f32_32x32x16_bf16 %s, %s, %s, %s" % (v(CSD, 16), v(SEL + 4 * t, 4), v(W(ks, t), 4), cin))
    A.ts(5)
    if OPT.get("cnt"):
        A.stamps += [11, 14]
    if OPT.get("g1only"):
        return
    A("s_waitcnt vmcnt(0)")
    ok = A.newl("Lst")
    tag_check(A, [ST + 1, ST + 3], 10, ok)
    poll_flags(A, [(ST, 2, 9, 6, 0), (ST + 2, 2, 9, 6, 256)], [ST + 1, ST + 3], 10, 2)
    A.label(ok)
    lds_wait(A, C_CSOK, "lg", 0, vF, vC, "s10")
    A("v_lshrrev_b32 v9, 5, v1")
    A("v_lshlrev_b32 v9, 4, v9")
    A("s_lshl_b32 s4, s12, 7")
    A("s_add_u32 s4, s4, %d" % CSUM)
    A("v_add_u32 v9, s4, v9")
    CR = 24
    for t in range(3):
        for m in range(4):
            A("ds_read_b128 %s, v9 offset:%d" % (v(CR + 16 * t + 4 * m, 4), 256 * t + 32 * m))
    NM, C1 = [72, 76], [74, 78]
    for a in range(2):
        A("v_lshlrev_b32 %s, 16, %s" % (v(NM[a]), v(ST + 2 * a)))
        A("v_xor_b32 %s, 0x80000000, %s" % (v(NM[a]), v(NM[a])))
        A("v_and_b32 %s, 0xffff0000, %s" % (v(C1[a]), v(ST + 2 * a)))
        A("v_mul_f32 %s, %s, %s" % (v(NM[a] + 1), v(C1[a]), v(C1[a])))
        A("v_rcp_f32 %s, %s" % (v(C1[a]), v(C1[a])))
    A("s_mul_i32 s9, s8, 192")
    A("s_mul_i32 s4, s61, 6")
    A("s_add_u32 s9, s9, s4")
    A("s_add_u32 s9, s9, s12")
    A("s_lshl_b32 s9, s9, 10")
    A("s_add_u32 s9, s9, 0x%x" % WS_HF)
    for a in range(2):
        A("v_mul_f32 %s, %s, %s" % (v(C1[a]), fbits(-LOG2E), v(C1[a])))
    A("v_lshlrev_b32 %s, 4, v1" % v(vXo))
    A("s_waitcnt lgkmcnt(0)")
    T0 = 96
    n = 0
    for a in range(2):
        for t in range(3):
            ac = ACC + 48 * a + 16 * t
            tmp = T0 + 16 * (n & 1)
            n += 1
            G = [ac, ac + 2, ac + 8, ac + 10]
            U = [ac + 4, ac + 6, ac + 12, ac + 14]
            for i in range(8):
                A("v_pk_fma_f32 %s, %s, %s, %s op_sel_hi:[1,0,1]" % (v(ac + 2 * i, 2), v(CR + 16 * t + 2 * i, 2), v(NM[a], 2), v(ac + 2 * i, 2)))
            for i in range(4):
                A("v_pk_mul_f32 %s, %s, %s op_sel_hi:[1,0]" % (v(tmp + 2 * i, 2), v(G[i], 2), v(C1[a], 2)))
            for i in range(8):
                A("v_exp_f32 %s, %s" % (v(tmp + i), v(tmp + i)))
            for i in range(4):
                A("v_pk_mul_f32 %s, %s, %s" % (v(G[i], 2), v(G[i], 2), v(U[i], 2)))
            for i in range(4):
                A("v_pk_fma_f32 %s, %s, %s, %s op_sel:[0,1,1] op_sel_hi:[1,1,1]" % (v(tmp + 2 * i, 2), v(tmp + 2 * i, 2), v(NM[a], 2), v(NM[a], 2)))
            for i in range(8):
                A("v_rcp_f32 %s, %s" % (v(tmp + i), v(tmp + i)))
            A("s_add_u32 s4, s9, %d" % (96 * 1024 * a + 2048 * t))
            for i in range(4):
                A("v_pk_mul_f32 %s, %s, %s" % (v(G[i], 2), v(G[i], 2), v(tmp + 2 * i, 2)))
            for i in range(4):
                A("v_cvt_pk_bf16_f32 %s, %s, %s" % (v(tmp + 8 + i), v(G[i]), v(G[i] + 1)))
            A("buffer_store_dwordx4 %s, %s, s[48:51], s4 offen sc1" % (v(tmp + 8, 4), v(vXo)))
    A("v_mov_b32 %s, 1" % v(vP))
    A("ds_write_b32 %s, %s offset:%d" % (v(vPa), v(vP), C_EPI - C_PROG))
    A.ts(6)
    A("s_lshl_b32 s6, s8, 4")
    A("s_add_u32 s6, s6, s61")
    A("s_lshl_b32 s6, s6, 1")
    A("s_add_u32 s6, s6, s12")
    A("s_lshl_b32 s6, s6, 7")
    A("s_add_u32 s6, s6, 0x%x" % FL_H)
    A("s_waitcnt vmcnt(0)")
    signal(A, 6, 10)
    A.ts(7)


def cmul(A, d, a, f, t, pk=False):
    assert d != a and d != f
    if pk:
        A("v_pk_mul_f32 %s, %s, %s op_sel:[0,0] op_sel_hi:[1,0]" % (v(d, 2), v(a, 2), v(f, 2)))
        A("v_pk_fma_f32 %s, %s, %s, %s op_sel:[1,1,0] op_sel_hi:[0,1,1] neg_lo:[1,0,0]" % (v(d, 2), v(a, 2), v(f, 2), v(d, 2)))
        return
    A("v_mul_f32 %s, %s, %s" % (v(d), v(a), v(f)))
    A("v_mul_f32 %s, %s, %s" % (v(d + 1), v(a + 1), v(f)))
    A("v_fma_f32 %s, -%s, %s, %s" % (v(d), v(a + 1), v(f + 1), v(d)))
    A("v_fmac_f32 %s, %s, %s" % (v(d + 1), v(a), v(f + 1)))


def kgen_issue(A):
    A("v_mov_b32 v58, 0")
    A("v_mov_b32 v59, 0")
    A("s_mul_i32 s4, s68, 384")
    A("v_lshlrev_b32 v38, 4, v1")
    A("v_add_u32 v38, s4, v38")
    A("s_lshl_b32 s4, s68, 1")
    A("v_mov_b32 v39, s4")
    setexec(A, 0xffffff)
    for i, p in enumerate([P_ARE, P_AIM, P_BRE, P_BIM, P_CRE, P_CIM]):
        A("s_add_u32 m0, s66, %d" % (384 * i))
        A("s_nop 0")
        A("global_load_lds_dwordx4 v38, %s" % s(p, 2))
    A("s_mov_b64 exec, -1")
    A("global_load_short_d16_hi v58, v39, %s" % s(P_LDT, 2))
    A("global_load_short_d16_hi v59, v39, %s" % s(P_DSK, 2))


HI = list(range(8)) + [256, 258, 260, 262, 512, 516, 768, 772, 1024, 1280, 1536, 1792, 2048]
EROW = 272


KB_DT, KB_ACC = 6, 134


def kgen_params(A, B):
    for c in range(3):
        for i in range(6):
            A("ds_read_u16_d16_hi %s, %s offset:%d" % (v(40 + 6 * c + i), v(B + 9), 384 * i + 128 * c))


def kgen_setup(A, B):
    vW, vR, ONE, T = B + 7, B + 8, B + 10, B + 20
    A("s_mov_b32 s4, s66")
    for i in range(18):
        A("v_mov_b32 %s, 0" % v(40 + i))
    A("v_mul_u32_u24 %s, %d, v1" % (v(vW), ER))
    A("v_add_u32 %s, s4, %s" % (v(vW), v(vW)))
    A("v_bfe_u32 %s, v1, 2, 2" % v(T))
    A("v_lshrrev_b32 %s, 5, v1" % v(T + 1))
    A("v_lshl_add_u32 %s, %s, 3, %s" % (v(T), v(T + 1), v(T)))
    A("v_mul_u32_u24 %s, %d, %s" % (v(vR), ER, v(T)))
    A("v_bfe_u32 %s, v1, 4, 1" % v(T))
    A("v_lshl_add_u32 %s, %s, 5, %s" % (v(vR), v(T), v(vR)))
    A("v_and_b32 %s, 3, v1" % v(T))
    A("v_lshl_add_u32 %s, %s, 3, %s" % (v(vR), v(T), v(vR)))
    A("v_add_u32 %s, s4, %s" % (v(vR), v(vR)))
    A("v_lshlrev_b32 %s, 1, v1" % v(B + 9))
    A("v_add_u32 %s, s66, %s" % (v(B + 9), v(B + 9)))
    A("v_mov_b32 %s, 1.0" % v(ONE))
    A("v_mov_b32 %s, 0" % v(ONE + 1))


def kgen_chunk(A, B, c, pkm, first, mid=None):
    are, aim, bre, bim, cre, cim = [40 + 6 * c + i for i in range(6)]
    DT, vW, vR, vP, ONE = B + KB_DT, B + 7, B + 8, B + 9, B + 10
    E1, E8, E256, E16, TA = B + 12, B + 14, B + 16, B + 18, B + 20
    LO = [B + 26, B + 28, B + 30, B + 32]
    Gs, PR, PI, KACC = B + 34, B + 78, B + 106, B + KB_ACC
    FR = B + 34
    G = lambda i: Gs + 2 * i
    A("v_mul_f32 %s, %s, %s" % (v(are), v(DT), v(are)))
    A("v_mul_f32 %s, %s, %s" % (v(aim), v(DT), v(aim)))
    A("v_mul_f32 %s, %s, %s" % (v(are), fbits(LOG2E), v(are)))
    A("v_mul_f32 %s, %s, %s" % (v(aim), fbits(0.5 / math.pi), v(aim)))
    Es = [(E8, 8.0, TA), (E1, 1.0, TA + 2), (E256, 256.0, TA + 4)]
    for (E, l, T) in Es:
        A("v_mul_f32 %s, %s, %s" % (v(T), fbits(l), v(are)))
        A("v_mul_f32 %s, %s, %s" % (v(T + 1), fbits(l), v(aim)))
    for (E, l, T) in Es:
        A("v_fract_f32 %s, %s" % (v(T + 1), v(T + 1)))
    for (E, l, T) in Es:
        A("v_exp_f32 %s, %s" % (v(T), v(T)))
        A("v_cos_f32 %s, %s" % (v(E), v(T + 1)))
        A("v_sin_f32 %s, %s" % (v(E + 1), v(T + 1)))
    A("v_mul_f32 %s, %s, %s" % (v(bre), v(DT), v(bre)))
    A("v_mul_f32 %s, %s, %s" % (v(bim), v(DT), v(bim)))
    for (E, l, T) in Es:
        A("v_mul_f32 %s, %s, %s" % (v(E), v(E), v(T)))
        A("v_mul_f32 %s, %s, %s" % (v(E + 1), v(E + 1), v(T)))
    cmul(A, Gs, cre, bre, TA)
    cmul(A, E16, E8, E8, E16)
    loc = {0: Gs, 24: ONE, 25: E8, 26: E16}
    packed, written = set(), set()

    def flush():
        for p in range(28):
            if p in packed or p == 11:
                continue
            c0, c1 = 2 * p, 2 * p + 1
            if p == 10:
                c1 = c0
            if c0 in loc and c1 in loc:
                n = "-" if p < 12 else ""
                A("v_cvt_pk_bf16_f32 %s, %s, %s" % (v(PR + p), v(loc[c0]), v(loc[c1])))
                A("v_cvt_pk_bf16_f32 %s, %s%s, %s%s" % (v(PI + p), n, v(loc[c0] + 1), n, v(loc[c1] + 1)))
                packed.add(p)

    def wr(old):
        for q in range(7):
            if q not in written and all((p in old or p == 11) for p in range(4 * q, 4 * q + 4)):
                A("ds_write_b128 %s, %s offset:%d" % (v(vW), v(PR + 4 * q, 4), 16 * q))
                written.add(q)
    cur = [E16, E8]
    lo_ops = []
    for j in range(3, 32):
        ch = 1 if (j & 1) else 0
        dst = LO[2 * ch + ((j >> 1) & 1)]
        lo_ops.append((dst, cur[ch], E16, 24 + j))
        cur[ch] = dst
    src = {8: 0, 9: 2, 10: 4, 11: 6, 12: 8, 13: 10, 14: 12, 15: 13, 16: 14, 17: 16, 18: 17, 19: 18, 20: 19}
    h1 = [(G(i), G(i - 1), E1, i) for i in range(1, 8)] + [(G(i), G(src[i]), E256, i) for i in [9, 10, 11, 13, 15]]
    h2 = [(G(i), G(src[i]), E256, i) for i in [8, 12, 14, 16, 17, 18, 19, 20]]
    groups = [[lo_ops.pop(0)]]
    while lo_ops:
        groups.append([lo_ops.pop(0), lo_ops.pop(0)])
    for i, g in enumerate(groups):
        if i < len(h1):
            g.append(h1[i])
        if i < len(h2):
            g.append(h2[i])
    for gi, grp in enumerate(groups):
        if gi == 8 and mid:
            mid(A)
        old = set(packed)
        if pkm:
            for (d, a, f, col) in grp:
                A("v_pk_mul_f32 %s, %s, %s op_sel:[0,0] op_sel_hi:[1,0]" % (v(d, 2), v(a, 2), v(f, 2)))
        else:
            for (d, a, f, col) in grp:
                A("v_mul_f32 %s, %s, %s" % (v(d), v(a), v(f)))
                A("v_mul_f32 %s, %s, %s" % (v(d + 1), v(a + 1), v(f)))
        wr(old)
        flush()
        if pkm:
            for (d, a, f, col) in grp:
                A("v_pk_fma_f32 %s, %s, %s, %s op_sel:[1,1,0] op_sel_hi:[0,1,1] neg_lo:[1,0,0]" % (v(d, 2), v(a, 2), v(f, 2), v(d, 2)))
        else:
            for (d, a, f, col) in grp:
                A("v_fma_f32 %s, -%s, %s, %s" % (v(d), v(a + 1), v(f + 1), v(d)))
                A("v_fmac_f32 %s, %s, %s" % (v(d + 1), v(a), v(f + 1)))
        for (d, a, f, col) in grp:
            loc[col] = d
    flush()
    wr(packed)
    assert len(written) == 7

    def rd(ks):
        for (r, off) in [(FR + 8 * ks, 0), (FR + 8 * ks + 4, 48)]:
            A("ds_read_b64_tr_b16 %s, %s offset:%d" % (v(r, 2), v(vR), 16 * ER * (ks & 3) + off))
            A("ds_read_b64_tr_b16 %s, %s offset:%d" % (v(r + 2, 2), v(vR), 16 * ER * (ks & 3) + off + 4 * ER))

    def mf(ks):
        cin = "0" if (first and ks == 0) else v(KACC, 16)
        A("v_mfma_f32_32x32x16_bf16 %s, %s, %s, %s" % (v(KACC, 16), v(FR + 8 * ks, 4), v(FR + 8 * ks + 4, 4), cin))
    for ks in range(4):
        rd(ks)
    for q in range(7):
        A("ds_write_b128 %s, %s offset:%d" % (v(vW), v(PI + 4 * q, 4), 16 * q))
    A("s_waitcnt lgkmcnt(7)")
    for ks in range(4):
        mf(ks)
        if ks >= 2:
            rd(ks + 2)
    rd(6)
    rd(7)
    for ks in range(4, 8):
        A("s_waitcnt lgkmcnt(%d)" % (4 * (7 - ks)))
        mf(ks)


def kgen_expand(A, KACC):
    A("v_and_b32 v2, 31, v1")
    A("v_lshrrev_b32 v3, 5, v1")
    A("v_lshlrev_b32 v4, 5, v2")
    A("v_lshl_add_u32 v4, v3, 4, v4")
    A("v_add_u32 v4, s66, v4")
    A("v_lshlrev_b32 v5, 4, v2")
    A("v_add_u32 v5, s66, v5")
    A("v_lshlrev_b32 v6, 3, v2")
    A("v_add_u32 v6, s66, v6")
    A("v_lshlrev_b32 v7, 2, v2")
    A("v_add_u32 v7, s66, v7")
    A("s_nop 7")
    A("s_mov_b64 exec, 1")
    A("v_add_f32 %s, %s, v59" % (v(KACC), v(KACC)))
    A("s_mov_b64 exec, -1")
    A("ds_write_b128 v4, %s" % v(KACC, 4))
    A("s_mov_b32 exec_hi, 0")
    A("ds_write_b128 v5, %s offset:%d" % (v(KACC + 4, 4), 256 * 4))
    for r in range(4):
        A("ds_write_b32 v7, %s offset:%d" % (v(KACC + 8 + r), (512 + 32 * r) * 4))
    A("s_mov_b32 exec_lo, 0")
    A("s_mov_b32 exec_hi, -1")
    A("ds_write_b64 v6, %s offset:%d" % (v(KACC + 4, 2), 384 * 4))
    A("ds_write_b64 v6, %s offset:%d" % (v(KACC + 6, 2), 448 * 4))
    A("ds_write_b32 v7, %s offset:%d" % (v(KACC + 8), 640 * 4))
    A("s_mov_b64 exec, -1")
    S0, S1, S2, S3 = 10, 16, 20, 24
    A("v_lshlrev_b32 v2, 3, v1")
    A("v_add_u32 v3, s66, v2")
    A("v_lshlrev_b32 v4, 4, v1")
    A("v_add_u32 v4, s66, v4")
    A("ds_read_b128 %s, v4" % v(S0 + 2, 4))
    A("ds_read_b32 %s, v4 offset:16" % v(S0))
    for (S, b) in [(S1, 256), (S2, 384), (S3, 512)]:
        A("ds_read_b64 %s, v3 offset:%d" % (v(S, 2), 4 * b))
        A("ds_read_b32 %s, v3 offset:%d" % (v(S + 2), 4 * b + 8))
    A("v_add_u32 v2, s69, v2")
    A("v_lshrrev_b32 v3, 4, v1")
    A("v_mul_u32_u24 v3, %d, v3" % KSTR)
    A("v_and_b32 v4, 15, v1")
    A("v_lshl_add_u32 v3, v4, 2, v3")
    A("v_add_u32 v3, s69, v3")
    A("v_sub_u32 v5, 63, v1")
    A("v_lshlrev_b32 v6, 5, v5")
    A("v_add_u32 v6, s69, v6")
    A("v_lshlrev_b32 v7, 4, v5")
    A("v_add_u32 v7, s69, v7")
    A("v_lshlrev_b32 v5, 3, v5")
    A("v_add_u32 v5, s69, v5")
    A("v_mov_b32 v8, 0")
    A("v_mov_b32 v9, 0")
    A.ts(6)
    A("v_mov_b32 v80, %d" % CTRL)
    lds_wait(A, C_GO, "lg", 0, 76, 80, "s10", False, 2)
    if OPT.get("ulate", 17):
        prog_wait(A, OPT.get("ulate", 17), 76, 2)
    u_issue(A)
    prog_wait(A, CONV_PROG + 1, 76, 2)
    A("ds_write_b64 v2, v[8:9] offset:%d" % AUX_U)
    A("ds_write_b32 v3, v8 offset:4096")
    O = 28
    def val3(o):
        return S3 + (0 if o <= 4 else 1 if o <= 11 else 2)
    def val2(o):
        return S2 + (0 if o <= 2 else 1 if o <= 5 else 2)
    for d in range(4):
        o0 = O + 12 * (d & 1)
        for w in range(8):
            A("v_cvt_pk_bf16_f32 %s, %s, %s" % (v(o0 + w), v(val3(d + 15 - 2 * w)), v(val3(d + 14 - 2 * w))))
        for w in range(4):
            A("v_cvt_pk_bf16_f32 %s, %s, %s" % (v(o0 + 8 + w), v(val2(d + 7 - 2 * w)), v(val2(d + 6 - 2 * w))))
        A("ds_write_b128 v6, %s offset:%d" % (v(o0, 4), d * KSTR))
        A("ds_write_b128 v6, %s offset:%d" % (v(o0 + 4, 4), d * KSTR + 16))
        A("ds_write_b128 v7, %s offset:%d" % (v(o0 + 8, 4), d * KSTR + 2048))
    A("v_cvt_pk_bf16_f32 v52, %s, %s" % (v(S2), v(S2)))
    A("ds_write_b32 v7, v52 offset:%d" % (2 * KSTR + 2048 + 16))
    A("ds_write_b32 v7, v52 offset:%d" % (3 * KSTR + 2048 + 16))
    a, b, c = S1, S1 + 1, S1 + 2
    t0, t1, t2, t3, t4 = S0 + 2, S0 + 3, S0 + 4, S0 + 5, S0
    prs = [(c, b), (a, a), (c, c), (b, a), (t3, t2), (t1, t0), (t4, t3), (t2, t1)]
    for i, (x, y) in enumerate(prs):
        A("v_cvt_pk_bf16_f32 %s, %s, %s" % (v(64 + i), v(x), v(y)))
    A("v_cvt_pk_bf16_f32 v72, %s, 0" % v(t0))
    for d in range(2):
        A("ds_write_b64 v5, %s offset:%d" % (v(64 + 2 * d, 2), d * KSTR + 3072))
        A("ds_write_b64 v5, %s offset:%d" % (v(68 + 2 * d, 2), d * KSTR + 3584))
    for d in range(2, 4):
        for (r, off) in [(64 + 2 * (d - 2), 3072), (68 + 2 * (d - 2), 3584)]:
            A("ds_write_b32 v5, %s offset:%d" % (v(r), d * KSTR + off + 4))
            A("ds_write_b32 v5, %s offset:%d" % (v(r + 1), d * KSTR + off + 8))
    A("s_mov_b64 exec, 1")
    A("ds_write_b32 v5, v72 offset:%d" % (1 * KSTR + 3584 + 8))
    A("ds_write_b32 v5, v72 offset:%d" % (3 * KSTR + 3584 + 12))
    A("s_mov_b64 exec, -1")
    A("s_waitcnt lgkmcnt(0)")


def u_issue(A):
    A("v_mul_u32_u24 v81, 10240, v1")
    A("s_lshl_b32 s4, s68, 4")
    A("s_add_u32 s4, s4, 0x%x" % WS_XT)
    for i in range(4):
        A("buffer_load_dwordx4 %s, v81, s[48:51], s4 offen%s" % (v(232 + 4 * i, 4), LSC))
        if i < 3:
            A("s_add_u32 s4, s4, %d" % (64 * 10240))


def prog_wait(A, val, vt, sleep):
    pl, ok = A.newl("Lpw"), A.newl("Lpo")
    A("v_mov_b32 %s, %d" % (v(vt + 4), CTRL))
    A.label(pl)
    guard(A)
    A("ds_read_b128 %s, %s offset:%d" % (v(vt, 4), v(vt + 4), C_PROG))
    A("s_waitcnt lgkmcnt(0)")
    A("v_min_u32 %s, %s, %s" % (v(vt), v(vt), v(vt + 1)))
    A("v_min3_u32 %s, %s, %s, %s" % (v(vt), v(vt), v(vt + 2), v(vt + 3)))
    A("s_nop 0")
    A("v_readfirstlane_b32 s10, %s" % v(vt))
    A("s_cmp_ge_u32 s10, %d" % val)
    A("s_cbranch_scc1 %s" % ok)
    A("s_sleep %d" % sleep)
    A("s_branch %s" % pl)
    A.label(ok)


def epi_wait(A):
    A("s_lshl_b32 s4, s3, 2")
    A("v_mov_b32 v10, s4")
    lds_wait(A, CTRL + C_EPI - 16, "lg", 0, 11, 10, "s10", False, 2)


def conv(A):
    AF, BF, ACC = 64, 128, 192
    vK, vU = 2, 3
    A("v_lshlrev_b32 v5, 4, v1")
    A("v_add_u32 v5, s69, v5")
    A("v_and_b32 v6, 15, v1")
    A("v_lshrrev_b32 v7, 4, v1")
    A("v_add_u32 v8, 1, v6")
    A("v_and_b32 v9, 3, v8")
    A("v_mul_u32_u24 %s, %d, v9" % (v(vK), KSTR))
    A("v_lshrrev_b32 v8, 2, v8")
    A("v_lshlrev_b32 v8, 3, v8")
    A("v_sub_u32 %s, %s, v8" % (v(vK), v(vK)))
    A("v_lshl_add_u32 %s, v7, 4, %s" % (v(vK), v(vK)))
    A("s_add_u32 s4, s69, 32")
    A("v_add_u32 %s, s4, %s" % (v(vK), v(vK)))
    A("v_lshlrev_b32 %s, 5, v6" % v(vU))
    A("v_lshl_add_u32 %s, v7, 4, %s" % (v(vU), v(vU)))
    A("v_add_u32 %s, s69, %s" % (v(vU), v(vU)))
    for i in range(4):
        A("s_waitcnt vmcnt(%d)" % (3 - i))
        A("ds_write_b128 v5, %s offset:%d" % (v(232 + 4 * i, 4), AUX_U + 512 + 1024 * i))
    A("s_waitcnt lgkmcnt(0)")
    A.ts(9)
    epi_wait(A)
    A("s_setprio %d" % OPT.get("pc", 3))
    A.ts(7)
    lg = Cnt(A, "lgkmcnt", 15)

    def rdA(ph, p):
        r = AF + 32 * (ph & 1) + 4 * p
        off = 64 * (7 - ph) + 512 * (7 - p)
        A("ds_read_b64 %s, %s offset:%d" % (v(r, 2), v(vK), off))
        lg.issue(("a0", ph, p))
        A("ds_read_b64 %s, %s offset:%d" % (v(r + 2, 2), v(vK), off + 8))
        lg.issue(("a", ph, p))

    def rdB(ph, m):
        r = BF + 32 * (ph & 1) + 4 * m
        A("ds_read_b128 %s, %s offset:%d" % (v(r, 4), v(vU), AUX_U + 480 - 64 * ph + 512 * m))
        lg.issue(("b", ph, m))
    def reads(ph):
        L = []
        for i in range(8):
            L.append((rdA, ph, i))
            L.append((rdB, ph, i))
        return L
    pairs = sorted([(p, m) for p in range(8) for m in range(8) if p + m <= 7], key=lambda x: (max(x), x))
    pend = reads(0)
    for _ in range(8):
        f, a1, a2 = pend.pop(0)
        f(a1, a2)
    seen = set()
    for ph in range(8):
        if ph + 1 < 8:
            pend += reads(ph + 1)
        for n, (p, m) in enumerate(pairs):
            while any((f is rdA and a1 == ph and a2 == p) or (f is rdB and a1 == ph and a2 == m) for (f, a1, a2) in pend):
                f, a1, a2 = pend.pop(0)
                f(a1, a2)
            lg.wait(("a", ph, p))
            lg.wait(("b", ph, m))
            q = p + m
            cin = v(ACC + 4 * q, 4) if q in seen else "0"
            seen.add(q)
            A("v_mfma_f32_16x16x32_bf16 %s, %s, %s, %s" % (v(ACC + 4 * q, 4), v(AF + 32 * (ph & 1) + 4 * p, 4), v(BF + 32 * (ph & 1) + 4 * m, 4), cin))
            if pend and (n & 1) == 0 and len(lg.q) <= 12:
                f, a1, a2 = pend.pop(0)
                f(a1, a2)
    A.ts(10)
    A("v_lshlrev_b32 v8, 5, v6")
    A("v_lshl_add_u32 v8, v7, 3, v8")
    A("v_add_u32 v8, s69, v8")
    A("s_nop 7")
    for q in range(8):
        A("v_cvt_pk_bf16_f32 %s, %s, %s" % (v(16 + 2 * q), v(ACC + 4 * q), v(ACC + 4 * q + 1)))
        A("v_cvt_pk_bf16_f32 %s, %s, %s" % (v(17 + 2 * q), v(ACC + 4 * q + 2), v(ACC + 4 * q + 3)))
        A("ds_write_b64 v8, %s offset:%d" % (v(16 + 2 * q, 2), AUX_U + 512 + 512 * q))
    A("s_waitcnt lgkmcnt(0)")
    for i in range(4):
        A("ds_read_b128 %s, v5 offset:%d" % (v(32 + 4 * i, 4), AUX_U + 512 + 1024 * i))
    A("v_lshlrev_b32 v4, 4, v1")
    A("s_lshl_b32 s4, s68, 12")
    A("s_add_u32 s4, s4, 0x%x" % WS_AT)
    for i in range(4):
        A("s_waitcnt lgkmcnt(%d)" % (3 - i))
        A("buffer_store_dwordx4 %s, v4, s[48:51], s4 offen offset:%d%s" % (v(32 + 4 * i, 4), 1024 * i, SC1))
    A.ts(11)


PBUF = 8192


def pprep(A):
    srd(A, 52, P_X, 2048 * 640 * 2)
    A("s_sub_u32 s8, s3, 4")
    A("v_lshrrev_b32 v2, 3, v1")
    A("v_and_b32 v3, 7, v1")
    A("v_lshlrev_b32 v4, 12, v2")
    A("v_lshl_add_u32 v4, v3, 4, v4")
    A("s_mul_i32 s4, s63, 80")
    A("s_lshl_b32 s5, s8, 5")
    A("s_add_u32 s4, s4, s5")
    A("s_lshl_b32 s6, s4, 12")
    A("s_lshl_b32 s5, s62, 7")
    A("s_add_u32 s6, s6, s5")
    A("s_add_u32 s6, s6, 0x%x" % WS_AT)
    A("v_lshrrev_b32 v5, 2, v1")
    A("v_and_b32 v6, 3, v1")
    A("v_mul_u32_u24 v7, 1280, v5")
    A("v_lshl_add_u32 v7, v6, 4, v7")
    A("s_mul_i32 s7, s62, %d" % (64 * 1280))
    A("s_lshl_b32 s5, s4, 1")
    A("s_add_u32 s7, s7, s5")
    for i in range(4):
        A("buffer_load_dwordx4 %s, v7, s[52:55], s7 offen" % v(32 + 4 * i, 4))
        A("s_add_u32 s7, s7, %d" % (16 * 1280))
    return


def pprep2(A):
    AROW = 144
    XROW = 80
    XOFF = 32 * AROW
    for i in range(4):
        A("buffer_load_dwordx4 %s, v4, s[48:51], s6 offen%s" % (v(16 + 4 * i, 4), SC1))
        A("s_add_u32 s6, s6, %d" % (8 * 4096))
    A("v_mul_u32_u24 v8, %d, v2" % AROW)
    A("v_lshl_add_u32 v8, v3, 4, v8")
    A("v_add_u32 v8, s69, v8")
    A("v_mul_u32_u24 v9, %d, v5" % XROW)
    A("v_lshl_add_u32 v9, v6, 4, v9")
    A("v_add_u32 v9, s69, v9")
    A("s_waitcnt vmcnt(4)")
    for i in range(4):
        A("ds_write_b128 v9, %s offset:%d" % (v(32 + 4 * i, 4), XOFF + 16 * XROW * i))
    for i in range(4):
        A("s_waitcnt vmcnt(%d)" % (3 - i))
        A("ds_write_b128 v8, %s offset:%d" % (v(16 + 4 * i, 4), 8 * AROW * i))
    A("v_lshrrev_b32 v10, 2, v1")
    A("v_mul_u32_u24 v10, %d, v10" % AROW)
    A("v_lshl_add_u32 v10, v6, 3, v10")
    A("v_add_u32 v10, s69, v10")
    A("v_and_b32 v11, 15, v1")
    A("v_mul_u32_u24 v11, %d, v11" % XROW)
    A("v_lshrrev_b32 v12, 4, v1")
    A("v_lshl_add_u32 v11, v12, 3, v11")
    A("v_add_u32 v11, s69, v11")
    A("v_lshlrev_b32 v12, 4, v1")
    A("v_add_u32 v12, s69, v12")
    A("s_waitcnt lgkmcnt(0)")
    for c in range(2):
        for st in range(4):
            r = 16 + 16 * c + 4 * st
            A("ds_read_b64_tr_b16 %s, v10 offset:%d" % (v(r, 2), 16 * AROW * c + 32 * st))
            A("ds_read_b64 %s, v11 offset:%d" % (v(r + 2, 2), XOFF + 16 * XROW * st + 32 * c))
        A("s_waitcnt lgkmcnt(0)")
    for c in range(2):
        for st in range(4):
            r = 16 + 16 * c + 4 * st
            o = 48 + 8 * (st & 1)
            for e in range(2):
                A("v_lshlrev_b32 %s, 16, %s" % (v(o + 2 * e), v(r + e)))
                A("v_and_b32 %s, 0xffff0000, %s" % (v(o + 2 * e + 1), v(r + e)))
                A("v_lshlrev_b32 %s, 16, %s" % (v(o + 4 + 2 * e), v(r + 2 + e)))
                A("v_and_b32 %s, 0xffff0000, %s" % (v(o + 4 + 2 * e + 1), v(r + 2 + e)))
            for e in range(4):
                A("v_add_f32 %s, %s, %s" % (v(o + e), v(o + e), v(o + 4 + e)))
            A("v_cvt_pk_bf16_f32 %s, %s, %s" % (v(o + 4), v(o), v(o + 1)))
            A("v_cvt_pk_bf16_f32 %s, %s, %s" % (v(o + 5), v(o + 2), v(o + 3)))
            for e in range(2):
                A("v_lshlrev_b32 %s, 16, %s" % (v(o + 2 * e), v(o + 4 + e)))
                A("v_and_b32 %s, 0xffff0000, %s" % (v(o + 2 * e + 1), v(o + 4 + e)))
            A("ds_write_b128 v12, %s offset:%d" % (v(o, 4), PBUF + 1024 * (4 * c + st)))
    A("s_waitcnt lgkmcnt(0)")


def gemm2(A):
    ACC = 176
    vH, vL, vWo, vC = 12, 16, G_vXo, G_vC
    pool = list(range(24, ACC, 4))
    lg = Cnt(A, "lgkmcnt", 15)
    vm = Cnt(A, "vmcnt", 63)
    rot2(A, 4)
    A("s_mul_i32 s12, s63, 48")
    A("s_mul_i32 s5, s3, 12")
    A("s_add_u32 s12, s12, s5")
    A("s_mul_i32 s12, s12, 5120")
    A("s_add_u32 s12, s12, 0x%x" % WS_WD)
    A("s_add_u32 s13, s12, %d" % (12 * 5120))
    A("s_mul_i32 s5, s4, 5120")
    A("s_add_u32 s11, s12, s5")
    A("s_mul_i32 s8, s62, %d" % (192 * 1024))
    A("s_mul_i32 s5, s3, %d" % (24 * 1024))
    A("s_add_u32 s8, s8, s5")
    A("s_add_u32 s8, s8, 0x%x" % WS_HF)
    A("s_add_u32 s14, s8, %d" % (24 * 1024))
    A("s_lshl_b32 s5, s4, 11")
    A("s_add_u32 s9, s8, s5")
    A("v_lshlrev_b32 %s, 4, v1" % v(vWo))
    A("v_add_u32 v20, 4096, %s" % v(vWo))
    lds_wait(A, C_GO, "lg", 0, 10, vC, "s10")
    Wr, Hr = {}, {}

    def wadv(n):
        A("s_add_u32 s11, s11, %d" % (5120 * n))
        A("s_cmp_ge_u32 s11, s13")
        A("s_cselect_b32 s4, %d, 0" % (12 * 5120))
        A("s_sub_u32 s11, s11, s4")

    def wload(j, ct):
        r = Wr[(j, ct)] = pool.pop(0)
        if ct < 4:
            A("buffer_load_dwordx4 %s, %s, s[48:51], s11 offen offset:%d%s" % (v(r, 4), v(vWo), 1024 * ct, LSC))
        else:
            A("buffer_load_dwordx4 %s, v20, s[48:51], s11 offen%s" % (v(r, 4), LSC))
        vm.issue(("w", j, ct))
        if ct == 4 and j < 11:
            wadv(1 + (NL2 if j == NR2 - 1 else 0))

    def hload(j, q):
        r = Hr[(j, q)] = pool.pop(0)
        A("buffer_load_dwordx4 %s, %s, s[48:51], s9 offen%s" % (v(r, 4), v(vH + q), LSC))
        vm.issue(("h", j, q))
        if q == 3 and j < 11:
            A("s_add_u32 s9, s9, 2048")
            A("s_cmp_ge_u32 s9, s14")
            A("s_cselect_b32 s9, s8, s9")
    for j in range(NR2):
        for ct in range(5):
            wload(j, ct)
    prog(A, 21)
    A("v_lshrrev_b32 v9, 4, v1")
    A("v_and_b32 v10, 15, v1")
    A("v_lshlrev_b32 v10, 4, v10")
    A("v_lshl_add_u32 v10, v9, 9, v10")
    for q in range(4):
        A("s_xor_b32 s4, s3, %d" % q)
        A("s_lshr_b32 s5, s4, 1")
        A("s_mul_i32 s5, s5, %d" % (96 * 1024))
        A("s_and_b32 s4, s4, 1")
        A("s_lshl_b32 s4, s4, 8")
        A("s_add_u32 s4, s4, s5")
        A("v_add_u32 %s, s4, v10" % v(vH + q))

    def area(sd, wreg, jl):
        A("s_mov_b32 %s, %d" % (s(sd), G2SLOT[2 * jl][1]))
        A("s_cmp_lt_u32 %s, 2" % s(wreg))
        A("s_cselect_b32 %s, %s, %d" % (s(sd), s(sd), G2SLOT[2 * jl + 1][1]))
        A("s_bitcmp1_b32 %s, 0" % s(wreg))
        A("s_cselect_b32 s7, 5120, 0")
        A("s_add_u32 %s, %s, s7" % (s(sd), s(sd)))
    for jl in range(4):
        area(4, 3, jl)
        A("v_add_u32 %s, s4, %s" % (v(vL + jl), v(vWo)))
    A("v_lshlrev_b32 v9, 7, v1")
    A("s_lshl_b32 s6, s62, 2")
    A("s_add_u32 s6, s6, s3")
    A("s_lshl_b32 s6, s6, 10")
    A("s_add_u32 s6, s6, 0x%x" % FL_H)
    setexec(A, 0xff)
    poll_flags(A, [(21, 1, 9, 6, 0)], [21], 10, OPT.get("sl", 2))
    A("s_mov_b64 exec, -1")
    vm.q = []
    A.ts(12)
    queue = []
    for j in range(12):
        queue += [(hload, j, q) for q in range(4)]
        if j >= NR2 + NL2:
            queue += [(wload, j, ct) for ct in range(5)]

    def fill(n):
        while queue and pool and n > 0:
            f, j, x = queue.pop(0)
            f(j, x)
            n -= 1
    fill(99)
    full_wait(A, 20 + 2 * NL2 - 1, False)
    LB = [Wr[(0, ct)] for ct in range(5)]

    def lread(j, ct):
        Wr[(j, ct)] = LB[ct]
        A("ds_read_b128 %s, %s offset:%d" % (v(LB[ct], 4), v(vL + j - NR2), 1024 * ct))
        lg.issue(("w", j, ct))
    for j in range(12):
        for ct in range(5):
            lg.wait(("w", j, ct))
            vm.wait(("w", j, ct))
            for q in range(4):
                vm.wait(("h", j, q))
                if j == 0 and ct == 0 and q == 0:
                    A.ts(13)
                d = ACC + 20 * q + 4 * ct
                cin = "0" if j == 0 else v(d, 4)
                A("v_mfma_f32_16x16x32_bf16 %s, %s, %s, %s" % (v(d, 4), v(Wr[(j, ct)], 4), v(Hr[(j, q)], 4), cin))
                if ct == 4:
                    pool.append(Hr[(j, q)])
                if q & 1:
                    fill(1)
            if j == 0:
                lread(NR2, ct)
            elif NR2 <= j < NR2 + NL2 - 1:
                lread(j + 1, ct)
            else:
                pool.append(Wr[(j, ct)])
    assert not queue
    A.ts(14)
    for q in range(1, 4):
        A("s_xor_b32 s5, s3, %d" % q)
        area(4, 5, q)
        A("v_add_u32 %s, s4, %s" % (v(vH + q), v(vWo)))
    for q in range(1, 4):
        for ct in range(5):
            A("ds_write_b128 %s, %s offset:%d" % (v(vL + q), v(ACC + 20 * q + 4 * ct, 4), 1024 * ct))
    A("s_mov_b32 s5, s3")
    A("s_lshl_b32 s6, s5, 10")
    A("s_add_u32 s6, s6, %d" % (AUX0 + PBUF))
    A("v_add_u32 %s, s6, %s" % (v(vH), v(vWo)))
    srd(A, 52, P_OUT, 2048 * 640 * 2)
    OROW = 176
    area(4, 3, 0)
    A("v_and_b32 v9, 15, v1")
    A("v_mul_u32_u24 v9, %d, v9" % OROW)
    A("v_lshrrev_b32 v10, 4, v1")
    A("v_lshl_add_u32 v9, v10, 3, v9")
    A("v_add_u32 v9, s4, v9")
    for p in range(3):
        A("v_add_u32 v22, %d, v1" % (64 * p))
        A("v_mul_u32_u24 v23, 52429, v22")
        A("v_lshrrev_b32 v23, 19, v23")
        A("v_mul_u32_u24 v24, 10, v23")
        A("v_sub_u32 v22, v22, v24")
        A("v_lshlrev_b32 v22, 4, v22")
        A("v_mul_u32_u24 v24, %d, v23" % OROW)
        A("v_add3_u32 %s, v24, v22, s4" % v(26 + p))
        A("v_mul_u32_u24 v24, 1280, v23")
        A("v_add_u32 %s, v24, v22" % v(30 + p))
    A("s_lshl_b32 s6, s62, 2")
    A("s_add_u32 s6, s6, s5")
    A("s_mul_i32 s6, s6, %d" % (16 * 1280))
    A("s_mul_i32 s7, s63, 160")
    A("s_add_u32 s6, s6, s7")
    A("s_waitcnt lgkmcnt(0)")
    A("s_barrier")
    R = 96
    lg.q = []
    for ct in range(5):
        for q in range(4):
            off = 1024 * ct if q else (ct >> 1) * AUXSZ + 4096 * (ct & 1)
            A("ds_read_b128 %s, %s offset:%d" % (v(R + 16 * ct + 4 * q, 4), v(vH + q), off))
            lg.issue((ct, q))
    for ct in range(5):
        lg.wait((ct, 3))
        d, r = ACC + 4 * ct, R + 16 * ct
        for h in (0, 2):
            A("v_pk_add_f32 %s, %s, %s" % (v(d + h, 2), v(d + h, 2), v(r + 4 + h, 2)))
            A("v_pk_add_f32 %s, %s, %s" % (v(r + 8 + h, 2), v(r + 8 + h, 2), v(r + 12 + h, 2)))
        for h in (0, 2):
            A("v_pk_add_f32 %s, %s, %s" % (v(d + h, 2), v(d + h, 2), v(r + 8 + h, 2)))
        for h in (0, 2):
            A("v_pk_add_f32 %s, %s, %s" % (v(d + h, 2), v(d + h, 2), v(r + h, 2)))
        A("v_cvt_pk_bf16_f32 %s, %s, %s" % (v(64 + 2 * ct), v(d), v(d + 1)))
        A("v_cvt_pk_bf16_f32 %s, %s, %s" % (v(65 + 2 * ct), v(d + 2), v(d + 3)))
        A("ds_write_b64 v9, %s offset:%d" % (v(64 + 2 * ct, 2), 32 * ct))
        lg.issue(("o", ct))
    A("s_waitcnt lgkmcnt(0)")
    for p in range(3):
        A("ds_read_b128 %s, %s" % (v(80 + 4 * p, 4), v(26 + p)))
    for p in range(3):
        A("s_waitcnt lgkmcnt(%d)" % (2 - p))
        if p == 2:
            A("s_mov_b32 exec_hi, 0")
        A("buffer_store_dwordx4 %s, %s, s[52:55], s6 offen" % (v(80 + 4 * p, 4), v(30 + p)))
    A("s_mov_b64 exec, -1")
    A.ts(15)


def aux_ids(A):
    A("s_sub_u32 s4, s3, 4")
    A("s_lshr_b32 s5, s2, 3")
    A("s_mul_i32 s5, s5, 3")
    A("s_add_u32 s5, s5, s4")
    A("s_and_b32 s68, s2, 7")
    A("s_mul_i32 s68, s68, 80")
    A("s_add_u32 s68, s68, s5")
    A("s_cmp_ge_u32 s5, 80")
    A("s_cselect_b32 s68, 640, s68")
    A("s_mul_i32 s69, s4, %d" % AUXSZ)
    A("s_add_u32 s69, s69, %d" % AUX0)
    A("s_mul_i32 s66, s4, %d" % STGP)
    A("s_add_u32 s66, s66, %d" % STG0)


def kdesc(name):
    return """.amdhsa_kernel %s
  .amdhsa_next_free_vgpr 256
  .amdhsa_next_free_sgpr 102
  .amdhsa_accum_offset 256
  .amdhsa_group_segment_fixed_size 0
  .amdhsa_kernarg_size 128
  .amdhsa_user_sgpr_count 2
  .amdhsa_user_sgpr_kernarg_segment_ptr 1
  .amdhsa_system_sgpr_workgroup_id_x 1
.end_amdhsa_kernel
""" % name


def build_fused():
    A = Asm()
    name = NAME + "_kernel"
    prologue(A, name, 0)
    st0 = list(A.stamps)
    laux, lload = A.newl("Laux"), A.newl("Lload")
    A("s_cmp_eq_u32 s3, 7")
    A("s_cbranch_scc1 %s" % lload)
    A("s_cmp_ge_u32 s3, 4")
    A("s_cbranch_scc1 %s" % laux)
    A("s_setprio %d" % OPT.get("pg", 2))
    if not OPT.get("gemmoff"):
        gemm1(A)
        if not OPT.get("g1only"):
            gemm2(A)
    else:
        ready(A)
    A.end()
    A.label(lload)
    A.stamps = list(st0)
    A("s_setprio %d" % OPT.get("pl", 1))
    loader1_setup(A)
    if OPT.get("cnt"):
        A.stamps += [11, 14]
    loader_run(A, 0, NB1 if OPT.get("g1only") else NB1 + 2 * NL2)
    A("s_waitcnt vmcnt(0) lgkmcnt(0)")
    A.ts(4)
    A.end()
    A.label(laux)
    A.stamps = list(st0)
    lpp, ln, lnc, l6 = A.newl("Lpp"), A.newl("Lnn"), A.newl("Lnc"), A.newl("L6")
    B = 64
    aux_ids(A)
    kgen_setup(A, B)

    def early(A):
        sk = A.newl("Le")
        A("s_cmp_lg_u32 s68, 0")
        A("s_cbranch_scc1 %s" % ln)
        A("s_memrealtime s[4:5]")
        A("s_waitcnt lgkmcnt(0)")
        A("s_or_b32 s4, s4, 1")
        A("v_mov_b32 v2, 0")
        A("v_mov_b32 v3, s4")
        A("s_mov_b64 exec, 1")
        A("global_store_dword v2, v3, %s sc1" % s(P_DBG, 2))
        A("s_mov_b64 exec, -1")
        A.label(ln)
        A("s_cmp_ge_u32 s68, 640")
        A("s_cbranch_scc1 %s" % sk)
        kgen_issue(A)
        A.label(sk)
    A("s_setprio 2")
    ready(A, early)
    if OPT.get("auxoff"):
        A("s_endpgm")
    A("s_cmp_ge_u32 s68, 640")
    A("s_cbranch_scc1 %s" % lnc)
    A("s_waitcnt vmcnt(0)")
    A.ts(1)
    kgen_params(A, B)
    DT = B + KB_DT
    A("v_mul_f32 %s, %s, v58" % (v(DT), fbits(LOG2E)))
    A("v_exp_f32 %s, %s" % (v(DT), v(DT)))
    A("s_nop 0")
    A("v_cvt_pk_bf16_f32 %s, %s, %s" % (v(DT), v(DT), v(DT)))
    A("v_and_b32 %s, 0xffff0000, %s" % (v(DT), v(DT)))
    A("s_setprio %d" % OPT.get("pa", 0))
    A("s_waitcnt lgkmcnt(0)")
    kgen_chunk(A, B, 0, OPT.get("pkc", 0), True)
    A.ts(3)
    kgen_chunk(A, B, 1, False, False)
    nonce_lds(A, 4)
    A.ts(5)
    def jobs(A):
        a, c = A.newl("Lj"), A.newl("Lj")
        A("s_cmp_eq_u32 s3, 4")
        A("s_cbranch_scc1 %s" % c)
        A("s_cmp_eq_u32 s3, 5")
        A("s_cbranch_scc1 %s" % a)
        colsum_gather(A)
        A("s_branch %s" % c)
        A.label(a)
        poll_all(A)
        A.label(c)
    if OPT.get("jobmid", 0):
        kgen_chunk(A, B, 2, False, False, jobs)
    else:
        kgen_chunk(A, B, 2, False, False)
        jobs(A)
    kgen_expand(A, B + KB_ACC)
    A.ts(8)
    if OPT.get("g1only"):
        A.end()
    conv(A)
    A("s_lshl_b32 s6, s68, 7")
    A("s_add_u32 s6, s6, 0x%x" % FL_A)
    A("s_waitcnt vmcnt(0)")
    signal(A, 6, 10)
    A("s_branch %s" % lpp)
    A.label(lnc)
    A("s_setprio 0")
    nonce_lds(A, 4)
    if OPT.get("g1only"):
        A.end()
    prog_wait(A, 4, 12, 8)
    aggregate(A)
    prog_wait(A, 11, 12, 8)
    jobs(A)
    prog_wait(A, 22, 12, 8)
    A.label(lpp)
    A.ts(12)
    pprep(A)
    A("v_lshlrev_b32 v13, 7, v1")
    A("s_lshl_b32 s9, s4, 7")
    A("s_add_u32 s9, s9, 0x%x" % FL_A)
    A("s_cmp_eq_u32 s3, 6")
    A("s_cselect_b32 exec_lo, 0xffff, -1")
    A("s_mov_b32 exec_hi, 0")
    poll_flags(A, [(14, 1, 13, 9, 0)], [14], 15, OPT.get("asl", 6))
    A("s_mov_b64 exec, -1")
    A.ts(13)
    pprep2(A)
    A.ts(14)
    A.end()
    hdr = "; @launch grid=(256,1,1) block=(512,1,1) lds=%d\n" % LDS_TOTAL
    return hdr, A, [name]


def main():
    hdr, A, names = build_fused()
    out = "; generated by gen.py (hand-written generator)\n" + hdr
    out += '.amdgcn_target "amdgcn-amd-amdhsa--gfx950"\n.text\n'
    out += "\n".join(A.L) + "\n"
    out += '.section .rodata,"a"\n'
    for n in names:
        out += ".p2align 6\n" + kdesc(n)
    open(sys.argv[1], "w").write(out)


main()
```

```python
import sys, math, struct

NAME = "parallel_sum__ssm_conv_s4__swiglu_ffn__prompt"
OPT = dict(ts=False)
for a in sys.argv[2:]:
    k, _, v = a.partition("=")
    OPT[k] = int(v) if v else True

WS_ST = 0x000000
WS_CS = 0x010000
WS_XT = 0x280000
WS_HF = 0x500000
WS_AT = 0xB00000
WS_FL = 0xD80000
WS_TS = 0xE00000
WS_WD = 0x1000000
WS_SIZE = 0x1200000
FL_X = WS_FL
FL_Y = WS_FL + 0x8000
FL_H = WS_FL + 0x10000
FL_A = WS_FL + 0x40000

UPOFF = 3088
SLOT1 = 6176
U1 = 2 * SLOT1
U2 = 10240
CTRL = 0
C_FULL, C_NONCE, C_PROG, C_EPI, C_CSOK, C_CNT, C_GO = 0, 4, 16, 32, 60, 80, 84
CSUM = CTRL + 128
FLG = CSUM + 768 + 256
MAIN = FLG + 256
KSTR = 4160
AUX_U = 4 * KSTR
AUXSZ = AUX_U + 4608
LDS_TOTAL = 163840
AUX0 = LDS_TOTAL - 3 * AUXSZ
ER = 112
STGSZ = 64 * ER
LNROW = 1312
NW, NXC = 6, 4
XRING = MAIN + 3 * U1
STG0 = AUX0 + 5184
STGP = STGSZ + U1
WADDR = [MAIN, MAIN + U1, MAIN + 2 * U1] + [STG0 + j * STGP + STGSZ for j in range(3)]
assert XRING + NXC * 16384 <= STG0 and WADDR[5] + U1 == LDS_TOTAL
for j in range(3):
    assert AUX0 + j * AUXSZ <= STG0 + j * STGP and STG0 + j * STGP + STGSZ <= AUX0 + (j + 1) * AUXSZ
CONV_PROG = 17


def WSLOT(u):
    return WADDR[(u + 1) % NW]


def XSLOT(c):
    return XRING + ((9 - c) % NXC) * 16384


LNST = XSLOT(3)
NS2 = 9
NL2 = 4
NR2 = OPT.get("nr2", 4)


def _g2slots():
    areas = [(WSLOT(u), WSLOT(u) + U1, u + 1) for u in range(20 - NW, 20)]
    areas += [(XSLOT(c), XSLOT(c) + 16384, 2 * c + 2) for c in range(10 - NXC, 10)]
    out = []
    for i in range(NS2):
        lo = AUX0 - (i + 1) * U2
        assert lo >= MAIN
        out.append((max(n for (a, b, n) in areas if a < lo + U2 and lo < b), lo))
    return sorted(out)


G2SLOT = _g2slots()

LOG2E = 1.4426950408889634
BUD, NON = "s0", "s1"

def fbits(x):
    return "0x%08x" % struct.unpack("<I", struct.pack("<f", x))[0]


def v(i, n=1):
    return "v%d" % i if n == 1 else "v[%d:%d]" % (i, i + n - 1)


def s(i, n=1):
    return "s%d" % i if n == 1 else "s[%d:%d]" % (i, i + n - 1)


class Cnt:
    def __init__(self, A, name, mx):
        self.A, self.name, self.mx, self.q = A, name, mx, []

    def issue(self, tag):
        self.q.append(tag)

    def wait(self, tag):
        if tag not in self.q:
            return
        i = len(self.q) - 1 - self.q[::-1].index(tag)
        n = len(self.q) - 1 - i
        self.A("s_waitcnt %s(%d)" % (self.name, min(n, self.mx)))
        self.q = self.q[i + 1:]

    def drain(self):
        self.A("s_waitcnt %s(0)" % self.name)
        self.q = []


class Asm:
    def __init__(self):
        self.L = []
        self.nl = 0
        self.stamps = []
        self.cold = []

    def flush_cold(self):
        for f in self.cold:
            f()
        self.cold = []

    def __call__(self, t):
        self.L.append("  " + t)

    def label(self, l):
        self.L.append(l + ":")

    def newl(self, p="L"):
        self.nl += 1
        return "%s_%d" % (p, self.nl)

    def c(self, t):
        self.L.append("  ; " + t)

    def ts(self, slot):
        if OPT["ts"]:
            self("%s %s" % ("s_memtime" if OPT.get("cyc") else "s_memrealtime", s(70 + 2 * slot, 2)))
            self.stamps.append(slot)

    def end(self):
        if OPT.get("probe") is not None and self.stamps:
            if OPT["probe"] in self.stamps:
                sk, lp = self.newl("Lpr"), self.newl("Lpl")
                self("s_waitcnt lgkmcnt(0)")
                self("s_cmp_lg_u32 s2, 17")
                self("s_cbranch_scc1 %s" % sk)
                self("s_cmp_lg_u32 s3, %d" % OPT.get("probew", 0))
                self("s_cbranch_scc1 %s" % sk)
                self("s_sub_u32 s4, %s, s70" % s(70 + 2 * OPT["probe"]))
                self("s_lshl_b32 s4, s4, 2")
                self("s_add_u32 s4, s4, 3000")
                self.label(lp)
                self("s_memrealtime s[6:7]")
                self("s_waitcnt lgkmcnt(0)")
                self("s_sub_u32 s6, s6, s70")
                self("s_cmp_lt_u32 s6, s4")
                self("s_cbranch_scc1 %s" % lp)
                self.label(sk)
        elif OPT.get("dbgts") is not None and self.stamps:
            sk = self.newl("Ldt")
            self("s_waitcnt lgkmcnt(0)")
            self("s_cmp_lg_u32 s2, %d" % OPT.get("dbgwg", 17))
            self("s_cbranch_scc1 %s" % sk)
            self("s_cmp_lg_u32 s3, %d" % OPT["dbgts"])
            self("s_cbranch_scc1 %s" % sk)
            self("s_mov_b64 exec, 1")
            self("v_mov_b32 v2, 0")
            for sl in self.stamps:
                if sl == 0:
                    continue
                self("s_sub_u32 s4, %s, s70" % s(70 + 2 * sl))
                self("v_mov_b32 v0, s4")
                self("global_store_dword v2, v0, %s offset:%d" % (s(44, 2), 4 * sl))
            self.label(sk)
        elif OPT["ts"] and self.stamps:
            self("s_waitcnt lgkmcnt(0)")
            self("s_mov_b64 exec, 1")
            self("s_lshl_b32 s4, s2, 3")
            self("s_add_u32 s4, s4, s3")
            self("s_lshl_b32 s4, s4, 7")
            self("s_add_u32 s4, s4, 0x%x" % WS_TS)
            self("v_mov_b32 v2, 0")
            for sl in self.stamps:
                self("v_mov_b32 v0, %s" % s(70 + 2 * sl))
                self("v_mov_b32 v1, %s" % s(71 + 2 * sl))
                self("buffer_store_dwordx2 v[0:1], v2, s[48:51], s4 offen offset:%d" % (8 * sl))
                self("s_nop 1")
        self("s_endpgm")
        self.flush_cold()


P_X, P_ARE, P_AIM, P_BRE, P_BIM, P_CRE, P_CIM, P_LDT, P_DSK, P_BX, P_WG, P_WU, P_WD, P_OUT, P_DBG, P_WS = [16 + 2 * i for i in range(16)]
SC1 = " sc1"
LSC = " sc1"


def srd(A, d, ptr, size):
    A("s_mov_b32 %s, %s" % (s(d), s(ptr)))
    A("s_mov_b32 %s, %s" % (s(d + 1), s(ptr + 1)))
    A("s_mov_b32 %s, 0x%x" % (s(d + 2), size))
    A("s_mov_b32 %s, 0x20000" % s(d + 3))


def prologue(A, name, tsslot):
    A.L.append(".globl %s" % name)
    A.L.append(".p2align 8")
    A.L.append(".type %s,@function" % name)
    A.label(name)
    A.stamps = []
    ok = A.newl("Lgo")
    A("s_cmp_lt_u32 s2, 256")
    A("s_cbranch_scc1 %s" % ok)
    A.exit = A.newl("Lexit")
    A.label(A.exit)
    A("s_endpgm")
    A.label(ok)
    A("s_load_dwordx16 s[16:31], s[0:1], 0")
    A("s_load_dwordx16 s[32:47], s[0:1], 64")
    if OPT["ts"]:
        for i in range(16):
            A("s_mov_b64 %s, 0" % s(70 + 2 * i, 2))
    A.ts(tsslot)
    A("v_lshrrev_b32 v2, 6, v0")
    A("v_and_b32 v1, 63, v0")
    A("v_readfirstlane_b32 s3, v2")
    A("v_and_b32 v2, 31, v0")
    A("v_lshlrev_b32 v2, 2, v2")
    A("v_add_u32 v2, %d, v2" % CTRL)
    A("v_mov_b32 v3, 0")
    A("ds_write_b32 v2, v3")
    A("v_lshlrev_b32 v2, 2, v1")
    A("v_mov_b32 v3, 1")
    A("ds_write_b32 v2, v3 offset:%d" % FLG)
    map_g1(A)
    map_g2(A)


def ready(A, early=None):
    A("s_waitcnt lgkmcnt(0)")
    if early:
        early(A)
    A("s_barrier")
    A("s_mov_b32 %s, 0x40000" % BUD)
    srd(A, 48, P_WS, WS_SIZE)


def tlb_warm(A, vt):
    ptrs = [P_X, P_WG, P_WU, P_ARE, P_AIM, P_BRE, P_BIM, P_CRE, P_CIM, P_LDT, P_DSK, P_WD, P_DBG, P_WS]
    A("v_mov_b32 %s, %s" % (v(vt), s(P_X)))
    A("v_mov_b32 %s, %s" % (v(vt + 1), s(P_X + 1)))
    for i, p in enumerate(ptrs):
        if i:
            A("v_writelane_b32 %s, %s, %d" % (v(vt), s(p), i))
            A("v_writelane_b32 %s, %s, %d" % (v(vt + 1), s(p + 1), i))
    A("s_mov_b64 exec, 0x%x" % ((1 << len(ptrs)) - 1))
    A("global_load_dword %s, %s, off" % (v(vt + 2), v(vt, 2)))
    A("s_mov_b64 exec, -1")


def guard(A):
    A("s_sub_u32 %s, %s, 1" % (BUD, BUD))
    A("s_cbranch_scc1 %s" % A.exit)


def map_g1(A):
    A("s_and_b32 s4, s2, 7")
    A("s_lshr_b32 s5, s2, 3")
    A("s_and_b32 s60, s4, 1")
    A("s_lshl_b32 s60, s60, 3")
    A("s_and_b32 s6, s5, 7")
    A("s_add_u32 s60, s60, s6")
    A("s_lshr_b32 s61, s4, 1")
    A("s_lshl_b32 s61, s61, 2")
    A("s_lshr_b32 s6, s5, 3")
    A("s_add_u32 s61, s61, s6")


def map_g2(A):
    A("s_and_b32 s4, s2, 7")
    A("s_lshr_b32 s5, s2, 3")
    if OPT.get("m2", 1) == 0:
        A("s_lshl_b32 s62, s4, 2")
        A("s_and_b32 s6, s5, 3")
        A("s_add_u32 s62, s62, s6")
        A("s_lshr_b32 s63, s5, 2")
    else:
        A("s_lshr_b32 s62, s4, 1")
        A("s_lshl_b32 s62, s62, 3")
        A("s_and_b32 s6, s5, 7")
        A("s_add_u32 s62, s62, s6")
        A("s_and_b32 s63, s4, 1")
        A("s_lshl_b32 s63, s63, 2")
        A("s_lshr_b32 s6, s5, 3")
        A("s_add_u32 s63, s63, s6")


def lds_wait(A, off, cmp, val, vF, vC, sF, have=False, sleep=1):
    ok, poll = A.newl("Lok"), A.newl("Lpoll")

    def loop():
        A.label(poll)
        guard(A)
        if OPT.get("cnt") and have:
            A("s_add_u32 s92, s92, 1")
        A("ds_read_b32 %s, %s offset:%d" % (v(vF), v(vC), off))
        A("s_waitcnt lgkmcnt(0)")
        A("v_readfirstlane_b32 %s, %s" % (sF, v(vF)))
        A("s_cmp_%s_u32 %s, %s" % (cmp, sF, val))
        A("s_cbranch_scc1 %s" % ok)
        A("s_sleep %d" % sleep)
        A("s_branch %s" % poll)
    if have:
        A("v_readfirstlane_b32 %s, %s" % (sF, v(vF)))
        A("s_cmp_%s_u32 %s, %s" % (cmp, sF, val))
        A("s_cbranch_scc0 %s" % poll)
        A.cold.append(loop)
    else:
        loop()
    A.label(ok)


def nonce_lds(A, vt):
    A("v_mov_b32 %s, %d" % (v(vt + 1), CTRL))
    lds_wait(A, C_NONCE, "lg", 0, vt, vt + 1, NON)


def nonce_fetch(A, vt, issued=False):
    poll, chk = A.newl("Lnp"), A.newl("Lnc")
    if issued:
        A("s_branch %s" % chk)
    A.label(poll)
    guard(A)
    A("v_mov_b32 %s, 0" % v(vt))
    A("global_load_dword %s, %s, %s sc1" % (v(vt), v(vt), s(P_DBG, 2)))
    A.label(chk)
    A("s_waitcnt vmcnt(0)")
    A("v_readfirstlane_b32 %s, %s" % (NON, v(vt)))
    A("s_cmp_lg_u32 %s, 0" % NON)
    A("s_cbranch_scc0 %s" % poll)
    A("v_mov_b32 %s, %d" % (v(vt + 1), CTRL))
    A("ds_write_b32 %s, %s offset:%d" % (v(vt + 1), v(vt), C_NONCE))


def signal(A, soff, vt):
    A("v_mov_b32 %s, 0" % v(vt))
    A("v_mov_b32 %s, %s" % (v(vt + 1), NON))
    A("s_mov_b64 exec, 1")
    A("buffer_store_dword %s, %s, s[48:51], %s offen sc1" % (v(vt + 1), v(vt), s(soff)))
    A("s_mov_b64 exec, -1")


def poll_flags(A, loads, tags, vt, sleep=2):
    top, done = A.newl("Lgp"), A.newl("Lgd")
    A.label(top)
    guard(A)
    for (r, n, vo, so, imm) in loads:
        op = {1: "dword", 2: "dwordx2", 4: "dwordx4"}[n]
        A("buffer_load_%s %s, %s, s[48:51], %s offen offset:%d sc1" % (op, v(r, n), v(vo), s(so), imm))
    A("s_waitcnt vmcnt(0)")
    tag_check(A, tags, vt, done)
    A("s_sleep %d" % sleep)
    A("s_branch %s" % top)
    A.label(done)


def tag_check(A, tags, vt, done):
    A("v_xor_b32 %s, %s, %s" % (v(vt), NON, v(tags[0])))
    for x in tags[1:]:
        A("v_xor_b32 %s, %s, %s" % (v(vt + 1), NON, v(x)))
        A("v_or_b32 %s, %s, %s" % (v(vt), v(vt), v(vt + 1)))
    A("v_cmp_ne_u32 s[4:5], 0, %s" % v(vt))
    A("s_cmp_eq_u64 s[4:5], 0")
    A("s_cbranch_scc1 %s" % done)


def setexec(A, m):
    A("s_mov_b32 exec_lo, 0x%x" % (m & 0xffffffff))
    A("s_mov_b32 exec_hi, 0x%x" % (m >> 32))


def poll_all(A):
    A("v_lshlrev_b32 v2, 7, v1")
    A("s_mov_b32 s6, 0x%x" % FL_Y)
    A("s_mov_b64 exec, 0xffff")
    poll_flags(A, [(6, 1, 2, 6, 0)], [6], 3, 4)
    A("s_mov_b64 exec, -1")
    A("v_mov_b32 v2, %d" % CTRL)
    A("v_mov_b32 v3, 1")
    A("ds_write_b32 v2, v3 offset:%d" % C_GO)


def aggregate(A):
    sk = A.newl("Lag")
    A("s_cmp_lt_u32 s2, 240")
    A("s_cbranch_scc1 %s" % sk)
    A("s_cmp_lg_u32 s3, 4")
    A("s_cbranch_scc1 %s" % sk)
    A("v_lshlrev_b32 v2, 7, v1")
    A("s_sub_u32 s7, s2, 240")
    A("s_lshl_b32 s6, s7, 11")
    A("s_add_u32 s6, s6, 0x%x" % FL_X)
    A("s_mov_b64 exec, 0xffff")
    poll_flags(A, [(6, 1, 2, 6, 0)], [6], 3, 4)
    A("s_mov_b64 exec, -1")
    A("s_lshl_b32 s6, s7, 7")
    A("s_add_u32 s6, s6, 0x%x" % FL_Y)
    signal(A, 6, 10)
    A.label(sk)


LN_X, LN_F, LN_T = 104, 144, 224


def ln_issue(A):
    T = LN_T
    A("v_lshrrev_b32 %s, 3, v1" % v(T))
    A("v_and_b32 %s, 7, v1" % v(T + 1))
    A("v_mul_u32_u24 %s, 1280, %s" % (v(T + 2), v(T)))
    A("v_lshl_add_u32 %s, %s, 4, %s" % (v(T + 2), v(T + 1), v(T + 2)))
    A("s_lshl_b32 s4, s60, 4")
    A("s_add_u32 s4, s4, s61")
    A("s_mul_i32 s4, s4, %d" % (8 * 1280))
    for i in range(10):
        A("buffer_load_dwordx4 %s, %s, s[52:55], s4 offen offset:%d" % (v(LN_X + 4 * i, 4), v(T + 2), 128 * i))


def red8(A, r):
    for m in ["quad_perm:[1,0,3,2]", "quad_perm:[2,3,0,1]", "row_half_mirror"]:
        A("s_nop 1")
        A("v_add_f32_dpp %s, %s, %s %s row_mask:0xf bank_mask:0xf" % (v(r), v(r), v(r), m))


def ln8(A):
    X, F, T = LN_X, LN_F, LN_T
    S0, S1, M, R = T + 4, T + 6, T + 8, T + 10
    for i in range(40):
        A("v_lshlrev_b32 %s, 16, %s" % (v(F + 2 * i), v(X + i)))
        A("v_and_b32 %s, 0xffff0000, %s" % (v(F + 2 * i + 1), v(X + i)))
    A("v_pk_add_f32 %s, %s, %s" % (v(S0, 2), v(F, 2), v(F + 2, 2)))
    A("v_pk_add_f32 %s, %s, %s" % (v(S1, 2), v(F + 4, 2), v(F + 6, 2)))
    for i in range(4, 40):
        d = S0 + 2 * (i & 1)
        A("v_pk_add_f32 %s, %s, %s" % (v(d, 2), v(d, 2), v(F + 2 * i, 2)))
    A("v_pk_add_f32 %s, %s, %s" % (v(S0, 2), v(S0, 2), v(S1, 2)))
    A("v_add_f32 %s, %s, %s" % (v(S0), v(S0), v(S0 + 1)))
    red8(A, S0)
    A("v_mul_f32 %s, %s, %s" % (v(M + 1), fbits(1.0 / 640), v(S0)))
    A("v_cvt_pk_bf16_f32 %s, %s, %s" % (v(M), v(M + 1), v(M + 1)))
    A("v_and_b32 %s, 0xffff0000, %s" % (v(M), v(M)))
    for i in range(40):
        A("v_pk_add_f32 %s, %s, %s op_sel_hi:[1,0] neg_lo:[0,1] neg_hi:[0,1]" % (v(F + 2 * i, 2), v(F + 2 * i, 2), v(M, 2)))
    for i in range(40):
        d = S0 + 2 * (i & 1)
        if i < 2:
            A("v_pk_mul_f32 %s, %s, %s" % (v(d, 2), v(F + 2 * i, 2), v(F + 2 * i, 2)))
        else:
            A("v_pk_fma_f32 %s, %s, %s, %s" % (v(d, 2), v(F + 2 * i, 2), v(F + 2 * i, 2), v(d, 2)))
        A("v_cvt_pk_bf16_f32 %s, %s, %s" % (v(X + i), v(F + 2 * i), v(F + 2 * i + 1)))
    A("v_pk_add_f32 %s, %s, %s" % (v(S0, 2), v(S0, 2), v(S1, 2)))
    A("v_add_f32 %s, %s, %s" % (v(S0), v(S0), v(S0 + 1)))
    red8(A, S0)
    A("v_sub_f32 %s, %s, %s" % (v(M + 1), v(M + 1), v(M)))
    A("v_mul_f32 %s, %s, %s" % (v(R), fbits(1.0 / 640), v(S0)))
    A("v_fma_f32 %s, -%s, %s, %s" % (v(R), v(M + 1), v(M + 1), v(R)))
    A("v_max_f32 %s, 0, %s" % (v(R), v(R)))
    A("v_cvt_pk_bf16_f32 %s, %s, %s" % (v(R), v(R), v(R)))
    A("v_and_b32 %s, 0xffff0000, %s" % (v(R), v(R)))
    A("v_add_f32 %s, %s, %s" % (v(R), fbits(1e-5), v(R)))
    A("v_cvt_pk_bf16_f32 %s, %s, %s" % (v(R), v(R), v(R)))
    A("v_and_b32 %s, 0xffff0000, %s" % (v(R), v(R)))
    A("v_sqrt_f32 %s, %s" % (v(R), v(R)))
    A("s_nop 0")
    A("v_cvt_pk_bf16_f32 %s, %s, %s" % (v(S0), v(M), v(R)))
    A("v_and_b32 %s, 0xffff0000, %s" % (v(R), v(S0)))
    A("v_rcp_f32 %s, %s" % (v(R), v(R)))
    for i in range(40):
        A("v_lshlrev_b32 %s, 16, %s" % (v(F + 2 * i), v(X + i)))
        A("v_and_b32 %s, 0xffff0000, %s" % (v(F + 2 * i + 1), v(X + i)))
    A("v_mul_u32_u24 %s, %d, %s" % (v(T + 2), LNROW, v(T)))
    A("v_lshl_add_u32 %s, %s, 4, %s" % (v(T + 2), v(T + 1), v(T + 2)))
    A("v_add_u32 %s, %d, %s" % (v(T + 2), LNST, v(T + 2)))
    for i in range(11):
        if i < 10:
            for e in range(4):
                A("v_pk_mul_f32 %s, %s, %s op_sel_hi:[1,0]" % (v(F + 8 * i + 2 * e, 2), v(F + 8 * i + 2 * e, 2), v(R, 2)))
        if i:
            A("ds_write_b128 %s, %s offset:%d" % (v(T + 2), v(X + 4 * (i - 1), 4), 128 * (i - 1)))
        if i < 10:
            for e in range(4):
                A("v_cvt_pk_bf16_f32 %s, %s, %s" % (v(X + 4 * i + e), v(F + 8 * i + 2 * e), v(F + 8 * i + 2 * e + 1)))


def ln_store(A):
    F, T = LN_F, LN_T
    S0 = T + 4
    a0, a1, a2 = T + 12, T + 13, T + 14
    A("v_bfe_u32 %s, v1, 2, 2" % v(a0))
    A("v_mul_u32_u24 %s, %d, %s" % (v(a0), LNROW, v(a0)))
    A("v_lshrrev_b32 %s, 4, v1" % v(a1))
    A("v_lshl_add_u32 %s, %s, 5, %s" % (v(a0), v(a1), v(a0)))
    A("v_and_b32 %s, 3, v1" % v(a1))
    A("v_lshl_add_u32 %s, %s, 3, %s" % (v(a0), v(a1), v(a0)))
    A("v_add_u32 %s, %d, %s" % (v(a0), LNST, v(a0)))
    for i in range(10):
        A("ds_read_b64_tr_b16 %s, %s offset:%d" % (v(F + 4 * i, 2), v(a0), 128 * i))
        A("ds_read_b64_tr_b16 %s, %s offset:%d" % (v(F + 4 * i + 2, 2), v(a0), 128 * i + 4 * LNROW))
    prog(A, 0)
    A("v_mov_b32 %s, %s" % (v(S0 + 1), NON))
    A("s_lshl_b32 s9, s60, 4")
    A("s_add_u32 s9, s9, s61")
    A("s_lshl_b32 s6, s9, 6")
    A("s_add_u32 s6, s6, 0x%x" % WS_ST)
    setexec(A, 0x0101010101010101)
    A("buffer_store_dwordx2 %s, v1, s[48:51], s6 offen sc1" % v(S0, 2))
    A("s_mov_b64 exec, -1")
    A("v_lshlrev_b32 %s, 4, v1" % v(a0))
    A("s_mul_i32 s7, s9, 10240")
    A("s_add_u32 s7, s7, 0x%x" % WS_XT)
    A("s_waitcnt lgkmcnt(0)")
    for i in range(10):
        A("buffer_store_dwordx4 %s, %s, s[48:51], s7 offen offset:%d sc1" % (v(F + 4 * i, 4), v(a0), 1024 * (i % 4)))
        if i % 4 == 3:
            A("s_add_u32 s7, s7, 4096")


def flag_p(A):
    sk = A.newl("Lf")
    A("v_mov_b32 v10, %d" % CTRL)
    A("v_mov_b32 v11, 1")
    A("s_waitcnt vmcnt(0)")
    A("s_mov_b64 exec, 1")
    A("ds_add_rtn_u32 v11, v10, v11 offset:%d" % C_CNT)
    A("s_mov_b64 exec, -1")
    A("s_waitcnt lgkmcnt(0)")
    A("v_readfirstlane_b32 s4, v11")
    A("s_cmp_lg_u32 s4, 3")
    A("s_cbranch_scc1 %s" % sk)
    A("s_lshl_b32 s6, s2, 7")
    A("s_add_u32 s6, s6, 0x%x" % FL_X)
    signal(A, 6, 10)
    A.label(sk)


LV_C, LV_T, LV_Q = 36, 37, 40


def _schedule():
    B = []
    for u in range(20):
        B.append((u, 1, ("w", u, 12, u - NW + 2 if u >= NW else (1 if u == 5 else 0))))
    for h in range(20):
        c = h >> 1
        need = 2 * (c - NXC) + 3 if c >= NXC else (1 if c == 3 else 0)
        lead = OPT.get("xlead", 1) if c else 0
        B.append((2 * c - lead * (1 - (h & 1)), 0, ("x", h, 8, need)))
    B.sort(key=lambda e: (e[0], e[1]))
    B = [e[2] for e in B]
    for i in range(2 * NL2):
        B.append(("d", i, 10, G2SLOT[i][0] + 1))
    return B


GAPS = {"cur": 4}


class Dma:
    def __init__(self, A, n):
        self.A, self.n, self.k = A, n, 0

    def __call__(self, t):
        self.A(t)
        self.k += 1
        GAP = GAPS["cur"]
        if GAP and (self.k % GAP == 0 or self.k == self.n):
            self.A("buffer_load_dword v35, v27, s[48:51], 0 offen")


SCHED = _schedule()
CUM = [0]
for e in SCHED:
    CUM.append(CUM[-1] + e[2])
NB1 = 40


def _flagafter():
    out = {}
    for u in range(20 + 2 * NL2):
        want = [("d", u - 20)] if u >= 20 else [("w", u), ("x", 2 * (u >> 1)), ("x", 2 * (u >> 1) + 1)]
        i = max(i for i, e in enumerate(SCHED) if (e[0], e[1]) in want)
        out.setdefault(i, []).append(u)
    return out


FLAGAFTER = _flagafter()


def loader_run(A, first, last):
    def rdprog():
        A("ds_read_b128 %s, %s offset:%d" % (v(LV_Q, 4), v(LV_C), C_PROG))

    def getprog():
        A("s_waitcnt lgkmcnt(0)")
        A("v_min_u32 v39, %s, %s" % (v(LV_Q), v(LV_Q + 1)))
        A("v_min3_u32 v39, v39, %s, %s" % (v(LV_Q + 2), v(LV_Q + 3)))
        A("s_nop 0")
        A("v_readfirstlane_b32 s67, v39")
    wait = A.newl("Llw")

    def waitfn():
        A.label(wait)
        guard(A)
        if OPT.get("cnt"):
            A("s_add_u32 s92, s92, 1")
        rdprog()
        getprog()
        A("s_cmp_ge_u32 s67, s9")
        A("s_cbranch_scc0 %s" % wait)
        A("s_setpc_b64 s[34:35]")
    A.cold.append(waitfn)
    known = 0
    rdprog()
    for i in range(first, last):
        kind, idx, P, need = SCHED[i]
        if OPT.get("free") and i < NB1:
            need = 0
        if need > known:
            go = A.newl("Llg")
            getprog()
            A("s_cmp_ge_u32 s67, %d" % need)
            A("s_cbranch_scc1 %s" % go)
            A("s_movk_i32 s9, %d" % need)
            A("s_call_b64 s[34:35], %s" % wait)
            A.label(go)
            known = need
        if OPT.get("cnt") and kind == "w" and idx in (1, 5, 8, 12, 16):
            A.ts({1: 6, 5: 7, 8: 8, 12: 9, 16: 10}[idx])
        nxt = i + 1 < last and SCHED[i + 1][3] > known
        GAPS["cur"] = OPT.get("gap0", 4) if i < OPT.get("gapi", 9) else (OPT.get("gap", 1) if i < NB1 else OPT.get("gap2", 2))
        if i == NB1:
            loader2_setup(A)
            lds_wait(A, C_GO, "lg", 0, 38, LV_C, "s4")
            A.ts(3)
        {"w": issue1, "x": issue_x, "d": issue2}[kind](A, idx, rdprog if nxt else None)
        if i in FLAGAFTER:
            A("s_mov_b32 m0, %d" % (FLG + 4 * max(FLAGAFTER[i]) - 252))
            A("s_nop 0")
            A("buffer_load_dword v27, s[48:51], 0 offen lds")


def rot1(A, sd):
    if OPT.get("rot") == 0:
        A("s_mov_b32 %s, 0" % s(sd))
        return
    if OPT.get("rot") == 2:
        A("s_xor_b32 %s, s60, s61" % s(sd))
        A("s_and_b32 %s, %s, 1" % (s(sd), s(sd)))
        A("s_mul_i32 %s, %s, 5" % (s(sd), s(sd)))
        return
    A("s_and_b32 %s, s61, 3" % s(sd))
    A("s_mul_i32 %s, %s, %d" % (s(sd), s(sd), OPT.get("rnb", 0)))
    A("s_add_u32 %s, %s, s60" % (s(sd), s(sd)))
    for _ in range(2):
        A("s_cmp_ge_u32 %s, 10" % s(sd))
        A("s_cselect_b32 s5, 10, 0")
        A("s_sub_u32 %s, %s, s5" % (s(sd), s(sd)))


def loader1_setup(A):
    for p in range(3):
        A("v_add_u32 v40, %d, v1" % (64 * p))
        A("v_mul_u32_u24 v41, 43691, v40")
        A("v_lshrrev_b32 v41, 19, v41")
        A("v_mul_u32_u24 v42, 12, v41")
        A("v_sub_u32 v40, v40, v42")
        A("v_mul_u32_u24 v41, 3072, v41")
        A("v_lshl_add_u32 %s, v40, 4, v41" % v(32 + p))
        if p:
            A("v_subrev_u32 %s, %d, %s" % (v(32 + p), 1024 * p, v(32 + p)))
    A("v_lshrrev_b32 v40, 3, v1")
    A("v_mul_u32_u24 v40, 1280, v40")
    A("v_and_b32 v41, 7, v1")
    A("v_lshrrev_b32 v42, 4, v1")
    A("v_xor_b32 v41, v41, v42")
    A("v_lshl_add_u32 v28, v41, 4, v40")
    A("v_xor_b32 v29, 64, v28")
    A("v_add_u32 v29, %d, v29" % (8 * 1280 - 1024))
    A("v_add_u32 v30, %d, v28" % (16 * 1280 - 2048))
    A("v_add_u32 v31, %d, v29" % (16 * 1280 - 2048))
    rot1(A, 4)
    A("s_mul_i32 s66, s61, 192")
    A("s_add_u32 s69, s66, %d" % (640 * 3072))
    A("s_mul_i32 s5, s4, %d" % (64 * 3072))
    A("s_add_u32 s64, s66, s5")
    A("s_mul_i32 s10, s60, %d" % (128 * 1280))
    A("s_add_u32 s11, s10, 1280")
    A("s_lshl_b32 s4, s4, 7")
    A("s_add_u32 s65, s10, s4")
    A("v_mov_b32 %s, %d" % (v(LV_C), CTRL))
    A("v_mov_b32 v27, 0x7ffffff0")
    ready(A)
    srd(A, 12, P_X, 2048 * 640 * 2)
    srd(A, 52, P_WG, 640 * 1536 * 2)
    srd(A, 56, P_WU, 640 * 1536 * 2)


def issue_x(A, h, mid):
    base = XSLOT(h >> 1) + (h & 1) * 8192
    D = Dma(A, 8)
    for g in range(2):
        A("s_mov_b32 m0, %d" % (base + 4096 * g))
        A("s_add_u32 s7, s65, %d" % ((64 * (h & 1) + 32 * g) * 1280))
        if g == 1 and mid:
            mid()
        for p in range(4):
            D("buffer_load_dwordx4 %s, s[12:15], s7 offen offset:%d lds" % (v(28 + p), 1024 * p))
    if h & 1:
        A("s_add_u32 s65, s65, 128")
        A("s_cmp_ge_u32 s65, s11")
        A("s_cselect_b32 s65, s10, s65")


def issue1(A, u, mid):
    base = WSLOT(u)
    D = Dma(A, 12)
    for k in range(2):
        so = "s64" if k == 0 else "s6"
        A("s_mov_b32 m0, %d" % (base + k * SLOT1))
        if k == 0:
            A("s_add_u32 s6, s64, %d" % (16 * 3072))
        else:
            A("s_add_u32 s64, s64, %d" % (32 * 3072))
        if k == 1 and mid:
            mid()
        for p in range(3):
            D("buffer_load_dwordx4 %s, s[52:55], %s offen offset:%d lds" % (v(32 + p), so, 1024 * p))
        A("s_mov_b32 m0, %d" % (base + k * SLOT1 + UPOFF))
        if k == 1 and (u & 1):
            A("s_cmp_ge_u32 s64, s69")
            A("s_cselect_b32 s64, s66, s64")
        else:
            A("s_nop 0")
        for p in range(3):
            D("buffer_load_dwordx4 %s, s[56:59], %s offen offset:%d lds" % (v(32 + p), so, 1024 * p))


def rot2(A, sd):
    if OPT.get("m2", 1):
        A("s_and_b32 %s, s62, 7" % s(sd))
        A("s_mul_i32 %s, %s, 3" % (s(sd), s(sd)))
        A("s_lshr_b32 %s, %s, 1" % (s(sd), s(sd)))
    else:
        A("s_and_b32 %s, s62, 3" % s(sd))
        A("s_mul_i32 %s, %s, 3" % (s(sd), s(sd)))


def loader2_setup(A):
    rot2(A, 4)
    A("s_add_u32 s4, s4, %d" % NR2)
    A("s_cmp_ge_u32 s4, 12")
    A("s_cselect_b32 s5, 12, 0")
    A("s_sub_u32 s4, s4, s5")
    A("s_mul_i32 s66, s63, %d" % (48 * 5120))
    A("s_add_u32 s66, s66, 0x%x" % WS_WD)
    A("s_add_u32 s69, s66, %d" % (12 * 5120))
    A("s_mul_i32 s4, s4, 5120")
    A("s_add_u32 s64, s66, s4")
    A("v_lshlrev_b32 v32, 4, v1")
    A("v_add_u32 v33, 4096, v32")


def issue2(A, u, mid):
    base = G2SLOT[u][1]
    D = Dma(A, 10)
    for w in range(2):
        A("s_mov_b32 m0, %d" % (base + 5120 * w))
        A("s_add_u32 s6, s64, %d" % ((2 * (u & 1) + w) * 12 * 5120))
        if w == 1 and mid:
            mid()
        for p in range(4):
            D("buffer_load_dwordx4 v32, s[48:51], s6 offen offset:%d%s lds" % (1024 * p, LSC))
        A("s_mov_b32 m0, %d" % (base + 5120 * w + 4096))
        A("s_nop 0")
        D("buffer_load_dwordx4 v33, s[48:51], s6 offen%s lds" % LSC)
    if u & 1:
        A("s_add_u32 s64, s64, 5120")
        A("s_cmp_ge_u32 s64, s69")
        A("s_cselect_b32 s64, s66, s64")


def colsum_gather(A):
    R = 216
    A("v_lshlrev_b32 v2, 4, v1")
    A("s_mul_i32 s6, s61, 10240")
    A("s_add_u32 s6, s6, 0x%x" % WS_CS)
    A("s_add_u32 s7, s6, 4096")
    A("s_add_u32 s8, s6, 8192")
    poll_flags(A, [(R + 4 * i, 4, 2, 6 + i // 4, 1024 * (i % 4)) for i in range(10)], [R + 3 + 4 * i for i in range(10)], 3, 8)
    for i in range(1, 10):
        for e in range(3):
            A("v_add_f32 %s, %s, %s" % (v(R + e), v(R + e), v(R + 4 * i + e)))
    A("v_lshlrev_b32 v2, 2, v1")
    for e in range(3):
        A("ds_write_b32 v2, %s offset:%d" % (v(R + e), CSUM + 256 * e))
    A("v_mov_b32 v2, %d" % CTRL)
    A("v_mov_b32 v3, 1")
    A("ds_write_b32 v2, v3 offset:%d" % C_CSOK)


WDR = 216


def wd_issue(A):
    T = 200
    srd(A, 56, P_WD, 1536 * 640 * 2)
    A("s_lshl_b32 s4, s2, 1")
    A("s_add_u32 s4, s4, s3")
    A("s_mul_i32 s14, s4, 52429")
    A("s_lshr_b32 s14, s14, 19")
    A("s_mul_i32 s5, s14, 10")
    A("s_sub_u32 s13, s4, s5")
    A("s_mul_i32 s4, s14, %d" % (32 * 1280))
    A("s_lshl_b32 s5, s13, 7")
    A("s_add_u32 s4, s4, s5")
    A("v_lshrrev_b32 %s, 3, v1" % v(T))
    A("v_mul_u32_u24 %s, 1280, %s" % (v(T), v(T)))
    A("v_and_b32 %s, 7, v1" % v(T + 1))
    A("v_lshl_add_u32 %s, %s, 4, %s" % (v(T), v(T + 1), v(T)))
    A("s_lshl_b32 s7, s3, 12")
    A("s_add_u32 s7, s7, %d" % WSLOT(5))
    for p in range(4):
        A("s_add_u32 m0, s7, %d" % (1024 * p))
        A("s_nop 0")
        A("buffer_load_dwordx4 %s, s[56:59], s4 offen lds" % v(T))
        A("s_add_u32 s4, s4, %d" % (8 * 1280))


def wd_relayout(A):
    skip = A.newl("Lwd")
    T = 200
    A("s_waitcnt vmcnt(0)")
    A("s_cmp_ge_u32 s2, 240")
    A("s_cbranch_scc1 %s" % skip)
    A("s_lshl_b32 s7, s3, 12")
    A("s_add_u32 s7, s7, %d" % WSLOT(5))
    A("v_lshrrev_b32 %s, 2, v1" % v(T))
    A("v_lshlrev_b32 %s, 7, %s" % (v(T), v(T)))
    A("v_and_b32 %s, 3, v1" % v(T + 1))
    A("v_lshl_add_u32 %s, %s, 3, %s" % (v(T), v(T + 1), v(T)))
    A("v_add_u32 %s, s7, %s" % (v(T), v(T)))
    A("v_lshlrev_b32 %s, 4, v1" % v(T + 1))
    for c in range(4):
        A("ds_read_b64_tr_b16 %s, %s offset:%d" % (v(WDR + 4 * c, 2), v(T), 32 * c))
        A("ds_read_b64_tr_b16 %s, %s offset:%d" % (v(WDR + 2 + 4 * c, 2), v(T), 32 * c + 2048))
    for c in range(4):
        A("s_lshl_b32 s4, s13, 2")
        A("s_add_u32 s4, s4, %d" % c)
        A("s_mul_i32 s5, s4, 52429")
        A("s_lshr_b32 s5, s5, 18")
        A("s_mul_i32 s6, s5, 5")
        A("s_sub_u32 s4, s4, s6")
        A("s_mul_i32 s5, s5, 48")
        A("s_add_u32 s5, s5, s14")
        A("s_mul_i32 s5, s5, 5")
        A("s_add_u32 s4, s4, s5")
        A("s_lshl_b32 s4, s4, 10")
        A("s_add_u32 s4, s4, 0x%x" % WS_WD)
        A("s_waitcnt lgkmcnt(%d)" % (6 - 2 * c))
        A("buffer_store_dwordx4 %s, %s, s[48:51], s4 offen sc1" % (v(WDR + 4 * c, 4), v(T + 1)))
    A.label(skip)


G_vA0, G_vA1, G_vC, G_vF, G_vP, G_vXo, G_vPa = 2, 3, 4, 5, 6, 7, 8


def prog(A, val):
    A("v_mov_b32 %s, %d" % (v(G_vP), val + 1))
    A("ds_write_b32 %s, %s" % (v(G_vPa), v(G_vP)))


def full_read(A, u):
    A("ds_read_b32 %s, %s offset:%d" % (v(G_vF), v(G_vC), FLG + 4 * u))


def full_wait(A, u, have=True):
    if OPT.get("free"):
        return
    if not getattr(A, "fullfn", None):
        A.fullfn = A.newl("Lfw")

        def fn():
            A.label(A.fullfn)
            guard(A)
            if OPT.get("cnt"):
                A("s_add_u32 s92, s92, 1")
            A("ds_read_b32 %s, v11" % v(G_vF))
            A("s_waitcnt lgkmcnt(0)")
            A("v_readfirstlane_b32 s10, %s" % v(G_vF))
            A("s_cmp_eq_u32 s10, 0")
            A("s_cbranch_scc0 %s" % A.fullfn)
            A("s_setpc_b64 s[34:35]")
        A.cold.append(fn)
    ok = A.newl("Lok")
    if have:
        A("v_readfirstlane_b32 s10, %s" % v(G_vF))
        A("s_cmp_eq_u32 s10, 0")
        A("s_cbranch_scc1 %s" % ok)
    A("v_mov_b32 v11, %d" % (FLG + 4 * u))
    A("s_call_b64 s[34:35], %s" % A.fullfn)
    A.label(ok)


def wfrag_addr(A, d, t):
    A("v_bfe_u32 %s, v1, 2, 2" % v(t))
    A("v_lshrrev_b32 %s, 5, v1" % v(t + 1))
    A("v_lshl_add_u32 %s, %s, 3, %s" % (v(t), v(t + 1), v(t)))
    A("v_mul_u32_u24 %s, 192, %s" % (v(d), v(t)))
    A("v_bfe_u32 %s, v1, 4, 1" % v(t))
    A("v_lshl_add_u32 %s, %s, 5, %s" % (v(d), v(t), v(d)))
    A("v_and_b32 %s, 1, v1" % v(t))
    A("v_lshl_add_u32 %s, %s, 3, %s" % (v(d), v(t), v(d)))
    A("v_bfe_u32 %s, v1, 1, 1" % v(t))
    A("v_mul_u32_u24 %s, %d, %s" % (v(t), UPOFF, v(t)))
    A("v_add_u32 %s, %s, %s" % (v(d), v(t), v(d)))


def phase0(A, nyoung):
    done, l3 = A.newl("Lp0d"), A.newl("Lp03")
    A("s_cmp_eq_u32 s3, 3")
    A("s_cbranch_scc1 %s" % l3)
    A("s_cmp_eq_u32 s3, 2")
    A("s_cbranch_scc1 %s" % done)
    wd_relayout(A)
    A("s_branch %s" % done)
    A.label(l3)
    A("s_waitcnt vmcnt(%d)" % nyoung)
    A.ts(1)
    A("v_mov_b32 v22, 0")
    A("global_load_dword v22, v22, %s sc1" % s(P_DBG, 2))
    ln8(A)
    nonce_fetch(A, 22, True)
    ln_store(A)
    A.label(done)
    A("s_waitcnt lgkmcnt(0)")
    A.ts(2)


def gemm1(A):
    ACC, FB = 160, 100
    SEL, CSD = 64, 80
    ST = 16
    vX = 12
    vA0, vC, vF, vP, vXo, vPa = G_vA0, G_vC, G_vF, G_vP, G_vXo, G_vPa
    lg = Cnt(A, "lgkmcnt", 15)
    A("s_and_b32 s11, s3, 1")
    A("s_lshr_b32 s12, s3, 1")
    A("s_lshl_b32 s8, s60, 1")
    A("s_add_u32 s8, s8, s11")
    wfrag_addr(A, vA0, 9)
    A("s_lshl_b32 s4, s12, 4")
    A("v_add_u32 %s, s4, %s" % (v(vA0), v(vA0)))
    A("v_add_u32 %s, %d, %s" % (v(G_vA1), WADDR[3], v(vA0)))
    A("v_and_b32 v9, 31, v1")
    A("v_bfe_u32 v10, v1, 1, 3")
    A("v_lshrrev_b32 v11, 5, v1")
    A("v_xor_b32 v10, v10, v11")
    A("v_lshlrev_b32 v10, 4, v10")
    A("v_lshl_add_u32 v10, v9, 7, v10")
    A("s_lshl_b32 s4, s11, 13")
    A("s_add_u32 s4, s4, %d" % XRING)
    for j in range(4):
        A("v_xor_b32 %s, %d, v10" % (v(vX + j), 32 * j))
        A("v_add_u32 %s, s4, %s" % (v(vX + j), v(vX + j)))
    A("v_mov_b32 %s, %d" % (v(vC), CTRL))
    A("s_lshl_b32 s4, s3, 2")
    A("s_add_u32 s4, s4, %d" % (CTRL + C_PROG))
    A("v_mov_b32 %s, s4" % v(vPa))
    A("s_lshl_b32 s4, s12, 2")
    A("v_subrev_u32 v9, s4, v9")
    A("v_mov_b32 v10, 0x3f803f80")
    for t in range(3):
        A("v_cmp_eq_u32 vcc, %d, v9" % t)
        A("s_nop 1")
        for d in range(4):
            A("v_cndmask_b32 %s, 0, v10, vcc" % v(SEL + 4 * t + d))

    def early(A):
        sk, l3 = A.newl("Le"), A.newl("Le")
        srd(A, 52, P_X, 2048 * 640 * 2)
        A("s_cmp_eq_u32 s3, 3")
        A("s_cbranch_scc1 %s" % l3)
        A("s_cmp_eq_u32 s3, 2")
        A("s_cbranch_scc1 %s" % sk)
        wd_issue(A)
        A("s_branch %s" % sk)
        A.label(l3)
        ln_issue(A)
        A.label(sk)
    ready(A, early)
    if not OPT.get("auxoff"):
        phase0(A, 0)

    def W(ks, t):
        return FB + 20 * (ks % 3) + 4 * t

    def X(ks, a):
        return FB + 20 * (ks % 3) + 12 + 4 * a

    def wread(ks, t):
        if OPT.get("nowr"):
            return
        off, b = WSLOT(ks >> 1) + (ks & 1) * SLOT1 + 64 * t, vA0
        if off >= WADDR[3]:
            off, b = off - WADDR[3], G_vA1
        A("ds_read_b64_tr_b16 %s, %s offset:%d" % (v(W(ks, t), 2), v(b), off))
        lg.issue(("w", ks, t, 0))
        A("ds_read_b64_tr_b16 %s, %s offset:%d" % (v(W(ks, t) + 2, 2), v(b), off + 768))
        lg.issue(("w", ks, t))

    def xread(ks, a):
        if OPT.get("noxr"):
            return
        A("ds_read_b128 %s, %s offset:%d" % (v(X(ks, a), 4), v(vX + ks % 4), XSLOT(ks >> 2) - XRING + 4096 * a))
        lg.issue(("x", ks, a))

    def reads(ks):
        return [lambda: xread(ks, 0), lambda: wread(ks, 0), lambda: xread(ks, 1), lambda: wread(ks, 1), lambda: wread(ks, 2)]
    prog(A, 0)
    full_wait(A, 0, False)
    A.ts(4)
    E = OPT.get("lead", 3)
    allr = [(ks, i, f) for ks in range(40) for i, f in enumerate(reads(ks))]
    state = {"g": 0, "freshf": False, "prog": 0}

    def next_read():
        if state["g"] >= len(allr):
            return
        ks, i, f = allr[state["g"]]
        state["g"] += 1
        if i == 0 and ks % 2 == 0 and ks > 0:
            lg.wait(("f", ks))
            full_wait(A, ks // 2)
        f()
        if i == OPT.get("fn", 0) and ks % 2 == 1 and ks + 1 < 40:
            full_read(A, (ks + 1) // 2)
            lg.issue(("f", ks + 1))

    def try_prog():
        u = state["prog"]
        last = 10 * u + 9
        if u < 20 and state["g"] > last and ("w", 2 * u + 1, 2) not in lg.q:
            prog(A, u + 1)
            lg.issue(("p", u))
            state["prog"] += 1
    for _ in range(5 + E):
        next_read()
    for ks in range(40):
        if ks == 28:
            A("v_and_b32 v9, 31, v1")
            A("v_lshlrev_b32 v9, 3, v9")
            A("s_lshl_b32 s6, s8, 9")
            A("s_add_u32 s6, s6, 0x%x" % WS_ST)
            A("buffer_load_dwordx2 %s, v9, s[48:51], s6 offen sc1" % v(ST, 2))
            A("buffer_load_dwordx2 %s, v9, s[48:51], s6 offen offset:256 sc1" % v(ST + 2, 2))
        if ks == OPT.get("pubks", 6) and not OPT.get("auxoff"):
            sk, s3 = A.newl("Lcs"), A.newl("Lc3")
            nonce_lds(A, 10)
            lg.q = []
            flag_p(A)
            A("s_cmp_ge_u32 s60, 10")
            A("s_cbranch_scc1 %s" % sk)
            A("s_cmp_lg_u32 s11, 0")
            A("s_cbranch_scc1 %s" % sk)
            A("v_mov_b32 %s, %s" % (v(CSD + 3), NON))
            A("v_lshlrev_b32 v9, 4, v1")
            A("s_mul_i32 s6, s61, 10")
            A("s_add_u32 s6, s6, s60")
            A("s_lshl_b32 s6, s6, 10")
            A("s_add_u32 s6, s6, 0x%x" % WS_CS)
            A("s_sub_u32 exec_lo, s12, 1")
            A("s_not_b32 exec_hi, exec_lo")
            A("buffer_store_dwordx4 %s, v9, s[48:51], s6 offen sc1" % v(CSD, 4))
            A("s_mov_b64 exec, -1")
            A.label(sk)
        if ks in (12, 20, 28):
            A.ts(8 + (ks - 12) // 8)
        n = 0
        for t in range(3):
            for a in range(2):
                lg.wait(("w", ks, t))
                lg.wait(("x", ks, a))
                d = ACC + 48 * a + 16 * t
                cin = "0" if ks == 0 else v(d, 16)
                if OPT.get("nomf"):
                    A("s_nop 7" if OPT["nomf"] == 2 else "s_nop 0")
                else:
                    A("v_mfma_f32_32x32x16_bf16 %s, %s, %s, %s" % (v(d, 16), v(W(ks, t), 4), v(X(ks, a), 4), cin))
                if not OPT.get("noprog"):
                    try_prog()
                if n < 5:
                    next_read()
                n += 1
            if ks < 4:
                cin = "0" if ks + t == 0 else v(CSD, 16)
                A("v_mfma_f32_32x32x16_bf16 %s, %s, %s, %s" % (v(CSD, 16), v(SEL + 4 * t, 4), v(W(ks, t), 4), cin))
    A.ts(5)
    if OPT.get("cnt"):
        A.stamps += [11, 14]
    if OPT.get("g1only"):
        return
    A("s_waitcnt vmcnt(0)")
    ok = A.newl("Lst")
    tag_check(A, [ST + 1, ST + 3], 10, ok)
    poll_flags(A, [(ST, 2, 9, 6, 0), (ST + 2, 2, 9, 6, 256)], [ST + 1, ST + 3], 10, 2)
    A.label(ok)
    lds_wait(A, C_CSOK, "lg", 0, vF, vC, "s10")
    A("v_lshrrev_b32 v9, 5, v1")
    A("v_lshlrev_b32 v9, 4, v9")
    A("s_lshl_b32 s4, s12, 7")
    A("s_add_u32 s4, s4, %d" % CSUM)
    A("v_add_u32 v9, s4, v9")
    CR = 24
    for t in range(3):
        for m in range(4):
            A("ds_read_b128 %s, v9 offset:%d" % (v(CR + 16 * t + 4 * m, 4), 256 * t + 32 * m))
    NM, C1 = [72, 76], [74, 78]
    for a in range(2):
        A("v_lshlrev_b32 %s, 16, %s" % (v(NM[a]), v(ST + 2 * a)))
        A("v_xor_b32 %s, 0x80000000, %s" % (v(NM[a]), v(NM[a])))
        A("v_and_b32 %s, 0xffff0000, %s" % (v(C1[a]), v(ST + 2 * a)))
        A("v_mul_f32 %s, %s, %s" % (v(NM[a] + 1), v(C1[a]), v(C1[a])))
        A("v_rcp_f32 %s, %s" % (v(C1[a]), v(C1[a])))
    A("s_mul_i32 s9, s8, 192")
    A("s_mul_i32 s4, s61, 6")
    A("s_add_u32 s9, s9, s4")
    A("s_add_u32 s9, s9, s12")
    A("s_lshl_b32 s9, s9, 10")
    A("s_add_u32 s9, s9, 0x%x" % WS_HF)
    for a in range(2):
        A("v_mul_f32 %s, %s, %s" % (v(C1[a]), fbits(-LOG2E), v(C1[a])))
    A("v_lshlrev_b32 %s, 4, v1" % v(vXo))
    A("s_waitcnt lgkmcnt(0)")
    T0 = 96
    n = 0
    for a in range(2):
        for t in range(3):
            ac = ACC + 48 * a + 16 * t
            tmp = T0 + 16 * (n & 1)
            n += 1
            G = [ac, ac + 2, ac + 8, ac + 10]
            U = [ac + 4, ac + 6, ac + 12, ac + 14]
            for i in range(8):
                A("v_pk_fma_f32 %s, %s, %s, %s op_sel_hi:[1,0,1]" % (v(ac + 2 * i, 2), v(CR + 16 * t + 2 * i, 2), v(NM[a], 2), v(ac + 2 * i, 2)))
            for i in range(4):
                A("v_pk_mul_f32 %s, %s, %s op_sel_hi:[1,0]" % (v(tmp + 2 * i, 2), v(G[i], 2), v(C1[a], 2)))
            for i in range(8):
                A("v_exp_f32 %s, %s" % (v(tmp + i), v(tmp + i)))
            for i in range(4):
                A("v_pk_mul_f32 %s, %s, %s" % (v(G[i], 2), v(G[i], 2), v(U[i], 2)))
            for i in range(4):
                A("v_pk_fma_f32 %s, %s, %s, %s op_sel:[0,1,1] op_sel_hi:[1,1,1]" % (v(tmp + 2 * i, 2), v(tmp + 2 * i, 2), v(NM[a], 2), v(NM[a], 2)))
            for i in range(8):
                A("v_rcp_f32 %s, %s" % (v(tmp + i), v(tmp + i)))
            A("s_add_u32 s4, s9, %d" % (96 * 1024 * a + 2048 * t))
            for i in range(4):
                A("v_pk_mul_f32 %s, %s, %s" % (v(G[i], 2), v(G[i], 2), v(tmp + 2 * i, 2)))
            for i in range(4):
                A("v_cvt_pk_bf16_f32 %s, %s, %s" % (v(tmp + 8 + i), v(G[i]), v(G[i] + 1)))
            A("buffer_store_dwordx4 %s, %s, s[48:51], s4 offen sc1" % (v(tmp + 8, 4), v(vXo)))
    A("v_mov_b32 %s, 1" % v(vP))
    A("ds_write_b32 %s, %s offset:%d" % (v(vPa), v(vP), C_EPI - C_PROG))
    A.ts(6)
    A("s_lshl_b32 s6, s8, 4")
    A("s_add_u32 s6, s6, s61")
    A("s_lshl_b32 s6, s6, 1")
    A("s_add_u32 s6, s6, s12")
    A("s_lshl_b32 s6, s6, 7")
    A("s_add_u32 s6, s6, 0x%x" % FL_H)
    A("s_waitcnt vmcnt(0)")
    signal(A, 6, 10)
    A.ts(7)


def cmul(A, d, a, f, t, pk=False):
    assert d != a and d != f
    if pk:
        A("v_pk_mul_f32 %s, %s, %s op_sel:[0,0] op_sel_hi:[1,0]" % (v(d, 2), v(a, 2), v(f, 2)))
        A("v_pk_fma_f32 %s, %s, %s, %s op_sel:[1,1,0] op_sel_hi:[0,1,1] neg_lo:[1,0,0]" % (v(d, 2), v(a, 2), v(f, 2), v(d, 2)))
        return
    A("v_mul_f32 %s, %s, %s" % (v(d), v(a), v(f)))
    A("v_mul_f32 %s, %s, %s" % (v(d + 1), v(a + 1), v(f)))
    A("v_fma_f32 %s, -%s, %s, %s" % (v(d), v(a + 1), v(f + 1), v(d)))
    A("v_fmac_f32 %s, %s, %s" % (v(d + 1), v(a), v(f + 1)))


def kgen_issue(A):
    A("v_mov_b32 v58, 0")
    A("v_mov_b32 v59, 0")
    A("s_mul_i32 s4, s68, 384")
    A("v_lshlrev_b32 v38, 4, v1")
    A("v_add_u32 v38, s4, v38")
    A("s_lshl_b32 s4, s68, 1")
    A("v_mov_b32 v39, s4")
    setexec(A, 0xffffff)
    for i, p in enumerate([P_ARE, P_AIM, P_BRE, P_BIM, P_CRE, P_CIM]):
        A("s_add_u32 m0, s66, %d" % (384 * i))
        A("s_nop 0")
        A("global_load_lds_dwordx4 v38, %s" % s(p, 2))
    A("s_mov_b64 exec, -1")
    A("global_load_short_d16_hi v58, v39, %s" % s(P_LDT, 2))
    A("global_load_short_d16_hi v59, v39, %s" % s(P_DSK, 2))


HI = list(range(8)) + [256, 258, 260, 262, 512, 516, 768, 772, 1024, 1280, 1536, 1792, 2048]
EROW = 272


KB_DT, KB_ACC = 6, 134


def kgen_params(A, B):
    for c in range(3):
        for i in range(6):
            A("ds_read_u16_d16_hi %s, %s offset:%d" % (v(40 + 6 * c + i), v(B + 9), 384 * i + 128 * c))


def kgen_setup(A, B):
    vW, vR, ONE, T = B + 7, B + 8, B + 10, B + 20
    A("s_mov_b32 s4, s66")
    for i in range(18):
        A("v_mov_b32 %s, 0" % v(40 + i))
    A("v_mul_u32_u24 %s, %d, v1" % (v(vW), ER))
    A("v_add_u32 %s, s4, %s" % (v(vW), v(vW)))
    A("v_bfe_u32 %s, v1, 2, 2" % v(T))
    A("v_lshrrev_b32 %s, 5, v1" % v(T + 1))
    A("v_lshl_add_u32 %s, %s, 3, %s" % (v(T), v(T + 1), v(T)))
    A("v_mul_u32_u24 %s, %d, %s" % (v(vR), ER, v(T)))
    A("v_bfe_u32 %s, v1, 4, 1" % v(T))
    A("v_lshl_add_u32 %s, %s, 5, %s" % (v(vR), v(T), v(vR)))
    A("v_and_b32 %s, 3, v1" % v(T))
    A("v_lshl_add_u32 %s, %s, 3, %s" % (v(vR), v(T), v(vR)))
    A("v_add_u32 %s, s4, %s" % (v(vR), v(vR)))
    A("v_lshlrev_b32 %s, 1, v1" % v(B + 9))
    A("v_add_u32 %s, s66, %s" % (v(B + 9), v(B + 9)))
    A("v_mov_b32 %s, 1.0" % v(ONE))
    A("v_mov_b32 %s, 0" % v(ONE + 1))


def kgen_chunk(A, B, c, pkm, first, mid=None):
    are, aim, bre, bim, cre, cim = [40 + 6 * c + i for i in range(6)]
    DT, vW, vR, vP, ONE = B + KB_DT, B + 7, B + 8, B + 9, B + 10
    E1, E8, E256, E16, TA = B + 12, B + 14, B + 16, B + 18, B + 20
    LO = [B + 26, B + 28, B + 30, B + 32]
    Gs, PR, PI, KACC = B + 34, B + 78, B + 106, B + KB_ACC
    FR = B + 34
    G = lambda i: Gs + 2 * i
    A("v_mul_f32 %s, %s, %s" % (v(are), v(DT), v(are)))
    A("v_mul_f32 %s, %s, %s" % (v(aim), v(DT), v(aim)))
    A("v_mul_f32 %s, %s, %s" % (v(are), fbits(LOG2E), v(are)))
    A("v_mul_f32 %s, %s, %s" % (v(aim), fbits(0.5 / math.pi), v(aim)))
    Es = [(E8, 8.0, TA), (E1, 1.0, TA + 2), (E256, 256.0, TA + 4)]
    for (E, l, T) in Es:
        A("v_mul_f32 %s, %s, %s" % (v(T), fbits(l), v(are)))
        A("v_mul_f32 %s, %s, %s" % (v(T + 1), fbits(l), v(aim)))
    for (E, l, T) in Es:
        A("v_fract_f32 %s, %s" % (v(T + 1), v(T + 1)))
    for (E, l, T) in Es:
        A("v_exp_f32 %s, %s" % (v(T), v(T)))
        A("v_cos_f32 %s, %s" % (v(E), v(T + 1)))
        A("v_sin_f32 %s, %s" % (v(E + 1), v(T + 1)))
    A("v_mul_f32 %s, %s, %s" % (v(bre), v(DT), v(bre)))
    A("v_mul_f32 %s, %s, %s" % (v(bim), v(DT), v(bim)))
    for (E, l, T) in Es:
        A("v_mul_f32 %s, %s, %s" % (v(E), v(E), v(T)))
        A("v_mul_f32 %s, %s, %s" % (v(E + 1), v(E + 1), v(T)))
    cmul(A, Gs, cre, bre, TA)
    cmul(A, E16, E8, E8, E16)
    loc = {0: Gs, 24: ONE, 25: E8, 26: E16}
    packed, written = set(), set()

    def flush():
        for p in range(28):
            if p in packed or p == 11:
                continue
            c0, c1 = 2 * p, 2 * p + 1
            if p == 10:
                c1 = c0
            if c0 in loc and c1 in loc:
                n = "-" if p < 12 else ""
                A("v_cvt_pk_bf16_f32 %s, %s, %s" % (v(PR + p), v(loc[c0]), v(loc[c1])))
                A("v_cvt_pk_bf16_f32 %s, %s%s, %s%s" % (v(PI + p), n, v(loc[c0] + 1), n, v(loc[c1] + 1)))
                packed.add(p)

    def wr(old):
        for q in range(7):
            if q not in written and all((p in old or p == 11) for p in range(4 * q, 4 * q + 4)):
                A("ds_write_b128 %s, %s offset:%d" % (v(vW), v(PR + 4 * q, 4), 16 * q))
                written.add(q)
    cur = [E16, E8]
    lo_ops = []
    for j in range(3, 32):
        ch = 1 if (j & 1) else 0
        dst = LO[2 * ch + ((j >> 1) & 1)]
        lo_ops.append((dst, cur[ch], E16, 24 + j))
        cur[ch] = dst
    src = {8: 0, 9: 2, 10: 4, 11: 6, 12: 8, 13: 10, 14: 12, 15: 13, 16: 14, 17: 16, 18: 17, 19: 18, 20: 19}
    h1 = [(G(i), G(i - 1), E1, i) for i in range(1, 8)] + [(G(i), G(src[i]), E256, i) for i in [9, 10, 11, 13, 15]]
    h2 = [(G(i), G(src[i]), E256, i) for i in [8, 12, 14, 16, 17, 18, 19, 20]]
    groups = [[lo_ops.pop(0)]]
    while lo_ops:
        groups.append([lo_ops.pop(0), lo_ops.pop(0)])
    for i, g in enumerate(groups):
        if i < len(h1):
            g.append(h1[i])
        if i < len(h2):
            g.append(h2[i])
    for gi, grp in enumerate(groups):
        if gi == 8 and mid:
            mid(A)
        old = set(packed)
        if pkm:
            for (d, a, f, col) in grp:
                A("v_pk_mul_f32 %s, %s, %s op_sel:[0,0] op_sel_hi:[1,0]" % (v(d, 2), v(a, 2), v(f, 2)))
        else:
            for (d, a, f, col) in grp:
                A("v_mul_f32 %s, %s, %s" % (v(d), v(a), v(f)))
                A("v_mul_f32 %s, %s, %s" % (v(d + 1), v(a + 1), v(f)))
        wr(old)
        flush()
        if pkm:
            for (d, a, f, col) in grp:
                A("v_pk_fma_f32 %s, %s, %s, %s op_sel:[1,1,0] op_sel_hi:[0,1,1] neg_lo:[1,0,0]" % (v(d, 2), v(a, 2), v(f, 2), v(d, 2)))
        else:
            for (d, a, f, col) in grp:
                A("v_fma_f32 %s, -%s, %s, %s" % (v(d), v(a + 1), v(f + 1), v(d)))
                A("v_fmac_f32 %s, %s, %s" % (v(d + 1), v(a), v(f + 1)))
        for (d, a, f, col) in grp:
            loc[col] = d
    flush()
    wr(packed)
    assert len(written) == 7

    def rd(ks):
        for (r, off) in [(FR + 8 * ks, 0), (FR + 8 * ks + 4, 48)]:
            A("ds_read_b64_tr_b16 %s, %s offset:%d" % (v(r, 2), v(vR), 16 * ER * (ks & 3) + off))
            A("ds_read_b64_tr_b16 %s, %s offset:%d" % (v(r + 2, 2), v(vR), 16 * ER * (ks & 3) + off + 4 * ER))

    def mf(ks):
        cin = "0" if (first and ks == 0) else v(KACC, 16)
        A("v_mfma_f32_32x32x16_bf16 %s, %s, %s, %s" % (v(KACC, 16), v(FR + 8 * ks, 4), v(FR + 8 * ks + 4, 4), cin))
    for ks in range(4):
        rd(ks)
    for q in range(7):
        A("ds_write_b128 %s, %s offset:%d" % (v(vW), v(PI + 4 * q, 4), 16 * q))
    A("s_waitcnt lgkmcnt(7)")
    for ks in range(4):
        mf(ks)
        if ks >= 2:
            rd(ks + 2)
    rd(6)
    rd(7)
    for ks in range(4, 8):
        A("s_waitcnt lgkmcnt(%d)" % (4 * (7 - ks)))
        mf(ks)


def kgen_expand(A, KACC):
    A("v_and_b32 v2, 31, v1")
    A("v_lshrrev_b32 v3, 5, v1")
    A("v_lshlrev_b32 v4, 5, v2")
    A("v_lshl_add_u32 v4, v3, 4, v4")
    A("v_add_u32 v4, s66, v4")
    A("v_lshlrev_b32 v5, 4, v2")
    A("v_add_u32 v5, s66, v5")
    A("v_lshlrev_b32 v6, 3, v2")
    A("v_add_u32 v6, s66, v6")
    A("v_lshlrev_b32 v7, 2, v2")
    A("v_add_u32 v7, s66, v7")
    A("s_nop 7")
    A("s_mov_b64 exec, 1")
    A("v_add_f32 %s, %s, v59" % (v(KACC), v(KACC)))
    A("s_mov_b64 exec, -1")
    A("ds_write_b128 v4, %s" % v(KACC, 4))
    A("s_mov_b32 exec_hi, 0")
    A("ds_write_b128 v5, %s offset:%d" % (v(KACC + 4, 4), 256 * 4))
    for r in range(4):
        A("ds_write_b32 v7, %s offset:%d" % (v(KACC + 8 + r), (512 + 32 * r) * 4))
    A("s_mov_b32 exec_lo, 0")
    A("s_mov_b32 exec_hi, -1")
    A("ds_write_b64 v6, %s offset:%d" % (v(KACC + 4, 2), 384 * 4))
    A("ds_write_b64 v6, %s offset:%d" % (v(KACC + 6, 2), 448 * 4))
    A("ds_write_b32 v7, %s offset:%d" % (v(KACC + 8), 640 * 4))
    A("s_mov_b64 exec, -1")
    S0, S1, S2, S3 = 10, 16, 20, 24
    A("v_lshlrev_b32 v2, 3, v1")
    A("v_add_u32 v3, s66, v2")
    A("v_lshlrev_b32 v4, 4, v1")
    A("v_add_u32 v4, s66, v4")
    A("ds_read_b128 %s, v4" % v(S0 + 2, 4))
    A("ds_read_b32 %s, v4 offset:16" % v(S0))
    for (S, b) in [(S1, 256), (S2, 384), (S3, 512)]:
        A("ds_read_b64 %s, v3 offset:%d" % (v(S, 2), 4 * b))
        A("ds_read_b32 %s, v3 offset:%d" % (v(S + 2), 4 * b + 8))
    A("v_add_u32 v2, s69, v2")
    A("v_lshrrev_b32 v3, 4, v1")
    A("v_mul_u32_u24 v3, %d, v3" % KSTR)
    A("v_and_b32 v4, 15, v1")
    A("v_lshl_add_u32 v3, v4, 2, v3")
    A("v_add_u32 v3, s69, v3")
    A("v_sub_u32 v5, 63, v1")
    A("v_lshlrev_b32 v6, 5, v5")
    A("v_add_u32 v6, s69, v6")
    A("v_lshlrev_b32 v7, 4, v5")
    A("v_add_u32 v7, s69, v7")
    A("v_lshlrev_b32 v5, 3, v5")
    A("v_add_u32 v5, s69, v5")
    A("v_mov_b32 v8, 0")
    A("v_mov_b32 v9, 0")
    A.ts(6)
    A("v_mov_b32 v80, %d" % CTRL)
    lds_wait(A, C_GO, "lg", 0, 76, 80, "s10", False, 2)
    if OPT.get("ulate", 17):
        prog_wait(A, OPT.get("ulate", 17), 76, 2)
    u_issue(A)
    prog_wait(A, CONV_PROG + 1, 76, 2)
    A("ds_write_b64 v2, v[8:9] offset:%d" % AUX_U)
    A("ds_write_b32 v3, v8 offset:4096")
    O = 28
    def val3(o):
        return S3 + (0 if o <= 4 else 1 if o <= 11 else 2)
    def val2(o):
        return S2 + (0 if o <= 2 else 1 if o <= 5 else 2)
    for d in range(4):
        o0 = O + 12 * (d & 1)
        for w in range(8):
            A("v_cvt_pk_bf16_f32 %s, %s, %s" % (v(o0 + w), v(val3(d + 15 - 2 * w)), v(val3(d + 14 - 2 * w))))
        for w in range(4):
            A("v_cvt_pk_bf16_f32 %s, %s, %s" % (v(o0 + 8 + w), v(val2(d + 7 - 2 * w)), v(val2(d + 6 - 2 * w))))
        A("ds_write_b128 v6, %s offset:%d" % (v(o0, 4), d * KSTR))
        A("ds_write_b128 v6, %s offset:%d" % (v(o0 + 4, 4), d * KSTR + 16))
        A("ds_write_b128 v7, %s offset:%d" % (v(o0 + 8, 4), d * KSTR + 2048))
    A("v_cvt_pk_bf16_f32 v52, %s, %s" % (v(S2), v(S2)))
    A("ds_write_b32 v7, v52 offset:%d" % (2 * KSTR + 2048 + 16))
    A("ds_write_b32 v7, v52 offset:%d" % (3 * KSTR + 2048 + 16))
    a, b, c = S1, S1 + 1, S1 + 2
    t0, t1, t2, t3, t4 = S0 + 2, S0 + 3, S0 + 4, S0 + 5, S0
    prs = [(c, b), (a, a), (c, c), (b, a), (t3, t2), (t1, t0), (t4, t3), (t2, t1)]
    for i, (x, y) in enumerate(prs):
        A("v_cvt_pk_bf16_f32 %s, %s, %s" % (v(64 + i), v(x), v(y)))
    A("v_cvt_pk_bf16_f32 v72, %s, 0" % v(t0))
    for d in range(2):
        A("ds_write_b64 v5, %s offset:%d" % (v(64 + 2 * d, 2), d * KSTR + 3072))
        A("ds_write_b64 v5, %s offset:%d" % (v(68 + 2 * d, 2), d * KSTR + 3584))
    for d in range(2, 4):
        for (r, off) in [(64 + 2 * (d - 2), 3072), (68 + 2 * (d - 2), 3584)]:
            A("ds_write_b32 v5, %s offset:%d" % (v(r), d * KSTR + off + 4))
            A("ds_write_b32 v5, %s offset:%d" % (v(r + 1), d * KSTR + off + 8))
    A("s_mov_b64 exec, 1")
    A("ds_write_b32 v5, v72 offset:%d" % (1 * KSTR + 3584 + 8))
    A("ds_write_b32 v5, v72 offset:%d" % (3 * KSTR + 3584 + 12))
    A("s_mov_b64 exec, -1")
    A("s_waitcnt lgkmcnt(0)")


def u_issue(A):
    A("v_mul_u32_u24 v81, 10240, v1")
    A("s_lshl_b32 s4, s68, 4")
    A("s_add_u32 s4, s4, 0x%x" % WS_XT)
    for i in range(4):
        A("buffer_load_dwordx4 %s, v81, s[48:51], s4 offen%s" % (v(232 + 4 * i, 4), LSC))
        if i < 3:
            A("s_add_u32 s4, s4, %d" % (64 * 10240))


def prog_wait(A, val, vt, sleep):
    pl, ok = A.newl("Lpw"), A.newl("Lpo")
    A("v_mov_b32 %s, %d" % (v(vt + 4), CTRL))
    A.label(pl)
    guard(A)
    A("ds_read_b128 %s, %s offset:%d" % (v(vt, 4), v(vt + 4), C_PROG))
    A("s_waitcnt lgkmcnt(0)")
    A("v_min_u32 %s, %s, %s" % (v(vt), v(vt), v(vt + 1)))
    A("v_min3_u32 %s, %s, %s, %s" % (v(vt), v(vt), v(vt + 2), v(vt + 3)))
    A("s_nop 0")
    A("v_readfirstlane_b32 s10, %s" % v(vt))
    A("s_cmp_ge_u32 s10, %d" % val)
    A("s_cbranch_scc1 %s" % ok)
    A("s_sleep %d" % sleep)
    A("s_branch %s" % pl)
    A.label(ok)


def epi_wait(A):
    A("s_lshl_b32 s4, s3, 2")
    A("v_mov_b32 v10, s4")
    lds_wait(A, CTRL + C_EPI - 16, "lg", 0, 11, 10, "s10", False, 2)


def conv(A):
    AF, BF, ACC = 64, 128, 192
    vK, vU = 2, 3
    A("v_lshlrev_b32 v5, 4, v1")
    A("v_add_u32 v5, s69, v5")
    A("v_and_b32 v6, 15, v1")
    A("v_lshrrev_b32 v7, 4, v1")
    A("v_add_u32 v8, 1, v6")
    A("v_and_b32 v9, 3, v8")
    A("v_mul_u32_u24 %s, %d, v9" % (v(vK), KSTR))
    A("v_lshrrev_b32 v8, 2, v8")
    A("v_lshlrev_b32 v8, 3, v8")
    A("v_sub_u32 %s, %s, v8" % (v(vK), v(vK)))
    A("v_lshl_add_u32 %s, v7, 4, %s" % (v(vK), v(vK)))
    A("s_add_u32 s4, s69, 32")
    A("v_add_u32 %s, s4, %s" % (v(vK), v(vK)))
    A("v_lshlrev_b32 %s, 5, v6" % v(vU))
    A("v_lshl_add_u32 %s, v7, 4, %s" % (v(vU), v(vU)))
    A("v_add_u32 %s, s69, %s" % (v(vU), v(vU)))
    for i in range(4):
        A("s_waitcnt vmcnt(%d)" % (3 - i))
        A("ds_write_b128 v5, %s offset:%d" % (v(232 + 4 * i, 4), AUX_U + 512 + 1024 * i))
    A("s_waitcnt lgkmcnt(0)")
    A.ts(9)
    epi_wait(A)
    A("s_setprio %d" % OPT.get("pc", 3))
    A.ts(7)
    lg = Cnt(A, "lgkmcnt", 15)

    def rdA(ph, p):
        r = AF + 32 * (ph & 1) + 4 * p
        off = 64 * (7 - ph) + 512 * (7 - p)
        A("ds_read_b64 %s, %s offset:%d" % (v(r, 2), v(vK), off))
        lg.issue(("a0", ph, p))
        A("ds_read_b64 %s, %s offset:%d" % (v(r + 2, 2), v(vK), off + 8))
        lg.issue(("a", ph, p))

    def rdB(ph, m):
        r = BF + 32 * (ph & 1) + 4 * m
        A("ds_read_b128 %s, %s offset:%d" % (v(r, 4), v(vU), AUX_U + 480 - 64 * ph + 512 * m))
        lg.issue(("b", ph, m))
    def reads(ph):
        L = []
        for i in range(8):
            L.append((rdA, ph, i))
            L.append((rdB, ph, i))
        return L
    pairs = sorted([(p, m) for p in range(8) for m in range(8) if p + m <= 7], key=lambda x: (max(x), x))
    pend = reads(0)
    for _ in range(8):
        f, a1, a2 = pend.pop(0)
        f(a1, a2)
    seen = set()
    for ph in range(8):
        if ph + 1 < 8:
            pend += reads(ph + 1)
        for n, (p, m) in enumerate(pairs):
            while any((f is rdA and a1 == ph and a2 == p) or (f is rdB and a1 == ph and a2 == m) for (f, a1, a2) in pend):
                f, a1, a2 = pend.pop(0)
                f(a1, a2)
            lg.wait(("a", ph, p))
            lg.wait(("b", ph, m))
            q = p + m
            cin = v(ACC + 4 * q, 4) if q in seen else "0"
            seen.add(q)
            A("v_mfma_f32_16x16x32_bf16 %s, %s, %s, %s" % (v(ACC + 4 * q, 4), v(AF + 32 * (ph & 1) + 4 * p, 4), v(BF + 32 * (ph & 1) + 4 * m, 4), cin))
            if pend and (n & 1) == 0 and len(lg.q) <= 12:
                f, a1, a2 = pend.pop(0)
                f(a1, a2)
    A.ts(10)
    A("v_lshlrev_b32 v8, 5, v6")
    A("v_lshl_add_u32 v8, v7, 3, v8")
    A("v_add_u32 v8, s69, v8")
    A("s_nop 7")
    for q in range(8):
        A("v_cvt_pk_bf16_f32 %s, %s, %s" % (v(16 + 2 * q), v(ACC + 4 * q), v(ACC + 4 * q + 1)))
        A("v_cvt_pk_bf16_f32 %s, %s, %s" % (v(17 + 2 * q), v(ACC + 4 * q + 2), v(ACC + 4 * q + 3)))
        A("ds_write_b64 v8, %s offset:%d" % (v(16 + 2 * q, 2), AUX_U + 512 + 512 * q))
    A("s_waitcnt lgkmcnt(0)")
    for i in range(4):
        A("ds_read_b128 %s, v5 offset:%d" % (v(32 + 4 * i, 4), AUX_U + 512 + 1024 * i))
    A("v_lshlrev_b32 v4, 4, v1")
    A("s_lshl_b32 s4, s68, 12")
    A("s_add_u32 s4, s4, 0x%x" % WS_AT)
    for i in range(4):
        A("s_waitcnt lgkmcnt(%d)" % (3 - i))
        A("buffer_store_dwordx4 %s, v4, s[48:51], s4 offen offset:%d%s" % (v(32 + 4 * i, 4), 1024 * i, SC1))
    A.ts(11)


PBUF = 8192


def pprep(A):
    srd(A, 52, P_X, 2048 * 640 * 2)
    A("s_sub_u32 s8, s3, 4")
    A("v_lshrrev_b32 v2, 3, v1")
    A("v_and_b32 v3, 7, v1")
    A("v_lshlrev_b32 v4, 12, v2")
    A("v_lshl_add_u32 v4, v3, 4, v4")
    A("s_mul_i32 s4, s63, 80")
    A("s_lshl_b32 s5, s8, 5")
    A("s_add_u32 s4, s4, s5")
    A("s_lshl_b32 s6, s4, 12")
    A("s_lshl_b32 s5, s62, 7")
    A("s_add_u32 s6, s6, s5")
    A("s_add_u32 s6, s6, 0x%x" % WS_AT)
    A("v_lshrrev_b32 v5, 2, v1")
    A("v_and_b32 v6, 3, v1")
    A("v_mul_u32_u24 v7, 1280, v5")
    A("v_lshl_add_u32 v7, v6, 4, v7")
    A("s_mul_i32 s7, s62, %d" % (64 * 1280))
    A("s_lshl_b32 s5, s4, 1")
    A("s_add_u32 s7, s7, s5")
    for i in range(4):
        A("buffer_load_dwordx4 %s, v7, s[52:55], s7 offen" % v(32 + 4 * i, 4))
        A("s_add_u32 s7, s7, %d" % (16 * 1280))
    return


def pprep2(A):
    AROW = 144
    XROW = 80
    XOFF = 32 * AROW
    for i in range(4):
        A("buffer_load_dwordx4 %s, v4, s[48:51], s6 offen%s" % (v(16 + 4 * i, 4), SC1))
        A("s_add_u32 s6, s6, %d" % (8 * 4096))
    A("v_mul_u32_u24 v8, %d, v2" % AROW)
    A("v_lshl_add_u32 v8, v3, 4, v8")
    A("v_add_u32 v8, s69, v8")
    A("v_mul_u32_u24 v9, %d, v5" % XROW)
    A("v_lshl_add_u32 v9, v6, 4, v9")
    A("v_add_u32 v9, s69, v9")
    A("s_waitcnt vmcnt(4)")
    for i in range(4):
        A("ds_write_b128 v9, %s offset:%d" % (v(32 + 4 * i, 4), XOFF + 16 * XROW * i))
    for i in range(4):
        A("s_waitcnt vmcnt(%d)" % (3 - i))
        A("ds_write_b128 v8, %s offset:%d" % (v(16 + 4 * i, 4), 8 * AROW * i))
    A("v_lshrrev_b32 v10, 2, v1")
    A("v_mul_u32_u24 v10, %d, v10" % AROW)
    A("v_lshl_add_u32 v10, v6, 3, v10")
    A("v_add_u32 v10, s69, v10")
    A("v_and_b32 v11, 15, v1")
    A("v_mul_u32_u24 v11, %d, v11" % XROW)
    A("v_lshrrev_b32 v12, 4, v1")
    A("v_lshl_add_u32 v11, v12, 3, v11")
    A("v_add_u32 v11, s69, v11")
    A("v_lshlrev_b32 v12, 4, v1")
    A("v_add_u32 v12, s69, v12")
    A("s_waitcnt lgkmcnt(0)")
    for c in range(2):
        for st in range(4):
            r = 16 + 16 * c + 4 * st
            A("ds_read_b64_tr_b16 %s, v10 offset:%d" % (v(r, 2), 16 * AROW * c + 32 * st))
            A("ds_read_b64 %s, v11 offset:%d" % (v(r + 2, 2), XOFF + 16 * XROW * st + 32 * c))
        A("s_waitcnt lgkmcnt(0)")
    for c in range(2):
        for st in range(4):
            r = 16 + 16 * c + 4 * st
            o = 48 + 8 * (st & 1)
            for e in range(2):
                A("v_lshlrev_b32 %s, 16, %s" % (v(o + 2 * e), v(r + e)))
                A("v_and_b32 %s, 0xffff0000, %s" % (v(o + 2 * e + 1), v(r + e)))
                A("v_lshlrev_b32 %s, 16, %s" % (v(o + 4 + 2 * e), v(r + 2 + e)))
                A("v_and_b32 %s, 0xffff0000, %s" % (v(o + 4 + 2 * e + 1), v(r + 2 + e)))
            for e in range(4):
                A("v_add_f32 %s, %s, %s" % (v(o + e), v(o + e), v(o + 4 + e)))
            A("v_cvt_pk_bf16_f32 %s, %s, %s" % (v(o + 4), v(o), v(o + 1)))
            A("v_cvt_pk_bf16_f32 %s, %s, %s" % (v(o + 5), v(o + 2), v(o + 3)))
            for e in range(2):
                A("v_lshlrev_b32 %s, 16, %s" % (v(o + 2 * e), v(o + 4 + e)))
                A("v_and_b32 %s, 0xffff0000, %s" % (v(o + 2 * e + 1), v(o + 4 + e)))
            A("ds_write_b128 v12, %s offset:%d" % (v(o, 4), PBUF + 1024 * (4 * c + st)))
    A("s_waitcnt lgkmcnt(0)")


def gemm2(A):
    ACC = 176
    vH, vL, vWo, vC = 12, 16, G_vXo, G_vC
    pool = list(range(24, ACC, 4))
    lg = Cnt(A, "lgkmcnt", 15)
    vm = Cnt(A, "vmcnt", 63)
    rot2(A, 4)
    A("s_mul_i32 s12, s63, 48")
    A("s_mul_i32 s5, s3, 12")
    A("s_add_u32 s12, s12, s5")
    A("s_mul_i32 s12, s12, 5120")
    A("s_add_u32 s12, s12, 0x%x" % WS_WD)
    A("s_add_u32 s13, s12, %d" % (12 * 5120))
    A("s_mul_i32 s5, s4, 5120")
    A("s_add_u32 s11, s12, s5")
    A("s_mul_i32 s8, s62, %d" % (192 * 1024))
    A("s_mul_i32 s5, s3, %d" % (24 * 1024))
    A("s_add_u32 s8, s8, s5")
    A("s_add_u32 s8, s8, 0x%x" % WS_HF)
    A("s_add_u32 s14, s8, %d" % (24 * 1024))
    A("s_lshl_b32 s5, s4, 11")
    A("s_add_u32 s9, s8, s5")
    A("v_lshlrev_b32 %s, 4, v1" % v(vWo))
    A("v_add_u32 v20, 4096, %s" % v(vWo))
    lds_wait(A, C_GO, "lg", 0, 10, vC, "s10")
    Wr, Hr = {}, {}

    def wadv(n):
        A("s_add_u32 s11, s11, %d" % (5120 * n))
        A("s_cmp_ge_u32 s11, s13")
        A("s_cselect_b32 s4, %d, 0" % (12 * 5120))
        A("s_sub_u32 s11, s11, s4")

    def wload(j, ct):
        r = Wr[(j, ct)] = pool.pop(0)
        if ct < 4:
            A("buffer_load_dwordx4 %s, %s, s[48:51], s11 offen offset:%d%s" % (v(r, 4), v(vWo), 1024 * ct, LSC))
        else:
            A("buffer_load_dwordx4 %s, v20, s[48:51], s11 offen%s" % (v(r, 4), LSC))
        vm.issue(("w", j, ct))
        if ct == 4 and j < 11:
            wadv(1 + (NL2 if j == NR2 - 1 else 0))

    def hload(j, q):
        r = Hr[(j, q)] = pool.pop(0)
        A("buffer_load_dwordx4 %s, %s, s[48:51], s9 offen%s" % (v(r, 4), v(vH + q), LSC))
        vm.issue(("h", j, q))
        if q == 3 and j < 11:
            A("s_add_u32 s9, s9, 2048")
            A("s_cmp_ge_u32 s9, s14")
            A("s_cselect_b32 s9, s8, s9")
    for j in range(NR2):
        for ct in range(5):
            wload(j, ct)
    prog(A, 21)
    A("v_lshrrev_b32 v9, 4, v1")
    A("v_and_b32 v10, 15, v1")
    A("v_lshlrev_b32 v10, 4, v10")
    A("v_lshl_add_u32 v10, v9, 9, v10")
    for q in range(4):
        A("s_xor_b32 s4, s3, %d" % q)
        A("s_lshr_b32 s5, s4, 1")
        A("s_mul_i32 s5, s5, %d" % (96 * 1024))
        A("s_and_b32 s4, s4, 1")
        A("s_lshl_b32 s4, s4, 8")
        A("s_add_u32 s4, s4, s5")
        A("v_add_u32 %s, s4, v10" % v(vH + q))

    def area(sd, wreg, jl):
        A("s_mov_b32 %s, %d" % (s(sd), G2SLOT[2 * jl][1]))
        A("s_cmp_lt_u32 %s, 2" % s(wreg))
        A("s_cselect_b32 %s, %s, %d" % (s(sd), s(sd), G2SLOT[2 * jl + 1][1]))
        A("s_bitcmp1_b32 %s, 0" % s(wreg))
        A("s_cselect_b32 s7, 5120, 0")
        A("s_add_u32 %s, %s, s7" % (s(sd), s(sd)))
    for jl in range(4):
        area(4, 3, jl)
        A("v_add_u32 %s, s4, %s" % (v(vL + jl), v(vWo)))
    A("v_lshlrev_b32 v9, 7, v1")
    A("s_lshl_b32 s6, s62, 2")
    A("s_add_u32 s6, s6, s3")
    A("s_lshl_b32 s6, s6, 10")
    A("s_add_u32 s6, s6, 0x%x" % FL_H)
    setexec(A, 0xff)
    poll_flags(A, [(21, 1, 9, 6, 0)], [21], 10, OPT.get("sl", 2))
    A("s_mov_b64 exec, -1")
    vm.q = []
    A.ts(12)
    queue = []
    for j in range(12):
        queue += [(hload, j, q) for q in range(4)]
        if j >= NR2 + NL2:
            queue += [(wload, j, ct) for ct in range(5)]

    def fill(n):
        while queue and pool and n > 0:
            f, j, x = queue.pop(0)
            f(j, x)
            n -= 1
    fill(99)
    full_wait(A, 20 + 2 * NL2 - 1, False)
    LB = [Wr[(0, ct)] for ct in range(5)]

    def lread(j, ct):
        Wr[(j, ct)] = LB[ct]
        A("ds_read_b128 %s, %s offset:%d" % (v(LB[ct], 4), v(vL + j - NR2), 1024 * ct))
        lg.issue(("w", j, ct))
    for j in range(12):
        for ct in range(5):
            lg.wait(("w", j, ct))
            vm.wait(("w", j, ct))
            for q in range(4):
                vm.wait(("h", j, q))
                if j == 0 and ct == 0 and q == 0:
                    A.ts(13)
                d = ACC + 20 * q + 4 * ct
                cin = "0" if j == 0 else v(d, 4)
                A("v_mfma_f32_16x16x32_bf16 %s, %s, %s, %s" % (v(d, 4), v(Wr[(j, ct)], 4), v(Hr[(j, q)], 4), cin))
                if ct == 4:
                    pool.append(Hr[(j, q)])
                if q & 1:
                    fill(1)
            if j == 0:
                lread(NR2, ct)
            elif NR2 <= j < NR2 + NL2 - 1:
                lread(j + 1, ct)
            else:
                pool.append(Wr[(j, ct)])
    assert not queue
    A.ts(14)
    for q in range(1, 4):
        A("s_xor_b32 s5, s3, %d" % q)
        area(4, 5, q)
        A("v_add_u32 %s, s4, %s" % (v(vH + q), v(vWo)))
    for q in range(1, 4):
        for ct in range(5):
            A("ds_write_b128 %s, %s offset:%d" % (v(vL + q), v(ACC + 20 * q + 4 * ct, 4), 1024 * ct))
    A("s_mov_b32 s5, s3")
    A("s_lshl_b32 s6, s5, 10")
    A("s_add_u32 s6, s6, %d" % (AUX0 + PBUF))
    A("v_add_u32 %s, s6, %s" % (v(vH), v(vWo)))
    srd(A, 52, P_OUT, 2048 * 640 * 2)
    OROW = 176
    area(4, 3, 0)
    A("v_and_b32 v9, 15, v1")
    A("v_mul_u32_u24 v9, %d, v9" % OROW)
    A("v_lshrrev_b32 v10, 4, v1")
    A("v_lshl_add_u32 v9, v10, 3, v9")
    A("v_add_u32 v9, s4, v9")
    for p in range(3):
        A("v_add_u32 v22, %d, v1" % (64 * p))
        A("v_mul_u32_u24 v23, 52429, v22")
        A("v_lshrrev_b32 v23, 19, v23")
        A("v_mul_u32_u24 v24, 10, v23")
        A("v_sub_u32 v22, v22, v24")
        A("v_lshlrev_b32 v22, 4, v22")
        A("v_mul_u32_u24 v24, %d, v23" % OROW)
        A("v_add3_u32 %s, v24, v22, s4" % v(26 + p))
        A("v_mul_u32_u24 v24, 1280, v23")
        A("v_add_u32 %s, v24, v22" % v(30 + p))
    A("s_lshl_b32 s6, s62, 2")
    A("s_add_u32 s6, s6, s5")
    A("s_mul_i32 s6, s6, %d" % (16 * 1280))
    A("s_mul_i32 s7, s63, 160")
    A("s_add_u32 s6, s6, s7")
    A("s_waitcnt lgkmcnt(0)")
    A("s_barrier")
    R = 96
    lg.q = []
    for ct in range(5):
        for q in range(4):
            off = 1024 * ct if q else (ct >> 1) * AUXSZ + 4096 * (ct & 1)
            A("ds_read_b128 %s, %s offset:%d" % (v(R + 16 * ct + 4 * q, 4), v(vH + q), off))
            lg.issue((ct, q))
    for ct in range(5):
        lg.wait((ct, 3))
        d, r = ACC + 4 * ct, R + 16 * ct
        for h in (0, 2):
            A("v_pk_add_f32 %s, %s, %s" % (v(d + h, 2), v(d + h, 2), v(r + 4 + h, 2)))
            A("v_pk_add_f32 %s, %s, %s" % (v(r + 8 + h, 2), v(r + 8 + h, 2), v(r + 12 + h, 2)))
        for h in (0, 2):
            A("v_pk_add_f32 %s, %s, %s" % (v(d + h, 2), v(d + h, 2), v(r + 8 + h, 2)))
        for h in (0, 2):
            A("v_pk_add_f32 %s, %s, %s" % (v(d + h, 2), v(d + h, 2), v(r + h, 2)))
        A("v_cvt_pk_bf16_f32 %s, %s, %s" % (v(64 + 2 * ct), v(d), v(d + 1)))
        A("v_cvt_pk_bf16_f32 %s, %s, %s" % (v(65 + 2 * ct), v(d + 2), v(d + 3)))
        A("ds_write_b64 v9, %s offset:%d" % (v(64 + 2 * ct, 2), 32 * ct))
        lg.issue(("o", ct))
    A("s_waitcnt lgkmcnt(0)")
    for p in range(3):
        A("ds_read_b128 %s, %s" % (v(80 + 4 * p, 4), v(26 + p)))
    for p in range(3):
        A("s_waitcnt lgkmcnt(%d)" % (2 - p))
        if p == 2:
            A("s_mov_b32 exec_hi, 0")
        A("buffer_store_dwordx4 %s, %s, s[52:55], s6 offen" % (v(80 + 4 * p, 4), v(30 + p)))
    A("s_mov_b64 exec, -1")
    A.ts(15)


def aux_ids(A):
    A("s_sub_u32 s4, s3, 4")
    A("s_lshr_b32 s5, s2, 3")
    A("s_mul_i32 s5, s5, 3")
    A("s_add_u32 s5, s5, s4")
    A("s_and_b32 s68, s2, 7")
    A("s_mul_i32 s68, s68, 80")
    A("s_add_u32 s68, s68, s5")
    A("s_cmp_ge_u32 s5, 80")
    A("s_cselect_b32 s68, 640, s68")
    A("s_mul_i32 s69, s4, %d" % AUXSZ)
    A("s_add_u32 s69, s69, %d" % AUX0)
    A("s_mul_i32 s66, s4, %d" % STGP)
    A("s_add_u32 s66, s66, %d" % STG0)


def kdesc(name):
    return """.amdhsa_kernel %s
  .amdhsa_next_free_vgpr 256
  .amdhsa_next_free_sgpr 102
  .amdhsa_accum_offset 256
  .amdhsa_group_segment_fixed_size 0
  .amdhsa_kernarg_size 128
  .amdhsa_user_sgpr_count 2
  .amdhsa_user_sgpr_kernarg_segment_ptr 1
  .amdhsa_system_sgpr_workgroup_id_x 1
.end_amdhsa_kernel
""" % name


def build_fused():
    A = Asm()
    name = NAME + "_kernel"
    prologue(A, name, 0)
    st0 = list(A.stamps)
    laux, lload = A.newl("Laux"), A.newl("Lload")
    A("s_cmp_eq_u32 s3, 7")
    A("s_cbranch_scc1 %s" % lload)
    A("s_cmp_ge_u32 s3, 4")
    A("s_cbranch_scc1 %s" % laux)
    A("s_setprio %d" % OPT.get("pg", 2))
    if not OPT.get("gemmoff"):
        gemm1(A)
        if not OPT.get("g1only"):
            gemm2(A)
    else:
        ready(A)
    A.end()
    A.label(lload)
    A.stamps = list(st0)
    A("s_setprio %d" % OPT.get("pl", 1))
    loader1_setup(A)
    if OPT.get("cnt"):
        A.stamps += [11, 14]
    loader_run(A, 0, NB1 if OPT.get("g1only") else NB1 + 2 * NL2)
    A("s_waitcnt vmcnt(0) lgkmcnt(0)")
    A.ts(4)
    A.end()
    A.label(laux)
    A.stamps = list(st0)
    lpp, ln, lnc, l6 = A.newl("Lpp"), A.newl("Lnn"), A.newl("Lnc"), A.newl("L6")
    B = 64
    aux_ids(A)
    kgen_setup(A, B)

    def early(A):
        sk = A.newl("Le")
        A("s_cmp_lg_u32 s68, 0")
        A("s_cbranch_scc1 %s" % ln)
        A("s_memrealtime s[4:5]")
        A("s_waitcnt lgkmcnt(0)")
        A("s_or_b32 s4, s4, 1")
        A("v_mov_b32 v2, 0")
        A("v_mov_b32 v3, s4")
        A("s_mov_b64 exec, 1")
        A("global_store_dword v2, v3, %s sc1" % s(P_DBG, 2))
        A("s_mov_b64 exec, -1")
        A.label(ln)
        A("s_cmp_ge_u32 s68, 640")
        A("s_cbranch_scc1 %s" % sk)
        kgen_issue(A)
        A.label(sk)
    A("s_setprio 2")
    ready(A, early)
    if OPT.get("auxoff"):
        A("s_endpgm")
    A("s_cmp_ge_u32 s68, 640")
    A("s_cbranch_scc1 %s" % lnc)
    A("s_waitcnt vmcnt(0)")
    A.ts(1)
    kgen_params(A, B)
    DT = B + KB_DT
    A("v_mul_f32 %s, %s, v58" % (v(DT), fbits(LOG2E)))
    A("v_exp_f32 %s, %s" % (v(DT), v(DT)))
    A("s_nop 0")
    A("v_cvt_pk_bf16_f32 %s, %s, %s" % (v(DT), v(DT), v(DT)))
    A("v_and_b32 %s, 0xffff0000, %s" % (v(DT), v(DT)))
    A("s_setprio %d" % OPT.get("pa", 0))
    A("s_waitcnt lgkmcnt(0)")
    kgen_chunk(A, B, 0, OPT.get("pkc", 0), True)
    A.ts(3)
    kgen_chunk(A, B, 1, False, False)
    nonce_lds(A, 4)
    A.ts(5)
    def jobs(A):
        a, c = A.newl("Lj"), A.newl("Lj")
        A("s_cmp_eq_u32 s3, 4")
        A("s_cbranch_scc1 %s" % c)
        A("s_cmp_eq_u32 s3, 5")
        A("s_cbranch_scc1 %s" % a)
        colsum_gather(A)
        A("s_branch %s" % c)
        A.label(a)
        poll_all(A)
        A.label(c)
    if OPT.get("jobmid", 0):
        kgen_chunk(A, B, 2, False, False, jobs)
    else:
        kgen_chunk(A, B, 2, False, False)
        jobs(A)
    kgen_expand(A, B + KB_ACC)
    A.ts(8)
    if OPT.get("g1only"):
        A.end()
    conv(A)
    A("s_lshl_b32 s6, s68, 7")
    A("s_add_u32 s6, s6, 0x%x" % FL_A)
    A("s_waitcnt vmcnt(0)")
    signal(A, 6, 10)
    A("s_branch %s" % lpp)
    A.label(lnc)
    A("s_setprio 0")
    nonce_lds(A, 4)
    if OPT.get("g1only"):
        A.end()
    prog_wait(A, 4, 12, 8)
    aggregate(A)
    prog_wait(A, 11, 12, 8)
    jobs(A)
    prog_wait(A, 22, 12, 8)
    A.label(lpp)
    A.ts(12)
    pprep(A)
    A("v_lshlrev_b32 v13, 7, v1")
    A("s_lshl_b32 s9, s4, 7")
    A("s_add_u32 s9, s9, 0x%x" % FL_A)
    A("s_cmp_eq_u32 s3, 6")
    A("s_cselect_b32 exec_lo, 0xffff, -1")
    A("s_mov_b32 exec_hi, 0")
    poll_flags(A, [(14, 1, 13, 9, 0)], [14], 15, OPT.get("asl", 6))
    A("s_mov_b64 exec, -1")
    A.ts(13)
    pprep2(A)
    A.ts(14)
    A.end()
    hdr = "; @launch grid=(256,1,1) block=(512,1,1) lds=%d\n" % LDS_TOTAL
    return hdr, A, [name]


def main():
    hdr, A, names = build_fused()
    out = "; generated by gen.py (hand-written generator)\n" + hdr
    out += '.amdgcn_target "amdgcn-amd-amdhsa--gfx950"\n.text\n'
    out += "\n".join(A.L) + "\n"
    out += '.section .rodata,"a"\n'
    for n in names:
        out += ".p2align 6\n" + kdesc(n)
    open(sys.argv[1], "w").write(out)


main()
```

```python
import sys, math, struct

NAME = "parallel_sum__ssm_conv_s4__swiglu_ffn__prompt"
OPT = dict(ts=False)
for a in sys.argv[2:]:
    k, _, v = a.partition("=")
    OPT[k] = int(v) if v else True

WS_ST = 0x000000
WS_CS = 0x010000
WS_XT = 0x280000
WS_HF = 0x500000
WS_AT = 0xB00000
WS_FL = 0xD80000
WS_TS = 0xE00000
WS_WD = 0x1000000
WS_SIZE = 0x1200000
FL_X = WS_FL
FL_Y = WS_FL + 0x8000
FL_H = WS_FL + 0x10000
FL_A = WS_FL + 0x40000

UPOFF = 3088
SLOT1 = 6176
U1 = 2 * SLOT1
U2 = 10240
CTRL = 0
C_FULL, C_NONCE, C_PROG, C_EPI, C_CSOK, C_CNT, C_GO = 0, 4, 16, 32, 60, 80, 84
CSUM = CTRL + 128
FLG = CSUM + 768 + 256
MAIN = FLG + 256
KSTR = 4160
AUX_U = 4 * KSTR
AUXSZ = AUX_U + 4608
LDS_TOTAL = 163840
AUX0 = LDS_TOTAL - 3 * AUXSZ
ER = 112
STGSZ = 64 * ER
LNROW = 1312
NW, NXC = 6, 4
XRING = MAIN + 3 * U1
STG0 = AUX0 + 5184
STGP = STGSZ + U1
WADDR = [MAIN, MAIN + U1, MAIN + 2 * U1] + [STG0 + j * STGP + STGSZ for j in range(3)]
assert XRING + NXC * 16384 <= STG0 and WADDR[5] + U1 == LDS_TOTAL
for j in range(3):
    assert AUX0 + j * AUXSZ <= STG0 + j * STGP and STG0 + j * STGP + STGSZ <= AUX0 + (j + 1) * AUXSZ
CONV_PROG = 17


def WSLOT(u):
    return WADDR[(u + 1) % NW]


def XSLOT(c):
    return XRING + ((9 - c) % NXC) * 16384


LNST = XSLOT(3)
NS2 = 9
NL2 = 4
NR2 = OPT.get("nr2", 4)


def _g2slots():
    areas = [(WSLOT(u), WSLOT(u) + U1, u + 1) for u in range(20 - NW, 20)]
    areas += [(XSLOT(c), XSLOT(c) + 16384, 2 * c + 2) for c in range(10 - NXC, 10)]
    out = []
    for i in range(NS2):
        lo = AUX0 - (i + 1) * U2
        assert lo >= MAIN
        out.append((max(n for (a, b, n) in areas if a < lo + U2 and lo < b), lo))
    return sorted(out)


G2SLOT = _g2slots()

LOG2E = 1.4426950408889634
BUD, NON = "s0", "s1"

def fbits(x):
    return "0x%08x" % struct.unpack("<I", struct.pack("<f", x))[0]


def v(i, n=1):
    return "v%d" % i if n == 1 else "v[%d:%d]" % (i, i + n - 1)


def s(i, n=1):
    return "s%d" % i if n == 1 else "s[%d:%d]" % (i, i + n - 1)


class Cnt:
    def __init__(self, A, name, mx):
        self.A, self.name, self.mx, self.q = A, name, mx, []

    def issue(self, tag):
        self.q.append(tag)

    def wait(self, tag):
        if tag not in self.q:
            return
        i = len(self.q) - 1 - self.q[::-1].index(tag)
        n = len(self.q) - 1 - i
        self.A("s_waitcnt %s(%d)" % (self.name, min(n, self.mx)))
        self.q = self.q[i + 1:]

    def drain(self):
        self.A("s_waitcnt %s(0)" % self.name)
        self.q = []


class Asm:
    def __init__(self):
        self.L = []
        self.nl = 0
        self.stamps = []
        self.cold = []

    def flush_cold(self):
        for f in self.cold:
            f()
        self.cold = []

    def __call__(self, t):
        self.L.append("  " + t)

    def label(self, l):
        self.L.append(l + ":")

    def newl(self, p="L"):
        self.nl += 1
        return "%s_%d" % (p, self.nl)

    def c(self, t):
        self.L.append("  ; " + t)

    def ts(self, slot):
        if OPT["ts"]:
            self("%s %s" % ("s_memtime" if OPT.get("cyc") else "s_memrealtime", s(70 + 2 * slot, 2)))
            self.stamps.append(slot)

    def end(self):
        if OPT.get("probe") is not None and self.stamps:
            if OPT["probe"] in self.stamps:
                sk, lp = self.newl("Lpr"), self.newl("Lpl")
                self("s_waitcnt lgkmcnt(0)")
                self("s_cmp_lg_u32 s2, 17")
                self("s_cbranch_scc1 %s" % sk)
                self("s_cmp_lg_u32 s3, %d" % OPT.get("probew", 0))
                self("s_cbranch_scc1 %s" % sk)
                self("s_sub_u32 s4, %s, s70" % s(70 + 2 * OPT["probe"]))
                self("s_lshl_b32 s4, s4, 2")
                self("s_add_u32 s4, s4, 3000")
                self.label(lp)
                self("s_memrealtime s[6:7]")
                self("s_waitcnt lgkmcnt(0)")
                self("s_sub_u32 s6, s6, s70")
                self("s_cmp_lt_u32 s6, s4")
                self("s_cbranch_scc1 %s" % lp)
                self.label(sk)
        elif OPT.get("dbgts") is not None and self.stamps:
            sk = self.newl("Ldt")
            self("s_waitcnt lgkmcnt(0)")
            self("s_cmp_lg_u32 s2, %d" % OPT.get("dbgwg", 17))
            self("s_cbranch_scc1 %s" % sk)
            self("s_cmp_lg_u32 s3, %d" % OPT["dbgts"])
            self("s_cbranch_scc1 %s" % sk)
            self("s_mov_b64 exec, 1")
            self("v_mov_b32 v2, 0")
            for sl in self.stamps:
                if sl == 0:
                    continue
                self("s_sub_u32 s4, %s, s70" % s(70 + 2 * sl))
                self("v_mov_b32 v0, s4")
                self("global_store_dword v2, v0, %s offset:%d" % (s(44, 2), 4 * sl))
            self.label(sk)
        elif OPT["ts"] and self.stamps:
            self("s_waitcnt lgkmcnt(0)")
            self("s_mov_b64 exec, 1")
            self("s_lshl_b32 s4, s2, 3")
            self("s_add_u32 s4, s4, s3")
            self("s_lshl_b32 s4, s4, 7")
            self("s_add_u32 s4, s4, 0x%x" % WS_TS)
            self("v_mov_b32 v2, 0")
            for sl in self.stamps:
                self("v_mov_b32 v0, %s" % s(70 + 2 * sl))
                self("v_mov_b32 v1, %s" % s(71 + 2 * sl))
                self("buffer_store_dwordx2 v[0:1], v2, s[48:51], s4 offen offset:%d" % (8 * sl))
                self("s_nop 1")
        self("s_endpgm")
        self.flush_cold()


P_X, P_ARE, P_AIM, P_BRE, P_BIM, P_CRE, P_CIM, P_LDT, P_DSK, P_BX, P_WG, P_WU, P_WD, P_OUT, P_DBG, P_WS = [16 + 2 * i for i in range(16)]
SC1 = " sc1"
LSC = " sc1"


def srd(A, d, ptr, size):
    A("s_mov_b32 %s, %s" % (s(d), s(ptr)))
    A("s_mov_b32 %s, %s" % (s(d + 1), s(ptr + 1)))
    A("s_mov_b32 %s, 0x%x" % (s(d + 2), size))
    A("s_mov_b32 %s, 0x20000" % s(d + 3))


def prologue(A, name, tsslot):
    A.L.append(".globl %s" % name)
    A.L.append(".p2align 8")
    A.L.append(".type %s,@function" % name)
    A.label(name)
    A.stamps = []
    ok = A.newl("Lgo")
    A("s_cmp_lt_u32 s2, 256")
    A("s_cbranch_scc1 %s" % ok)
    A.exit = A.newl("Lexit")
    A.label(A.exit)
    A("s_endpgm")
    A.label(ok)
    A("s_load_dwordx16 s[16:31], s[0:1], 0")
    A("s_load_dwordx16 s[32:47], s[0:1], 64")
    if OPT["ts"]:
        for i in range(16):
            A("s_mov_b64 %s, 0" % s(70 + 2 * i, 2))
    A.ts(tsslot)
    A("v_lshrrev_b32 v2, 6, v0")
    A("v_and_b32 v1, 63, v0")
    A("v_readfirstlane_b32 s3, v2")
    A("v_and_b32 v2, 31, v0")
    A("v_lshlrev_b32 v2, 2, v2")
    A("v_add_u32 v2, %d, v2" % CTRL)
    A("v_mov_b32 v3, 0")
    A("ds_write_b32 v2, v3")
    A("v_lshlrev_b32 v2, 2, v1")
    A("v_mov_b32 v3, 1")
    A("ds_write_b32 v2, v3 offset:%d" % FLG)
    map_g1(A)
    map_g2(A)


def ready(A, early=None):
    A("s_waitcnt lgkmcnt(0)")
    if early:
        early(A)
    A("s_barrier")
    A("s_mov_b32 %s, 0x40000" % BUD)
    srd(A, 48, P_WS, WS_SIZE)


def tlb_warm(A, vt):
    ptrs = [P_X, P_WG, P_WU, P_ARE, P_AIM, P_BRE, P_BIM, P_CRE, P_CIM, P_LDT, P_DSK, P_WD, P_DBG, P_WS]
    A("v_mov_b32 %s, %s" % (v(vt), s(P_X)))
    A("v_mov_b32 %s, %s" % (v(vt + 1), s(P_X + 1)))
    for i, p in enumerate(ptrs):
        if i:
            A("v_writelane_b32 %s, %s, %d" % (v(vt), s(p), i))
            A("v_writelane_b32 %s, %s, %d" % (v(vt + 1), s(p + 1), i))
    A("s_mov_b64 exec, 0x%x" % ((1 << len(ptrs)) - 1))
    A("global_load_dword %s, %s, off" % (v(vt + 2), v(vt, 2)))
    A("s_mov_b64 exec, -1")


def guard(A):
    A("s_sub_u32 %s, %s, 1" % (BUD, BUD))
    A("s_cbranch_scc1 %s" % A.exit)


def map_g1(A):
    A("s_and_b32 s4, s2, 7")
    A("s_lshr_b32 s5, s2, 3")
    A("s_and_b32 s60, s4, 1")
    A("s_lshl_b32 s60, s60, 3")
    A("s_and_b32 s6, s5, 7")
    A("s_add_u32 s60, s60, s6")
    A("s_lshr_b32 s61, s4, 1")
    A("s_lshl_b32 s61, s61, 2")
    A("s_lshr_b32 s6, s5, 3")
    A("s_add_u32 s61, s61, s6")


def map_g2(A):
    A("s_and_b32 s4, s2, 7")
    A("s_lshr_b32 s5, s2, 3")
    if OPT.get("m2", 1) == 0:
        A("s_lshl_b32 s62, s4, 2")
        A("s_and_b32 s6, s5, 3")
        A("s_add_u32 s62, s62, s6")
        A("s_lshr_b32 s63, s5, 2")
    else:
        A("s_lshr_b32 s62, s4, 1")
        A("s_lshl_b32 s62, s62, 3")
        A("s_and_b32 s6, s5, 7")
        A("s_add_u32 s62, s62, s6")
        A("s_and_b32 s63, s4, 1")
        A("s_lshl_b32 s63, s63, 2")
        A("s_lshr_b32 s6, s5, 3")
        A("s_add_u32 s63, s63, s6")


def lds_wait(A, off, cmp, val, vF, vC, sF, have=False, sleep=1):
    ok, poll = A.newl("Lok"), A.newl("Lpoll")

    def loop():
        A.label(poll)
        guard(A)
        if OPT.get("cnt") and have:
            A("s_add_u32 s92, s92, 1")
        A("ds_read_b32 %s, %s offset:%d" % (v(vF), v(vC), off))
        A("s_waitcnt lgkmcnt(0)")
        A("v_readfirstlane_b32 %s, %s" % (sF, v(vF)))
        A("s_cmp_%s_u32 %s, %s" % (cmp, sF, val))
        A("s_cbranch_scc1 %s" % ok)
        A("s_sleep %d" % sleep)
        A("s_branch %s" % poll)
    if have:
        A("v_readfirstlane_b32 %s, %s" % (sF, v(vF)))
        A("s_cmp_%s_u32 %s, %s" % (cmp, sF, val))
        A("s_cbranch_scc0 %s" % poll)
        A.cold.append(loop)
    else:
        loop()
    A.label(ok)


def nonce_lds(A, vt):
    A("v_mov_b32 %s, %d" % (v(vt + 1), CTRL))
    lds_wait(A, C_NONCE, "lg", 0, vt, vt + 1, NON)


def nonce_fetch(A, vt, issued=False):
    poll, chk = A.newl("Lnp"), A.newl("Lnc")
    if issued:
        A("s_branch %s" % chk)
    A.label(poll)
    guard(A)
    A("v_mov_b32 %s, 0" % v(vt))
    A("global_load_dword %s, %s, %s sc1" % (v(vt), v(vt), s(P_DBG, 2)))
    A.label(chk)
    A("s_waitcnt vmcnt(0)")
    A("v_readfirstlane_b32 %s, %s" % (NON, v(vt)))
    A("s_cmp_lg_u32 %s, 0" % NON)
    A("s_cbranch_scc0 %s" % poll)
    A("v_mov_b32 %s, %d" % (v(vt + 1), CTRL))
    A("ds_write_b32 %s, %s offset:%d" % (v(vt + 1), v(vt), C_NONCE))


def signal(A, soff, vt):
    A("v_mov_b32 %s, 0" % v(vt))
    A("v_mov_b32 %s, %s" % (v(vt + 1), NON))
    A("s_mov_b64 exec, 1")
    A("buffer_store_dword %s, %s, s[48:51], %s offen sc1" % (v(vt + 1), v(vt), s(soff)))
    A("s_mov_b64 exec, -1")


def poll_flags(A, loads, tags, vt, sleep=2):
    top, done = A.newl("Lgp"), A.newl("Lgd")
    A.label(top)
    guard(A)
    for (r, n, vo, so, imm) in loads:
        op = {1: "dword", 2: "dwordx2", 4: "dwordx4"}[n]
        A("buffer_load_%s %s, %s, s[48:51], %s offen offset:%d sc1" % (op, v(r, n), v(vo), s(so), imm))
    A("s_waitcnt vmcnt(0)")
    tag_check(A, tags, vt, done)
    A("s_sleep %d" % sleep)
    A("s_branch %s" % top)
    A.label(done)


def tag_check(A, tags, vt, done):
    A("v_xor_b32 %s, %s, %s" % (v(vt), NON, v(tags[0])))
    for x in tags[1:]:
        A("v_xor_b32 %s, %s, %s" % (v(vt + 1), NON, v(x)))
        A("v_or_b32 %s, %s, %s" % (v(vt), v(vt), v(vt + 1)))
    A("v_cmp_ne_u32 s[4:5], 0, %s" % v(vt))
    A("s_cmp_eq_u64 s[4:5], 0")
    A("s_cbranch_scc1 %s" % done)


def setexec(A, m):
    A("s_mov_b32 exec_lo, 0x%x" % (m & 0xffffffff))
    A("s_mov_b32 exec_hi, 0x%x" % (m >> 32))


def poll_all(A):
    A("v_lshlrev_b32 v2, 7, v1")
    A("s_mov_b32 s6, 0x%x" % FL_Y)
    A("s_mov_b64 exec, 0xffff")
    poll_flags(A, [(6, 1, 2, 6, 0)], [6], 3, 4)
    A("s_mov_b64 exec, -1")
    A("v_mov_b32 v2, %d" % CTRL)
    A("v_mov_b32 v3, 1")
    A("ds_write_b32 v2, v3 offset:%d" % C_GO)


def aggregate(A):
    sk = A.newl("Lag")
    A("s_cmp_lt_u32 s2, 240")
    A("s_cbranch_scc1 %s" % sk)
    A("s_cmp_lg_u32 s3, 4")
    A("s_cbranch_scc1 %s" % sk)
    A("v_lshlrev_b32 v2, 7, v1")
    A("s_sub_u32 s7, s2, 240")
    A("s_lshl_b32 s6, s7, 11")
    A("s_add_u32 s6, s6, 0x%x" % FL_X)
    A("s_mov_b64 exec, 0xffff")
    poll_flags(A, [(6, 1, 2, 6, 0)], [6], 3, 4)
    A("s_mov_b64 exec, -1")
    A("s_lshl_b32 s6, s7, 7")
    A("s_add_u32 s6, s6, 0x%x" % FL_Y)
    signal(A, 6, 10)
    A.label(sk)


LN_X, LN_F, LN_T = 104, 144, 224


def ln_issue(A):
    T = LN_T
    A("v_lshrrev_b32 %s, 3, v1" % v(T))
    A("v_and_b32 %s, 7, v1" % v(T + 1))
    A("v_mul_u32_u24 %s, 1280, %s" % (v(T + 2), v(T)))
    A("v_lshl_add_u32 %s, %s, 4, %s" % (v(T + 2), v(T + 1), v(T + 2)))
    A("s_lshl_b32 s4, s60, 4")
    A("s_add_u32 s4, s4, s61")
    A("s_mul_i32 s4, s4, %d" % (8 * 1280))
    for i in range(10):
        A("buffer_load_dwordx4 %s, %s, s[52:55], s4 offen offset:%d" % (v(LN_X + 4 * i, 4), v(T + 2), 128 * i))


def red8(A, r):
    for m in ["quad_perm:[1,0,3,2]", "quad_perm:[2,3,0,1]", "row_half_mirror"]:
        A("s_nop 1")
        A("v_add_f32_dpp %s, %s, %s %s row_mask:0xf bank_mask:0xf" % (v(r), v(r), v(r), m))


def ln8(A):
    X, F, T = LN_X, LN_F, LN_T
    S0, S1, M, R = T + 4, T + 6, T + 8, T + 10
    for i in range(40):
        A("v_lshlrev_b32 %s, 16, %s" % (v(F + 2 * i), v(X + i)))
        A("v_and_b32 %s, 0xffff0000, %s" % (v(F + 2 * i + 1), v(X + i)))
    A("v_pk_add_f32 %s, %s, %s" % (v(S0, 2), v(F, 2), v(F + 2, 2)))
    A("v_pk_add_f32 %s, %s, %s" % (v(S1, 2), v(F + 4, 2), v(F + 6, 2)))
    for i in range(4, 40):
        d = S0 + 2 * (i & 1)
        A("v_pk_add_f32 %s, %s, %s" % (v(d, 2), v(d, 2), v(F + 2 * i, 2)))
    A("v_pk_add_f32 %s, %s, %s" % (v(S0, 2), v(S0, 2), v(S1, 2)))
    A("v_add_f32 %s, %s, %s" % (v(S0), v(S0), v(S0 + 1)))
    red8(A, S0)
    A("v_mul_f32 %s, %s, %s" % (v(M + 1), fbits(1.0 / 640), v(S0)))
    A("v_cvt_pk_bf16_f32 %s, %s, %s" % (v(M), v(M + 1), v(M + 1)))
    A("v_and_b32 %s, 0xffff0000, %s" % (v(M), v(M)))
    for i in range(40):
        A("v_pk_add_f32 %s, %s, %s op_sel_hi:[1,0] neg_lo:[0,1] neg_hi:[0,1]" % (v(F + 2 * i, 2), v(F + 2 * i, 2), v(M, 2)))
    for i in range(40):
        d = S0 + 2 * (i & 1)
        if i < 2:
            A("v_pk_mul_f32 %s, %s, %s" % (v(d, 2), v(F + 2 * i, 2), v(F + 2 * i, 2)))
        else:
            A("v_pk_fma_f32 %s, %s, %s, %s" % (v(d, 2), v(F + 2 * i, 2), v(F + 2 * i, 2), v(d, 2)))
        A("v_cvt_pk_bf16_f32 %s, %s, %s" % (v(X + i), v(F + 2 * i), v(F + 2 * i + 1)))
    A("v_pk_add_f32 %s, %s, %s" % (v(S0, 2), v(S0, 2), v(S1, 2)))
    A("v_add_f32 %s, %s, %s" % (v(S0), v(S0), v(S0 + 1)))
    red8(A, S0)
    A("v_sub_f32 %s, %s, %s" % (v(M + 1), v(M + 1), v(M)))
    A("v_mul_f32 %s, %s, %s" % (v(R), fbits(1.0 / 640), v(S0)))
    A("v_fma_f32 %s, -%s, %s, %s" % (v(R), v(M + 1), v(M + 1), v(R)))
    A("v_max_f32 %s, 0, %s" % (v(R), v(R)))
    A("v_cvt_pk_bf16_f32 %s, %s, %s" % (v(R), v(R), v(R)))
    A("v_and_b32 %s, 0xffff0000, %s" % (v(R), v(R)))
    A("v_add_f32 %s, %s, %s" % (v(R), fbits(1e-5), v(R)))
    A("v_cvt_pk_bf16_f32 %s, %s, %s" % (v(R), v(R), v(R)))
    A("v_and_b32 %s, 0xffff0000, %s" % (v(R), v(R)))
    A("v_sqrt_f32 %s, %s" % (v(R), v(R)))
    A("s_nop 0")
    A("v_cvt_pk_bf16_f32 %s, %s, %s" % (v(S0), v(M), v(R)))
    A("v_and_b32 %s, 0xffff0000, %s" % (v(R), v(S0)))
    A("v_rcp_f32 %s, %s" % (v(R), v(R)))
    for i in range(40):
        A("v_lshlrev_b32 %s, 16, %s" % (v(F + 2 * i), v(X + i)))
        A("v_and_b32 %s, 0xffff0000, %s" % (v(F + 2 * i + 1), v(X + i)))
    A("v_mul_u32_u24 %s, %d, %s" % (v(T + 2), LNROW, v(T)))
    A("v_lshl_add_u32 %s, %s, 4, %s" % (v(T + 2), v(T + 1), v(T + 2)))
    A("v_add_u32 %s, %d, %s" % (v(T + 2), LNST, v(T + 2)))
    for i in range(11):
        if i < 10:
            for e in range(4):
                A("v_pk_mul_f32 %s, %s, %s op_sel_hi:[1,0]" % (v(F + 8 * i + 2 * e, 2), v(F + 8 * i + 2 * e, 2), v(R, 2)))
        if i:
            A("ds_write_b128 %s, %s offset:%d" % (v(T + 2), v(X + 4 * (i - 1), 4), 128 * (i - 1)))
        if i < 10:
            for e in range(4):
                A("v_cvt_pk_bf16_f32 %s, %s, %s" % (v(X + 4 * i + e), v(F + 8 * i + 2 * e), v(F + 8 * i + 2 * e + 1)))


def ln_store(A):
    F, T = LN_F, LN_T
    S0 = T + 4
    a0, a1, a2 = T + 12, T + 13, T + 14
    A("v_bfe_u32 %s, v1, 2, 2" % v(a0))
    A("v_mul_u32_u24 %s, %d, %s" % (v(a0), LNROW, v(a0)))
    A("v_lshrrev_b32 %s, 4, v1" % v(a1))
    A("v_lshl_add_u32 %s, %s, 5, %s" % (v(a0), v(a1), v(a0)))
    A("v_and_b32 %s, 3, v1" % v(a1))
    A("v_lshl_add_u32 %s, %s, 3, %s" % (v(a0), v(a1), v(a0)))
    A("v_add_u32 %s, %d, %s" % (v(a0), LNST, v(a0)))
    for i in range(10):
        A("ds_read_b64_tr_b16 %s, %s offset:%d" % (v(F + 4 * i, 2), v(a0), 128 * i))
        A("ds_read_b64_tr_b16 %s, %s offset:%d" % (v(F + 4 * i + 2, 2), v(a0), 128 * i + 4 * LNROW))
    prog(A, 0)
    A("v_mov_b32 %s, %s" % (v(S0 + 1), NON))
    A("s_lshl_b32 s9, s60, 4")
    A("s_add_u32 s9, s9, s61")
    A("s_lshl_b32 s6, s9, 6")
    A("s_add_u32 s6, s6, 0x%x" % WS_ST)
    setexec(A, 0x0101010101010101)
    A("buffer_store_dwordx2 %s, v1, s[48:51], s6 offen sc1" % v(S0, 2))
    A("s_mov_b64 exec, -1")
    A("v_lshlrev_b32 %s, 4, v1" % v(a0))
    A("s_mul_i32 s7, s9, 10240")
    A("s_add_u32 s7, s7, 0x%x" % WS_XT)
    A("s_waitcnt lgkmcnt(0)")
    for i in range(10):
        A("buffer_store_dwordx4 %s, %s, s[48:51], s7 offen offset:%d sc1" % (v(F + 4 * i, 4), v(a0), 1024 * (i % 4)))
        if i % 4 == 3:
            A("s_add_u32 s7, s7, 4096")


def flag_p(A):
    sk = A.newl("Lf")
    A("v_mov_b32 v10, %d" % CTRL)
    A("v_mov_b32 v11, 1")
    A("s_waitcnt vmcnt(0)")
    A("s_mov_b64 exec, 1")
    A("ds_add_rtn_u32 v11, v10, v11 offset:%d" % C_CNT)
    A("s_mov_b64 exec, -1")
    A("s_waitcnt lgkmcnt(0)")
    A("v_readfirstlane_b32 s4, v11")
    A("s_cmp_lg_u32 s4, 3")
    A("s_cbranch_scc1 %s" % sk)
    A("s_lshl_b32 s6, s2, 7")
    A("s_add_u32 s6, s6, 0x%x" % FL_X)
    signal(A, 6, 10)
    A.label(sk)


LV_C, LV_T, LV_Q = 36, 37, 40


def _schedule():
    B = []
    for u in range(20):
        B.append((u, 1, ("w", u, 12, u - NW + 2 if u >= NW else (1 if u == 5 else 0))))
    for h in range(20):
        c = h >> 1
        need = 2 * (c - NXC) + 3 if c >= NXC else (1 if c == 3 else 0)
        lead = OPT.get("xlead", 1) if c else 0
        B.append((2 * c - lead * (1 - (h & 1)), 0, ("x", h, 8, need)))
    B.sort(key=lambda e: (e[0], e[1]))
    B = [e[2] for e in B]
    for i in range(2 * NL2):
        B.append(("d", i, 10, G2SLOT[i][0] + 1))
    B.append(("d", 2 * NL2, 10, G2SLOT[2 * NL2][0] + 1))
    return B


GAPS = {"cur": 4}


class Dma:
    def __init__(self, A, n):
        self.A, self.n, self.k = A, n, 0

    def __call__(self, t):
        self.A(t)
        self.k += 1
        GAP = GAPS["cur"]
        if GAP and (self.k % GAP == 0 or self.k == self.n):
            self.A("buffer_load_dword v35, v27, s[48:51], 0 offen")


SCHED = _schedule()
CUM = [0]
for e in SCHED:
    CUM.append(CUM[-1] + e[2])
NB1 = 40


def _flagafter():
    out = {}
    for u in range(20 + 2 * NL2 + 1):
        want = [("d", u - 20)] if u >= 20 else [("w", u), ("x", 2 * (u >> 1)), ("x", 2 * (u >> 1) + 1)]
        i = max(i for i, e in enumerate(SCHED) if (e[0], e[1]) in want)
        out.setdefault(i, []).append(u)
    return out


FLAGAFTER = _flagafter()


def loader_run(A, first, last):
    def rdprog():
        A("ds_read_b128 %s, %s offset:%d" % (v(LV_Q, 4), v(LV_C), C_PROG))

    def getprog():
        A("s_waitcnt lgkmcnt(0)")
        A("v_min_u32 v39, %s, %s" % (v(LV_Q), v(LV_Q + 1)))
        A("v_min3_u32 v39, v39, %s, %s" % (v(LV_Q + 2), v(LV_Q + 3)))
        A("s_nop 0")
        A("v_readfirstlane_b32 s67, v39")
    wait = A.newl("Llw")

    def waitfn():
        A.label(wait)
        guard(A)
        if OPT.get("cnt"):
            A("s_add_u32 s92, s92, 1")
        rdprog()
        getprog()
        A("s_cmp_ge_u32 s67, s9")
        A("s_cbranch_scc0 %s" % wait)
        A("s_setpc_b64 s[34:35]")
    A.cold.append(waitfn)
    known = 0
    rdprog()
    for i in range(first, last):
        kind, idx, P, need = SCHED[i]
        if OPT.get("free") and i < NB1:
            need = 0
        if need > known:
            go = A.newl("Llg")
            getprog()
            A("s_cmp_ge_u32 s67, %d" % need)
            A("s_cbranch_scc1 %s" % go)
            A("s_movk_i32 s9, %d" % need)
            A("s_call_b64 s[34:35], %s" % wait)
            A.label(go)
            known = need
        if OPT.get("fine") and kind == "w" and idx in (1, 2, 3, 4, 5, 6, 7, 8):
            A.ts(4 + idx)
        elif OPT.get("cnt") and kind == "w" and idx in (1, 5, 8, 12, 16):
            A.ts({1: 6, 5: 7, 8: 8, 12: 9, 16: 10}[idx])
        nxt = i + 1 < last and SCHED[i + 1][3] > known
        GAPS["cur"] = OPT.get("gap0", 4) if i < OPT.get("gapi", 9) else (OPT.get("gap", 1) if i < NB1 else OPT.get("gap2", 2))
        if i == NB1:
            loader2_setup(A)
            lds_wait(A, C_GO, "lg", 0, 38, LV_C, "s4")
            A.ts(3)
        {"w": issue1, "x": issue_x, "d": issue2}[kind](A, idx, rdprog if nxt else None)
        if i in FLAGAFTER:
            A("s_mov_b32 m0, %d" % (FLG + 4 * max(FLAGAFTER[i]) - 252))
            A("s_nop 0")
            A("buffer_load_dword v27, s[48:51], 0 offen lds")


def rot1(A, sd):
    if OPT.get("rot") == 0:
        A("s_mov_b32 %s, 0" % s(sd))
        return
    if OPT.get("rot") == 2:
        A("s_xor_b32 %s, s60, s61" % s(sd))
        A("s_and_b32 %s, %s, 1" % (s(sd), s(sd)))
        A("s_mul_i32 %s, %s, 5" % (s(sd), s(sd)))
        return
    A("s_and_b32 %s, s61, 3" % s(sd))
    A("s_mul_i32 %s, %s, %d" % (s(sd), s(sd), OPT.get("rnb", 0)))
    A("s_add_u32 %s, %s, s60" % (s(sd), s(sd)))
    for _ in range(2):
        A("s_cmp_ge_u32 %s, 10" % s(sd))
        A("s_cselect_b32 s5, 10, 0")
        A("s_sub_u32 %s, %s, s5" % (s(sd), s(sd)))


def loader1_setup(A):
    for p in range(3):
        A("v_add_u32 v40, %d, v1" % (64 * p))
        A("v_mul_u32_u24 v41, 43691, v40")
        A("v_lshrrev_b32 v41, 19, v41")
        A("v_mul_u32_u24 v42, 12, v41")
        A("v_sub_u32 v40, v40, v42")
        A("v_mul_u32_u24 v41, 3072, v41")
        A("v_lshl_add_u32 %s, v40, 4, v41" % v(32 + p))
        if p:
            A("v_subrev_u32 %s, %d, %s" % (v(32 + p), 1024 * p, v(32 + p)))
    A("v_lshrrev_b32 v40, 3, v1")
    A("v_mul_u32_u24 v40, 1280, v40")
    A("v_and_b32 v41, 7, v1")
    A("v_lshrrev_b32 v42, 4, v1")
    A("v_xor_b32 v41, v41, v42")
    A("v_lshl_add_u32 v28, v41, 4, v40")
    A("v_xor_b32 v29, 64, v28")
    A("v_add_u32 v29, %d, v29" % (8 * 1280 - 1024))
    A("v_add_u32 v30, %d, v28" % (16 * 1280 - 2048))
    A("v_add_u32 v31, %d, v29" % (16 * 1280 - 2048))
    rot1(A, 4)
    A("s_mul_i32 s66, s61, 192")
    A("s_add_u32 s69, s66, %d" % (640 * 3072))
    A("s_mul_i32 s5, s4, %d" % (64 * 3072))
    A("s_add_u32 s64, s66, s5")
    A("s_mul_i32 s10, s60, %d" % (128 * 1280))
    A("s_add_u32 s11, s10, 1280")
    A("s_lshl_b32 s4, s4, 7")
    A("s_add_u32 s65, s10, s4")
    A("v_mov_b32 %s, %d" % (v(LV_C), CTRL))
    A("v_mov_b32 v27, 0x7ffffff0")
    ready(A)
    srd(A, 12, P_X, 2048 * 640 * 2)
    srd(A, 52, P_WG, 640 * 1536 * 2)
    srd(A, 56, P_WU, 640 * 1536 * 2)


def issue_x(A, h, mid):
    base = XSLOT(h >> 1) + (h & 1) * 8192
    D = Dma(A, 8)
    for g in range(2):
        A("s_mov_b32 m0, %d" % (base + 4096 * g))
        A("s_add_u32 s7, s65, %d" % ((64 * (h & 1) + 32 * g) * 1280))
        if g == 1 and mid:
            mid()
        for p in range(4):
            D("buffer_load_dwordx4 %s, s[12:15], s7 offen offset:%d lds" % (v(28 + p), 1024 * p))
    if h & 1:
        A("s_add_u32 s65, s65, 128")
        A("s_cmp_ge_u32 s65, s11")
        A("s_cselect_b32 s65, s10, s65")


def issue1(A, u, mid):
    base = WSLOT(u)
    D = Dma(A, 12)
    for k in range(2):
        so = "s64" if k == 0 else "s6"
        A("s_mov_b32 m0, %d" % (base + k * SLOT1))
        if k == 0:
            A("s_add_u32 s6, s64, %d" % (16 * 3072))
        else:
            A("s_add_u32 s64, s64, %d" % (32 * 3072))
        if k == 1 and mid:
            mid()
        for p in range(3):
            D("buffer_load_dwordx4 %s, s[52:55], %s offen offset:%d lds" % (v(32 + p), so, 1024 * p))
        A("s_mov_b32 m0, %d" % (base + k * SLOT1 + UPOFF))
        if k == 1 and (u & 1):
            A("s_cmp_ge_u32 s64, s69")
            A("s_cselect_b32 s64, s66, s64")
        else:
            A("s_nop 0")
        for p in range(3):
            D("buffer_load_dwordx4 %s, s[56:59], %s offen offset:%d lds" % (v(32 + p), so, 1024 * p))


def rot2(A, sd):
    if OPT.get("m2", 1):
        A("s_and_b32 %s, s62, 7" % s(sd))
        A("s_mul_i32 %s, %s, 3" % (s(sd), s(sd)))
        A("s_lshr_b32 %s, %s, 1" % (s(sd), s(sd)))
    else:
        A("s_and_b32 %s, s62, 3" % s(sd))
        A("s_mul_i32 %s, %s, 3" % (s(sd), s(sd)))


def loader2_setup(A):
    rot2(A, 4)
    A("s_add_u32 s4, s4, %d" % NR2)
    A("s_cmp_ge_u32 s4, 12")
    A("s_cselect_b32 s5, 12, 0")
    A("s_sub_u32 s4, s4, s5")
    A("s_mul_i32 s66, s63, %d" % (48 * 5120))
    A("s_add_u32 s66, s66, 0x%x" % WS_WD)
    A("s_add_u32 s69, s66, %d" % (12 * 5120))
    A("s_mul_i32 s4, s4, 5120")
    A("s_add_u32 s64, s66, s4")
    A("v_lshlrev_b32 v32, 4, v1")
    A("v_add_u32 v33, 4096, v32")


def issue2(A, u, mid):
    base = G2SLOT[u][1]
    D = Dma(A, 10)
    if u == 2 * NL2:
        for p in range(5):
            A("v_add_u32 v40, %d, v1" % (64 * p))
            A("v_mul_u32_u24 v41, 52429, v40")
            A("v_lshrrev_b32 v41, 19, v41")
            A("v_mul_u32_u24 v41, %d, v41" % (1280 - 160))
            A("v_lshl_add_u32 %s, v40, 4, v41" % v(44 + p))
        A("s_mul_i32 s6, s62, %d" % (64 * 1280))
        A("s_mul_i32 s7, s63, 160")
        A("s_add_u32 s6, s6, s7")
        for h in range(2):
            for p in range(5):
                A("s_mov_b32 m0, %d" % (base + 5120 * h + 1024 * p))
                A("s_nop 0")
                D("buffer_load_dwordx4 %s, s[12:15], s6 offen lds" % v(44 + p))
            A("s_add_u32 s6, s6, %d" % (32 * 1280))
        return
    for w in range(2):
        A("s_mov_b32 m0, %d" % (base + 5120 * w))
        A("s_add_u32 s6, s64, %d" % ((2 * (u & 1) + w) * 12 * 5120))
        if w == 1 and mid:
            mid()
        for p in range(4):
            D("buffer_load_dwordx4 v32, s[48:51], s6 offen offset:%d%s lds" % (1024 * p, LSC))
        A("s_mov_b32 m0, %d" % (base + 5120 * w + 4096))
        A("s_nop 0")
        D("buffer_load_dwordx4 v33, s[48:51], s6 offen%s lds" % LSC)
    if u & 1:
        A("s_add_u32 s64, s64, 5120")
        A("s_cmp_ge_u32 s64, s69")
        A("s_cselect_b32 s64, s66, s64")


def colsum_gather(A):
    R = 216
    A("v_lshlrev_b32 v2, 4, v1")
    A("s_mul_i32 s6, s61, 10240")
    A("s_add_u32 s6, s6, 0x%x" % WS_CS)
    A("s_add_u32 s7, s6, 4096")
    A("s_add_u32 s8, s6, 8192")
    poll_flags(A, [(R + 4 * i, 4, 2, 6 + i // 4, 1024 * (i % 4)) for i in range(10)], [R + 3 + 4 * i for i in range(10)], 3, 8)
    for i in range(1, 10):
        for e in range(3):
            A("v_add_f32 %s, %s, %s" % (v(R + e), v(R + e), v(R + 4 * i + e)))
    A("v_lshlrev_b32 v2, 2, v1")
    for e in range(3):
        A("ds_write_b32 v2, %s offset:%d" % (v(R + e), CSUM + 256 * e))
    A("v_mov_b32 v2, %d" % CTRL)
    A("v_mov_b32 v3, 1")
    A("ds_write_b32 v2, v3 offset:%d" % C_CSOK)


WDR = 216


def wd_issue(A):
    T = 200
    srd(A, 56, P_WD, 1536 * 640 * 2)
    A("s_lshl_b32 s4, s2, 1")
    A("s_add_u32 s4, s4, s3")
    A("s_mul_i32 s14, s4, 52429")
    A("s_lshr_b32 s14, s14, 19")
    A("s_mul_i32 s5, s14, 10")
    A("s_sub_u32 s13, s4, s5")
    A("s_mul_i32 s4, s14, %d" % (32 * 1280))
    A("s_lshl_b32 s5, s13, 7")
    A("s_add_u32 s4, s4, s5")
    A("v_lshrrev_b32 %s, 3, v1" % v(T))
    A("v_mul_u32_u24 %s, 1280, %s" % (v(T), v(T)))
    A("v_and_b32 %s, 7, v1" % v(T + 1))
    A("v_lshl_add_u32 %s, %s, 4, %s" % (v(T), v(T + 1), v(T)))
    A("s_lshl_b32 s7, s3, 12")
    A("s_add_u32 s7, s7, %d" % WSLOT(5))
    for p in range(4):
        A("s_add_u32 m0, s7, %d" % (1024 * p))
        A("s_nop 0")
        A("buffer_load_dwordx4 %s, s[56:59], s4 offen lds" % v(T))
        A("s_add_u32 s4, s4, %d" % (8 * 1280))


def wd_relayout(A):
    skip = A.newl("Lwd")
    T = 200
    A("s_waitcnt vmcnt(0)")
    A("s_cmp_ge_u32 s2, 240")
    A("s_cbranch_scc1 %s" % skip)
    A("s_lshl_b32 s7, s3, 12")
    A("s_add_u32 s7, s7, %d" % WSLOT(5))
    A("v_lshrrev_b32 %s, 2, v1" % v(T))
    A("v_lshlrev_b32 %s, 7, %s" % (v(T), v(T)))
    A("v_and_b32 %s, 3, v1" % v(T + 1))
    A("v_lshl_add_u32 %s, %s, 3, %s" % (v(T), v(T + 1), v(T)))
    A("v_add_u32 %s, s7, %s" % (v(T), v(T)))
    A("v_lshlrev_b32 %s, 4, v1" % v(T + 1))
    for c in range(4):
        A("ds_read_b64_tr_b16 %s, %s offset:%d" % (v(WDR + 4 * c, 2), v(T), 32 * c))
        A("ds_read_b64_tr_b16 %s, %s offset:%d" % (v(WDR + 2 + 4 * c, 2), v(T), 32 * c + 2048))
    for c in range(4):
        A("s_lshl_b32 s4, s13, 2")
        A("s_add_u32 s4, s4, %d" % c)
        A("s_mul_i32 s5, s4, 52429")
        A("s_lshr_b32 s5, s5, 18")
        A("s_mul_i32 s6, s5, 5")
        A("s_sub_u32 s4, s4, s6")
        A("s_mul_i32 s5, s5, 48")
        A("s_add_u32 s5, s5, s14")
        A("s_mul_i32 s5, s5, 5")
        A("s_add_u32 s4, s4, s5")
        A("s_lshl_b32 s4, s4, 10")
        A("s_add_u32 s4, s4, 0x%x" % WS_WD)
        A("s_waitcnt lgkmcnt(%d)" % (6 - 2 * c))
        A("buffer_store_dwordx4 %s, %s, s[48:51], s4 offen sc1" % (v(WDR + 4 * c, 4), v(T + 1)))
    A.label(skip)


G_vA0, G_vA1, G_vC, G_vF, G_vP, G_vXo, G_vPa = 2, 3, 4, 5, 6, 7, 8


def prog(A, val):
    A("v_mov_b32 %s, %d" % (v(G_vP), val + 1))
    A("ds_write_b32 %s, %s" % (v(G_vPa), v(G_vP)))


def full_read(A, u):
    A("ds_read_b32 %s, %s offset:%d" % (v(G_vF), v(G_vC), FLG + 4 * u))


def full_wait(A, u, have=True):
    if OPT.get("free"):
        return
    if not getattr(A, "fullfn", None):
        A.fullfn = A.newl("Lfw")

        def fn():
            A.label(A.fullfn)
            guard(A)
            if OPT.get("cnt"):
                A("s_add_u32 s92, s92, 1")
            A("ds_read_b32 %s, v11" % v(G_vF))
            A("s_waitcnt lgkmcnt(0)")
            A("v_readfirstlane_b32 s10, %s" % v(G_vF))
            A("s_cmp_eq_u32 s10, 0")
            A("s_cbranch_scc0 %s" % A.fullfn)
            A("s_setpc_b64 s[34:35]")
        A.cold.append(fn)
    ok = A.newl("Lok")
    if have:
        A("v_readfirstlane_b32 s10, %s" % v(G_vF))
        A("s_cmp_eq_u32 s10, 0")
        A("s_cbranch_scc1 %s" % ok)
    A("v_mov_b32 v11, %d" % (FLG + 4 * u))
    A("s_call_b64 s[34:35], %s" % A.fullfn)
    A.label(ok)


def wfrag_addr(A, d, t):
    A("v_bfe_u32 %s, v1, 2, 2" % v(t))
    A("v_lshrrev_b32 %s, 5, v1" % v(t + 1))
    A("v_lshl_add_u32 %s, %s, 3, %s" % (v(t), v(t + 1), v(t)))
    A("v_mul_u32_u24 %s, 192, %s" % (v(d), v(t)))
    A("v_bfe_u32 %s, v1, 4, 1" % v(t))
    A("v_lshl_add_u32 %s, %s, 5, %s" % (v(d), v(t), v(d)))
    A("v_and_b32 %s, 1, v1" % v(t))
    A("v_lshl_add_u32 %s, %s, 3, %s" % (v(d), v(t), v(d)))
    A("v_bfe_u32 %s, v1, 1, 1" % v(t))
    A("v_mul_u32_u24 %s, %d, %s" % (v(t), UPOFF, v(t)))
    A("v_add_u32 %s, %s, %s" % (v(d), v(t), v(d)))


def phase0(A, nyoung):
    done, l3 = A.newl("Lp0d"), A.newl("Lp03")
    A("s_cmp_eq_u32 s3, 3")
    A("s_cbranch_scc1 %s" % l3)
    A("s_cmp_eq_u32 s3, 2")
    A("s_cbranch_scc1 %s" % done)
    wd_relayout(A)
    A("s_branch %s" % done)
    A.label(l3)
    A("s_waitcnt vmcnt(%d)" % nyoung)
    A.ts(1)
    A("v_mov_b32 v22, 0")
    A("global_load_dword v22, v22, %s sc1" % s(P_DBG, 2))
    ln8(A)
    nonce_fetch(A, 22, True)
    ln_store(A)
    A.label(done)
    A("s_waitcnt lgkmcnt(0)")
    A.ts(2)


def gemm1(A):
    ACC, FB = 160, 100
    SEL, CSD = 64, 80
    ST = 16
    vX = 12
    vA0, vC, vF, vP, vXo, vPa = G_vA0, G_vC, G_vF, G_vP, G_vXo, G_vPa
    lg = Cnt(A, "lgkmcnt", 15)
    A("s_and_b32 s11, s3, 1")
    A("s_lshr_b32 s12, s3, 1")
    A("s_lshl_b32 s8, s60, 1")
    A("s_add_u32 s8, s8, s11")
    wfrag_addr(A, vA0, 9)
    A("s_lshl_b32 s4, s12, 4")
    A("v_add_u32 %s, s4, %s" % (v(vA0), v(vA0)))
    A("v_add_u32 %s, %d, %s" % (v(G_vA1), WADDR[3], v(vA0)))
    A("v_and_b32 v9, 31, v1")
    A("v_bfe_u32 v10, v1, 1, 3")
    A("v_lshrrev_b32 v11, 5, v1")
    A("v_xor_b32 v10, v10, v11")
    A("v_lshlrev_b32 v10, 4, v10")
    A("v_lshl_add_u32 v10, v9, 7, v10")
    A("s_lshl_b32 s4, s11, 13")
    A("s_add_u32 s4, s4, %d" % XRING)
    for j in range(4):
        A("v_xor_b32 %s, %d, v10" % (v(vX + j), 32 * j))
        A("v_add_u32 %s, s4, %s" % (v(vX + j), v(vX + j)))
    A("v_mov_b32 %s, %d" % (v(vC), CTRL))
    A("s_lshl_b32 s4, s3, 2")
    A("s_add_u32 s4, s4, %d" % (CTRL + C_PROG))
    A("v_mov_b32 %s, s4" % v(vPa))
    A("s_lshl_b32 s4, s12, 2")
    A("v_subrev_u32 v9, s4, v9")
    A("v_mov_b32 v10, 0x3f803f80")
    for t in range(3):
        A("v_cmp_eq_u32 vcc, %d, v9" % t)
        A("s_nop 1")
        for d in range(4):
            A("v_cndmask_b32 %s, 0, v10, vcc" % v(SEL + 4 * t + d))

    def early(A):
        sk, l3 = A.newl("Le"), A.newl("Le")
        srd(A, 52, P_X, 2048 * 640 * 2)
        A("s_cmp_eq_u32 s3, 3")
        A("s_cbranch_scc1 %s" % l3)
        A("s_cmp_eq_u32 s3, 2")
        A("s_cbranch_scc1 %s" % sk)
        wd_issue(A)
        A("s_branch %s" % sk)
        A.label(l3)
        ln_issue(A)
        A.label(sk)
    ready(A, early)
    if not OPT.get("auxoff"):
        phase0(A, 0)

    def W(ks, t):
        return FB + 20 * (ks % 3) + 4 * t

    def X(ks, a):
        return FB + 20 * (ks % 3) + 12 + 4 * a

    def wread(ks, t):
        if OPT.get("nowr"):
            return
        off, b = WSLOT(ks >> 1) + (ks & 1) * SLOT1 + 64 * t, vA0
        if off >= WADDR[3]:
            off, b = off - WADDR[3], G_vA1
        A("ds_read_b64_tr_b16 %s, %s offset:%d" % (v(W(ks, t), 2), v(b), off))
        lg.issue(("w", ks, t, 0))
        A("ds_read_b64_tr_b16 %s, %s offset:%d" % (v(W(ks, t) + 2, 2), v(b), off + 768))
        lg.issue(("w", ks, t))

    def xread(ks, a):
        if OPT.get("noxr"):
            return
        A("ds_read_b128 %s, %s offset:%d" % (v(X(ks, a), 4), v(vX + ks % 4), XSLOT(ks >> 2) - XRING + 4096 * a))
        lg.issue(("x", ks, a))

    def reads(ks):
        return [lambda: xread(ks, 0), lambda: wread(ks, 0), lambda: xread(ks, 1), lambda: wread(ks, 1), lambda: wread(ks, 2)]
    prog(A, 0)
    full_wait(A, 0, False)
    A.ts(4)
    E = OPT.get("lead", 3)
    allr = [(ks, i, f) for ks in range(40) for i, f in enumerate(reads(ks))]
    state = {"g": 0, "freshf": False, "prog": 0}

    def next_read():
        if state["g"] >= len(allr):
            return
        ks, i, f = allr[state["g"]]
        state["g"] += 1
        if i == 0 and ks % 2 == 0 and ks > 0:
            lg.wait(("f", ks))
            full_wait(A, ks // 2)
        f()
        if i == OPT.get("fn", 0) and ks % 2 == 1 and ks + 1 < 40:
            full_read(A, (ks + 1) // 2)
            lg.issue(("f", ks + 1))

    def try_prog():
        u = state["prog"]
        last = 10 * u + 9
        if u < 20 and state["g"] > last and ("w", 2 * u + 1, 2) not in lg.q:
            prog(A, u + 1)
            lg.issue(("p", u))
            state["prog"] += 1
    for _ in range(5 + E):
        next_read()
    for ks in range(40):
        if ks == 28:
            A("v_and_b32 v9, 31, v1")
            A("v_lshlrev_b32 v9, 3, v9")
            A("s_lshl_b32 s6, s8, 9")
            A("s_add_u32 s6, s6, 0x%x" % WS_ST)
            A("buffer_load_dwordx2 %s, v9, s[48:51], s6 offen sc1" % v(ST, 2))
            A("buffer_load_dwordx2 %s, v9, s[48:51], s6 offen offset:256 sc1" % v(ST + 2, 2))
        if OPT.get("fine") and ks == 6:
            A.ts(3)
        if ks == OPT.get("pubks", 6) and not OPT.get("auxoff"):
            sk, s3 = A.newl("Lcs"), A.newl("Lc3")
            nonce_lds(A, 10)
            lg.q = []
            flag_p(A)
            A("s_cmp_ge_u32 s60, 10")
            A("s_cbranch_scc1 %s" % sk)
            A("s_cmp_lg_u32 s11, 0")
            A("s_cbranch_scc1 %s" % sk)
            A("v_mov_b32 %s, %s" % (v(CSD + 3), NON))
            A("v_lshlrev_b32 v9, 4, v1")
            A("s_mul_i32 s6, s61, 10")
            A("s_add_u32 s6, s6, s60")
            A("s_lshl_b32 s6, s6, 10")
            A("s_add_u32 s6, s6, 0x%x" % WS_CS)
            A("s_sub_u32 exec_lo, s12, 1")
            A("s_not_b32 exec_hi, exec_lo")
            A("buffer_store_dwordx4 %s, v9, s[48:51], s6 offen sc1" % v(CSD, 4))
            A("s_mov_b64 exec, -1")
            A.label(sk)
        if OPT.get("fine"):
            if ks in (2, 4, 6, 8, 10, 12):
                A.ts({2: 6, 4: 7, 6: 8, 8: 9, 10: 10, 12: 12}[ks])
        elif ks in (12, 20, 28):
            A.ts(8 + (ks - 12) // 8)
        n = 0
        for t in range(3):
            for a in range(2):
                lg.wait(("w", ks, t))
                lg.wait(("x", ks, a))
                d = ACC + 48 * a + 16 * t
                cin = "0" if ks == 0 else v(d, 16)
                if OPT.get("nomf"):
                    A("s_nop 7" if OPT["nomf"] == 2 else "s_nop 0")
                else:
                    A("v_mfma_f32_32x32x16_bf16 %s, %s, %s, %s" % (v(d, 16), v(W(ks, t), 4), v(X(ks, a), 4), cin))
                if not OPT.get("noprog"):
                    try_prog()
                if n < 5:
                    next_read()
                n += 1
            if ks < 4:
                cin = "0" if ks + t == 0 else v(CSD, 16)
                A("v_mfma_f32_32x32x16_bf16 %s, %s, %s, %s" % (v(CSD, 16), v(SEL + 4 * t, 4), v(W(ks, t), 4), cin))
    A.ts(5)
    if OPT.get("cnt"):
        A.stamps += [11, 14]
    if OPT.get("g1only"):
        return
    A("s_waitcnt vmcnt(0)")
    ok = A.newl("Lst")
    tag_check(A, [ST + 1, ST + 3], 10, ok)
    poll_flags(A, [(ST, 2, 9, 6, 0), (ST + 2, 2, 9, 6, 256)], [ST + 1, ST + 3], 10, 2)
    A.label(ok)
    lds_wait(A, C_CSOK, "lg", 0, vF, vC, "s10")
    A("v_lshrrev_b32 v9, 5, v1")
    A("v_lshlrev_b32 v9, 4, v9")
    A("s_lshl_b32 s4, s12, 7")
    A("s_add_u32 s4, s4, %d" % CSUM)
    A("v_add_u32 v9, s4, v9")
    CR = 24
    for t in range(3):
        for m in range(4):
            A("ds_read_b128 %s, v9 offset:%d" % (v(CR + 16 * t + 4 * m, 4), 256 * t + 32 * m))
    NM, C1 = [72, 76], [74, 78]
    for a in range(2):
        A("v_lshlrev_b32 %s, 16, %s" % (v(NM[a]), v(ST + 2 * a)))
        A("v_xor_b32 %s, 0x80000000, %s" % (v(NM[a]), v(NM[a])))
        A("v_and_b32 %s, 0xffff0000, %s" % (v(C1[a]), v(ST + 2 * a)))
        A("v_mul_f32 %s, %s, %s" % (v(NM[a] + 1), v(C1[a]), v(C1[a])))
        A("v_rcp_f32 %s, %s" % (v(C1[a]), v(C1[a])))
    A("s_mul_i32 s9, s8, 192")
    A("s_mul_i32 s4, s61, 6")
    A("s_add_u32 s9, s9, s4")
    A("s_add_u32 s9, s9, s12")
    A("s_lshl_b32 s9, s9, 10")
    A("s_add_u32 s9, s9, 0x%x" % WS_HF)
    for a in range(2):
        A("v_mul_f32 %s, %s, %s" % (v(C1[a]), fbits(-LOG2E), v(C1[a])))
    A("v_lshlrev_b32 %s, 4, v1" % v(vXo))
    A("s_waitcnt lgkmcnt(0)")
    T0 = 96
    n = 0
    for a in range(2):
        for t in range(3):
            ac = ACC + 48 * a + 16 * t
            tmp = T0 + 16 * (n & 1)
            n += 1
            G = [ac, ac + 2, ac + 8, ac + 10]
            U = [ac + 4, ac + 6, ac + 12, ac + 14]
            for i in range(8):
                A("v_pk_fma_f32 %s, %s, %s, %s op_sel_hi:[1,0,1]" % (v(ac + 2 * i, 2), v(CR + 16 * t + 2 * i, 2), v(NM[a], 2), v(ac + 2 * i, 2)))
            for i in range(4):
                A("v_pk_mul_f32 %s, %s, %s op_sel_hi:[1,0]" % (v(tmp + 2 * i, 2), v(G[i], 2), v(C1[a], 2)))
            for i in range(8):
                A("v_exp_f32 %s, %s" % (v(tmp + i), v(tmp + i)))
            for i in range(4):
                A("v_pk_mul_f32 %s, %s, %s" % (v(G[i], 2), v(G[i], 2), v(U[i], 2)))
            for i in range(4):
                A("v_pk_fma_f32 %s, %s, %s, %s op_sel:[0,1,1] op_sel_hi:[1,1,1]" % (v(tmp + 2 * i, 2), v(tmp + 2 * i, 2), v(NM[a], 2), v(NM[a], 2)))
            for i in range(8):
                A("v_rcp_f32 %s, %s" % (v(tmp + i), v(tmp + i)))
            A("s_add_u32 s4, s9, %d" % (96 * 1024 * a + 2048 * t))
            for i in range(4):
                A("v_pk_mul_f32 %s, %s, %s" % (v(G[i], 2), v(G[i], 2), v(tmp + 2 * i, 2)))
            for i in range(4):
                A("v_cvt_pk_bf16_f32 %s, %s, %s" % (v(tmp + 8 + i), v(G[i]), v(G[i] + 1)))
            A("buffer_store_dwordx4 %s, %s, s[48:51], s4 offen sc1" % (v(tmp + 8, 4), v(vXo)))
    A("v_mov_b32 %s, 1" % v(vP))
    A("ds_write_b32 %s, %s offset:%d" % (v(vPa), v(vP), C_EPI - C_PROG))
    A.ts(6)
    A("s_lshl_b32 s6, s8, 4")
    A("s_add_u32 s6, s6, s61")
    A("s_lshl_b32 s6, s6, 1")
    A("s_add_u32 s6, s6, s12")
    A("s_lshl_b32 s6, s6, 7")
    A("s_add_u32 s6, s6, 0x%x" % FL_H)
    A("s_waitcnt vmcnt(0)")
    signal(A, 6, 10)
    A.ts(7)


def cmul(A, d, a, f, t, pk=False):
    assert d != a and d != f
    if pk:
        A("v_pk_mul_f32 %s, %s, %s op_sel:[0,0] op_sel_hi:[1,0]" % (v(d, 2), v(a, 2), v(f, 2)))
        A("v_pk_fma_f32 %s, %s, %s, %s op_sel:[1,1,0] op_sel_hi:[0,1,1] neg_lo:[1,0,0]" % (v(d, 2), v(a, 2), v(f, 2), v(d, 2)))
        return
    A("v_mul_f32 %s, %s, %s" % (v(d), v(a), v(f)))
    A("v_mul_f32 %s, %s, %s" % (v(d + 1), v(a + 1), v(f)))
    A("v_fma_f32 %s, -%s, %s, %s" % (v(d), v(a + 1), v(f + 1), v(d)))
    A("v_fmac_f32 %s, %s, %s" % (v(d + 1), v(a), v(f + 1)))


def kgen_issue(A):
    A("v_mov_b32 v58, 0")
    A("v_mov_b32 v59, 0")
    A("s_mul_i32 s4, s68, 384")
    A("v_lshlrev_b32 v38, 4, v1")
    A("v_add_u32 v38, s4, v38")
    A("s_lshl_b32 s4, s68, 1")
    A("v_mov_b32 v39, s4")
    setexec(A, 0xffffff)
    for i, p in enumerate([P_ARE, P_AIM, P_BRE, P_BIM, P_CRE, P_CIM]):
        A("s_add_u32 m0, s66, %d" % (384 * i))
        A("s_nop 0")
        A("global_load_lds_dwordx4 v38, %s" % s(p, 2))
    A("s_mov_b64 exec, -1")
    A("global_load_short_d16_hi v58, v39, %s" % s(P_LDT, 2))
    A("global_load_short_d16_hi v59, v39, %s" % s(P_DSK, 2))


HI = list(range(8)) + [256, 258, 260, 262, 512, 516, 768, 772, 1024, 1280, 1536, 1792, 2048]
EROW = 272


KB_DT, KB_ACC = 6, 134


def kgen_params(A, B):
    for c in range(3):
        for i in range(6):
            A("ds_read_u16_d16_hi %s, %s offset:%d" % (v(40 + 6 * c + i), v(B + 9), 384 * i + 128 * c))


def kgen_setup(A, B):
    vW, vR, ONE, T = B + 7, B + 8, B + 10, B + 20
    A("s_mov_b32 s4, s66")
    for i in range(18):
        A("v_mov_b32 %s, 0" % v(40 + i))
    A("v_mul_u32_u24 %s, %d, v1" % (v(vW), ER))
    A("v_add_u32 %s, s4, %s" % (v(vW), v(vW)))
    A("v_bfe_u32 %s, v1, 2, 2" % v(T))
    A("v_lshrrev_b32 %s, 5, v1" % v(T + 1))
    A("v_lshl_add_u32 %s, %s, 3, %s" % (v(T), v(T + 1), v(T)))
    A("v_mul_u32_u24 %s, %d, %s" % (v(vR), ER, v(T)))
    A("v_bfe_u32 %s, v1, 4, 1" % v(T))
    A("v_lshl_add_u32 %s, %s, 5, %s" % (v(vR), v(T), v(vR)))
    A("v_and_b32 %s, 3, v1" % v(T))
    A("v_lshl_add_u32 %s, %s, 3, %s" % (v(vR), v(T), v(vR)))
    A("v_add_u32 %s, s4, %s" % (v(vR), v(vR)))
    A("v_lshlrev_b32 %s, 1, v1" % v(B + 9))
    A("v_add_u32 %s, s66, %s" % (v(B + 9), v(B + 9)))
    A("v_mov_b32 %s, 1.0" % v(ONE))
    A("v_mov_b32 %s, 0" % v(ONE + 1))


def kgen_chunk(A, B, c, pkm, first, mid=None):
    are, aim, bre, bim, cre, cim = [40 + 6 * c + i for i in range(6)]
    DT, vW, vR, vP, ONE = B + KB_DT, B + 7, B + 8, B + 9, B + 10
    E1, E8, E256, E16, TA = B + 12, B + 14, B + 16, B + 18, B + 20
    LO = [B + 26, B + 28, B + 30, B + 32]
    Gs, PR, PI, KACC = B + 34, B + 78, B + 106, B + KB_ACC
    FR = B + 34
    G = lambda i: Gs + 2 * i
    A("v_mul_f32 %s, %s, %s" % (v(are), v(DT), v(are)))
    A("v_mul_f32 %s, %s, %s" % (v(aim), v(DT), v(aim)))
    A("v_mul_f32 %s, %s, %s" % (v(are), fbits(LOG2E), v(are)))
    A("v_mul_f32 %s, %s, %s" % (v(aim), fbits(0.5 / math.pi), v(aim)))
    Es = [(E8, 8.0, TA), (E1, 1.0, TA + 2), (E256, 256.0, TA + 4)]
    for (E, l, T) in Es:
        A("v_mul_f32 %s, %s, %s" % (v(T), fbits(l), v(are)))
        A("v_mul_f32 %s, %s, %s" % (v(T + 1), fbits(l), v(aim)))
    for (E, l, T) in Es:
        A("v_fract_f32 %s, %s" % (v(T + 1), v(T + 1)))
    for (E, l, T) in Es:
        A("v_exp_f32 %s, %s" % (v(T), v(T)))
        A("v_cos_f32 %s, %s" % (v(E), v(T + 1)))
        A("v_sin_f32 %s, %s" % (v(E + 1), v(T + 1)))
    A("v_mul_f32 %s, %s, %s" % (v(bre), v(DT), v(bre)))
    A("v_mul_f32 %s, %s, %s" % (v(bim), v(DT), v(bim)))
    for (E, l, T) in Es:
        A("v_mul_f32 %s, %s, %s" % (v(E), v(E), v(T)))
        A("v_mul_f32 %s, %s, %s" % (v(E + 1), v(E + 1), v(T)))
    cmul(A, Gs, cre, bre, TA)
    cmul(A, E16, E8, E8, E16)
    loc = {0: Gs, 24: ONE, 25: E8, 26: E16}
    packed, written = set(), set()

    def flush():
        for p in range(28):
            if p in packed or p == 11:
                continue
            c0, c1 = 2 * p, 2 * p + 1
            if p == 10:
                c1 = c0
            if c0 in loc and c1 in loc:
                n = "-" if p < 12 else ""
                A("v_cvt_pk_bf16_f32 %s, %s, %s" % (v(PR + p), v(loc[c0]), v(loc[c1])))
                A("v_cvt_pk_bf16_f32 %s, %s%s, %s%s" % (v(PI + p), n, v(loc[c0] + 1), n, v(loc[c1] + 1)))
                packed.add(p)

    def wr(old):
        for q in range(7):
            if q not in written and all((p in old or p == 11) for p in range(4 * q, 4 * q + 4)):
                A("ds_write_b128 %s, %s offset:%d" % (v(vW), v(PR + 4 * q, 4), 16 * q))
                written.add(q)
    cur = [E16, E8]
    lo_ops = []
    for j in range(3, 32):
        ch = 1 if (j & 1) else 0
        dst = LO[2 * ch + ((j >> 1) & 1)]
        lo_ops.append((dst, cur[ch], E16, 24 + j))
        cur[ch] = dst
    src = {8: 0, 9: 2, 10: 4, 11: 6, 12: 8, 13: 10, 14: 12, 15: 13, 16: 14, 17: 16, 18: 17, 19: 18, 20: 19}
    h1 = [(G(i), G(i - 1), E1, i) for i in range(1, 8)] + [(G(i), G(src[i]), E256, i) for i in [9, 10, 11, 13, 15]]
    h2 = [(G(i), G(src[i]), E256, i) for i in [8, 12, 14, 16, 17, 18, 19, 20]]
    groups = [[lo_ops.pop(0)]]
    while lo_ops:
        groups.append([lo_ops.pop(0), lo_ops.pop(0)])
    for i, g in enumerate(groups):
        if i < len(h1):
            g.append(h1[i])
        if i < len(h2):
            g.append(h2[i])
    for gi, grp in enumerate(groups):
        if gi == 8 and mid:
            mid(A)
        old = set(packed)
        if pkm:
            for (d, a, f, col) in grp:
                A("v_pk_mul_f32 %s, %s, %s op_sel:[0,0] op_sel_hi:[1,0]" % (v(d, 2), v(a, 2), v(f, 2)))
        else:
            for (d, a, f, col) in grp:
                A("v_mul_f32 %s, %s, %s" % (v(d), v(a), v(f)))
                A("v_mul_f32 %s, %s, %s" % (v(d + 1), v(a + 1), v(f)))
        wr(old)
        flush()
        if pkm:
            for (d, a, f, col) in grp:
                A("v_pk_fma_f32 %s, %s, %s, %s op_sel:[1,1,0] op_sel_hi:[0,1,1] neg_lo:[1,0,0]" % (v(d, 2), v(a, 2), v(f, 2), v(d, 2)))
        else:
            for (d, a, f, col) in grp:
                A("v_fma_f32 %s, -%s, %s, %s" % (v(d), v(a + 1), v(f + 1), v(d)))
                A("v_fmac_f32 %s, %s, %s" % (v(d + 1), v(a), v(f + 1)))
        for (d, a, f, col) in grp:
            loc[col] = d
    flush()
    wr(packed)
    assert len(written) == 7

    def rd(ks):
        for (r, off) in [(FR + 8 * ks, 0), (FR + 8 * ks + 4, 48)]:
            A("ds_read_b64_tr_b16 %s, %s offset:%d" % (v(r, 2), v(vR), 16 * ER * (ks & 3) + off))
            A("ds_read_b64_tr_b16 %s, %s offset:%d" % (v(r + 2, 2), v(vR), 16 * ER * (ks & 3) + off + 4 * ER))

    def mf(ks):
        cin = "0" if (first and ks == 0) else v(KACC, 16)
        A("v_mfma_f32_32x32x16_bf16 %s, %s, %s, %s" % (v(KACC, 16), v(FR + 8 * ks, 4), v(FR + 8 * ks + 4, 4), cin))
    for ks in range(4):
        rd(ks)
    for q in range(7):
        A("ds_write_b128 %s, %s offset:%d" % (v(vW), v(PI + 4 * q, 4), 16 * q))
    A("s_waitcnt lgkmcnt(7)")
    for ks in range(4):
        mf(ks)
        if ks >= 2:
            rd(ks + 2)
    rd(6)
    rd(7)
    for ks in range(4, 8):
        A("s_waitcnt lgkmcnt(%d)" % (4 * (7 - ks)))
        mf(ks)


def kgen_expand(A, KACC):
    A("v_and_b32 v2, 31, v1")
    A("v_lshrrev_b32 v3, 5, v1")
    A("v_lshlrev_b32 v4, 5, v2")
    A("v_lshl_add_u32 v4, v3, 4, v4")
    A("v_add_u32 v4, s66, v4")
    A("v_lshlrev_b32 v5, 4, v2")
    A("v_add_u32 v5, s66, v5")
    A("v_lshlrev_b32 v6, 3, v2")
    A("v_add_u32 v6, s66, v6")
    A("v_lshlrev_b32 v7, 2, v2")
    A("v_add_u32 v7, s66, v7")
    A("s_nop 7")
    A("s_mov_b64 exec, 1")
    A("v_add_f32 %s, %s, v59" % (v(KACC), v(KACC)))
    A("s_mov_b64 exec, -1")
    A("ds_write_b128 v4, %s" % v(KACC, 4))
    A("s_mov_b32 exec_hi, 0")
    A("ds_write_b128 v5, %s offset:%d" % (v(KACC + 4, 4), 256 * 4))
    for r in range(4):
        A("ds_write_b32 v7, %s offset:%d" % (v(KACC + 8 + r), (512 + 32 * r) * 4))
    A("s_mov_b32 exec_lo, 0")
    A("s_mov_b32 exec_hi, -1")
    A("ds_write_b64 v6, %s offset:%d" % (v(KACC + 4, 2), 384 * 4))
    A("ds_write_b64 v6, %s offset:%d" % (v(KACC + 6, 2), 448 * 4))
    A("ds_write_b32 v7, %s offset:%d" % (v(KACC + 8), 640 * 4))
    A("s_mov_b64 exec, -1")
    S0, S1, S2, S3 = 10, 16, 20, 24
    A("v_lshlrev_b32 v2, 3, v1")
    A("v_add_u32 v3, s66, v2")
    A("v_lshlrev_b32 v4, 4, v1")
    A("v_add_u32 v4, s66, v4")
    A("ds_read_b128 %s, v4" % v(S0 + 2, 4))
    A("ds_read_b32 %s, v4 offset:16" % v(S0))
    for (S, b) in [(S1, 256), (S2, 384), (S3, 512)]:
        A("ds_read_b64 %s, v3 offset:%d" % (v(S, 2), 4 * b))
        A("ds_read_b32 %s, v3 offset:%d" % (v(S + 2), 4 * b + 8))
    A("v_add_u32 v2, s69, v2")
    A("v_lshrrev_b32 v3, 4, v1")
    A("v_mul_u32_u24 v3, %d, v3" % KSTR)
    A("v_and_b32 v4, 15, v1")
    A("v_lshl_add_u32 v3, v4, 2, v3")
    A("v_add_u32 v3, s69, v3")
    A("v_sub_u32 v5, 63, v1")
    A("v_lshlrev_b32 v6, 5, v5")
    A("v_add_u32 v6, s69, v6")
    A("v_lshlrev_b32 v7, 4, v5")
    A("v_add_u32 v7, s69, v7")
    A("v_lshlrev_b32 v5, 3, v5")
    A("v_add_u32 v5, s69, v5")
    A("v_mov_b32 v8, 0")
    A("v_mov_b32 v9, 0")
    A.ts(6)
    A("v_mov_b32 v80, %d" % CTRL)
    lds_wait(A, C_GO, "lg", 0, 76, 80, "s10", False, 2)
    if OPT.get("ulate", 17):
        prog_wait(A, OPT.get("ulate", 17), 76, 2)
    u_issue(A)
    prog_wait(A, CONV_PROG + 1, 76, 2)
    A("ds_write_b64 v2, v[8:9] offset:%d" % AUX_U)
    A("ds_write_b32 v3, v8 offset:4096")
    O = 28
    def val3(o):
        return S3 + (0 if o <= 4 else 1 if o <= 11 else 2)
    def val2(o):
        return S2 + (0 if o <= 2 else 1 if o <= 5 else 2)
    for d in range(4):
        o0 = O + 12 * (d & 1)
        for w in range(8):
            A("v_cvt_pk_bf16_f32 %s, %s, %s" % (v(o0 + w), v(val3(d + 15 - 2 * w)), v(val3(d + 14 - 2 * w))))
        for w in range(4):
            A("v_cvt_pk_bf16_f32 %s, %s, %s" % (v(o0 + 8 + w), v(val2(d + 7 - 2 * w)), v(val2(d + 6 - 2 * w))))
        A("ds_write_b128 v6, %s offset:%d" % (v(o0, 4), d * KSTR))
        A("ds_write_b128 v6, %s offset:%d" % (v(o0 + 4, 4), d * KSTR + 16))
        A("ds_write_b128 v7, %s offset:%d" % (v(o0 + 8, 4), d * KSTR + 2048))
    A("v_cvt_pk_bf16_f32 v52, %s, %s" % (v(S2), v(S2)))
    A("ds_write_b32 v7, v52 offset:%d" % (2 * KSTR + 2048 + 16))
    A("ds_write_b32 v7, v52 offset:%d" % (3 * KSTR + 2048 + 16))
    a, b, c = S1, S1 + 1, S1 + 2
    t0, t1, t2, t3, t4 = S0 + 2, S0 + 3, S0 + 4, S0 + 5, S0
    prs = [(c, b), (a, a), (c, c), (b, a), (t3, t2), (t1, t0), (t4, t3), (t2, t1)]
    for i, (x, y) in enumerate(prs):
        A("v_cvt_pk_bf16_f32 %s, %s, %s" % (v(64 + i), v(x), v(y)))
    A("v_cvt_pk_bf16_f32 v72, %s, 0" % v(t0))
    for d in range(2):
        A("ds_write_b64 v5, %s offset:%d" % (v(64 + 2 * d, 2), d * KSTR + 3072))
        A("ds_write_b64 v5, %s offset:%d" % (v(68 + 2 * d, 2), d * KSTR + 3584))
    for d in range(2, 4):
        for (r, off) in [(64 + 2 * (d - 2), 3072), (68 + 2 * (d - 2), 3584)]:
            A("ds_write_b32 v5, %s offset:%d" % (v(r), d * KSTR + off + 4))
            A("ds_write_b32 v5, %s offset:%d" % (v(r + 1), d * KSTR + off + 8))
    A("s_mov_b64 exec, 1")
    A("ds_write_b32 v5, v72 offset:%d" % (1 * KSTR + 3584 + 8))
    A("ds_write_b32 v5, v72 offset:%d" % (3 * KSTR + 3584 + 12))
    A("s_mov_b64 exec, -1")
    A("s_waitcnt lgkmcnt(0)")


def u_issue(A):
    A("v_mul_u32_u24 v81, 10240, v1")
    A("s_lshl_b32 s4, s68, 4")
    A("s_add_u32 s4, s4, 0x%x" % WS_XT)
    for i in range(4):
        A("buffer_load_dwordx4 %s, v81, s[48:51], s4 offen%s" % (v(232 + 4 * i, 4), LSC))
        if i < 3:
            A("s_add_u32 s4, s4, %d" % (64 * 10240))


def prog_wait(A, val, vt, sleep):
    pl, ok = A.newl("Lpw"), A.newl("Lpo")
    A("v_mov_b32 %s, %d" % (v(vt + 4), CTRL))
    A.label(pl)
    guard(A)
    A("ds_read_b128 %s, %s offset:%d" % (v(vt, 4), v(vt + 4), C_PROG))
    A("s_waitcnt lgkmcnt(0)")
    A("v_min_u32 %s, %s, %s" % (v(vt), v(vt), v(vt + 1)))
    A("v_min3_u32 %s, %s, %s, %s" % (v(vt), v(vt), v(vt + 2), v(vt + 3)))
    A("s_nop 0")
    A("v_readfirstlane_b32 s10, %s" % v(vt))
    A("s_cmp_ge_u32 s10, %d" % val)
    A("s_cbranch_scc1 %s" % ok)
    A("s_sleep %d" % sleep)
    A("s_branch %s" % pl)
    A.label(ok)


def epi_wait(A):
    A("s_lshl_b32 s4, s3, 2")
    A("v_mov_b32 v10, s4")
    lds_wait(A, CTRL + C_EPI - 16, "lg", 0, 11, 10, "s10", False, 2)


def conv(A):
    AF, BF, ACC = 64, 128, 192
    vK, vU = 2, 3
    A("v_lshlrev_b32 v5, 4, v1")
    A("v_add_u32 v5, s69, v5")
    A("v_and_b32 v6, 15, v1")
    A("v_lshrrev_b32 v7, 4, v1")
    A("v_add_u32 v8, 1, v6")
    A("v_and_b32 v9, 3, v8")
    A("v_mul_u32_u24 %s, %d, v9" % (v(vK), KSTR))
    A("v_lshrrev_b32 v8, 2, v8")
    A("v_lshlrev_b32 v8, 3, v8")
    A("v_sub_u32 %s, %s, v8" % (v(vK), v(vK)))
    A("v_lshl_add_u32 %s, v7, 4, %s" % (v(vK), v(vK)))
    A("s_add_u32 s4, s69, 32")
    A("v_add_u32 %s, s4, %s" % (v(vK), v(vK)))
    A("v_lshlrev_b32 %s, 5, v6" % v(vU))
    A("v_lshl_add_u32 %s, v7, 4, %s" % (v(vU), v(vU)))
    A("v_add_u32 %s, s69, %s" % (v(vU), v(vU)))
    for i in range(4):
        A("s_waitcnt vmcnt(%d)" % (3 - i))
        A("ds_write_b128 v5, %s offset:%d" % (v(232 + 4 * i, 4), AUX_U + 512 + 1024 * i))
    A("s_waitcnt lgkmcnt(0)")
    A.ts(9)
    epi_wait(A)
    A("s_setprio %d" % OPT.get("pc", 3))
    A.ts(7)
    lg = Cnt(A, "lgkmcnt", 15)

    def rdA(ph, p):
        r = AF + 32 * (ph & 1) + 4 * p
        off = 64 * (7 - ph) + 512 * (7 - p)
        A("ds_read_b64 %s, %s offset:%d" % (v(r, 2), v(vK), off))
        lg.issue(("a0", ph, p))
        A("ds_read_b64 %s, %s offset:%d" % (v(r + 2, 2), v(vK), off + 8))
        lg.issue(("a", ph, p))

    def rdB(ph, m):
        r = BF + 32 * (ph & 1) + 4 * m
        A("ds_read_b128 %s, %s offset:%d" % (v(r, 4), v(vU), AUX_U + 480 - 64 * ph + 512 * m))
        lg.issue(("b", ph, m))
    def reads(ph):
        L = []
        for i in range(8):
            L.append((rdA, ph, i))
            L.append((rdB, ph, i))
        return L
    pairs = sorted([(p, m) for p in range(8) for m in range(8) if p + m <= 7], key=lambda x: (max(x), x))
    pend = reads(0)
    for _ in range(8):
        f, a1, a2 = pend.pop(0)
        f(a1, a2)
    seen = set()
    for ph in range(8):
        if ph + 1 < 8:
            pend += reads(ph + 1)
        for n, (p, m) in enumerate(pairs):
            while any((f is rdA and a1 == ph and a2 == p) or (f is rdB and a1 == ph and a2 == m) for (f, a1, a2) in pend):
                f, a1, a2 = pend.pop(0)
                f(a1, a2)
            lg.wait(("a", ph, p))
            lg.wait(("b", ph, m))
            q = p + m
            cin = v(ACC + 4 * q, 4) if q in seen else "0"
            seen.add(q)
            A("v_mfma_f32_16x16x32_bf16 %s, %s, %s, %s" % (v(ACC + 4 * q, 4), v(AF + 32 * (ph & 1) + 4 * p, 4), v(BF + 32 * (ph & 1) + 4 * m, 4), cin))
            if pend and (n & 1) == 0 and len(lg.q) <= 12:
                f, a1, a2 = pend.pop(0)
                f(a1, a2)
    A.ts(10)
    A("v_lshlrev_b32 v8, 5, v6")
    A("v_lshl_add_u32 v8, v7, 3, v8")
    A("v_add_u32 v8, s69, v8")
    A("s_nop 7")
    for q in range(8):
        A("v_cvt_pk_bf16_f32 %s, %s, %s" % (v(16 + 2 * q), v(ACC + 4 * q), v(ACC + 4 * q + 1)))
        A("v_cvt_pk_bf16_f32 %s, %s, %s" % (v(17 + 2 * q), v(ACC + 4 * q + 2), v(ACC + 4 * q + 3)))
        A("ds_write_b64 v8, %s offset:%d" % (v(16 + 2 * q, 2), AUX_U + 512 + 512 * q))
    A("s_waitcnt lgkmcnt(0)")
    for i in range(4):
        A("ds_read_b128 %s, v5 offset:%d" % (v(32 + 4 * i, 4), AUX_U + 512 + 1024 * i))
    A("v_lshlrev_b32 v4, 4, v1")
    A("s_lshl_b32 s4, s68, 12")
    A("s_add_u32 s4, s4, 0x%x" % WS_AT)
    for i in range(4):
        A("s_waitcnt lgkmcnt(%d)" % (3 - i))
        A("buffer_store_dwordx4 %s, v4, s[48:51], s4 offen offset:%d%s" % (v(32 + 4 * i, 4), 1024 * i, SC1))
    A.ts(11)


def a_fetch(A):
    sk = A.newl("Laf")
    A("s_sub_u32 s8, s3, 4")
    A("s_mul_i32 s4, s63, 80")
    A("s_lshl_b32 s5, s8, 5")
    A("s_add_u32 s4, s4, s5")
    A("s_lshl_b32 s6, s4, 12")
    A("s_lshl_b32 s5, s62, 7")
    A("s_add_u32 s6, s6, s5")
    A("s_add_u32 s6, s6, 0x%x" % WS_AT)
    A("v_lshrrev_b32 v2, 3, v1")
    A("v_and_b32 v3, 7, v1")
    A("v_lshlrev_b32 v4, 12, v2")
    A("v_lshl_add_u32 v4, v3, 4, v4")
    A("v_lshlrev_b32 v13, 7, v1")
    A("s_lshl_b32 s9, s4, 7")
    A("s_add_u32 s9, s9, 0x%x" % FL_A)
    A("s_cmp_eq_u32 s3, 6")
    A("s_cselect_b32 exec_lo, 0xffff, -1")
    A("s_mov_b32 exec_hi, 0")
    poll_flags(A, [(14, 1, 13, 9, 0)], [14], 15, OPT.get("asl", 4))
    A("s_mov_b64 exec, -1")
    A.ts(13)
    for i in range(4):
        if i == 2:
            A("s_cmp_eq_u32 s3, 6")
            A("s_cbranch_scc1 %s" % sk)
        A("s_add_u32 m0, s69, %d" % (1024 * i))
        A("s_nop 0")
        A("buffer_load_dwordx4 v4, s[48:51], s6 offen sc1 lds")
        A("s_add_u32 s6, s6, %d" % (8 * 4096))
    A.label(sk)
    A("s_waitcnt vmcnt(0)")


def gemm2(A):
    ACC = 176
    vH, vL, vWo, vC = 12, 16, G_vXo, G_vC
    pool = list(range(24, ACC, 4))
    lg = Cnt(A, "lgkmcnt", 15)
    vm = Cnt(A, "vmcnt", 63)
    rot2(A, 4)
    A("s_mul_i32 s12, s63, 48")
    A("s_mul_i32 s5, s3, 12")
    A("s_add_u32 s12, s12, s5")
    A("s_mul_i32 s12, s12, 5120")
    A("s_add_u32 s12, s12, 0x%x" % WS_WD)
    A("s_add_u32 s13, s12, %d" % (12 * 5120))
    A("s_mul_i32 s5, s4, 5120")
    A("s_add_u32 s11, s12, s5")
    A("s_mul_i32 s8, s62, %d" % (192 * 1024))
    A("s_mul_i32 s5, s3, %d" % (24 * 1024))
    A("s_add_u32 s8, s8, s5")
    A("s_add_u32 s8, s8, 0x%x" % WS_HF)
    A("s_add_u32 s14, s8, %d" % (24 * 1024))
    A("s_lshl_b32 s5, s4, 11")
    A("s_add_u32 s9, s8, s5")
    A("v_lshlrev_b32 %s, 4, v1" % v(vWo))
    A("v_add_u32 v20, 4096, %s" % v(vWo))
    lds_wait(A, C_GO, "lg", 0, 10, vC, "s10")
    Wr, Hr = {}, {}

    def wadv(n):
        A("s_add_u32 s11, s11, %d" % (5120 * n))
        A("s_cmp_ge_u32 s11, s13")
        A("s_cselect_b32 s4, %d, 0" % (12 * 5120))
        A("s_sub_u32 s11, s11, s4")

    def wload(j, ct):
        r = Wr[(j, ct)] = pool.pop(0)
        if ct < 4:
            A("buffer_load_dwordx4 %s, %s, s[48:51], s11 offen offset:%d%s" % (v(r, 4), v(vWo), 1024 * ct, LSC))
        else:
            A("buffer_load_dwordx4 %s, v20, s[48:51], s11 offen%s" % (v(r, 4), LSC))
        vm.issue(("w", j, ct))
        if ct == 4 and j < 11:
            wadv(1 + (NL2 if j == NR2 - 1 else 0))

    def hload(j, q):
        r = Hr[(j, q)] = pool.pop(0)
        A("buffer_load_dwordx4 %s, %s, s[48:51], s9 offen%s" % (v(r, 4), v(vH + q), LSC))
        vm.issue(("h", j, q))
        if q == 3 and j < 11:
            A("s_add_u32 s9, s9, 2048")
            A("s_cmp_ge_u32 s9, s14")
            A("s_cselect_b32 s9, s8, s9")
    for j in range(NR2):
        for ct in range(5):
            wload(j, ct)
    prog(A, 21)
    A("v_lshrrev_b32 v9, 4, v1")
    A("v_and_b32 v10, 15, v1")
    A("v_lshlrev_b32 v10, 4, v10")
    A("v_lshl_add_u32 v10, v9, 9, v10")
    for q in range(4):
        A("s_xor_b32 s4, s3, %d" % q)
        A("s_lshr_b32 s5, s4, 1")
        A("s_mul_i32 s5, s5, %d" % (96 * 1024))
        A("s_and_b32 s4, s4, 1")
        A("s_lshl_b32 s4, s4, 8")
        A("s_add_u32 s4, s4, s5")
        A("v_add_u32 %s, s4, v10" % v(vH + q))

    def area(sd, wreg, jl):
        A("s_mov_b32 %s, %d" % (s(sd), G2SLOT[2 * jl][1]))
        A("s_cmp_lt_u32 %s, 2" % s(wreg))
        A("s_cselect_b32 %s, %s, %d" % (s(sd), s(sd), G2SLOT[2 * jl + 1][1]))
        A("s_bitcmp1_b32 %s, 0" % s(wreg))
        A("s_cselect_b32 s7, 5120, 0")
        A("s_add_u32 %s, %s, s7" % (s(sd), s(sd)))
    for jl in range(4):
        area(4, 3, jl)
        A("v_add_u32 %s, s4, %s" % (v(vL + jl), v(vWo)))
    full_wait(A, 20 + 2 * NL2, False)
    A("v_and_b32 v9, 15, v1")
    A("v_mul_u32_u24 v9, 160, v9")
    A("v_lshrrev_b32 v10, 4, v1")
    A("v_lshl_add_u32 v9, v10, 3, v9")
    A("s_mul_i32 s4, s3, %d" % (16 * 160))
    A("s_add_u32 s4, s4, %d" % G2SLOT[2 * NL2][1])
    A("v_add_u32 v9, s4, v9")
    for ct in range(5):
        A("ds_read_b64 %s, v9 offset:%d" % (v(ACC + 20 + 2 * ct, 2), 32 * ct))
    A("s_waitcnt lgkmcnt(0)")
    for i in range(10):
        A("v_lshlrev_b32 %s, 16, %s" % (v(ACC + 2 * i), v(ACC + 20 + i)))
        A("v_and_b32 %s, 0xffff0000, %s" % (v(ACC + 2 * i + 1), v(ACC + 20 + i)))
    A("v_lshlrev_b32 v9, 7, v1")
    A("s_lshl_b32 s6, s62, 2")
    A("s_add_u32 s6, s6, s3")
    A("s_lshl_b32 s6, s6, 10")
    A("s_add_u32 s6, s6, 0x%x" % FL_H)
    setexec(A, 0xff)
    poll_flags(A, [(21, 1, 9, 6, 0)], [21], 10, OPT.get("sl", 2))
    A("s_mov_b64 exec, -1")
    vm.q = []
    A.ts(12)
    queue = []
    for j in range(12):
        queue += [(hload, j, q) for q in range(4)]
        if j >= NR2 + NL2:
            queue += [(wload, j, ct) for ct in range(5)]

    def fill(n):
        while queue and pool and n > 0:
            f, j, x = queue.pop(0)
            f(j, x)
            n -= 1
    fill(99)
    LB = [Wr[(0, ct)] for ct in range(5)]

    def lread(j, ct):
        Wr[(j, ct)] = LB[ct]
        A("ds_read_b128 %s, %s offset:%d" % (v(LB[ct], 4), v(vL + j - NR2), 1024 * ct))
        lg.issue(("w", j, ct))
    for j in range(12):
        for ct in range(5):
            lg.wait(("w", j, ct))
            vm.wait(("w", j, ct))
            for q in range(4):
                vm.wait(("h", j, q))
                if j == 0 and ct == 0 and q == 0:
                    A.ts(13)
                d = ACC + 20 * q + 4 * ct
                cin = "0" if (j == 0 and q) else v(d, 4)
                A("v_mfma_f32_16x16x32_bf16 %s, %s, %s, %s" % (v(d, 4), v(Wr[(j, ct)], 4), v(Hr[(j, q)], 4), cin))
                if ct == 4:
                    pool.append(Hr[(j, q)])
                if q & 1:
                    fill(1)
            if j == 0:
                lread(NR2, ct)
            elif NR2 <= j < NR2 + NL2 - 1:
                lread(j + 1, ct)
            else:
                pool.append(Wr[(j, ct)])
    assert not queue
    A.ts(14)
    for q in range(1, 4):
        A("s_xor_b32 s5, s3, %d" % q)
        area(4, 5, q)
        A("v_add_u32 %s, s4, %s" % (v(vH + q), v(vWo)))
    for q in range(1, 4):
        for ct in range(5):
            A("ds_write_b128 %s, %s offset:%d" % (v(vL + q), v(ACC + 20 * q + 4 * ct, 4), 1024 * ct))
    A("s_mov_b32 s5, s3")
    A("s_lshl_b32 s6, s5, 5")
    A("s_add_u32 s6, s6, %d" % AUX0)
    A("v_lshrrev_b32 v9, 2, v1")
    A("v_lshlrev_b32 v9, 7, v9")
    A("v_and_b32 v10, 3, v1")
    A("v_lshl_add_u32 v9, v10, 3, v9")
    A("v_add_u32 %s, s6, v9" % v(vH))
    srd(A, 52, P_OUT, 2048 * 640 * 2)
    OROW = 176
    area(4, 3, 0)
    A("v_and_b32 v9, 15, v1")
    A("v_mul_u32_u24 v9, %d, v9" % OROW)
    A("v_lshrrev_b32 v10, 4, v1")
    A("v_lshl_add_u32 v9, v10, 3, v9")
    A("v_add_u32 v9, s4, v9")
    for p in range(3):
        A("v_add_u32 v22, %d, v1" % (64 * p))
        A("v_mul_u32_u24 v23, 52429, v22")
        A("v_lshrrev_b32 v23, 19, v23")
        A("v_mul_u32_u24 v24, 10, v23")
        A("v_sub_u32 v22, v22, v24")
        A("v_lshlrev_b32 v22, 4, v22")
        A("v_mul_u32_u24 v24, %d, v23" % OROW)
        A("v_add3_u32 %s, v24, v22, s4" % v(26 + p))
        A("v_mul_u32_u24 v24, 1280, v23")
        A("v_add_u32 %s, v24, v22" % v(30 + p))
    A("s_lshl_b32 s6, s62, 2")
    A("s_add_u32 s6, s6, s5")
    A("s_mul_i32 s6, s6, %d" % (16 * 1280))
    A("s_mul_i32 s7, s63, 160")
    A("s_add_u32 s6, s6, s7")
    A("s_waitcnt lgkmcnt(0)")
    A("s_barrier")
    R = 96
    lg.q = []
    for ct in range(5):
        A("ds_read_b64_tr_b16 %s, %s offset:%d" % (v(R + 16 * ct + 2, 2), v(vH), (ct >> 1) * AUXSZ + 2048 * (ct & 1)))
        lg.issue((ct, 0))
        for q in range(1, 4):
            A("ds_read_b128 %s, %s offset:%d" % (v(R + 16 * ct + 4 * q, 4), v(vH + q), 1024 * ct))
            lg.issue((ct, q))
    for ct in range(5):
        lg.wait((ct, 3))
        d, r = ACC + 4 * ct, R + 16 * ct
        A("v_lshlrev_b32 %s, 16, %s" % (v(r), v(r + 2)))
        A("v_and_b32 %s, 0xffff0000, %s" % (v(r + 1), v(r + 2)))
        A("v_lshlrev_b32 %s, 16, %s" % (v(r + 2), v(r + 3)))
        A("v_and_b32 %s, 0xffff0000, %s" % (v(r + 3), v(r + 3)))
        for h in (0, 2):
            A("v_pk_add_f32 %s, %s, %s" % (v(d + h, 2), v(d + h, 2), v(r + 4 + h, 2)))
            A("v_pk_add_f32 %s, %s, %s" % (v(r + 8 + h, 2), v(r + 8 + h, 2), v(r + 12 + h, 2)))
        for h in (0, 2):
            A("v_pk_add_f32 %s, %s, %s" % (v(d + h, 2), v(d + h, 2), v(r + h, 2)))
        for h in (0, 2):
            A("v_pk_add_f32 %s, %s, %s" % (v(d + h, 2), v(d + h, 2), v(r + 8 + h, 2)))
        if OPT.get("errall"):
            for e in range(4):
                A("v_add_f32 %s, %s, %s" % (v(d + e), fbits(OPT["errall"] / 1000.0), v(d + e)))
        if OPT.get("errone") and ct == 0:
            A("s_cmp_eq_u32 s2, 77")
            A("s_cselect_b64 exec, 1, 0")
            A("v_add_f32 %s, %s, %s" % (v(d), fbits(OPT["errone"] / 1000.0), v(d)))
            A("s_mov_b64 exec, -1")
        A("v_cvt_pk_bf16_f32 %s, %s, %s" % (v(64 + 2 * ct), v(d), v(d + 1)))
        A("v_cvt_pk_bf16_f32 %s, %s, %s" % (v(65 + 2 * ct), v(d + 2), v(d + 3)))
        A("ds_write_b64 v9, %s offset:%d" % (v(64 + 2 * ct, 2), 32 * ct))
        lg.issue(("o", ct))
    A("s_waitcnt lgkmcnt(0)")
    for p in range(3):
        A("ds_read_b128 %s, %s" % (v(80 + 4 * p, 4), v(26 + p)))
    for p in range(3):
        A("s_waitcnt lgkmcnt(%d)" % (2 - p))
        if p == 2:
            A("s_mov_b32 exec_hi, 0")
        A("buffer_store_dwordx4 %s, %s, s[52:55], s6 offen%s" % (v(80 + 4 * p, 4), v(30 + p), ["", " sc1", " nt", " sc0 sc1"][OPT.get("osc", 0)]))
    A("s_mov_b64 exec, -1")
    A.ts(15)


def aux_ids(A):
    A("s_sub_u32 s4, s3, 4")
    A("s_lshr_b32 s5, s2, 3")
    A("s_mul_i32 s5, s5, 3")
    A("s_add_u32 s5, s5, s4")
    A("s_and_b32 s68, s2, 7")
    A("s_mul_i32 s68, s68, 80")
    A("s_add_u32 s68, s68, s5")
    A("s_cmp_ge_u32 s5, 80")
    A("s_cselect_b32 s68, 640, s68")
    A("s_mul_i32 s69, s4, %d" % AUXSZ)
    A("s_add_u32 s69, s69, %d" % AUX0)
    A("s_mul_i32 s66, s4, %d" % STGP)
    A("s_add_u32 s66, s66, %d" % STG0)


def kdesc(name):
    return """.amdhsa_kernel %s
  .amdhsa_next_free_vgpr 256
  .amdhsa_next_free_sgpr 102
  .amdhsa_accum_offset 256
  .amdhsa_group_segment_fixed_size 0
  .amdhsa_kernarg_size 128
  .amdhsa_user_sgpr_count 2
  .amdhsa_user_sgpr_kernarg_segment_ptr 1
  .amdhsa_system_sgpr_workgroup_id_x 1
.end_amdhsa_kernel
""" % name


def build_fused():
    A = Asm()
    name = NAME + "_kernel"
    prologue(A, name, 0)
    st0 = list(A.stamps)
    laux, lload = A.newl("Laux"), A.newl("Lload")
    A("s_cmp_eq_u32 s3, 7")
    A("s_cbranch_scc1 %s" % lload)
    A("s_cmp_ge_u32 s3, 4")
    A("s_cbranch_scc1 %s" % laux)
    A("s_setprio %d" % OPT.get("pg", 2))
    if not OPT.get("gemmoff"):
        gemm1(A)
        if not OPT.get("g1only"):
            gemm2(A)
    else:
        ready(A)
    A.end()
    A.label(lload)
    A.stamps = list(st0)
    A("s_setprio %d" % OPT.get("pl", 1))
    loader1_setup(A)
    if OPT.get("cnt"):
        A.stamps += [11, 14]
    loader_run(A, 0, NB1 if OPT.get("g1only") else NB1 + 2 * NL2 + 1)
    A("s_waitcnt vmcnt(0) lgkmcnt(0)")
    A.ts(4)
    A.end()
    A.label(laux)
    A.stamps = list(st0)
    lpp, ln, lnc, l6 = A.newl("Lpp"), A.newl("Lnn"), A.newl("Lnc"), A.newl("L6")
    B = 64
    aux_ids(A)
    kgen_setup(A, B)

    def early(A):
        sk = A.newl("Le")
        A("s_cmp_lg_u32 s68, 0")
        A("s_cbranch_scc1 %s" % ln)
        A("s_memrealtime s[4:5]")
        A("s_waitcnt lgkmcnt(0)")
        A("s_or_b32 s4, s4, 1")
        A("v_mov_b32 v2, 0")
        A("v_mov_b32 v3, s4")
        A("s_mov_b64 exec, 1")
        A("global_store_dword v2, v3, %s sc1" % s(P_DBG, 2))
        A("s_mov_b64 exec, -1")
        A.label(ln)
        A("s_cmp_ge_u32 s68, 640")
        A("s_cbranch_scc1 %s" % sk)
        kgen_issue(A)
        A.label(sk)
    A("s_setprio 2")
    ready(A, early)
    if OPT.get("auxoff"):
        A("s_endpgm")
    A("s_cmp_ge_u32 s68, 640")
    A("s_cbranch_scc1 %s" % lnc)
    A("s_waitcnt vmcnt(0)")
    A.ts(1)
    kgen_params(A, B)
    DT = B + KB_DT
    A("v_mul_f32 %s, %s, v58" % (v(DT), fbits(LOG2E)))
    A("v_exp_f32 %s, %s" % (v(DT), v(DT)))
    A("s_nop 0")
    A("v_cvt_pk_bf16_f32 %s, %s, %s" % (v(DT), v(DT), v(DT)))
    A("v_and_b32 %s, 0xffff0000, %s" % (v(DT), v(DT)))
    A("s_setprio %d" % OPT.get("pa", 0))
    A("s_waitcnt lgkmcnt(0)")
    kgen_chunk(A, B, 0, OPT.get("pkc", 0), True)
    A.ts(3)
    kgen_chunk(A, B, 1, False, False)
    nonce_lds(A, 4)
    A.ts(5)
    def jobs(A):
        a, c = A.newl("Lj"), A.newl("Lj")
        A("s_cmp_lg_u32 s3, 5")
        A("s_cbranch_scc1 %s" % c)
        poll_all(A)
        colsum_gather(A)
        A.label(c)
    kgen_chunk(A, B, 2, False, False)
    jobs(A)
    kgen_expand(A, B + KB_ACC)
    A.ts(8)
    if OPT.get("g1only"):
        A.end()
    conv(A)
    A("s_lshl_b32 s6, s68, 7")
    A("s_add_u32 s6, s6, 0x%x" % FL_A)
    A("s_waitcnt vmcnt(0)")
    signal(A, 6, 10)
    A("s_branch %s" % lpp)
    A.label(lnc)
    A("s_setprio 0")
    nonce_lds(A, 4)
    if OPT.get("g1only"):
        A.end()
    prog_wait(A, 4, 12, 8)
    aggregate(A)
    prog_wait(A, 11, 12, 8)
    jobs(A)
    prog_wait(A, 22, 12, 8)
    A.label(lpp)
    A.ts(12)
    a_fetch(A)
    A.ts(14)
    A.end()
    hdr = "; @launch grid=(256,1,1) block=(512,1,1) lds=%d\n" % LDS_TOTAL
    return hdr, A, [name]


def main():
    hdr, A, names = build_fused()
    out = "; generated by gen.py (hand-written generator)\n" + hdr
    out += '.amdgcn_target "amdgcn-amd-amdhsa--gfx950"\n.text\n'
    out += "\n".join(A.L) + "\n"
    out += '.section .rodata,"a"\n'
    for n in names:
        out += ".p2align 6\n" + kdesc(n)
    open(sys.argv[1], "w").write(out)


main()
```

```python
import sys, math, struct

NAME = "parallel_sum__ssm_conv_s4__swiglu_ffn__prompt"
OPT = dict(ts=False)
for a in sys.argv[2:]:
    k, _, v = a.partition("=")
    OPT[k] = int(v) if v else True

WS_ST = 0x000000
WS_CS = 0x010000
WS_XT = 0x280000
WS_HF = 0x500000
WS_AT = 0xB00000
WS_FL = 0xD80000
WS_TS = 0xE00000
WS_WD = 0x1000000
WS_SIZE = 0x1200000
FL_X = WS_FL
FL_H = WS_FL + 0x10000
FL_A = WS_FL + 0x40000

WP = 1088
UPOFF = 4 * WP + 16
SLOT1 = 8 * WP + 32
U1 = 2 * SLOT1
U2 = 10240
CTRL = 0
C_NONCE, C_PROG, C_EPI, C_CSOK, C_CNT, C_GO, C_KRDY, C_CRD, C_CPT = 4, 16, 32, 60, 80, 84, 64, 88, 104
CSUM = CTRL + 128
FLG = CSUM + 1024 + 256
MAIN = FLG + 256
KSTR = 4160
AUX_U = 4 * KSTR
AUXSZ = AUX_U + 4608
LDS_TOTAL = 163840
AUX0 = LDS_TOTAL - 2 * AUXSZ
ER = 112
STGSZ = 64 * ER
LNROW = 1312
NW, NXC = 5, 3
XRING = MAIN
WADDR = [XRING + NXC * 16384 + i * U1 for i in range(4)] + [AUX0 + STGSZ]
WHI = WADDR[3]
assert WADDR[3] + U1 <= AUX0 and WADDR[4] + U1 <= LDS_TOTAL - STGSZ
CONV_PROG = 16
SPRIV = 19072


def WSLOT(u):
    return WADDR[(u + 4) % NW]


def XSLOT(c):
    return XRING + ((9 - c) % NXC) * 16384


NL2 = 5
NS2 = 2 * NL2 + 1
NR2 = OPT.get("nr2", 4)


def _g2slots():
    areas = [(WSLOT(u), WSLOT(u) + U1, u + 1) for u in range(20 - NW, 20)]
    areas += [(XSLOT(c), XSLOT(c) + 16384, 2 * c + 2) for c in range(10 - NXC, 10)]
    out = []
    for i in range(NS2):
        lo = AUX0 - (i + 1) * U2
        assert lo >= MAIN + 2048
        out.append((max(n for (a, b, n) in areas if a < lo + U2 and lo < b), lo))
    return sorted(out)


G2SLOT = _g2slots()

LOG2E = 1.4426950408889634
BUD, NON = "s0", "s1"

def fbits(x):
    return "0x%08x" % struct.unpack("<I", struct.pack("<f", x))[0]


def v(i, n=1):
    return "v%d" % i if n == 1 else "v[%d:%d]" % (i, i + n - 1)


def s(i, n=1):
    return "s%d" % i if n == 1 else "s[%d:%d]" % (i, i + n - 1)


class Cnt:
    def __init__(self, A, name, mx):
        self.A, self.name, self.mx, self.q = A, name, mx, []

    def issue(self, tag):
        self.q.append(tag)

    def wait(self, tag):
        if tag not in self.q:
            return
        i = len(self.q) - 1 - self.q[::-1].index(tag)
        n = len(self.q) - 1 - i
        self.A("s_waitcnt %s(%d)" % (self.name, min(n, self.mx)))
        self.q = self.q[i + 1:]

    def drain(self):
        self.A("s_waitcnt %s(0)" % self.name)
        self.q = []


class Asm:
    def __init__(self):
        self.L = []
        self.nl = 0
        self.stamps = []
        self.cold = []

    def flush_cold(self):
        for f in self.cold:
            f()
        self.cold = []

    def __call__(self, t):
        self.L.append("  " + t)

    def label(self, l):
        self.L.append(l + ":")

    def newl(self, p="L"):
        self.nl += 1
        return "%s_%d" % (p, self.nl)

    def c(self, t):
        self.L.append("  ; " + t)

    def ts(self, slot):
        if OPT["ts"]:
            self("%s %s" % ("s_memtime" if OPT.get("cyc") else "s_memrealtime", s(70 + 2 * slot, 2)))
            self.stamps.append(slot)

    def end(self):
        if OPT.get("probe") is not None and self.stamps:
            if OPT["probe"] in self.stamps:
                sk, lp = self.newl("Lpr"), self.newl("Lpl")
                self("s_waitcnt lgkmcnt(0)")
                self("s_cmp_lg_u32 s2, 17")
                self("s_cbranch_scc1 %s" % sk)
                self("s_cmp_lg_u32 s3, %d" % OPT.get("probew", 0))
                self("s_cbranch_scc1 %s" % sk)
                self("s_sub_u32 s4, %s, s70" % s(70 + 2 * OPT["probe"]))
                self("s_lshl_b32 s4, s4, 2")
                self("s_add_u32 s4, s4, 3000")
                self.label(lp)
                self("s_memrealtime s[6:7]")
                self("s_waitcnt lgkmcnt(0)")
                self("s_sub_u32 s6, s6, s70")
                self("s_cmp_lt_u32 s6, s4")
                self("s_cbranch_scc1 %s" % lp)
                self.label(sk)
        elif OPT.get("dbgts") is not None and self.stamps:
            sk = self.newl("Ldt")
            self("s_waitcnt lgkmcnt(0)")
            self("s_cmp_lg_u32 s2, %d" % OPT.get("dbgwg", 17))
            self("s_cbranch_scc1 %s" % sk)
            self("s_cmp_lg_u32 s3, %d" % OPT["dbgts"])
            self("s_cbranch_scc1 %s" % sk)
            self("s_mov_b64 exec, 1")
            self("v_mov_b32 v2, 0")
            for sl in self.stamps:
                if sl == 0:
                    continue
                self("s_sub_u32 s4, %s, s70" % s(70 + 2 * sl))
                self("v_mov_b32 v0, s4")
                self("global_store_dword v2, v0, %s offset:%d" % (s(44, 2), 4 * sl))
            self.label(sk)
        elif OPT["ts"] and self.stamps:
            self("s_waitcnt lgkmcnt(0)")
            self("s_mov_b64 exec, 1")
            self("s_lshl_b32 s4, s2, 3")
            self("s_add_u32 s4, s4, s3")
            self("s_lshl_b32 s4, s4, 7")
            self("s_add_u32 s4, s4, 0x%x" % WS_TS)
            self("v_mov_b32 v2, 0")
            for sl in self.stamps:
                self("v_mov_b32 v0, %s" % s(70 + 2 * sl))
                self("v_mov_b32 v1, %s" % s(71 + 2 * sl))
                self("buffer_store_dwordx2 v[0:1], v2, s[48:51], s4 offen offset:%d" % (8 * sl))
                self("s_nop 1")
        self("s_endpgm")
        self.flush_cold()


P_X, P_ARE, P_AIM, P_BRE, P_BIM, P_CRE, P_CIM, P_LDT, P_DSK, P_BX, P_WG, P_WU, P_WD, P_OUT, P_DBG, P_WS = [16 + 2 * i for i in range(16)]
SC1 = " sc1"
LSC = " sc1"


def srd(A, d, ptr, size):
    A("s_mov_b32 %s, %s" % (s(d), s(ptr)))
    A("s_mov_b32 %s, %s" % (s(d + 1), s(ptr + 1)))
    A("s_mov_b32 %s, 0x%x" % (s(d + 2), size))
    A("s_mov_b32 %s, 0x20000" % s(d + 3))


def prologue(A, name, tsslot):
    A.L.append(".globl %s" % name)
    A.L.append(".p2align 8")
    A.L.append(".type %s,@function" % name)
    A.label(name)
    A.stamps = []
    ok = A.newl("Lgo")
    A("s_cmp_lt_u32 s2, 256")
    A("s_cbranch_scc1 %s" % ok)
    A.exit = A.newl("Lexit")
    A.label(A.exit)
    A("s_endpgm")
    A.label(ok)
    A("s_load_dwordx16 s[16:31], s[0:1], 0")
    A("s_load_dwordx16 s[32:47], s[0:1], 64")
    if OPT["ts"]:
        for i in range(16):
            A("s_mov_b64 %s, 0" % s(70 + 2 * i, 2))
    A.ts(tsslot)
    A("v_lshrrev_b32 v2, 6, v0")
    A("v_and_b32 v1, 63, v0")
    A("v_readfirstlane_b32 s3, v2")
    A("v_and_b32 v2, 31, v0")
    A("v_lshlrev_b32 v2, 2, v2")
    A("v_add_u32 v2, %d, v2" % CTRL)
    A("v_mov_b32 v3, 0")
    A("ds_write_b32 v2, v3")
    map_g1(A)
    map_g2(A)


def ready(A, early=None):
    A("s_waitcnt lgkmcnt(0)")
    if early:
        early(A)
    A("s_barrier")
    A("s_mov_b32 %s, 0x40000" % BUD)
    srd(A, 48, P_WS, WS_SIZE)


def tlb_warm(A, vt):
    ptrs = [P_X, P_WG, P_WU, P_ARE, P_AIM, P_BRE, P_BIM, P_CRE, P_CIM, P_LDT, P_DSK, P_WD, P_DBG, P_WS]
    A("v_mov_b32 %s, %s" % (v(vt), s(P_X)))
    A("v_mov_b32 %s, %s" % (v(vt + 1), s(P_X + 1)))
    for i, p in enumerate(ptrs):
        if i:
            A("v_writelane_b32 %s, %s, %d" % (v(vt), s(p), i))
            A("v_writelane_b32 %s, %s, %d" % (v(vt + 1), s(p + 1), i))
    A("s_mov_b64 exec, 0x%x" % ((1 << len(ptrs)) - 1))
    A("global_load_dword %s, %s, off" % (v(vt + 2), v(vt, 2)))
    A("s_mov_b64 exec, -1")


def guard(A):
    A("s_sub_u32 %s, %s, 1" % (BUD, BUD))
    A("s_cbranch_scc1 %s" % A.exit)


def map_g1(A):
    A("s_and_b32 s4, s2, 7")
    A("s_lshr_b32 s5, s2, 3")
    A("s_and_b32 s60, s4, 1")
    A("s_lshl_b32 s60, s60, 3")
    A("s_and_b32 s6, s5, 7")
    A("s_add_u32 s60, s60, s6")
    A("s_lshr_b32 s61, s4, 1")
    A("s_mul_i32 s61, s61, 3")
    A("s_lshr_b32 s6, s5, 3")
    A("s_add_u32 s61, s61, s6")


def map_g2(A):
    A("s_and_b32 s4, s2, 7")
    A("s_lshr_b32 s5, s2, 3")
    if OPT.get("m2", 1) == 0:
        A("s_lshl_b32 s62, s4, 2")
        A("s_and_b32 s6, s5, 3")
        A("s_add_u32 s62, s62, s6")
        A("s_lshr_b32 s63, s5, 2")
    else:
        A("s_lshr_b32 s62, s4, 1")
        A("s_lshl_b32 s62, s62, 3")
        A("s_and_b32 s6, s5, 7")
        A("s_add_u32 s62, s62, s6")
        A("s_and_b32 s63, s4, 1")
        A("s_lshl_b32 s63, s63, 2")
        A("s_lshr_b32 s6, s5, 3")
        A("s_add_u32 s63, s63, s6")


def lds_wait(A, off, cmp, val, vF, vC, sF, have=False, sleep=1):
    ok, poll = A.newl("Lok"), A.newl("Lpoll")

    def loop():
        A.label(poll)
        guard(A)
        if OPT.get("cnt") and have:
            A("s_add_u32 s92, s92, 1")
        A("ds_read_b32 %s, %s offset:%d" % (v(vF), v(vC), off))
        A("s_waitcnt lgkmcnt(0)")
        A("v_readfirstlane_b32 %s, %s" % (sF, v(vF)))
        A("s_cmp_%s_u32 %s, %s" % (cmp, sF, val))
        A("s_cbranch_scc1 %s" % ok)
        A("s_sleep %d" % sleep)
        A("s_branch %s" % poll)
    if have:
        A("v_readfirstlane_b32 %s, %s" % (sF, v(vF)))
        A("s_cmp_%s_u32 %s, %s" % (cmp, sF, val))
        A("s_cbranch_scc0 %s" % poll)
        A.cold.append(loop)
    else:
        loop()
    A.label(ok)


def nonce_lds(A, vt):
    A("v_mov_b32 %s, %d" % (v(vt + 1), CTRL))
    lds_wait(A, C_NONCE, "lg", 0, vt, vt + 1, NON)


def nonce_fetch(A, vt, issued=False):
    poll, chk = A.newl("Lnp"), A.newl("Lnc")
    if issued:
        A("s_branch %s" % chk)
    A.label(poll)
    guard(A)
    A("v_mov_b32 %s, 0" % v(vt))
    A("global_load_dword %s, %s, %s sc1" % (v(vt), v(vt), s(P_DBG, 2)))
    A.label(chk)
    A("s_waitcnt vmcnt(0)")
    A("v_readfirstlane_b32 %s, %s" % (NON, v(vt)))
    A("s_cmp_lg_u32 %s, 0" % NON)
    A("s_cbranch_scc0 %s" % poll)
    A("v_mov_b32 %s, %d" % (v(vt + 1), CTRL))
    A("ds_write_b32 %s, %s offset:%d" % (v(vt + 1), v(vt), C_NONCE))


def signal(A, soff, vt):
    A("v_mov_b32 %s, 0" % v(vt))
    A("v_mov_b32 %s, %s" % (v(vt + 1), NON))
    A("s_mov_b64 exec, 1")
    A("buffer_store_dword %s, %s, s[48:51], %s offen sc1" % (v(vt + 1), v(vt), s(soff)))
    A("s_mov_b64 exec, -1")


def poll_flags(A, loads, tags, vt, sleep=2):
    top, done = A.newl("Lgp"), A.newl("Lgd")
    A.label(top)
    guard(A)
    for (r, n, vo, so, imm) in loads:
        op = {1: "dword", 2: "dwordx2", 4: "dwordx4"}[n]
        A("buffer_load_%s %s, %s, s[48:51], %s offen offset:%d sc1" % (op, v(r, n), v(vo), s(so), imm))
    A("s_waitcnt vmcnt(0)")
    tag_check(A, tags, vt, done)
    A("s_sleep %d" % sleep)
    A("s_branch %s" % top)
    A.label(done)


def tag_check(A, tags, vt, done):
    A("v_xor_b32 %s, %s, %s" % (v(vt), NON, v(tags[0])))
    for x in tags[1:]:
        A("v_xor_b32 %s, %s, %s" % (v(vt + 1), NON, v(x)))
        A("v_or_b32 %s, %s, %s" % (v(vt), v(vt), v(vt + 1)))
    A("v_cmp_ne_u32 s[4:5], 0, %s" % v(vt))
    A("s_cmp_eq_u64 s[4:5], 0")
    A("s_cbranch_scc1 %s" % done)


def setexec(A, m):
    A("s_mov_b32 exec_lo, 0x%x" % (m & 0xffffffff))
    A("s_mov_b32 exec_hi, 0x%x" % (m >> 32))


def poll_all(A, vt=2):
    A("v_lshlrev_b32 %s, 7, v1" % v(vt))
    A("s_mov_b32 s6, 0x%x" % FL_X)
    poll_flags(A, [(vt + 4, 1, vt, 6, 0)], [vt + 4], vt + 1, 6)
    A("v_mov_b32 %s, %d" % (v(vt), CTRL))
    A("v_mov_b32 %s, 1" % v(vt + 1))
    A("ds_write_b32 %s, %s offset:%d" % (v(vt), v(vt + 1), C_GO))


LN_X, LN_F, LN_T = 104, 144, 224


def ln_issue(A):
    T = LN_T
    A("v_lshrrev_b32 %s, 3, v1" % v(T))
    A("v_and_b32 %s, 7, v1" % v(T + 1))
    A("v_mul_u32_u24 %s, 1280, %s" % (v(T + 2), v(T)))
    A("v_lshl_add_u32 %s, %s, 4, %s" % (v(T + 2), v(T + 1), v(T + 2)))
    A("s_mul_i32 s4, s9, %d" % (8 * 1280))
    for i in range(10):
        A("buffer_load_dwordx4 %s, %s, s[52:55], s4 offen offset:%d" % (v(LN_X + 4 * i, 4), v(T + 2), 128 * i))


def red8(A, r):
    for m in ["quad_perm:[1,0,3,2]", "quad_perm:[2,3,0,1]", "row_half_mirror"]:
        A("s_nop 1")
        A("v_add_f32_dpp %s, %s, %s %s row_mask:0xf bank_mask:0xf" % (v(r), v(r), v(r), m))


def ln8(A):
    X, F, T = LN_X, LN_F, LN_T
    S0, S1, M, R = T + 4, T + 6, T + 8, T + 10
    for i in range(40):
        A("v_lshlrev_b32 %s, 16, %s" % (v(F + 2 * i), v(X + i)))
        A("v_and_b32 %s, 0xffff0000, %s" % (v(F + 2 * i + 1), v(X + i)))
    A("v_pk_add_f32 %s, %s, %s" % (v(S0, 2), v(F, 2), v(F + 2, 2)))
    A("v_pk_add_f32 %s, %s, %s" % (v(S1, 2), v(F + 4, 2), v(F + 6, 2)))
    for i in range(4, 40):
        d = S0 + 2 * (i & 1)
        A("v_pk_add_f32 %s, %s, %s" % (v(d, 2), v(d, 2), v(F + 2 * i, 2)))
    A("v_pk_add_f32 %s, %s, %s" % (v(S0, 2), v(S0, 2), v(S1, 2)))
    A("v_add_f32 %s, %s, %s" % (v(S0), v(S0), v(S0 + 1)))
    red8(A, S0)
    A("v_mul_f32 %s, %s, %s" % (v(M + 1), fbits(1.0 / 640), v(S0)))
    A("v_cvt_pk_bf16_f32 %s, %s, %s" % (v(M), v(M + 1), v(M + 1)))
    A("v_and_b32 %s, 0xffff0000, %s" % (v(M), v(M)))
    for i in range(40):
        A("v_pk_add_f32 %s, %s, %s op_sel_hi:[1,0] neg_lo:[0,1] neg_hi:[0,1]" % (v(F + 2 * i, 2), v(F + 2 * i, 2), v(M, 2)))
    for i in range(40):
        d = S0 + 2 * (i & 1)
        if i < 2:
            A("v_pk_mul_f32 %s, %s, %s" % (v(d, 2), v(F + 2 * i, 2), v(F + 2 * i, 2)))
        else:
            A("v_pk_fma_f32 %s, %s, %s, %s" % (v(d, 2), v(F + 2 * i, 2), v(F + 2 * i, 2), v(d, 2)))
    A("v_pk_add_f32 %s, %s, %s" % (v(S0, 2), v(S0, 2), v(S1, 2)))
    A("v_add_f32 %s, %s, %s" % (v(S0), v(S0), v(S0 + 1)))
    red8(A, S0)
    A("v_sub_f32 %s, %s, %s" % (v(M + 1), v(M + 1), v(M)))
    A("v_mul_f32 %s, %s, %s" % (v(R), fbits(1.0 / 640), v(S0)))
    A("v_fma_f32 %s, -%s, %s, %s" % (v(R), v(M + 1), v(M + 1), v(R)))
    A("v_max_f32 %s, 0, %s" % (v(R), v(R)))
    A("v_cvt_pk_bf16_f32 %s, %s, %s" % (v(R), v(R), v(R)))
    A("v_and_b32 %s, 0xffff0000, %s" % (v(R), v(R)))
    A("v_add_f32 %s, %s, %s" % (v(R), fbits(1e-5), v(R)))
    A("v_cvt_pk_bf16_f32 %s, %s, %s" % (v(R), v(R), v(R)))
    A("v_and_b32 %s, 0xffff0000, %s" % (v(R), v(R)))
    A("v_sqrt_f32 %s, %s" % (v(R), v(R)))
    A("s_nop 0")
    A("v_cvt_pk_bf16_f32 %s, %s, %s" % (v(S0), v(M), v(R)))
    A("v_and_b32 %s, 0xffff0000, %s" % (v(R), v(S0)))
    A("v_rcp_f32 %s, %s" % (v(R), v(R)))
    A("v_mul_u32_u24 %s, %d, %s" % (v(T + 2), LNROW, v(T)))
    A("v_lshl_add_u32 %s, %s, 4, %s" % (v(T + 2), v(T + 1), v(T + 2)))
    A("v_add_u32 %s, s15, %s" % (v(T + 2), v(T + 2)))
    for i in range(11):
        if i < 10:
            for e in range(4):
                A("v_pk_mul_f32 %s, %s, %s op_sel_hi:[1,0]" % (v(F + 8 * i + 2 * e, 2), v(F + 8 * i + 2 * e, 2), v(R, 2)))
        if i:
            A("ds_write_b128 %s, %s offset:%d" % (v(T + 2), v(X + 4 * (i - 1), 4), 128 * (i - 1)))
        if i < 10:
            for e in range(4):
                A("v_cvt_pk_bf16_f32 %s, %s, %s" % (v(X + 4 * i + e), v(F + 8 * i + 2 * e), v(F + 8 * i + 2 * e + 1)))


def ln_store(A):
    F, T = LN_F, LN_T
    S0 = T + 4
    a0, a1, a2 = T + 12, T + 13, T + 14
    A("v_bfe_u32 %s, v1, 2, 2" % v(a0))
    A("v_mul_u32_u24 %s, %d, %s" % (v(a0), LNROW, v(a0)))
    A("v_lshrrev_b32 %s, 4, v1" % v(a1))
    A("v_lshl_add_u32 %s, %s, 5, %s" % (v(a0), v(a1), v(a0)))
    A("v_and_b32 %s, 3, v1" % v(a1))
    A("v_lshl_add_u32 %s, %s, 3, %s" % (v(a0), v(a1), v(a0)))
    A("v_add_u32 %s, s15, %s" % (v(a0), v(a0)))
    for i in range(10):
        A("ds_read_b64_tr_b16 %s, %s offset:%d" % (v(F + 4 * i, 2), v(a0), 128 * i))
        A("ds_read_b64_tr_b16 %s, %s offset:%d" % (v(F + 4 * i + 2, 2), v(a0), 128 * i + 4 * LNROW))
    A("v_mov_b32 %s, %s" % (v(S0 + 1), NON))
    A("s_lshl_b32 s6, s9, 6")
    A("s_add_u32 s6, s6, 0x%x" % WS_ST)
    setexec(A, 0x0101010101010101)
    A("buffer_store_dwordx2 %s, v1, s[48:51], s6 offen sc1" % v(S0, 2))
    A("s_mov_b64 exec, -1")
    A("v_lshlrev_b32 %s, 4, v1" % v(a0))
    A("s_mul_i32 s7, s9, 10240")
    A("s_add_u32 s7, s7, 0x%x" % WS_XT)
    A("s_waitcnt lgkmcnt(0)")
    for i in range(10):
        A("buffer_store_dwordx4 %s, %s, s[48:51], s7 offen offset:%d sc1" % (v(F + 4 * i, 4), v(a0), 1024 * (i % 4)))
        if i % 4 == 3:
            A("s_add_u32 s7, s7, 4096")


def flag_p(A):
    sk = A.newl("Lf")
    A("v_mov_b32 v10, %d" % CTRL)
    A("v_mov_b32 v11, 1")
    A("s_waitcnt vmcnt(0)")
    A("s_mov_b64 exec, 1")
    A("ds_add_rtn_u32 v11, v10, v11 offset:%d" % C_CNT)
    A("s_mov_b64 exec, -1")
    A("s_waitcnt lgkmcnt(0)")
    A("v_readfirstlane_b32 s4, v11")
    A("s_cmp_lg_u32 s4, 3")
    A("s_cbranch_scc1 %s" % sk)
    A("s_lshl_b32 s6, s2, 7")
    A("s_add_u32 s6, s6, 0x%x" % (FL_X - 192 * 128))
    signal(A, 6, 10)
    A.label(sk)


LV_C, LV_T, LV_Q = 36, 37, 40


def _schedule():
    B = []
    for u in range(20):
        B.append((u, 1, ("w", u, 16, u - NW + 2 if u >= NW else 0)))
    for h in range(20):
        c = h >> 1
        need = 2 * (c - NXC) + 3 if c >= NXC else 0
        lead = 1 if 0 < c < NXC else 0
        B.append((2 * c - lead * (1 - (h & 1)), 0, ("x", h, 8, need)))
    B.sort(key=lambda e: (e[0], e[1]))
    B = [e[2] for e in B]
    for i in range(2 * NL2 + 1):
        B.append(("d", i, 10, G2SLOT[i][0] + 1))
    return B


GAPS = {"cur": 4}


class Dma:
    def __init__(self, A, n):
        self.A, self.n, self.k = A, n, 0

    def __call__(self, t):
        self.A(t)
        self.k += 1
        GAP = GAPS["cur"]
        if GAP and (self.k % GAP == 0 or self.k == self.n):
            self.A("buffer_load_dword v35, v27, s[48:51], 0 offen")


SCHED = _schedule()
CUM = [0]
for e in SCHED:
    CUM.append(CUM[-1] + e[2])
NB1 = 40


def _flagafter():
    out = {}
    for u in range(20 + 2 * NL2 + 1):
        want = [("d", u - 20)] if u >= 20 else [("w", u), ("x", 2 * (u >> 1)), ("x", 2 * (u >> 1) + 1)]
        i = max(i for i, e in enumerate(SCHED) if (e[0], e[1]) in want)
        out.setdefault(i, []).append(u)
    return out


FLAGAFTER = _flagafter()


def loader_run(A, first, last):
    def rdprog():
        A("ds_read_b128 %s, %s offset:%d" % (v(LV_Q, 4), v(LV_C), C_PROG))

    def getprog():
        A("s_waitcnt lgkmcnt(0)")
        A("v_min_u32 v39, %s, %s" % (v(LV_Q), v(LV_Q + 1)))
        A("v_min3_u32 v39, v39, %s, %s" % (v(LV_Q + 2), v(LV_Q + 3)))
        A("s_nop 0")
        A("v_readfirstlane_b32 s67, v39")
    wait = A.newl("Llw")

    def waitfn():
        A.label(wait)
        guard(A)
        if OPT.get("cnt"):
            A("s_add_u32 s92, s92, 1")
        rdprog()
        getprog()
        A("s_cmp_ge_u32 s67, s9")
        A("s_cbranch_scc0 %s" % wait)
        A("s_setpc_b64 s[34:35]")
    A.cold.append(waitfn)
    known = 0
    for i in range(first, last):
        kind, idx, P, need = SCHED[i]
        if i == OPT.get("lbar", 3):
            A("s_barrier")
        if i == NB1:
            A.label("Lload_g2")
            rdprog()
        if OPT.get("free") and i < NB1:
            need = 0
        if need > known:
            go = A.newl("Llg")
            getprog()
            A("s_cmp_ge_u32 s67, %d" % need)
            A("s_cbranch_scc1 %s" % go)
            A("s_movk_i32 s9, %d" % need)
            A("s_call_b64 s[34:35], %s" % wait)
            A.label(go)
            known = need
        if OPT.get("fine") and kind == "w" and idx in (1, 2, 3, 4, 5, 6, 7, 8):
            A.ts(4 + idx)
        elif OPT.get("cnt") and kind == "w" and idx in (1, 5, 8, 12, 16):
            A.ts({1: 6, 5: 7, 8: 8, 12: 9, 16: 10}[idx])
        nxt = i + 1 < last and SCHED[i + 1][3] > known
        GAPS["cur"] = OPT.get("gap0", 4) if i < OPT.get("gapi", 9) else (OPT.get("gap", 1) if i < NB1 else OPT.get("gap2", 2))
        if i == NB1 + 1:
            loader2_setup(A)
            lds_wait(A, C_GO, "lg", 0, 38, LV_C, "s4")
            A.ts(3)
        {"w": issue1, "x": issue_x, "d": issue2}[kind](A, idx, rdprog if nxt else None)
        if i in FLAGAFTER:
            A("s_mov_b32 m0, %d" % (FLG + 4 * max(FLAGAFTER[i]) - 252))
            A("s_nop 0")
            A("buffer_load_dword v27, s[48:51], 0 offen lds")


def rot1(A, sd):
    if OPT.get("rot") == 0:
        A("s_mov_b32 %s, 0" % s(sd))
        return
    if OPT.get("rot") == 2:
        A("s_xor_b32 %s, s60, s61" % s(sd))
        A("s_and_b32 %s, %s, 1" % (s(sd), s(sd)))
        A("s_mul_i32 %s, %s, 5" % (s(sd), s(sd)))
        return
    A("s_and_b32 %s, s61, 3" % s(sd))
    A("s_mul_i32 %s, %s, %d" % (s(sd), s(sd), OPT.get("rnb", 0)))
    A("s_add_u32 %s, %s, s60" % (s(sd), s(sd)))
    for _ in range(2):
        A("s_cmp_ge_u32 %s, 10" % s(sd))
        A("s_cselect_b32 s5, 10, 0")
        A("s_sub_u32 %s, %s, s5" % (s(sd), s(sd)))


def flg_init(A):
    A("v_lshlrev_b32 v2, 2, v1")
    A("v_mov_b32 v3, 1")
    A("ds_write_b32 v2, v3 offset:%d" % FLG)


def loader_regs(A):
    A("v_mov_b32 %s, %d" % (v(LV_C), CTRL))
    A("v_mov_b32 v27, 0x7ffffff0")
    srd(A, 12, P_X, 2048 * 640 * 2)


def loader1_setup(A):
    A("v_lshrrev_b32 v40, 4, v1")
    A("v_mul_u32_u24 v40, %d, v40" % (4 * 3072))
    A("v_and_b32 v41, 15, v1")
    A("v_lshl_add_u32 v20, v41, 4, v40")
    for p in range(1, 4):
        A("v_add_u32 %s, %d, v20" % (v(20 + p), p * (3072 - WP)))
    A("v_lshrrev_b32 v40, 3, v1")
    A("v_mul_u32_u24 v40, 1280, v40")
    A("v_and_b32 v41, 7, v1")
    A("v_lshrrev_b32 v42, 4, v1")
    A("v_xor_b32 v41, v41, v42")
    A("v_lshl_add_u32 v28, v41, 4, v40")
    A("v_xor_b32 v29, 64, v28")
    A("v_add_u32 v29, %d, v29" % (8 * 1280 - 1024))
    A("v_add_u32 v30, %d, v28" % (16 * 1280 - 2048))
    A("v_add_u32 v31, %d, v29" % (16 * 1280 - 2048))
    rot1(A, 4)
    A("s_lshl_b32 s66, s61, 8")
    A("s_add_u32 s69, s66, %d" % (640 * 3072))
    A("s_mul_i32 s5, s4, %d" % (64 * 3072))
    A("s_add_u32 s64, s66, s5")
    A("s_mul_i32 s10, s60, %d" % (128 * 1280))
    A("s_add_u32 s11, s10, 1280")
    A("s_lshl_b32 s4, s4, 7")
    A("s_add_u32 s65, s10, s4")
    flg_init(A)
    A("s_waitcnt lgkmcnt(0)")
    A("s_mov_b32 %s, 0x40000" % BUD)
    srd(A, 48, P_WS, WS_SIZE)
    loader_regs(A)
    srd(A, 52, P_WG, 640 * 1536 * 2)
    srd(A, 56, P_WU, 640 * 1536 * 2)


def issue_x(A, h, mid):
    base = XSLOT(h >> 1) + (h & 1) * 8192
    D = Dma(A, 8)
    for g in range(2):
        A("s_mov_b32 m0, %d" % (base + 4096 * g))
        A("s_add_u32 s7, s65, %d" % ((64 * (h & 1) + 32 * g) * 1280))
        if g == 1 and mid:
            mid()
        for p in range(4):
            D("buffer_load_dwordx4 %s, s[12:15], s7 offen offset:%d lds" % (v(28 + p), 1024 * p))
    if h & 1:
        A("s_add_u32 s65, s65, 128")
        A("s_cmp_ge_u32 s65, s11")
        A("s_cselect_b32 s65, s10, s65")


def issue1(A, u, mid):
    base = WSLOT(u)
    D = Dma(A, 16)
    for k in range(2):
        so = "s64" if k == 0 else "s6"
        A("s_mov_b32 m0, %d" % (base + k * SLOT1))
        if k == 0:
            A("s_add_u32 s6, s64, %d" % (16 * 3072))
        else:
            A("s_add_u32 s64, s64, %d" % (32 * 3072))
        if k == 1 and mid:
            mid()
        for p in range(4):
            D("buffer_load_dwordx4 %s, s[52:55], %s offen offset:%d lds" % (v(20 + p), so, WP * p))
        A("s_mov_b32 m0, %d" % (base + k * SLOT1 + UPOFF))
        if k == 1 and (u & 1):
            A("s_cmp_ge_u32 s64, s69")
            A("s_cselect_b32 s64, s66, s64")
        else:
            A("s_nop 0")
        for p in range(4):
            D("buffer_load_dwordx4 %s, s[56:59], %s offen offset:%d lds" % (v(20 + p), so, WP * p))


def rot2(A, sd):
    if OPT.get("m2", 1):
        A("s_and_b32 %s, s62, 7" % s(sd))
        A("s_mul_i32 %s, %s, 3" % (s(sd), s(sd)))
        A("s_lshr_b32 %s, %s, 1" % (s(sd), s(sd)))
    else:
        A("s_and_b32 %s, s62, 3" % s(sd))
        A("s_mul_i32 %s, %s, 3" % (s(sd), s(sd)))


def loader2_setup(A):
    rot2(A, 4)
    A("s_add_u32 s4, s4, %d" % NR2)
    A("s_cmp_ge_u32 s4, 12")
    A("s_cselect_b32 s5, 12, 0")
    A("s_sub_u32 s4, s4, s5")
    A("s_mul_i32 s66, s63, %d" % (48 * 5120))
    A("s_add_u32 s66, s66, 0x%x" % WS_WD)
    A("s_add_u32 s69, s66, %d" % (12 * 5120))
    A("s_mul_i32 s4, s4, 5120")
    A("s_add_u32 s64, s66, s4")
    A("v_lshlrev_b32 v32, 4, v1")
    A("v_add_u32 v33, 4096, v32")


def issue2(A, u, mid):
    base = G2SLOT[u][1]
    D = Dma(A, 10)
    if u == 0:
        for p in range(5):
            A("v_add_u32 v50, %d, v1" % (64 * p))
            A("v_mul_u32_u24 v51, 52429, v50")
            A("v_lshrrev_b32 v51, 19, v51")
            A("v_mul_u32_u24 v51, %d, v51" % (1280 - 160))
            A("v_lshl_add_u32 %s, v50, 4, v51" % v(44 + p))
        if mid:
            mid()
        A("s_mul_i32 s6, s62, %d" % (64 * 1280))
        A("s_mul_i32 s7, s63, 160")
        A("s_add_u32 s6, s6, s7")
        for h in range(2):
            for p in range(5):
                A("s_mov_b32 m0, %d" % (base + 5120 * h + 1024 * p))
                A("s_nop 0")
                D("buffer_load_dwordx4 %s, s[12:15], s6 offen lds" % v(44 + p))
            A("s_add_u32 s6, s6, %d" % (32 * 1280))
        return
    u -= 1
    for w in range(2):
        A("s_mov_b32 m0, %d" % (base + 5120 * w))
        A("s_add_u32 s6, s64, %d" % ((2 * (u & 1) + w) * 12 * 5120))
        if w == 1 and mid:
            mid()
        for p in range(4):
            D("buffer_load_dwordx4 v32, s[48:51], s6 offen offset:%d%s lds" % (1024 * p, LSC))
        A("s_mov_b32 m0, %d" % (base + 5120 * w + 4096))
        A("s_nop 0")
        D("buffer_load_dwordx4 v33, s[48:51], s6 offen%s lds" % LSC)
    if u & 1:
        A("s_add_u32 s64, s64, 5120")
        A("s_cmp_ge_u32 s64, s69")
        A("s_cselect_b32 s64, s66, s64")


def colsum_gather(A):
    R, Q = 180, 220
    A("v_lshlrev_b32 v2, 4, v1")
    A("v_lshlrev_b32 v5, 3, v1")
    A("s_mul_i32 s6, s61, 20480")
    A("s_add_u32 s6, s6, 0x%x" % WS_CS)
    for i in range(1, 5):
        A("s_add_u32 %s, s6, %d" % (s(6 + i), 4096 * i))
    L = [(R + 4 * i, 4, 2, 6 + i // 2, 2048 * (i % 2)) for i in range(10)]
    L += [(Q + 2 * i, 2, 5, 6 + i // 2, 2048 * (i % 2) + 1024) for i in range(10)]
    poll_flags(A, L, [R + 3 + 4 * i for i in range(10)] + [Q + 1 + 2 * i for i in range(10)], 3, 8)
    A("v_mov_b32 %s, %s" % (v(R + 3), v(Q)))
    for i in range(1, 10):
        for e in range(3):
            A("v_add_f32 %s, %s, %s" % (v(R + e), v(R + e), v(R + 4 * i + e)))
        A("v_add_f32 %s, %s, %s" % (v(R + 3), v(R + 3), v(Q + 2 * i)))
    A("v_lshlrev_b32 v2, 2, v1")
    for e in range(4):
        A("ds_write_b32 v2, %s offset:%d" % (v(R + e), CSUM + 256 * e))
    A("v_mov_b32 v2, %d" % CTRL)
    A("v_mov_b32 v3, 1")
    A("ds_write_b32 v2, v3 offset:%d" % C_CSOK)


WDR = 24
WDOFF = 8 * LNROW


def wd_issue(A):
    T = 20
    srd(A, 56, P_WD, 1536 * 640 * 2)
    A("s_sub_u32 s4, s2, 192")
    A("s_lshl_b32 s4, s4, 2")
    A("s_add_u32 s4, s4, s3")
    A("s_mul_i32 s14, s4, 52429")
    A("s_lshr_b32 s14, s14, 18")
    A("s_mul_i32 s5, s14, 5")
    A("s_sub_u32 s13, s4, s5")
    A("s_lshl_b32 s13, s13, 1")
    A("s_mul_i32 s4, s14, %d" % (32 * 1280))
    A("s_lshl_b32 s5, s13, 7")
    A("s_add_u32 s4, s4, s5")
    A("v_lshrrev_b32 %s, 4, v1" % v(T))
    A("v_mul_u32_u24 %s, 1280, %s" % (v(T), v(T)))
    A("v_and_b32 %s, 15, v1" % v(T + 1))
    A("v_lshl_add_u32 %s, %s, 4, %s" % (v(T), v(T + 1), v(T)))
    for p in range(8):
        A("s_add_u32 m0, s15, %d" % (WDOFF + 1024 * p))
        A("s_nop 0")
        A("buffer_load_dwordx4 %s, s[56:59], s4 offen lds" % v(T))
        A("s_add_u32 s4, s4, %d" % (4 * 1280))


def wd_relayout(A):
    skip = A.newl("Lwd")
    T = 20
    A("s_cmp_ge_u32 s14, 48")
    A("s_cbranch_scc1 %s" % skip)
    A("v_lshrrev_b32 %s, 2, v1" % v(T))
    A("v_lshlrev_b32 %s, 8, %s" % (v(T), v(T)))
    A("v_and_b32 %s, 3, v1" % v(T + 1))
    A("v_lshl_add_u32 %s, %s, 3, %s" % (v(T), v(T + 1), v(T)))
    A("v_add_u32 %s, s15, %s" % (v(T), v(T)))
    A("v_lshlrev_b32 %s, 4, v1" % v(T + 1))
    for c in range(8):
        A("ds_read_b64_tr_b16 %s, %s offset:%d" % (v(WDR + 4 * c, 2), v(T), WDOFF + 32 * c))
        A("ds_read_b64_tr_b16 %s, %s offset:%d" % (v(WDR + 2 + 4 * c, 2), v(T), WDOFF + 32 * c + 4096))
    for c in range(8):
        A("s_lshl_b32 s4, s13, 2")
        A("s_add_u32 s4, s4, %d" % c)
        A("s_mul_i32 s5, s4, 52429")
        A("s_lshr_b32 s5, s5, 18")
        A("s_mul_i32 s6, s5, 5")
        A("s_sub_u32 s4, s4, s6")
        A("s_mul_i32 s5, s5, 48")
        A("s_add_u32 s5, s5, s14")
        A("s_mul_i32 s5, s5, 5")
        A("s_add_u32 s4, s4, s5")
        A("s_lshl_b32 s4, s4, 10")
        A("s_add_u32 s4, s4, 0x%x" % WS_WD)
        A("s_waitcnt lgkmcnt(%d)" % (14 - 2 * c))
        A("buffer_store_dwordx4 %s, %s, s[48:51], s4 offen sc1" % (v(WDR + 4 * c, 4), v(T + 1)))
    A.label(skip)


G_vA0, G_vA1, G_vC, G_vF, G_vP, G_vXo, G_vPa = 2, 3, 4, 5, 6, 7, 8


def prog(A, val):
    A("v_mov_b32 %s, %d" % (v(G_vP), val + 1))
    A("ds_write_b32 %s, %s" % (v(G_vPa), v(G_vP)))


def full_read(A, u):
    A("ds_read_b32 %s, %s offset:%d" % (v(G_vF), v(G_vC), FLG + 4 * u))


def full_wait(A, u, have=True):
    if OPT.get("free"):
        return
    if not getattr(A, "fullfn", None):
        A.fullfn = A.newl("Lfw")

        def fn():
            A.label(A.fullfn)
            guard(A)
            if OPT.get("cnt"):
                A("s_add_u32 s92, s92, 1")
            A("ds_read_b32 %s, v11" % v(G_vF))
            A("s_waitcnt lgkmcnt(0)")
            A("v_readfirstlane_b32 s10, %s" % v(G_vF))
            A("s_cmp_eq_u32 s10, 0")
            A("s_cbranch_scc0 %s" % A.fullfn)
            A("s_setpc_b64 s[34:35]")
        A.cold.append(fn)
    ok = A.newl("Lok")
    if have and u >= OPT.get("coldu", 6):
        st = A.newl("Lfs")
        A("v_readfirstlane_b32 s10, %s" % v(G_vF))
        A("s_cmp_eq_u32 s10, 0")
        A("s_cbranch_scc0 %s" % st)

        def stub():
            A.label(st)
            A("v_mov_b32 v11, %d" % (FLG + 4 * u))
            A("s_call_b64 s[34:35], %s" % A.fullfn)
            A("s_branch %s" % ok)
        A.cold.append(stub)
        A.label(ok)
        return
    if have:
        A("v_readfirstlane_b32 s10, %s" % v(G_vF))
        A("s_cmp_eq_u32 s10, 0")
        A("s_cbranch_scc1 %s" % ok)
    A("v_mov_b32 v11, %d" % (FLG + 4 * u))
    A("s_call_b64 s[34:35], %s" % A.fullfn)
    A.label(ok)


def wfrag_addr(A, d, t):
    A("v_bfe_u32 %s, v1, 2, 2" % v(t))
    A("v_mul_u32_u24 %s, %d, %s" % (v(d), WP, v(t)))
    A("v_lshrrev_b32 %s, 5, v1" % v(t))
    A("v_lshl_add_u32 %s, %s, 9, %s" % (v(d), v(t), v(d)))
    A("v_bfe_u32 %s, v1, 4, 1" % v(t))
    A("v_lshl_add_u32 %s, %s, 5, %s" % (v(d), v(t), v(d)))
    A("v_and_b32 %s, 1, v1" % v(t))
    A("v_lshl_add_u32 %s, %s, 3, %s" % (v(d), v(t), v(d)))
    A("v_bfe_u32 %s, v1, 1, 1" % v(t))
    A("v_mul_u32_u24 %s, %d, %s" % (v(t), UPOFF, v(t)))
    A("v_add_u32 %s, %s, %s" % (v(d), v(t), v(d)))


def gemm_regs(A):
    A("v_mov_b32 %s, %d" % (v(G_vC), CTRL))
    A("s_lshl_b32 s4, s3, 2")
    A("s_add_u32 s4, s4, %d" % (CTRL + C_PROG))
    A("v_mov_b32 %s, s4" % v(G_vPa))


def code_prefetch(A):
    A("s_getpc_b64 s[4:5]")
    here = A.newl("Lpc")
    A.label(here)
    A("s_sub_u32 s4, s4, %s-%s" % (here, NAME + "_kernel"))
    A("s_subb_u32 s5, s5, 0")
    A("s_lshr_b32 s6, s2, 3")
    A("s_lshl_b32 s6, s6, 11")
    A("v_lshlrev_b32 v250, 7, v1")
    A("v_add_u32 v250, s6, v250")
    A("s_mov_b32 s6, Lcode_end-%s-4" % (NAME + "_kernel"))
    A("v_min_u32 v250, s6, v250")
    A("s_mov_b64 exec, 0xffff")
    A("global_load_dword v251, v250, s[4:5]")
    A("s_mov_b64 exec, -1")


def s_phase0(A):
    gemm_regs(A)
    A("s_mul_i32 s15, s3, %d" % SPRIV)
    A("s_add_u32 s15, s15, %d" % MAIN)
    A("s_and_b32 s4, s2, 1")
    A("s_lshl_b32 s9, s4, 7")
    A("s_bfe_u32 s4, s2, 0x20001")
    A("s_lshl_b32 s4, s4, 5")
    A("s_add_u32 s9, s9, s4")
    A("s_bfe_u32 s4, s2, 0x30003")
    A("s_lshl_b32 s4, s4, 2")
    A("s_add_u32 s9, s9, s4")
    A("s_add_u32 s9, s9, s3")

    ready(A)
    srd(A, 52, P_X, 2048 * 640 * 2)
    ln_issue(A)
    wd_issue(A)
    A("v_mov_b32 %s, 1" % v(G_vP))
    A("ds_write_b32 %s, %s offset:%d" % (v(G_vPa), v(G_vP), C_EPI - C_PROG))
    A("s_waitcnt vmcnt(8)")
    A.ts(1)
    A("v_mov_b32 v22, 0")
    A("global_load_dword v22, v22, %s sc1" % s(P_DBG, 2))
    ln8(A)
    nonce_fetch(A, 22, True)
    ln_store(A)
    wd_relayout(A)
    prog(A, 20)
    flag_p(A)
    A.ts(2)
    sk = A.newl("Ls0")
    A("s_cmp_lg_u32 s3, 0")
    A("s_cbranch_scc1 %s" % sk)
    poll_all(A, 12)
    A.label(sk)
    A.ts(3)


def gemm1(A):
    ACC, FB = 128, 80
    SEL, CSD = 24, 40
    ST = 16
    vX = 12
    CR = [24, 40, 64, 80]
    NM, C1 = [56, 60], [58, 62]
    vA0, vC, vF, vP, vXo, vPa = G_vA0, G_vC, G_vF, G_vP, G_vXo, G_vPa
    lg = Cnt(A, "lgkmcnt", 15)
    A("s_and_b32 s11, s3, 1")
    A("s_lshr_b32 s12, s3, 1")
    A("s_lshl_b32 s8, s60, 1")
    A("s_add_u32 s8, s8, s11")
    wfrag_addr(A, vA0, 9)
    A("s_lshl_b32 s4, s12, 4")
    A("s_add_u32 s4, s4, %d" % WADDR[0])
    A("v_add_u32 %s, s4, %s" % (v(vA0), v(vA0)))
    A("v_add_u32 %s, %d, %s" % (v(G_vA1), WHI - WADDR[0], v(vA0)))
    A("v_and_b32 v9, 31, v1")
    A("v_bfe_u32 v10, v1, 1, 3")
    A("v_lshrrev_b32 v11, 5, v1")
    A("v_xor_b32 v10, v10, v11")
    A("v_lshlrev_b32 v10, 4, v10")
    A("v_lshl_add_u32 v10, v9, 7, v10")
    A("s_lshl_b32 s4, s11, 13")
    A("s_add_u32 s4, s4, %d" % XRING)
    for j in range(4):
        A("v_xor_b32 %s, %d, v10" % (v(vX + j), 32 * j))
        A("v_add_u32 %s, s4, %s" % (v(vX + j), v(vX + j)))
    gemm_regs(A)
    A("s_lshl_b32 s4, s12, 2")
    A("v_subrev_u32 v9, s4, v9")
    A("v_mov_b32 v10, 0x3f803f80")
    for t in range(4):
        A("v_cmp_eq_u32 vcc, %d, v9" % [0, 1, 2, 8][t])
        A("s_nop 1")
        for d in range(4):
            A("v_cndmask_b32 %s, 0, v10, vcc" % v(SEL + 4 * t + d))
    ready(A)

    def W(ks, t):
        return FB + 24 * (ks & 1) + 4 * t

    def X(ks, a):
        return FB + 24 * (ks & 1) + 16 + 4 * a

    def wread(ks, t):
        off, b = WSLOT(ks >> 1) + (ks & 1) * SLOT1 + 64 * t - WADDR[0], vA0
        if WSLOT(ks >> 1) >= WHI:
            off, b = off - (WHI - WADDR[0]), G_vA1
        A("ds_read_b64_tr_b16 %s, %s offset:%d" % (v(W(ks, t), 2), v(b), off))
        lg.issue(("w", ks, t, 0))
        A("ds_read_b64_tr_b16 %s, %s offset:%d" % (v(W(ks, t) + 2, 2), v(b), off + 256))
        lg.issue(("w", ks, t))

    def xread(ks, a):
        A("ds_read_b128 %s, %s offset:%d" % (v(X(ks, a), 4), v(vX + ks % 4), XSLOT(ks >> 2) - XRING + 4096 * a))
        lg.issue(("x", ks, a))

    def reads(ks):
        return [lambda: xread(ks, 0), lambda: wread(ks, 0), lambda: xread(ks, 1), lambda: wread(ks, 1), lambda: wread(ks, 2), lambda: wread(ks, 3)]
    full_wait(A, 0, False)
    A.ts(4)

    def x_csread():
        A("ds_read_b32 v20, %s offset:%d" % (v(vC), C_CSOK))
        lg.issue("cs")

    def x_cscheck():
        lg.wait("cs")
        lds_wait(A, C_CSOK, "lg", 0, 20, vC, "s10", True)
        A("v_lshrrev_b32 v21, 5, v1")
        A("v_lshlrev_b32 v21, 4, v21")
        A("s_lshl_b32 s4, s12, 7")
        A("s_add_u32 s4, s4, %d" % CSUM)
        A("v_add_u32 v21, s4, v21")

    def x_cs(t, m):
        A("ds_read_b128 %s, v21 offset:%d" % (v(CR[t] + 4 * m, 4), 256 * t + 32 * m))
        lg.issue(("cr", t, m))

    def x_stat():
        ok, slow = A.newl("Lst"), A.newl("Lss")
        A("s_waitcnt vmcnt(0)")
        A("v_xor_b32 v10, %s, %s" % (NON, v(ST + 1)))
        A("v_xor_b32 v11, %s, %s" % (NON, v(ST + 3)))
        A("v_or_b32 v10, v10, v11")
        A("v_cmp_ne_u32 s[4:5], 0, v10")
        A("s_cmp_eq_u64 s[4:5], 0")
        A("s_cbranch_scc0 %s" % slow)
        A.label(ok)

        def cold():
            A.label(slow)
            poll_flags(A, [(ST, 2, 9, 6, 0), (ST + 2, 2, 9, 6, 256)], [ST + 1, ST + 3], 10, 2)
            A("s_branch %s" % ok)
        A.cold.append(cold)

    def x_const(a):
        A("v_lshlrev_b32 %s, 16, %s" % (v(NM[a]), v(ST + 2 * a)))
        A("v_and_b32 %s, 0xffff0000, %s" % (v(C1[a]), v(ST + 2 * a)))
        A("v_xor_b32 %s, 0x80000000, %s" % (v(NM[a]), v(NM[a])))
        A("v_mul_f32 %s, %s, %s" % (v(NM[a] + 1), v(C1[a]), v(C1[a])))
        A("v_rcp_f32 %s, %s" % (v(C1[a]), v(C1[a])))

    def x_last():
        for a in range(2):
            A("v_mul_f32 %s, %s, %s" % (v(C1[a]), fbits(-LOG2E), v(C1[a])))
        A("v_lshlrev_b32 %s, 4, v1" % v(vXo))
        A("s_mul_i32 s9, s8, 192")
        A("s_lshl_b32 s4, s61, 3")
        A("s_add_u32 s9, s9, s4")
        A("s_add_u32 s9, s9, s12")
        A("s_lshl_b32 s9, s9, 10")
        A("s_add_u32 s9, s9, 0x%x" % WS_HF)
    extras = [x_csread, x_stat, lambda: x_const(0), lambda: x_const(1), x_cscheck, x_last]
    extras += [(lambda t=t, m=m: x_cs(t, m)) for t in range(3) for m in range(4)]
    if OPT.get("g1only"):
        extras = []
    allr = [(ks, i, f) for ks in range(40) for i, f in enumerate(reads(ks))]
    state = {"g": 0, "prog": 0}

    def next_read():
        if state["g"] >= len(allr):
            return False
        ks, i, f = allr[state["g"]]
        state["g"] += 1
        if i == 0 and ks % 2 == 0 and ks > 0:
            lg.wait(("f", ks))
            full_wait(A, ks // 2)
        f()
        if i == OPT.get("fn", 2) and ks % 2 == 1 and ks + 1 < 40:
            full_read(A, (ks + 1) // 2)
            lg.issue(("f", ks + 1))
        return True

    def try_prog():
        u = state["prog"]
        if u < 20 and state["g"] > 12 * u + 11 and ("w", 2 * u + 1, 3) not in lg.q:
            prog(A, u + 1)
            lg.issue(("p", u))
            state["prog"] += 1
    for _ in range(6):
        next_read()
    for ks in range(40):
        if ks == 26:
            A("v_and_b32 v9, 31, v1")
            A("v_lshlrev_b32 v9, 3, v9")
            A("s_lshl_b32 s6, s8, 9")
            A("s_add_u32 s6, s6, 0x%x" % WS_ST)
            A("buffer_load_dwordx2 %s, v9, s[48:51], s6 offen sc1" % v(ST, 2))
            A("buffer_load_dwordx2 %s, v9, s[48:51], s6 offen offset:256 sc1" % v(ST + 2, 2))
        if ks == OPT.get("pubks", 5) and not OPT.get("auxoff"):
            sk = A.newl("Lcs")
            nonce_lds(A, 10)
            lg.q = []
            A("s_cmp_ge_u32 s60, 10")
            A("s_cbranch_scc1 %s" % sk)
            A("s_cmp_lg_u32 s11, 0")
            A("s_cbranch_scc1 %s" % sk)
            A("v_mov_b32 %s, %s" % (v(CSD + 3), NON))
            A("v_mov_b32 %s, %s" % (v(CSD + 5), NON))
            A("v_lshlrev_b32 v9, 4, v1")
            A("v_lshlrev_b32 v10, 3, v1")
            A("s_mul_i32 s6, s61, 10")
            A("s_add_u32 s6, s6, s60")
            A("s_lshl_b32 s6, s6, 11")
            A("s_add_u32 s6, s6, 0x%x" % WS_CS)
            A("s_sub_u32 exec_lo, s12, 1")
            A("s_not_b32 exec_hi, exec_lo")
            A("buffer_store_dwordx4 %s, v9, s[48:51], s6 offen sc1" % v(CSD, 4))
            A("buffer_store_dwordx2 %s, v10, s[48:51], s6 offen offset:1024 sc1" % v(CSD + 4, 2))
            A("s_mov_b64 exec, -1")
            A.label(sk)
        if ks in (12, 20, 28):
            A.ts(8 + (ks - 12) // 8)
        n = 0
        for t in range(4):
            for a in range(2):
                lg.wait(("w", ks, t))
                lg.wait(("x", ks, a))
                d = ACC + 64 * a + 16 * t
                cin = "0" if ks == 0 else v(d, 16)
                A("v_mfma_f32_32x32x16_bf16 %s, %s, %s, %s" % (v(d, 16), v(W(ks, t), 4), v(X(ks, a), 4), cin))
                try_prog()
                did = n < 6 and next_read()
                if not did and ks >= OPT.get("epks", 34) and extras:
                    extras.pop(0)()
                n += 1
            if ks < 4:
                cin = "0" if ks + t == 0 else v(CSD, 16)
                A("v_mfma_f32_32x32x16_bf16 %s, %s, %s, %s" % (v(CSD, 16), v(SEL + 4 * t, 4), v(W(ks, t), 4), cin))
    while extras:
        extras.pop(0)()
    A.ts(5)
    if OPT.get("cnt"):
        A.stamps += [11, 14]
    if OPT.get("g1only"):
        return
    for m in range(4):
        x_cs(3, m)
    T0 = 96
    n = 0
    A("s_nop 3")
    for t in range(4):
        lg.wait(("cr", t, 3))
        for a in range(2):
            ac = ACC + 64 * a + 16 * t
            tmp = T0 + 16 * (n & 1)
            n += 1
            G = [ac, ac + 2, ac + 8, ac + 10]
            U = [ac + 4, ac + 6, ac + 12, ac + 14]
            for i in range(8):
                A("v_pk_fma_f32 %s, %s, %s, %s op_sel_hi:[1,0,1]" % (v(ac + 2 * i, 2), v(CR[t] + 2 * i, 2), v(NM[a], 2), v(ac + 2 * i, 2)))
            for i in range(4):
                A("v_pk_mul_f32 %s, %s, %s op_sel_hi:[1,0]" % (v(tmp + 2 * i, 2), v(G[i], 2), v(C1[a], 2)))
            for i in range(8):
                A("v_exp_f32 %s, %s" % (v(tmp + i), v(tmp + i)))
            for i in range(4):
                A("v_pk_mul_f32 %s, %s, %s" % (v(G[i], 2), v(G[i], 2), v(U[i], 2)))
            for i in range(4):
                A("v_pk_fma_f32 %s, %s, %s, %s op_sel:[0,1,1] op_sel_hi:[1,1,1]" % (v(tmp + 2 * i, 2), v(tmp + 2 * i, 2), v(NM[a], 2), v(NM[a], 2)))
            for i in range(8):
                A("v_rcp_f32 %s, %s" % (v(tmp + i), v(tmp + i)))
            A("s_add_u32 s4, s9, %d" % (96 * 1024 * a + 2048 * t))
            for i in range(4):
                A("v_pk_mul_f32 %s, %s, %s" % (v(G[i], 2), v(G[i], 2), v(tmp + 2 * i, 2)))
            for i in range(4):
                A("v_cvt_pk_bf16_f32 %s, %s, %s" % (v(tmp + 8 + i), v(G[i]), v(G[i] + 1)))
            A("buffer_store_dwordx4 %s, %s, s[48:51], s4 offen sc1" % (v(tmp + 8, 4), v(vXo)))
    A("v_mov_b32 %s, 1" % v(vP))
    A("ds_write_b32 %s, %s offset:%d" % (v(vPa), v(vP), C_EPI - C_PROG))
    A.ts(6)
    A("s_lshl_b32 s6, s8, 4")
    A("s_add_u32 s6, s6, s61")
    A("s_lshl_b32 s6, s6, 1")
    A("s_add_u32 s6, s6, s12")
    A("s_lshl_b32 s6, s6, 7")
    A("s_add_u32 s6, s6, 0x%x" % FL_H)
    A("s_waitcnt vmcnt(0)")
    signal(A, 6, 10)
    A.ts(7)


def cmul(A, d, a, f, t, pk=False):
    assert d != a and d != f
    if pk:
        A("v_pk_mul_f32 %s, %s, %s op_sel:[0,0] op_sel_hi:[1,0]" % (v(d, 2), v(a, 2), v(f, 2)))
        A("v_pk_fma_f32 %s, %s, %s, %s op_sel:[1,1,0] op_sel_hi:[0,1,1] neg_lo:[1,0,0]" % (v(d, 2), v(a, 2), v(f, 2), v(d, 2)))
        return
    A("v_mul_f32 %s, %s, %s" % (v(d), v(a), v(f)))
    A("v_mul_f32 %s, %s, %s" % (v(d + 1), v(a + 1), v(f)))
    A("v_fma_f32 %s, -%s, %s, %s" % (v(d), v(a + 1), v(f + 1), v(d)))
    A("v_fmac_f32 %s, %s, %s" % (v(d + 1), v(a), v(f + 1)))


def kgen_issue(A):
    A("v_mov_b32 v58, 0")
    A("v_mov_b32 v59, 0")
    A("s_mul_i32 s4, s68, 384")
    A("v_lshlrev_b32 v38, 4, v1")
    A("v_add_u32 v38, s4, v38")
    A("s_lshl_b32 s4, s68, 1")
    A("v_mov_b32 v39, s4")
    setexec(A, 0xffffff)
    for i, p in enumerate([P_ARE, P_AIM, P_BRE, P_BIM, P_CRE, P_CIM]):
        A("s_add_u32 m0, s66, %d" % (384 * i))
        A("s_nop 0")
        A("global_load_lds_dwordx4 v38, %s" % s(p, 2))
    A("s_mov_b64 exec, -1")
    A("global_load_short_d16_hi v58, v39, %s" % s(P_LDT, 2))
    A("global_load_short_d16_hi v59, v39, %s" % s(P_DSK, 2))


HI = list(range(8)) + [256, 258, 260, 262, 512, 516, 768, 772, 1024, 1280, 1536, 1792, 2048]
EROW = 272


KB_DT, KB_ACC = 6, 134


def kgen_params(A, B):
    for c in range(3):
        for i in range(6):
            A("ds_read_u16_d16_hi %s, %s offset:%d" % (v(40 + 6 * c + i), v(B + 9), 384 * i + 128 * c))


def kgen_setup(A, B):
    vW, vR, ONE, T = B + 7, B + 8, B + 10, B + 20
    A("s_mov_b32 s4, s66")
    for i in range(18):
        A("v_mov_b32 %s, 0" % v(40 + i))
    A("v_mul_u32_u24 %s, %d, v1" % (v(vW), ER))
    A("v_add_u32 %s, s4, %s" % (v(vW), v(vW)))
    A("v_bfe_u32 %s, v1, 2, 2" % v(T))
    A("v_lshrrev_b32 %s, 5, v1" % v(T + 1))
    A("v_lshl_add_u32 %s, %s, 3, %s" % (v(T), v(T + 1), v(T)))
    A("v_mul_u32_u24 %s, %d, %s" % (v(vR), ER, v(T)))
    A("v_bfe_u32 %s, v1, 4, 1" % v(T))
    A("v_lshl_add_u32 %s, %s, 5, %s" % (v(vR), v(T), v(vR)))
    A("v_and_b32 %s, 3, v1" % v(T))
    A("v_lshl_add_u32 %s, %s, 3, %s" % (v(vR), v(T), v(vR)))
    A("v_add_u32 %s, s4, %s" % (v(vR), v(vR)))
    A("v_lshlrev_b32 %s, 1, v1" % v(B + 9))
    A("v_add_u32 %s, s66, %s" % (v(B + 9), v(B + 9)))
    A("v_mov_b32 %s, 1.0" % v(ONE))
    A("v_mov_b32 %s, 0" % v(ONE + 1))


def kgen_chunk(A, B, c, pkm, first, mid=None):
    are, aim, bre, bim, cre, cim = [40 + 6 * c + i for i in range(6)]
    DT, vW, vR, vP, ONE = B + KB_DT, B + 7, B + 8, B + 9, B + 10
    E1, E8, E256, E16, TA = B + 12, B + 14, B + 16, B + 18, B + 20
    LO = [B + 26, B + 28, B + 30, B + 32]
    Gs, PR, PI, KACC = B + 34, B + 78, B + 106, B + KB_ACC
    FR = B + 34
    G = lambda i: Gs + 2 * i
    A("v_mul_f32 %s, %s, %s" % (v(are), v(DT), v(are)))
    A("v_mul_f32 %s, %s, %s" % (v(aim), v(DT), v(aim)))
    A("v_mul_f32 %s, %s, %s" % (v(are), fbits(LOG2E), v(are)))
    A("v_mul_f32 %s, %s, %s" % (v(aim), fbits(0.5 / math.pi), v(aim)))
    Es = [(E8, 8.0, TA), (E1, 1.0, TA + 2), (E256, 256.0, TA + 4)]
    for (E, l, T) in Es:
        A("v_mul_f32 %s, %s, %s" % (v(T), fbits(l), v(are)))
        A("v_mul_f32 %s, %s, %s" % (v(T + 1), fbits(l), v(aim)))
    for (E, l, T) in Es:
        A("v_fract_f32 %s, %s" % (v(T + 1), v(T + 1)))
    for (E, l, T) in Es:
        A("v_exp_f32 %s, %s" % (v(T), v(T)))
        A("v_cos_f32 %s, %s" % (v(E), v(T + 1)))
        A("v_sin_f32 %s, %s" % (v(E + 1), v(T + 1)))
    A("v_mul_f32 %s, %s, %s" % (v(bre), v(DT), v(bre)))
    A("v_mul_f32 %s, %s, %s" % (v(bim), v(DT), v(bim)))
    for (E, l, T) in Es:
        A("v_mul_f32 %s, %s, %s" % (v(E), v(E), v(T)))
        A("v_mul_f32 %s, %s, %s" % (v(E + 1), v(E + 1), v(T)))
    cmul(A, Gs, cre, bre, TA)
    cmul(A, E16, E8, E8, E16)
    loc = {0: Gs, 24: ONE, 25: E8, 26: E16}
    packed, written = set(), set()

    def flush():
        for p in range(28):
            if p in packed or p == 11:
                continue
            c0, c1 = 2 * p, 2 * p + 1
            if p == 10:
                c1 = c0
            if c0 in loc and c1 in loc:
                n = "-" if p < 12 else ""
                A("v_cvt_pk_bf16_f32 %s, %s, %s" % (v(PR + p), v(loc[c0]), v(loc[c1])))
                A("v_cvt_pk_bf16_f32 %s, %s%s, %s%s" % (v(PI + p), n, v(loc[c0] + 1), n, v(loc[c1] + 1)))
                packed.add(p)

    def wr(old):
        for q in range(7):
            if q not in written and all((p in old or p == 11) for p in range(4 * q, 4 * q + 4)):
                if OPT.get("kx") != 1:
                    A("ds_write_b128 %s, %s offset:%d" % (v(vW), v(PR + 4 * q, 4), 16 * q))
                written.add(q)
    cur = [E16, E8]
    lo_ops = []
    for j in range(3, 32):
        ch = 1 if (j & 1) else 0
        dst = LO[2 * ch + ((j >> 1) & 1)]
        lo_ops.append((dst, cur[ch], E16, 24 + j))
        cur[ch] = dst
    src = {8: 0, 9: 2, 10: 4, 11: 6, 12: 8, 13: 10, 14: 12, 15: 13, 16: 14, 17: 16, 18: 17, 19: 18, 20: 19}
    h1 = [(G(i), G(i - 1), E1, i) for i in range(1, 8)] + [(G(i), G(src[i]), E256, i) for i in [9, 10, 11, 13, 15]]
    h2 = [(G(i), G(src[i]), E256, i) for i in [8, 12, 14, 16, 17, 18, 19, 20]]
    groups = [[lo_ops.pop(0)]]
    while lo_ops:
        groups.append([lo_ops.pop(0), lo_ops.pop(0)])
    for i, g in enumerate(groups):
        if i < len(h1):
            g.append(h1[i])
        if i < len(h2):
            g.append(h2[i])
    for gi, grp in enumerate(groups):
        if gi == 8 and mid:
            mid(A)
        old = set(packed)
        if pkm:
            for (d, a, f, col) in grp:
                A("v_pk_mul_f32 %s, %s, %s op_sel:[0,0] op_sel_hi:[1,0]" % (v(d, 2), v(a, 2), v(f, 2)))
        elif OPT.get("kx") != 2:
            for (d, a, f, col) in grp:
                A("v_mul_f32 %s, %s, %s" % (v(d), v(a), v(f)))
                A("v_mul_f32 %s, %s, %s" % (v(d + 1), v(a + 1), v(f)))
        wr(old)
        flush()
        if pkm:
            for (d, a, f, col) in grp:
                A("v_pk_fma_f32 %s, %s, %s, %s op_sel:[1,1,0] op_sel_hi:[0,1,1] neg_lo:[1,0,0]" % (v(d, 2), v(a, 2), v(f, 2), v(d, 2)))
        elif OPT.get("kx") != 2:
            for (d, a, f, col) in grp:
                A("v_fma_f32 %s, -%s, %s, %s" % (v(d), v(a + 1), v(f + 1), v(d)))
                A("v_fmac_f32 %s, %s, %s" % (v(d + 1), v(a), v(f + 1)))
        for (d, a, f, col) in grp:
            loc[col] = d
    flush()
    wr(packed)
    assert len(written) == 7

    def rd(ks):
        for (r, off) in [(FR + 8 * ks, 0), (FR + 8 * ks + 4, 48)]:
            A("ds_read_b64_tr_b16 %s, %s offset:%d" % (v(r, 2), v(vR), 16 * ER * (ks & 3) + off))
            A("ds_read_b64_tr_b16 %s, %s offset:%d" % (v(r + 2, 2), v(vR), 16 * ER * (ks & 3) + off + 4 * ER))

    def mf(ks):
        cin = "0" if (first and ks == 0) else v(KACC, 16)
        A("v_mfma_f32_32x32x16_bf16 %s, %s, %s, %s" % (v(KACC, 16), v(FR + 8 * ks, 4), v(FR + 8 * ks + 4, 4), cin))
    for ks in range(4):
        rd(ks)
    for q in range(7):
        if OPT.get("kx") != 1:
            A("ds_write_b128 %s, %s offset:%d" % (v(vW), v(PI + 4 * q, 4), 16 * q))
    A("s_waitcnt lgkmcnt(%d)" % (7 if OPT.get("kx") != 1 else 0))
    for ks in range(4):
        mf(ks)
        if ks >= 2:
            rd(ks + 2)
    rd(6)
    rd(7)
    for ks in range(4, 8):
        A("s_waitcnt lgkmcnt(%d)" % (4 * (7 - ks)))
        mf(ks)


def kgen_expand(A, KACC):
    A("v_and_b32 v2, 31, v1")
    A("v_lshrrev_b32 v3, 5, v1")
    A("v_lshlrev_b32 v4, 5, v2")
    A("v_lshl_add_u32 v4, v3, 4, v4")
    A("v_add_u32 v4, s66, v4")
    A("v_lshlrev_b32 v5, 4, v2")
    A("v_add_u32 v5, s66, v5")
    A("v_lshlrev_b32 v6, 3, v2")
    A("v_add_u32 v6, s66, v6")
    A("v_lshlrev_b32 v7, 2, v2")
    A("v_add_u32 v7, s66, v7")
    A("s_nop 7")
    A("s_mov_b64 exec, 1")
    A("v_add_f32 %s, %s, v59" % (v(KACC), v(KACC)))
    A("s_mov_b64 exec, -1")
    A("ds_write_b128 v4, %s" % v(KACC, 4))
    A("s_mov_b32 exec_hi, 0")
    A("ds_write_b128 v5, %s offset:%d" % (v(KACC + 4, 4), 256 * 4))
    for r in range(4):
        A("ds_write_b32 v7, %s offset:%d" % (v(KACC + 8 + r), (512 + 32 * r) * 4))
    A("s_mov_b32 exec_lo, 0")
    A("s_mov_b32 exec_hi, -1")
    A("ds_write_b64 v6, %s offset:%d" % (v(KACC + 4, 2), 384 * 4))
    A("ds_write_b64 v6, %s offset:%d" % (v(KACC + 6, 2), 448 * 4))
    A("ds_write_b32 v7, %s offset:%d" % (v(KACC + 8), 640 * 4))
    A("s_mov_b64 exec, -1")
    S0, S1, S2, S3 = 10, 16, 20, 24
    A("v_lshlrev_b32 v2, 3, v1")
    A("v_add_u32 v3, s66, v2")
    A("v_lshlrev_b32 v4, 4, v1")
    A("v_add_u32 v4, s66, v4")
    A("ds_read_b128 %s, v4" % v(S0 + 2, 4))
    A("ds_read_b32 %s, v4 offset:16" % v(S0))
    for (S, b) in [(S1, 256), (S2, 384), (S3, 512)]:
        A("ds_read_b64 %s, v3 offset:%d" % (v(S, 2), 4 * b))
        A("ds_read_b32 %s, v3 offset:%d" % (v(S + 2), 4 * b + 8))
    A("v_add_u32 v2, s69, v2")
    A("v_lshrrev_b32 v3, 4, v1")
    A("v_mul_u32_u24 v3, %d, v3" % KSTR)
    A("v_and_b32 v4, 15, v1")
    A("v_lshl_add_u32 v3, v4, 2, v3")
    A("v_add_u32 v3, s69, v3")
    A("v_sub_u32 v5, 63, v1")
    A("v_lshlrev_b32 v6, 5, v5")
    A("v_add_u32 v6, s69, v6")
    A("v_lshlrev_b32 v7, 4, v5")
    A("v_add_u32 v7, s69, v7")
    A("v_lshlrev_b32 v5, 3, v5")
    A("v_add_u32 v5, s69, v5")
    A("v_mov_b32 v8, 0")
    A("v_mov_b32 v9, 0")
    A.ts(6)
    A("v_mov_b32 v80, %d" % CTRL)
    lds_wait(A, C_GO, "lg", 0, 76, 80, "s10", False, 2)
    if OPT.get("ulate", 0):
        prog_wait(A, OPT.get("ulate", 0), 76, 2)
    u_issue(A)
    prog_wait(A, CONV_PROG + 1, 76, 2)
    A("ds_write_b64 v2, v[8:9] offset:%d" % AUX_U)
    A("ds_write_b32 v3, v8 offset:4096")
    O = 28
    def val3(o):
        return S3 + (0 if o <= 4 else 1 if o <= 11 else 2)
    def val2(o):
        return S2 + (0 if o <= 2 else 1 if o <= 5 else 2)
    for d in range(4):
        o0 = O + 12 * (d & 1)
        for w in range(8):
            A("v_cvt_pk_bf16_f32 %s, %s, %s" % (v(o0 + w), v(val3(d + 15 - 2 * w)), v(val3(d + 14 - 2 * w))))
        for w in range(4):
            A("v_cvt_pk_bf16_f32 %s, %s, %s" % (v(o0 + 8 + w), v(val2(d + 7 - 2 * w)), v(val2(d + 6 - 2 * w))))
        A("ds_write_b128 v6, %s offset:%d" % (v(o0, 4), d * KSTR))
        A("ds_write_b128 v6, %s offset:%d" % (v(o0 + 4, 4), d * KSTR + 16))
        A("ds_write_b128 v7, %s offset:%d" % (v(o0 + 8, 4), d * KSTR + 2048))
    A("v_cvt_pk_bf16_f32 v52, %s, %s" % (v(S2), v(S2)))
    A("ds_write_b32 v7, v52 offset:%d" % (2 * KSTR + 2048 + 16))
    A("ds_write_b32 v7, v52 offset:%d" % (3 * KSTR + 2048 + 16))
    a, b, c = S1, S1 + 1, S1 + 2
    t0, t1, t2, t3, t4 = S0 + 2, S0 + 3, S0 + 4, S0 + 5, S0
    prs = [(c, b), (a, a), (c, c), (b, a), (t3, t2), (t1, t0), (t4, t3), (t2, t1)]
    for i, (x, y) in enumerate(prs):
        A("v_cvt_pk_bf16_f32 %s, %s, %s" % (v(64 + i), v(x), v(y)))
    A("v_cvt_pk_bf16_f32 v72, %s, 0" % v(t0))
    for d in range(2):
        A("ds_write_b64 v5, %s offset:%d" % (v(64 + 2 * d, 2), d * KSTR + 3072))
        A("ds_write_b64 v5, %s offset:%d" % (v(68 + 2 * d, 2), d * KSTR + 3584))
    for d in range(2, 4):
        for (r, off) in [(64 + 2 * (d - 2), 3072), (68 + 2 * (d - 2), 3584)]:
            A("ds_write_b32 v5, %s offset:%d" % (v(r), d * KSTR + off + 4))
            A("ds_write_b32 v5, %s offset:%d" % (v(r + 1), d * KSTR + off + 8))
    A("s_mov_b64 exec, 1")
    A("ds_write_b32 v5, v72 offset:%d" % (1 * KSTR + 3584 + 8))
    A("ds_write_b32 v5, v72 offset:%d" % (3 * KSTR + 3584 + 12))
    A("s_mov_b64 exec, -1")
    A("s_waitcnt lgkmcnt(0)")


def u_issue(A):
    A("v_mul_u32_u24 v81, 10240, v1")
    A("s_lshl_b32 s4, s68, 4")
    A("s_add_u32 s4, s4, 0x%x" % WS_XT)
    for i in range(4):
        A("buffer_load_dwordx4 %s, v81, s[48:51], s4 offen%s" % (v(232 + 4 * i, 4), LSC))
        if i < 3:
            A("s_add_u32 s4, s4, %d" % (64 * 10240))


def prog_wait(A, val, vt, sleep):
    pl, ok = A.newl("Lpw"), A.newl("Lpo")
    A("v_mov_b32 %s, %d" % (v(vt + 4), CTRL))
    A.label(pl)
    guard(A)
    A("ds_read_b128 %s, %s offset:%d" % (v(vt, 4), v(vt + 4), C_PROG))
    A("s_waitcnt lgkmcnt(0)")
    A("v_min_u32 %s, %s, %s" % (v(vt), v(vt), v(vt + 1)))
    A("v_min3_u32 %s, %s, %s, %s" % (v(vt), v(vt), v(vt + 2), v(vt + 3)))
    A("s_nop 0")
    A("v_readfirstlane_b32 s10, %s" % v(vt))
    A("s_cmp_ge_u32 s10, %d" % val)
    A("s_cbranch_scc1 %s" % ok)
    A("s_sleep %d" % sleep)
    A("s_branch %s" % pl)
    A.label(ok)


def epi_wait(A):
    A("s_lshl_b32 s4, s3, 2")
    A("v_mov_b32 v10, s4")
    lds_wait(A, CTRL + C_EPI - 16, "lg", 0, 11, 10, "s10", False, 2)


CV_ACC = 192


def lds_set(A, off_sreg_mul4, base, val, vt):
    A("s_lshl_b32 s4, %s, 2" % s(off_sreg_mul4))
    A("v_mov_b32 %s, s4" % v(vt))
    A("v_mov_b32 %s, %d" % (v(vt + 1), val))
    A("ds_write_b32 %s, %s offset:%d" % (v(vt), v(vt + 1), CTRL + base))


def u_store(A):
    A("v_lshlrev_b32 v5, 4, v1")
    A("v_add_u32 v5, s69, v5")
    for i in range(4):
        A("s_waitcnt vmcnt(%d)" % (3 - i))
        A("ds_write_b128 v5, %s offset:%d" % (v(232 + 4 * i, 4), AUX_U + 512 + 1024 * i))


def conv_core(A):
    AF, BF, ACC = 64, 128, CV_ACC
    vK, vU = 2, 3
    A.label("Lconv")
    A("v_and_b32 v6, 15, v1")
    A("v_lshrrev_b32 v7, 4, v1")
    A("v_add_u32 v8, 1, v6")
    A("v_and_b32 v9, 3, v8")
    A("v_mul_u32_u24 %s, %d, v9" % (v(vK), KSTR))
    A("v_lshrrev_b32 v8, 2, v8")
    A("v_lshlrev_b32 v8, 3, v8")
    A("v_sub_u32 %s, %s, v8" % (v(vK), v(vK)))
    A("v_lshl_add_u32 %s, v7, 4, %s" % (v(vK), v(vK)))
    A("s_lshl_b32 s5, s13, 6")
    A("s_sub_u32 s5, s69, s5")
    A("s_add_u32 s4, s5, %d" % (32 + 256))
    A("v_add_u32 %s, s4, %s" % (v(vK), v(vK)))
    A("v_lshlrev_b32 %s, 5, v6" % v(vU))
    A("v_lshl_add_u32 %s, v7, 4, %s" % (v(vU), v(vU)))
    A("v_add_u32 %s, s5, %s" % (v(vU), v(vU)))
    for r in range(32):
        A("v_mov_b32 %s, 0" % v(ACC + r))
    epi_wait(A)
    A("s_setprio %d" % OPT.get("pc", 3))
    A.ts(7)
    top = A.newl("Lcv")
    A.label(top)
    lg = Cnt(A, "lgkmcnt", 15)

    def rdA(ph, p):
        r = AF + 32 * (ph & 1) + 4 * p
        off = 64 * (3 - ph) + 512 * (7 - p)
        A("ds_read_b64 %s, %s offset:%d" % (v(r, 2), v(vK), off))
        lg.issue(("a0", ph, p))
        A("ds_read_b64 %s, %s offset:%d" % (v(r + 2, 2), v(vK), off + 8))
        lg.issue(("a", ph, p))

    def rdB(ph, m):
        r = BF + 32 * (ph & 1) + 4 * m
        A("ds_read_b128 %s, %s offset:%d" % (v(r, 4), v(vU), AUX_U + 480 - 64 * ph + 512 * m))
        lg.issue(("b", ph, m))

    def reads(ph):
        L = []
        for i in range(8):
            L.append((rdA, ph, i))
            L.append((rdB, ph, i))
        return L
    pairs = sorted([(p, m) for p in range(8) for m in range(8) if p + m <= 7], key=lambda x: (max(x), x))
    pend = reads(0)
    for _ in range(8):
        f, a1, a2 = pend.pop(0)
        f(a1, a2)
    for ph in range(4):
        if ph + 1 < 4:
            pend += reads(ph + 1)
        for n, (p, m) in enumerate(pairs):
            while any((f is rdA and a1 == ph and a2 == p) or (f is rdB and a1 == ph and a2 == m) for (f, a1, a2) in pend):
                f, a1, a2 = pend.pop(0)
                f(a1, a2)
            lg.wait(("a", ph, p))
            lg.wait(("b", ph, m))
            q = p + m
            A("v_mfma_f32_16x16x32_bf16 %s, %s, %s, %s" % (v(ACC + 4 * q, 4), v(AF + 32 * (ph & 1) + 4 * p, 4), v(BF + 32 * (ph & 1) + 4 * m, 4), v(ACC + 4 * q, 4)))
            if pend and (n & 1) == 0 and len(lg.q) <= 12:
                f, a1, a2 = pend.pop(0)
                f(a1, a2)
    A("v_subrev_u32 %s, 256, %s" % (v(vK), v(vK)))
    A("v_subrev_u32 %s, 256, %s" % (v(vU), v(vU)))
    A("s_sub_u32 s14, s14, 1")
    A("s_cmp_lg_u32 s14, 0")
    A("s_cbranch_scc1 %s" % top)
    A.ts(10)
    A("s_setpc_b64 s[34:35]")


def conv_out(A):
    ACC = CV_ACC
    A("v_lshlrev_b32 v8, 5, v6")
    A("v_lshl_add_u32 v8, v7, 3, v8")
    A("v_add_u32 v8, s69, v8")
    A("v_lshlrev_b32 v4, 4, v1")
    A("v_add_u32 v5, s69, v4")
    A("s_lshl_b32 s4, s68, 12")
    A("s_add_u32 s4, s4, 0x%x" % WS_AT)
    A("s_nop 4")
    for q in range(8):
        A("v_cvt_pk_bf16_f32 %s, %s, %s" % (v(16 + 2 * q), v(ACC + 4 * q), v(ACC + 4 * q + 1)))
        A("v_cvt_pk_bf16_f32 %s, %s, %s" % (v(17 + 2 * q), v(ACC + 4 * q + 2), v(ACC + 4 * q + 3)))
    for q in range(8):
        A("ds_write_b64 v8, %s offset:%d" % (v(16 + 2 * q, 2), AUX_U + 512 + 512 * q))
    for i in range(4):
        A("ds_read_b128 %s, v5 offset:%d" % (v(32 + 4 * i, 4), AUX_U + 512 + 1024 * i))
    for i in range(4):
        A("s_waitcnt lgkmcnt(%d)" % (3 - i))
        A("buffer_store_dwordx4 %s, v4, s[48:51], s4 offen offset:%d%s" % (v(32 + 4 * i, 4), 1024 * i, SC1))
    A.ts(11)
    A("s_lshl_b32 s6, s68, 7")
    A("s_add_u32 s6, s6, 0x%x" % FL_A)
    A("s_waitcnt vmcnt(0)")
    signal(A, 6, 10)


def conv_helper(A):
    ACC = CV_ACC
    A("s_sub_u32 s12, s3, 6")
    A("s_add_u32 s4, s12, 1")
    A("s_mul_i32 s4, s4, %d" % AUXSZ)
    A("s_sub_u32 s69, %d, s4" % LDS_TOTAL)
    A("s_lshl_b32 s4, s12, 2")
    A("v_mov_b32 v12, s4")
    lds_wait(A, CTRL + C_KRDY, "lg", 0, 13, 12, "s10", False, 2)
    A("s_mov_b32 s13, 4")
    A("s_mov_b32 s14, 1")
    A("s_call_b64 s[34:35], Lconv")
    lds_wait(A, CTRL + C_CRD, "lg", 0, 13, 12, "s10", False, 0)
    A("v_lshlrev_b32 v5, 4, v1")
    A("v_add_u32 v5, s69, v5")
    A("s_nop 4")
    for q in range(8):
        A("ds_write_b128 v5, %s offset:%d" % (v(ACC + 4 * q, 4), 1024 * q))
    A("v_mov_b32 v13, 1")
    A("ds_write_b32 v12, v13 offset:%d" % (CTRL + C_CPT))
    A("s_waitcnt lgkmcnt(0)")


def conv_owner(A):
    ACC = CV_ACC
    solo = A.newl("Lsolo")
    u_store(A)
    lds_set(A, 12, C_KRDY, 1, 12)
    A.ts(9)
    A("s_mov_b32 s13, 0")
    A("s_sub_u32 s14, 2, s15")
    A("s_call_b64 s[34:35], Lconv")
    A("s_cmp_eq_u32 s15, 0")
    A("s_cbranch_scc1 %s" % solo)
    A("ds_write_b32 v12, v13 offset:%d" % (CTRL + C_CRD))
    A("v_lshlrev_b32 v5, 4, v1")
    A("v_add_u32 v5, s69, v5")
    lds_wait(A, CTRL + C_CPT, "lg", 0, 14, 12, "s10", False, 0)
    for q in range(8):
        A("ds_read_b128 %s, v5 offset:%d" % (v(64 + 4 * q, 4), 1024 * q))
    for q in range(8):
        A("s_waitcnt lgkmcnt(%d)" % (7 - q))
        for e in range(4):
            A("v_add_f32 %s, %s, %s" % (v(ACC + 4 * q + e), v(ACC + 4 * q + e), v(64 + 4 * q + e)))
    A.label(solo)
    conv_out(A)


def a_fetch(A):
    sk = A.newl("Laf")
    A("s_cmp_eq_u32 s3, 6")
    A("s_cselect_b32 s69, %d, s69" % MAIN)
    A("s_sub_u32 s8, s3, 4")
    A("s_mul_i32 s4, s63, 80")
    A("s_lshl_b32 s5, s8, 5")
    A("s_add_u32 s4, s4, s5")
    A("s_lshl_b32 s6, s4, 12")
    A("s_lshl_b32 s5, s62, 7")
    A("s_add_u32 s6, s6, s5")
    A("s_add_u32 s6, s6, 0x%x" % WS_AT)
    A("v_lshrrev_b32 v2, 3, v1")
    A("v_and_b32 v3, 7, v1")
    A("v_lshlrev_b32 v4, 12, v2")
    A("v_lshl_add_u32 v4, v3, 4, v4")
    A("v_lshlrev_b32 v13, 7, v1")
    A("s_lshl_b32 s9, s4, 7")
    A("s_add_u32 s9, s9, 0x%x" % FL_A)
    A("s_cmp_eq_u32 s3, 6")
    A("s_cselect_b32 exec_lo, 0xffff, -1")
    A("s_mov_b32 exec_hi, 0")
    poll_flags(A, [(14, 1, 13, 9, 0)], [14], 15, OPT.get("asl", 4))
    A("s_mov_b64 exec, -1")
    A.ts(13)
    for i in range(4):
        if i == 2:
            A("s_cmp_eq_u32 s3, 6")
            A("s_cbranch_scc1 %s" % sk)
        A("s_add_u32 m0, s69, %d" % (1024 * i))
        A("s_nop 0")
        A("buffer_load_dwordx4 v4, s[48:51], s6 offen sc1 lds")
        A("s_add_u32 s6, s6, %d" % (8 * 4096))
    A.label(sk)
    A("s_waitcnt vmcnt(0)")


def gemm2(A):
    ACC = 176
    vH, vL, vWo, vC = 12, 16, G_vXo, G_vC
    pool = list(range(24, ACC, 4))
    lg = Cnt(A, "lgkmcnt", 15)
    vm = Cnt(A, "vmcnt", 63)
    rot2(A, 4)
    A("s_mul_i32 s12, s63, 48")
    A("s_mul_i32 s5, s3, 12")
    A("s_add_u32 s12, s12, s5")
    A("s_mul_i32 s12, s12, 5120")
    A("s_add_u32 s12, s12, 0x%x" % WS_WD)
    A("s_add_u32 s13, s12, %d" % (12 * 5120))
    A("s_mul_i32 s5, s4, 5120")
    A("s_add_u32 s11, s12, s5")
    A("s_mul_i32 s8, s62, %d" % (192 * 1024))
    A("s_mul_i32 s5, s3, %d" % (24 * 1024))
    A("s_add_u32 s8, s8, s5")
    A("s_add_u32 s8, s8, 0x%x" % WS_HF)
    A("s_add_u32 s14, s8, %d" % (24 * 1024))
    A("s_lshl_b32 s5, s4, 11")
    A("s_add_u32 s9, s8, s5")
    A("v_lshlrev_b32 %s, 4, v1" % v(vWo))
    A("v_add_u32 v22, 4096, %s" % v(vWo))
    lds_wait(A, C_GO, "lg", 0, 10, vC, "s10")
    Wr, Hr = {}, {}

    def wadv(n):
        A("s_add_u32 s11, s11, %d" % (5120 * n))
        A("s_cmp_ge_u32 s11, s13")
        A("s_cselect_b32 s4, %d, 0" % (12 * 5120))
        A("s_sub_u32 s11, s11, s4")

    def wload(j, ct):
        r = Wr[(j, ct)] = pool.pop(0)
        if ct < 4:
            A("buffer_load_dwordx4 %s, %s, s[48:51], s11 offen offset:%d%s" % (v(r, 4), v(vWo), 1024 * ct, LSC))
        else:
            A("buffer_load_dwordx4 %s, v22, s[48:51], s11 offen%s" % (v(r, 4), LSC))
        vm.issue(("w", j, ct))
        if ct == 4 and j < 11:
            wadv(1 + (NL2 if j == NR2 - 1 else 0))

    def hload(j, q):
        r = Hr[(j, q)] = pool.pop(0)
        A("buffer_load_dwordx4 %s, %s, s[48:51], s9 offen%s" % (v(r, 4), v(vH + q), LSC))
        vm.issue(("h", j, q))
        if q == 3 and j < 11:
            A("s_add_u32 s9, s9, 2048")
            A("s_cmp_ge_u32 s9, s14")
            A("s_cselect_b32 s9, s8, s9")
    for j in range(NR2):
        for ct in range(5):
            wload(j, ct)
    prog(A, 21)
    A("v_lshrrev_b32 v9, 4, v1")
    A("v_and_b32 v10, 15, v1")
    A("v_lshlrev_b32 v10, 4, v10")
    A("v_lshl_add_u32 v10, v9, 9, v10")
    for q in range(4):
        A("s_xor_b32 s4, s3, %d" % q)
        A("s_lshr_b32 s5, s4, 1")
        A("s_mul_i32 s5, s5, %d" % (96 * 1024))
        A("s_and_b32 s4, s4, 1")
        A("s_lshl_b32 s4, s4, 8")
        A("s_add_u32 s4, s4, s5")
        A("v_add_u32 %s, s4, v10" % v(vH + q))

    def area(sd, wreg, jl):
        A("s_mov_b32 %s, %d" % (s(sd), G2SLOT[2 * jl + 1][1]))
        A("s_cmp_lt_u32 %s, 2" % s(wreg))
        A("s_cselect_b32 %s, %s, %d" % (s(sd), s(sd), G2SLOT[2 * jl + 2][1]))
        A("s_bitcmp1_b32 %s, 0" % s(wreg))
        A("s_cselect_b32 s7, 5120, 0")
        A("s_add_u32 %s, %s, s7" % (s(sd), s(sd)))
    for jl in range(NL2):
        area(4, 3, jl)
        A("v_add_u32 %s, s4, %s" % (v(vL + jl), v(vWo)))
    full_wait(A, 20, False)
    A("v_and_b32 v9, 15, v1")
    A("v_mul_u32_u24 v9, 160, v9")
    A("v_lshrrev_b32 v10, 4, v1")
    A("v_lshl_add_u32 v9, v10, 3, v9")
    A("s_mul_i32 s4, s3, %d" % (16 * 160))
    A("s_add_u32 s4, s4, %d" % G2SLOT[0][1])
    A("v_add_u32 v9, s4, v9")
    for ct in range(5):
        A("ds_read_b64 %s, v9 offset:%d" % (v(ACC + 20 + 2 * ct, 2), 32 * ct))
    A("s_waitcnt lgkmcnt(0)")
    for i in range(10):
        A("v_lshlrev_b32 %s, 16, %s" % (v(ACC + 2 * i), v(ACC + 20 + i)))
        A("v_and_b32 %s, 0xffff0000, %s" % (v(ACC + 2 * i + 1), v(ACC + 20 + i)))
    A("v_lshlrev_b32 v9, 7, v1")
    A("s_lshl_b32 s6, s62, 12")
    A("s_mul_i32 s4, s3, 768")
    A("s_add_u32 s6, s6, s4")
    A("s_add_u32 s6, s6, 0x%x" % FL_H)
    setexec(A, 0x3f)
    poll_flags(A, [(21, 1, 9, 6, 0)], [21], 10, OPT.get("sl", 2))
    A("s_mov_b64 exec, -1")
    vm.q = []
    A.ts(12)
    queue = []
    for j in range(12):
        queue += [(hload, j, q) for q in range(4)]
        if j >= NR2 + NL2:
            queue += [(wload, j, ct) for ct in range(5)]

    def fill(n):
        while queue and pool and n > 0:
            f, j, x = queue.pop(0)
            f(j, x)
            n -= 1
    fill(99)
    LB = [Wr[(NR2 - 1, ct)] for ct in range(5)]

    def lread(j, ct):
        Wr[(j, ct)] = LB[ct]
        A("ds_read_b128 %s, %s offset:%d" % (v(LB[ct], 4), v(vL + j - NR2), 1024 * ct))
        lg.issue(("w", j, ct))
    for j in range(12):
        for ct in range(5):
            lg.wait(("w", j, ct))
            vm.wait(("w", j, ct))
            for q in range(4):
                vm.wait(("h", j, q))
                if j == 0 and ct == 0 and q == 0:
                    A.ts(13)
                d = ACC + 20 * q + 4 * ct
                cin = "0" if (j == 0 and q) else v(d, 4)
                A("v_mfma_f32_16x16x32_bf16 %s, %s, %s, %s" % (v(d, 4), v(Wr[(j, ct)], 4), v(Hr[(j, q)], 4), cin))
                if ct == 4:
                    pool.append(Hr[(j, q)])
                if q & 1:
                    fill(1)
            if NR2 - 1 <= j < NR2 + NL2 - 1:
                if ct == 0 and j == NR2 - 1:
                    full_wait(A, 20 + 2 * NL2, False)
                    lg.q = []
                lread(j + 1, ct)
            else:
                pool.append(Wr[(j, ct)])
    assert not queue
    A.ts(14)
    for q in range(1, 4):
        A("s_xor_b32 s5, s3, %d" % q)
        area(4, 5, q)
        A("v_add_u32 %s, s4, %s" % (v(vH + q), v(vWo)))
    for q in range(1, 4):
        for ct in range(5):
            A("ds_write_b128 %s, %s offset:%d" % (v(vL + q), v(ACC + 20 * q + 4 * ct, 4), 1024 * ct))
    A("s_mov_b32 s5, s3")
    A("s_lshl_b32 s6, s5, 5")
    A("s_add_u32 s6, s6, %d" % AUX0)
    A("v_lshrrev_b32 v9, 2, v1")
    A("v_lshlrev_b32 v9, 7, v9")
    A("v_and_b32 v10, 3, v1")
    A("v_lshl_add_u32 v9, v10, 3, v9")
    A("v_add_u32 %s, s6, v9" % v(vH))
    A("v_subrev_u32 v21, %d, %s" % (AUX0 - MAIN, v(vH)))
    srd(A, 52, P_OUT, 2048 * 640 * 2)
    OROW = 176
    area(4, 3, 0)
    A("v_and_b32 v9, 15, v1")
    A("v_mul_u32_u24 v9, %d, v9" % OROW)
    A("v_lshrrev_b32 v10, 4, v1")
    A("v_lshl_add_u32 v9, v10, 3, v9")
    A("v_add_u32 v9, s4, v9")
    for p in range(3):
        A("v_add_u32 v22, %d, v1" % (64 * p))
        A("v_mul_u32_u24 v23, 52429, v22")
        A("v_lshrrev_b32 v23, 19, v23")
        A("v_mul_u32_u24 v24, 10, v23")
        A("v_sub_u32 v22, v22, v24")
        A("v_lshlrev_b32 v22, 4, v22")
        A("v_mul_u32_u24 v24, %d, v23" % OROW)
        A("v_add3_u32 %s, v24, v22, s4" % v(26 + p))
        A("v_mul_u32_u24 v24, 1280, v23")
        A("v_add_u32 %s, v24, v22" % v(30 + p))
    A("s_lshl_b32 s6, s62, 2")
    A("s_add_u32 s6, s6, s5")
    A("s_mul_i32 s6, s6, %d" % (16 * 1280))
    A("s_mul_i32 s7, s63, 160")
    A("s_add_u32 s6, s6, s7")
    A("s_waitcnt lgkmcnt(0)")
    A("s_barrier")
    R = 96
    lg.q = []
    for ct in range(5):
        if ct < 4:
            A("ds_read_b64_tr_b16 %s, %s offset:%d" % (v(R + 16 * ct + 2, 2), v(vH), (1 - (ct >> 1)) * AUXSZ + 2048 * (ct & 1)))
        else:
            A("ds_read_b64_tr_b16 %s, v21" % v(R + 16 * ct + 2, 2))
        lg.issue((ct, 0))
        for q in range(1, 4):
            A("ds_read_b128 %s, %s offset:%d" % (v(R + 16 * ct + 4 * q, 4), v(vH + q), 1024 * ct))
            lg.issue((ct, q))
    for ct in range(5):
        lg.wait((ct, 3))
        d, r = ACC + 4 * ct, R + 16 * ct
        A("v_lshlrev_b32 %s, 16, %s" % (v(r), v(r + 2)))
        A("v_and_b32 %s, 0xffff0000, %s" % (v(r + 1), v(r + 2)))
        A("v_lshlrev_b32 %s, 16, %s" % (v(r + 2), v(r + 3)))
        A("v_and_b32 %s, 0xffff0000, %s" % (v(r + 3), v(r + 3)))
        for h in (0, 2):
            A("v_pk_add_f32 %s, %s, %s" % (v(d + h, 2), v(d + h, 2), v(r + 4 + h, 2)))
            A("v_pk_add_f32 %s, %s, %s" % (v(r + 8 + h, 2), v(r + 8 + h, 2), v(r + 12 + h, 2)))
        for h in (0, 2):
            A("v_pk_add_f32 %s, %s, %s" % (v(d + h, 2), v(d + h, 2), v(r + h, 2)))
        for h in (0, 2):
            A("v_pk_add_f32 %s, %s, %s" % (v(d + h, 2), v(d + h, 2), v(r + 8 + h, 2)))
        if OPT.get("errall"):
            for e in range(4):
                A("v_add_f32 %s, %s, %s" % (v(d + e), fbits(OPT["errall"] / 1000.0), v(d + e)))
        if OPT.get("errone") and ct == 0:
            A("s_cmp_eq_u32 s2, 77")
            A("s_cselect_b64 exec, 1, 0")
            A("v_add_f32 %s, %s, %s" % (v(d), fbits(OPT["errone"] / 1000.0), v(d)))
            A("s_mov_b64 exec, -1")
        A("v_cvt_pk_bf16_f32 %s, %s, %s" % (v(64 + 2 * ct), v(d), v(d + 1)))
        A("v_cvt_pk_bf16_f32 %s, %s, %s" % (v(65 + 2 * ct), v(d + 2), v(d + 3)))
        A("ds_write_b64 v9, %s offset:%d" % (v(64 + 2 * ct, 2), 32 * ct))
        lg.issue(("o", ct))
    A("s_waitcnt lgkmcnt(0)")
    for p in range(3):
        A("ds_read_b128 %s, %s" % (v(80 + 4 * p, 4), v(26 + p)))
    for p in range(3):
        A("s_waitcnt lgkmcnt(%d)" % (2 - p))
        if p == 2:
            A("s_mov_b32 exec_hi, 0")
        A("buffer_store_dwordx4 %s, %s, s[52:55], s6 offen%s" % (v(80 + 4 * p, 4), v(30 + p), ["", " sc1", " nt", " sc0 sc1"][OPT.get("osc", 0)]))
    A("s_mov_b64 exec, -1")
    A.ts(15)


def aux_ids(A):
    A("s_sub_u32 s12, s3, 4")
    A("s_lshr_b32 s5, s2, 3")
    A("s_lshl_b32 s6, s5, 1")
    A("s_lshl_b32 s7, s5, 2")
    A("s_sub_u32 s7, s7, 48")
    A("s_cmp_lt_u32 s5, 24")
    A("s_cselect_b32 s6, s6, s7")
    A("s_cselect_b32 s15, 1, 0")
    A("s_and_b32 s68, s2, 7")
    A("s_mul_i32 s68, s68, 80")
    A("s_add_u32 s68, s68, s6")
    A("s_add_u32 s68, s68, s12")
    A("s_add_u32 s4, s12, 1")
    A("s_mul_i32 s4, s4, %d" % AUXSZ)
    A("s_sub_u32 s69, %d, s4" % LDS_TOTAL)
    A("s_cmp_eq_u32 s12, 0")
    A("s_cselect_b32 s66, %d, s69" % (LDS_TOTAL - STGSZ))


def kdesc(name):
    return """.amdhsa_kernel %s
  .amdhsa_next_free_vgpr 256
  .amdhsa_next_free_sgpr 102
  .amdhsa_accum_offset 256
  .amdhsa_group_segment_fixed_size 0
  .amdhsa_kernarg_size 128
  .amdhsa_user_sgpr_count 2
  .amdhsa_user_sgpr_kernarg_segment_ptr 1
  .amdhsa_system_sgpr_workgroup_id_x 1
.end_amdhsa_kernel
""" % name


def build_fused():
    A = Asm()
    name = NAME + "_kernel"
    prologue(A, name, 0)
    st0 = list(A.stamps)
    lch, lload, lS, lg2, ljob, lfetch = [A.newl(x) for x in ["Lch", "Lload", "LS", "Lg2", "Ljob", "Lfetch"]]
    A("s_cmp_ge_u32 s2, 192")
    A("s_cbranch_scc1 %s" % lS)
    A("s_cmp_eq_u32 s3, 7")
    A("s_cbranch_scc1 %s" % lload)
    A("s_cmp_eq_u32 s3, 6")
    A("s_cbranch_scc1 %s" % ljob)
    A("s_cmp_ge_u32 s3, 4")
    A("s_cbranch_scc1 %s" % lch)
    A("s_setprio %d" % OPT.get("pg", 2))
    gemm1(A)
    if OPT.get("g1only"):
        A.end()
    A.label(lg2)
    A.stamps = sorted(set(A.stamps + [1, 2, 3])) if OPT["ts"] else []
    gemm2(A)
    A.end()
    A.label(lS)
    A.stamps = list(st0)
    A("s_cmp_ge_u32 s3, 4")
    A("s_cbranch_scc1 %s" % lch)
    A("s_setprio 2")
    s_phase0(A)
    if OPT.get("g1only"):
        A.end()
    A("s_branch %s" % lg2)
    A.flush_cold()
    A.label(lload)
    A.stamps = list(st0)
    A("s_setprio %d" % OPT.get("pl", 1))
    loader1_setup(A)
    if OPT.get("cnt"):
        A.stamps += [11, 14]
    loader_run(A, 0, NB1 if OPT.get("g1only") else NB1 + 2 * NL2 + 1)
    A.ts(4)
    if not OPT.get("g1only"):
        le = A.newl("Lle")
        A("s_cmp_ge_u32 s2, 192")
        A("s_cbranch_scc1 %s" % le)
        conv_helper(A)
        A.label(le)
        A.stamps = sorted(set(A.stamps + [1, 5, 6, 7, 8, 9, 10, 11])) if OPT["ts"] else []
    A("s_waitcnt vmcnt(0) lgkmcnt(0)")
    A.end()
    A.label(ljob)
    A.stamps = list(st0)
    ready(A)
    if OPT.get("cpf", 1):
        code_prefetch(A)
    A("s_sleep 8")
    nonce_fetch(A, 4)
    if OPT.get("g1only"):
        A.end()
    prog_wait(A, OPT.get("jp1", 6), 12, 8)
    poll_all(A)
    A.ts(2)
    prog_wait(A, OPT.get("jp2", 10), 12, 8)
    colsum_gather(A)
    A.ts(3)
    conv_helper(A)
    A("s_branch %s" % lfetch)
    A.flush_cold()
    A.label(lch)
    A.stamps = list(st0)
    ln = A.newl("Lnn")
    B = 64
    aux_ids(A)
    kgen_setup(A, B)
    l7 = A.newl("L7")
    A("s_cmp_lg_u32 s3, 7")
    A("s_cbranch_scc1 %s" % l7)
    flg_init(A)
    A.label(l7)

    def early(A):
        A("s_cmp_lg_u32 s68, 0")
        A("s_cbranch_scc1 %s" % ln)
        A("s_memrealtime s[4:5]")
        A("s_waitcnt lgkmcnt(0)")
        A("s_or_b32 s4, s4, 1")
        A("v_mov_b32 v2, 0")
        A("v_mov_b32 v3, s4")
        A("s_mov_b64 exec, 1")
        A("global_store_dword v2, v3, %s sc1" % s(P_DBG, 2))
        A("s_mov_b64 exec, -1")
        A.label(ln)
        kgen_issue(A)
    A("s_setprio 2")
    ready(A, early)
    if OPT.get("auxoff"):
        A("s_endpgm")
    A("s_waitcnt vmcnt(0)")
    A.ts(1)
    kgen_params(A, B)
    DT = B + KB_DT
    A("v_mul_f32 %s, %s, v58" % (v(DT), fbits(LOG2E)))
    A("v_exp_f32 %s, %s" % (v(DT), v(DT)))
    A("s_nop 0")
    A("v_cvt_pk_bf16_f32 %s, %s, %s" % (v(DT), v(DT), v(DT)))
    A("v_and_b32 %s, 0xffff0000, %s" % (v(DT), v(DT)))
    A("s_setprio %d" % OPT.get("pa", 0))
    A("s_waitcnt lgkmcnt(0)")
    kgen_chunk(A, B, 0, False, True)
    kgen_chunk(A, B, 1, False, False)
    A.ts(5)
    kgen_chunk(A, B, 2, False, False)
    nonce_lds(A, 4)
    if OPT.get("g1only"):
        A.ts(6)
        A.end()
    kgen_expand(A, B + KB_ACC)
    A.ts(8)
    conv_owner(A)
    A.ts(12)
    l6 = A.newl("L6")
    A("s_cmp_lt_u32 s3, 6")
    A("s_cbranch_scc1 %s" % lfetch)
    A("s_cmp_eq_u32 s3, 6")
    A("s_cbranch_scc1 %s" % l6)
    loader_regs(A)
    lds_wait(A, CTRL + C_CRD + 8, "lg", 0, 38, LV_C, "s4", False, 1)
    A("s_branch Lload_g2")
    A.label(l6)
    lds_set(A, 12, C_CRD, 1, 12)
    A.label(lfetch)
    A("s_setprio 0")
    prog_wait(A, 22, 12, 4)
    A.stamps = sorted(set(A.stamps + [2, 3, 7, 10])) if OPT["ts"] else []
    a_fetch(A)
    A.ts(14)
    A.end()
    if not OPT.get("g1only"):
        conv_core(A)
        A.flush_cold()
    else:
        A.label("Lconv")
        A.label("Lload_g2")
        A("s_endpgm")
    hdr = "; @launch grid=(256,1,1) block=(512,1,1) lds=%d\n" % LDS_TOTAL
    return hdr, A, [name]


def main():
    hdr, A, names = build_fused()
    out = "; generated by gen.py (hand-written generator)\n" + hdr
    out += '.amdgcn_target "amdgcn-amd-amdhsa--gfx950"\n.text\n'
    out += "\n".join(A.L) + "\nLcode_end:\n"
    out += '.section .rodata,"a"\n'
    for n in names:
        out += ".p2align 6\n" + kdesc(n)
    open(sys.argv[1], "w").write(out)


main()
```

```python
import sys, math, struct

NAME = "parallel_sum__ssm_conv_s4__swiglu_ffn__prompt"
OPT = dict(ts=False)
for a in sys.argv[2:]:
    k, _, v = a.partition("=")
    OPT[k] = int(v) if v else True

WS_ST = 0x000000
WS_CS = 0x010000
WS_XT = 0x280000
WS_HF = 0x500000
WS_AT = 0xB00000
WS_FL = 0xD80000
WS_TS = 0xE00000
WS_WD = 0x1000000
WS_SIZE = 0x1200000
FL_X = WS_FL
FL_W = WS_FL + 0x4000
FL_H = WS_FL + 0x10000
FL_A = WS_FL + 0x40000

WP = 1088
UPOFF = 4 * WP + 16
SLOT1 = 8 * WP + 32
U1 = 2 * SLOT1
U2 = 10240
CTRL = 0
C_NONCE, C_PROG, C_EPI, C_CSOK, C_CNT, C_GO, C_KRDY, C_CRD, C_CPT, C_CNT2, C_GOW = 4, 16, 32, 60, 80, 84, 64, 88, 104, 112, 116
C_KP, C_KPR = 16, 124
CSUM = CTRL + 128
FLG = CSUM + 1024 + 256
PF = FLG + 256
MAIN = PF + 384
KSTR = 4160
AUX_U = 4 * KSTR
AUXSZ = AUX_U + 4608
LDS_TOTAL = 163840
AUX0 = LDS_TOTAL - 2 * AUXSZ
ER = 112
STGSZ = 64 * ER
LNROW = 1312
NW, NXC = 5, 3
XRING = MAIN
WADDR = [XRING + NXC * 16384 + i * U1 for i in range(4)] + [AUX0 + STGSZ]
WHI = WADDR[3]
assert WADDR[3] + U1 <= AUX0 and WADDR[4] + U1 <= LDS_TOTAL - STGSZ
HSTG = WADDR[4] + U1
assert HSTG + STGSZ + 3072 <= LDS_TOTAL - STGSZ
FL_G = WS_FL + 0x6000
CONV_PROG = 16
SPRIV = 19072


def WSLOT(u):
    return WADDR[(u + 4) % NW]


def XSLOT(c):
    return XRING + ((9 - c) % NXC) * 16384


NL2 = 5
NS2 = 2 * NL2 + 1
NR2 = 4


def _g2slots():
    areas = [(WSLOT(u), WSLOT(u) + U1, u + 1) for u in range(20 - NW, 20)]
    areas += [(XSLOT(c), XSLOT(c) + 16384, 2 * c + 2) for c in range(10 - NXC, 10)]
    out = []
    for i in range(NS2):
        lo = AUX0 - (i + 1) * U2
        assert lo >= MAIN + 2048
        need = max(n for (a, b, n) in areas if a < lo + U2 and lo < b)
        if lo + U2 > LDS_TOTAL - 4 * AUXSZ:
            need = max(need, 19)
        out.append((need, lo))
    return sorted(out)


G2SLOT = _g2slots()

LOG2E = 1.4426950408889634
BUD, NON = "s0", "s1"

def fbits(x):
    return "0x%08x" % struct.unpack("<I", struct.pack("<f", x))[0]


def v(i, n=1):
    return "v%d" % i if n == 1 else "v[%d:%d]" % (i, i + n - 1)


def s(i, n=1):
    return "s%d" % i if n == 1 else "s[%d:%d]" % (i, i + n - 1)


class Cnt:
    def __init__(self, A, name, mx):
        self.A, self.name, self.mx, self.q = A, name, mx, []

    def issue(self, tag):
        self.q.append(tag)

    def wait(self, tag):
        if tag not in self.q:
            return
        i = len(self.q) - 1 - self.q[::-1].index(tag)
        n = len(self.q) - 1 - i
        self.A("s_waitcnt %s(%d)" % (self.name, min(n, self.mx)))
        self.q = self.q[i + 1:]

    def drain(self):
        self.A("s_waitcnt %s(0)" % self.name)
        self.q = []


class Asm:
    def __init__(self):
        self.L = []
        self.nl = 0
        self.stamps = []
        self.cold = []

    def flush_cold(self):
        for f in self.cold:
            f()
        self.cold = []

    def __call__(self, t):
        self.L.append("  " + t)

    def label(self, l):
        self.L.append(l + ":")

    def newl(self, p="L"):
        self.nl += 1
        return "%s_%d" % (p, self.nl)

    def c(self, t):
        self.L.append("  ; " + t)

    def ts(self, slot):
        if OPT["ts"]:
            self("%s %s" % ("s_memtime" if OPT.get("cyc") else "s_memrealtime", s(70 + 2 * slot, 2)))
            self.stamps.append(slot)

    def end(self):
        if OPT.get("probe") is not None and self.stamps:
            if OPT["probe"] in self.stamps:
                sk, lp = self.newl("Lpr"), self.newl("Lpl")
                self("s_waitcnt lgkmcnt(0)")
                self("s_cmp_lg_u32 s2, 17")
                self("s_cbranch_scc1 %s" % sk)
                self("s_cmp_lg_u32 s3, %d" % OPT.get("probew", 0))
                self("s_cbranch_scc1 %s" % sk)
                self("s_sub_u32 s4, %s, s70" % s(70 + 2 * OPT["probe"]))
                self("s_lshl_b32 s4, s4, 2")
                self("s_add_u32 s4, s4, 3000")
                self.label(lp)
                self("s_memrealtime s[6:7]")
                self("s_waitcnt lgkmcnt(0)")
                self("s_sub_u32 s6, s6, s70")
                self("s_cmp_lt_u32 s6, s4")
                self("s_cbranch_scc1 %s" % lp)
                self.label(sk)
        elif OPT.get("dbgts") is not None and self.stamps:
            sk = self.newl("Ldt")
            self("s_waitcnt lgkmcnt(0)")
            self("s_cmp_lg_u32 s2, %d" % OPT.get("dbgwg", 17))
            self("s_cbranch_scc1 %s" % sk)
            self("s_cmp_lg_u32 s3, %d" % OPT["dbgts"])
            self("s_cbranch_scc1 %s" % sk)
            self("s_mov_b64 exec, 1")
            self("v_mov_b32 v2, 0")
            for sl in self.stamps:
                if sl == 0:
                    continue
                self("s_sub_u32 s4, %s, s70" % s(70 + 2 * sl))
                self("v_mov_b32 v0, s4")
                self("global_store_dword v2, v0, %s offset:%d" % (s(44, 2), 4 * sl))
            self.label(sk)
        elif OPT["ts"] and self.stamps:
            self("s_waitcnt lgkmcnt(0)")
            self("s_mov_b64 exec, 1")
            self("s_lshl_b32 s4, s2, 3")
            self("s_add_u32 s4, s4, s3")
            self("s_lshl_b32 s4, s4, 7")
            self("s_add_u32 s4, s4, 0x%x" % WS_TS)
            self("v_mov_b32 v2, 0")
            for sl in self.stamps:
                self("v_mov_b32 v0, %s" % s(70 + 2 * sl))
                self("v_mov_b32 v1, %s" % s(71 + 2 * sl))
                self("buffer_store_dwordx2 v[0:1], v2, s[48:51], s4 offen offset:%d" % (8 * sl))
                self("s_nop 1")
        self("s_endpgm")
        self.flush_cold()


P_X, P_ARE, P_AIM, P_BRE, P_BIM, P_CRE, P_CIM, P_LDT, P_DSK, P_BX, P_WG, P_WU, P_WD, P_OUT, P_DBG, P_WS = [16 + 2 * i for i in range(16)]
SC1 = " sc1"
LSC = " sc1"


def srd(A, d, ptr, size):
    A("s_mov_b32 %s, %s" % (s(d), s(ptr)))
    A("s_mov_b32 %s, %s" % (s(d + 1), s(ptr + 1)))
    A("s_mov_b32 %s, 0x%x" % (s(d + 2), size))
    A("s_mov_b32 %s, 0x20000" % s(d + 3))


def prologue(A, name, tsslot):
    A.L.append(".globl %s" % name)
    A.L.append(".p2align 8")
    A.L.append(".type %s,@function" % name)
    A.label(name)
    A.stamps = []
    ok = A.newl("Lgo")
    A("s_cmp_lt_u32 s2, 256")
    A("s_cbranch_scc1 %s" % ok)
    A.exit = A.newl("Lexit")
    A.label(A.exit)
    A("s_endpgm")
    A.label(ok)
    A("s_load_dwordx16 s[16:31], s[0:1], 0")
    A("s_load_dwordx16 s[32:47], s[0:1], 64")
    if OPT["ts"]:
        for i in range(16):
            A("s_mov_b64 %s, 0" % s(70 + 2 * i, 2))
    A.ts(tsslot)
    A("v_lshrrev_b32 v2, 6, v0")
    A("v_and_b32 v1, 63, v0")
    A("v_readfirstlane_b32 s3, v2")
    A("v_and_b32 v2, 31, v0")
    A("v_lshlrev_b32 v2, 2, v2")
    A("v_add_u32 v2, %d, v2" % CTRL)
    A("v_mov_b32 v3, 0")
    A("ds_write_b32 v2, v3")
    map_g1(A)
    map_g2(A)


def ready(A, early=None):
    A("s_waitcnt lgkmcnt(0)")
    if early:
        early(A)
    A("s_barrier")
    A("s_mov_b32 %s, 0x40000" % BUD)
    srd(A, 48, P_WS, WS_SIZE)


def tlb_warm(A, vt):
    ptrs = [P_X, P_WG, P_WU, P_ARE, P_AIM, P_BRE, P_BIM, P_CRE, P_CIM, P_LDT, P_DSK, P_WD, P_DBG, P_WS]
    A("v_mov_b32 %s, %s" % (v(vt), s(P_X)))
    A("v_mov_b32 %s, %s" % (v(vt + 1), s(P_X + 1)))
    for i, p in enumerate(ptrs):
        if i:
            A("v_writelane_b32 %s, %s, %d" % (v(vt), s(p), i))
            A("v_writelane_b32 %s, %s, %d" % (v(vt + 1), s(p + 1), i))
    A("s_mov_b64 exec, 0x%x" % ((1 << len(ptrs)) - 1))
    A("global_load_dword %s, %s, off" % (v(vt + 2), v(vt, 2)))
    A("s_mov_b64 exec, -1")


def guard(A):
    A("s_sub_u32 %s, %s, 1" % (BUD, BUD))
    A("s_cbranch_scc1 %s" % A.exit)


def map_g1(A):
    A("s_and_b32 s4, s2, 7")
    A("s_lshr_b32 s5, s2, 3")
    A("s_and_b32 s60, s4, 1")
    A("s_lshl_b32 s60, s60, 3")
    A("s_and_b32 s6, s5, 7")
    A("s_add_u32 s60, s60, s6")
    A("s_lshr_b32 s61, s4, 1")
    A("s_mul_i32 s61, s61, 3")
    A("s_lshr_b32 s6, s5, 3")
    A("s_add_u32 s61, s61, s6")


def map_g2(A):
    A("s_and_b32 s4, s2, 7")
    A("s_lshr_b32 s5, s2, 3")
    if OPT.get("m2", 1) == 0:
        A("s_lshl_b32 s62, s4, 2")
        A("s_and_b32 s6, s5, 3")
        A("s_add_u32 s62, s62, s6")
        A("s_lshr_b32 s63, s5, 2")
    else:
        A("s_lshr_b32 s62, s4, 1")
        A("s_lshl_b32 s62, s62, 3")
        A("s_and_b32 s6, s5, 7")
        A("s_add_u32 s62, s62, s6")
        A("s_and_b32 s63, s4, 1")
        A("s_lshl_b32 s63, s63, 2")
        A("s_lshr_b32 s6, s5, 3")
        A("s_add_u32 s63, s63, s6")


def lds_wait(A, off, cmp, val, vF, vC, sF, have=False, sleep=1):
    ok, poll = A.newl("Lok"), A.newl("Lpoll")

    def loop():
        A.label(poll)
        guard(A)
        if OPT.get("cnt") and have:
            A("s_add_u32 s92, s92, 1")
        A("ds_read_b32 %s, %s offset:%d" % (v(vF), v(vC), off))
        A("s_waitcnt lgkmcnt(0)")
        A("v_readfirstlane_b32 %s, %s" % (sF, v(vF)))
        A("s_cmp_%s_u32 %s, %s" % (cmp, sF, val))
        A("s_cbranch_scc1 %s" % ok)
        A("s_sleep %d" % sleep)
        A("s_branch %s" % poll)
    if have:
        A("v_readfirstlane_b32 %s, %s" % (sF, v(vF)))
        A("s_cmp_%s_u32 %s, %s" % (cmp, sF, val))
        A("s_cbranch_scc0 %s" % poll)
        A.cold.append(loop)
    else:
        loop()
    A.label(ok)


def nonce_lds(A, vt):
    A("v_mov_b32 %s, %d" % (v(vt + 1), CTRL))
    lds_wait(A, C_NONCE, "lg", 0, vt, vt + 1, NON)


def nonce_fetch(A, vt, issued=False):
    poll, chk = A.newl("Lnp"), A.newl("Lnc")
    if issued:
        A("s_branch %s" % chk)
    A.label(poll)
    guard(A)
    A("v_mov_b32 %s, 0" % v(vt))
    A("global_load_dword %s, %s, %s sc1" % (v(vt), v(vt), s(P_DBG, 2)))
    A.label(chk)
    A("s_waitcnt vmcnt(0)")
    A("v_readfirstlane_b32 %s, %s" % (NON, v(vt)))
    A("s_cmp_lg_u32 %s, 0" % NON)
    A("s_cbranch_scc0 %s" % poll)
    A("v_mov_b32 %s, %d" % (v(vt + 1), CTRL))
    A("ds_write_b32 %s, %s offset:%d" % (v(vt + 1), v(vt), C_NONCE))


def signal(A, soff, vt):
    A("v_mov_b32 %s, 0" % v(vt))
    A("v_mov_b32 %s, %s" % (v(vt + 1), NON))
    A("s_mov_b64 exec, 1")
    A("buffer_store_dword %s, %s, s[48:51], %s offen sc1" % (v(vt + 1), v(vt), s(soff)))
    A("s_mov_b64 exec, -1")


def poll_flags(A, loads, tags, vt, sleep=2):
    top, done = A.newl("Lgp"), A.newl("Lgd")
    A.label(top)
    guard(A)
    for (r, n, vo, so, imm) in loads:
        op = {1: "dword", 2: "dwordx2", 4: "dwordx4"}[n]
        A("buffer_load_%s %s, %s, s[48:51], %s offen offset:%d sc1" % (op, v(r, n), v(vo), s(so), imm))
    A("s_waitcnt vmcnt(0)")
    tag_check(A, tags, vt, done)
    A("s_sleep %d" % sleep)
    A("s_branch %s" % top)
    A.label(done)


def tag_check(A, tags, vt, done):
    A("v_xor_b32 %s, %s, %s" % (v(vt), NON, v(tags[0])))
    for x in tags[1:]:
        A("v_xor_b32 %s, %s, %s" % (v(vt + 1), NON, v(x)))
        A("v_or_b32 %s, %s, %s" % (v(vt), v(vt), v(vt + 1)))
    A("v_cmp_ne_u32 s[4:5], 0, %s" % v(vt))
    A("s_cmp_eq_u64 s[4:5], 0")
    A("s_cbranch_scc1 %s" % done)


def setexec(A, m):
    A("s_mov_b32 exec_lo, 0x%x" % (m & 0xffffffff))
    A("s_mov_b32 exec_hi, 0x%x" % (m >> 32))


def poll_all(A, vt, fl, go, dyn=False):
    A("v_lshlrev_b32 %s, 7, v1" % v(vt))
    if dyn:
        A("s_add_u32 s6, s7, 0x%x" % fl)
    else:
        A("s_mov_b32 s6, 0x%x" % fl)
    poll_flags(A, [(vt + 4, 1, vt, 6, 0)], [vt + 4], vt + 1, 6)
    A("v_mov_b32 %s, %s" % (v(vt), "s8" if dyn else "0"))
    A("v_mov_b32 %s, 1" % v(vt + 1))
    A("ds_write_b32 %s, %s offset:%d" % (v(vt), v(vt + 1), go))


LN_X, LN_F, LN_T = 216, 64, 24


def ln_issue(A):
    T = LN_T
    A("v_lshrrev_b32 %s, 3, v1" % v(T))
    A("v_and_b32 %s, 7, v1" % v(T + 1))
    A("v_mul_u32_u24 %s, 1280, %s" % (v(T + 2), v(T)))
    A("v_lshl_add_u32 %s, %s, 4, %s" % (v(T + 2), v(T + 1), v(T + 2)))
    A("s_mul_i32 s4, s9, %d" % (8 * 1280))
    for i in range(10):
        A("buffer_load_dwordx4 %s, %s, s[52:55], s4 offen offset:%d" % (v(LN_X + 4 * i, 4), v(T + 2), 128 * i))


def red8(A, r):
    for m in ["quad_perm:[1,0,3,2]", "quad_perm:[2,3,0,1]", "row_half_mirror"]:
        A("s_nop 1")
        A("v_add_f32_dpp %s, %s, %s %s row_mask:0xf bank_mask:0xf" % (v(r), v(r), v(r), m))


def ln8(A):
    X, F, T = LN_X, LN_F, LN_T
    S0, S1, M, R = T + 4, T + 6, T + 8, T + 10
    for i in range(40):
        A("v_lshlrev_b32 %s, 16, %s" % (v(F + 2 * i), v(X + i)))
        A("v_and_b32 %s, 0xffff0000, %s" % (v(F + 2 * i + 1), v(X + i)))
    A("v_pk_add_f32 %s, %s, %s" % (v(S0, 2), v(F, 2), v(F + 2, 2)))
    A("v_pk_add_f32 %s, %s, %s" % (v(S1, 2), v(F + 4, 2), v(F + 6, 2)))
    for i in range(4, 40):
        d = S0 + 2 * (i & 1)
        A("v_pk_add_f32 %s, %s, %s" % (v(d, 2), v(d, 2), v(F + 2 * i, 2)))
    A("v_pk_add_f32 %s, %s, %s" % (v(S0, 2), v(S0, 2), v(S1, 2)))
    A("v_add_f32 %s, %s, %s" % (v(S0), v(S0), v(S0 + 1)))
    red8(A, S0)
    A("v_mul_f32 %s, %s, %s" % (v(M + 1), fbits(1.0 / 640), v(S0)))
    A("v_cvt_pk_bf16_f32 %s, %s, %s" % (v(M), v(M + 1), v(M + 1)))
    A("v_and_b32 %s, 0xffff0000, %s" % (v(M), v(M)))
    for i in range(40):
        A("v_pk_add_f32 %s, %s, %s op_sel_hi:[1,0] neg_lo:[0,1] neg_hi:[0,1]" % (v(F + 2 * i, 2), v(F + 2 * i, 2), v(M, 2)))
    for i in range(40):
        d = S0 + 2 * (i & 1)
        if i < 2:
            A("v_pk_mul_f32 %s, %s, %s" % (v(d, 2), v(F + 2 * i, 2), v(F + 2 * i, 2)))
        else:
            A("v_pk_fma_f32 %s, %s, %s, %s" % (v(d, 2), v(F + 2 * i, 2), v(F + 2 * i, 2), v(d, 2)))
    A("v_pk_add_f32 %s, %s, %s" % (v(S0, 2), v(S0, 2), v(S1, 2)))
    A("v_add_f32 %s, %s, %s" % (v(S0), v(S0), v(S0 + 1)))
    red8(A, S0)
    A("v_sub_f32 %s, %s, %s" % (v(M + 1), v(M + 1), v(M)))
    A("v_mul_f32 %s, %s, %s" % (v(R), fbits(1.0 / 640), v(S0)))
    A("v_fma_f32 %s, -%s, %s, %s" % (v(R), v(M + 1), v(M + 1), v(R)))
    A("v_max_f32 %s, 0, %s" % (v(R), v(R)))
    A("v_cvt_pk_bf16_f32 %s, %s, %s" % (v(R), v(R), v(R)))
    A("v_and_b32 %s, 0xffff0000, %s" % (v(R), v(R)))
    A("v_add_f32 %s, %s, %s" % (v(R), fbits(1e-5), v(R)))
    A("v_cvt_pk_bf16_f32 %s, %s, %s" % (v(R), v(R), v(R)))
    A("v_and_b32 %s, 0xffff0000, %s" % (v(R), v(R)))
    A("v_sqrt_f32 %s, %s" % (v(R), v(R)))
    A("s_nop 0")
    A("v_cvt_pk_bf16_f32 %s, %s, %s" % (v(S0), v(M), v(R)))
    A("v_and_b32 %s, 0xffff0000, %s" % (v(R), v(S0)))
    A("v_rcp_f32 %s, %s" % (v(R), v(R)))
    A("v_mul_u32_u24 %s, %d, %s" % (v(T + 2), LNROW, v(T)))
    A("v_lshl_add_u32 %s, %s, 4, %s" % (v(T + 2), v(T + 1), v(T + 2)))
    A("v_add_u32 %s, s15, %s" % (v(T + 2), v(T + 2)))
    for i in range(11):
        if i < 10:
            for e in range(4):
                A("v_pk_mul_f32 %s, %s, %s op_sel_hi:[1,0]" % (v(F + 8 * i + 2 * e, 2), v(F + 8 * i + 2 * e, 2), v(R, 2)))
        if i:
            A("ds_write_b128 %s, %s offset:%d" % (v(T + 2), v(X + 4 * (i - 1), 4), 128 * (i - 1)))
        if i < 10:
            for e in range(4):
                A("v_cvt_pk_bf16_f32 %s, %s, %s" % (v(X + 4 * i + e), v(F + 8 * i + 2 * e), v(F + 8 * i + 2 * e + 1)))


def ln_store(A):
    F, T = LN_F, LN_T
    S0 = T + 4
    a0, a1, a2 = T + 12, T + 13, T + 14
    A("v_bfe_u32 %s, v1, 2, 2" % v(a0))
    A("v_mul_u32_u24 %s, %d, %s" % (v(a0), LNROW, v(a0)))
    A("v_lshrrev_b32 %s, 4, v1" % v(a1))
    A("v_lshl_add_u32 %s, %s, 5, %s" % (v(a0), v(a1), v(a0)))
    A("v_and_b32 %s, 3, v1" % v(a1))
    A("v_lshl_add_u32 %s, %s, 3, %s" % (v(a0), v(a1), v(a0)))
    A("v_add_u32 %s, s15, %s" % (v(a0), v(a0)))
    for i in range(10):
        A("ds_read_b64_tr_b16 %s, %s offset:%d" % (v(F + 4 * i, 2), v(a0), 128 * i))
        A("ds_read_b64_tr_b16 %s, %s offset:%d" % (v(F + 4 * i + 2, 2), v(a0), 128 * i + 4 * LNROW))
    A("v_mov_b32 %s, %s" % (v(S0 + 1), NON))
    A("s_lshl_b32 s6, s9, 6")
    A("s_add_u32 s6, s6, 0x%x" % WS_ST)
    setexec(A, 0x0101010101010101)
    A("buffer_store_dwordx2 %s, v1, s[48:51], s6 offen sc1" % v(S0, 2))
    A("s_mov_b64 exec, -1")
    A("v_lshlrev_b32 %s, 4, v1" % v(a0))
    A("s_mul_i32 s7, s9, 10240")
    A("s_add_u32 s7, s7, 0x%x" % WS_XT)
    A("s_waitcnt lgkmcnt(0)")
    for i in range(10):
        A("buffer_store_dwordx4 %s, %s, s[48:51], s7 offen offset:%d sc1" % (v(F + 4 * i, 4), v(a0), 1024 * (i % 4)))
        if i % 4 == 3:
            A("s_add_u32 s7, s7, 4096")


def flag_p(A, cnt, fl, vmc=0):
    sk = A.newl("Lf")
    A("v_mov_b32 v10, %d" % CTRL)
    A("v_mov_b32 v11, 1")
    A("s_waitcnt vmcnt(%d)" % vmc)
    A("s_mov_b64 exec, 1")
    A("ds_add_rtn_u32 v11, v10, v11 offset:%d" % cnt)
    A("s_mov_b64 exec, -1")
    A("s_waitcnt lgkmcnt(0)")
    A("v_readfirstlane_b32 s4, v11")
    A("s_cmp_lg_u32 s4, 3")
    A("s_cbranch_scc1 %s" % sk)
    A("s_lshl_b32 s6, s2, 7")
    A("s_add_u32 s6, s6, 0x%x" % (fl - 192 * 128))
    signal(A, 6, 10)
    A.label(sk)


LV_C, LV_T, LV_Q = 36, 37, 40


def _schedule():
    B = []
    for u in range(20):
        B.append((u, 1, ("w", u, 16, u - NW + 2 if u >= NW else 0)))
    for h in range(20):
        c = h >> 1
        need = 2 * (c - NXC) + 3 if c >= NXC else 0
        lead = 1 if 0 < c < NXC else 0
        B.append((2 * c - lead * (1 - (h & 1)), 0, ("x", h, 8, need)))
    B.sort(key=lambda e: (e[0], e[1]))
    B = [e[2] for e in B]
    for i in range(2 * NL2 + 1):
        B.append(("d", i, 10, G2SLOT[i][0] + 1))
    return B


GAPS = {"cur": 4}


class Dma:
    def __init__(self, A, n):
        self.A, self.n, self.k = A, n, 0

    def __call__(self, t):
        self.A(t)
        self.k += 1
        GAP = GAPS["cur"]
        if GAP and (self.k % GAP == 0 or self.k == self.n):
            self.A("buffer_load_dword v35, v27, s[48:51], 0 offen")


SCHED = _schedule()
CUM = [0]
for e in SCHED:
    CUM.append(CUM[-1] + e[2])
NB1 = 40


def _flagafter():
    out = {}
    for u in range(20 + 2 * NL2 + 1):
        want = [("d", u - 20)] if u >= 20 else [("w", u), ("x", 2 * (u >> 1)), ("x", 2 * (u >> 1) + 1)]
        i = max(i for i, e in enumerate(SCHED) if (e[0], e[1]) in want)
        out.setdefault(i, []).append(u)
    return out


FLAGAFTER = _flagafter()


def loader_run(A, first, last):
    def rdprog(need):
        A("ds_read_b128 %s, %s offset:%d" % (v(LV_Q, 4), v(LV_C), PF + 16 * need))

    def getprog():
        A("s_waitcnt lgkmcnt(0)")
        A("v_or_b32 v39, %s, %s" % (v(LV_Q), v(LV_Q + 1)))
        A("v_or3_b32 v39, v39, %s, %s" % (v(LV_Q + 2), v(LV_Q + 3)))
        A("s_nop 0")
        A("v_readfirstlane_b32 s67, v39")
        A("s_cmp_eq_u32 s67, 0")
    wait = A.newl("Llw")

    def waitfn():
        A.label(wait)
        guard(A)
        if OPT.get("cnt"):
            A("s_add_u32 s92, s92, 1")
        A("ds_read_b128 %s, v38" % v(LV_Q, 4))
        getprog()
        A("s_cbranch_scc0 %s" % wait)
        A("s_setpc_b64 s[34:35]")
    A.cold.append(waitfn)
    known = 0
    for i in range(first, last):
        kind, idx, P, need = SCHED[i]
        if i == OPT.get("lbar", 3):
            A("s_barrier")
        if i == NB1:
            A.label("Lload_g2")
            rdprog(need)
        if OPT.get("free") and i < NB1:
            need = 0
        if need > known:
            go = A.newl("Llg")
            getprog()
            A("s_cbranch_scc1 %s" % go)
            A("v_mov_b32 v38, %d" % (PF + 16 * need))
            A("s_call_b64 s[34:35], %s" % wait)
            A.label(go)
            known = need
        if OPT.get("fine") and kind == "w" and idx in (1, 2, 3, 4, 5, 6, 7, 8):
            A.ts(4 + idx)
        elif OPT.get("cnt") and kind == "w" and idx in (1, 5, 8, 12, 16):
            A.ts({1: 6, 5: 7, 8: 8, 12: 9, 16: 10}[idx])
        nxt = i + 1 < last and SCHED[i + 1][3] > known
        GAPS["cur"] = OPT.get("gap0", 4) if i < OPT.get("gapi", 9) else (OPT.get("gap", 2) if i < NB1 else OPT.get("gap2", 2))
        if i > NB1 and OPT.get("dvm", 60) < 60:
            A("s_waitcnt vmcnt(%d)" % OPT.get("dvm", 60))
        if i == NB1 + 1:
            loader2_setup(A)
            lds_wait(A, C_GO, "lg", 0, 38, LV_C, "s4")
            A.ts(3)
        {"w": issue1, "x": issue_x, "d": issue2}[kind](A, idx, (lambda: rdprog(SCHED[i + 1][3])) if nxt else None)
        if i in FLAGAFTER:
            A("s_mov_b32 m0, %d" % (FLG + 4 * max(FLAGAFTER[i]) - 252))
            A("s_nop 0")
            A("buffer_load_dword v27, s[48:51], 0 offen lds")


def rot1(A, sd):
    if OPT.get("rot") == 0:
        A("s_mov_b32 %s, 0" % s(sd))
        return
    if OPT.get("rot") == 2:
        A("s_xor_b32 %s, s60, s61" % s(sd))
        A("s_and_b32 %s, %s, 1" % (s(sd), s(sd)))
        A("s_mul_i32 %s, %s, 5" % (s(sd), s(sd)))
        return
    A("s_and_b32 %s, s61, 3" % s(sd))
    A("s_mul_i32 %s, %s, %d" % (s(sd), s(sd), OPT.get("rnb", 0)))
    A("s_add_u32 %s, %s, s60" % (s(sd), s(sd)))
    for _ in range(2):
        A("s_cmp_ge_u32 %s, 10" % s(sd))
        A("s_cselect_b32 s5, 10, 0")
        A("s_sub_u32 %s, %s, s5" % (s(sd), s(sd)))


def flg_init(A):
    A("v_lshlrev_b32 v2, 2, v1")
    A("v_mov_b32 v3, 1")
    A("ds_write_b32 v2, v3 offset:%d" % FLG)
    A("ds_write_b32 v2, v3 offset:%d" % PF)
    A("ds_write_b32 v2, v3 offset:%d" % (PF + 128))


def loader_regs(A):
    A("v_mov_b32 %s, %d" % (v(LV_C), CTRL))
    A("v_mov_b32 v27, 0x7ffffff0")
    srd(A, 12, P_X, 2048 * 640 * 2)


def loader1_setup(A):
    A("v_lshrrev_b32 v40, 4, v1")
    A("v_mul_u32_u24 v40, %d, v40" % (4 * 3072))
    A("v_and_b32 v41, 15, v1")
    A("v_lshl_add_u32 v20, v41, 4, v40")
    for p in range(1, 4):
        A("v_add_u32 %s, %d, v20" % (v(20 + p), p * (3072 - WP)))
    A("v_lshrrev_b32 v40, 3, v1")
    A("v_mul_u32_u24 v40, 1280, v40")
    A("v_and_b32 v41, 7, v1")
    A("v_lshrrev_b32 v42, 4, v1")
    A("v_xor_b32 v41, v41, v42")
    A("v_lshl_add_u32 v28, v41, 4, v40")
    A("v_xor_b32 v29, 64, v28")
    A("v_add_u32 v29, %d, v29" % (8 * 1280 - 1024))
    A("v_add_u32 v30, %d, v28" % (16 * 1280 - 2048))
    A("v_add_u32 v31, %d, v29" % (16 * 1280 - 2048))
    rot1(A, 4)
    A("s_lshl_b32 s66, s61, 8")
    A("s_add_u32 s69, s66, %d" % (640 * 3072))
    A("s_mul_i32 s5, s4, %d" % (64 * 3072))
    A("s_add_u32 s64, s66, s5")
    A("s_mul_i32 s10, s60, %d" % (128 * 1280))
    A("s_add_u32 s11, s10, 1280")
    A("s_lshl_b32 s4, s4, 7")
    A("s_add_u32 s65, s10, s4")
    flg_init(A)
    A("s_waitcnt lgkmcnt(0)")
    A("s_mov_b32 %s, 0x40000" % BUD)
    srd(A, 48, P_WS, WS_SIZE)
    loader_regs(A)
    srd(A, 52, P_WG, 640 * 1536 * 2)
    srd(A, 56, P_WU, 640 * 1536 * 2)


def issue_x(A, h, mid):
    base = XSLOT(h >> 1) + (h & 1) * 8192
    D = Dma(A, 8)
    for g in range(2):
        A("s_mov_b32 m0, %d" % (base + 4096 * g))
        A("s_add_u32 s7, s65, %d" % ((64 * (h & 1) + 32 * g) * 1280))
        if g == 1 and mid:
            mid()
        for p in range(4):
            D("buffer_load_dwordx4 %s, s[12:15], s7 offen offset:%d lds" % (v(28 + p), 1024 * p))
    if h & 1:
        A("s_add_u32 s65, s65, 128")
        A("s_cmp_ge_u32 s65, s11")
        A("s_cselect_b32 s65, s10, s65")


def issue1(A, u, mid):
    base = WSLOT(u)
    D = Dma(A, 16)
    for k in range(2):
        so = "s64" if k == 0 else "s6"
        A("s_mov_b32 m0, %d" % (base + k * SLOT1))
        if k == 0:
            A("s_add_u32 s6, s64, %d" % (16 * 3072))
        else:
            A("s_add_u32 s64, s64, %d" % (32 * 3072))
        if k == 1 and mid:
            mid()
        for p in range(4):
            D("buffer_load_dwordx4 %s, s[52:55], %s offen offset:%d lds" % (v(20 + p), so, WP * p))
        A("s_mov_b32 m0, %d" % (base + k * SLOT1 + UPOFF))
        if k == 1 and (u & 1):
            A("s_cmp_ge_u32 s64, s69")
            A("s_cselect_b32 s64, s66, s64")
        else:
            A("s_nop 0")
        for p in range(4):
            D("buffer_load_dwordx4 %s, s[56:59], %s offen offset:%d lds" % (v(20 + p), so, WP * p))


def rot2(A, sd):
    if OPT.get("m2", 1):
        A("s_and_b32 %s, s62, 7" % s(sd))
        A("s_mul_i32 %s, %s, 3" % (s(sd), s(sd)))
        A("s_lshr_b32 %s, %s, 1" % (s(sd), s(sd)))
    else:
        A("s_and_b32 %s, s62, 3" % s(sd))
        A("s_mul_i32 %s, %s, 3" % (s(sd), s(sd)))


def loader2_setup(A):
    rot2(A, 4)
    A("s_add_u32 s4, s4, %d" % NR2)
    A("s_cmp_ge_u32 s4, 12")
    A("s_cselect_b32 s5, 12, 0")
    A("s_sub_u32 s4, s4, s5")
    A("s_mul_i32 s66, s63, %d" % (48 * 5120))
    A("s_add_u32 s66, s66, 0x%x" % WS_WD)
    A("s_add_u32 s69, s66, %d" % (12 * 5120))
    A("s_mul_i32 s4, s4, 5120")
    A("s_add_u32 s64, s66, s4")
    A("v_lshlrev_b32 v32, 4, v1")
    A("v_add_u32 v33, 4096, v32")


def issue2(A, u, mid):
    base = G2SLOT[u][1]
    D = Dma(A, 10)
    if u == 0:
        for p in range(5):
            A("v_add_u32 v50, %d, v1" % (64 * p))
            A("v_mul_u32_u24 v51, 52429, v50")
            A("v_lshrrev_b32 v51, 19, v51")
            A("v_mul_u32_u24 v51, %d, v51" % (1280 - 160))
            A("v_lshl_add_u32 %s, v50, 4, v51" % v(44 + p))
        if mid:
            mid()
        A("s_mul_i32 s6, s62, %d" % (64 * 1280))
        A("s_mul_i32 s7, s63, 160")
        A("s_add_u32 s6, s6, s7")
        for h in range(2):
            for p in range(5):
                A("s_mov_b32 m0, %d" % (base + 5120 * h + 1024 * p))
                A("s_nop 0")
                D("buffer_load_dwordx4 %s, s[12:15], s6 offen lds" % v(44 + p))
            A("s_add_u32 s6, s6, %d" % (32 * 1280))
        return
    u -= 1
    for w in range(2):
        A("s_mov_b32 m0, %d" % (base + 5120 * w))
        A("s_add_u32 s6, s64, %d" % ((2 * (u & 1) + w) * 12 * 5120))
        if w == 1 and mid:
            mid()
        for p in range(4):
            D("buffer_load_dwordx4 v32, s[48:51], s6 offen offset:%d%s lds" % (1024 * p, LSC))
        A("s_mov_b32 m0, %d" % (base + 5120 * w + 4096))
        A("s_nop 0")
        D("buffer_load_dwordx4 v33, s[48:51], s6 offen%s lds" % LSC)
    if u & 1:
        A("s_add_u32 s64, s64, 5120")
        A("s_cmp_ge_u32 s64, s69")
        A("s_cselect_b32 s64, s66, s64")


def colsum_gather(A):
    R, Q = 180, 220
    A("v_lshlrev_b32 v2, 4, v1")
    A("v_lshlrev_b32 v5, 3, v1")
    A("s_mul_i32 s6, s61, 20480")
    A("s_add_u32 s6, s6, 0x%x" % WS_CS)
    for i in range(1, 5):
        A("s_add_u32 %s, s6, %d" % (s(6 + i), 4096 * i))
    L = [(R + 4 * i, 4, 2, 6 + i // 2, 2048 * (i % 2)) for i in range(10)]
    L += [(Q + 2 * i, 2, 5, 6 + i // 2, 2048 * (i % 2) + 1024) for i in range(10)]
    poll_flags(A, L, [R + 3 + 4 * i for i in range(10)] + [Q + 1 + 2 * i for i in range(10)], 3, 8)
    A("v_mov_b32 %s, %s" % (v(R + 3), v(Q)))
    for i in range(1, 10):
        for e in range(3):
            A("v_add_f32 %s, %s, %s" % (v(R + e), v(R + e), v(R + 4 * i + e)))
        A("v_add_f32 %s, %s, %s" % (v(R + 3), v(R + 3), v(Q + 2 * i)))
    A("v_lshlrev_b32 v2, 2, v1")
    for e in range(4):
        A("ds_write_b32 v2, %s offset:%d" % (v(R + e), CSUM + 256 * e))
    A("v_mov_b32 v2, %d" % CTRL)
    A("v_mov_b32 v3, 1")
    A("ds_write_b32 v2, v3 offset:%d" % C_CSOK)


WDR = 160
WDOFF = 8 * LNROW


def wd_issue(A):
    T = 20
    srd(A, 56, P_WD, 1536 * 640 * 2)
    A("s_sub_u32 s4, s2, 192")
    A("s_lshl_b32 s4, s4, 2")
    A("s_add_u32 s4, s4, s3")
    A("s_mul_i32 s14, s4, 52429")
    A("s_lshr_b32 s14, s14, 18")
    A("s_mul_i32 s5, s14, 5")
    A("s_sub_u32 s13, s4, s5")
    A("s_lshl_b32 s13, s13, 1")
    A("s_mul_i32 s4, s14, %d" % (32 * 1280))
    A("s_lshl_b32 s5, s13, 7")
    A("s_add_u32 s4, s4, s5")
    A("v_lshrrev_b32 %s, 4, v1" % v(T))
    A("v_mul_u32_u24 %s, 1280, %s" % (v(T), v(T)))
    A("v_and_b32 %s, 15, v1" % v(T + 1))
    A("v_lshl_add_u32 %s, %s, 4, %s" % (v(T), v(T + 1), v(T)))
    for p in range(8):
        A("s_add_u32 m0, s15, %d" % (WDOFF + 1024 * p))
        A("s_nop 0")
        A("buffer_load_dwordx4 %s, s[56:59], s4 offen lds" % v(T))
        A("s_add_u32 s4, s4, %d" % (4 * 1280))


def wd_relayout(A):
    skip = A.newl("Lwd")
    T = 20
    A("s_cmp_ge_u32 s14, 48")
    A("s_cbranch_scc1 %s" % skip)
    A("v_lshrrev_b32 %s, 2, v1" % v(T))
    A("v_lshlrev_b32 %s, 8, %s" % (v(T), v(T)))
    A("v_and_b32 %s, 3, v1" % v(T + 1))
    A("v_lshl_add_u32 %s, %s, 3, %s" % (v(T), v(T + 1), v(T)))
    A("v_add_u32 %s, s15, %s" % (v(T), v(T)))
    A("v_lshlrev_b32 %s, 4, v1" % v(T + 1))
    for c in range(8):
        A("ds_read_b64_tr_b16 %s, %s offset:%d" % (v(WDR + 4 * c, 2), v(T), WDOFF + 32 * c))
        A("ds_read_b64_tr_b16 %s, %s offset:%d" % (v(WDR + 2 + 4 * c, 2), v(T), WDOFF + 32 * c + 4096))
    for c in range(8):
        A("s_lshl_b32 s4, s13, 2")
        A("s_add_u32 s4, s4, %d" % c)
        A("s_mul_i32 s5, s4, 52429")
        A("s_lshr_b32 s5, s5, 18")
        A("s_mul_i32 s6, s5, 5")
        A("s_sub_u32 s4, s4, s6")
        A("s_mul_i32 s5, s5, 48")
        A("s_add_u32 s5, s5, s14")
        A("s_mul_i32 s5, s5, 5")
        A("s_add_u32 s4, s4, s5")
        A("s_lshl_b32 s4, s4, 10")
        A("s_add_u32 s4, s4, 0x%x" % WS_WD)
        A("s_waitcnt lgkmcnt(%d)" % (14 - 2 * c))
        A("buffer_store_dwordx4 %s, %s, s[48:51], s4 offen sc1" % (v(WDR + 4 * c, 4), v(T + 1)))
    A.label(skip)


G_vA0, G_vA1, G_vC, G_vF, G_vP, G_vXo, G_vPa = 2, 3, 4, 5, 6, 7, 8


def prog(A, val):
    if OPT.get("pds", 1):
        A("v_mov_b32 v10, 0")
        A("ds_write_b32 %s, v10 offset:%d" % (v(G_vPa), PF + 16 * (val + 1)))
        return
    A("s_add_u32 m0, s13, %d" % (16 * (val + 1)))
    A("s_mov_b64 exec, 1")
    A("buffer_load_dword %s, s[48:51], 0 offen lds" % v(G_vP))
    A("s_mov_b64 exec, -1")


def full_read(A, u):
    A("ds_read_b32 %s, %s offset:%d" % (v(G_vF), v(G_vC), FLG + 4 * u))


def full_wait(A, u, have=True):
    if OPT.get("free"):
        return
    if not getattr(A, "fullfn", None):
        A.fullfn = A.newl("Lfw")

        def fn():
            A.label(A.fullfn)
            guard(A)
            if OPT.get("cnt"):
                A("s_add_u32 s92, s92, 1")
            A("ds_read_b32 %s, v11" % v(G_vF))
            A("s_waitcnt lgkmcnt(0)")
            A("v_readfirstlane_b32 s10, %s" % v(G_vF))
            A("s_cmp_eq_u32 s10, 0")
            A("s_cbranch_scc0 %s" % A.fullfn)
            A("s_setpc_b64 s[34:35]")
        A.cold.append(fn)
    ok = A.newl("Lok")
    if have and u >= OPT.get("coldu", 6):
        st = A.newl("Lfs")
        if have != 2:
            A("v_readfirstlane_b32 s10, %s" % v(G_vF))
        A("s_cmp_eq_u32 s10, 0")
        A("s_cbranch_scc0 %s" % st)

        def stub():
            A.label(st)
            A("v_mov_b32 v11, %d" % (FLG + 4 * u))
            A("s_call_b64 s[34:35], %s" % A.fullfn)
            A("s_branch %s" % ok)
        A.cold.append(stub)
        A.label(ok)
        return
    if have:
        if have != 2:
            A("v_readfirstlane_b32 s10, %s" % v(G_vF))
        A("s_cmp_eq_u32 s10, 0")
        A("s_cbranch_scc1 %s" % ok)
    A("v_mov_b32 v11, %d" % (FLG + 4 * u))
    A("s_call_b64 s[34:35], %s" % A.fullfn)
    A.label(ok)


def wfrag_addr(A, d, t):
    A("v_bfe_u32 %s, v1, 2, 2" % v(t))
    A("v_mul_u32_u24 %s, %d, %s" % (v(d), WP, v(t)))
    A("v_lshrrev_b32 %s, 5, v1" % v(t))
    A("v_lshl_add_u32 %s, %s, 9, %s" % (v(d), v(t), v(d)))
    A("v_bfe_u32 %s, v1, 4, 1" % v(t))
    A("v_lshl_add_u32 %s, %s, 5, %s" % (v(d), v(t), v(d)))
    A("v_and_b32 %s, 1, v1" % v(t))
    A("v_lshl_add_u32 %s, %s, 3, %s" % (v(d), v(t), v(d)))
    A("v_bfe_u32 %s, v1, 1, 1" % v(t))
    A("v_mul_u32_u24 %s, %d, %s" % (v(t), UPOFF, v(t)))
    A("v_add_u32 %s, %s, %s" % (v(d), v(t), v(d)))


def gemm_regs(A):
    A("v_mov_b32 %s, %d" % (v(G_vC), CTRL))
    A("s_lshl_b32 s4, s3, 2")
    A("v_mov_b32 %s, s4" % v(G_vPa))
    A("s_add_u32 s13, s4, %d" % PF)
    A("v_mov_b32 %s, 0x7ffffff0" % v(G_vP))


def code_prefetch(A):
    A("s_getpc_b64 s[4:5]")
    here = A.newl("Lpc")
    A.label(here)
    A("s_sub_u32 s4, s4, %s-%s" % (here, NAME + "_kernel"))
    A("s_subb_u32 s5, s5, 0")
    A("s_lshr_b32 s6, s2, 3")
    A("s_lshl_b32 s6, s6, 11")
    A("v_lshlrev_b32 v64, 7, v1")
    A("v_add_u32 v64, s6, v64")
    A("s_mov_b32 s6, Lcode_end-%s-4" % (NAME + "_kernel"))
    A("v_min_u32 v64, s6, v64")
    A("s_mov_b64 exec, 0xffff")
    A("global_load_dword v65, v64, s[4:5]")
    A("s_mov_b64 exec, -1")


def s_phase0(A):
    gemm_regs(A)
    A("s_mul_i32 s15, s3, %d" % SPRIV)
    A("s_add_u32 s15, s15, %d" % MAIN)
    A("s_and_b32 s4, s2, 1")
    A("s_lshl_b32 s9, s4, 7")
    A("s_bfe_u32 s4, s2, 0x20001")
    A("s_lshl_b32 s4, s4, 5")
    A("s_add_u32 s9, s9, s4")
    A("s_bfe_u32 s4, s2, 0x30003")
    A("s_lshl_b32 s4, s4, 2")
    A("s_add_u32 s9, s9, s4")
    A("s_add_u32 s9, s9, s3")

    A("s_and_b32 s68, s2, 7")
    A("s_mul_i32 s68, s68, 80")
    A("s_lshr_b32 s4, s2, 3")
    A("s_lshl_b32 s4, s4, 2")
    A("s_add_u32 s68, s68, s4")
    A("s_add_u32 s68, s68, s3")
    A("s_sub_u32 s68, s68, 48")
    A("s_mov_b32 s66, s15")
    ready(A)
    srd(A, 52, P_X, 2048 * 640 * 2)
    ln_issue(A)
    wd_issue(A)
    kgen_issue(A, 68, [2], 40, False)
    A("s_waitcnt vmcnt(15)")
    A.ts(1)
    A("v_mov_b32 v22, 0")
    A("global_load_dword v22, v22, %s sc1" % s(P_DBG, 2))
    ln8(A)
    nonce_fetch(A, 22, True)
    ln_store(A)
    wd_relayout(A)
    flag_p(A, C_CNT, FL_X)
    A.ts(2)
    kgen_setup(A, KB)
    kgen_call(A, 40, 46, True)
    A("s_add_u32 s4, s3, 1")
    A("s_mul_i32 s4, s4, %d" % AUXSZ)
    A("s_sub_u32 s7, %d, s4" % (LDS_TOTAL + 8192))
    kgen_give(A, 7, 3)
    A.ts(8)
    A("s_setprio 2")
    A("s_cmp_lt_u32 s3, 2")
    A("s_mov_b32 s4, 0xfffff")
    A("s_cselect_b32 s4, 0x3fffff, s4")
    A("v_lshl_add_u32 v10, v1, 4, %s" % v(G_vPa))
    A("v_mov_b32 v11, 0")
    A("s_mov_b32 exec_lo, s4")
    A("s_mov_b32 exec_hi, 0")
    A("ds_write_b32 v10, v11 offset:%d" % PF)
    A("s_mov_b64 exec, -1")
    sk, s1 = A.newl("Ls0"), A.newl("Ls1")
    A("s_cmp_eq_u32 s3, 1")
    A("s_cbranch_scc1 %s" % s1)
    A("s_cmp_lg_u32 s3, 0")
    A("s_cbranch_scc1 %s" % sk)
    poll_all(A, 12, FL_X, C_GO)
    if not OPT.get("g1only"):
        lds_wait(A, CTRL + C_KRDY, "lg", 0, 12, G_vPa, "s10", False, 4)
        loader_regs(A)
        A("s_branch Lload_g2")
    A.label(s1)
    if OPT.get("sdel", 0) and not OPT.get("g1only"):
        A("s_lshl_b32 s6, s2, 7")
        A("s_add_u32 s6, s6, 0x%x" % (FL_G - 192 * 128))
        A("v_mov_b32 v12, 0")
        A("s_mov_b64 exec, 1")
        poll_flags(A, [(16, 1, 12, 6, 0)], [16], 13, 8)
        A("s_mov_b64 exec, -1")
    A("v_lshlrev_b32 v12, 2, v1")
    A("v_mov_b32 v13, 1")
    A("s_mov_b64 exec, 15")
    A("ds_write_b32 v12, v13 offset:%d" % (CTRL + C_EPI))
    A("s_mov_b64 exec, -1")
    A.label(sk)
    if not OPT.get("g1only"):
        lds_wait(A, CTRL + C_KRDY, "lg", 0, 12, G_vPa, "s10", False, 4)
    A.ts(3)


G2_ACC = 176
G2_RREGS = [128, 132, 136, 140, 24, 28, 32, 36, 144, 148, 152, 156, 40, 44, 48, 52, 160, 164, 168, 172]


def g2_streams(A):
    rot2(A, 4)
    A("s_mul_i32 s53, s63, 48")
    A("s_mul_i32 s5, s3, 12")
    A("s_add_u32 s53, s53, s5")
    A("s_mul_i32 s53, s53, 5120")
    A("s_add_u32 s53, s53, 0x%x" % WS_WD)
    A("s_mul_i32 s5, s4, 5120")
    A("s_add_u32 s52, s53, s5")
    A("s_add_u32 s53, s53, %d" % (12 * 5120))
    A("s_mul_i32 s55, s62, %d" % (192 * 1024))
    A("s_mul_i32 s5, s3, %d" % (24 * 1024))
    A("s_add_u32 s55, s55, s5")
    A("s_add_u32 s55, s55, 0x%x" % WS_HF)
    A("s_add_u32 s56, s55, %d" % (24 * 1024))
    A("s_lshl_b32 s5, s4, 11")
    A("s_add_u32 s54, s55, s5")
    A("v_lshlrev_b32 %s, 4, v1" % v(G_vXo))
    A("v_add_u32 v22, 4096, %s" % v(G_vXo))


def g2_wload(A, r, j, ct):
    if ct < 4:
        A("buffer_load_dwordx4 %s, %s, s[48:51], s52 offen offset:%d%s" % (v(r, 4), v(G_vXo), 1024 * ct, LSC))
    else:
        A("buffer_load_dwordx4 %s, v22, s[48:51], s52 offen%s" % (v(r, 4), LSC))
    if ct == 4 and j < 11:
        A("s_add_u32 s52, s52, %d" % (5120 * (1 + (NL2 if j == NR2 - 1 else 0))))
        A("s_cmp_ge_u32 s52, s53")
        A("s_cselect_b32 s5, %d, 0" % (12 * 5120))
        A("s_sub_u32 s52, s52, s5")


def gemm1(A):
    ACC, FB = 128, 80
    SEL, CSD = 24, 40
    ST = 16
    vX = 12
    CR = [24, 40, 64, 80]
    NM, C1 = [56, 60], [58, 62]
    vA0, vC, vF, vP, vXo, vPa = G_vA0, G_vC, G_vF, G_vP, G_vXo, G_vPa
    lg = Cnt(A, "lgkmcnt", 15)
    vm = Cnt(A, "vmcnt", 63)
    A("s_and_b32 s11, s3, 1")
    A("s_lshr_b32 s12, s3, 1")
    A("s_lshl_b32 s8, s60, 1")
    A("s_add_u32 s8, s8, s11")
    wfrag_addr(A, vA0, 9)
    A("s_lshl_b32 s4, s12, 4")
    A("s_add_u32 s4, s4, %d" % WADDR[0])
    A("v_add_u32 %s, s4, %s" % (v(vA0), v(vA0)))
    A("v_add_u32 %s, %d, %s" % (v(G_vA1), WHI - WADDR[0], v(vA0)))
    A("v_and_b32 v9, 31, v1")
    A("v_bfe_u32 v10, v1, 1, 3")
    A("v_lshrrev_b32 v11, 5, v1")
    A("v_xor_b32 v10, v10, v11")
    A("v_lshlrev_b32 v10, 4, v10")
    A("v_lshl_add_u32 v10, v9, 7, v10")
    A("s_lshl_b32 s4, s11, 13")
    A("s_add_u32 s4, s4, %d" % XRING)
    for j in range(4):
        A("v_xor_b32 %s, %d, v10" % (v(vX + j), 32 * j))
        A("v_add_u32 %s, s4, %s" % (v(vX + j), v(vX + j)))
    gemm_regs(A)
    A("s_lshl_b32 s4, s12, 2")
    A("v_subrev_u32 v9, s4, v9")
    A("v_mov_b32 v10, 0x3f803f80")
    for t in range(4):
        A("v_cmp_eq_u32 vcc, %d, v9" % [0, 1, 2, 8][t])
        A("s_nop 1")
        for d in range(4):
            A("v_cndmask_b32 %s, 0, v10, vcc" % v(SEL + 4 * t + d))
    ready(A)
    l1, l2 = A.newl("Lw"), A.newl("Lw")
    A("s_cmp_lg_u32 s3, 0")
    A("s_cbranch_scc1 %s" % l1)
    A.label(l1)
    if OPT.get("cpf", 1):
        A("s_cmp_lg_u32 s3, 1")
        A("s_cbranch_scc1 %s" % l2)
        code_prefetch(A)
        A.label(l2)

    def W(ks, t):
        return FB + 24 * (ks & 1) + 4 * t

    def X(ks, a):
        return FB + 24 * (ks & 1) + 16 + 4 * a

    def wread(ks, t):
        off, b = WSLOT(ks >> 1) + (ks & 1) * SLOT1 + 64 * t - WADDR[0], vA0
        if WSLOT(ks >> 1) >= WHI:
            off, b = off - (WHI - WADDR[0]), G_vA1
        A("ds_read_b64_tr_b16 %s, %s offset:%d" % (v(W(ks, t), 2), v(b), off))
        lg.issue(("w", ks, t, 0))
        A("ds_read_b64_tr_b16 %s, %s offset:%d" % (v(W(ks, t) + 2, 2), v(b), off + 256))
        lg.issue(("w", ks, t))

    def xread(ks, a):
        A("ds_read_b128 %s, %s offset:%d" % (v(X(ks, a), 4), v(vX + ks % 4), XSLOT(ks >> 2) - XRING + 4096 * a))
        lg.issue(("x", ks, a))

    def reads(ks):
        return [lambda: xread(ks, 0), lambda: wread(ks, 0), lambda: xread(ks, 1), lambda: wread(ks, 1), lambda: wread(ks, 2), lambda: wread(ks, 3)]
    g2_streams(A)
    full_wait(A, 0, False)
    A.ts(4)

    def x_csread():
        A("ds_read_b32 v20, %s offset:%d" % (v(vC), C_CSOK))
        lg.issue("cs")

    def x_cscheck():
        lg.wait("cs")
        lds_wait(A, C_CSOK, "lg", 0, 20, vC, "s10", True)
        A("v_lshrrev_b32 v21, 5, v1")
        A("v_lshlrev_b32 v21, 4, v21")
        A("s_lshl_b32 s4, s12, 7")
        A("s_add_u32 s4, s4, %d" % CSUM)
        A("v_add_u32 v21, s4, v21")

    def x_cs(t, m):
        A("ds_read_b128 %s, v21 offset:%d" % (v(CR[t] + 4 * m, 4), 256 * t + 32 * m))
        lg.issue(("cr", t, m))

    def x_stat():
        ok, slow = A.newl("Lst"), A.newl("Lss")
        vm.wait("st")
        A("v_xor_b32 v10, %s, %s" % (NON, v(ST + 1)))
        A("v_xor_b32 v11, %s, %s" % (NON, v(ST + 3)))
        A("v_or_b32 v10, v10, v11")
        A("v_cmp_ne_u32 s[4:5], 0, v10")
        A("s_cmp_eq_u64 s[4:5], 0")
        A("s_cbranch_scc0 %s" % slow)
        A.label(ok)

        def cold():
            A.label(slow)
            poll_flags(A, [(ST, 2, 9, 6, 0), (ST + 2, 2, 9, 6, 256)], [ST + 1, ST + 3], 10, 2)
            A("s_branch %s" % ok)
        A.cold.append(cold)

    def x_const(a):
        A("v_lshlrev_b32 %s, 16, %s" % (v(NM[a]), v(ST + 2 * a)))
        A("v_and_b32 %s, 0xffff0000, %s" % (v(C1[a]), v(ST + 2 * a)))
        A("v_xor_b32 %s, 0x80000000, %s" % (v(NM[a]), v(NM[a])))
        A("v_mul_f32 %s, %s, %s" % (v(NM[a] + 1), v(C1[a]), v(C1[a])))
        A("v_rcp_f32 %s, %s" % (v(C1[a]), v(C1[a])))

    def x_last():
        for a in range(2):
            A("v_mul_f32 %s, %s, %s" % (v(C1[a]), fbits(-LOG2E), v(C1[a])))
        A("s_mul_i32 s9, s8, 192")
        A("s_lshl_b32 s4, s61, 3")
        A("s_add_u32 s9, s9, s4")
        A("s_add_u32 s9, s9, s12")
        A("s_lshl_b32 s9, s9, 10")
        A("s_add_u32 s9, s9, 0x%x" % WS_HF)
    def x_goread():
        A("ds_read_b32 v23, %s offset:%d" % (v(vC), C_GO))
        lg.issue("go")
    extras = [x_csread, x_stat, lambda: x_const(0), lambda: x_const(1), x_cscheck, x_last]
    extras += [(lambda t=t, m=m: x_cs(t, m)) for t in range(3) for m in range(4)]
    extras += [x_goread]
    if OPT.get("g1only"):
        extras = []
    allr = [(ks, i, f) for ks in range(40) for i, f in enumerate(reads(ks))]
    state = {"g": 0, "prog": 0}

    def next_read():
        if state["g"] >= len(allr):
            return False
        ks, i, f = allr[state["g"]]
        state["g"] += 1
        if i == 0 and ks % 2 == 0 and ks > 0:
            full_wait(A, ks // 2, 2)
        f()
        if i == OPT.get("fn", 2) and ks % 2 == 1 and ks + 1 < 40:
            full_read(A, (ks + 1) // 2)
            lg.issue(("f", ks + 1))
        return True

    def try_prog():
        u = state["prog"]
        if u < 20 and state["g"] > 12 * u + 11 and ("w", 2 * u + 1, 3) not in lg.q:
            prog(A, u + 1)
            if OPT.get("pds", 1):
                lg.issue(("p", u))
            else:
                vm.issue(("p", u))
            state["prog"] += 1
    for _ in range(6):
        next_read()
    for ks in range(40):
        if ks == 26:
            A("v_and_b32 v9, 31, v1")
            A("v_lshlrev_b32 v9, 3, v9")
            A("s_lshl_b32 s6, s8, 9")
            A("s_add_u32 s6, s6, 0x%x" % WS_ST)
            A("buffer_load_dwordx2 %s, v9, s[48:51], s6 offen sc1" % v(ST, 2))
            A("buffer_load_dwordx2 %s, v9, s[48:51], s6 offen offset:256 sc1" % v(ST + 2, 2))
            vm.issue("st")
        if ks == OPT.get("pubks", 7) - 1:
            A("ds_read_b32 v20, %s offset:%d" % (v(vC), C_NONCE))
            lg.issue("non")
        if ks == OPT.get("pubks", 7) and not OPT.get("auxoff"):
            sk = A.newl("Lcs")
            lg.wait("non")
            lds_wait(A, C_NONCE, "lg", 0, 20, vC, NON, True)
            A("s_cmp_ge_u32 s60, 10")
            A("s_cbranch_scc1 %s" % sk)
            A("s_cmp_lg_u32 s11, 0")
            A("s_cbranch_scc1 %s" % sk)
            A("v_mov_b32 %s, %s" % (v(CSD + 3), NON))
            A("v_mov_b32 %s, %s" % (v(CSD + 5), NON))
            A("v_lshlrev_b32 v9, 4, v1")
            A("v_lshlrev_b32 v10, 3, v1")
            A("s_mul_i32 s6, s61, 10")
            A("s_add_u32 s6, s6, s60")
            A("s_lshl_b32 s6, s6, 11")
            A("s_add_u32 s6, s6, 0x%x" % WS_CS)
            A("s_sub_u32 exec_lo, s12, 1")
            A("s_not_b32 exec_hi, exec_lo")
            A("buffer_store_dwordx4 %s, v9, s[48:51], s6 offen sc1" % v(CSD, 4))
            A("buffer_store_dwordx2 %s, v10, s[48:51], s6 offen offset:1024 sc1" % v(CSD + 4, 2))
            A("s_mov_b64 exec, -1")
            A.label(sk)
        if OPT.get("fine"):
            if ks in (2, 4, 6, 8, 10, 12):
                A.ts({2: 6, 4: 7, 6: 8, 8: 9, 10: 10, 12: 12}[ks])
        elif ks in (12, 20, 28):
            A.ts(8 + (ks - 12) // 8)
        n = 0
        for t in range(4):
            for a in range(2):
                lg.wait(("w", ks, t))
                lg.wait(("x", ks, a))
                d = ACC + 64 * a + 16 * t
                cin = "0" if ks == 0 else v(d, 16)
                A("v_mfma_f32_32x32x16_bf16 %s, %s, %s, %s" % (v(d, 16), v(W(ks, t), 4), v(X(ks, a), 4), cin))
                try_prog()
                if n == 7 and ks % 2 == 0 and ks + 2 < 40:
                    lg.wait(("f", ks + 2))
                    A("v_readfirstlane_b32 s15, %s" % v(vF))
                if n == 0 and ks % 2 == 1:
                    A("s_mov_b32 s10, s15")
                did = n < 6 and next_read()
                if not did and ks >= OPT.get("epks", 34) and extras:
                    extras.pop(0)()
                n += 1
            if ks < 4:
                cin = "0" if ks + t == 0 else v(CSD, 16)
                A("v_mfma_f32_32x32x16_bf16 %s, %s, %s, %s" % (v(CSD, 16), v(SEL + 4 * t, 4), v(W(ks, t), 4), cin))
    while extras:
        extras.pop(0)()
    A.ts(5)
    if OPT.get("cnt"):
        A.stamps += [11, 14]
    if OPT.get("g1only"):
        return
    for m in range(4):
        x_cs(3, m)
    T0 = 96
    n = 0
    A("s_nop 3")
    for t in range(4):
        lg.wait(("cr", t, 3))
        for a in range(2):
            ac = ACC + 64 * a + 16 * t
            tmp = T0 + 16 * (n & 1)
            n += 1
            G = [ac, ac + 2, ac + 8, ac + 10]
            U = [ac + 4, ac + 6, ac + 12, ac + 14]
            for i in range(8):
                A("v_pk_fma_f32 %s, %s, %s, %s op_sel_hi:[1,0,1]" % (v(ac + 2 * i, 2), v(CR[t] + 2 * i, 2), v(NM[a], 2), v(ac + 2 * i, 2)))
            for i in range(4):
                A("v_pk_mul_f32 %s, %s, %s op_sel_hi:[1,0]" % (v(tmp + 2 * i, 2), v(G[i], 2), v(C1[a], 2)))
            for i in range(8):
                A("v_exp_f32 %s, %s" % (v(tmp + i), v(tmp + i)))
            for i in range(4):
                A("v_pk_mul_f32 %s, %s, %s" % (v(G[i], 2), v(G[i], 2), v(U[i], 2)))
            for i in range(4):
                A("v_pk_fma_f32 %s, %s, %s, %s op_sel:[0,1,1] op_sel_hi:[1,1,1]" % (v(tmp + 2 * i, 2), v(tmp + 2 * i, 2), v(NM[a], 2), v(NM[a], 2)))
            for i in range(8):
                A("v_rcp_f32 %s, %s" % (v(tmp + i), v(tmp + i)))
            A("s_add_u32 s4, s9, %d" % (96 * 1024 * a + 2048 * t))
            for i in range(4):
                A("v_pk_mul_f32 %s, %s, %s" % (v(G[i], 2), v(G[i], 2), v(tmp + 2 * i, 2)))
            for i in range(4):
                A("v_cvt_pk_bf16_f32 %s, %s, %s" % (v(tmp + 8 + i), v(G[i]), v(G[i] + 1)))
            A("buffer_store_dwordx4 %s, %s, s[48:51], s4 offen sc1" % (v(tmp + 8, 4), v(vXo)))
            if n == 1:
                lg.wait("go")
                lds_wait(A, C_GO, "lg", 0, 23, vC, "s10", True)
            if n <= OPT.get("rearly", 0):
                for k in range(4 * (n - 1), 4 * n):
                    g2_wload(A, G2_RREGS[k], k // 5, k % 5)
    A("v_mov_b32 v10, 1")
    A("ds_write_b32 %s, v10 offset:%d" % (v(vPa), CTRL + C_EPI))
    A.ts(6)
    A("s_lshl_b32 s57, s8, 4")
    A("s_add_u32 s57, s57, s61")
    A("s_lshl_b32 s57, s57, 1")
    A("s_add_u32 s57, s57, s12")
    A("s_lshl_b32 s57, s57, 7")
    A("s_add_u32 s57, s57, 0x%x" % FL_H)


def cmul(A, d, a, f, t, pk=False):
    assert d != a and d != f
    if pk:
        A("v_pk_mul_f32 %s, %s, %s op_sel:[0,0] op_sel_hi:[1,0]" % (v(d, 2), v(a, 2), v(f, 2)))
        A("v_pk_fma_f32 %s, %s, %s, %s op_sel:[1,1,0] op_sel_hi:[0,1,1] neg_lo:[1,0,0]" % (v(d, 2), v(a, 2), v(f, 2), v(d, 2)))
        return
    A("v_mul_f32 %s, %s, %s" % (v(d), v(a), v(f)))
    A("v_mul_f32 %s, %s, %s" % (v(d + 1), v(a + 1), v(f)))
    A("v_fma_f32 %s, -%s, %s, %s" % (v(d), v(a + 1), v(f + 1), v(d)))
    A("v_fmac_f32 %s, %s, %s" % (v(d + 1), v(a), v(f + 1)))


def kgen_issue(A, sch, chunks, R, dsk):
    n = len(chunks)
    for i in range(6 * n + 1):
        A("v_mov_b32 %s, 0" % v(R + i))
    A("s_mul_i32 s4, %s, 384" % s(sch))
    A("v_lshlrev_b32 v38, 1, v1")
    A("v_add_u32 v38, s4, v38")
    A("s_lshl_b32 s4, %s, 1" % s(sch))
    A("v_mov_b32 v39, s4")
    A("global_load_short_d16_hi %s, v39, %s" % (v(R + 6 * n), s(P_LDT, 2)))
    for k, c in enumerate(chunks):
        for i, p in enumerate([P_ARE, P_AIM, P_BRE, P_BIM, P_CRE, P_CIM]):
            A("global_load_short_d16_hi %s, v38, %s offset:%d" % (v(R + 6 * k + i), s(p, 2), 128 * c))
    if dsk:
        A("v_mov_b32 v59, 0")
        A("global_load_short_d16_hi v59, v39, %s" % s(P_DSK, 2))


def kgen_call(A, R, ldt, zero):
    B = KB
    DT = B + KB_DT
    A("v_mul_f32 %s, %s, %s" % (v(DT), fbits(LOG2E), v(ldt)))
    A("v_exp_f32 %s, %s" % (v(DT), v(DT)))
    for i in range(6):
        A("v_mov_b32 %s, %s" % (v(B + i), v(R + i)))
    A("v_cvt_pk_bf16_f32 %s, %s, %s" % (v(DT), v(DT), v(DT)))
    A("v_and_b32 %s, 0xffff0000, %s" % (v(DT), v(DT)))
    if zero:
        for i in range(16):
            A("v_mov_b32 %s, 0" % v(B + KB_ACC + i))
    A("s_call_b64 s[34:35], Lkgen")


def kgen_give(A, saddr, sidx):
    A("v_lshlrev_b32 v10, 4, v1")
    A("v_add_u32 v10, %s, v10" % s(saddr))
    A("s_nop 15")
    for q in range(3):
        A("ds_write_b128 v10, %s offset:%d" % (v(KB + KB_ACC + 4 * q, 4), 1024 * q))
    lds_set(A, sidx, C_KP, 1, 10)
    A("s_waitcnt lgkmcnt(0)")


def kgen_take(A):
    KACC = KB + KB_ACC
    A("s_lshl_b32 s4, s12, 2")
    A("v_mov_b32 v10, s4")
    lds_wait(A, CTRL + C_KP, "lg", 0, 11, 10, "s10")
    A("s_mov_b32 s4, %d" % (HSTG + STGSZ))
    A("s_cmp_eq_u32 s12, 0")
    A("s_cselect_b32 s4, s4, %d" % HSTG)
    A("s_add_u32 s5, s69, 8192")
    A("s_cmp_eq_u32 s15, 0")
    A("s_cselect_b32 s4, s5, s4")
    A("v_lshlrev_b32 v11, 4, v1")
    A("v_add_u32 v11, s4, v11")
    for q in range(3):
        A("ds_read_b128 %s, v11 offset:%d" % (v(12 + 4 * q, 4), 1024 * q))
    A("v_mov_b32 v11, 1")
    A("ds_write_b32 v10, v11 offset:%d" % (CTRL + C_KPR - 4))
    A("s_waitcnt lgkmcnt(1)")
    for r in range(12):
        A("v_add_f32 %s, %s, %s" % (v(KACC + r), v(KACC + r), v(12 + r)))


HI = list(range(8)) + [256, 258, 260, 262, 512, 516, 768, 772, 1024, 1280, 1536, 1792, 2048]
EROW = 272


KB, KB_DT, KB_ACC = 64, 6, 134


def kgen_setup(A, B):
    vW, vR, ONE, T = B + 7, B + 8, B + 10, B + 20
    A("s_mov_b32 s4, s66")
    A("v_mul_u32_u24 %s, %d, v1" % (v(vW), ER))
    A("v_add_u32 %s, s4, %s" % (v(vW), v(vW)))
    A("v_bfe_u32 %s, v1, 2, 2" % v(T))
    A("v_lshrrev_b32 %s, 5, v1" % v(T + 1))
    A("v_lshl_add_u32 %s, %s, 3, %s" % (v(T), v(T + 1), v(T)))
    A("v_mul_u32_u24 %s, %d, %s" % (v(vR), ER, v(T)))
    A("v_bfe_u32 %s, v1, 4, 1" % v(T))
    A("v_lshl_add_u32 %s, %s, 5, %s" % (v(vR), v(T), v(vR)))
    A("v_and_b32 %s, 3, v1" % v(T))
    A("v_lshl_add_u32 %s, %s, 3, %s" % (v(vR), v(T), v(vR)))
    A("v_add_u32 %s, s4, %s" % (v(vR), v(vR)))
    A("v_mov_b32 %s, 1.0" % v(ONE))
    A("v_mov_b32 %s, 0" % v(ONE + 1))


def kgen_chunk(A, B, c, pkm, first, mid=None):
    are, aim, bre, bim, cre, cim = [B + i for i in range(6)]
    DT, vW, vR, vP, ONE = B + KB_DT, B + 7, B + 8, B + 9, B + 10
    E1, E8, E256, E16, TA = B + 12, B + 14, B + 16, B + 18, B + 20
    LO = [B + 26, B + 28, B + 30, B + 32]
    Gs, PR, PI, KACC = B + 34, B + 78, B + 106, B + KB_ACC
    FR = B + 34
    G = lambda i: Gs + 2 * i
    A("v_mul_f32 %s, %s, %s" % (v(are), v(DT), v(are)))
    A("v_mul_f32 %s, %s, %s" % (v(aim), v(DT), v(aim)))
    A("v_mul_f32 %s, %s, %s" % (v(are), fbits(LOG2E), v(are)))
    A("v_mul_f32 %s, %s, %s" % (v(aim), fbits(0.5 / math.pi), v(aim)))
    Es = [(E8, 8.0, TA), (E1, 1.0, TA + 2), (E256, 256.0, TA + 4)]
    for (E, l, T) in Es:
        A("v_mul_f32 %s, %s, %s" % (v(T), fbits(l), v(are)))
        A("v_mul_f32 %s, %s, %s" % (v(T + 1), fbits(l), v(aim)))
    for (E, l, T) in Es:
        A("v_fract_f32 %s, %s" % (v(T + 1), v(T + 1)))
    for (E, l, T) in Es:
        A("v_exp_f32 %s, %s" % (v(T), v(T)))
        A("v_cos_f32 %s, %s" % (v(E), v(T + 1)))
        A("v_sin_f32 %s, %s" % (v(E + 1), v(T + 1)))
    A("v_mul_f32 %s, %s, %s" % (v(bre), v(DT), v(bre)))
    A("v_mul_f32 %s, %s, %s" % (v(bim), v(DT), v(bim)))
    for (E, l, T) in Es:
        A("v_mul_f32 %s, %s, %s" % (v(E), v(E), v(T)))
        A("v_mul_f32 %s, %s, %s" % (v(E + 1), v(E + 1), v(T)))
    cmul(A, Gs, cre, bre, TA)
    cmul(A, E16, E8, E8, E16)
    loc = {0: Gs, 24: ONE, 25: E8, 26: E16}
    packed, written = set(), set()

    def flush():
        for p in range(28):
            if p in packed or p == 11:
                continue
            c0, c1 = 2 * p, 2 * p + 1
            if p == 10:
                c1 = c0
            if c0 in loc and c1 in loc:
                n = "-" if p < 12 else ""
                A("v_cvt_pk_bf16_f32 %s, %s, %s" % (v(PR + p), v(loc[c0]), v(loc[c1])))
                A("v_cvt_pk_bf16_f32 %s, %s%s, %s%s" % (v(PI + p), n, v(loc[c0] + 1), n, v(loc[c1] + 1)))
                packed.add(p)

    def wr(old):
        for q in range(7):
            if q not in written and all((p in old or p == 11) for p in range(4 * q, 4 * q + 4)):
                if OPT.get("kx") != 1:
                    A("ds_write_b128 %s, %s offset:%d" % (v(vW), v(PR + 4 * q, 4), 16 * q))
                written.add(q)
    cur = [E16, E8]
    lo_ops = []
    for j in range(3, 32):
        ch = 1 if (j & 1) else 0
        dst = LO[2 * ch + ((j >> 1) & 1)]
        lo_ops.append((dst, cur[ch], E16, 24 + j))
        cur[ch] = dst
    src = {8: 0, 9: 2, 10: 4, 11: 6, 12: 8, 13: 10, 14: 12, 15: 13, 16: 14, 17: 16, 18: 17, 19: 18, 20: 19}
    h1 = [(G(i), G(i - 1), E1, i) for i in range(1, 8)] + [(G(i), G(src[i]), E256, i) for i in [9, 10, 11, 13, 15]]
    h2 = [(G(i), G(src[i]), E256, i) for i in [8, 12, 14, 16, 17, 18, 19, 20]]
    groups = [[lo_ops.pop(0)]]
    while lo_ops:
        groups.append([lo_ops.pop(0), lo_ops.pop(0)])
    for i, g in enumerate(groups):
        if i < len(h1):
            g.append(h1[i])
        if i < len(h2):
            g.append(h2[i])
    for gi, grp in enumerate(groups):
        if gi == 8 and mid:
            mid(A)
        old = set(packed)
        if pkm:
            for (d, a, f, col) in grp:
                A("v_pk_mul_f32 %s, %s, %s op_sel:[0,0] op_sel_hi:[1,0]" % (v(d, 2), v(a, 2), v(f, 2)))
        elif OPT.get("kx") != 2:
            for (d, a, f, col) in grp:
                A("v_mul_f32 %s, %s, %s" % (v(d), v(a), v(f)))
                A("v_mul_f32 %s, %s, %s" % (v(d + 1), v(a + 1), v(f)))
        wr(old)
        flush()
        if pkm:
            for (d, a, f, col) in grp:
                A("v_pk_fma_f32 %s, %s, %s, %s op_sel:[1,1,0] op_sel_hi:[0,1,1] neg_lo:[1,0,0]" % (v(d, 2), v(a, 2), v(f, 2), v(d, 2)))
        elif OPT.get("kx") != 2:
            for (d, a, f, col) in grp:
                A("v_fma_f32 %s, -%s, %s, %s" % (v(d), v(a + 1), v(f + 1), v(d)))
                A("v_fmac_f32 %s, %s, %s" % (v(d + 1), v(a), v(f + 1)))
        for (d, a, f, col) in grp:
            loc[col] = d
    flush()
    wr(packed)
    assert len(written) == 7

    def rd(ks):
        for (r, off) in [(FR + 8 * ks, 0), (FR + 8 * ks + 4, 48)]:
            A("ds_read_b64_tr_b16 %s, %s offset:%d" % (v(r, 2), v(vR), 16 * ER * (ks & 3) + off))
            A("ds_read_b64_tr_b16 %s, %s offset:%d" % (v(r + 2, 2), v(vR), 16 * ER * (ks & 3) + off + 4 * ER))

    def mf(ks):
        cin = "0" if (first and ks == 0) else v(KACC, 16)
        A("v_mfma_f32_32x32x16_bf16 %s, %s, %s, %s" % (v(KACC, 16), v(FR + 8 * ks, 4), v(FR + 8 * ks + 4, 4), cin))
    if OPT.get("kp", 1):
        A("s_setprio 3")
    for ks in range(4):
        rd(ks)
    for q in range(7):
        if OPT.get("kx") != 1:
            A("ds_write_b128 %s, %s offset:%d" % (v(vW), v(PI + 4 * q, 4), 16 * q))
    A("s_waitcnt lgkmcnt(%d)" % (7 if OPT.get("kx") != 1 else 0))
    for ks in range(4):
        mf(ks)
        if ks >= 2:
            rd(ks + 2)
    rd(6)
    rd(7)
    for ks in range(4, 8):
        A("s_waitcnt lgkmcnt(%d)" % (4 * (7 - ks)))
        mf(ks)
    if OPT.get("kp", 1):
        A("s_setprio %d" % OPT.get("pa", 0))


def kgen_expand(A, KACC):
    A("v_and_b32 v2, 31, v1")
    A("v_lshrrev_b32 v3, 5, v1")
    A("v_lshlrev_b32 v4, 5, v2")
    A("v_lshl_add_u32 v4, v3, 4, v4")
    A("v_add_u32 v4, s66, v4")
    A("v_lshlrev_b32 v5, 4, v2")
    A("v_add_u32 v5, s66, v5")
    A("v_lshlrev_b32 v6, 3, v2")
    A("v_add_u32 v6, s66, v6")
    A("v_lshlrev_b32 v7, 2, v2")
    A("v_add_u32 v7, s66, v7")
    A("s_nop 7")
    A("s_mov_b64 exec, 1")
    A("v_add_f32 %s, %s, v59" % (v(KACC), v(KACC)))
    A("s_mov_b64 exec, -1")
    A("ds_write_b128 v4, %s" % v(KACC, 4))
    A("s_mov_b32 exec_hi, 0")
    A("ds_write_b128 v5, %s offset:%d" % (v(KACC + 4, 4), 256 * 4))
    for r in range(4):
        A("ds_write_b32 v7, %s offset:%d" % (v(KACC + 8 + r), (512 + 32 * r) * 4))
    A("s_mov_b32 exec_lo, 0")
    A("s_mov_b32 exec_hi, -1")
    A("ds_write_b64 v6, %s offset:%d" % (v(KACC + 4, 2), 384 * 4))
    A("ds_write_b64 v6, %s offset:%d" % (v(KACC + 6, 2), 448 * 4))
    A("ds_write_b32 v7, %s offset:%d" % (v(KACC + 8), 640 * 4))
    A("s_mov_b64 exec, -1")
    S0, S1, S2, S3 = 10, 16, 20, 24
    A("v_lshlrev_b32 v2, 3, v1")
    A("v_add_u32 v3, s66, v2")
    A("v_lshlrev_b32 v4, 4, v1")
    A("v_add_u32 v4, s66, v4")
    A("ds_read_b128 %s, v4" % v(S0 + 2, 4))
    A("ds_read_b32 %s, v4 offset:16" % v(S0))
    for (S, b) in [(S1, 256), (S2, 384), (S3, 512)]:
        A("ds_read_b64 %s, v3 offset:%d" % (v(S, 2), 4 * b))
        A("ds_read_b32 %s, v3 offset:%d" % (v(S + 2), 4 * b + 8))
    A("v_add_u32 v2, s69, v2")
    A("v_lshrrev_b32 v3, 4, v1")
    A("v_mul_u32_u24 v3, %d, v3" % KSTR)
    A("v_and_b32 v4, 15, v1")
    A("v_lshl_add_u32 v3, v4, 2, v3")
    A("v_add_u32 v3, s69, v3")
    A("v_sub_u32 v5, 63, v1")
    A("v_lshlrev_b32 v6, 5, v5")
    A("v_add_u32 v6, s69, v6")
    A("v_lshlrev_b32 v7, 4, v5")
    A("v_add_u32 v7, s69, v7")
    A("v_lshlrev_b32 v5, 3, v5")
    A("v_add_u32 v5, s69, v5")
    A("v_mov_b32 v8, 0")
    A("v_mov_b32 v9, 0")
    A.ts(6)
    if OPT.get("ulate", 16):
        prog_wait(A, OPT.get("ulate", 16), 76, 4)
    u_issue(A)
    lds_wait(A, CTRL + C_KPR, "lg", 0, 76, 80, "s10", False, 2)
    prog_wait(A, CONV_PROG + 1, 76, 4)
    A("ds_write_b64 v2, v[8:9] offset:%d" % AUX_U)
    A("ds_write_b32 v3, v8 offset:4096")
    O = 28
    def val3(o):
        return S3 + (0 if o <= 4 else 1 if o <= 11 else 2)
    def val2(o):
        return S2 + (0 if o <= 2 else 1 if o <= 5 else 2)
    for d in range(4):
        o0 = O + 12 * (d & 1)
        for w in range(8):
            A("v_cvt_pk_bf16_f32 %s, %s, %s" % (v(o0 + w), v(val3(d + 15 - 2 * w)), v(val3(d + 14 - 2 * w))))
        for w in range(4):
            A("v_cvt_pk_bf16_f32 %s, %s, %s" % (v(o0 + 8 + w), v(val2(d + 7 - 2 * w)), v(val2(d + 6 - 2 * w))))
        A("ds_write_b128 v6, %s offset:%d" % (v(o0, 4), d * KSTR))
        A("ds_write_b128 v6, %s offset:%d" % (v(o0 + 4, 4), d * KSTR + 16))
        A("ds_write_b128 v7, %s offset:%d" % (v(o0 + 8, 4), d * KSTR + 2048))
    A("v_cvt_pk_bf16_f32 v52, %s, %s" % (v(S2), v(S2)))
    A("ds_write_b32 v7, v52 offset:%d" % (2 * KSTR + 2048 + 16))
    A("ds_write_b32 v7, v52 offset:%d" % (3 * KSTR + 2048 + 16))
    a, b, c = S1, S1 + 1, S1 + 2
    t0, t1, t2, t3, t4 = S0 + 2, S0 + 3, S0 + 4, S0 + 5, S0
    prs = [(c, b), (a, a), (c, c), (b, a), (t3, t2), (t1, t0), (t4, t3), (t2, t1)]
    for i, (x, y) in enumerate(prs):
        A("v_cvt_pk_bf16_f32 %s, %s, %s" % (v(64 + i), v(x), v(y)))
    A("v_cvt_pk_bf16_f32 v72, %s, 0" % v(t0))
    for d in range(2):
        A("ds_write_b64 v5, %s offset:%d" % (v(64 + 2 * d, 2), d * KSTR + 3072))
        A("ds_write_b64 v5, %s offset:%d" % (v(68 + 2 * d, 2), d * KSTR + 3584))
    for d in range(2, 4):
        for (r, off) in [(64 + 2 * (d - 2), 3072), (68 + 2 * (d - 2), 3584)]:
            A("ds_write_b32 v5, %s offset:%d" % (v(r), d * KSTR + off + 4))
            A("ds_write_b32 v5, %s offset:%d" % (v(r + 1), d * KSTR + off + 8))
    A("s_mov_b64 exec, 1")
    A("ds_write_b32 v5, v72 offset:%d" % (1 * KSTR + 3584 + 8))
    A("ds_write_b32 v5, v72 offset:%d" % (3 * KSTR + 3584 + 12))
    A("s_mov_b64 exec, -1")
    A("s_waitcnt lgkmcnt(0)")


def u_issue(A):
    A("v_mov_b32 v80, %d" % CTRL)
    lds_wait(A, C_GO, "lg", 0, 76, 80, "s10", False, 2)
    A("v_mul_u32_u24 v81, 10240, v1")
    A("s_lshl_b32 s4, s68, 4")
    A("s_add_u32 s4, s4, 0x%x" % WS_XT)
    for i in range(4):
        A("buffer_load_dwordx4 %s, v81, s[48:51], s4 offen%s" % (v(232 + 4 * i, 4), LSC))
        if i < 3:
            A("s_add_u32 s4, s4, %d" % (64 * 10240))


def prog_wait(A, val, vt, sleep):
    pl, ok = A.newl("Lpw"), A.newl("Lpo")
    A("v_mov_b32 %s, %d" % (v(vt + 4), CTRL))
    A.label(pl)
    guard(A)
    A("ds_read_b128 %s, %s offset:%d" % (v(vt, 4), v(vt + 4), PF + 16 * val))
    A("s_waitcnt lgkmcnt(0)")
    A("v_or_b32 %s, %s, %s" % (v(vt), v(vt), v(vt + 1)))
    A("v_or3_b32 %s, %s, %s, %s" % (v(vt), v(vt), v(vt + 2), v(vt + 3)))
    A("s_nop 0")
    A("v_readfirstlane_b32 s10, %s" % v(vt))
    A("s_cmp_eq_u32 s10, 0")
    A("s_cbranch_scc1 %s" % ok)
    A("s_sleep %d" % sleep)
    A("s_branch %s" % pl)
    A.label(ok)


def epi_wait(A):
    A("s_lshl_b32 s4, s3, 2")
    A("v_mov_b32 v10, s4")
    lds_wait(A, CTRL + C_EPI - 16, "lg", 0, 11, 10, "s10", False, 2)


CV_ACC = 192


def lds_set(A, off_sreg_mul4, base, val, vt):
    A("s_lshl_b32 s4, %s, 2" % s(off_sreg_mul4))
    A("v_mov_b32 %s, s4" % v(vt))
    A("v_mov_b32 %s, %d" % (v(vt + 1), val))
    A("ds_write_b32 %s, %s offset:%d" % (v(vt), v(vt + 1), CTRL + base))


def u_store(A):
    A("v_lshlrev_b32 v5, 4, v1")
    A("v_add_u32 v5, s69, v5")
    for i in range(4):
        A("s_waitcnt vmcnt(%d)" % (3 - i))
        A("ds_write_b128 v5, %s offset:%d" % (v(232 + 4 * i, 4), AUX_U + 512 + 1024 * i))


def conv_core(A):
    AF, BF, ACC = 64, 128, CV_ACC
    vK, vU = 2, 3
    A.label("Lconv")
    A("v_and_b32 v6, 15, v1")
    A("v_lshrrev_b32 v7, 4, v1")
    A("v_add_u32 v8, 1, v6")
    A("v_and_b32 v9, 3, v8")
    A("v_mul_u32_u24 %s, %d, v9" % (v(vK), KSTR))
    A("v_lshrrev_b32 v8, 2, v8")
    A("v_lshlrev_b32 v8, 3, v8")
    A("v_sub_u32 %s, %s, v8" % (v(vK), v(vK)))
    A("v_lshl_add_u32 %s, v7, 4, %s" % (v(vK), v(vK)))
    A("s_lshl_b32 s5, s13, 6")
    A("s_sub_u32 s5, s69, s5")
    A("s_add_u32 s4, s5, %d" % (32 + 256))
    A("v_add_u32 %s, s4, %s" % (v(vK), v(vK)))
    A("v_lshlrev_b32 %s, 5, v6" % v(vU))
    A("v_lshl_add_u32 %s, v7, 4, %s" % (v(vU), v(vU)))
    A("v_add_u32 %s, s5, %s" % (v(vU), v(vU)))
    for r in range(32):
        A("v_mov_b32 %s, 0" % v(ACC + r))
    epi_wait(A)
    A("s_setprio %d" % OPT.get("pc", 3))
    A.ts(7)
    top = A.newl("Lcv")
    A.label(top)
    lg = Cnt(A, "lgkmcnt", 15)

    def rdA(ph, p):
        r = AF + 32 * (ph & 1) + 4 * p
        off = 64 * (3 - ph) + 512 * (7 - p)
        A("ds_read_b64 %s, %s offset:%d" % (v(r, 2), v(vK), off))
        lg.issue(("a0", ph, p))
        A("ds_read_b64 %s, %s offset:%d" % (v(r + 2, 2), v(vK), off + 8))
        lg.issue(("a", ph, p))

    def rdB(ph, m):
        r = BF + 32 * (ph & 1) + 4 * m
        A("ds_read_b128 %s, %s offset:%d" % (v(r, 4), v(vU), AUX_U + 480 - 64 * ph + 512 * m))
        lg.issue(("b", ph, m))

    def reads(ph):
        L = []
        for i in range(8):
            L.append((rdA, ph, i))
            L.append((rdB, ph, i))
        return L
    pairs = sorted([(p, m) for p in range(8) for m in range(8) if p + m <= 7], key=lambda x: (max(x), x))
    pend = reads(0)
    for _ in range(8):
        f, a1, a2 = pend.pop(0)
        f(a1, a2)
    for ph in range(4):
        if ph + 1 < 4:
            pend += reads(ph + 1)
        for n, (p, m) in enumerate(pairs):
            while any((f is rdA and a1 == ph and a2 == p) or (f is rdB and a1 == ph and a2 == m) for (f, a1, a2) in pend):
                f, a1, a2 = pend.pop(0)
                f(a1, a2)
            lg.wait(("a", ph, p))
            lg.wait(("b", ph, m))
            q = p + m
            A("v_mfma_f32_16x16x32_bf16 %s, %s, %s, %s" % (v(ACC + 4 * q, 4), v(AF + 32 * (ph & 1) + 4 * p, 4), v(BF + 32 * (ph & 1) + 4 * m, 4), v(ACC + 4 * q, 4)))
            if pend and (n & 1) == 0 and len(lg.q) <= 12:
                f, a1, a2 = pend.pop(0)
                f(a1, a2)
    A("v_subrev_u32 %s, 256, %s" % (v(vK), v(vK)))
    A("v_subrev_u32 %s, 256, %s" % (v(vU), v(vU)))
    A("s_sub_u32 s14, s14, 1")
    A("s_cmp_lg_u32 s14, 0")
    A("s_cbranch_scc1 %s" % top)
    A.ts(10)
    A("s_setpc_b64 s[34:35]")


def conv_out(A):
    ACC = CV_ACC
    A("v_lshlrev_b32 v8, 5, v6")
    A("v_lshl_add_u32 v8, v7, 3, v8")
    A("v_add_u32 v8, s69, v8")
    A("v_lshlrev_b32 v4, 4, v1")
    A("v_add_u32 v5, s69, v4")
    A("s_lshl_b32 s4, s68, 12")
    A("s_add_u32 s4, s4, 0x%x" % WS_AT)
    A("s_nop 4")
    for q in range(8):
        A("v_cvt_pk_bf16_f32 %s, %s, %s" % (v(16 + 2 * q), v(ACC + 4 * q), v(ACC + 4 * q + 1)))
        A("v_cvt_pk_bf16_f32 %s, %s, %s" % (v(17 + 2 * q), v(ACC + 4 * q + 2), v(ACC + 4 * q + 3)))
    for q in range(8):
        A("ds_write_b64 v8, %s offset:%d" % (v(16 + 2 * q, 2), AUX_U + 512 + 512 * q))
    for i in range(4):
        A("ds_read_b128 %s, v5 offset:%d" % (v(32 + 4 * i, 4), AUX_U + 512 + 1024 * i))
    for i in range(4):
        A("s_waitcnt lgkmcnt(%d)" % (3 - i))
        A("buffer_store_dwordx4 %s, v4, s[48:51], s4 offen offset:%d%s" % (v(32 + 4 * i, 4), 1024 * i, SC1))
    A.ts(11)
    A("s_lshl_b32 s6, s68, 7")
    A("s_add_u32 s6, s6, 0x%x" % FL_A)
    A("s_waitcnt vmcnt(0)")
    signal(A, 6, 10)


def conv_helper(A):
    ACC = CV_ACC
    A("s_sub_u32 s12, s3, 6")
    A("s_add_u32 s4, s12, 1")
    A("s_mul_i32 s4, s4, %d" % AUXSZ)
    A("s_sub_u32 s69, %d, s4" % LDS_TOTAL)
    A("s_lshl_b32 s4, s12, 2")
    A("v_mov_b32 v12, s4")
    lds_wait(A, CTRL + C_KRDY, "lg", 0, 13, 12, "s10", False, 2)
    A("s_mov_b32 s13, 4")
    A("s_mov_b32 s14, 1")
    A("s_call_b64 s[34:35], Lconv")
    lds_wait(A, CTRL + C_CRD, "lg", 0, 13, 12, "s10", False, 0)
    A("v_lshlrev_b32 v5, 4, v1")
    A("v_add_u32 v5, s69, v5")
    A("s_nop 4")
    for q in range(8):
        A("ds_write_b128 v5, %s offset:%d" % (v(ACC + 4 * q, 4), 1024 * q))
    A("v_mov_b32 v13, 1")
    A("ds_write_b32 v12, v13 offset:%d" % (CTRL + C_CPT))
    A("s_waitcnt lgkmcnt(0)")


def conv_owner(A):
    ACC = CV_ACC
    solo = A.newl("Lsolo")
    u_store(A)
    lds_set(A, 12, C_KRDY, 1, 12)
    A.ts(9)
    A("s_mov_b32 s13, 0")
    A("s_sub_u32 s14, 2, s15")
    A("s_call_b64 s[34:35], Lconv")
    A("s_cmp_eq_u32 s15, 0")
    A("s_cbranch_scc1 %s" % solo)
    A("ds_write_b32 v12, v13 offset:%d" % (CTRL + C_CRD))
    A("v_lshlrev_b32 v5, 4, v1")
    A("v_add_u32 v5, s69, v5")
    lds_wait(A, CTRL + C_CPT, "lg", 0, 14, 12, "s10", False, 0)
    for q in range(8):
        A("ds_read_b128 %s, v5 offset:%d" % (v(64 + 4 * q, 4), 1024 * q))
    for q in range(8):
        A("s_waitcnt lgkmcnt(%d)" % (7 - q))
        for e in range(4):
            A("v_add_f32 %s, %s, %s" % (v(ACC + 4 * q + e), v(ACC + 4 * q + e), v(64 + 4 * q + e)))
    A.label(solo)
    conv_out(A)


def a_fetch(A):
    sk = A.newl("Laf")
    A("s_cmp_eq_u32 s3, 6")
    A("s_cselect_b32 s69, %d, s69" % MAIN)
    A("s_sub_u32 s8, s3, 4")
    A("s_mul_i32 s4, s63, 80")
    A("s_lshl_b32 s5, s8, 5")
    A("s_add_u32 s4, s4, s5")
    A("s_lshl_b32 s6, s4, 12")
    A("s_lshl_b32 s5, s62, 7")
    A("s_add_u32 s6, s6, s5")
    A("s_add_u32 s6, s6, 0x%x" % WS_AT)
    A("v_lshrrev_b32 v2, 3, v1")
    A("v_and_b32 v3, 7, v1")
    A("v_lshlrev_b32 v4, 12, v2")
    A("v_lshl_add_u32 v4, v3, 4, v4")
    A("v_lshlrev_b32 v13, 7, v1")
    A("s_lshl_b32 s9, s4, 7")
    A("s_add_u32 s9, s9, 0x%x" % FL_A)
    A("s_cmp_eq_u32 s3, 6")
    A("s_cselect_b32 exec_lo, 0xffff, -1")
    A("s_mov_b32 exec_hi, 0")
    poll_flags(A, [(14, 1, 13, 9, 0)], [14], 15, OPT.get("asl", 4))
    A("s_mov_b64 exec, -1")
    A.ts(13)
    for i in range(4):
        if i == 2:
            A("s_cmp_eq_u32 s3, 6")
            A("s_cbranch_scc1 %s" % sk)
        A("s_add_u32 m0, s69, %d" % (1024 * i))
        A("s_nop 0")
        A("buffer_load_dwordx4 v4, s[48:51], s6 offen sc1 lds")
        A("s_add_u32 s6, s6, %d" % (8 * 4096))
    A.label(sk)
    A("s_waitcnt vmcnt(0)")


def gemm2(A):
    ACC = 176
    vH, vL, vWo, vC = 12, 16, G_vXo, G_vC
    pool = [r for r in range(24, ACC, 4) if r not in G2_RREGS]
    lg = Cnt(A, "lgkmcnt", 15)
    vm = Cnt(A, "vmcnt", 63)
    Wr, Hr = {(k // 5, k % 5): r for k, r in enumerate(G2_RREGS)}, {}

    def wload(j, ct):
        r = Wr[(j, ct)] = pool.pop(0)
        g2_wload(A, r, j, ct)
        vm.issue(("w", j, ct))

    def hload(j, q):
        r = Hr[(j, q)] = pool.pop(0)
        A("buffer_load_dwordx4 %s, %s, s[48:51], s54 offen%s" % (v(r, 4), v(vH + q), LSC))
        vm.issue(("h", j, q))
        if q == 3 and j < 11:
            A("s_add_u32 s54, s54, 2048")
            A("s_cmp_ge_u32 s54, s56")
            A("s_cselect_b32 s54, s55, s54")
    A("v_lshrrev_b32 v9, 4, v1")
    A("v_and_b32 v10, 15, v1")
    A("v_lshlrev_b32 v10, 4, v10")
    A("v_lshl_add_u32 v10, v9, 9, v10")
    for q in range(4):
        A("s_xor_b32 s4, s3, %d" % q)
        A("s_lshr_b32 s5, s4, 1")
        A("s_mul_i32 s5, s5, %d" % (96 * 1024))
        A("s_and_b32 s4, s4, 1")
        A("s_lshl_b32 s4, s4, 8")
        A("s_add_u32 s4, s4, s5")
        A("v_add_u32 %s, s4, v10" % v(vH + q))

    def area(sd, wreg, jl):
        A("s_mov_b32 %s, %d" % (s(sd), G2SLOT[2 * jl + 1][1]))
        A("s_cmp_lt_u32 %s, 2" % s(wreg))
        A("s_cselect_b32 %s, %s, %d" % (s(sd), s(sd), G2SLOT[2 * jl + 2][1]))
        A("s_bitcmp1_b32 %s, 0" % s(wreg))
        A("s_cselect_b32 s7, 5120, 0")
        A("s_add_u32 %s, %s, s7" % (s(sd), s(sd)))
    for jl in range(NL2):
        area(4, 3, jl)
        A("v_add_u32 %s, s4, %s" % (v(vL + jl), v(vWo)))
    sk = A.newl("Lsg")
    A("s_cmp_ge_u32 s2, 192")
    A("s_cbranch_scc1 %s" % sk)
    A("s_waitcnt vmcnt(0)")
    signal(A, 57, 10)
    A.ts(7)
    for k in range(4 * OPT.get("rearly", 0), 20):
        g2_wload(A, G2_RREGS[k], k // 5, k % 5)
    A.label(sk)
    full_wait(A, 20, False)
    A("v_and_b32 v9, 15, v1")
    A("v_mul_u32_u24 v9, 160, v9")
    A("v_lshrrev_b32 v10, 4, v1")
    A("v_lshl_add_u32 v9, v10, 3, v9")
    A("s_mul_i32 s4, s3, %d" % (16 * 160))
    A("s_add_u32 s4, s4, %d" % G2SLOT[0][1])
    A("v_add_u32 v9, s4, v9")
    for ct in range(5):
        A("ds_read_b64 %s, v9 offset:%d" % (v(ACC + 20 + 2 * ct, 2), 32 * ct))
    A("s_waitcnt lgkmcnt(0)")
    for i in range(10):
        A("v_lshlrev_b32 %s, 16, %s" % (v(ACC + 2 * i), v(ACC + 20 + i)))
        A("v_and_b32 %s, 0xffff0000, %s" % (v(ACC + 2 * i + 1), v(ACC + 20 + i)))
    A("v_lshlrev_b32 v9, 7, v1")
    A("s_lshl_b32 s6, s62, 12")
    A("s_mul_i32 s4, s3, 768")
    A("s_add_u32 s6, s6, s4")
    A("s_add_u32 s6, s6, 0x%x" % FL_H)
    setexec(A, 0x3f)
    poll_flags(A, [(21, 1, 9, 6, 0)], [21], 10, OPT.get("sl", 2))
    A("s_mov_b64 exec, -1")
    vm.q = []
    A.ts(12)
    queue = []
    for j in range(12):
        queue += [(hload, j, q) for q in range(4)]
        if j >= NR2 + NL2:
            queue += [(wload, j, ct) for ct in range(5)]

    def fill(n):
        while queue and pool and n > 0:
            f, j, x = queue.pop(0)
            f(j, x)
            n -= 1
    fill(99)
    LB = [Wr[(NR2 - 1, ct)] for ct in range(5)]

    def lread(j, ct):
        Wr[(j, ct)] = LB[ct]
        A("ds_read_b128 %s, %s offset:%d" % (v(LB[ct], 4), v(vL + j - NR2), 1024 * ct))
        lg.issue(("w", j, ct))
    for j in range(11):
        for ct in range(5):
            lg.wait(("w", j, ct))
            vm.wait(("w", j, ct))
            for q in range(4):
                vm.wait(("h", j, q))
                if j == 0 and ct == 0 and q == 0:
                    A.ts(13)
                d = ACC + 20 * q + 4 * ct
                cin = "0" if (j == 0 and q) else v(d, 4)
                A("v_mfma_f32_16x16x32_bf16 %s, %s, %s, %s" % (v(d, 4), v(Wr[(j, ct)], 4), v(Hr[(j, q)], 4), cin))
                if ct == 4:
                    pool.append(Hr[(j, q)])
                if q & 1:
                    fill(1)
            if NR2 - 1 <= j < NR2 + NL2 - 1:
                if ct == 0 and j == NR2 - 1:
                    full_wait(A, 20 + 2 * NL2, False)
                    lg.q = []
                    A("v_mov_b32 v10, 0")
                    A("ds_write_b32 %s, v10 offset:%d" % (v(G_vPa), PF + 16 * 22))
                    lg.issue("p")
                lread(j + 1, ct)
            else:
                pool.append(Wr[(j, ct)])
    fill(99)
    assert not queue
    done = []
    for q in (1, 2, 3, 0):
        vm.wait(("h", 11, q))
        for ct in range(5):
            vm.wait(("w", 11, ct))
            d = ACC + 20 * q + 4 * ct
            A("v_mfma_f32_16x16x32_bf16 %s, %s, %s, %s" % (v(d, 4), v(Wr[(11, ct)], 4), v(Hr[(11, q)], 4), v(d, 4)))
            if q:
                done.append((q, ct))
            if len(done) > 8 or (q == 0 and done):
                qq, cc = done.pop(0)
                A("ds_write_b128 %s, %s offset:%d" % (v(vL + qq), v(ACC + 20 * qq + 4 * cc, 4), 1024 * cc))
    A.ts(14)
    for (qq, cc) in done:
        A("ds_write_b128 %s, %s offset:%d" % (v(vL + qq), v(ACC + 20 * qq + 4 * cc, 4), 1024 * cc))
    for q in range(1, 4):
        A("s_xor_b32 s5, s3, %d" % q)
        area(4, 5, q)
        A("v_add_u32 %s, s4, %s" % (v(vH + q), v(vWo)))
    A("s_mov_b32 s5, s3")
    A("s_lshl_b32 s6, s5, 5")
    A("s_add_u32 s6, s6, %d" % AUX0)
    A("v_lshrrev_b32 v9, 2, v1")
    A("v_lshlrev_b32 v9, 7, v9")
    A("v_and_b32 v10, 3, v1")
    A("v_lshl_add_u32 v9, v10, 3, v9")
    A("v_add_u32 %s, s6, v9" % v(vH))
    A("v_subrev_u32 v21, %d, %s" % (AUX0 - MAIN, v(vH)))
    srd(A, 52, P_OUT, 2048 * 640 * 2)
    OROW = 176
    area(4, 3, 0)
    A("v_and_b32 v9, 15, v1")
    A("v_mul_u32_u24 v9, %d, v9" % OROW)
    A("v_lshrrev_b32 v10, 4, v1")
    A("v_lshl_add_u32 v9, v10, 3, v9")
    A("v_add_u32 v9, s4, v9")
    for p in range(3):
        A("v_add_u32 v22, %d, v1" % (64 * p))
        A("v_mul_u32_u24 v23, 52429, v22")
        A("v_lshrrev_b32 v23, 19, v23")
        A("v_mul_u32_u24 v24, 10, v23")
        A("v_sub_u32 v22, v22, v24")
        A("v_lshlrev_b32 v22, 4, v22")
        A("v_mul_u32_u24 v24, %d, v23" % OROW)
        A("v_add3_u32 %s, v24, v22, s4" % v(26 + p))
        A("v_mul_u32_u24 v24, 1280, v23")
        A("v_add_u32 %s, v24, v22" % v(30 + p))
    A("s_lshl_b32 s6, s62, 2")
    A("s_add_u32 s6, s6, s5")
    A("s_mul_i32 s6, s6, %d" % (16 * 1280))
    A("s_mul_i32 s7, s63, 160")
    A("s_add_u32 s6, s6, s7")
    A("s_waitcnt lgkmcnt(0)")
    A("s_barrier")
    R = 96
    lg.q = []
    for ct in range(5):
        if ct < 4:
            A("ds_read_b64_tr_b16 %s, %s offset:%d" % (v(R + 16 * ct + 2, 2), v(vH), (1 - (ct >> 1)) * AUXSZ + 2048 * (ct & 1)))
        else:
            A("ds_read_b64_tr_b16 %s, v21" % v(R + 16 * ct + 2, 2))
        lg.issue((ct, 0))
        for q in range(1, 4):
            A("ds_read_b128 %s, %s offset:%d" % (v(R + 16 * ct + 4 * q, 4), v(vH + q), 1024 * ct))
            lg.issue((ct, q))
    for ct in range(5):
        lg.wait((ct, 3))
        d, r = ACC + 4 * ct, R + 16 * ct
        A("v_lshlrev_b32 %s, 16, %s" % (v(r), v(r + 2)))
        A("v_and_b32 %s, 0xffff0000, %s" % (v(r + 1), v(r + 2)))
        A("v_lshlrev_b32 %s, 16, %s" % (v(r + 2), v(r + 3)))
        A("v_and_b32 %s, 0xffff0000, %s" % (v(r + 3), v(r + 3)))
        for h in (0, 2):
            A("v_pk_add_f32 %s, %s, %s" % (v(d + h, 2), v(d + h, 2), v(r + 4 + h, 2)))
            A("v_pk_add_f32 %s, %s, %s" % (v(r + 8 + h, 2), v(r + 8 + h, 2), v(r + 12 + h, 2)))
        for h in (0, 2):
            A("v_pk_add_f32 %s, %s, %s" % (v(d + h, 2), v(d + h, 2), v(r + h, 2)))
        for h in (0, 2):
            A("v_pk_add_f32 %s, %s, %s" % (v(d + h, 2), v(d + h, 2), v(r + 8 + h, 2)))
        if OPT.get("errall"):
            for e in range(4):
                A("v_add_f32 %s, %s, %s" % (v(d + e), fbits(OPT["errall"] / 1000.0), v(d + e)))
        if OPT.get("errone") and ct == 0:
            A("s_cmp_eq_u32 s2, 77")
            A("s_cselect_b64 exec, 1, 0")
            A("v_add_f32 %s, %s, %s" % (v(d), fbits(OPT["errone"] / 1000.0), v(d)))
            A("s_mov_b64 exec, -1")
        A("v_cvt_pk_bf16_f32 %s, %s, %s" % (v(64 + 2 * ct), v(d), v(d + 1)))
        A("v_cvt_pk_bf16_f32 %s, %s, %s" % (v(65 + 2 * ct), v(d + 2), v(d + 3)))
        A("ds_write_b64 v9, %s offset:%d" % (v(64 + 2 * ct, 2), 32 * ct))
        lg.issue(("o", ct))
    A("s_waitcnt lgkmcnt(0)")
    for p in range(3):
        A("ds_read_b128 %s, %s" % (v(80 + 4 * p, 4), v(26 + p)))
    for p in range(3):
        A("s_waitcnt lgkmcnt(%d)" % (2 - p))
        if p == 2:
            A("s_mov_b32 exec_hi, 0")
        A("buffer_store_dwordx4 %s, %s, s[52:55], s6 offen%s" % (v(80 + 4 * p, 4), v(30 + p), ["", " sc1", " nt", " sc0 sc1"][OPT.get("osc", 0)]))
    A("s_mov_b64 exec, -1")
    A.ts(15)


def aux_ids(A):
    A("s_sub_u32 s12, s3, 4")
    A("s_lshr_b32 s5, s2, 3")
    A("s_lshl_b32 s6, s5, 1")
    A("s_lshl_b32 s7, s5, 2")
    A("s_sub_u32 s7, s7, 48")
    A("s_cmp_lt_u32 s5, 24")
    A("s_cselect_b32 s6, s6, s7")
    A("s_cselect_b32 s15, 1, 0")
    A("s_and_b32 s68, s2, 7")
    A("s_mul_i32 s68, s68, 80")
    A("s_add_u32 s68, s68, s6")
    A("s_add_u32 s68, s68, s12")
    A("s_add_u32 s4, s12, 1")
    A("s_mul_i32 s4, s4, %d" % AUXSZ)
    A("s_sub_u32 s69, %d, s4" % LDS_TOTAL)
    A("s_cmp_eq_u32 s12, 0")
    A("s_cselect_b32 s66, %d, s69" % (LDS_TOTAL - STGSZ))


def kdesc(name):
    return """.amdhsa_kernel %s
  .amdhsa_next_free_vgpr 256
  .amdhsa_next_free_sgpr 102
  .amdhsa_accum_offset 256
  .amdhsa_group_segment_fixed_size 0
  .amdhsa_kernarg_size 128
  .amdhsa_user_sgpr_count 2
  .amdhsa_user_sgpr_kernarg_segment_ptr 1
  .amdhsa_system_sgpr_workgroup_id_x 1
.end_amdhsa_kernel
""" % name


def build_fused():
    A = Asm()
    name = NAME + "_kernel"
    prologue(A, name, 0)
    st0 = list(A.stamps)
    lch, lload, lS, lg2, ljob, lfetch = [A.newl(x) for x in ["Lch", "Lload", "LS", "Lg2", "Ljob", "Lfetch"]]
    A("s_cmp_ge_u32 s2, 192")
    A("s_cbranch_scc1 %s" % lS)
    A("s_cmp_eq_u32 s3, 7")
    A("s_cbranch_scc1 %s" % lload)
    A("s_cmp_eq_u32 s3, 6")
    A("s_cbranch_scc1 %s" % ljob)
    A("s_cmp_ge_u32 s3, 4")
    A("s_cbranch_scc1 %s" % lch)
    A("s_setprio %d" % OPT.get("pg", 2))
    gemm1(A)
    if OPT.get("g1only"):
        A.end()
    A.label(lg2)
    A.stamps = sorted(set(A.stamps + [1, 2, 3])) if OPT["ts"] else []
    gemm2(A)
    A.end()
    A.label(lS)
    A.stamps = list(st0)
    A("s_cmp_ge_u32 s3, 4")
    A("s_cbranch_scc1 %s" % lch)
    A("s_setprio 2")
    s_phase0(A)
    if OPT.get("g1only"):
        A.end()
    A.label("Ls_join")
    g2_streams(A)
    lds_wait(A, C_GO, "lg", 0, 10, G_vC, "s10", False, 4)
    for k, r in enumerate(G2_RREGS):
        g2_wload(A, r, k // 5, k % 5)
    A("s_branch %s" % lg2)
    A.flush_cold()
    A.label(lload)
    A.stamps = list(st0)
    A("s_setprio %d" % OPT.get("pl", 1))
    loader1_setup(A)
    if OPT.get("cnt"):
        A.stamps += [11, 14]
    loader_run(A, 0, NB1 if OPT.get("g1only") else NB1 + 2 * NL2 + 1)
    A.ts(4)
    if not OPT.get("g1only"):
        A("s_cmp_ge_u32 s2, 192")
        A("s_cbranch_scc1 Ls_join")
        conv_helper(A)
        A.stamps = sorted(set(A.stamps + [1, 5, 6, 7, 8, 9, 10, 11])) if OPT["ts"] else []
    A("s_waitcnt vmcnt(0) lgkmcnt(0)")
    A.end()
    A.label(ljob)
    A.stamps = list(st0)
    A("s_and_b32 s68, s2, 7")
    A("s_mul_i32 s68, s68, 80")
    A("s_lshr_b32 s4, s2, 3")
    A("s_lshl_b32 s4, s4, 1")
    A("s_add_u32 s68, s68, s4")
    A("s_add_u32 s67, s68, 1")
    A("s_mov_b32 s66, %d" % HSTG)
    kgen_setup(A, KB)

    def early6(A):
        kgen_issue(A, 68, [2], 40, False)
        kgen_issue(A, 67, [2], 48, False)
    A("s_setprio 2")
    ready(A, early6)
    A("s_waitcnt vmcnt(7)")
    A("s_setprio %d" % OPT.get("pa", 0))
    A.ts(1)
    if not OPT.get("auxoff"):
        A("v_mov_b32 v4, 0")
        A("global_load_dword v4, v4, %s sc1" % s(P_DBG, 2))
        kgen_call(A, 40, 46, True)
        A("s_mov_b32 s7, %d" % (HSTG + STGSZ))
        A("s_mov_b32 s8, 0")
        kgen_give(A, 7, 8)
        nonce_fetch(A, 4, True)
        kgen_call(A, 48, 54, True)
        A("s_mov_b32 s7, %d" % HSTG)
        A("s_mov_b32 s8, 1")
        kgen_give(A, 7, 8)
    A.ts(5)
    if OPT.get("g1only"):
        A.end()
    prog_wait(A, OPT.get("jp1", 9), 12, 8)
    colsum_gather(A)
    A.ts(3)
    poll_all(A, 2, FL_X, C_GO)
    A.ts(2)
    if OPT.get("sdel", 0):
        sk = A.newl("Lh")
        A("s_cmp_ge_u32 s2, 64")
        A("s_cbranch_scc1 %s" % sk)
        prog_wait(A, OPT.get("sdp", 18), 12, 4)
        A("s_lshl_b32 s6, s2, 7")
        A("s_add_u32 s6, s6, 0x%x" % FL_G)
        signal(A, 6, 10)
        A.label(sk)
    conv_helper(A)
    A("s_branch %s" % lfetch)
    A.flush_cold()
    A.label(lch)
    A.stamps = list(st0)
    ln = A.newl("Lnn")
    B = 64
    aux_ids(A)
    kgen_setup(A, B)
    l7 = A.newl("L7")
    A("s_cmp_lg_u32 s3, 7")
    A("s_cbranch_scc1 %s" % l7)
    flg_init(A)
    A.label(l7)

    def early(A):
        A("s_cmp_lg_u32 s68, 0")
        A("s_cbranch_scc1 %s" % ln)
        A("s_memrealtime s[4:5]")
        A("s_waitcnt lgkmcnt(0)")
        A("s_or_b32 s4, s4, 1")
        A("v_mov_b32 v2, 0")
        A("v_mov_b32 v3, s4")
        A("s_mov_b64 exec, 1")
        A("global_store_dword v2, v3, %s sc1" % s(P_DBG, 2))
        A("s_mov_b64 exec, -1")
        A.label(ln)
        kgen_issue(A, 68, [0, 1], 40, True)
    A("s_setprio 2")
    ready(A, early)
    if OPT.get("auxoff"):
        A("s_endpgm")
    A("s_waitcnt vmcnt(0)")
    A.ts(1)
    A("s_setprio %d" % OPT.get("pa", 0))
    kgen_call(A, 40, 52, True)
    kgen_call(A, 46, 52, False)
    A.ts(5)
    nonce_lds(A, 4)
    kgen_take(A)
    if OPT.get("g1only"):
        A.ts(6)
        A.end()
    kgen_expand(A, B + KB_ACC)
    A.ts(8)
    conv_owner(A)
    A.ts(12)
    A("s_cmp_lt_u32 s3, 6")
    A("s_cbranch_scc1 %s" % lfetch)
    lds_set(A, 12, PF + 16 * 20, 0, 12)
    A("ds_write_b32 v12, v13 offset:%d" % (PF + 16 * 21))
    A("s_cmp_eq_u32 s3, 6")
    A("s_cbranch_scc1 %s" % lfetch)
    A("s_waitcnt lgkmcnt(0)")
    sv = list(A.stamps)
    A.stamps = sorted(set(A.stamps + [7, 10])) if OPT["ts"] else []
    A.end()
    A.stamps = sv
    A.label(lfetch)
    A("s_setprio 0")
    prog_wait(A, 22, 12, 4)
    A.stamps = sorted(set(A.stamps + [1, 2, 3, 5, 7, 10])) if OPT["ts"] else []
    a_fetch(A)
    A.ts(14)
    A.end()
    A.label("Lkgen")
    kgen_chunk(A, KB, 0, False, False)
    A("s_setpc_b64 s[34:35]")
    if not OPT.get("g1only"):
        conv_core(A)
        A.flush_cold()
    else:
        A.label("Lconv")
        A.label("Lload_g2")
        A("s_endpgm")
    hdr = "; @launch grid=(256,1,1) block=(512,1,1) lds=%d\n" % LDS_TOTAL
    return hdr, A, [name]


def main():
    hdr, A, names = build_fused()
    out = "; generated by gen.py (hand-written generator)\n" + hdr
    out += '.amdgcn_target "amdgcn-amd-amdhsa--gfx950"\n.text\n'
    out += "\n".join(A.L) + "\nLcode_end:\n"
    out += '.section .rodata,"a"\n'
    for n in names:
        out += ".p2align 6\n" + kdesc(n)
    open(sys.argv[1], "w").write(out)


main()
```

```python
import sys, math, struct

NAME = "parallel_sum__ssm_conv_s4__swiglu_ffn__prompt"
OPT = dict(ts=False)
for a in sys.argv[2:]:
    k, _, v = a.partition("=")
    OPT[k] = int(v) if v else True

WS_ST = 0x000000
WS_CS = 0x010000
WS_XT = 0x280000
WS_HF = 0x500000
WS_AT = 0xB00000
WS_FL = 0xD80000
WS_TS = 0xE00000
WS_WD = 0x1000000
WS_SIZE = 0x1200000
FL_X = WS_FL
FL_W = WS_FL + 0x4000
FL_H = WS_FL + 0x10000
FL_A = WS_FL + 0x40000

WP = 1088
UPOFF = 4 * WP + 16
SLOT1 = 8 * WP + 32
U1 = 2 * SLOT1
U2 = 10240
CTRL = 0
C_NONCE, C_PROG, C_EPI, C_CSOK, C_CNT, C_GO, C_KRDY, C_CRD, C_CPT, C_CNT2, C_GOW = 4, 16, 32, 60, 80, 84, 64, 88, 104, 112, 116
C_TRD = 48
C_KP, C_KPR = 16, 124
CSUM = CTRL + 128
FLG = CSUM + 1024 + 256
PF = FLG + 256
MAIN = PF + 384
KSTR = 4160
AUX_U = 4 * KSTR
AUXSZ = AUX_U + 4608
LDS_TOTAL = 163840
AUX0 = LDS_TOTAL - 2 * AUXSZ
ER = 112
STGSZ = 64 * ER
LNROW = 1312
NW, NXC = 5, 3
XRING = MAIN
WADDR = [XRING + NXC * 16384 + i * U1 for i in range(4)] + [AUX0 + STGSZ]
WHI = WADDR[3]
assert WADDR[3] + U1 <= AUX0 and WADDR[4] + U1 <= LDS_TOTAL - STGSZ
HSTG = WADDR[4] + U1
assert HSTG + STGSZ + 3072 <= LDS_TOTAL - STGSZ
FL_G = WS_FL + 0x6000
CONV_PROG = 16
SPRIV = 19072


def WSLOT(u):
    return WADDR[(u + 4) % NW]


def XSLOT(c):
    return XRING + ((9 - c) % NXC) * 16384


NL2 = 5
NS2 = 2 * NL2 + 1
NR2 = 4


def _g2slots():
    areas = [(WSLOT(u), WSLOT(u) + U1, u + 1) for u in range(20 - NW, 20)]
    areas += [(XSLOT(c), XSLOT(c) + 16384, 2 * c + 2) for c in range(10 - NXC, 10)]
    out = []
    for i in range(NS2):
        lo = AUX0 - (i + 1) * U2
        assert lo >= MAIN + 2048
        need = max(n for (a, b, n) in areas if a < lo + U2 and lo < b)
        if lo + U2 > LDS_TOTAL - 4 * AUXSZ:
            need = max(need, 19)
        out.append((need, lo))
    return sorted(out)


G2SLOT = _g2slots()

LOG2E = 1.4426950408889634
BUD, NON = "s0", "s1"

def fbits(x):
    return "0x%08x" % struct.unpack("<I", struct.pack("<f", x))[0]


def v(i, n=1):
    return "v%d" % i if n == 1 else "v[%d:%d]" % (i, i + n - 1)


def s(i, n=1):
    return "s%d" % i if n == 1 else "s[%d:%d]" % (i, i + n - 1)


class Cnt:
    def __init__(self, A, name, mx):
        self.A, self.name, self.mx, self.q = A, name, mx, []

    def issue(self, tag):
        self.q.append(tag)

    def wait(self, tag):
        if tag not in self.q:
            return
        i = len(self.q) - 1 - self.q[::-1].index(tag)
        n = len(self.q) - 1 - i
        self.A("s_waitcnt %s(%d)" % (self.name, min(n, self.mx)))
        self.q = self.q[i + 1:]

    def drain(self):
        self.A("s_waitcnt %s(0)" % self.name)
        self.q = []


class Asm:
    def __init__(self):
        self.L = []
        self.nl = 0
        self.stamps = []
        self.cold = []

    def flush_cold(self):
        for f in self.cold:
            f()
        self.cold = []

    def __call__(self, t):
        self.L.append("  " + t)

    def label(self, l):
        self.L.append(l + ":")

    def newl(self, p="L"):
        self.nl += 1
        return "%s_%d" % (p, self.nl)

    def c(self, t):
        self.L.append("  ; " + t)

    def ts(self, slot):
        if OPT["ts"]:
            self("%s %s" % ("s_memtime" if OPT.get("cyc") else "s_memrealtime", s(70 + 2 * slot, 2)))
            self.stamps.append(slot)

    def end(self):
        if OPT.get("probe") is not None and self.stamps:
            if OPT["probe"] in self.stamps:
                sk, lp = self.newl("Lpr"), self.newl("Lpl")
                self("s_waitcnt lgkmcnt(0)")
                self("s_cmp_lg_u32 s2, %d" % OPT.get("probeg", 17))
                self("s_cbranch_scc1 %s" % sk)
                self("s_cmp_lg_u32 s3, %d" % OPT.get("probew", 0))
                self("s_cbranch_scc1 %s" % sk)
                self("s_sub_u32 s4, %s, s70" % s(70 + 2 * OPT["probe"]))
                self("s_lshl_b32 s4, s4, 2")
                self("s_add_u32 s4, s4, 3000")
                self.label(lp)
                self("s_memrealtime s[6:7]")
                self("s_waitcnt lgkmcnt(0)")
                self("s_sub_u32 s6, s6, s70")
                self("s_cmp_lt_u32 s6, s4")
                self("s_cbranch_scc1 %s" % lp)
                self.label(sk)
        elif OPT.get("dbgts") is not None and self.stamps:
            sk = self.newl("Ldt")
            self("s_waitcnt lgkmcnt(0)")
            self("s_cmp_lg_u32 s2, %d" % OPT.get("dbgwg", 17))
            self("s_cbranch_scc1 %s" % sk)
            self("s_cmp_lg_u32 s3, %d" % OPT["dbgts"])
            self("s_cbranch_scc1 %s" % sk)
            self("s_mov_b64 exec, 1")
            self("v_mov_b32 v2, 0")
            for sl in self.stamps:
                if sl == 0:
                    continue
                self("s_sub_u32 s4, %s, s70" % s(70 + 2 * sl))
                self("v_mov_b32 v0, s4")
                self("global_store_dword v2, v0, %s offset:%d" % (s(44, 2), 4 * sl))
            self.label(sk)
        elif OPT["ts"] and self.stamps:
            self("s_waitcnt lgkmcnt(0)")
            self("s_mov_b64 exec, 1")
            self("s_lshl_b32 s4, s2, 3")
            self("s_add_u32 s4, s4, s3")
            self("s_lshl_b32 s4, s4, 7")
            self("s_add_u32 s4, s4, 0x%x" % WS_TS)
            self("v_mov_b32 v2, 0")
            for sl in self.stamps:
                self("v_mov_b32 v0, %s" % s(70 + 2 * sl))
                self("v_mov_b32 v1, %s" % s(71 + 2 * sl))
                self("buffer_store_dwordx2 v[0:1], v2, s[48:51], s4 offen offset:%d" % (8 * sl))
                self("s_nop 1")
        self("s_endpgm")
        self.flush_cold()


P_X, P_ARE, P_AIM, P_BRE, P_BIM, P_CRE, P_CIM, P_LDT, P_DSK, P_BX, P_WG, P_WU, P_WD, P_OUT, P_DBG, P_WS = [16 + 2 * i for i in range(16)]
SC1 = " sc1"
LSC = " sc1"


def srd(A, d, ptr, size):
    A("s_mov_b32 %s, %s" % (s(d), s(ptr)))
    A("s_mov_b32 %s, %s" % (s(d + 1), s(ptr + 1)))
    A("s_mov_b32 %s, 0x%x" % (s(d + 2), size))
    A("s_mov_b32 %s, 0x20000" % s(d + 3))


def prologue(A, name, tsslot):
    A.L.append(".globl %s" % name)
    A.L.append(".p2align 8")
    A.L.append(".type %s,@function" % name)
    A.label(name)
    A.stamps = []
    ok = A.newl("Lgo")
    A("s_cmp_lt_u32 s2, 256")
    A("s_cbranch_scc1 %s" % ok)
    A.exit = A.newl("Lexit")
    A.label(A.exit)
    A("s_endpgm")
    A.label(ok)
    A("s_load_dwordx16 s[16:31], s[0:1], 0")
    A("s_load_dwordx16 s[32:47], s[0:1], 64")
    if OPT["ts"]:
        for i in range(16):
            A("s_mov_b64 %s, 0" % s(70 + 2 * i, 2))
    A.ts(tsslot)
    A("v_lshrrev_b32 v2, 6, v0")
    A("v_and_b32 v1, 63, v0")
    A("v_readfirstlane_b32 s3, v2")
    A("v_and_b32 v2, 31, v0")
    A("v_lshlrev_b32 v2, 2, v2")
    A("v_add_u32 v2, %d, v2" % CTRL)
    A("v_mov_b32 v3, 0")
    A("ds_write_b32 v2, v3")
    if OPT.get("cpf", 1):
        l2 = A.newl("Lw")
        A("s_cmp_lg_u32 s3, 2")
        A("s_cbranch_scc1 %s" % l2)
        code_prefetch(A)
        A.label(l2)
    map_g1(A)
    map_g2(A)


def ready(A, early=None):
    A("s_waitcnt lgkmcnt(0)")
    if early:
        early(A)
    A("s_barrier")
    A("s_mov_b32 %s, 0x40000" % BUD)
    srd(A, 48, P_WS, WS_SIZE)


def tlb_warm(A, vt):
    ptrs = [P_X, P_WG, P_WU, P_ARE, P_AIM, P_BRE, P_BIM, P_CRE, P_CIM, P_LDT, P_DSK, P_WD, P_DBG, P_WS]
    A("v_mov_b32 %s, %s" % (v(vt), s(P_X)))
    A("v_mov_b32 %s, %s" % (v(vt + 1), s(P_X + 1)))
    for i, p in enumerate(ptrs):
        if i:
            A("v_writelane_b32 %s, %s, %d" % (v(vt), s(p), i))
            A("v_writelane_b32 %s, %s, %d" % (v(vt + 1), s(p + 1), i))
    A("s_mov_b64 exec, 0x%x" % ((1 << len(ptrs)) - 1))
    A("global_load_dword %s, %s, off" % (v(vt + 2), v(vt, 2)))
    A("s_mov_b64 exec, -1")


def guard(A):
    A("s_sub_u32 %s, %s, 1" % (BUD, BUD))
    A("s_cbranch_scc1 %s" % A.exit)


def map_g1(A):
    A("s_and_b32 s4, s2, 7")
    A("s_lshr_b32 s5, s2, 3")
    A("s_and_b32 s60, s4, 1")
    A("s_lshl_b32 s60, s60, 3")
    A("s_and_b32 s6, s5, 7")
    A("s_add_u32 s60, s60, s6")
    A("s_lshr_b32 s61, s4, 1")
    A("s_mul_i32 s61, s61, 3")
    A("s_lshr_b32 s6, s5, 3")
    A("s_add_u32 s61, s61, s6")


def map_g2(A):
    A("s_and_b32 s4, s2, 7")
    A("s_lshr_b32 s5, s2, 3")
    if OPT.get("m2", 1) == 0:
        A("s_lshl_b32 s62, s4, 2")
        A("s_and_b32 s6, s5, 3")
        A("s_add_u32 s62, s62, s6")
        A("s_lshr_b32 s63, s5, 2")
    else:
        A("s_lshr_b32 s62, s4, 1")
        A("s_lshl_b32 s62, s62, 3")
        A("s_and_b32 s6, s5, 7")
        A("s_add_u32 s62, s62, s6")
        A("s_and_b32 s63, s4, 1")
        A("s_lshl_b32 s63, s63, 2")
        A("s_lshr_b32 s6, s5, 3")
        A("s_add_u32 s63, s63, s6")


def lds_wait(A, off, cmp, val, vF, vC, sF, have=False, sleep=1):
    ok, poll = A.newl("Lok"), A.newl("Lpoll")

    def loop():
        A.label(poll)
        guard(A)
        if OPT.get("cnt") and have:
            A("s_add_u32 s92, s92, 1")
        A("ds_read_b32 %s, %s offset:%d" % (v(vF), v(vC), off))
        A("s_waitcnt lgkmcnt(0)")
        A("v_readfirstlane_b32 %s, %s" % (sF, v(vF)))
        A("s_cmp_%s_u32 %s, %s" % (cmp, sF, val))
        A("s_cbranch_scc1 %s" % ok)
        A("s_sleep %d" % sleep)
        A("s_branch %s" % poll)
    if have:
        A("v_readfirstlane_b32 %s, %s" % (sF, v(vF)))
        A("s_cmp_%s_u32 %s, %s" % (cmp, sF, val))
        A("s_cbranch_scc0 %s" % poll)
        A.cold.append(loop)
    else:
        loop()
    A.label(ok)


def nonce_lds(A, vt):
    A("v_mov_b32 %s, %d" % (v(vt + 1), CTRL))
    lds_wait(A, C_NONCE, "lg", 0, vt, vt + 1, NON)


def nonce_fetch(A, vt, issued=False):
    poll, chk = A.newl("Lnp"), A.newl("Lnc")
    if issued:
        A("s_branch %s" % chk)
    A.label(poll)
    guard(A)
    A("v_mov_b32 %s, 0" % v(vt))
    A("global_load_dword %s, %s, %s sc1" % (v(vt), v(vt), s(P_DBG, 2)))
    A.label(chk)
    A("s_waitcnt vmcnt(0)")
    A("v_readfirstlane_b32 %s, %s" % (NON, v(vt)))
    A("s_cmp_lg_u32 %s, 0" % NON)
    A("s_cbranch_scc0 %s" % poll)
    A("v_mov_b32 %s, %d" % (v(vt + 1), CTRL))
    A("ds_write_b32 %s, %s offset:%d" % (v(vt + 1), v(vt), C_NONCE))


def signal(A, soff, vt):
    A("v_mov_b32 %s, 0" % v(vt))
    A("v_mov_b32 %s, %s" % (v(vt + 1), NON))
    A("s_mov_b64 exec, 1")
    A("buffer_store_dword %s, %s, s[48:51], %s offen sc1" % (v(vt + 1), v(vt), s(soff)))
    A("s_mov_b64 exec, -1")


def poll_flags(A, loads, tags, vt, sleep=2):
    top, done = A.newl("Lgp"), A.newl("Lgd")
    A.label(top)
    guard(A)
    for (r, n, vo, so, imm) in loads:
        op = {1: "dword", 2: "dwordx2", 4: "dwordx4"}[n]
        A("buffer_load_%s %s, %s, s[48:51], %s offen offset:%d sc1" % (op, v(r, n), v(vo), s(so), imm))
    A("s_waitcnt vmcnt(0)")
    tag_check(A, tags, vt, done)
    A("s_sleep %d" % sleep)
    A("s_branch %s" % top)
    A.label(done)


def tag_check(A, tags, vt, done):
    A("v_xor_b32 %s, %s, %s" % (v(vt), NON, v(tags[0])))
    for x in tags[1:]:
        A("v_xor_b32 %s, %s, %s" % (v(vt + 1), NON, v(x)))
        A("v_or_b32 %s, %s, %s" % (v(vt), v(vt), v(vt + 1)))
    A("v_cmp_ne_u32 s[4:5], 0, %s" % v(vt))
    A("s_cmp_eq_u64 s[4:5], 0")
    A("s_cbranch_scc1 %s" % done)


def setexec(A, m):
    A("s_mov_b32 exec_lo, 0x%x" % (m & 0xffffffff))
    A("s_mov_b32 exec_hi, 0x%x" % (m >> 32))


def poll_all(A, vt, fl, go, dyn=False):
    A("v_lshlrev_b32 %s, 7, v1" % v(vt))
    if dyn:
        A("s_add_u32 s6, s7, 0x%x" % fl)
    else:
        A("s_mov_b32 s6, 0x%x" % fl)
    poll_flags(A, [(vt + 4, 1, vt, 6, 0)], [vt + 4], vt + 1, 6)
    A("v_mov_b32 %s, %s" % (v(vt), "s8" if dyn else "0"))
    A("v_mov_b32 %s, 1" % v(vt + 1))
    A("ds_write_b32 %s, %s offset:%d" % (v(vt), v(vt + 1), go))


LN_X, LN_F, LN_T = 216, 64, 24


def ln_issue(A):
    T = LN_T
    A("v_lshrrev_b32 %s, 3, v1" % v(T))
    A("v_and_b32 %s, 7, v1" % v(T + 1))
    A("v_mul_u32_u24 %s, 1280, %s" % (v(T + 2), v(T)))
    A("v_lshl_add_u32 %s, %s, 4, %s" % (v(T + 2), v(T + 1), v(T + 2)))
    A("s_mul_i32 s4, s9, %d" % (8 * 1280))
    for i in range(10):
        A("buffer_load_dwordx4 %s, %s, s[52:55], s4 offen offset:%d" % (v(LN_X + 4 * i, 4), v(T + 2), 128 * i))


def red8(A, r):
    for m in ["quad_perm:[1,0,3,2]", "quad_perm:[2,3,0,1]", "row_half_mirror"]:
        A("s_nop 1")
        A("v_add_f32_dpp %s, %s, %s %s row_mask:0xf bank_mask:0xf" % (v(r), v(r), v(r), m))


def ln8(A):
    X, F, T = LN_X, LN_F, LN_T
    S0, S1, M, R = T + 4, T + 6, T + 8, T + 10
    for i in range(40):
        A("v_lshlrev_b32 %s, 16, %s" % (v(F + 2 * i), v(X + i)))
        A("v_and_b32 %s, 0xffff0000, %s" % (v(F + 2 * i + 1), v(X + i)))
    A("v_pk_add_f32 %s, %s, %s" % (v(S0, 2), v(F, 2), v(F + 2, 2)))
    A("v_pk_add_f32 %s, %s, %s" % (v(S1, 2), v(F + 4, 2), v(F + 6, 2)))
    for i in range(4, 40):
        d = S0 + 2 * (i & 1)
        A("v_pk_add_f32 %s, %s, %s" % (v(d, 2), v(d, 2), v(F + 2 * i, 2)))
    A("v_pk_add_f32 %s, %s, %s" % (v(S0, 2), v(S0, 2), v(S1, 2)))
    A("v_add_f32 %s, %s, %s" % (v(S0), v(S0), v(S0 + 1)))
    red8(A, S0)
    A("v_mul_f32 %s, %s, %s" % (v(M + 1), fbits(1.0 / 640), v(S0)))
    A("v_cvt_pk_bf16_f32 %s, %s, %s" % (v(M), v(M + 1), v(M + 1)))
    A("v_and_b32 %s, 0xffff0000, %s" % (v(M), v(M)))
    for i in range(40):
        A("v_pk_add_f32 %s, %s, %s op_sel_hi:[1,0] neg_lo:[0,1] neg_hi:[0,1]" % (v(F + 2 * i, 2), v(F + 2 * i, 2), v(M, 2)))
    for i in range(40):
        d = S0 + 2 * (i & 1)
        if i < 2:
            A("v_pk_mul_f32 %s, %s, %s" % (v(d, 2), v(F + 2 * i, 2), v(F + 2 * i, 2)))
        else:
            A("v_pk_fma_f32 %s, %s, %s, %s" % (v(d, 2), v(F + 2 * i, 2), v(F + 2 * i, 2), v(d, 2)))
    A("v_pk_add_f32 %s, %s, %s" % (v(S0, 2), v(S0, 2), v(S1, 2)))
    A("v_add_f32 %s, %s, %s" % (v(S0), v(S0), v(S0 + 1)))
    red8(A, S0)
    A("v_sub_f32 %s, %s, %s" % (v(M + 1), v(M + 1), v(M)))
    A("v_mul_f32 %s, %s, %s" % (v(R), fbits(1.0 / 640), v(S0)))
    A("v_fma_f32 %s, -%s, %s, %s" % (v(R), v(M + 1), v(M + 1), v(R)))
    A("v_max_f32 %s, 0, %s" % (v(R), v(R)))
    A("v_cvt_pk_bf16_f32 %s, %s, %s" % (v(R), v(R), v(R)))
    A("v_and_b32 %s, 0xffff0000, %s" % (v(R), v(R)))
    A("v_add_f32 %s, %s, %s" % (v(R), fbits(1e-5), v(R)))
    A("v_cvt_pk_bf16_f32 %s, %s, %s" % (v(R), v(R), v(R)))
    A("v_and_b32 %s, 0xffff0000, %s" % (v(R), v(R)))
    A("v_sqrt_f32 %s, %s" % (v(R), v(R)))
    A("s_nop 0")
    A("v_cvt_pk_bf16_f32 %s, %s, %s" % (v(S0), v(M), v(R)))
    A("v_and_b32 %s, 0xffff0000, %s" % (v(R), v(S0)))
    A("v_rcp_f32 %s, %s" % (v(R), v(R)))
    A("v_mul_u32_u24 %s, %d, %s" % (v(T + 2), LNROW, v(T)))
    A("v_lshl_add_u32 %s, %s, 4, %s" % (v(T + 2), v(T + 1), v(T + 2)))
    A("v_add_u32 %s, s15, %s" % (v(T + 2), v(T + 2)))
    for i in range(11):
        if i < 10:
            for e in range(4):
                A("v_pk_mul_f32 %s, %s, %s op_sel_hi:[1,0]" % (v(F + 8 * i + 2 * e, 2), v(F + 8 * i + 2 * e, 2), v(R, 2)))
        if i:
            A("ds_write_b128 %s, %s offset:%d" % (v(T + 2), v(X + 4 * (i - 1), 4), 128 * (i - 1)))
        if i < 10:
            for e in range(4):
                A("v_cvt_pk_bf16_f32 %s, %s, %s" % (v(X + 4 * i + e), v(F + 8 * i + 2 * e), v(F + 8 * i + 2 * e + 1)))


def ln_store(A):
    F, T = LN_F, LN_T
    S0 = T + 4
    a0, a1, a2 = T + 12, T + 13, T + 14
    A("v_bfe_u32 %s, v1, 2, 2" % v(a0))
    A("v_mul_u32_u24 %s, %d, %s" % (v(a0), LNROW, v(a0)))
    A("v_lshrrev_b32 %s, 4, v1" % v(a1))
    A("v_lshl_add_u32 %s, %s, 5, %s" % (v(a0), v(a1), v(a0)))
    A("v_and_b32 %s, 3, v1" % v(a1))
    A("v_lshl_add_u32 %s, %s, 3, %s" % (v(a0), v(a1), v(a0)))
    A("v_add_u32 %s, s15, %s" % (v(a0), v(a0)))
    for i in range(10):
        A("ds_read_b64_tr_b16 %s, %s offset:%d" % (v(F + 4 * i, 2), v(a0), 128 * i))
        A("ds_read_b64_tr_b16 %s, %s offset:%d" % (v(F + 4 * i + 2, 2), v(a0), 128 * i + 4 * LNROW))
    A("v_mov_b32 %s, %s" % (v(S0 + 1), NON))
    A("s_lshl_b32 s6, s9, 6")
    A("s_add_u32 s6, s6, 0x%x" % WS_ST)
    setexec(A, 0x0101010101010101)
    A("buffer_store_dwordx2 %s, v1, s[48:51], s6 offen sc1" % v(S0, 2))
    A("s_mov_b64 exec, -1")
    A("v_lshlrev_b32 %s, 4, v1" % v(a0))
    A("s_mul_i32 s7, s9, 10240")
    A("s_add_u32 s7, s7, 0x%x" % WS_XT)
    A("s_waitcnt lgkmcnt(0)")
    for i in range(10):
        A("buffer_store_dwordx4 %s, %s, s[48:51], s7 offen offset:%d sc1" % (v(F + 4 * i, 4), v(a0), 1024 * (i % 4)))
        if i % 4 == 3:
            A("s_add_u32 s7, s7, 4096")


def flag_p(A, cnt, fl, vmc=0):
    sk = A.newl("Lf")
    A("v_mov_b32 v10, %d" % CTRL)
    A("v_mov_b32 v11, 1")
    A("s_waitcnt vmcnt(%d)" % vmc)
    A("s_mov_b64 exec, 1")
    A("ds_add_rtn_u32 v11, v10, v11 offset:%d" % cnt)
    A("s_mov_b64 exec, -1")
    A("s_waitcnt lgkmcnt(0)")
    A("v_readfirstlane_b32 s4, v11")
    A("s_cmp_lg_u32 s4, 3")
    A("s_cbranch_scc1 %s" % sk)
    A("s_lshl_b32 s6, s2, 7")
    A("s_add_u32 s6, s6, 0x%x" % (fl - 192 * 128))
    signal(A, 6, 10)
    A.label(sk)


LV_C, LV_T, LV_Q = 36, 37, 40


PAR = OPT.get("par", 0)


def _schedule():
    B = []
    for u in range(20):
        B.append((u, 1, ("w", u, 16, u - NW + 2 if u >= NW - PAR else 0)))
    for h in range(20):
        c = h >> 1
        need = 2 * (c - NXC) + 3 if c >= NXC - PAR else 0
        lead = 1 if 0 < c < NXC - PAR else 0
        B.append((2 * c - lead * (1 - (h & 1)), 0, ("x", h, 8, need)))
    B.sort(key=lambda e: (e[0], e[1]))
    B = [e[2] for e in B]
    for i in range(2 * NL2 + 1):
        B.append(("d", i, 10, G2SLOT[i][0] + 1))
    return B


GAPS = {"cur": 4}


class Dma:
    def __init__(self, A, n):
        self.A, self.n, self.k = A, n, 0

    def __call__(self, t):
        self.A(t)
        self.k += 1
        GAP = GAPS["cur"]
        if GAP and (self.k % GAP == 0 or self.k == self.n):
            self.A("buffer_load_dword v35, v27, s[48:51], 0 offen")


SCHED = _schedule()
CUM = [0]
for e in SCHED:
    CUM.append(CUM[-1] + e[2])
NB1 = 40


def _flagafter():
    out = {}
    for u in range(20 + 2 * NL2 + 1):
        want = [("d", u - 20)] if u >= 20 else [("w", u), ("x", 2 * (u >> 1)), ("x", 2 * (u >> 1) + 1)]
        i = max(i for i, e in enumerate(SCHED) if (e[0], e[1]) in want)
        out.setdefault(i, []).append(u)
    return out


FLAGAFTER = _flagafter()


def loader_run(A, first, last):
    def rdprog(need):
        A("ds_read_b128 %s, %s offset:%d" % (v(LV_Q, 4), v(LV_C), PF + 16 * need))

    def getprog():
        A("s_waitcnt lgkmcnt(0)")
        A("v_or_b32 v39, %s, %s" % (v(LV_Q), v(LV_Q + 1)))
        A("v_or3_b32 v39, v39, %s, %s" % (v(LV_Q + 2), v(LV_Q + 3)))
        A("s_nop 0")
        A("v_readfirstlane_b32 s67, v39")
        A("s_cmp_eq_u32 s67, 0")
    wait = A.newl("Llw")

    def waitfn():
        A.label(wait)
        guard(A)
        if OPT.get("cnt"):
            A("s_add_u32 s92, s92, 1")
        if OPT.get("lsl", 0):
            A("s_sleep %d" % OPT["lsl"])
        A("ds_read_b128 %s, v38" % v(LV_Q, 4))
        getprog()
        A("s_cbranch_scc0 %s" % wait)
        A("s_setpc_b64 s[34:35]")
    A.cold.append(waitfn)
    known = 0
    for i in range(first, last):
        kind, idx, P, need = SCHED[i]
        if i == OPT.get("lbar", 3):
            A("s_barrier")
        if i == NB1:
            A.label("Lload_g2")
            rdprog(need)
        if i == NB1 + SPLIT2:
            A("s_cmp_ge_u32 s2, 192")
            A("s_cbranch_scc1 Ls_join")
            if OPT.get("park", 0):
                A("s_branch Lload_end")
            A.label("Lload_g2b")
            rdprog(need)
        if OPT.get("free") and i < NB1:
            need = 0
        if need > known:
            go = A.newl("Llg")
            getprog()
            A("s_cbranch_scc1 %s" % go)
            A("v_mov_b32 v38, %d" % (PF + 16 * need))
            A("s_call_b64 s[34:35], %s" % wait)
            A.label(go)
            known = need
        if OPT.get("fine") and kind == "w" and idx in (1, 2, 3, 4, 5, 6, 7, 8):
            A.ts(4 + idx)
        elif OPT.get("cnt") and kind == "w" and idx in (1, 5, 8, 12, 16):
            A.ts({1: 6, 5: 7, 8: 8, 12: 9, 16: 10}[idx])
        nxt = i + 1 < last and SCHED[i + 1][3] > known
        GAPS["cur"] = OPT.get("gap0", 4) if i < OPT.get("gapi", 9) else (OPT.get("gap", 2) if i < NB1 else OPT.get("gap2", 2))
        if i > NB1 and OPT.get("dvm", 60) < 60:
            A("s_waitcnt vmcnt(%d)" % OPT.get("dvm", 60))
        if i == NB1 + 1:
            loader2_setup(A)
            lds_wait(A, C_GO, "lg", 0, 38, LV_C, "s4")
            A.ts(3)
        {"w": issue1, "x": issue_x, "d": issue2}[kind](A, idx, (lambda: rdprog(SCHED[i + 1][3])) if nxt else None)
        if i in FLAGAFTER:
            A("s_mov_b32 m0, %d" % (FLG + 4 * max(FLAGAFTER[i]) - 252))
            A("s_nop 0")
            A("buffer_load_dword v27, s[48:51], 0 offen lds")


def rot1(A, sd):
    if OPT.get("rot") == 0:
        A("s_mov_b32 %s, 0" % s(sd))
        return
    if OPT.get("rot") == 2:
        A("s_xor_b32 %s, s60, s61" % s(sd))
        A("s_and_b32 %s, %s, 1" % (s(sd), s(sd)))
        A("s_mul_i32 %s, %s, 5" % (s(sd), s(sd)))
        return
    A("s_and_b32 %s, s61, 3" % s(sd))
    A("s_mul_i32 %s, %s, %d" % (s(sd), s(sd), OPT.get("rnb", 0)))
    A("s_add_u32 %s, %s, s60" % (s(sd), s(sd)))
    for _ in range(2):
        A("s_cmp_ge_u32 %s, 10" % s(sd))
        A("s_cselect_b32 s5, 10, 0")
        A("s_sub_u32 %s, %s, s5" % (s(sd), s(sd)))


def flg_init(A):
    A("v_lshlrev_b32 v2, 2, v1")
    A("v_mov_b32 v3, 1")
    A("ds_write_b32 v2, v3 offset:%d" % FLG)
    A("ds_write_b32 v2, v3 offset:%d" % PF)
    A("ds_write_b32 v2, v3 offset:%d" % (PF + 128))


def loader_regs(A):
    A("v_mov_b32 %s, %d" % (v(LV_C), CTRL))
    A("v_mov_b32 v27, 0x7ffffff0")
    srd(A, 12, P_X, 2048 * 640 * 2)


def loader1_setup(A):
    A("v_lshrrev_b32 v40, 4, v1")
    A("v_mul_u32_u24 v40, %d, v40" % (4 * 3072))
    A("v_and_b32 v41, 15, v1")
    A("v_lshl_add_u32 v20, v41, 4, v40")
    for p in range(1, 4):
        A("v_add_u32 %s, %d, v20" % (v(20 + p), p * (3072 - WP)))
    A("v_lshrrev_b32 v40, 3, v1")
    A("v_mul_u32_u24 v40, 1280, v40")
    A("v_and_b32 v41, 7, v1")
    A("v_lshrrev_b32 v42, 4, v1")
    A("v_xor_b32 v41, v41, v42")
    A("v_lshl_add_u32 v28, v41, 4, v40")
    A("v_xor_b32 v29, 64, v28")
    A("v_add_u32 v29, %d, v29" % (8 * 1280 - 1024))
    A("v_add_u32 v30, %d, v28" % (16 * 1280 - 2048))
    A("v_add_u32 v31, %d, v29" % (16 * 1280 - 2048))
    rot1(A, 4)
    A("s_lshl_b32 s66, s61, 8")
    A("s_add_u32 s69, s66, %d" % (640 * 3072))
    A("s_mul_i32 s5, s4, %d" % (64 * 3072))
    A("s_add_u32 s64, s66, s5")
    A("s_mul_i32 s10, s60, %d" % (128 * 1280))
    A("s_add_u32 s11, s10, 1280")
    A("s_lshl_b32 s4, s4, 7")
    A("s_add_u32 s65, s10, s4")
    flg_init(A)
    A("s_waitcnt lgkmcnt(0)")
    A("s_mov_b32 %s, 0x40000" % BUD)
    srd(A, 48, P_WS, WS_SIZE)
    loader_regs(A)
    srd(A, 52, P_WG, 640 * 1536 * 2)
    srd(A, 56, P_WU, 640 * 1536 * 2)


def issue_x(A, h, mid):
    base = XSLOT(h >> 1) + (h & 1) * 8192
    D = Dma(A, 8)
    for g in range(2):
        A("s_mov_b32 m0, %d" % (base + 4096 * g))
        A("s_add_u32 s7, s65, %d" % ((64 * (h & 1) + 32 * g) * 1280))
        if g == 1 and mid:
            mid()
        for p in range(4):
            D("buffer_load_dwordx4 %s, s[12:15], s7 offen offset:%d lds" % (v(28 + p), 1024 * p))
    if h & 1:
        A("s_add_u32 s65, s65, 128")
        A("s_cmp_ge_u32 s65, s11")
        A("s_cselect_b32 s65, s10, s65")


def issue1(A, u, mid):
    base = WSLOT(u)
    D = Dma(A, 16)
    for k in range(2):
        so = "s64" if k == 0 else "s6"
        A("s_mov_b32 m0, %d" % (base + k * SLOT1))
        if k == 0:
            A("s_add_u32 s6, s64, %d" % (16 * 3072))
        else:
            A("s_add_u32 s64, s64, %d" % (32 * 3072))
        if k == 1 and mid:
            mid()
        for p in range(4):
            D("buffer_load_dwordx4 %s, s[52:55], %s offen offset:%d lds" % (v(20 + p), so, WP * p))
        A("s_mov_b32 m0, %d" % (base + k * SLOT1 + UPOFF))
        if k == 1 and (u & 1):
            A("s_cmp_ge_u32 s64, s69")
            A("s_cselect_b32 s64, s66, s64")
        else:
            A("s_nop 0")
        for p in range(4):
            D("buffer_load_dwordx4 %s, s[56:59], %s offen offset:%d lds" % (v(20 + p), so, WP * p))


def rot2(A, sd):
    if OPT.get("m2", 1):
        A("s_and_b32 %s, s62, 7" % s(sd))
        A("s_mul_i32 %s, %s, 3" % (s(sd), s(sd)))
        A("s_lshr_b32 %s, %s, 1" % (s(sd), s(sd)))
    else:
        A("s_and_b32 %s, s62, 3" % s(sd))
        A("s_mul_i32 %s, %s, 3" % (s(sd), s(sd)))
    if OPT.get("rcb", 0):
        if OPT.get("m2", 1):
            A("s_and_b32 s5, s63, 3")
            A("s_mul_i32 s5, s5, 3")
        else:
            A("s_mul_i32 s5, s63, 3")
            A("s_lshr_b32 s5, s5, 1")
        A("s_add_u32 %s, %s, s5" % (s(sd), s(sd)))
        A("s_cmp_ge_u32 %s, 12" % s(sd))
        A("s_cselect_b32 s5, 12, 0")
        A("s_sub_u32 %s, %s, s5" % (s(sd), s(sd)))


SPLIT2 = 5
assert G2SLOT[SPLIT2 - 1][0] < 19 <= G2SLOT[SPLIT2][0] and SPLIT2 & 1


def loader2_setup(A, skip=0):
    rot2(A, 4)
    A("s_add_u32 s4, s4, %d" % (NR2 + skip))
    A("s_cmp_ge_u32 s4, 12")
    A("s_cselect_b32 s5, 12, 0")
    A("s_sub_u32 s4, s4, s5")
    A("s_mul_i32 s66, s63, %d" % (48 * 5120))
    A("s_add_u32 s66, s66, 0x%x" % WS_WD)
    A("s_add_u32 s69, s66, %d" % (12 * 5120))
    A("s_mul_i32 s4, s4, 5120")
    A("s_add_u32 s64, s66, s4")
    A("v_lshlrev_b32 v32, 4, v1")
    A("v_add_u32 v33, 4096, v32")


def issue2(A, u, mid):
    base = G2SLOT[u][1]
    D = Dma(A, 10)
    if u == 0:
        for p in range(5):
            A("v_add_u32 v50, %d, v1" % (64 * p))
            A("v_mul_u32_u24 v51, 52429, v50")
            A("v_lshrrev_b32 v51, 19, v51")
            A("v_mul_u32_u24 v51, %d, v51" % (1280 - 160))
            A("v_lshl_add_u32 %s, v50, 4, v51" % v(44 + p))
        if mid:
            mid()
        A("s_mul_i32 s6, s62, %d" % (64 * 1280))
        A("s_mul_i32 s7, s63, 160")
        A("s_add_u32 s6, s6, s7")
        for h in range(2):
            for p in range(5):
                A("s_mov_b32 m0, %d" % (base + 5120 * h + 1024 * p))
                A("s_nop 0")
                D("buffer_load_dwordx4 %s, s[12:15], s6 offen lds" % v(44 + p))
            A("s_add_u32 s6, s6, %d" % (32 * 1280))
        return
    u -= 1
    for w in range(2):
        A("s_mov_b32 m0, %d" % (base + 5120 * w))
        A("s_add_u32 s6, s64, %d" % ((2 * (u & 1) + w) * 12 * 5120))
        if w == 1 and mid:
            mid()
        for p in range(4):
            D("buffer_load_dwordx4 v32, s[48:51], s6 offen offset:%d%s lds" % (1024 * p, LSC))
        A("s_mov_b32 m0, %d" % (base + 5120 * w + 4096))
        A("s_nop 0")
        D("buffer_load_dwordx4 v33, s[48:51], s6 offen%s lds" % LSC)
    if u & 1:
        A("s_add_u32 s64, s64, 5120")
        A("s_cmp_ge_u32 s64, s69")
        A("s_cselect_b32 s64, s66, s64")


def park(A):
    P0 = 16
    prog_wait(A, OPT.get("pkp", 16), 8, 2)
    loader2_setup(A, SPLIT2 // 2)
    A("v_mov_b32 v2, v32")
    A("v_mov_b32 v3, v33")
    n = 0
    for u in range(SPLIT2 - 1, 2 * NL2):
        for w in range(2):
            A("s_add_u32 s6, s64, %d" % ((2 * (u & 1) + w) * 12 * 5120))
            for p in range(5):
                if p < 4:
                    A("buffer_load_dwordx4 %s, v2, s[48:51], s6 offen offset:%d%s" % (v(P0 + 4 * n, 4), 1024 * p, LSC))
                else:
                    A("buffer_load_dwordx4 %s, v3, s[48:51], s6 offen%s" % (v(P0 + 4 * n, 4), LSC))
                n += 1
        if u & 1:
            A("s_add_u32 s64, s64, 5120")
            A("s_cmp_ge_u32 s64, s69")
            A("s_cselect_b32 s64, s66, s64")
    tot = n
    assert P0 + 4 * tot <= 256
    A.ts(8)
    n, known = 0, 0
    for u in range(SPLIT2, 2 * NL2 + 1):
        need, base = G2SLOT[u]
        if need + 1 > known:
            known = need + 1
            prog_wait(A, known, 8, 1)
        A("v_add_u32 v3, %d, v2" % base)
        A("s_waitcnt vmcnt(%d)" % (tot - n - 10))
        for p in range(10):
            A("ds_write_b128 v3, %s offset:%d" % (v(P0 + 4 * n, 4), 1024 * p))
            n += 1
    A("v_mov_b32 v2, 0")
    lds_wait(A, FLG + 4 * (20 + SPLIT2 - 1), "eq", 0, 3, 2, "s10")
    A("ds_write_b32 v2, v2 offset:%d" % (FLG + 4 * (20 + 2 * NL2)))
    A.ts(9)


def colsum_gather(A):
    R, Q = 180, 220
    A("v_lshlrev_b32 v2, 4, v1")
    A("v_lshlrev_b32 v5, 3, v1")
    A("s_mul_i32 s6, s61, 20480")
    A("s_add_u32 s6, s6, 0x%x" % WS_CS)
    for i in range(1, 5):
        A("s_add_u32 %s, s6, %d" % (s(6 + i), 4096 * i))
    L = [(R + 4 * i, 4, 2, 6 + i // 2, 2048 * (i % 2)) for i in range(10)]
    L += [(Q + 2 * i, 2, 5, 6 + i // 2, 2048 * (i % 2) + 1024) for i in range(10)]
    poll_flags(A, L, [R + 3 + 4 * i for i in range(10)] + [Q + 1 + 2 * i for i in range(10)], 3, 8)
    A("v_mov_b32 %s, %s" % (v(R + 3), v(Q)))
    for i in range(1, 10):
        for e in range(3):
            A("v_add_f32 %s, %s, %s" % (v(R + e), v(R + e), v(R + 4 * i + e)))
        A("v_add_f32 %s, %s, %s" % (v(R + 3), v(R + 3), v(Q + 2 * i)))
    A("v_lshlrev_b32 v2, 2, v1")
    for e in range(4):
        A("ds_write_b32 v2, %s offset:%d" % (v(R + e), CSUM + 256 * e))
    A("v_mov_b32 v2, %d" % CTRL)
    A("v_mov_b32 v3, 1")
    A("ds_write_b32 v2, v3 offset:%d" % C_CSOK)


WDR = 160
WDOFF = 8 * LNROW


def wd_issue(A):
    T = 20
    srd(A, 56, P_WD, 1536 * 640 * 2)
    A("s_sub_u32 s4, s2, 192")
    A("s_lshl_b32 s4, s4, 2")
    A("s_add_u32 s4, s4, s3")
    A("s_mul_i32 s14, s4, 52429")
    A("s_lshr_b32 s14, s14, 18")
    A("s_mul_i32 s5, s14, 5")
    A("s_sub_u32 s13, s4, s5")
    A("s_lshl_b32 s13, s13, 1")
    A("s_mul_i32 s4, s14, %d" % (32 * 1280))
    A("s_lshl_b32 s5, s13, 7")
    A("s_add_u32 s4, s4, s5")
    A("v_lshrrev_b32 %s, 4, v1" % v(T))
    A("v_mul_u32_u24 %s, 1280, %s" % (v(T), v(T)))
    A("v_and_b32 %s, 15, v1" % v(T + 1))
    A("v_lshl_add_u32 %s, %s, 4, %s" % (v(T), v(T + 1), v(T)))
    for p in range(8):
        A("s_add_u32 m0, s15, %d" % (WDOFF + 1024 * p))
        A("s_nop 0")
        A("buffer_load_dwordx4 %s, s[56:59], s4 offen lds" % v(T))
        A("s_add_u32 s4, s4, %d" % (4 * 1280))


def wd_relayout(A):
    skip = A.newl("Lwd")
    T = 20
    A("s_cmp_ge_u32 s14, 48")
    A("s_cbranch_scc1 %s" % skip)
    A("v_lshrrev_b32 %s, 2, v1" % v(T))
    A("v_lshlrev_b32 %s, 8, %s" % (v(T), v(T)))
    A("v_and_b32 %s, 3, v1" % v(T + 1))
    A("v_lshl_add_u32 %s, %s, 3, %s" % (v(T), v(T + 1), v(T)))
    A("v_add_u32 %s, s15, %s" % (v(T), v(T)))
    A("v_lshlrev_b32 %s, 4, v1" % v(T + 1))
    for c in range(8):
        A("ds_read_b64_tr_b16 %s, %s offset:%d" % (v(WDR + 4 * c, 2), v(T), WDOFF + 32 * c))
        A("ds_read_b64_tr_b16 %s, %s offset:%d" % (v(WDR + 2 + 4 * c, 2), v(T), WDOFF + 32 * c + 4096))
    for c in range(8):
        A("s_lshl_b32 s4, s13, 2")
        A("s_add_u32 s4, s4, %d" % c)
        A("s_mul_i32 s5, s4, 52429")
        A("s_lshr_b32 s5, s5, 18")
        A("s_mul_i32 s6, s5, 5")
        A("s_sub_u32 s4, s4, s6")
        A("s_mul_i32 s5, s5, 48")
        A("s_add_u32 s5, s5, s14")
        A("s_mul_i32 s5, s5, 5")
        A("s_add_u32 s4, s4, s5")
        A("s_lshl_b32 s4, s4, 10")
        A("s_add_u32 s4, s4, 0x%x" % WS_WD)
        A("s_waitcnt lgkmcnt(%d)" % (14 - 2 * c))
        A("buffer_store_dwordx4 %s, %s, s[48:51], s4 offen sc1" % (v(WDR + 4 * c, 4), v(T + 1)))
    A.label(skip)


G_vA0, G_vA1, G_vC, G_vF, G_vP, G_vXo, G_vPa = 2, 3, 4, 5, 6, 7, 8


def prog(A, val):
    if OPT.get("pds", 1):
        A("v_mov_b32 v10, 0")
        A("ds_write_b32 %s, v10 offset:%d" % (v(G_vPa), PF + 16 * (val + 1)))
        return
    A("s_add_u32 m0, s13, %d" % (16 * (val + 1)))
    A("s_mov_b64 exec, 1")
    A("buffer_load_dword %s, s[48:51], 0 offen lds" % v(G_vP))
    A("s_mov_b64 exec, -1")


def full_read(A, u):
    A("ds_read_b32 %s, %s offset:%d" % (v(G_vF), v(G_vC), FLG + 4 * u))


def full_wait(A, u, have=True):
    if OPT.get("free"):
        return
    if not getattr(A, "fullfn", None):
        A.fullfn = A.newl("Lfw")

        def fn():
            A.label(A.fullfn)
            guard(A)
            if OPT.get("cnt"):
                A("s_add_u32 s92, s92, 1")
            A("ds_read_b32 %s, v11" % v(G_vF))
            A("s_waitcnt lgkmcnt(0)")
            A("v_readfirstlane_b32 s10, %s" % v(G_vF))
            A("s_cmp_eq_u32 s10, 0")
            A("s_cbranch_scc0 %s" % A.fullfn)
            A("s_setpc_b64 s[34:35]")
        A.cold.append(fn)
    ok = A.newl("Lok")
    if have and u >= OPT.get("coldu", 6):
        st = A.newl("Lfs")
        if have != 2:
            A("v_readfirstlane_b32 s10, %s" % v(G_vF))
        A("s_cmp_eq_u32 s10, 0")
        A("s_cbranch_scc0 %s" % st)

        def stub():
            A.label(st)
            A("v_mov_b32 v11, %d" % (FLG + 4 * u))
            A("s_call_b64 s[34:35], %s" % A.fullfn)
            A("s_branch %s" % ok)
        A.cold.append(stub)
        A.label(ok)
        return
    if have:
        if have != 2:
            A("v_readfirstlane_b32 s10, %s" % v(G_vF))
        A("s_cmp_eq_u32 s10, 0")
        A("s_cbranch_scc1 %s" % ok)
    A("v_mov_b32 v11, %d" % (FLG + 4 * u))
    A("s_call_b64 s[34:35], %s" % A.fullfn)
    A.label(ok)


def wfrag_addr(A, d, t):
    A("v_bfe_u32 %s, v1, 2, 2" % v(t))
    A("v_mul_u32_u24 %s, %d, %s" % (v(d), WP, v(t)))
    A("v_lshrrev_b32 %s, 5, v1" % v(t))
    A("v_lshl_add_u32 %s, %s, 9, %s" % (v(d), v(t), v(d)))
    A("v_bfe_u32 %s, v1, 4, 1" % v(t))
    A("v_lshl_add_u32 %s, %s, 5, %s" % (v(d), v(t), v(d)))
    A("v_and_b32 %s, 1, v1" % v(t))
    A("v_lshl_add_u32 %s, %s, 3, %s" % (v(d), v(t), v(d)))
    A("v_bfe_u32 %s, v1, 1, 1" % v(t))
    A("v_mul_u32_u24 %s, %d, %s" % (v(t), UPOFF, v(t)))
    A("v_add_u32 %s, %s, %s" % (v(d), v(t), v(d)))


def gemm_regs(A):
    A("v_mov_b32 %s, %d" % (v(G_vC), CTRL))
    A("s_lshl_b32 s4, s3, 2")
    A("v_mov_b32 %s, s4" % v(G_vPa))
    A("s_add_u32 s13, s4, %d" % PF)
    A("v_mov_b32 %s, 0x7ffffff0" % v(G_vP))


def code_prefetch(A):
    A("s_getpc_b64 s[4:5]")
    here = A.newl("Lpc")
    A.label(here)
    A("s_sub_u32 s4, s4, %s-%s" % (here, NAME + "_kernel"))
    A("s_subb_u32 s5, s5, 0")
    A("s_lshr_b32 s6, s2, 3")
    A("s_lshl_b32 s6, s6, 11")
    A("v_lshlrev_b32 v254, 7, v1")
    A("v_add_u32 v254, s6, v254")
    A("s_mov_b32 s6, Lcode_end-%s-4" % (NAME + "_kernel"))
    A("v_min_u32 v254, s6, v254")
    A("s_mov_b64 exec, 0xffff")
    A("global_load_dword v215, v254, s[4:5]")
    A("s_mov_b64 exec, -1")


def s_phase0(A):
    gemm_regs(A)
    A("s_mul_i32 s15, s3, %d" % SPRIV)
    A("s_add_u32 s15, s15, %d" % MAIN)
    A("s_and_b32 s4, s2, 1")
    A("s_lshl_b32 s9, s4, 7")
    A("s_bfe_u32 s4, s2, 0x20001")
    A("s_lshl_b32 s4, s4, 5")
    A("s_add_u32 s9, s9, s4")
    A("s_bfe_u32 s4, s2, 0x30003")
    A("s_lshl_b32 s4, s4, 2")
    A("s_add_u32 s9, s9, s4")
    A("s_add_u32 s9, s9, s3")

    A("s_and_b32 s68, s2, 7")
    A("s_mul_i32 s68, s68, 80")
    A("s_lshr_b32 s4, s2, 3")
    A("s_lshl_b32 s4, s4, 2")
    A("s_add_u32 s68, s68, s4")
    A("s_add_u32 s68, s68, s3")
    A("s_sub_u32 s68, s68, 48")
    A("s_mov_b32 s66, s15")
    kgen_setup(A, KB)
    ready(A, lambda A: kgen_issue(A, 68, [2], 40, False))
    srd(A, 52, P_X, 2048 * 640 * 2)
    ln_issue(A)
    A("s_waitcnt vmcnt(10)")
    A.ts(1)
    kgen_call(A, 40, 46, True)
    A("s_setprio 2")
    wd_issue(A)
    A("v_mov_b32 v22, 0")
    A("global_load_dword v22, v22, %s sc1" % s(P_DBG, 2))
    A("s_add_u32 s4, s3, 1")
    A("s_mul_i32 s4, s4, %d" % AUXSZ)
    A("s_sub_u32 s7, %d, s4" % (LDS_TOTAL + 8192))
    kgen_give(A, 7, 3)
    A.ts(8)
    A("s_waitcnt vmcnt(9)")
    ln8(A)
    nonce_fetch(A, 22, True)
    ln_store(A)
    wd_relayout(A)
    A("s_cmp_lt_u32 s3, 2")
    A("s_mov_b32 s4, 0xfffff")
    A("s_cselect_b32 s4, 0x3fffff, s4")
    A("v_lshl_add_u32 v10, v1, 4, %s" % v(G_vPa))
    A("v_mov_b32 v11, 0")
    A("s_mov_b32 exec_lo, s4")
    A("s_mov_b32 exec_hi, 0")
    A("ds_write_b32 v10, v11 offset:%d" % PF)
    A("s_mov_b64 exec, -1")
    flag_p(A, C_CNT, FL_X)
    A.ts(2)
    sk, s1 = A.newl("Ls0"), A.newl("Ls1")
    A("s_cmp_eq_u32 s3, 1")
    A("s_cbranch_scc1 %s" % s1)
    A("s_cmp_lg_u32 s3, 0")
    A("s_cbranch_scc1 %s" % sk)
    A("s_sleep 12")
    poll_all(A, 12, FL_X, C_GO)
    if not OPT.get("g1only"):
        lds_wait(A, CTRL + C_KRDY, "lg", 0, 12, G_vPa, "s10", False, 4)
        loader_regs(A)
        A("s_branch Lload_g2")
    A.label(s1)
    if OPT.get("sdel", 0) and not OPT.get("g1only"):
        A("s_lshl_b32 s6, s2, 7")
        A("s_add_u32 s6, s6, 0x%x" % (FL_G - 192 * 128))
        A("v_mov_b32 v12, 0")
        A("s_mov_b64 exec, 1")
        poll_flags(A, [(16, 1, 12, 6, 0)], [16], 13, 8)
        A("s_mov_b64 exec, -1")
    A("v_lshlrev_b32 v12, 2, v1")
    A("v_mov_b32 v13, 1")
    A("s_mov_b64 exec, 15")
    A("ds_write_b32 v12, v13 offset:%d" % (CTRL + C_EPI))
    A("s_mov_b64 exec, -1")
    A.label(sk)
    if not OPT.get("g1only"):
        lds_wait(A, CTRL + C_KRDY, "lg", 0, 12, G_vPa, "s10", False, 4)
    A.ts(3)


G2_ACC = 176
G2_RREGS = [128, 132, 136, 140, 24, 28, 32, 36, 144, 148, 152, 156, 40, 44, 48, 52, 160, 164, 168, 172]


def g2_streams(A):
    rot2(A, 4)
    A("s_mul_i32 s53, s63, 48")
    A("s_mul_i32 s5, s3, 12")
    A("s_add_u32 s53, s53, s5")
    A("s_mul_i32 s53, s53, 5120")
    A("s_add_u32 s53, s53, 0x%x" % WS_WD)
    A("s_mul_i32 s5, s4, 5120")
    A("s_add_u32 s52, s53, s5")
    A("s_add_u32 s53, s53, %d" % (12 * 5120))
    A("s_mul_i32 s55, s62, %d" % (192 * 1024))
    A("s_mul_i32 s5, s3, %d" % (24 * 1024))
    A("s_add_u32 s55, s55, s5")
    A("s_add_u32 s55, s55, 0x%x" % WS_HF)
    A("s_add_u32 s56, s55, %d" % (24 * 1024))
    A("s_lshl_b32 s5, s4, 11")
    A("s_add_u32 s54, s55, s5")
    A("v_lshlrev_b32 %s, 4, v1" % v(G_vXo))
    A("v_add_u32 v22, 4096, %s" % v(G_vXo))


def g2_wload(A, r, j, ct):
    if ct < 4:
        A("buffer_load_dwordx4 %s, %s, s[48:51], s52 offen offset:%d%s" % (v(r, 4), v(G_vXo), 1024 * ct, LSC))
    else:
        A("buffer_load_dwordx4 %s, v22, s[48:51], s52 offen%s" % (v(r, 4), LSC))
    if ct == 4 and j < 11:
        A("s_add_u32 s52, s52, %d" % (5120 * (1 + (NL2 if j == NR2 - 1 else 0))))
        A("s_cmp_ge_u32 s52, s53")
        A("s_cselect_b32 s5, %d, 0" % (12 * 5120))
        A("s_sub_u32 s52, s52, s5")


def gemm1(A):
    ACC, FB = 128, 80
    SEL, CSD = 24, 40
    ST = 16
    vX = 12
    CR = [24, 40, 64, 80]
    NM, C1 = [56, 60], [58, 62]
    vA0, vC, vF, vP, vXo, vPa = G_vA0, G_vC, G_vF, G_vP, G_vXo, G_vPa
    lg = Cnt(A, "lgkmcnt", 15)
    vm = Cnt(A, "vmcnt", 63)
    A("s_and_b32 s11, s3, 1")
    A("s_lshr_b32 s12, s3, 1")
    A("s_lshl_b32 s8, s60, 1")
    A("s_add_u32 s8, s8, s11")
    wfrag_addr(A, vA0, 9)
    A("s_lshl_b32 s4, s12, 4")
    A("s_add_u32 s4, s4, %d" % WADDR[0])
    A("v_add_u32 %s, s4, %s" % (v(vA0), v(vA0)))
    A("v_add_u32 %s, %d, %s" % (v(G_vA1), WHI - WADDR[0], v(vA0)))
    A("v_and_b32 v9, 31, v1")
    A("v_bfe_u32 v10, v1, 1, 3")
    A("v_lshrrev_b32 v11, 5, v1")
    A("v_xor_b32 v10, v10, v11")
    A("v_lshlrev_b32 v10, 4, v10")
    A("v_lshl_add_u32 v10, v9, 7, v10")
    A("s_lshl_b32 s4, s11, 13")
    A("s_add_u32 s4, s4, %d" % XRING)
    for j in range(4):
        A("v_xor_b32 %s, %d, v10" % (v(vX + j), 32 * j))
        A("v_add_u32 %s, s4, %s" % (v(vX + j), v(vX + j)))
    gemm_regs(A)
    def late_setup():
        A("v_and_b32 v9, 31, v1")
        A("s_lshl_b32 s4, s12, 2")
        A("v_subrev_u32 v9, s4, v9")
        A("v_mov_b32 v10, 0x3f803f80")
        for t in range(4):
            A("v_cmp_eq_u32 vcc, %d, v9" % [0, 1, 2, 8][t])
            A("s_nop 1")
            for d in range(4):
                A("v_cndmask_b32 %s, 0, v10, vcc" % v(SEL + 4 * t + d))
        g2_streams(A)

    if OPT.get("par", 0) and not OPT.get("auxoff"):
        l2, lj = A.newl("Lh"), A.newl("Lh")
        A("s_cmp_eq_u32 s3, 2")
        A("s_cbranch_scc1 %s" % l2)
        A("s_and_b32 s68, s2, 7")
        A("s_mul_i32 s68, s68, 80")
        A("s_lshr_b32 s4, s2, 3")
        A("s_lshl_b32 s4, s4, 1")
        A("s_add_u32 s68, s68, s4")
        A("s_add_u32 s68, s68, s11")
        A("s_mul_i32 s66, s3, %d" % STGSZ)
        A("s_add_u32 s66, s66, %d" % XSLOT(2))
        A("s_cmp_eq_u32 s3, 3")
        A("s_cselect_b32 s66, %d, s66" % WSLOT(4))
        A("s_cselect_b32 s67, 128, 0")
        kgen_setup(A, KB)
        ready(A, lambda A: kgen_issue(A, 68, [2], 40, False, 67))
        late_setup()
        A("s_waitcnt vmcnt(0)")
        A.ts(1)
        kgen_call(A, 40, 46, True)
        kgen_give(A, 66, 3)
        A("s_setprio %d" % OPT.get("pg", 2))
        A.ts(2)
        A("s_branch %s" % lj)
        A.label(l2)
        ready(A)
        late_setup()
        if OPT.get("pkm"):
            lds_wait(A, CTRL + C_KP + 8, "lg", 0, 10, vC, "s10", False, 2)
        A("s_waitcnt vmcnt(0)")
        A.label(lj)
    else:
        ready(A)
        late_setup()
        prog(A, 0)
        A("s_waitcnt vmcnt(0)")

    def W(ks, t):
        return FB + 24 * (ks & 1) + 4 * t

    def X(ks, a):
        return FB + 24 * (ks & 1) + 16 + 4 * a

    def wread(ks, t):
        off, b = WSLOT(ks >> 1) + (ks & 1) * SLOT1 + 64 * t - WADDR[0], vA0
        if WSLOT(ks >> 1) >= WHI:
            off, b = off - (WHI - WADDR[0]), G_vA1
        A("ds_read_b64_tr_b16 %s, %s offset:%d" % (v(W(ks, t), 2), v(b), off))
        lg.issue(("w", ks, t, 0))
        A("ds_read_b64_tr_b16 %s, %s offset:%d" % (v(W(ks, t) + 2, 2), v(b), off + 256))
        lg.issue(("w", ks, t))

    def xread(ks, a):
        A("ds_read_b128 %s, %s offset:%d" % (v(X(ks, a), 4), v(vX + ks % 4), XSLOT(ks >> 2) - XRING + 4096 * a))
        lg.issue(("x", ks, a))

    def reads(ks):
        return [lambda: xread(ks, 0), lambda: wread(ks, 0), lambda: xread(ks, 1), lambda: wread(ks, 1), lambda: wread(ks, 2), lambda: wread(ks, 3)]
    full_wait(A, 0, False)
    A.ts(4)

    def x_csread():
        A("ds_read_b32 v20, %s offset:%d" % (v(vC), C_CSOK))
        lg.issue("cs")

    def x_cscheck():
        lg.wait("cs")
        lds_wait(A, C_CSOK, "lg", 0, 20, vC, "s10", True)
        A("v_lshrrev_b32 v21, 5, v1")
        A("v_lshlrev_b32 v21, 4, v21")
        A("s_lshl_b32 s4, s12, 7")
        A("s_add_u32 s4, s4, %d" % CSUM)
        A("v_add_u32 v21, s4, v21")

    def x_cs(t, m):
        A("ds_read_b128 %s, v21 offset:%d" % (v(CR[t] + 4 * m, 4), 256 * t + 32 * m))
        lg.issue(("cr", t, m))

    def x_stat():
        ok, slow = A.newl("Lst"), A.newl("Lss")
        vm.wait("st")
        A("v_xor_b32 v10, %s, %s" % (NON, v(ST + 1)))
        A("v_xor_b32 v11, %s, %s" % (NON, v(ST + 3)))
        A("v_or_b32 v10, v10, v11")
        A("v_cmp_ne_u32 s[4:5], 0, v10")
        A("s_cmp_eq_u64 s[4:5], 0")
        A("s_cbranch_scc0 %s" % slow)
        A.label(ok)

        def cold():
            A.label(slow)
            poll_flags(A, [(ST, 2, 9, 6, 0), (ST + 2, 2, 9, 6, 256)], [ST + 1, ST + 3], 10, 2)
            A("s_branch %s" % ok)
        A.cold.append(cold)

    def x_const(a):
        A("v_lshlrev_b32 %s, 16, %s" % (v(NM[a]), v(ST + 2 * a)))
        A("v_and_b32 %s, 0xffff0000, %s" % (v(C1[a]), v(ST + 2 * a)))
        A("v_xor_b32 %s, 0x80000000, %s" % (v(NM[a]), v(NM[a])))
        A("v_mul_f32 %s, %s, %s" % (v(NM[a] + 1), v(C1[a]), v(C1[a])))
        A("v_rcp_f32 %s, %s" % (v(C1[a]), v(C1[a])))

    def x_last():
        for a in range(2):
            A("v_mul_f32 %s, %s, %s" % (v(C1[a]), fbits(-LOG2E), v(C1[a])))
        A("s_mul_i32 s9, s8, 192")
        A("s_lshl_b32 s4, s61, 3")
        A("s_add_u32 s9, s9, s4")
        A("s_add_u32 s9, s9, s12")
        A("s_lshl_b32 s9, s9, 10")
        A("s_add_u32 s9, s9, 0x%x" % WS_HF)
    def x_goread():
        A("ds_read_b32 v23, %s offset:%d" % (v(vC), C_GO))
        lg.issue("go")
    extras = [x_csread, x_stat, lambda: x_const(0), lambda: x_const(1), x_cscheck, x_last]
    extras += [(lambda t=t, m=m: x_cs(t, m)) for t in range(3) for m in range(4)]
    extras += [x_goread]
    if OPT.get("g1only"):
        extras = []
    allr = [(ks, i, f) for ks in range(40) for i, f in enumerate(reads(ks))]
    state = {"g": 0, "prog": 0}

    def next_read():
        if state["g"] >= len(allr):
            return False
        ks, i, f = allr[state["g"]]
        state["g"] += 1
        if i == 0 and ks % 2 == 0 and ks > 0:
            full_wait(A, ks // 2, 2)
        f()
        if i == OPT.get("fn", 2) and ks % 2 == 1 and ks + 1 < 40:
            full_read(A, (ks + 1) // 2)
            lg.issue(("f", ks + 1))
        return True

    def try_prog():
        u = state["prog"]
        if u < 20 and state["g"] > 12 * u + 11 and ("w", 2 * u + 1, 3) not in lg.q:
            prog(A, u + 1)
            if OPT.get("pds", 1):
                lg.issue(("p", u))
            else:
                vm.issue(("p", u))
            state["prog"] += 1
    for _ in range(6):
        next_read()
    for ks in range(40):
        if ks == 26:
            A("v_and_b32 v9, 31, v1")
            A("v_lshlrev_b32 v9, 3, v9")
            A("s_lshl_b32 s6, s8, 9")
            A("s_add_u32 s6, s6, 0x%x" % WS_ST)
            A("buffer_load_dwordx2 %s, v9, s[48:51], s6 offen sc1" % v(ST, 2))
            A("buffer_load_dwordx2 %s, v9, s[48:51], s6 offen offset:256 sc1" % v(ST + 2, 2))
            vm.issue("st")
        if ks == OPT.get("pubks", 7) - 1:
            A("ds_read_b32 v20, %s offset:%d" % (v(vC), C_NONCE))
            lg.issue("non")
        if ks == OPT.get("pubks", 7) and not OPT.get("auxoff"):
            sk = A.newl("Lcs")
            lg.wait("non")
            lds_wait(A, C_NONCE, "lg", 0, 20, vC, NON, True)
            A("s_cmp_ge_u32 s60, 10")
            A("s_cbranch_scc1 %s" % sk)
            A("s_cmp_lg_u32 s11, 0")
            A("s_cbranch_scc1 %s" % sk)
            A("v_mov_b32 %s, %s" % (v(CSD + 3), NON))
            A("v_mov_b32 %s, %s" % (v(CSD + 5), NON))
            A("v_lshlrev_b32 v9, 4, v1")
            A("v_lshlrev_b32 v10, 3, v1")
            A("s_mul_i32 s6, s61, 10")
            A("s_add_u32 s6, s6, s60")
            A("s_lshl_b32 s6, s6, 11")
            A("s_add_u32 s6, s6, 0x%x" % WS_CS)
            A("s_sub_u32 exec_lo, s12, 1")
            A("s_not_b32 exec_hi, exec_lo")
            A("buffer_store_dwordx4 %s, v9, s[48:51], s6 offen sc1" % v(CSD, 4))
            A("buffer_store_dwordx2 %s, v10, s[48:51], s6 offen offset:1024 sc1" % v(CSD + 4, 2))
            A("s_mov_b64 exec, -1")
            A.label(sk)
        if OPT.get("fine"):
            if ks in (2, 4, 6, 8, 10, 12):
                A.ts({2: 6, 4: 7, 6: 8, 8: 9, 10: 10, 12: 12}[ks])
        elif ks in (12, 20, 28):
            A.ts(8 + (ks - 12) // 8)
        n = 0
        for t in range(4):
            for a in range(2):
                lg.wait(("w", ks, t))
                lg.wait(("x", ks, a))
                d = ACC + 64 * a + 16 * t
                cin = "0" if ks == 0 else v(d, 16)
                if OPT.get("fake16"):
                    dd = d + 8 * (ks & 1)
                    A("v_mfma_f32_16x16x32_bf16 %s, %s, %s, %s" % (v(dd, 4), v(W(ks, t), 4), v(X(ks, a), 4), v(dd, 4)))
                    mark = len(A.L)
                else:
                    A("v_mfma_f32_32x32x16_bf16 %s, %s, %s, %s" % (v(d, 16), v(W(ks, t), 4), v(X(ks, a), 4), cin))
                try_prog()
                if n == 7 and ks % 2 == 0 and ks + 2 < 40:
                    lg.wait(("f", ks + 2))
                    A("v_readfirstlane_b32 s15, %s" % v(vF))
                if n == 0 and ks % 2 == 1:
                    A("s_mov_b32 s10, s15")
                did = n < 6 and next_read()
                if not did and ks >= OPT.get("epks", 34) and extras:
                    extras.pop(0)()
                if OPT.get("fake16"):
                    pos = mark + 1 if (len(A.L) > mark and A.L[mark].strip().startswith("ds_read")) else len(A.L)
                    A.L.insert(pos, "  v_mfma_f32_16x16x32_bf16 %s, %s, %s, %s" % (v(dd + 4, 4), v(X(ks, a), 4), v(W(ks, t), 4), v(dd + 4, 4)))
                n += 1
            if ks < 4:
                cin = "0" if ks + t == 0 else v(CSD, 16)
                A("v_mfma_f32_32x32x16_bf16 %s, %s, %s, %s" % (v(CSD, 16), v(SEL + 4 * t, 4), v(W(ks, t), 4), cin))
    while extras:
        extras.pop(0)()
    A.ts(5)
    if OPT.get("cnt"):
        A.stamps += [11, 14]
    if OPT.get("g1only"):
        return
    for m in range(4):
        x_cs(3, m)
    T0 = 96
    n = 0
    A("s_nop 3")
    for t in range(4):
        lg.wait(("cr", t, 3))
        for a in range(2):
            ac = ACC + 64 * a + 16 * t
            tmp = T0 + 16 * (n & 1)
            n += 1
            G = [ac, ac + 2, ac + 8, ac + 10]
            U = [ac + 4, ac + 6, ac + 12, ac + 14]
            for i in range(8):
                A("v_pk_fma_f32 %s, %s, %s, %s op_sel_hi:[1,0,1]" % (v(ac + 2 * i, 2), v(CR[t] + 2 * i, 2), v(NM[a], 2), v(ac + 2 * i, 2)))
            for i in range(4):
                A("v_pk_mul_f32 %s, %s, %s op_sel_hi:[1,0]" % (v(tmp + 2 * i, 2), v(G[i], 2), v(C1[a], 2)))
            for i in range(8):
                A("v_exp_f32 %s, %s" % (v(tmp + i), v(tmp + i)))
            for i in range(4):
                A("v_pk_mul_f32 %s, %s, %s" % (v(G[i], 2), v(G[i], 2), v(U[i], 2)))
            for i in range(4):
                A("v_pk_fma_f32 %s, %s, %s, %s op_sel:[0,1,1] op_sel_hi:[1,1,1]" % (v(tmp + 2 * i, 2), v(tmp + 2 * i, 2), v(NM[a], 2), v(NM[a], 2)))
            for i in range(8):
                A("v_rcp_f32 %s, %s" % (v(tmp + i), v(tmp + i)))
            A("s_add_u32 s4, s9, %d" % (96 * 1024 * a + 2048 * t))
            for i in range(4):
                A("v_pk_mul_f32 %s, %s, %s" % (v(G[i], 2), v(G[i], 2), v(tmp + 2 * i, 2)))
            for i in range(4):
                A("v_cvt_pk_bf16_f32 %s, %s, %s" % (v(tmp + 8 + i), v(G[i]), v(G[i] + 1)))
            A("buffer_store_dwordx4 %s, %s, s[48:51], s4 offen sc1" % (v(tmp + 8, 4), v(vXo)))
            if n == 1:
                lg.wait("go")
                lds_wait(A, C_GO, "lg", 0, 23, vC, "s10", True)
            if n <= OPT.get("rearly", 0):
                for k in range(4 * (n - 1), 4 * n):
                    g2_wload(A, G2_RREGS[k], k // 5, k % 5)
    A("v_mov_b32 v10, 1")
    A("ds_write_b32 %s, v10 offset:%d" % (v(vPa), CTRL + C_EPI))
    A.ts(6)
    A("s_lshl_b32 s57, s8, 4")
    A("s_add_u32 s57, s57, s61")
    A("s_lshl_b32 s57, s57, 1")
    A("s_add_u32 s57, s57, s12")
    A("s_lshl_b32 s57, s57, 7")
    A("s_add_u32 s57, s57, 0x%x" % FL_H)


def cmul(A, d, a, f, t, pk=False):
    assert d != a and d != f
    if pk:
        A("v_pk_mul_f32 %s, %s, %s op_sel:[0,0] op_sel_hi:[1,0]" % (v(d, 2), v(a, 2), v(f, 2)))
        A("v_pk_fma_f32 %s, %s, %s, %s op_sel:[1,1,0] op_sel_hi:[0,1,1] neg_lo:[1,0,0]" % (v(d, 2), v(a, 2), v(f, 2), v(d, 2)))
        return
    A("v_mul_f32 %s, %s, %s" % (v(d), v(a), v(f)))
    A("v_mul_f32 %s, %s, %s" % (v(d + 1), v(a + 1), v(f)))
    A("v_fma_f32 %s, -%s, %s, %s" % (v(d), v(a + 1), v(f + 1), v(d)))
    A("v_fmac_f32 %s, %s, %s" % (v(d + 1), v(a), v(f + 1)))


def kgen_issue(A, sch, chunks, R, dsk, sub=None):
    n = len(chunks)
    for i in range(6 * n + 1):
        A("v_mov_b32 %s, 0" % v(R + i))
    A("s_mul_i32 s4, %s, 384" % s(sch))
    if sub:
        A("s_sub_u32 s4, s4, %s" % s(sub))
    A("v_lshlrev_b32 v60, 1, v1")
    A("v_add_u32 v60, s4, v60")
    A("s_lshl_b32 s4, %s, 1" % s(sch))
    A("v_mov_b32 v61, s4")
    A("global_load_short_d16_hi %s, v61, %s" % (v(R + 6 * n), s(P_LDT, 2)))
    for k, c in enumerate(chunks):
        for i, p in enumerate([P_ARE, P_AIM, P_BRE, P_BIM, P_CRE, P_CIM]):
            A("global_load_short_d16_hi %s, v60, %s offset:%d" % (v(R + 6 * k + i), s(p, 2), 128 * c))
    if dsk:
        A("v_mov_b32 v59, 0")
        A("global_load_short_d16_hi v59, v61, %s" % s(P_DSK, 2))


def kgen_call(A, R, ldt, zero):
    B = KB
    DT = B + KB_DT
    A("v_mul_f32 %s, %s, %s" % (v(DT), fbits(LOG2E), v(ldt)))
    A("v_exp_f32 %s, %s" % (v(DT), v(DT)))
    for i in range(6):
        A("v_mov_b32 %s, %s" % (v(B + i), v(R + i)))
    A("v_cvt_pk_bf16_f32 %s, %s, %s" % (v(DT), v(DT), v(DT)))
    A("v_and_b32 %s, 0xffff0000, %s" % (v(DT), v(DT)))
    if zero:
        for i in range(16):
            A("v_mov_b32 %s, 0" % v(B + KB_ACC + i))
    A("s_call_b64 s[34:35], Lkgen")


def kgen_give(A, saddr, sidx):
    A("v_lshlrev_b32 v10, 4, v1")
    A("v_add_u32 v10, %s, v10" % s(saddr))
    A("s_nop 15")
    for q in range(3):
        A("ds_write_b128 v10, %s offset:%d" % (v(KB + KB_ACC + 4 * q, 4), 1024 * q))
    lds_set(A, sidx, C_KP, 1, 10)
    A("s_waitcnt lgkmcnt(0)")


def kgen_take2(A, sidx, saddr, rel):
    KACC = KB + KB_ACC
    A("s_lshl_b32 s4, %s, 2" % s(sidx))
    A("v_mov_b32 v10, s4")
    lds_wait(A, CTRL + C_KP, "lg", 0, 11, 10, "s10", False, 0)
    A("v_lshlrev_b32 v11, 4, v1")
    A("v_add_u32 v11, %s, v11" % s(saddr))
    for q in range(3):
        A("ds_read_b128 %s, v11 offset:%d" % (v(12 + 4 * q, 4), 1024 * q))
    if rel:
        A("v_mov_b32 v11, 0")
        A("ds_write_b32 v10, v11 offset:%d" % (PF + 16))
    A("s_waitcnt lgkmcnt(%d)" % (1 if rel else 0))
    for r in range(12):
        A("v_add_f32 %s, %s, %s" % (v(KACC + r), v(KACC + r), v(12 + r)))


def kgen_take(A):
    KACC = KB + KB_ACC
    A("s_lshl_b32 s4, s12, 2")
    A("v_mov_b32 v10, s4")
    lds_wait(A, CTRL + C_KP, "lg", 0, 11, 10, "s10")
    A("s_mov_b32 s4, %d" % (HSTG + STGSZ))
    A("s_cmp_eq_u32 s12, 0")
    A("s_cselect_b32 s4, s4, %d" % HSTG)
    A("s_add_u32 s5, s69, 8192")
    A("s_cmp_eq_u32 s15, 0")
    A("s_cselect_b32 s4, s5, s4")
    A("v_lshlrev_b32 v11, 4, v1")
    A("v_add_u32 v11, s4, v11")
    for q in range(3):
        A("ds_read_b128 %s, v11 offset:%d" % (v(12 + 4 * q, 4), 1024 * q))
    A("v_mov_b32 v11, 1")
    A("ds_write_b32 v10, v11 offset:%d" % (CTRL + C_KPR - 4))
    A("s_waitcnt lgkmcnt(1)")
    for r in range(12):
        A("v_add_f32 %s, %s, %s" % (v(KACC + r), v(KACC + r), v(12 + r)))


HI = list(range(8)) + [256, 258, 260, 262, 512, 516, 768, 772, 1024, 1280, 1536, 1792, 2048]
EROW = 272


KB, KB_DT, KB_ACC = 64, 6, 134


def kgen_setup(A, B):
    vW, vR, ONE, T = B + 7, B + 8, B + 10, B + 20
    A("s_mov_b32 s4, s66")
    A("v_mul_u32_u24 %s, %d, v1" % (v(vW), ER))
    A("v_add_u32 %s, s4, %s" % (v(vW), v(vW)))
    A("v_bfe_u32 %s, v1, 2, 2" % v(T))
    A("v_lshrrev_b32 %s, 5, v1" % v(T + 1))
    A("v_lshl_add_u32 %s, %s, 3, %s" % (v(T), v(T + 1), v(T)))
    A("v_mul_u32_u24 %s, %d, %s" % (v(vR), ER, v(T)))
    A("v_bfe_u32 %s, v1, 4, 1" % v(T))
    A("v_lshl_add_u32 %s, %s, 5, %s" % (v(vR), v(T), v(vR)))
    A("v_and_b32 %s, 3, v1" % v(T))
    A("v_lshl_add_u32 %s, %s, 3, %s" % (v(vR), v(T), v(vR)))
    A("v_add_u32 %s, s4, %s" % (v(vR), v(vR)))
    A("v_mov_b32 %s, 1.0" % v(ONE))
    A("v_mov_b32 %s, 0" % v(ONE + 1))


def kgen_chunk(A, B, c, pkm, first, mid=None):
    are, aim, bre, bim, cre, cim = [B + i for i in range(6)]
    DT, vW, vR, vP, ONE = B + KB_DT, B + 7, B + 8, B + 9, B + 10
    E1, E8, E256, E16, TA = B + 12, B + 14, B + 16, B + 18, B + 20
    LO = [B + 26, B + 28, B + 30, B + 32]
    Gs, PR, PI, KACC = B + 34, B + 78, B + 106, B + KB_ACC
    FR = B + 34
    G = lambda i: Gs + 2 * i
    A("v_mul_f32 %s, %s, %s" % (v(are), v(DT), v(are)))
    A("v_mul_f32 %s, %s, %s" % (v(aim), v(DT), v(aim)))
    A("v_mul_f32 %s, %s, %s" % (v(are), fbits(LOG2E), v(are)))
    A("v_mul_f32 %s, %s, %s" % (v(aim), fbits(0.5 / math.pi), v(aim)))
    Es = [(E8, 8.0, TA), (E1, 1.0, TA + 2), (E256, 256.0, TA + 4)]
    for (E, l, T) in Es:
        A("v_mul_f32 %s, %s, %s" % (v(T), fbits(l), v(are)))
        A("v_mul_f32 %s, %s, %s" % (v(T + 1), fbits(l), v(aim)))
    for (E, l, T) in Es:
        A("v_fract_f32 %s, %s" % (v(T + 1), v(T + 1)))
    for (E, l, T) in Es:
        A("v_exp_f32 %s, %s" % (v(T), v(T)))
        A("v_cos_f32 %s, %s" % (v(E), v(T + 1)))
        A("v_sin_f32 %s, %s" % (v(E + 1), v(T + 1)))
    A("v_mul_f32 %s, %s, %s" % (v(bre), v(DT), v(bre)))
    A("v_mul_f32 %s, %s, %s" % (v(bim), v(DT), v(bim)))
    for (E, l, T) in Es:
        A("v_mul_f32 %s, %s, %s" % (v(E), v(E), v(T)))
        A("v_mul_f32 %s, %s, %s" % (v(E + 1), v(E + 1), v(T)))
    cmul(A, Gs, cre, bre, TA)
    cmul(A, E16, E8, E8, E16)
    loc = {0: Gs, 24: ONE, 25: E8, 26: E16}
    packed, written = set(), set()

    def flush():
        for p in range(28):
            if p in packed or p == 11:
                continue
            c0, c1 = 2 * p, 2 * p + 1
            if p == 10:
                c1 = c0
            if c0 in loc and c1 in loc:
                n = "-" if p < 12 else ""
                A("v_cvt_pk_bf16_f32 %s, %s, %s" % (v(PR + p), v(loc[c0]), v(loc[c1])))
                A("v_cvt_pk_bf16_f32 %s, %s%s, %s%s" % (v(PI + p), n, v(loc[c0] + 1), n, v(loc[c1] + 1)))
                packed.add(p)

    def wr(old):
        for q in range(7):
            if q not in written and all((p in old or p == 11) for p in range(4 * q, 4 * q + 4)):
                if OPT.get("kx") != 1:
                    A("ds_write_b128 %s, %s offset:%d" % (v(vW), v(PR + 4 * q, 4), 16 * q))
                written.add(q)
    cur = [E16, E8]
    lo_ops = []
    for j in range(3, 32):
        ch = 1 if (j & 1) else 0
        dst = LO[2 * ch + ((j >> 1) & 1)]
        lo_ops.append((dst, cur[ch], E16, 24 + j))
        cur[ch] = dst
    src = {8: 0, 9: 2, 10: 4, 11: 6, 12: 8, 13: 10, 14: 12, 15: 13, 16: 14, 17: 16, 18: 17, 19: 18, 20: 19}
    h1 = [(G(i), G(i - 1), E1, i) for i in range(1, 8)] + [(G(i), G(src[i]), E256, i) for i in [9, 10, 11, 13, 15]]
    h2 = [(G(i), G(src[i]), E256, i) for i in [8, 12, 14, 16, 17, 18, 19, 20]]
    groups = [[lo_ops.pop(0)]]
    while lo_ops:
        groups.append([lo_ops.pop(0), lo_ops.pop(0)])
    for i, g in enumerate(groups):
        if i < len(h1):
            g.append(h1[i])
        if i < len(h2):
            g.append(h2[i])
    for gi, grp in enumerate(groups):
        if gi == 8 and mid:
            mid(A)
        old = set(packed)
        if pkm:
            for (d, a, f, col) in grp:
                A("v_pk_mul_f32 %s, %s, %s op_sel:[0,0] op_sel_hi:[1,0]" % (v(d, 2), v(a, 2), v(f, 2)))
        elif OPT.get("kx") != 2:
            for (d, a, f, col) in grp:
                A("v_mul_f32 %s, %s, %s" % (v(d), v(a), v(f)))
                A("v_mul_f32 %s, %s, %s" % (v(d + 1), v(a + 1), v(f)))
        wr(old)
        flush()
        if pkm:
            for (d, a, f, col) in grp:
                A("v_pk_fma_f32 %s, %s, %s, %s op_sel:[1,1,0] op_sel_hi:[0,1,1] neg_lo:[1,0,0]" % (v(d, 2), v(a, 2), v(f, 2), v(d, 2)))
        elif OPT.get("kx") != 2:
            for (d, a, f, col) in grp:
                A("v_fma_f32 %s, -%s, %s, %s" % (v(d), v(a + 1), v(f + 1), v(d)))
                A("v_fmac_f32 %s, %s, %s" % (v(d + 1), v(a), v(f + 1)))
        for (d, a, f, col) in grp:
            loc[col] = d
    flush()
    wr(packed)
    assert len(written) == 7

    def rd(ks):
        for (r, off) in [(FR + 8 * ks, 0), (FR + 8 * ks + 4, 48)]:
            A("ds_read_b64_tr_b16 %s, %s offset:%d" % (v(r, 2), v(vR), 16 * ER * (ks & 3) + off))
            A("ds_read_b64_tr_b16 %s, %s offset:%d" % (v(r + 2, 2), v(vR), 16 * ER * (ks & 3) + off + 4 * ER))

    def mf(ks):
        cin = "0" if (first and ks == 0) else v(KACC, 16)
        A("v_mfma_f32_32x32x16_bf16 %s, %s, %s, %s" % (v(KACC, 16), v(FR + 8 * ks, 4), v(FR + 8 * ks + 4, 4), cin))
    if OPT.get("kts"):
        A.ts(13)
    if OPT.get("kp", 1):
        A("s_setprio 3")
    for ks in range(4):
        rd(ks)
    for q in range(7):
        if OPT.get("kx") != 1:
            A("ds_write_b128 %s, %s offset:%d" % (v(vW), v(PI + 4 * q, 4), 16 * q))
    A("s_waitcnt lgkmcnt(%d)" % (7 if OPT.get("kx") != 1 else 0))
    for ks in range(4):
        mf(ks)
        if ks >= 2:
            rd(ks + 2)
    rd(6)
    rd(7)
    for ks in range(4, 8):
        A("s_waitcnt lgkmcnt(%d)" % (4 * (7 - ks)))
        mf(ks)
    if OPT.get("kp", 1):
        A("s_setprio %d" % OPT.get("pa", 0))


def kgen_expand(A, KACC):
    A("v_and_b32 v2, 31, v1")
    A("v_lshrrev_b32 v3, 5, v1")
    A("v_lshlrev_b32 v4, 5, v2")
    A("v_lshl_add_u32 v4, v3, 4, v4")
    A("v_add_u32 v4, s66, v4")
    A("v_lshlrev_b32 v5, 4, v2")
    A("v_add_u32 v5, s66, v5")
    A("v_lshlrev_b32 v6, 3, v2")
    A("v_add_u32 v6, s66, v6")
    A("v_lshlrev_b32 v7, 2, v2")
    A("v_add_u32 v7, s66, v7")
    A("s_nop 7")
    A("s_mov_b64 exec, 1")
    A("v_add_f32 %s, %s, v59" % (v(KACC), v(KACC)))
    A("s_mov_b64 exec, -1")
    A("ds_write_b128 v4, %s" % v(KACC, 4))
    A("s_mov_b32 exec_hi, 0")
    A("ds_write_b128 v5, %s offset:%d" % (v(KACC + 4, 4), 256 * 4))
    for r in range(4):
        A("ds_write_b32 v7, %s offset:%d" % (v(KACC + 8 + r), (512 + 32 * r) * 4))
    A("s_mov_b32 exec_lo, 0")
    A("s_mov_b32 exec_hi, -1")
    A("ds_write_b64 v6, %s offset:%d" % (v(KACC + 4, 2), 384 * 4))
    A("ds_write_b64 v6, %s offset:%d" % (v(KACC + 6, 2), 448 * 4))
    A("ds_write_b32 v7, %s offset:%d" % (v(KACC + 8), 640 * 4))
    A("s_mov_b64 exec, -1")
    S0, S1, S2, S3 = 10, 16, 20, 24
    A("v_lshlrev_b32 v2, 3, v1")
    A("v_add_u32 v3, s66, v2")
    A("v_lshlrev_b32 v4, 4, v1")
    A("v_add_u32 v4, s66, v4")
    A("ds_read_b128 %s, v4" % v(S0 + 2, 4))
    A("ds_read_b32 %s, v4 offset:16" % v(S0))
    for (S, b) in [(S1, 256), (S2, 384), (S3, 512)]:
        A("ds_read_b64 %s, v3 offset:%d" % (v(S, 2), 4 * b))
        A("ds_read_b32 %s, v3 offset:%d" % (v(S + 2), 4 * b + 8))
    A("v_add_u32 v2, s69, v2")
    A("v_lshrrev_b32 v3, 4, v1")
    A("v_mul_u32_u24 v3, %d, v3" % KSTR)
    A("v_and_b32 v4, 15, v1")
    A("v_lshl_add_u32 v3, v4, 2, v3")
    A("v_add_u32 v3, s69, v3")
    A("v_sub_u32 v5, 63, v1")
    A("v_lshlrev_b32 v6, 5, v5")
    A("v_add_u32 v6, s69, v6")
    A("v_lshlrev_b32 v7, 4, v5")
    A("v_add_u32 v7, s69, v7")
    A("v_lshlrev_b32 v5, 3, v5")
    A("v_add_u32 v5, s69, v5")
    A("v_mov_b32 v8, 0")
    A("v_mov_b32 v9, 0")
    lds_set(A, 12, C_TRD, 1, 76)
    A("s_waitcnt lgkmcnt(1)")
    O = 96

    def val3(o):
        return S3 + (0 if o <= 4 else 1 if o <= 11 else 2)

    def val2(o):
        return S2 + (0 if o <= 2 else 1 if o <= 5 else 2)
    for d in range(4):
        o0 = O + 12 * d
        for w in range(8):
            A("v_cvt_pk_bf16_f32 %s, %s, %s" % (v(o0 + w), v(val3(d + 15 - 2 * w)), v(val3(d + 14 - 2 * w))))
        for w in range(4):
            A("v_cvt_pk_bf16_f32 %s, %s, %s" % (v(o0 + 8 + w), v(val2(d + 7 - 2 * w)), v(val2(d + 6 - 2 * w))))
    A("v_cvt_pk_bf16_f32 v52, %s, %s" % (v(S2), v(S2)))
    a, b, c = S1, S1 + 1, S1 + 2
    t0, t1, t2, t3, t4 = S0 + 2, S0 + 3, S0 + 4, S0 + 5, S0
    prs = [(c, b), (a, a), (c, c), (b, a), (t3, t2), (t1, t0), (t4, t3), (t2, t1)]
    for i, (x, y) in enumerate(prs):
        A("v_cvt_pk_bf16_f32 %s, %s, %s" % (v(64 + i), v(x), v(y)))
    A("v_cvt_pk_bf16_f32 v72, %s, 0" % v(t0))
    A("v_add_u32 v73, %d, v5" % (2 * KSTR + 3072))
    A("v_add_u32 v74, %d, v5" % (3 * KSTR + 3072))
    A.ts(6)
    if OPT.get("ulate", 16):
        prog_wait(A, OPT.get("ulate", 16), 76, 4)
    u_issue(A)
    if not OPT.get("par", 0):
        lds_wait(A, CTRL + C_KPR, "lg", 0, 76, 80, "s10", False, 2)
    sgl = A.newl("Lxg")
    A("s_cmp_eq_u32 s15, 0")
    A("s_cbranch_scc1 %s" % sgl)
    prog_wait(A, OPT.get("xp", 21), 76, 2)
    A.label(sgl)
    A("ds_write_b64 v2, v[8:9] offset:%d" % AUX_U)
    A("ds_write_b32 v3, v8 offset:4096")
    for d in range(4):
        o0 = O + 12 * d
        A("ds_write_b128 v6, %s offset:%d" % (v(o0, 4), d * KSTR))
        A("ds_write_b128 v6, %s offset:%d" % (v(o0 + 4, 4), d * KSTR + 16))
        A("ds_write_b128 v7, %s offset:%d" % (v(o0 + 8, 4), d * KSTR + 2048))
    A("ds_write_b32 v7, v52 offset:%d" % (2 * KSTR + 2048 + 16))
    A("ds_write_b32 v7, v52 offset:%d" % (3 * KSTR + 2048 + 16))
    for d in range(2):
        A("ds_write_b64 v5, %s offset:%d" % (v(64 + 2 * d, 2), d * KSTR + 3072))
        A("ds_write_b64 v5, %s offset:%d" % (v(68 + 2 * d, 2), d * KSTR + 3584))
    for d in range(2):
        A("ds_write2_b32 %s, %s, %s offset0:1 offset1:2" % (v(73 + d), v(64 + 2 * d), v(65 + 2 * d)))
        A("ds_write2_b32 %s, %s, %s offset0:129 offset1:130" % (v(73 + d), v(68 + 2 * d), v(69 + 2 * d)))
    A("s_mov_b64 exec, 1")
    A("ds_write_b32 v5, v72 offset:%d" % (1 * KSTR + 3584 + 8))
    A("ds_write_b32 v5, v72 offset:%d" % (3 * KSTR + 3584 + 12))
    A("s_mov_b64 exec, -1")


def u_issue(A):
    A("v_mov_b32 v80, %d" % CTRL)
    lds_wait(A, C_GO, "lg", 0, 76, 80, "s10", False, 2)
    A("v_lshrrev_b32 v81, 1, v1")
    A("v_mul_u32_u24 v81, 10240, v81")
    A("v_and_b32 v82, 1, v1")
    A("v_lshl_add_u32 v81, v82, 4, v81")
    A("s_and_b32 s4, s68, -2")
    A("s_lshl_b32 s4, s4, 4")
    A("s_and_b32 s5, s12, 1")
    A("s_mul_i32 s5, s5, %d" % (128 * 10240))
    A("s_add_u32 s4, s4, s5")
    A("s_add_u32 s4, s4, 0x%x" % WS_XT)
    for i in range(4):
        A("buffer_load_dwordx4 %s, v81, s[48:51], s4 offen%s" % (v(232 + 4 * i, 4), LSC))
        if i < 3:
            A("s_add_u32 s4, s4, %d" % (32 * 10240))


def prog_wait(A, val, vt, sleep):
    pl, ok = A.newl("Lpw"), A.newl("Lpo")
    A("v_mov_b32 %s, %d" % (v(vt + 4), CTRL))
    A.label(pl)
    guard(A)
    A("ds_read_b128 %s, %s offset:%d" % (v(vt, 4), v(vt + 4), PF + 16 * val))
    A("s_waitcnt lgkmcnt(0)")
    A("v_or_b32 %s, %s, %s" % (v(vt), v(vt), v(vt + 1)))
    A("v_or3_b32 %s, %s, %s, %s" % (v(vt), v(vt), v(vt + 2), v(vt + 3)))
    A("s_nop 0")
    A("v_readfirstlane_b32 s10, %s" % v(vt))
    A("s_cmp_eq_u32 s10, 0")
    A("s_cbranch_scc1 %s" % ok)
    A("s_sleep %d" % sleep)
    A("s_branch %s" % pl)
    A.label(ok)


def epi_wait(A):
    A("s_lshl_b32 s4, s3, 2")
    A("v_mov_b32 v10, s4")
    lds_wait(A, CTRL + C_EPI - 16, "lg", 0, 11, 10, "s10", False, 2)


CV_ACC = 192


def lds_set(A, off_sreg_mul4, base, val, vt):
    A("s_lshl_b32 s4, %s, 2" % s(off_sreg_mul4))
    A("v_mov_b32 %s, s4" % v(vt))
    A("v_mov_b32 %s, %d" % (v(vt + 1), val))
    A("ds_write_b32 %s, %s offset:%d" % (v(vt), v(vt + 1), CTRL + base))


def u_store(A):
    A("s_xor_b32 s4, s12, 1")
    A("s_lshl_b32 s4, s4, 2")
    A("v_mov_b32 v5, s4")
    lds_wait(A, CTRL + C_TRD, "lg", 0, 6, 5, "s10")
    A("s_and_b32 s5, s12, 1")
    A("s_mul_i32 s4, s5, %d" % (AUXSZ + 2048))
    A("s_add_u32 s4, s4, s69")
    A("v_lshrrev_b32 v5, 1, v1")
    A("v_lshlrev_b32 v5, 4, v5")
    A("v_and_b32 v6, 1, v1")
    A("v_mul_u32_u24 v6, %d, v6" % AUXSZ)
    A("v_sub_u32 v5, v5, v6")
    A("v_add_u32 v5, s4, v5")
    for i in range(4):
        A("s_waitcnt vmcnt(%d)" % (3 - i))
        A("ds_write_b128 v5, %s offset:%d" % (v(232 + 4 * i, 4), AUX_U + 512 + 512 * i))


def krdy_wait(A):
    pl, ok = A.newl("Lkw"), A.newl("Lko")
    A("s_and_b32 s4, s12, 2")
    A("s_lshl_b32 s4, s4, 2")
    A("v_mov_b32 v16, s4")
    A.label(pl)
    guard(A)
    A("ds_read_b64 v[14:15], v16 offset:%d" % (CTRL + C_KRDY))
    A("s_waitcnt lgkmcnt(0)")
    A("v_and_b32 v14, v14, v15")
    A("s_nop 0")
    A("v_readfirstlane_b32 s10, v14")
    A("s_cmp_lg_u32 s10, 0")
    A("s_cbranch_scc1 %s" % ok)
    A("s_sleep 1")
    A("s_branch %s" % pl)
    A.label(ok)


def conv_core(A):
    AF, BF, ACC = 64, 128, CV_ACC
    vK, vU = 2, 3
    A.label("Lconv")
    A("v_and_b32 v6, 15, v1")
    A("v_lshrrev_b32 v7, 4, v1")
    A("v_add_u32 v8, 1, v6")
    A("v_and_b32 v9, 3, v8")
    A("v_mul_u32_u24 %s, %d, v9" % (v(vK), KSTR))
    A("v_lshrrev_b32 v8, 2, v8")
    A("v_lshlrev_b32 v8, 3, v8")
    A("v_sub_u32 %s, %s, v8" % (v(vK), v(vK)))
    A("v_lshl_add_u32 %s, v7, 4, %s" % (v(vK), v(vK)))
    A("s_lshl_b32 s5, s13, 6")
    A("s_sub_u32 s5, s69, s5")
    A("s_add_u32 s4, s5, %d" % (32 + 256))
    A("v_add_u32 %s, s4, %s" % (v(vK), v(vK)))
    A("v_lshlrev_b32 %s, 5, v6" % v(vU))
    A("v_lshl_add_u32 %s, v7, 4, %s" % (v(vU), v(vU)))
    A("v_add_u32 %s, s5, %s" % (v(vU), v(vU)))
    for r in range(32):
        A("v_mov_b32 %s, 0" % v(ACC + r))
    epi_wait(A)
    A("s_setprio %d" % OPT.get("pc", 3))
    A.ts(7)
    top = A.newl("Lcv")
    A.label(top)
    lg = Cnt(A, "lgkmcnt", 15)

    def rdA(ph, p):
        r = AF + 32 * (ph & 1) + 4 * p
        off = 64 * (3 - ph) + 512 * (7 - p)
        A("ds_read_b64 %s, %s offset:%d" % (v(r, 2), v(vK), off))
        lg.issue(("a0", ph, p))
        A("ds_read_b64 %s, %s offset:%d" % (v(r + 2, 2), v(vK), off + 8))
        lg.issue(("a", ph, p))

    def rdB(ph, m):
        r = BF + 32 * (ph & 1) + 4 * m
        A("ds_read_b128 %s, %s offset:%d" % (v(r, 4), v(vU), AUX_U + 480 - 64 * ph + 512 * m))
        lg.issue(("b", ph, m))

    def reads(ph):
        L = []
        for i in range(8):
            L.append((rdA, ph, i))
            L.append((rdB, ph, i))
        return L
    pairs = sorted([(p, m) for p in range(8) for m in range(8) if p + m <= 7], key=lambda x: (max(x), x))
    pend = reads(0)
    for _ in range(8):
        f, a1, a2 = pend.pop(0)
        f(a1, a2)
    for ph in range(4):
        if ph + 1 < 4:
            pend += reads(ph + 1)
        for n, (p, m) in enumerate(pairs):
            while any((f is rdA and a1 == ph and a2 == p) or (f is rdB and a1 == ph and a2 == m) for (f, a1, a2) in pend):
                f, a1, a2 = pend.pop(0)
                f(a1, a2)
            lg.wait(("a", ph, p))
            lg.wait(("b", ph, m))
            q = p + m
            A("v_mfma_f32_16x16x32_bf16 %s, %s, %s, %s" % (v(ACC + 4 * q, 4), v(AF + 32 * (ph & 1) + 4 * p, 4), v(BF + 32 * (ph & 1) + 4 * m, 4), v(ACC + 4 * q, 4)))
            if pend and (n & 1) == 0 and len(lg.q) <= 12:
                f, a1, a2 = pend.pop(0)
                f(a1, a2)
    A("v_subrev_u32 %s, 256, %s" % (v(vK), v(vK)))
    A("v_subrev_u32 %s, 256, %s" % (v(vU), v(vU)))
    A("s_sub_u32 s14, s14, 1")
    A("s_cmp_lg_u32 s14, 0")
    A("s_cbranch_scc1 %s" % top)
    A.ts(10)
    A("s_setpc_b64 s[34:35]")


def conv_out(A):
    ACC = CV_ACC
    A("v_lshlrev_b32 v8, 5, v6")
    A("v_lshl_add_u32 v8, v7, 3, v8")
    A("v_add_u32 v8, s69, v8")
    A("v_lshlrev_b32 v4, 4, v1")
    A("v_add_u32 v5, s69, v4")
    A("s_lshl_b32 s4, s68, 12")
    A("s_add_u32 s4, s4, 0x%x" % WS_AT)
    A("s_nop 4")
    for q in range(8):
        A("v_cvt_pk_bf16_f32 %s, %s, %s" % (v(16 + 2 * q), v(ACC + 4 * q), v(ACC + 4 * q + 1)))
        A("v_cvt_pk_bf16_f32 %s, %s, %s" % (v(17 + 2 * q), v(ACC + 4 * q + 2), v(ACC + 4 * q + 3)))
    for q in range(8):
        A("ds_write_b64 v8, %s offset:%d" % (v(16 + 2 * q, 2), AUX_U + 512 + 512 * q))
    for i in range(4):
        A("ds_read_b128 %s, v5 offset:%d" % (v(32 + 4 * i, 4), AUX_U + 512 + 1024 * i))
    for i in range(4):
        A("s_waitcnt lgkmcnt(%d)" % (3 - i))
        A("buffer_store_dwordx4 %s, v4, s[48:51], s4 offen offset:%d%s" % (v(32 + 4 * i, 4), 1024 * i, SC1))
    A.ts(11)
    A("s_lshl_b32 s6, s68, 7")
    A("s_add_u32 s6, s6, 0x%x" % FL_A)
    A("s_waitcnt vmcnt(0)")
    signal(A, 6, 10)


def conv_helper(A):
    ACC = CV_ACC
    A("s_sub_u32 s12, s3, 6")
    A("s_add_u32 s4, s12, 1")
    A("s_mul_i32 s4, s4, %d" % AUXSZ)
    A("s_sub_u32 s69, %d, s4" % LDS_TOTAL)
    A("s_lshl_b32 s4, s12, 2")
    A("v_mov_b32 v12, s4")
    krdy_wait(A)
    A("s_mov_b32 s13, 4")
    A("s_mov_b32 s14, 1")
    A("s_call_b64 s[34:35], Lconv")
    lds_wait(A, CTRL + C_CRD, "lg", 0, 13, 12, "s10", False, 0)
    A("v_lshlrev_b32 v5, 4, v1")
    A("v_add_u32 v5, s69, v5")
    A("s_nop 4")
    for q in range(8):
        A("ds_write_b128 v5, %s offset:%d" % (v(ACC + 4 * q, 4), 1024 * q))
    A("v_mov_b32 v13, 1")
    A("ds_write_b32 v12, v13 offset:%d" % (CTRL + C_CPT))
    A("s_waitcnt lgkmcnt(0)")


def conv_owner(A):
    ACC = CV_ACC
    solo = A.newl("Lsolo")
    u_store(A)
    lds_set(A, 12, C_KRDY, 1, 12)
    krdy_wait(A)
    A.ts(9)
    A("s_mov_b32 s13, 0")
    A("s_sub_u32 s14, 2, s15")
    A("s_call_b64 s[34:35], Lconv")
    A("s_cmp_eq_u32 s15, 0")
    A("s_cbranch_scc1 %s" % solo)
    A("ds_write_b32 v12, v13 offset:%d" % (CTRL + C_CRD))
    A("v_lshlrev_b32 v5, 4, v1")
    A("v_add_u32 v5, s69, v5")
    lds_wait(A, CTRL + C_CPT, "lg", 0, 14, 12, "s10", False, 0)
    for q in range(8):
        A("ds_read_b128 %s, v5 offset:%d" % (v(64 + 4 * q, 4), 1024 * q))
    for q in range(8):
        A("s_waitcnt lgkmcnt(%d)" % (7 - q))
        for e in range(4):
            A("v_add_f32 %s, %s, %s" % (v(ACC + 4 * q + e), v(ACC + 4 * q + e), v(64 + 4 * q + e)))
    A.label(solo)
    conv_out(A)


def a_fetch(A):
    sk = A.newl("Laf")
    A("s_cmp_eq_u32 s3, 6")
    A("s_cselect_b32 s69, %d, s69" % MAIN)
    A("s_sub_u32 s8, s3, 4")
    A("s_mul_i32 s4, s63, 80")
    A("s_lshl_b32 s5, s8, 5")
    A("s_add_u32 s4, s4, s5")
    A("s_lshl_b32 s6, s4, 12")
    A("s_lshl_b32 s5, s62, 7")
    A("s_add_u32 s6, s6, s5")
    A("s_add_u32 s6, s6, 0x%x" % WS_AT)
    A("v_lshrrev_b32 v2, 3, v1")
    A("v_and_b32 v3, 7, v1")
    A("v_lshlrev_b32 v4, 12, v2")
    A("v_lshl_add_u32 v4, v3, 4, v4")
    A("v_lshlrev_b32 v13, 7, v1")
    A("s_lshl_b32 s9, s4, 7")
    A("s_add_u32 s9, s9, 0x%x" % FL_A)
    A("s_cmp_eq_u32 s3, 6")
    A("s_cselect_b32 exec_lo, 0xffff, -1")
    A("s_mov_b32 exec_hi, 0")
    poll_flags(A, [(14, 1, 13, 9, 0)], [14], 15, OPT.get("asl", 4))
    A("s_mov_b64 exec, -1")
    A.ts(13)
    for i in range(4):
        if i == 2:
            A("s_cmp_eq_u32 s3, 6")
            A("s_cbranch_scc1 %s" % sk)
        A("s_add_u32 m0, s69, %d" % (1024 * i))
        A("s_nop 0")
        A("buffer_load_dwordx4 v4, s[48:51], s6 offen sc1 lds")
        A("s_add_u32 s6, s6, %d" % (8 * 4096))
    A.label(sk)
    A("s_waitcnt vmcnt(0)")


def gemm2(A):
    ACC = 176
    vH, vL, vWo, vC = 12, 16, G_vXo, G_vC
    pool = [r for r in range(24, ACC, 4) if r not in G2_RREGS]
    lg = Cnt(A, "lgkmcnt", 15)
    vm = Cnt(A, "vmcnt", 63)
    Wr, Hr = {(k // 5, k % 5): r for k, r in enumerate(G2_RREGS)}, {}

    def wload(j, ct):
        r = Wr[(j, ct)] = pool.pop(0)
        g2_wload(A, r, j, ct)
        vm.issue(("w", j, ct))

    def hload(j, q):
        r = Hr[(j, q)] = pool.pop(0)
        A("buffer_load_dwordx4 %s, %s, s[48:51], s54 offen%s" % (v(r, 4), v(vH + q), LSC))
        vm.issue(("h", j, q))
        if q == 3 and j < 11:
            A("s_add_u32 s54, s54, 2048")
            A("s_cmp_ge_u32 s54, s56")
            A("s_cselect_b32 s54, s55, s54")
    A("v_lshrrev_b32 v9, 4, v1")
    A("v_and_b32 v10, 15, v1")
    A("v_lshlrev_b32 v10, 4, v10")
    A("v_lshl_add_u32 v10, v9, 9, v10")
    for q in range(4):
        A("s_xor_b32 s4, s3, %d" % q)
        A("s_lshr_b32 s5, s4, 1")
        A("s_mul_i32 s5, s5, %d" % (96 * 1024))
        A("s_and_b32 s4, s4, 1")
        A("s_lshl_b32 s4, s4, 8")
        A("s_add_u32 s4, s4, s5")
        A("v_add_u32 %s, s4, v10" % v(vH + q))

    def area(sd, wreg, jl):
        A("s_mov_b32 %s, %d" % (s(sd), G2SLOT[2 * jl + 1][1]))
        A("s_cmp_lt_u32 %s, 2" % s(wreg))
        A("s_cselect_b32 %s, %s, %d" % (s(sd), s(sd), G2SLOT[2 * jl + 2][1]))
        A("s_bitcmp1_b32 %s, 0" % s(wreg))
        A("s_cselect_b32 s7, 5120, 0")
        A("s_add_u32 %s, %s, s7" % (s(sd), s(sd)))
    for jl in range(NL2):
        area(4, 3, jl)
        A("v_add_u32 %s, s4, %s" % (v(vL + jl), v(vWo)))
    sk = A.newl("Lsg")
    A("s_cmp_ge_u32 s2, 192")
    A("s_cbranch_scc1 %s" % sk)
    A("s_waitcnt vmcnt(0)")
    signal(A, 57, 10)
    A.ts(7)
    for k in range(4 * OPT.get("rearly", 0), 20):
        g2_wload(A, G2_RREGS[k], k // 5, k % 5)
    A.label(sk)
    full_wait(A, 20, False)
    A("v_and_b32 v9, 15, v1")
    A("v_mul_u32_u24 v9, 160, v9")
    A("v_lshrrev_b32 v10, 4, v1")
    A("v_lshl_add_u32 v23, v10, 3, v9")
    A("s_mul_i32 s4, s3, %d" % (16 * 160))
    A("s_add_u32 s4, s4, %d" % G2SLOT[0][1])
    A("v_add_u32 v9, s4, v23")
    for ct in range(5):
        A("ds_read_b64 %s, v9 offset:%d" % (v(ACC + 20 + 2 * ct, 2), 32 * ct))
    A("s_waitcnt lgkmcnt(0)")
    for i in range(10):
        A("v_lshlrev_b32 %s, 16, %s" % (v(ACC + 2 * i), v(ACC + 20 + i)))
        A("v_and_b32 %s, 0xffff0000, %s" % (v(ACC + 2 * i + 1), v(ACC + 20 + i)))
    A("v_lshlrev_b32 v9, 7, v1")
    A("s_lshl_b32 s6, s62, 12")
    A("s_mul_i32 s4, s3, 768")
    A("s_add_u32 s6, s6, s4")
    A("s_add_u32 s6, s6, 0x%x" % FL_H)
    setexec(A, 0x3f)
    poll_flags(A, [(21, 1, 9, 6, 0)], [21], 10, OPT.get("sl", 2))
    A("s_mov_b64 exec, -1")
    vm.q = []
    A.ts(12)
    queue = []
    for j in range(12):
        queue += [(hload, j, q) for q in range(4)]
        if j >= NR2 + NL2:
            queue += [(wload, j, ct) for ct in range(5)]

    def fill(n):
        while queue and pool and n > 0:
            f, j, x = queue.pop(0)
            f(j, x)
            n -= 1
    fill(OPT.get("h0", 99))
    XA = {1: 58, 2: 59, 3: 15}
    for q in range(1, 4):
        A("s_xor_b32 s5, s3, %d" % q)
        area(XA[q], 5, q)
    A("s_lshl_b32 s6, s3, 5")
    A("s_add_u32 s6, s6, %d" % MAIN)
    A("v_lshrrev_b32 v9, 2, v1")
    A("v_lshlrev_b32 v9, 7, v9")
    A("v_and_b32 v10, 3, v1")
    A("v_lshl_add_u32 v9, v10, 3, v9")
    A("v_add_u32 v21, s6, v9")
    srd(A, 64, P_OUT, 2048 * 640 * 2)
    area(4, 3, 0)
    A("v_add_u32 v23, s4, v23")
    GO = [2, 3, 6]
    for p in range(3):
        A("v_add_u32 v9, %d, v1" % (64 * p))
        A("v_mul_u32_u24 v10, 52429, v9")
        A("v_lshrrev_b32 v10, 19, v10")
        A("v_mul_u32_u24 v10, %d, v10" % (1280 - 160))
        A("v_lshl_add_u32 %s, v9, 4, v10" % v(GO[p]))
    A("s_lshl_b32 s14, s62, 2")
    A("s_add_u32 s14, s14, s3")
    A("s_mul_i32 s14, s14, %d" % (16 * 1280))
    A("s_mul_i32 s7, s63, 160")
    A("s_add_u32 s14, s14, s7")
    LB = [Wr[(NR2 - 1, ct)] for ct in range(5)]

    def lread(j, ct):
        Wr[(j, ct)] = LB[ct]
        A("ds_read_b128 %s, %s offset:%d" % (v(LB[ct], 4), v(vL + j - NR2), 1024 * ct))
        lg.issue(("w", j, ct))
    for j in range(11):
        for ct in range(5):
            lg.wait(("w", j, ct))
            vm.wait(("w", j, ct))
            for q in range(4):
                vm.wait(("h", j, q))
                if j == 0 and ct == 0 and q == 0:
                    A.ts(13)
                if OPT.get("g2ts") and j in (3, 6, 9) and ct == 0 and q == 3:
                    A.ts(7 + j // 3)
                d = ACC + 20 * q + 4 * ct
                cin = "0" if (j == 0 and q) else v(d, 4)
                A("v_mfma_f32_16x16x32_bf16 %s, %s, %s, %s" % (v(d, 4), v(Wr[(j, ct)], 4), v(Hr[(j, q)], 4), cin))
                if ct == 4:
                    pool.append(Hr[(j, q)])
                if (q & 1) or OPT.get("hf", 0):
                    fill(1)
            if NR2 - 1 <= j < NR2 + NL2 - 1:
                if ct == 0 and j == NR2 - 1:
                    full_wait(A, 20 + 2 * NL2, False)
                    lg.q = []
                if ct == 0 and j == OPT.get("agj", 4):
                    A("v_mov_b32 v10, 0")
                    A("ds_write_b32 %s, v10 offset:%d" % (v(G_vPa), PF + 16 * 22))
                    lg.issue("p")
                lread(j + 1, ct)
            else:
                pool.append(Wr[(j, ct)])
    fill(99)
    assert not queue
    done = []
    for q in (1, 2, 3, 0):
        vm.wait(("h", 11, q))
        for ct in range(5):
            vm.wait(("w", 11, ct))
            d = ACC + 20 * q + 4 * ct
            A("v_mfma_f32_16x16x32_bf16 %s, %s, %s, %s" % (v(d, 4), v(Wr[(11, ct)], 4), v(Hr[(11, q)], 4), v(d, 4)))
            if q:
                done.append((q, ct))
            if len(done) > 8 or (q == 0 and done):
                qq, cc = done.pop(0)
                A("ds_write_b128 %s, %s offset:%d" % (v(vL + qq), v(ACC + 20 * qq + 4 * cc, 4), 1024 * cc))
    A.ts(14)
    for (qq, cc) in done:
        A("ds_write_b128 %s, %s offset:%d" % (v(vL + qq), v(ACC + 20 * qq + 4 * cc, 4), 1024 * cc))
    for q in range(1, 4):
        A("v_add_u32 %s, %s, %s" % (v(vH + q), s(XA[q]), v(vWo)))
    A("v_add_u32 %s, %d, v21" % (v(vH), AUX0 - MAIN))
    A("s_waitcnt lgkmcnt(0)")
    A("s_barrier")
    R = 96
    lg.q = []
    for ct in range(5):
        if ct < 4:
            A("ds_read_b64_tr_b16 %s, %s offset:%d" % (v(R + 16 * ct + 2, 2), v(vH), (1 - (ct >> 1)) * AUXSZ + 2048 * (ct & 1)))
        else:
            A("ds_read_b64_tr_b16 %s, v21" % v(R + 16 * ct + 2, 2))
        lg.issue((ct, 0))
        for q in range(1, 4):
            A("ds_read_b128 %s, %s offset:%d" % (v(R + 16 * ct + 4 * q, 4), v(vH + q), 1024 * ct))
            lg.issue((ct, q))
    for ct in range(5):
        lg.wait((ct, 3))
        d, r = ACC + 4 * ct, R + 16 * ct
        A("v_lshlrev_b32 %s, 16, %s" % (v(r), v(r + 2)))
        A("v_and_b32 %s, 0xffff0000, %s" % (v(r + 1), v(r + 2)))
        A("v_lshlrev_b32 %s, 16, %s" % (v(r + 2), v(r + 3)))
        A("v_and_b32 %s, 0xffff0000, %s" % (v(r + 3), v(r + 3)))
        for h in (0, 2):
            A("v_pk_add_f32 %s, %s, %s" % (v(d + h, 2), v(d + h, 2), v(r + 4 + h, 2)))
            A("v_pk_add_f32 %s, %s, %s" % (v(r + 8 + h, 2), v(r + 8 + h, 2), v(r + 12 + h, 2)))
        for h in (0, 2):
            A("v_pk_add_f32 %s, %s, %s" % (v(d + h, 2), v(d + h, 2), v(r + h, 2)))
        for h in (0, 2):
            A("v_pk_add_f32 %s, %s, %s" % (v(d + h, 2), v(d + h, 2), v(r + 8 + h, 2)))
        A("v_cvt_pk_bf16_f32 %s, %s, %s" % (v(64 + 2 * ct), v(d), v(d + 1)))
        A("v_cvt_pk_bf16_f32 %s, %s, %s" % (v(65 + 2 * ct), v(d + 2), v(d + 3)))
        A("ds_write_b64 v23, %s offset:%d" % (v(64 + 2 * ct, 2), 32 * ct))
        lg.issue(("o", ct))
    for p in range(3):
        A("ds_read_b128 %s, %s offset:%d" % (v(80 + 4 * p, 4), v(vL), 1024 * p))
    for p in range(3):
        A("s_waitcnt lgkmcnt(%d)" % (2 - p))
        if p == 2:
            A("s_mov_b32 exec_hi, 0")
        A("buffer_store_dwordx4 %s, %s, s[64:67], s14 offen" % (v(80 + 4 * p, 4), v(GO[p])))
    A("s_mov_b64 exec, -1")
    A.ts(15)


def aux_ids(A):
    A("s_sub_u32 s12, s3, 4")
    A("s_lshr_b32 s5, s2, 3")
    A("s_lshl_b32 s6, s5, 1")
    A("s_lshl_b32 s7, s5, 2")
    A("s_sub_u32 s7, s7, 48")
    A("s_cmp_lt_u32 s5, 24")
    A("s_cselect_b32 s6, s6, s7")
    A("s_cselect_b32 s15, 1, 0")
    A("s_and_b32 s68, s2, 7")
    A("s_mul_i32 s68, s68, 80")
    A("s_add_u32 s68, s68, s6")
    A("s_add_u32 s68, s68, s12")
    A("s_add_u32 s4, s12, 1")
    A("s_mul_i32 s4, s4, %d" % AUXSZ)
    A("s_sub_u32 s69, %d, s4" % LDS_TOTAL)
    A("s_cmp_eq_u32 s12, 0")
    A("s_cselect_b32 s66, %d, s69" % (LDS_TOTAL - STGSZ))


def kdesc(name):
    return """.amdhsa_kernel %s
  .amdhsa_next_free_vgpr 256
  .amdhsa_next_free_sgpr 102
  .amdhsa_accum_offset 256
  .amdhsa_group_segment_fixed_size 0
  .amdhsa_kernarg_size 128
  .amdhsa_user_sgpr_count 2
  .amdhsa_user_sgpr_kernarg_segment_ptr 1
  .amdhsa_system_sgpr_workgroup_id_x 1
.end_amdhsa_kernel
""" % name


def build_fused():
    A = Asm()
    name = NAME + "_kernel"
    prologue(A, name, 0)
    st0 = list(A.stamps)
    lch, lload, lS, lg2, ljob, lfetch = [A.newl(x) for x in ["Lch", "Lload", "LS", "Lg2", "Ljob", "Lfetch"]]
    A("s_cmp_ge_u32 s2, 192")
    A("s_cbranch_scc1 %s" % lS)
    A("s_cmp_eq_u32 s3, 7")
    A("s_cbranch_scc1 %s" % lload)
    A("s_cmp_eq_u32 s3, 6")
    A("s_cbranch_scc1 %s" % ljob)
    A("s_cmp_ge_u32 s3, 4")
    A("s_cbranch_scc1 %s" % lch)
    A("s_setprio %d" % OPT.get("pg", 2))
    gemm1(A)
    if OPT.get("g1only"):
        if OPT.get("kts"):
            A.stamps += [13, 15]
        A.end()
    A.label(lg2)
    A.stamps = sorted(set(A.stamps + [1, 2, 3])) if OPT["ts"] else []
    gemm2(A)
    A.end()
    A.label(lS)
    A.stamps = list(st0)
    A("s_cmp_ge_u32 s3, 4")
    A("s_cbranch_scc1 %s" % lch)
    A("s_setprio 2")
    s_phase0(A)
    if OPT.get("g1only"):
        A.end()
    A.label("Ls_join")
    g2_streams(A)
    lds_wait(A, C_GO, "lg", 0, 10, G_vC, "s10", False, 4)
    for k, r in enumerate(G2_RREGS):
        g2_wload(A, r, k // 5, k % 5)
    A("s_branch %s" % lg2)
    A.flush_cold()
    A.label(lload)
    A.stamps = list(st0)
    A("s_setprio %d" % OPT.get("pl", 1))
    loader1_setup(A)
    if OPT.get("cnt"):
        A.stamps += [11, 14]
    loader_run(A, 0, NB1 if OPT.get("g1only") else NB1 + 2 * NL2 + 1)
    A.label("Lload_end")
    A.ts(4)
    if not OPT.get("g1only"):
        le = A.newl("Lle")
        A("s_cmp_ge_u32 s2, 192")
        A("s_cbranch_scc1 %s" % le)
        conv_helper(A)
        A.label(le)
        A.stamps = sorted(set(A.stamps + [1, 5, 6, 7, 8, 9, 10, 11, 12])) if OPT["ts"] else []
    A("s_waitcnt vmcnt(0) lgkmcnt(0)")
    A.end()
    A.label(ljob)
    A.stamps = list(st0)
    A("s_and_b32 s68, s2, 7")
    A("s_mul_i32 s68, s68, 80")
    A("s_lshr_b32 s4, s2, 3")
    A("s_lshl_b32 s4, s4, 1")
    A("s_add_u32 s68, s68, s4")
    if OPT.get("par", 0):
        A("s_mov_b32 s66, %d" % HSTG)
        kgen_setup(A, KB)
        A("s_setprio 2")
        ready(A, lambda A: kgen_issue(A, 68, [1], 40, False))
        A("s_waitcnt vmcnt(0)")
        A.ts(1)
        if not OPT.get("auxoff"):
            A("v_mov_b32 v4, 0")
            A("global_load_dword v4, v4, %s sc1" % s(P_DBG, 2))
            kgen_call(A, 40, 46, True)
            A("s_mov_b32 s8, 2")
            kgen_give(A, 66, 8)
            nonce_fetch(A, 4, True)
    else:
        A("s_add_u32 s67, s68, 1")
        A("s_mov_b32 s66, %d" % HSTG)
        kgen_setup(A, KB)

        def early6(A):
            kgen_issue(A, 68, [2], 40, False)
            kgen_issue(A, 67, [2], 48, False)
        A("s_setprio 2")
        ready(A, early6)
        A("s_waitcnt vmcnt(7)")
        A("s_setprio %d" % OPT.get("pa", 0))
        A.ts(1)
        if not OPT.get("auxoff"):
            A("v_mov_b32 v4, 0")
            A("global_load_dword v4, v4, %s sc1" % s(P_DBG, 2))
            kgen_call(A, 40, 46, True)
            A("s_mov_b32 s7, %d" % (HSTG + STGSZ))
            A("s_mov_b32 s8, 0")
            kgen_give(A, 7, 8)
            nonce_fetch(A, 4, True)
            kgen_call(A, 48, 54, True)
            A("s_mov_b32 s7, %d" % HSTG)
            A("s_mov_b32 s8, 1")
            kgen_give(A, 7, 8)
    A.ts(5)
    if OPT.get("g1only"):
        A.end()
    prog_wait(A, OPT.get("jp1", 9), 12, 8)
    colsum_gather(A)
    A.ts(3)
    poll_all(A, 2, FL_X, C_GO)
    A.ts(2)
    if OPT.get("sdel", 0):
        sk = A.newl("Lh")
        A("s_cmp_ge_u32 s2, 64")
        A("s_cbranch_scc1 %s" % sk)
        prog_wait(A, OPT.get("sdp", 18), 12, 4)
        A("s_lshl_b32 s6, s2, 7")
        A("s_add_u32 s6, s6, 0x%x" % FL_G)
        signal(A, 6, 10)
        A.label(sk)
    if OPT.get("park", 0):
        park(A)
    conv_helper(A)
    A("s_branch %s" % lfetch)
    A.flush_cold()
    A.label(lch)
    A.stamps = list(st0)
    ln = A.newl("Lnn")
    B = 64
    aux_ids(A)
    kgen_setup(A, B)
    l7 = A.newl("L7")
    A("s_cmp_lg_u32 s3, 7")
    A("s_cbranch_scc1 %s" % l7)
    flg_init(A)
    A.label(l7)

    def early(A):
        A("s_cmp_lg_u32 s68, 0")
        A("s_cbranch_scc1 %s" % ln)
        A("s_memrealtime s[4:5]")
        A("s_waitcnt lgkmcnt(0)")
        A("s_or_b32 s4, s4, 1")
        A("v_mov_b32 v2, 0")
        A("v_mov_b32 v3, s4")
        A("s_mov_b64 exec, 1")
        A("global_store_dword v2, v3, %s sc1" % s(P_DBG, 2))
        A("s_mov_b64 exec, -1")
        A.label(ln)
        kgen_issue(A, 68, [0, 1], 40, True)
    A("s_setprio 2")
    ready(A, early)
    if OPT.get("auxoff"):
        A("s_endpgm")
    A("s_waitcnt vmcnt(0)")
    A.ts(1)
    if OPT.get("par", 0):
        lp = A.newl("Lp")
        A("s_cmp_lg_u32 s15, 0")
        A("s_cbranch_scc1 %s" % lp)
        A("s_setprio 0")
        A.label(lp)
        kgen_call(A, 40, 52, True)
        lp, lq = A.newl("Lp"), A.newl("Lq")
        A("s_cmp_lg_u32 s15, 0")
        A("s_cbranch_scc1 %s" % lp)
        kgen_call(A, 46, 52, False)
        A("s_add_u32 s7, s69, 8192")
        kgen_take2(A, 12, 7, False)
        A("s_branch %s" % lq)
        A.label(lp)
        A("s_setprio 2")
        A("s_mul_i32 s7, s12, %d" % STGSZ)
        A("s_add_u32 s7, s7, %d" % XSLOT(2))
        kgen_take2(A, 12, 7, True)
        A("s_add_u32 s8, s12, 2")
        A("s_mov_b32 s7, %d" % HSTG)
        A("s_cmp_eq_u32 s12, 0")
        A("s_cselect_b32 s7, s7, %d" % WSLOT(4))
        kgen_take2(A, 8, 7, True)
        A("s_setprio 0")
        A.label(lq)
    else:
        A("s_setprio %d" % OPT.get("pa", 0))
        kgen_call(A, 40, 52, True)
        kgen_call(A, 46, 52, False)
    A.ts(5)
    nonce_lds(A, 4)
    if not OPT.get("par", 0):
        kgen_take(A)
    if OPT.get("g1only"):
        A.ts(6)
        A.end()
    kgen_expand(A, B + KB_ACC)
    A.ts(8)
    conv_owner(A)
    A.ts(12)
    A("s_cmp_lt_u32 s3, 6")
    A("s_cbranch_scc1 %s" % lfetch)
    lds_set(A, 12, PF + 16 * 20, 0, 12)
    A("ds_write_b32 v12, v13 offset:%d" % (PF + 16 * 21))
    A("s_cmp_eq_u32 s3, 6")
    A("s_cbranch_scc1 %s" % lfetch)
    loader_regs(A)
    loader2_setup(A, SPLIT2 // 2)
    lds_wait(A, FLG + 4 * (20 + SPLIT2 - 1), "eq", 0, 38, LV_C, "s4")
    A("s_branch Lload_g2b")
    A.label(lfetch)
    A("s_setprio %d" % OPT.get("pf", 0))
    lgq = A.newl("Lgq")
    if OPT.get("agate", 1) == 0:
        A("s_cmp_lt_u32 s2, 192")
        A("s_cbranch_scc1 %s" % lgq)
    prog_wait(A, 22, 12, 4)
    A.label(lgq)
    prog_wait(A, 21, 12, 4)
    A.stamps = sorted(set(A.stamps + [1, 2, 3, 5, 7, 10])) if OPT["ts"] else []
    a_fetch(A)
    A.ts(14)
    A.end()
    A.label("Lkgen")
    kgen_chunk(A, KB, 0, OPT.get("pkm", 0), False)
    if OPT.get("kts"):
        A.ts(15)
    A("s_setpc_b64 s[34:35]")
    if not OPT.get("g1only"):
        conv_core(A)
        A.flush_cold()
    else:
        A.label("Lconv")
        A.label("Lload_g2")
        A.label("Lload_g2b")
        A("s_endpgm")
    hdr = "; @launch grid=(256,1,1) block=(512,1,1) lds=%d\n" % LDS_TOTAL
    return hdr, A, [name]


def main():
    hdr, A, names = build_fused()
    out = "; generated by gen.py (hand-written generator)\n" + hdr
    out += '.amdgcn_target "amdgcn-amd-amdhsa--gfx950"\n.text\n'
    out += "\n".join(A.L) + "\nLcode_end:\n"
    out += '.section .rodata,"a"\n'
    for n in names:
        out += ".p2align 6\n" + kdesc(n)
    open(sys.argv[1], "w").write(out)


main()
```

```python
import sys, math, struct

NAME = "parallel_sum__ssm_conv_s4__swiglu_ffn__prompt"
OPT = dict(ts=False)
for a in sys.argv[2:]:
    k, _, v = a.partition("=")
    OPT[k] = int(v) if v else True

WS_ST = 0x000000
WS_CS = 0x010000
WS_XT = 0x280000
WS_HF = 0x500000
WS_AT = 0xB00000
WS_FL = 0xD80000
WS_TS = 0xE00000
WS_WD = 0x1000000
WS_SIZE = 0x1200000
FL_X = WS_FL
FL_W = WS_FL + 0x4000
FL_H = WS_FL + 0x10000
FL_A = WS_FL + 0x40000

WP = 1088
UPOFF = 4 * WP + 16
SLOT1 = 8 * WP + 32
U1 = 2 * SLOT1
U2 = 10240
CTRL = 0
C_NONCE, C_PROG, C_EPI, C_CSOK, C_CNT, C_GO, C_KRDY, C_CRD, C_CPT, C_CNT2, C_GOW = 4, 16, 32, 60, 80, 84, 64, 88, 104, 112, 116
C_TRD = 48
C_KP, C_KPR = 16, 124
CSUM = CTRL + 128
FLG = CSUM + 1024 + 256
PF = FLG + 256
MAIN = PF + 384
KSTR = 4160
AUX_U = 4 * KSTR
AUXSZ = AUX_U + 4608
LDS_TOTAL = 163840
AUX0 = LDS_TOTAL - 2 * AUXSZ
STGSZ = 8192
LNROW = 1312
NW, NXC = OPT.get("nw", 5), 3
XRING = MAIN
WADDR = [XRING + NXC * 16384 + i * U1 for i in range(4)] + [AUX0 + STGSZ]
WHI = WADDR[3]
assert WADDR[3] + U1 <= AUX0 and WADDR[4] + U1 <= LDS_TOTAL - STGSZ
HSTG = WADDR[4] + U1
assert HSTG + STGSZ <= LDS_TOTAL - STGSZ and HSTG >= AUX0 + AUXSZ
FL_G = WS_FL + 0x6000
CONV_PROG = 16
SPRIV = 19072


def WSLOT(u):
    return WADDR[(u + 4) % NW]


def XSLOT(c):
    return XRING + ((9 - c) % NXC) * 16384


NL2 = 5
NS2 = 2 * NL2 + 1
NR2 = 4


def _g2slots():
    areas = [(WSLOT(u), WSLOT(u) + U1, u + 1) for u in range(20 - NW, 20)]
    areas += [(XSLOT(c), XSLOT(c) + 16384, 2 * c + 2) for c in range(10 - NXC, 10)]
    out = []
    for i in range(NS2):
        lo = AUX0 - (i + 1) * U2
        assert lo >= MAIN + 2048
        need = max(n for (a, b, n) in areas if a < lo + U2 and lo < b)
        if lo + U2 > LDS_TOTAL - 4 * AUXSZ:
            need = max(need, 19)
        out.append((need, lo))
    return sorted(out)


G2SLOT = _g2slots()

LOG2E = 1.4426950408889634
BUD, NON = "s0", "s1"

def fbits(x):
    return "0x%08x" % struct.unpack("<I", struct.pack("<f", x))[0]


def v(i, n=1):
    return "v%d" % i if n == 1 else "v[%d:%d]" % (i, i + n - 1)


def s(i, n=1):
    return "s%d" % i if n == 1 else "s[%d:%d]" % (i, i + n - 1)


class Cnt:
    def __init__(self, A, name, mx):
        self.A, self.name, self.mx, self.q = A, name, mx, []

    def issue(self, tag):
        self.q.append(tag)

    def wait(self, tag):
        if tag not in self.q:
            return
        i = len(self.q) - 1 - self.q[::-1].index(tag)
        n = len(self.q) - 1 - i
        self.A("s_waitcnt %s(%d)" % (self.name, min(n, self.mx)))
        self.q = self.q[i + 1:]

    def drain(self):
        self.A("s_waitcnt %s(0)" % self.name)
        self.q = []


class Asm:
    def __init__(self):
        self.L = []
        self.nl = 0
        self.stamps = []
        self.cold = []

    def flush_cold(self):
        for f in self.cold:
            f()
        self.cold = []

    def __call__(self, t):
        self.L.append("  " + t)

    def label(self, l):
        self.L.append(l + ":")

    def newl(self, p="L"):
        self.nl += 1
        return "%s_%d" % (p, self.nl)

    def c(self, t):
        self.L.append("  ; " + t)

    def ts(self, slot):
        if OPT["ts"]:
            self("%s %s" % ("s_memtime" if OPT.get("cyc") else "s_memrealtime", s(70 + 2 * slot, 2)))
            self.stamps.append(slot)

    def end(self):
        if OPT.get("probe") is not None and self.stamps:
            if OPT["probe"] in self.stamps:
                sk, lp = self.newl("Lpr"), self.newl("Lpl")
                self("s_waitcnt lgkmcnt(0)")
                self("s_cmp_lg_u32 s2, %d" % OPT.get("probeg", 17))
                self("s_cbranch_scc1 %s" % sk)
                self("s_cmp_lg_u32 s3, %d" % OPT.get("probew", 0))
                self("s_cbranch_scc1 %s" % sk)
                self("s_sub_u32 s4, %s, s70" % s(70 + 2 * OPT["probe"]))
                self("s_lshl_b32 s4, s4, 2")
                self("s_add_u32 s4, s4, 3000")
                self.label(lp)
                self("s_memrealtime s[6:7]")
                self("s_waitcnt lgkmcnt(0)")
                self("s_sub_u32 s6, s6, s70")
                self("s_cmp_lt_u32 s6, s4")
                self("s_cbranch_scc1 %s" % lp)
                self.label(sk)
        elif OPT.get("dbgts") is not None and self.stamps:
            sk = self.newl("Ldt")
            self("s_waitcnt lgkmcnt(0)")
            self("s_cmp_lg_u32 s2, %d" % OPT.get("dbgwg", 17))
            self("s_cbranch_scc1 %s" % sk)
            self("s_cmp_lg_u32 s3, %d" % OPT["dbgts"])
            self("s_cbranch_scc1 %s" % sk)
            self("s_mov_b64 exec, 1")
            self("v_mov_b32 v2, 0")
            for sl in self.stamps:
                if sl == 0:
                    continue
                self("s_sub_u32 s4, %s, s70" % s(70 + 2 * sl))
                self("v_mov_b32 v0, s4")
                self("global_store_dword v2, v0, %s offset:%d" % (s(44, 2), 4 * sl))
            self.label(sk)
        elif OPT["ts"] and self.stamps:
            self("s_waitcnt lgkmcnt(0)")
            self("s_mov_b64 exec, 1")
            self("s_lshl_b32 s4, s2, 3")
            self("s_add_u32 s4, s4, s3")
            self("s_lshl_b32 s4, s4, 7")
            self("s_add_u32 s4, s4, 0x%x" % WS_TS)
            self("v_mov_b32 v2, 0")
            for sl in self.stamps:
                self("v_mov_b32 v0, %s" % s(70 + 2 * sl))
                self("v_mov_b32 v1, %s" % s(71 + 2 * sl))
                self("buffer_store_dwordx2 v[0:1], v2, s[48:51], s4 offen offset:%d" % (8 * sl))
                self("s_nop 1")
        self("s_endpgm")
        self.flush_cold()


P_X, P_ARE, P_AIM, P_BRE, P_BIM, P_CRE, P_CIM, P_LDT, P_DSK, P_BX, P_WG, P_WU, P_WD, P_OUT, P_DBG, P_WS = [16 + 2 * i for i in range(16)]
SC1 = " sc1"
LSC = " sc1"


def srd(A, d, ptr, size):
    if ptr == P_WS and OPT.get("wsoff"):
        A("s_add_u32 %s, %s, 0x%x" % (s(d), s(ptr), OPT["wsoff"] << 20))
        A("s_addc_u32 %s, %s, 0" % (s(d + 1), s(ptr + 1)))
    else:
        A("s_mov_b32 %s, %s" % (s(d), s(ptr)))
        A("s_mov_b32 %s, %s" % (s(d + 1), s(ptr + 1)))
    A("s_mov_b32 %s, 0x%x" % (s(d + 2), size))
    A("s_mov_b32 %s, 0x20000" % s(d + 3))


def prologue(A, name, tsslot):
    A.L.append(".globl %s" % name)
    A.L.append(".p2align 8")
    A.L.append(".type %s,@function" % name)
    A.label(name)
    A.stamps = []
    ok = A.newl("Lgo")
    A("s_cmp_lt_u32 s2, 256")
    A("s_cbranch_scc1 %s" % ok)
    A.exit = A.newl("Lexit")
    A.label(A.exit)
    A("s_endpgm")
    A.label(ok)
    A("s_load_dwordx16 s[16:31], s[0:1], 0")
    A("s_load_dwordx16 s[32:47], s[0:1], 64")
    if OPT["ts"]:
        for i in range(16):
            A("s_mov_b64 %s, 0" % s(70 + 2 * i, 2))
    A.ts(tsslot)
    A("v_lshrrev_b32 v2, 6, v0")
    A("v_and_b32 v1, 63, v0")
    A("v_readfirstlane_b32 s3, v2")
    A("v_and_b32 v2, 31, v0")
    A("v_lshlrev_b32 v2, 2, v2")
    A("v_add_u32 v2, %d, v2" % CTRL)
    A("v_mov_b32 v3, 0")
    A("ds_write_b32 v2, v3")
    if OPT.get("cpf", 1):
        l2 = A.newl("Lw")
        A("s_cmp_lg_u32 s3, 2")
        A("s_cbranch_scc1 %s" % l2)
        code_prefetch(A)
        A.label(l2)
    map_g1(A)
    map_g2(A)


def ready(A, early=None):
    A("s_waitcnt lgkmcnt(0)")
    if early:
        early(A)
    A("s_barrier")
    A("s_mov_b32 %s, 0x40000" % BUD)
    srd(A, 48, P_WS, WS_SIZE)


def tlb_warm(A, vt):
    ptrs = [P_X, P_WG, P_WU, P_ARE, P_AIM, P_BRE, P_BIM, P_CRE, P_CIM, P_LDT, P_DSK, P_WD, P_DBG, P_WS]
    A("v_mov_b32 %s, %s" % (v(vt), s(P_X)))
    A("v_mov_b32 %s, %s" % (v(vt + 1), s(P_X + 1)))
    for i, p in enumerate(ptrs):
        if i:
            A("v_writelane_b32 %s, %s, %d" % (v(vt), s(p), i))
            A("v_writelane_b32 %s, %s, %d" % (v(vt + 1), s(p + 1), i))
    A("s_mov_b64 exec, 0x%x" % ((1 << len(ptrs)) - 1))
    A("global_load_dword %s, %s, off" % (v(vt + 2), v(vt, 2)))
    A("s_mov_b64 exec, -1")


def guard(A):
    A("s_sub_u32 %s, %s, 1" % (BUD, BUD))
    A("s_cbranch_scc1 %s" % A.exit)


def map_g1(A):
    A("s_and_b32 s4, s2, 7")
    A("s_lshr_b32 s5, s2, 3")
    A("s_and_b32 s60, s4, 1")
    A("s_lshl_b32 s60, s60, 3")
    A("s_and_b32 s6, s5, 7")
    A("s_add_u32 s60, s60, s6")
    A("s_lshr_b32 s61, s4, 1")
    A("s_mul_i32 s61, s61, 3")
    A("s_lshr_b32 s6, s5, 3")
    A("s_add_u32 s61, s61, s6")


def map_g2(A):
    A("s_lshr_b32 s5, s2, 3")
    A("s_and_b32 s62, s2, 1")
    A("s_lshl_b32 s62, s62, 4")
    if OPT.get("m2", 1) == 0:
        A("s_bfe_u32 s4, s2, 0x20001")
        A("s_lshl_b32 s4, s4, 2")
        A("s_add_u32 s62, s62, s4")
        A("s_and_b32 s6, s5, 3")
        A("s_add_u32 s62, s62, s6")
        A("s_lshr_b32 s63, s5, 2")
    else:
        A("s_bfe_u32 s4, s2, 0x10001")
        A("s_lshl_b32 s4, s4, 3")
        A("s_add_u32 s62, s62, s4")
        A("s_and_b32 s6, s5, 7")
        A("s_add_u32 s62, s62, s6")
        A("s_and_b32 s63, s2, 4")
        A("s_lshr_b32 s6, s5, 3")
        A("s_add_u32 s63, s63, s6")


def lds_wait(A, off, cmp, val, vF, vC, sF, have=False, sleep=1):
    ok, poll = A.newl("Lok"), A.newl("Lpoll")

    def loop():
        A.label(poll)
        guard(A)
        if OPT.get("cnt") and have:
            A("s_add_u32 s92, s92, 1")
        A("ds_read_b32 %s, %s offset:%d" % (v(vF), v(vC), off))
        A("s_waitcnt lgkmcnt(0)")
        A("v_readfirstlane_b32 %s, %s" % (sF, v(vF)))
        A("s_cmp_%s_u32 %s, %s" % (cmp, sF, val))
        A("s_cbranch_scc1 %s" % ok)
        A("s_sleep %d" % sleep)
        A("s_branch %s" % poll)
    if have:
        A("v_readfirstlane_b32 %s, %s" % (sF, v(vF)))
        A("s_cmp_%s_u32 %s, %s" % (cmp, sF, val))
        A("s_cbranch_scc0 %s" % poll)
        A.cold.append(loop)
    else:
        loop()
    A.label(ok)


def nonce_lds(A, vt):
    A("v_mov_b32 %s, %d" % (v(vt + 1), CTRL))
    lds_wait(A, C_NONCE, "lg", 0, vt, vt + 1, NON)


def nonce_fetch(A, vt, issued=False):
    poll, chk = A.newl("Lnp"), A.newl("Lnc")
    if issued:
        A("s_branch %s" % chk)
    A.label(poll)
    guard(A)
    A("v_mov_b32 %s, 0" % v(vt))
    A("global_load_dword %s, %s, %s sc1" % (v(vt), v(vt), s(P_DBG, 2)))
    A.label(chk)
    A("s_waitcnt vmcnt(0)")
    A("v_readfirstlane_b32 %s, %s" % (NON, v(vt)))
    A("s_cmp_lg_u32 %s, 0" % NON)
    A("s_cbranch_scc0 %s" % poll)
    A("v_mov_b32 %s, %d" % (v(vt + 1), CTRL))
    A("ds_write_b32 %s, %s offset:%d" % (v(vt + 1), v(vt), C_NONCE))


def signal(A, soff, vt):
    A("v_mov_b32 %s, 0" % v(vt))
    A("v_mov_b32 %s, %s" % (v(vt + 1), NON))
    A("s_mov_b64 exec, 1")
    A("buffer_store_dword %s, %s, s[48:51], %s offen sc1" % (v(vt + 1), v(vt), s(soff)))
    A("s_mov_b64 exec, -1")


def poll_flags(A, loads, tags, vt, sleep=2):
    top, done = A.newl("Lgp"), A.newl("Lgd")
    A.label(top)
    guard(A)
    for (r, n, vo, so, imm) in loads:
        op = {1: "dword", 2: "dwordx2", 4: "dwordx4"}[n]
        A("buffer_load_%s %s, %s, s[48:51], %s offen offset:%d sc1" % (op, v(r, n), v(vo), s(so), imm))
    A("s_waitcnt vmcnt(0)")
    tag_check(A, tags, vt, done)
    A("s_sleep %d" % sleep)
    A("s_branch %s" % top)
    A.label(done)


def tag_check(A, tags, vt, done):
    A("v_xor_b32 %s, %s, %s" % (v(vt), NON, v(tags[0])))
    for x in tags[1:]:
        A("v_xor_b32 %s, %s, %s" % (v(vt + 1), NON, v(x)))
        A("v_or_b32 %s, %s, %s" % (v(vt), v(vt), v(vt + 1)))
    A("v_cmp_ne_u32 s[4:5], 0, %s" % v(vt))
    A("s_cmp_eq_u64 s[4:5], 0")
    A("s_cbranch_scc1 %s" % done)


def setexec(A, m):
    A("s_mov_b32 exec_lo, 0x%x" % (m & 0xffffffff))
    A("s_mov_b32 exec_hi, 0x%x" % (m >> 32))


def poll_all(A, vt, fl, go, dyn=False, sl=6):
    A("v_lshlrev_b32 %s, 7, v1" % v(vt))
    if dyn:
        A("s_add_u32 s6, s7, 0x%x" % fl)
    else:
        A("s_mov_b32 s6, 0x%x" % fl)
    poll_flags(A, [(vt + 4, 1, vt, 6, 0)], [vt + 4], vt + 1, sl)
    A("v_mov_b32 %s, %s" % (v(vt), "s8" if dyn else "0"))
    A("v_mov_b32 %s, 1" % v(vt + 1))
    A("ds_write_b32 %s, %s offset:%d" % (v(vt), v(vt + 1), go))


LN_X, LN_F, LN_T = 216, 64, 24


def ln_issue(A):
    T = LN_T
    A("v_lshrrev_b32 %s, 3, v1" % v(T))
    A("v_and_b32 %s, 7, v1" % v(T + 1))
    A("v_mul_u32_u24 %s, 1280, %s" % (v(T + 2), v(T)))
    A("v_lshl_add_u32 %s, %s, 4, %s" % (v(T + 2), v(T + 1), v(T + 2)))
    A("s_mul_i32 s4, s9, %d" % (8 * 1280))
    for i in range(10):
        A("buffer_load_dwordx4 %s, %s, s[52:55], s4 offen offset:%d" % (v(LN_X + 4 * i, 4), v(T + 2), 128 * i))


def red8(A, r):
    for m in ["quad_perm:[1,0,3,2]", "quad_perm:[2,3,0,1]", "row_half_mirror"]:
        A("s_nop 1")
        A("v_add_f32_dpp %s, %s, %s %s row_mask:0xf bank_mask:0xf" % (v(r), v(r), v(r), m))


def ln8(A):
    X, F, T = LN_X, LN_F, LN_T
    S0, S1, M, R = T + 4, T + 6, T + 8, T + 10
    for i in range(40):
        A("v_lshlrev_b32 %s, 16, %s" % (v(F + 2 * i), v(X + i)))
        A("v_and_b32 %s, 0xffff0000, %s" % (v(F + 2 * i + 1), v(X + i)))
    A("v_pk_add_f32 %s, %s, %s" % (v(S0, 2), v(F, 2), v(F + 2, 2)))
    A("v_pk_add_f32 %s, %s, %s" % (v(S1, 2), v(F + 4, 2), v(F + 6, 2)))
    for i in range(4, 40):
        d = S0 + 2 * (i & 1)
        A("v_pk_add_f32 %s, %s, %s" % (v(d, 2), v(d, 2), v(F + 2 * i, 2)))
    A("v_pk_add_f32 %s, %s, %s" % (v(S0, 2), v(S0, 2), v(S1, 2)))
    A("v_add_f32 %s, %s, %s" % (v(S0), v(S0), v(S0 + 1)))
    red8(A, S0)
    A("v_mul_f32 %s, %s, %s" % (v(M + 1), fbits(1.0 / 640), v(S0)))
    A("v_cvt_pk_bf16_f32 %s, %s, %s" % (v(M), v(M + 1), v(M + 1)))
    A("v_and_b32 %s, 0xffff0000, %s" % (v(M), v(M)))
    for i in range(40):
        A("v_pk_add_f32 %s, %s, %s op_sel_hi:[1,0] neg_lo:[0,1] neg_hi:[0,1]" % (v(F + 2 * i, 2), v(F + 2 * i, 2), v(M, 2)))
    for i in range(40):
        d = S0 + 2 * (i & 1)
        if i < 2:
            A("v_pk_mul_f32 %s, %s, %s" % (v(d, 2), v(F + 2 * i, 2), v(F + 2 * i, 2)))
        else:
            A("v_pk_fma_f32 %s, %s, %s, %s" % (v(d, 2), v(F + 2 * i, 2), v(F + 2 * i, 2), v(d, 2)))
    A("v_pk_add_f32 %s, %s, %s" % (v(S0, 2), v(S0, 2), v(S1, 2)))
    A("v_add_f32 %s, %s, %s" % (v(S0), v(S0), v(S0 + 1)))
    red8(A, S0)
    A("v_sub_f32 %s, %s, %s" % (v(M + 1), v(M + 1), v(M)))
    A("v_mul_f32 %s, %s, %s" % (v(R), fbits(1.0 / 640), v(S0)))
    A("v_fma_f32 %s, -%s, %s, %s" % (v(R), v(M + 1), v(M + 1), v(R)))
    A("v_max_f32 %s, 0, %s" % (v(R), v(R)))
    A("v_cvt_pk_bf16_f32 %s, %s, %s" % (v(R), v(R), v(R)))
    A("v_and_b32 %s, 0xffff0000, %s" % (v(R), v(R)))
    A("v_add_f32 %s, %s, %s" % (v(R), fbits(1e-5), v(R)))
    A("v_cvt_pk_bf16_f32 %s, %s, %s" % (v(R), v(R), v(R)))
    A("v_and_b32 %s, 0xffff0000, %s" % (v(R), v(R)))
    A("v_sqrt_f32 %s, %s" % (v(R), v(R)))
    A("s_nop 0")
    A("v_cvt_pk_bf16_f32 %s, %s, %s" % (v(S0), v(M), v(R)))
    A("v_and_b32 %s, 0xffff0000, %s" % (v(R), v(S0)))
    A("v_rcp_f32 %s, %s" % (v(R), v(R)))
    A("v_mul_u32_u24 %s, %d, %s" % (v(T + 2), LNROW, v(T)))
    A("v_lshl_add_u32 %s, %s, 4, %s" % (v(T + 2), v(T + 1), v(T + 2)))
    A("v_add_u32 %s, s15, %s" % (v(T + 2), v(T + 2)))
    for i in range(11):
        if i < 10:
            for e in range(4):
                A("v_pk_mul_f32 %s, %s, %s op_sel_hi:[1,0]" % (v(F + 8 * i + 2 * e, 2), v(F + 8 * i + 2 * e, 2), v(R, 2)))
        if i:
            A("ds_write_b128 %s, %s offset:%d" % (v(T + 2), v(X + 4 * (i - 1), 4), 128 * (i - 1)))
        if i < 10:
            for e in range(4):
                A("v_cvt_pk_bf16_f32 %s, %s, %s" % (v(X + 4 * i + e), v(F + 8 * i + 2 * e), v(F + 8 * i + 2 * e + 1)))


def ln_store(A):
    F, T = LN_F, LN_T
    S0 = T + 4
    a0, a1, a2 = T + 12, T + 13, T + 14
    A("v_bfe_u32 %s, v1, 2, 2" % v(a0))
    A("v_mul_u32_u24 %s, %d, %s" % (v(a0), LNROW, v(a0)))
    A("v_lshrrev_b32 %s, 4, v1" % v(a1))
    A("v_lshl_add_u32 %s, %s, 5, %s" % (v(a0), v(a1), v(a0)))
    A("v_and_b32 %s, 3, v1" % v(a1))
    A("v_lshl_add_u32 %s, %s, 3, %s" % (v(a0), v(a1), v(a0)))
    A("v_add_u32 %s, s15, %s" % (v(a0), v(a0)))
    for i in range(10):
        A("ds_read_b64_tr_b16 %s, %s offset:%d" % (v(F + 4 * i, 2), v(a0), 128 * i))
        A("ds_read_b64_tr_b16 %s, %s offset:%d" % (v(F + 4 * i + 2, 2), v(a0), 128 * i + 4 * LNROW))
    A("v_mov_b32 %s, %s" % (v(S0 + 1), NON))
    A("s_lshl_b32 s6, s9, 6")
    A("s_add_u32 s6, s6, 0x%x" % WS_ST)
    setexec(A, 0x0101010101010101)
    A("buffer_store_dwordx2 %s, v1, s[48:51], s6 offen sc1" % v(S0, 2))
    A("s_mov_b64 exec, -1")
    A("v_lshlrev_b32 %s, 4, v1" % v(a0))
    A("s_mul_i32 s7, s9, 10240")
    A("s_add_u32 s7, s7, 0x%x" % WS_XT)
    A("s_waitcnt lgkmcnt(0)")
    for i in range(10):
        A("buffer_store_dwordx4 %s, %s, s[48:51], s7 offen offset:%d sc1" % (v(F + 4 * i, 4), v(a0), 1024 * (i % 4)))
        if i % 4 == 3:
            A("s_add_u32 s7, s7, 4096")


def flag_p(A, cnt, fl, vmc=0):
    sk = A.newl("Lf")
    A("v_mov_b32 v10, %d" % CTRL)
    A("v_mov_b32 v11, 1")
    A("s_waitcnt vmcnt(%d)" % vmc)
    A("s_mov_b64 exec, 1")
    A("ds_add_rtn_u32 v11, v10, v11 offset:%d" % cnt)
    A("s_mov_b64 exec, -1")
    A("s_waitcnt lgkmcnt(0)")
    A("v_readfirstlane_b32 s4, v11")
    A("s_cmp_lg_u32 s4, 3")
    A("s_cbranch_scc1 %s" % sk)
    A("s_lshl_b32 s6, s2, 7")
    A("s_add_u32 s6, s6, 0x%x" % (fl - 192 * 128))
    signal(A, 6, 10)
    A.label(sk)


LV_C, LV_T, LV_Q = 36, 37, 40


PAR = OPT.get("par", 0)


def _schedule():
    B = []
    for u in range(20):
        B.append((u, 1, ("w", u, 16, u - NW + 2 if u >= NW - PAR else 0)))
    for h in range(20):
        c = h >> 1
        need = 2 * (c - NXC) + 3 if c >= NXC - PAR else 0
        lead = 1 if 0 < c < NXC - PAR else 0
        B.append((2 * c - lead * (1 - (h & 1)), 0, ("x", h, 8, need)))
    B.sort(key=lambda e: (e[0], e[1]))
    B = [e[2] for e in B]
    for i in range(2 * NL2 + 1):
        B.append(("d", i, 10, G2SLOT[i][0] + 1))
    return B


GAPS = {"cur": 4}


class Dma:
    def __init__(self, A, n):
        self.A, self.n, self.k = A, n, 0

    def __call__(self, t):
        self.A(t)
        self.k += 1
        GAP = GAPS["cur"]
        if GAP and (self.k % GAP == 0 or self.k == self.n):
            self.A("buffer_load_dword v35, v27, s[48:51], 0 offen")


SCHED = _schedule()
CUM = [0]
for e in SCHED:
    CUM.append(CUM[-1] + e[2])
NB1 = 40


def _flagafter():
    out = {}
    for u in range(20 + 2 * NL2 + 1):
        want = [("d", u - 20)] if u >= 20 else [("w", u), ("x", 2 * (u >> 1)), ("x", 2 * (u >> 1) + 1)]
        i = max(i for i, e in enumerate(SCHED) if (e[0], e[1]) in want)
        out.setdefault(i, []).append(u)
    return out


FLAGAFTER = _flagafter()


def loader_run(A, first, last):
    def rdprog(need):
        A("ds_read_b128 %s, %s offset:%d" % (v(LV_Q, 4), v(LV_C), PF + 16 * need))

    def getprog():
        A("s_waitcnt lgkmcnt(0)")
        A("v_or_b32 v39, %s, %s" % (v(LV_Q), v(LV_Q + 1)))
        A("v_or3_b32 v39, v39, %s, %s" % (v(LV_Q + 2), v(LV_Q + 3)))
        A("s_nop 0")
        A("v_readfirstlane_b32 s67, v39")
        A("s_cmp_eq_u32 s67, 0")
    wait = A.newl("Llw")

    def waitfn():
        A.label(wait)
        guard(A)
        if OPT.get("cnt"):
            A("s_add_u32 s92, s92, 1")
        if OPT.get("lsl", 0):
            A("s_sleep %d" % OPT["lsl"])
        A("ds_read_b128 %s, v38" % v(LV_Q, 4))
        getprog()
        A("s_cbranch_scc0 %s" % wait)
        A("s_setpc_b64 s[34:35]")
    A.cold.append(waitfn)
    known = 0
    for i in range(first, last):
        kind, idx, P, need = SCHED[i]
        if i == OPT.get("lbar", 3):
            A("s_barrier")
        if i == NB1:
            A.label("Lload_g2")
            rdprog(need)
        if i == NB1 + SPLIT2:
            A("s_cmp_ge_u32 s2, 192")
            A("s_cbranch_scc1 Ls_join")
            if OPT.get("park", 0):
                A("s_branch Lload_end")
            A.label("Lload_g2b")
            rdprog(need)
        if OPT.get("free") and i < NB1:
            need = 0
        if need > known:
            go = A.newl("Llg")
            getprog()
            A("s_cbranch_scc1 %s" % go)
            A("v_mov_b32 v38, %d" % (PF + 16 * need))
            A("s_call_b64 s[34:35], %s" % wait)
            A.label(go)
            known = need
        if OPT.get("fine") and kind == "w" and idx in (1, 2, 3, 4, 5, 6, 7, 8):
            A.ts(4 + idx)
        elif OPT.get("cnt") and kind == "w" and idx in (1, 5, 8, 12, 16):
            A.ts({1: 6, 5: 7, 8: 8, 12: 9, 16: 10}[idx])
        nxt = i + 1 < last and SCHED[i + 1][3] > known
        GAPS["cur"] = OPT.get("gap0", 4) if i < OPT.get("gapi", 9) else (OPT.get("gap", 2) if i < NB1 else OPT.get("gap2", 2))
        if i > NB1 and OPT.get("dvm", 60) < 60:
            A("s_waitcnt vmcnt(%d)" % OPT.get("dvm", 60))
        if i == NB1 + 1:
            loader2_setup(A)
            lds_wait(A, C_GO, "lg", 0, 38, LV_C, "s4")
            A.ts(3)
        {"w": issue1, "x": issue_x, "d": issue2}[kind](A, idx, (lambda: rdprog(SCHED[i + 1][3])) if nxt else None)
        if i in FLAGAFTER:
            A("s_mov_b32 m0, %d" % (FLG + 4 * max(FLAGAFTER[i]) - 252))
            A("s_nop 0")
            A("buffer_load_dword v27, s[48:51], 0 offen lds")


def rot1(A, sd):
    if OPT.get("rot") == 0:
        A("s_mov_b32 %s, 0" % s(sd))
        return
    if OPT.get("rot") == 4:
        A("s_and_b32 %s, s60, 3" % s(sd))
        A("s_mul_i32 %s, %s, 5" % (s(sd), s(sd)))
        A("s_lshr_b32 %s, %s, 1" % (s(sd), s(sd)))
        return
    if OPT.get("rot") == 5:
        A("s_and_b32 %s, s60, 1" % s(sd))
        A("s_mul_i32 %s, %s, 5" % (s(sd), s(sd)))
        return
    if OPT.get("rot") == 2:
        A("s_xor_b32 %s, s60, s61" % s(sd))
        A("s_and_b32 %s, %s, 1" % (s(sd), s(sd)))
        A("s_mul_i32 %s, %s, 5" % (s(sd), s(sd)))
        return
    A("s_and_b32 %s, s61, 3" % s(sd))
    A("s_mul_i32 %s, %s, %d" % (s(sd), s(sd), OPT.get("rnb", 0)))
    A("s_add_u32 %s, %s, s60" % (s(sd), s(sd)))
    for _ in range(2):
        A("s_cmp_ge_u32 %s, 10" % s(sd))
        A("s_cselect_b32 s5, 10, 0")
        A("s_sub_u32 %s, %s, s5" % (s(sd), s(sd)))


def flg_init(A):
    A("v_lshlrev_b32 v2, 2, v1")
    A("v_mov_b32 v3, 1")
    A("ds_write_b32 v2, v3 offset:%d" % FLG)
    A("ds_write_b32 v2, v3 offset:%d" % PF)
    A("ds_write_b32 v2, v3 offset:%d" % (PF + 128))


def loader_regs(A):
    A("v_mov_b32 %s, %d" % (v(LV_C), CTRL))
    A("v_mov_b32 v27, 0x7ffffff0")
    srd(A, 12, P_X, 2048 * 640 * 2)


def loader1_setup(A):
    A("v_lshrrev_b32 v40, 4, v1")
    A("v_mul_u32_u24 v40, %d, v40" % (4 * 3072))
    A("v_and_b32 v41, 15, v1")
    A("v_lshl_add_u32 v20, v41, 4, v40")
    for p in range(1, 4):
        A("v_add_u32 %s, %d, v20" % (v(20 + p), p * (3072 - WP)))
    A("v_lshrrev_b32 v40, 3, v1")
    A("v_mul_u32_u24 v40, 1280, v40")
    A("v_and_b32 v41, 7, v1")
    A("v_lshrrev_b32 v42, 4, v1")
    A("v_xor_b32 v41, v41, v42")
    A("v_lshl_add_u32 v28, v41, 4, v40")
    A("v_xor_b32 v29, 64, v28")
    A("v_add_u32 v29, %d, v29" % (8 * 1280 - 1024))
    A("v_add_u32 v30, %d, v28" % (16 * 1280 - 2048))
    A("v_add_u32 v31, %d, v29" % (16 * 1280 - 2048))
    rot1(A, 4)
    A("s_lshl_b32 s66, s61, 8")
    A("s_add_u32 s69, s66, %d" % (640 * 3072))
    A("s_mul_i32 s5, s4, %d" % (64 * 3072))
    A("s_add_u32 s64, s66, s5")
    A("s_mul_i32 s10, s60, %d" % (128 * 1280))
    A("s_add_u32 s11, s10, 1280")
    A("s_lshl_b32 s4, s4, 7")
    A("s_add_u32 s65, s10, s4")
    flg_init(A)
    A("s_waitcnt lgkmcnt(0)")
    A("s_mov_b32 %s, 0x40000" % BUD)
    srd(A, 48, P_WS, WS_SIZE)
    loader_regs(A)
    srd(A, 52, P_WG, 640 * 1536 * 2)
    srd(A, 56, P_WU, 640 * 1536 * 2)


def issue_x(A, h, mid):
    base = XSLOT(h >> 1) + (h & 1) * 8192
    D = Dma(A, 8)
    for g in range(2):
        A("s_mov_b32 m0, %d" % (base + 4096 * g))
        A("s_add_u32 s7, s65, %d" % ((64 * (h & 1) + 32 * g) * 1280))
        if g == 1 and mid:
            mid()
        for p in range(4):
            D("buffer_load_dwordx4 %s, s[12:15], s7 offen offset:%d lds" % (v(28 + p), 1024 * p))
    if h & 1:
        A("s_add_u32 s65, s65, 128")
        A("s_cmp_ge_u32 s65, s11")
        A("s_cselect_b32 s65, s10, s65")


def issue1(A, u, mid):
    base = WSLOT(u)
    D = Dma(A, 16)
    for k in range(2):
        so = "s64" if k == 0 else "s6"
        A("s_mov_b32 m0, %d" % (base + k * SLOT1))
        if k == 0:
            A("s_add_u32 s6, s64, %d" % (16 * 3072))
        else:
            A("s_add_u32 s64, s64, %d" % (32 * 3072))
        if k == 1 and mid:
            mid()
        for p in range(4):
            D("buffer_load_dwordx4 %s, s[52:55], %s offen offset:%d lds" % (v(20 + p), so, WP * p))
        A("s_mov_b32 m0, %d" % (base + k * SLOT1 + UPOFF))
        if k == 1 and (u & 1):
            A("s_cmp_ge_u32 s64, s69")
            A("s_cselect_b32 s64, s66, s64")
        else:
            A("s_nop 0")
        for p in range(4):
            D("buffer_load_dwordx4 %s, s[56:59], %s offen offset:%d lds" % (v(20 + p), so, WP * p))


def rot2(A, sd):
    if OPT.get("m2", 1):
        A("s_and_b32 %s, s62, 7" % s(sd))
        A("s_mul_i32 %s, %s, 3" % (s(sd), s(sd)))
        A("s_lshr_b32 %s, %s, 1" % (s(sd), s(sd)))
    else:
        A("s_and_b32 %s, s62, 3" % s(sd))
        A("s_mul_i32 %s, %s, 3" % (s(sd), s(sd)))
    if OPT.get("rcb", 0):
        if OPT.get("m2", 1):
            A("s_and_b32 s5, s63, 3")
            A("s_mul_i32 s5, s5, 3")
        else:
            A("s_mul_i32 s5, s63, 3")
            A("s_lshr_b32 s5, s5, 1")
        A("s_add_u32 %s, %s, s5" % (s(sd), s(sd)))
        A("s_cmp_ge_u32 %s, 12" % s(sd))
        A("s_cselect_b32 s5, 12, 0")
        A("s_sub_u32 %s, %s, s5" % (s(sd), s(sd)))


SPLIT2 = 5
assert G2SLOT[SPLIT2 - 1][0] < 19 <= G2SLOT[SPLIT2][0] and SPLIT2 & 1, G2SLOT


def loader2_setup(A, skip=0):
    rot2(A, 4)
    A("s_add_u32 s4, s4, %d" % (NR2 + skip))
    A("s_cmp_ge_u32 s4, 12")
    A("s_cselect_b32 s5, 12, 0")
    A("s_sub_u32 s4, s4, s5")
    A("s_mul_i32 s66, s63, %d" % (48 * 5120))
    A("s_add_u32 s66, s66, 0x%x" % WS_WD)
    A("s_add_u32 s69, s66, %d" % (12 * 5120))
    A("s_mul_i32 s4, s4, 5120")
    A("s_add_u32 s64, s66, s4")
    A("v_lshlrev_b32 v32, 4, v1")
    A("v_add_u32 v33, 4096, v32")


def issue2(A, u, mid):
    base = G2SLOT[u][1]
    D = Dma(A, 10)
    if u == 0:
        for p in range(5):
            A("v_add_u32 v50, %d, v1" % (64 * p))
            A("v_mul_u32_u24 v51, 52429, v50")
            A("v_lshrrev_b32 v51, 19, v51")
            A("v_mul_u32_u24 v51, %d, v51" % (1280 - 160))
            A("v_lshl_add_u32 %s, v50, 4, v51" % v(44 + p))
        if mid:
            mid()
        A("s_mul_i32 s6, s62, %d" % (64 * 1280))
        A("s_mul_i32 s7, s63, 160")
        A("s_add_u32 s6, s6, s7")
        for h in range(2):
            for p in range(5):
                A("s_mov_b32 m0, %d" % (base + 5120 * h + 1024 * p))
                A("s_nop 0")
                D("buffer_load_dwordx4 %s, s[12:15], s6 offen lds" % v(44 + p))
            A("s_add_u32 s6, s6, %d" % (32 * 1280))
        return
    u -= 1
    for w in range(2):
        A("s_mov_b32 m0, %d" % (base + 5120 * w))
        A("s_add_u32 s6, s64, %d" % ((2 * (u & 1) + w) * 12 * 5120))
        if w == 1 and mid:
            mid()
        for p in range(4):
            D("buffer_load_dwordx4 v32, s[48:51], s6 offen offset:%d%s lds" % (1024 * p, LSC))
        A("s_mov_b32 m0, %d" % (base + 5120 * w + 4096))
        A("s_nop 0")
        D("buffer_load_dwordx4 v33, s[48:51], s6 offen%s lds" % LSC)
    if u & 1:
        A("s_add_u32 s64, s64, 5120")
        A("s_cmp_ge_u32 s64, s69")
        A("s_cselect_b32 s64, s66, s64")


def park(A):
    P0 = 16
    prog_wait(A, OPT.get("pkp", 16), 8, 2)
    loader2_setup(A, SPLIT2 // 2)
    A("v_mov_b32 v2, v32")
    A("v_mov_b32 v3, v33")
    n = 0
    for u in range(SPLIT2 - 1, 2 * NL2):
        for w in range(2):
            A("s_add_u32 s6, s64, %d" % ((2 * (u & 1) + w) * 12 * 5120))
            for p in range(5):
                if p < 4:
                    A("buffer_load_dwordx4 %s, v2, s[48:51], s6 offen offset:%d%s" % (v(P0 + 4 * n, 4), 1024 * p, LSC))
                else:
                    A("buffer_load_dwordx4 %s, v3, s[48:51], s6 offen%s" % (v(P0 + 4 * n, 4), LSC))
                n += 1
        if u & 1:
            A("s_add_u32 s64, s64, 5120")
            A("s_cmp_ge_u32 s64, s69")
            A("s_cselect_b32 s64, s66, s64")
    tot = n
    assert P0 + 4 * tot <= 256
    A.ts(8)
    n, known = 0, 0
    for u in range(SPLIT2, 2 * NL2 + 1):
        need, base = G2SLOT[u]
        if need + 1 > known:
            known = need + 1
            prog_wait(A, known, 8, 1)
        A("v_add_u32 v3, %d, v2" % base)
        A("s_waitcnt vmcnt(%d)" % (tot - n - 10))
        for p in range(10):
            A("ds_write_b128 v3, %s offset:%d" % (v(P0 + 4 * n, 4), 1024 * p))
            n += 1
    A("v_mov_b32 v2, 0")
    lds_wait(A, FLG + 4 * (20 + SPLIT2 - 1), "eq", 0, 3, 2, "s10")
    A("ds_write_b32 v2, v2 offset:%d" % (FLG + 4 * (20 + 2 * NL2)))
    A.ts(9)


def colsum_gather(A):
    R, Q = 96, 136
    A("v_lshlrev_b32 v2, 4, v1")
    A("v_lshlrev_b32 v5, 3, v1")
    A("s_mul_i32 s6, s61, 20480")
    A("s_add_u32 s6, s6, 0x%x" % WS_CS)
    for i in range(1, 5):
        A("s_add_u32 %s, s6, %d" % (s(6 + i), 4096 * i))
    L = [(R + 4 * i, 4, 2, 6 + i // 2, 2048 * (i % 2)) for i in range(10)]
    L += [(Q + 2 * i, 2, 5, 6 + i // 2, 2048 * (i % 2) + 1024) for i in range(10)]
    poll_flags(A, L, [R + 3 + 4 * i for i in range(10)] + [Q + 1 + 2 * i for i in range(10)], 3, 8)
    A("v_mov_b32 %s, %s" % (v(R + 3), v(Q)))
    for i in range(1, 10):
        for e in range(3):
            A("v_add_f32 %s, %s, %s" % (v(R + e), v(R + e), v(R + 4 * i + e)))
        A("v_add_f32 %s, %s, %s" % (v(R + 3), v(R + 3), v(Q + 2 * i)))
    A("v_lshlrev_b32 v2, 2, v1")
    for e in range(4):
        A("ds_write_b32 v2, %s offset:%d" % (v(R + e), CSUM + 256 * e))
    A("v_mov_b32 v2, %d" % CTRL)
    A("v_mov_b32 v3, 1")
    A("ds_write_b32 v2, v3 offset:%d" % C_CSOK)


WDR = 160
WDOFF = 8 * LNROW


def wd_issue(A):
    T = 20
    srd(A, 56, P_WD, 1536 * 640 * 2)
    A("s_sub_u32 s4, s2, 192")
    A("s_lshl_b32 s4, s4, 2")
    A("s_add_u32 s4, s4, s3")
    A("s_mul_i32 s14, s4, 52429")
    A("s_lshr_b32 s14, s14, 18")
    A("s_mul_i32 s5, s14, 5")
    A("s_sub_u32 s13, s4, s5")
    A("s_lshl_b32 s13, s13, 1")
    A("s_mul_i32 s4, s14, %d" % (32 * 1280))
    A("s_lshl_b32 s5, s13, 7")
    A("s_add_u32 s4, s4, s5")
    A("v_lshrrev_b32 %s, 4, v1" % v(T))
    A("v_mul_u32_u24 %s, 1280, %s" % (v(T), v(T)))
    A("v_and_b32 %s, 15, v1" % v(T + 1))
    A("v_lshl_add_u32 %s, %s, 4, %s" % (v(T), v(T + 1), v(T)))
    for p in range(8):
        A("s_add_u32 m0, s15, %d" % (WDOFF + 1024 * p))
        A("s_nop 0")
        A("buffer_load_dwordx4 %s, s[56:59], s4 offen lds" % v(T))
        A("s_add_u32 s4, s4, %d" % (4 * 1280))


def wd_relayout(A):
    skip = A.newl("Lwd")
    T = 20
    A("s_cmp_ge_u32 s14, 48")
    A("s_cbranch_scc1 %s" % skip)
    A("v_lshrrev_b32 %s, 2, v1" % v(T))
    A("v_lshlrev_b32 %s, 8, %s" % (v(T), v(T)))
    A("v_and_b32 %s, 3, v1" % v(T + 1))
    A("v_lshl_add_u32 %s, %s, 3, %s" % (v(T), v(T + 1), v(T)))
    A("v_add_u32 %s, s15, %s" % (v(T), v(T)))
    A("v_lshlrev_b32 %s, 4, v1" % v(T + 1))
    for c in range(8):
        A("ds_read_b64_tr_b16 %s, %s offset:%d" % (v(WDR + 4 * c, 2), v(T), WDOFF + 32 * c))
        A("ds_read_b64_tr_b16 %s, %s offset:%d" % (v(WDR + 2 + 4 * c, 2), v(T), WDOFF + 32 * c + 4096))
    for c in range(8):
        A("s_lshl_b32 s4, s13, 2")
        A("s_add_u32 s4, s4, %d" % c)
        A("s_mul_i32 s5, s4, 52429")
        A("s_lshr_b32 s5, s5, 18")
        A("s_mul_i32 s6, s5, 5")
        A("s_sub_u32 s4, s4, s6")
        A("s_mul_i32 s5, s5, 48")
        A("s_add_u32 s5, s5, s14")
        A("s_mul_i32 s5, s5, 5")
        A("s_add_u32 s4, s4, s5")
        A("s_lshl_b32 s4, s4, 10")
        A("s_add_u32 s4, s4, 0x%x" % WS_WD)
        A("s_waitcnt lgkmcnt(%d)" % (14 - 2 * c))
        A("buffer_store_dwordx4 %s, %s, s[48:51], s4 offen sc1" % (v(WDR + 4 * c, 4), v(T + 1)))
    A.label(skip)


G_vA0, G_vA1, G_vC, G_vF, G_vP, G_vXo, G_vPa = 2, 3, 4, 5, 6, 7, 8


def prog(A, val):
    if OPT.get("pds", 1):
        A("v_mov_b32 v10, 0")
        A("ds_write_b32 %s, v10 offset:%d" % (v(G_vPa), PF + 16 * (val + 1)))
        return
    A("s_add_u32 m0, s13, %d" % (16 * (val + 1)))
    A("s_mov_b64 exec, 1")
    A("buffer_load_dword %s, s[48:51], 0 offen lds" % v(G_vP))
    A("s_mov_b64 exec, -1")


def full_read(A, u):
    A("ds_read_b32 %s, %s offset:%d" % (v(G_vF), v(G_vC), FLG + 4 * u))


def full_wait(A, u, have=True):
    if OPT.get("free"):
        return
    if not getattr(A, "fullfn", None):
        A.fullfn = A.newl("Lfw")

        def fn():
            A.label(A.fullfn)
            guard(A)
            if OPT.get("cnt"):
                A("s_add_u32 s92, s92, 1")
            A("ds_read_b32 %s, v11" % v(G_vF))
            A("s_waitcnt lgkmcnt(0)")
            A("v_readfirstlane_b32 s10, %s" % v(G_vF))
            A("s_cmp_eq_u32 s10, 0")
            A("s_cbranch_scc0 %s" % A.fullfn)
            A("s_setpc_b64 s[34:35]")
        A.cold.append(fn)
    ok = A.newl("Lok")
    if have and u >= OPT.get("coldu", 6):
        st = A.newl("Lfs")
        if have != 2:
            A("v_readfirstlane_b32 s10, %s" % v(G_vF))
        A("s_cmp_eq_u32 s10, 0")
        A("s_cbranch_scc0 %s" % st)

        def stub():
            A.label(st)
            A("v_mov_b32 v11, %d" % (FLG + 4 * u))
            A("s_call_b64 s[34:35], %s" % A.fullfn)
            A("s_branch %s" % ok)
        A.cold.append(stub)
        A.label(ok)
        return
    if have:
        if have != 2:
            A("v_readfirstlane_b32 s10, %s" % v(G_vF))
        A("s_cmp_eq_u32 s10, 0")
        A("s_cbranch_scc1 %s" % ok)
    A("v_mov_b32 v11, %d" % (FLG + 4 * u))
    A("s_call_b64 s[34:35], %s" % A.fullfn)
    A.label(ok)


def wfrag_addr(A, d, t):
    A("v_bfe_u32 %s, v1, 2, 2" % v(t))
    A("v_mul_u32_u24 %s, %d, %s" % (v(d), WP, v(t)))
    A("v_lshrrev_b32 %s, 5, v1" % v(t))
    A("v_lshl_add_u32 %s, %s, 9, %s" % (v(d), v(t), v(d)))
    A("v_bfe_u32 %s, v1, 4, 1" % v(t))
    A("v_lshl_add_u32 %s, %s, 5, %s" % (v(d), v(t), v(d)))
    A("v_and_b32 %s, 1, v1" % v(t))
    A("v_lshl_add_u32 %s, %s, 3, %s" % (v(d), v(t), v(d)))
    A("v_bfe_u32 %s, v1, 1, 1" % v(t))
    A("v_mul_u32_u24 %s, %d, %s" % (v(t), UPOFF, v(t)))
    A("v_add_u32 %s, %s, %s" % (v(d), v(t), v(d)))


def gemm_regs(A):
    A("v_mov_b32 %s, %d" % (v(G_vC), CTRL))
    A("s_lshl_b32 s4, s3, 2")
    A("v_mov_b32 %s, s4" % v(G_vPa))
    A("s_add_u32 s13, s4, %d" % PF)
    A("v_mov_b32 %s, 0x7ffffff0" % v(G_vP))


def code_prefetch(A):
    A("s_getpc_b64 s[4:5]")
    here = A.newl("Lpc")
    A.label(here)
    A("s_sub_u32 s4, s4, %s-%s" % (here, NAME + "_kernel"))
    A("s_subb_u32 s5, s5, 0")
    A("s_lshr_b32 s6, s2, 3")
    A("s_lshl_b32 s6, s6, 11")
    A("v_lshlrev_b32 v254, 7, v1")
    A("v_add_u32 v254, s6, v254")
    A("s_mov_b32 s6, Lcode_end-%s-4" % (NAME + "_kernel"))
    A("v_min_u32 v254, s6, v254")
    A("s_mov_b64 exec, 0xffff")
    A("global_load_dword v57, v254, s[4:5]")
    A("s_mov_b64 exec, -1")


def l2_prefetch(A):
    m1 = OPT.get("m2", 1)
    n = 5 if m1 else 10
    A("s_bfe_u32 s7, s2, 0x30003")
    A("s_mul_i32 s7, s7, 3")
    A("s_add_u32 s7, s7, s3")
    A("s_sub_u32 s7, s7, 1")
    A("s_lshl_b32 s4, s7, 6")
    A("v_add_u32 v12, s4, v1")
    A("v_mul_u32_u24 v13, 43691, v12")
    A("v_lshrrev_b32 v13, 18, v13")
    A("v_mul_u32_u24 v13, %d, v13" % (10240 - 768))
    A("v_lshl_add_u32 v12, v12, 7, v13")
    A("s_and_b32 s4, s2, 7")
    A("s_mul_i32 s4, s4, 1280")
    A("s_add_u32 s4, s4, 0x%x" % WS_XT)
    A("buffer_load_dword v14, v12, s[48:51], s4 offen sc1")
    A("v_lshlrev_b32 v12, 7, v1")
    A("s_mul_i32 s4, s7, %d" % (n * 8192))
    if m1:
        A("s_and_b32 s5, s2, 4")
        A("s_mul_i32 s5, s5, %d" % (48 * 5120))
        A("s_add_u32 s4, s4, s5")
    A("s_add_u32 s4, s4, 0x%x" % WS_WD)
    for i in range(n):
        A("buffer_load_dword v14, v12, s[48:51], s4 offen sc1")
        A("s_add_u32 s4, s4, 8192")
    A("s_waitcnt vmcnt(0)")


def s_phase0(A):
    gemm_regs(A)
    A("s_mul_i32 s15, s3, %d" % SPRIV)
    A("s_add_u32 s15, s15, %d" % MAIN)
    A("s_and_b32 s4, s2, 1")
    A("s_lshl_b32 s9, s4, 7")
    A("s_bfe_u32 s4, s2, 0x20001")
    A("s_lshl_b32 s4, s4, 5")
    A("s_add_u32 s9, s9, s4")
    A("s_bfe_u32 s4, s2, 0x30003")
    A("s_lshl_b32 s4, s4, 2")
    A("s_add_u32 s9, s9, s4")
    A("s_add_u32 s9, s9, s3")

    A("s_and_b32 s68, s2, 7")
    A("s_mul_i32 s68, s68, 80")
    A("s_lshr_b32 s4, s2, 3")
    A("s_lshl_b32 s4, s4, 2")
    A("s_add_u32 s68, s68, s4")
    A("s_add_u32 s68, s68, s3")
    A("s_sub_u32 s68, s68, 48")
    A("s_mov_b32 s66, s15")
    kgen_setup(A, KB)
    ready(A, lambda A: kgen_issue(A, 68, [2], 40, False))
    srd(A, 52, P_X, 2048 * 640 * 2)
    ln_issue(A)
    A("s_waitcnt vmcnt(10)")
    A.ts(1)
    kgen_call(A, 40, 46, True)
    A("s_setprio 2")
    wd_issue(A)
    A("v_mov_b32 v22, 0")
    A("global_load_dword v22, v22, %s sc1" % s(P_DBG, 2))
    A("s_add_u32 s4, s3, 1")
    A("s_mul_i32 s4, s4, %d" % AUXSZ)
    A("s_sub_u32 s7, %d, s4" % (LDS_TOTAL + 8192))
    kgen_give(A, 7, 3)
    A.ts(8)
    A("s_waitcnt vmcnt(9)")
    ln8(A)
    nonce_fetch(A, 22, True)
    ln_store(A)
    wd_relayout(A)
    A("s_cmp_lt_u32 s3, 2")
    A("s_mov_b32 s4, 0xfffff")
    A("s_cselect_b32 s4, 0x3fffff, s4")
    A("v_lshl_add_u32 v10, v1, 4, %s" % v(G_vPa))
    A("v_mov_b32 v11, 0")
    A("s_mov_b32 exec_lo, s4")
    A("s_mov_b32 exec_hi, 0")
    A("ds_write_b32 v10, v11 offset:%d" % PF)
    A("s_mov_b64 exec, -1")
    flag_p(A, C_CNT, FL_X)
    A.ts(2)
    sk, s1 = A.newl("Ls0"), A.newl("Ls1")
    A("s_cmp_eq_u32 s3, 1")
    A("s_cbranch_scc1 %s" % s1)
    A("s_cmp_lg_u32 s3, 0")
    A("s_cbranch_scc1 %s" % sk)
    A("s_sleep %d" % OPT.get("ss0", 8))
    poll_all(A, 12, FL_X, C_GO, False, OPT.get("ss1", 3))
    if not OPT.get("g1only"):
        lds_wait(A, CTRL + C_KRDY, "lg", 0, 12, G_vPa, "s10", False, 4)
        loader_regs(A)
        A("s_branch Lload_g2")
    A.label(s1)
    if OPT.get("sdel", 0) and not OPT.get("g1only"):
        A("s_lshl_b32 s6, s2, 7")
        A("s_add_u32 s6, s6, 0x%x" % (FL_G - 192 * 128))
        A("v_mov_b32 v12, 0")
        A("s_mov_b64 exec, 1")
        poll_flags(A, [(16, 1, 12, 6, 0)], [16], 13, 8)
        A("s_mov_b64 exec, -1")
    A("v_lshlrev_b32 v12, 2, v1")
    A("v_mov_b32 v13, 1")
    A("s_mov_b64 exec, 15")
    A("ds_write_b32 v12, v13 offset:%d" % (CTRL + C_EPI))
    A("s_mov_b64 exec, -1")
    A.label(sk)
    if not OPT.get("g1only"):
        lds_wait(A, CTRL + C_KRDY, "lg", 0, 12, G_vPa, "s10", False, 4)
        if OPT.get("l2pf", 0):
            l2_prefetch(A)
    A.ts(3)


G2_ACC = 176
G2_RREGS = [128, 132, 136, 140, 24, 28, 32, 36, 144, 148, 152, 156, 40, 44, 48, 52, 160, 164, 168, 172]


def g2_streams(A):
    rot2(A, 4)
    A("s_mul_i32 s53, s63, 48")
    A("s_mul_i32 s5, s3, 12")
    A("s_add_u32 s53, s53, s5")
    A("s_mul_i32 s53, s53, 5120")
    A("s_add_u32 s53, s53, 0x%x" % WS_WD)
    A("s_mul_i32 s5, s4, 5120")
    A("s_add_u32 s52, s53, s5")
    A("s_add_u32 s53, s53, %d" % (12 * 5120))
    A("s_mul_i32 s55, s62, %d" % (192 * 1024))
    A("s_mul_i32 s5, s3, %d" % (24 * 1024))
    A("s_add_u32 s55, s55, s5")
    A("s_add_u32 s55, s55, 0x%x" % WS_HF)
    A("s_add_u32 s56, s55, %d" % (24 * 1024))
    A("s_lshl_b32 s5, s4, 11")
    A("s_add_u32 s54, s55, s5")
    A("v_lshlrev_b32 %s, 4, v1" % v(G_vXo))
    A("v_add_u32 v22, 4096, %s" % v(G_vXo))


def g2_wload(A, r, j, ct):
    if (OPT.get("noS") and j >= NR2) or (OPT.get("noR") and j < NR2):
        A("buffer_load_dword v0, v0, s[48:51], s53 offen")
        return
    if ct < 4:
        A("buffer_load_dwordx4 %s, %s, s[48:51], s52 offen offset:%d%s" % (v(r, 4), v(G_vXo), 1024 * ct, LSC))
    else:
        A("buffer_load_dwordx4 %s, v22, s[48:51], s52 offen%s" % (v(r, 4), LSC))
    if ct == 4 and j < 11:
        A("s_add_u32 s52, s52, %d" % (5120 * (1 + (NL2 if j == NR2 - 1 else 0))))
        A("s_cmp_ge_u32 s52, s53")
        A("s_cselect_b32 s5, %d, 0" % (12 * 5120))
        A("s_sub_u32 s52, s52, s5")


def gemm1(A):
    ACC, FB = 128, 80
    SEL, CSD = 24, 40
    ST = 16
    vX = 12
    CR = [24, 40, 64, 80]
    NM, C1 = [56, 60], [58, 62]
    vA0, vC, vF, vP, vXo, vPa = G_vA0, G_vC, G_vF, G_vP, G_vXo, G_vPa
    lg = Cnt(A, "lgkmcnt", 15)
    vm = Cnt(A, "vmcnt", 63)
    A("s_and_b32 s11, s3, 1")
    A("s_lshr_b32 s12, s3, 1")
    A("s_lshl_b32 s8, s60, 1")
    A("s_add_u32 s8, s8, s11")
    wfrag_addr(A, vA0, 9)
    A("s_lshl_b32 s4, s12, 4")
    A("s_add_u32 s4, s4, %d" % WADDR[0])
    A("v_add_u32 %s, s4, %s" % (v(vA0), v(vA0)))
    A("v_add_u32 %s, %d, %s" % (v(G_vA1), WHI - WADDR[0], v(vA0)))
    A("v_and_b32 v9, 31, v1")
    A("v_bfe_u32 v10, v1, 1, 3")
    A("v_lshrrev_b32 v11, 5, v1")
    A("v_xor_b32 v10, v10, v11")
    A("v_lshlrev_b32 v10, 4, v10")
    A("v_lshl_add_u32 v10, v9, 7, v10")
    A("s_lshl_b32 s4, s11, 13")
    A("s_add_u32 s4, s4, %d" % XRING)
    for j in range(4):
        A("v_xor_b32 %s, %d, v10" % (v(vX + j), 32 * j))
        A("v_add_u32 %s, s4, %s" % (v(vX + j), v(vX + j)))
    gemm_regs(A)
    def late_setup():
        A("v_and_b32 v9, 31, v1")
        A("s_lshl_b32 s4, s12, 2")
        A("v_subrev_u32 v9, s4, v9")
        A("v_mov_b32 v10, 0x3f803f80")
        for t in range(4):
            A("v_cmp_eq_u32 vcc, %d, v9" % [0, 1, 2, 8][t])
            A("s_nop 1")
            for d in range(4):
                A("v_cndmask_b32 %s, 0, v10, vcc" % v(SEL + 4 * t + d))
        g2_streams(A)

    if OPT.get("par", 0) and not OPT.get("auxoff"):
        l2, lj = A.newl("Lh"), A.newl("Lh")
        A("s_cmp_eq_u32 s3, 2")
        A("s_cbranch_scc1 %s" % l2)
        A("s_and_b32 s68, s2, 7")
        A("s_mul_i32 s68, s68, 80")
        A("s_lshr_b32 s4, s2, 3")
        A("s_lshl_b32 s4, s4, 1")
        A("s_add_u32 s68, s68, s4")
        A("s_add_u32 s68, s68, s11")
        A("s_mul_i32 s66, s3, %d" % STGSZ)
        A("s_add_u32 s66, s66, %d" % XSLOT(2))
        A("s_cmp_eq_u32 s3, 3")
        A("s_cselect_b32 s66, %d, s66" % WSLOT(4))
        A("s_cselect_b32 s67, 128, 0")
        kgen_setup(A, KB)
        ready(A, lambda A: kgen_issue(A, 68, [2], 40, False, 67))
        late_setup()
        A("s_waitcnt vmcnt(0)")
        A.ts(1)
        kgen_call(A, 40, 46, True)
        kgen_give(A, 66, 3)
        A("s_setprio %d" % OPT.get("pg", 2))
        A.ts(2)
        A("s_branch %s" % lj)
        A.label(l2)
        ready(A)
        late_setup()
        if OPT.get("pkm"):
            lds_wait(A, CTRL + C_KP + 8, "lg", 0, 10, vC, "s10", False, 2)
        A("s_waitcnt vmcnt(0)")
        A.label(lj)
    else:
        ready(A)
        late_setup()
        prog(A, 0)
        A("s_waitcnt vmcnt(0)")

    def W(ks, t):
        return FB + 24 * (ks & 1) + 4 * t

    def X(ks, a):
        return FB + 24 * (ks & 1) + 16 + 4 * a

    def wread(ks, t):
        off, b = WSLOT(ks >> 1) + (ks & 1) * SLOT1 + 64 * t - WADDR[0], vA0
        if WSLOT(ks >> 1) >= WHI:
            off, b = off - (WHI - WADDR[0]), G_vA1
        A("ds_read_b64_tr_b16 %s, %s offset:%d" % (v(W(ks, t), 2), v(b), off))
        lg.issue(("w", ks, t, 0))
        A("ds_read_b64_tr_b16 %s, %s offset:%d" % (v(W(ks, t) + 2, 2), v(b), off + 256))
        lg.issue(("w", ks, t))

    def xread(ks, a):
        A("ds_read_b128 %s, %s offset:%d" % (v(X(ks, a), 4), v(vX + ks % 4), XSLOT(ks >> 2) - XRING + 4096 * a))
        lg.issue(("x", ks, a))

    def reads(ks):
        return [lambda: xread(ks, 0), lambda: wread(ks, 0), lambda: xread(ks, 1), lambda: wread(ks, 1), lambda: wread(ks, 2), lambda: wread(ks, 3)]
    full_wait(A, 0, False)
    A.ts(4)

    def x_csread():
        A("ds_read_b32 v20, %s offset:%d" % (v(vC), C_CSOK))
        lg.issue("cs")

    def x_cscheck():
        lg.wait("cs")
        lds_wait(A, C_CSOK, "lg", 0, 20, vC, "s10", True)
        A("v_lshrrev_b32 v21, 5, v1")
        A("v_lshlrev_b32 v21, 4, v21")
        A("s_lshl_b32 s4, s12, 7")
        A("s_add_u32 s4, s4, %d" % CSUM)
        A("v_add_u32 v21, s4, v21")

    def x_cs(t, m):
        A("ds_read_b128 %s, v21 offset:%d" % (v(CR[t] + 4 * m, 4), 256 * t + 32 * m))
        lg.issue(("cr", t, m))

    def x_stat():
        ok, slow = A.newl("Lst"), A.newl("Lss")
        vm.wait("st")
        A("v_xor_b32 v10, %s, %s" % (NON, v(ST + 1)))
        A("v_xor_b32 v11, %s, %s" % (NON, v(ST + 3)))
        A("v_or_b32 v10, v10, v11")
        A("v_cmp_ne_u32 s[4:5], 0, v10")
        A("s_cmp_eq_u64 s[4:5], 0")
        A("s_cbranch_scc0 %s" % slow)
        A.label(ok)

        def cold():
            A.label(slow)
            poll_flags(A, [(ST, 2, 9, 6, 0), (ST + 2, 2, 9, 6, 256)], [ST + 1, ST + 3], 10, 2)
            A("s_branch %s" % ok)
        A.cold.append(cold)

    def x_const(a):
        A("v_lshlrev_b32 %s, 16, %s" % (v(NM[a]), v(ST + 2 * a)))
        A("v_and_b32 %s, 0xffff0000, %s" % (v(C1[a]), v(ST + 2 * a)))
        A("v_xor_b32 %s, 0x80000000, %s" % (v(NM[a]), v(NM[a])))
        A("v_mul_f32 %s, %s, %s" % (v(NM[a] + 1), v(C1[a]), v(C1[a])))
        A("v_rcp_f32 %s, %s" % (v(C1[a]), v(C1[a])))

    def x_last():
        for a in range(2):
            A("v_mul_f32 %s, %s, %s" % (v(C1[a]), fbits(-LOG2E), v(C1[a])))
        A("s_mul_i32 s9, s8, 192")
        A("s_lshl_b32 s4, s61, 3")
        A("s_add_u32 s9, s9, s4")
        A("s_add_u32 s9, s9, s12")
        A("s_lshl_b32 s9, s9, 10")
        A("s_add_u32 s9, s9, 0x%x" % WS_HF)
    def x_goread():
        A("ds_read_b32 v23, %s offset:%d" % (v(vC), C_GO))
        lg.issue("go")
    extras = [x_csread, x_stat, lambda: x_const(0), lambda: x_const(1), x_cscheck, x_last]
    extras += [(lambda t=t, m=m: x_cs(t, m)) for t in range(3) for m in range(4)]
    extras += [x_goread]
    if OPT.get("g1only"):
        extras = []
    allr = [(ks, i, f) for ks in range(40) for i, f in enumerate(reads(ks))]
    state = {"g": 0, "prog": 0}

    def next_read():
        if state["g"] >= len(allr):
            return False
        ks, i, f = allr[state["g"]]
        state["g"] += 1
        if i == 0 and ks % 2 == 0 and ks > 0:
            full_wait(A, ks // 2, 2)
        f()
        if i == OPT.get("fn", 2) and ks % 2 == 1 and ks + 1 < 40:
            full_read(A, (ks + 1) // 2)
            lg.issue(("f", ks + 1))
        return True

    def try_prog():
        u = state["prog"]
        if u < 20 and state["g"] > 12 * u + 11 and ("w", 2 * u + 1, 3) not in lg.q:
            prog(A, u + 1)
            if OPT.get("pds", 1):
                lg.issue(("p", u))
            else:
                vm.issue(("p", u))
            state["prog"] += 1
    for _ in range(6):
        next_read()
    for ks in range(40):
        if ks == 26:
            A("v_and_b32 v9, 31, v1")
            A("v_lshlrev_b32 v9, 3, v9")
            A("s_lshl_b32 s6, s8, 9")
            A("s_add_u32 s6, s6, 0x%x" % WS_ST)
            A("buffer_load_dwordx2 %s, v9, s[48:51], s6 offen sc1" % v(ST, 2))
            A("buffer_load_dwordx2 %s, v9, s[48:51], s6 offen offset:256 sc1" % v(ST + 2, 2))
            vm.issue("st")
        if ks == OPT.get("pubks", 7) - 1:
            A("ds_read_b32 v20, %s offset:%d" % (v(vC), C_NONCE))
            lg.issue("non")
        if ks == OPT.get("pubks", 7) and not OPT.get("auxoff"):
            sk = A.newl("Lcs")
            lg.wait("non")
            lds_wait(A, C_NONCE, "lg", 0, 20, vC, NON, True)
            A("s_cmp_ge_u32 s60, 10")
            A("s_cbranch_scc1 %s" % sk)
            A("s_cmp_lg_u32 s11, 0")
            A("s_cbranch_scc1 %s" % sk)
            A("v_mov_b32 %s, %s" % (v(CSD + 3), NON))
            A("v_mov_b32 %s, %s" % (v(CSD + 5), NON))
            A("v_lshlrev_b32 v9, 4, v1")
            A("v_lshlrev_b32 v10, 3, v1")
            A("s_mul_i32 s6, s61, 10")
            A("s_add_u32 s6, s6, s60")
            A("s_lshl_b32 s6, s6, 11")
            A("s_add_u32 s6, s6, 0x%x" % WS_CS)
            A("s_sub_u32 exec_lo, s12, 1")
            A("s_not_b32 exec_hi, exec_lo")
            A("buffer_store_dwordx4 %s, v9, s[48:51], s6 offen sc1" % v(CSD, 4))
            A("buffer_store_dwordx2 %s, v10, s[48:51], s6 offen offset:1024 sc1" % v(CSD + 4, 2))
            A("s_mov_b64 exec, -1")
            A.label(sk)
        if OPT.get("fine"):
            if ks in (2, 4, 6, 8, 10, 12):
                A.ts({2: 6, 4: 7, 6: 8, 8: 9, 10: 10, 12: 12}[ks])
        elif ks in (12, 20, 28):
            A.ts(8 + (ks - 12) // 8)
        n = 0
        for t in range(4):
            for a in range(2):
                lg.wait(("w", ks, t))
                lg.wait(("x", ks, a))
                d = ACC + 64 * a + 16 * t
                cin = "0" if ks == 0 else v(d, 16)
                if OPT.get("fake16"):
                    dd = d + 8 * (ks & 1)
                    A("v_mfma_f32_16x16x32_bf16 %s, %s, %s, %s" % (v(dd, 4), v(W(ks, t), 4), v(X(ks, a), 4), v(dd, 4)))
                    mark = len(A.L)
                else:
                    A("v_mfma_f32_32x32x16_bf16 %s, %s, %s, %s" % (v(d, 16), v(W(ks, t), 4), v(X(ks, a), 4), cin))
                try_prog()
                if n == 7 and ks % 2 == 0 and ks + 2 < 40:
                    lg.wait(("f", ks + 2))
                    A("v_readfirstlane_b32 s15, %s" % v(vF))
                if n == 0 and ks % 2 == 1:
                    A("s_mov_b32 s10, s15")
                did = n < 6 and next_read()
                if not did and ks >= OPT.get("epks", 34) and extras:
                    extras.pop(0)()
                if OPT.get("fake16"):
                    pos = mark + 1 if (len(A.L) > mark and A.L[mark].strip().startswith("ds_read")) else len(A.L)
                    A.L.insert(pos, "  v_mfma_f32_16x16x32_bf16 %s, %s, %s, %s" % (v(dd + 4, 4), v(X(ks, a), 4), v(W(ks, t), 4), v(dd + 4, 4)))
                n += 1
            if ks < OPT.get("csn", 4):
                cin = "0" if ks + t == 0 else v(CSD, 16)
                A("v_mfma_f32_32x32x16_bf16 %s, %s, %s, %s" % (v(CSD, 16), v(SEL + 4 * t, 4), v(W(ks, t), 4), cin))
    while extras:
        extras.pop(0)()
    A.ts(5)
    if OPT.get("cnt"):
        A.stamps += [11, 14]
    if OPT.get("g1only"):
        return
    for m in range(4):
        x_cs(3, m)
    T0 = 96
    n = 0
    A("s_nop 3")
    for t in range(4):
        lg.wait(("cr", t, 3))
        for a in range(2):
            ac = ACC + 64 * a + 16 * t
            tmp = T0 + 16 * (n & 1)
            n += 1
            G = [ac, ac + 2, ac + 8, ac + 10]
            U = [ac + 4, ac + 6, ac + 12, ac + 14]
            for i in range(8):
                A("v_pk_fma_f32 %s, %s, %s, %s op_sel_hi:[1,0,1]" % (v(ac + 2 * i, 2), v(CR[t] + 2 * i, 2), v(NM[a], 2), v(ac + 2 * i, 2)))
            for i in range(4):
                A("v_pk_mul_f32 %s, %s, %s op_sel_hi:[1,0]" % (v(tmp + 2 * i, 2), v(G[i], 2), v(C1[a], 2)))
            for i in range(0 if OPT.get("noexp") else 8):
                A("v_exp_f32 %s, %s" % (v(tmp + i), v(tmp + i)))
            for i in range(4):
                A("v_pk_mul_f32 %s, %s, %s" % (v(G[i], 2), v(G[i], 2), v(U[i], 2)))
            for i in range(4):
                A("v_pk_fma_f32 %s, %s, %s, %s op_sel:[0,1,1] op_sel_hi:[1,1,1]" % (v(tmp + 2 * i, 2), v(tmp + 2 * i, 2), v(NM[a], 2), v(NM[a], 2)))
            for i in range(0 if OPT.get("noexp") else 8):
                A("v_rcp_f32 %s, %s" % (v(tmp + i), v(tmp + i)))
            A("s_add_u32 s4, s9, %d" % (96 * 1024 * a + 2048 * t))
            for i in range(4):
                A("v_pk_mul_f32 %s, %s, %s" % (v(G[i], 2), v(G[i], 2), v(tmp + 2 * i, 2)))
            for i in range(4):
                A("v_cvt_pk_bf16_f32 %s, %s, %s" % (v(tmp + 8 + i), v(G[i]), v(G[i] + 1)))
            A("buffer_store_dwordx4 %s, %s, s[48:51], s4 offen sc1" % (v(tmp + 8, 4), v(vXo)))
            if n == 1:
                lg.wait("go")
                lds_wait(A, C_GO, "lg", 0, 23, vC, "s10", True)
            if n <= OPT.get("rearly", 0):
                for k in range(4 * (n - 1), 4 * n):
                    g2_wload(A, G2_RREGS[k], k // 5, k % 5)
    A("v_mov_b32 v10, 1")
    A("ds_write_b32 %s, v10 offset:%d" % (v(vPa), CTRL + C_EPI))
    A.ts(6)
    A("s_lshl_b32 s57, s8, 4")
    A("s_add_u32 s57, s57, s61")
    A("s_lshl_b32 s57, s57, 1")
    A("s_add_u32 s57, s57, s12")
    A("s_lshl_b32 s57, s57, 7")
    A("s_add_u32 s57, s57, 0x%x" % FL_H)


def cmul(A, d, a, f, t, pk=False):
    assert d != a and d != f
    if pk:
        A("v_pk_mul_f32 %s, %s, %s op_sel:[0,0] op_sel_hi:[1,0]" % (v(d, 2), v(a, 2), v(f, 2)))
        A("v_pk_fma_f32 %s, %s, %s, %s op_sel:[1,1,0] op_sel_hi:[0,1,1] neg_lo:[1,0,0]" % (v(d, 2), v(a, 2), v(f, 2), v(d, 2)))
        return
    A("v_mul_f32 %s, %s, %s" % (v(d), v(a), v(f)))
    A("v_mul_f32 %s, %s, %s" % (v(d + 1), v(a + 1), v(f)))
    A("v_fma_f32 %s, -%s, %s, %s" % (v(d), v(a + 1), v(f + 1), v(d)))
    A("v_fmac_f32 %s, %s, %s" % (v(d + 1), v(a), v(f + 1)))


def kgen_issue(A, sch, chunks, R, dsk, sub=None):
    n = len(chunks)
    for i in range(6 * n + 1):
        A("v_mov_b32 %s, 0" % v(R + i))
    A("s_mul_i32 s4, %s, 384" % s(sch))
    if sub:
        A("s_sub_u32 s4, s4, %s" % s(sub))
    A("v_lshlrev_b32 v60, 1, v1")
    A("v_add_u32 v60, s4, v60")
    A("s_lshl_b32 s4, %s, 1" % s(sch))
    A("v_mov_b32 v61, s4")
    A("global_load_short_d16_hi %s, v61, %s" % (v(R + 6 * n), s(P_LDT, 2)))
    for k, c in enumerate(chunks):
        for i, p in enumerate([P_ARE, P_AIM, P_BRE, P_BIM, P_CRE, P_CIM]):
            A("global_load_short_d16_hi %s, v60, %s offset:%d" % (v(R + 6 * k + i), s(p, 2), 128 * c))
    if dsk:
        A("v_mov_b32 v59, 0")
        A("global_load_short_d16_hi v59, v61, %s" % s(P_DSK, 2))


def kgen_call(A, R, ldt, zero):
    B = KB
    DT = B + KB_DT
    A("v_mul_f32 %s, %s, %s" % (v(DT), fbits(LOG2E), v(ldt)))
    A("v_exp_f32 %s, %s" % (v(DT), v(DT)))
    for i in range(6):
        A("v_mov_b32 %s, %s" % (v(B + i), v(R + i)))
    A("v_cvt_pk_bf16_f32 %s, %s, %s" % (v(DT), v(DT), v(DT)))
    A("v_and_b32 %s, 0xffff0000, %s" % (v(DT), v(DT)))
    if zero:
        for i in range(16):
            A("v_mov_b32 %s, 0" % v(B + KB_ACC + i))
    A("s_call_b64 s[34:35], Lkgen")


def kgen_give(A, saddr, sidx, R=None):
    A("v_lshlrev_b32 v10, 4, v1")
    A("v_add_u32 v10, %s, v10" % s(saddr))
    if R is None:
        A("s_nop 15")
    for q in range(3):
        A("ds_write_b128 v10, %s offset:%d" % (v((R or KB + KB_ACC) + 4 * q, 4), 1024 * q))
    lds_set(A, sidx, C_KP, 1, 10)
    if R is None:
        A("s_waitcnt lgkmcnt(0)")


def kgen_take2(A, sidx, saddr, rel):
    KACC = KB + KB_ACC
    A("s_lshl_b32 s4, %s, 2" % s(sidx))
    A("v_mov_b32 v10, s4")
    lds_wait(A, CTRL + C_KP, "lg", 0, 11, 10, "s10", False, 0)
    A("v_lshlrev_b32 v11, 4, v1")
    A("v_add_u32 v11, %s, v11" % s(saddr))
    for q in range(3):
        A("ds_read_b128 %s, v11 offset:%d" % (v(12 + 4 * q, 4), 1024 * q))
    if rel:
        A("v_mov_b32 v11, 0")
        A("ds_write_b32 v10, v11 offset:%d" % (PF + 16))
    A("s_waitcnt lgkmcnt(%d)" % (1 if rel else 0))
    for r in range(12):
        A("v_add_f32 %s, %s, %s" % (v(KACC + r), v(KACC + r), v(12 + r)))


def kgen_take(A):
    KACC = KB + KB_ACC
    A("s_lshl_b32 s4, s12, 2")
    A("v_mov_b32 v10, s4")
    lds_wait(A, CTRL + C_KP, "lg", 0, 11, 10, "s10")
    A("s_mov_b32 s4, %d" % (HSTG + 3072))
    A("s_cmp_eq_u32 s12, 0")
    A("s_cselect_b32 s4, s4, %d" % HSTG)
    A("s_add_u32 s5, s69, 8192")
    A("s_cmp_eq_u32 s15, 0")
    A("s_cselect_b32 s4, s5, s4")
    A("v_lshlrev_b32 v11, 4, v1")
    A("v_add_u32 v11, s4, v11")
    for q in range(3):
        A("ds_read_b128 %s, v11 offset:%d" % (v(12 + 4 * q, 4), 1024 * q))
    A("v_mov_b32 v11, 1")
    A("ds_write_b32 v10, v11 offset:%d" % (CTRL + C_KPR - 4))
    A("s_waitcnt lgkmcnt(1)")
    for r in range(12):
        A("v_add_f32 %s, %s, %s" % (v(KACC + r), v(KACC + r), v(12 + r)))


HI = list(range(8)) + [256, 258, 260, 262, 512, 516, 768, 772, 1024, 1280, 1536, 1792, 2048]
EROW = 272


KB, KB_DT, KB_ACC = 62, 6, 134


def kgen_setup(A, B):
    vW, vR, ONE, T = B + 150, B + 8, B + 10, B + 20
    A("v_bfe_u32 %s, v1, 1, 2" % v(T))
    A("v_lshlrev_b32 %s, 4, %s" % (v(T), v(T)))
    A("v_lshl_add_u32 %s, v1, 6, %s" % (v(T), v(T)))
    for q in range(4):
        A("v_xor_b32 %s, %d, %s" % (v(vW + q), 16 * q, v(T)))
        A("v_add_u32 %s, s66, %s" % (v(vW + q), v(vW + q)))
    A("v_bfe_u32 %s, v1, 2, 2" % v(T))
    A("v_lshrrev_b32 %s, 5, v1" % v(T + 1))
    A("v_lshl_add_u32 %s, %s, 3, %s" % (v(T), v(T + 1), v(T)))
    A("v_lshlrev_b32 %s, 6, %s" % (v(vR), v(T)))
    A("v_bfe_u32 %s, v1, 4, 1" % v(T))
    A("v_bfe_u32 %s, v1, 1, 1" % v(T + 1))
    A("v_lshl_add_u32 %s, %s, 1, %s" % (v(T), v(T), v(T + 1)))
    A("v_bfe_u32 %s, v1, 3, 1" % v(T + 1))
    A("v_xor_b32 %s, %s, %s" % (v(T), v(T), v(T + 1)))
    A("v_lshl_add_u32 %s, %s, 4, %s" % (v(vR), v(T), v(vR)))
    A("v_and_b32 %s, 1, v1" % v(T))
    A("v_lshl_add_u32 %s, %s, 3, %s" % (v(vR), v(T), v(vR)))
    A("v_xor_b32 %s, 32, %s" % (v(vR + 1), v(vR)))
    A("v_add_u32 %s, s66, %s" % (v(vR), v(vR)))
    A("v_add_u32 %s, s66, %s" % (v(vR + 1), v(vR + 1)))
    A("v_mov_b32 %s, 1.0" % v(ONE))
    A("v_mov_b32 %s, 0" % v(ONE + 1))


def kgen_chunk(A, B, pkm):
    are, aim, bre, bim, cre, cim = [B + i for i in range(6)]
    DT, vW, vR, ONE = B + KB_DT, B + 150, B + 8, B + 10
    E1, E8, E256, E16, TA = B + 12, B + 14, B + 16, B + 18, B + 20
    LO = [B + 26, B + 28, B + 30, B + 32]
    Gs, PR, PI, KACC = B + 34, B + 78, B + 106, B + KB_ACC
    FA, FB = B + 34, B + 78
    G = lambda i: Gs + 2 * i
    A("v_mul_f32 %s, %s, %s" % (v(are), v(DT), v(are)))
    A("v_mul_f32 %s, %s, %s" % (v(aim), v(DT), v(aim)))
    A("v_mul_f32 %s, %s, %s" % (v(are), fbits(LOG2E), v(are)))
    A("v_mul_f32 %s, %s, %s" % (v(aim), fbits(0.5 / math.pi), v(aim)))
    Es = [(E8, 8.0, TA), (E1, 1.0, TA + 2), (E256, 256.0, TA + 4)]
    for (E, l, T) in Es:
        A("v_mul_f32 %s, %s, %s" % (v(T), fbits(l), v(are)))
        A("v_mul_f32 %s, %s, %s" % (v(T + 1), fbits(l), v(aim)))
    for (E, l, T) in Es:
        A("v_fract_f32 %s, %s" % (v(T + 1), v(T + 1)))
    for (E, l, T) in Es:
        A("v_exp_f32 %s, %s" % (v(T), v(T)))
        A("v_cos_f32 %s, %s" % (v(E), v(T + 1)))
        A("v_sin_f32 %s, %s" % (v(E + 1), v(T + 1)))
    A("v_mul_f32 %s, %s, %s" % (v(bre), v(DT), v(bre)))
    A("v_mul_f32 %s, %s, %s" % (v(bim), v(DT), v(bim)))
    for (E, l, T) in Es:
        A("v_mul_f32 %s, %s, %s" % (v(E), v(E), v(T)))
        A("v_mul_f32 %s, %s, %s" % (v(E + 1), v(E + 1), v(T)))
    cmul(A, Gs, cre, bre, TA)
    cmul(A, E16, E8, E8, E16)
    loc = {0: Gs, 24: ONE, 25: E8, 26: E16}
    packed, written = set(), set()
    dsq = []

    def flush():
        for p in range(28):
            if p in packed or p == 11:
                continue
            c0, c1 = 2 * p, 2 * p + 1
            if p == 10:
                c1 = c0
            if c0 in loc and c1 in loc:
                n = "-" if p < 12 else ""
                A("v_cvt_pk_bf16_f32 %s, %s, %s" % (v(PR + p), v(loc[c0]), v(loc[c1])))
                A("v_cvt_pk_bf16_f32 %s, %s%s, %s%s" % (v(PI + p), n, v(loc[c0] + 1), n, v(loc[c1] + 1)))
                packed.add(p)

    def rd(F, ks):
        return ["ds_read_b64_tr_b16 %s, %s offset:%d" % (v(F + 4 * ks, 2), v(vR), 1024 * ks),
                "ds_read_b64_tr_b16 %s, %s offset:%d" % (v(F + 4 * ks + 2, 2), v(vR + 1), 1024 * ks + 256)]

    def wr(old):
        for q in range(7):
            if q in written or (q >= 3 and "A" not in written):
                continue
            if all((p in old or p == 11) for p in range(4 * q, 4 * q + 4)):
                ch = q if q < 3 else q - 3
                dsq.append("ds_write_b128 %s, %s" % (v(vW + ch), v(PR + 4 * q, 4)))
                dsq.append("ds_write_b128 %s, %s offset:4096" % (v(vW + ch), v(PI + 4 * q, 4)))
                written.add(q)
            if q == 2 and {0, 1, 2} <= written and "A" not in written:
                for ks in range(8):
                    dsq.extend(rd(FA, ks))
                written.add("A")
    cur = [E16, E8]
    lo_ops = []
    for j in range(3, 32):
        ch = 1 if (j & 1) else 0
        dst = LO[2 * ch + ((j >> 1) & 1)]
        lo_ops.append((dst, cur[ch], E16, 24 + j))
        cur[ch] = dst
    src = {8: 0, 9: 2, 10: 4, 11: 6, 12: 8, 13: 10, 14: 12, 15: 13, 16: 14, 17: 16, 18: 17, 19: 18, 20: 19}
    groups = [[lo_ops.pop(0)]]
    while lo_ops:
        groups.append([lo_ops.pop(0), lo_ops.pop(0)])
    for i in range(1, 8):
        groups[i - 1].append((G(i), G(i - 1), E1, i))
    for n, i in enumerate([8, 12, 14, 16, 17, 18, 19, 20]):
        groups[n].append((G(i), G(src[i]), E256, i))
    for n, i in [(2, 9), (4, 10), (5, 13), (6, 11), (7, 15)]:
        groups[n].append((G(i), G(src[i]), E256, i))

    def ds(n):
        for _ in range(n):
            if dsq:
                A(dsq.pop(0))
    for gi, grp in enumerate(groups):
        old = set(packed)
        if gi == OPT.get("kpg", 99):
            A("s_setprio 3")
        for (d, a, f, col) in grp:
            if pkm:
                A("v_pk_mul_f32 %s, %s, %s op_sel:[0,0] op_sel_hi:[1,0]" % (v(d, 2), v(a, 2), v(f, 2)))
            else:
                A("v_mul_f32 %s, %s, %s" % (v(d), v(a), v(f)))
                A("v_mul_f32 %s, %s, %s" % (v(d + 1), v(a + 1), v(f)))
        wr(old)
        ds(3)
        flush()
        for (d, a, f, col) in grp:
            if pkm:
                A("v_pk_fma_f32 %s, %s, %s, %s op_sel:[1,1,0] op_sel_hi:[0,1,1] neg_lo:[1,0,0]" % (v(d, 2), v(a, 2), v(f, 2), v(d, 2)))
            else:
                A("v_fma_f32 %s, -%s, %s, %s" % (v(d), v(a + 1), v(f + 1), v(d)))
                A("v_fmac_f32 %s, %s, %s" % (v(d + 1), v(a), v(f + 1)))
        ds(3)
        for (d, a, f, col) in grp:
            loc[col] = d
    flush()
    wr(packed)
    assert len(written) == 8
    if OPT.get("kts"):
        A.ts(13)
    if OPT.get("kpg", 99) == 15:
        A("s_setprio 3")
    ds(99)
    for ks in range(8):
        for t in rd(FB, ks):
            A(t)
    if OPT.get("kp", 1):
        A("s_setprio 3")
    for ks in range(8):
        A("s_waitcnt lgkmcnt(%d)" % (2 * (7 - ks)))
        A("v_mfma_f32_32x32x16_bf16 %s, %s, %s, %s" % (v(KACC, 16), v(FA + 4 * ks, 4), v(FB + 4 * ks, 4), v(KACC, 16)))
    if OPT.get("kp", 1):
        A("s_setprio %d" % OPT.get("pa", 0))


def kgen_expand(A, KACC):
    A("v_and_b32 v2, 31, v1")
    A("v_lshrrev_b32 v3, 5, v1")
    A("v_lshlrev_b32 v4, 5, v2")
    A("v_lshl_add_u32 v4, v3, 4, v4")
    A("v_add_u32 v4, s66, v4")
    A("v_lshlrev_b32 v5, 4, v2")
    A("v_add_u32 v5, s66, v5")
    A("v_lshlrev_b32 v6, 3, v2")
    A("v_add_u32 v6, s66, v6")
    A("v_lshlrev_b32 v7, 2, v2")
    A("v_add_u32 v7, s66, v7")
    A("s_nop 7")
    A("s_mov_b64 exec, 1")
    A("v_add_f32 %s, %s, v59" % (v(KACC), v(KACC)))
    A("s_mov_b64 exec, -1")
    A("ds_write_b128 v4, %s" % v(KACC, 4))
    A("s_mov_b32 exec_hi, 0")
    A("ds_write_b128 v5, %s offset:%d" % (v(KACC + 4, 4), 256 * 4))
    for r in range(4):
        A("ds_write_b32 v7, %s offset:%d" % (v(KACC + 8 + r), (512 + 32 * r) * 4))
    A("s_mov_b32 exec_lo, 0")
    A("s_mov_b32 exec_hi, -1")
    A("ds_write_b64 v6, %s offset:%d" % (v(KACC + 4, 2), 384 * 4))
    A("ds_write_b64 v6, %s offset:%d" % (v(KACC + 6, 2), 448 * 4))
    A("ds_write_b32 v7, %s offset:%d" % (v(KACC + 8), 640 * 4))
    A("s_mov_b64 exec, -1")
    S0, S1, S2, S3 = 10, 16, 20, 24
    A("v_lshlrev_b32 v2, 3, v1")
    A("v_add_u32 v3, s66, v2")
    A("v_lshlrev_b32 v4, 4, v1")
    A("v_add_u32 v4, s66, v4")
    A("ds_read_b128 %s, v4" % v(S0 + 2, 4))
    A("ds_read_b32 %s, v4 offset:16" % v(S0))
    for (S, b) in [(S1, 256), (S2, 384), (S3, 512)]:
        A("ds_read_b64 %s, v3 offset:%d" % (v(S, 2), 4 * b))
        A("ds_read_b32 %s, v3 offset:%d" % (v(S + 2), 4 * b + 8))
    A("v_add_u32 v2, s69, v2")
    A("v_lshrrev_b32 v3, 4, v1")
    A("v_mul_u32_u24 v3, %d, v3" % KSTR)
    A("v_and_b32 v4, 15, v1")
    A("v_lshl_add_u32 v3, v4, 2, v3")
    A("v_add_u32 v3, s69, v3")
    A("v_sub_u32 v5, 63, v1")
    A("v_lshlrev_b32 v6, 5, v5")
    A("v_add_u32 v6, s69, v6")
    A("v_lshlrev_b32 v7, 4, v5")
    A("v_add_u32 v7, s69, v7")
    A("v_lshlrev_b32 v5, 3, v5")
    A("v_add_u32 v5, s69, v5")
    A("v_mov_b32 v8, 0")
    A("v_mov_b32 v9, 0")
    lds_set(A, 12, C_TRD, 1, 76)
    A("s_waitcnt lgkmcnt(1)")
    O = 96

    def val3(o):
        return S3 + (0 if o <= 4 else 1 if o <= 11 else 2)

    def val2(o):
        return S2 + (0 if o <= 2 else 1 if o <= 5 else 2)
    for d in range(4):
        o0 = O + 12 * d
        for w in range(8):
            A("v_cvt_pk_bf16_f32 %s, %s, %s" % (v(o0 + w), v(val3(d + 15 - 2 * w)), v(val3(d + 14 - 2 * w))))
        for w in range(4):
            A("v_cvt_pk_bf16_f32 %s, %s, %s" % (v(o0 + 8 + w), v(val2(d + 7 - 2 * w)), v(val2(d + 6 - 2 * w))))
    A("v_cvt_pk_bf16_f32 v52, %s, %s" % (v(S2), v(S2)))
    a, b, c = S1, S1 + 1, S1 + 2
    t0, t1, t2, t3, t4 = S0 + 2, S0 + 3, S0 + 4, S0 + 5, S0
    prs = [(c, b), (a, a), (c, c), (b, a), (t3, t2), (t1, t0), (t4, t3), (t2, t1)]
    for i, (x, y) in enumerate(prs):
        A("v_cvt_pk_bf16_f32 %s, %s, %s" % (v(64 + i), v(x), v(y)))
    A("v_cvt_pk_bf16_f32 v72, %s, 0" % v(t0))
    A("v_add_u32 v73, %d, v5" % (2 * KSTR + 3072))
    A("v_add_u32 v74, %d, v5" % (3 * KSTR + 3072))
    A.ts(6)
    if OPT.get("ulate", 16):
        prog_wait(A, OPT.get("ulate", 16), 76, 4)
    u_issue(A)
    if not OPT.get("par", 0):
        lds_wait(A, CTRL + C_KPR, "lg", 0, 76, 80, "s10", False, 2)
    sgl = A.newl("Lxg")
    A("s_cmp_eq_u32 s15, 0")
    A("s_cbranch_scc1 %s" % sgl)
    prog_wait(A, OPT.get("xp", 21), 76, 2)
    A.label(sgl)
    A("ds_write_b64 v2, v[8:9] offset:%d" % AUX_U)
    A("ds_write_b32 v3, v8 offset:4096")
    for d in range(4):
        o0 = O + 12 * d
        A("ds_write_b128 v6, %s offset:%d" % (v(o0, 4), d * KSTR))
        A("ds_write_b128 v6, %s offset:%d" % (v(o0 + 4, 4), d * KSTR + 16))
        A("ds_write_b128 v7, %s offset:%d" % (v(o0 + 8, 4), d * KSTR + 2048))
    A("ds_write_b32 v7, v52 offset:%d" % (2 * KSTR + 2048 + 16))
    A("ds_write_b32 v7, v52 offset:%d" % (3 * KSTR + 2048 + 16))
    for d in range(2):
        A("ds_write_b64 v5, %s offset:%d" % (v(64 + 2 * d, 2), d * KSTR + 3072))
        A("ds_write_b64 v5, %s offset:%d" % (v(68 + 2 * d, 2), d * KSTR + 3584))
    for d in range(2):
        A("ds_write2_b32 %s, %s, %s offset0:1 offset1:2" % (v(73 + d), v(64 + 2 * d), v(65 + 2 * d)))
        A("ds_write2_b32 %s, %s, %s offset0:129 offset1:130" % (v(73 + d), v(68 + 2 * d), v(69 + 2 * d)))
    A("s_mov_b64 exec, 1")
    A("ds_write_b32 v5, v72 offset:%d" % (1 * KSTR + 3584 + 8))
    A("ds_write_b32 v5, v72 offset:%d" % (3 * KSTR + 3584 + 12))
    A("s_mov_b64 exec, -1")


def u_issue(A):
    A("v_mov_b32 v80, %d" % CTRL)
    lds_wait(A, C_GO, "lg", 0, 76, 80, "s10", False, 2)
    A("v_lshrrev_b32 v81, 1, v1")
    A("v_mul_u32_u24 v81, 10240, v81")
    A("v_and_b32 v82, 1, v1")
    A("v_lshl_add_u32 v81, v82, 4, v81")
    A("s_and_b32 s4, s68, -2")
    A("s_lshl_b32 s4, s4, 4")
    A("s_and_b32 s5, s12, 1")
    A("s_mul_i32 s5, s5, %d" % (128 * 10240))
    A("s_add_u32 s4, s4, s5")
    A("s_add_u32 s4, s4, 0x%x" % WS_XT)
    for i in range(4):
        A("buffer_load_dwordx4 %s, v81, s[48:51], s4 offen%s" % (v(232 + 4 * i, 4), LSC))
        if i < 3:
            A("s_add_u32 s4, s4, %d" % (32 * 10240))


def prog_wait(A, val, vt, sleep):
    pl, ok = A.newl("Lpw"), A.newl("Lpo")
    A("v_mov_b32 %s, %d" % (v(vt + 4), CTRL))
    A.label(pl)
    guard(A)
    A("ds_read_b128 %s, %s offset:%d" % (v(vt, 4), v(vt + 4), PF + 16 * val))
    A("s_waitcnt lgkmcnt(0)")
    A("v_or_b32 %s, %s, %s" % (v(vt), v(vt), v(vt + 1)))
    A("v_or3_b32 %s, %s, %s, %s" % (v(vt), v(vt), v(vt + 2), v(vt + 3)))
    A("s_nop 0")
    A("v_readfirstlane_b32 s10, %s" % v(vt))
    A("s_cmp_eq_u32 s10, 0")
    A("s_cbranch_scc1 %s" % ok)
    A("s_sleep %d" % sleep)
    A("s_branch %s" % pl)
    A.label(ok)


def epi_wait(A):
    A("s_lshl_b32 s4, s3, 2")
    A("v_mov_b32 v10, s4")
    lds_wait(A, CTRL + C_EPI - 16, "lg", 0, 11, 10, "s10", False, 2)


CV_ACC = 192


def lds_set(A, off_sreg_mul4, base, val, vt):
    A("s_lshl_b32 s4, %s, 2" % s(off_sreg_mul4))
    A("v_mov_b32 %s, s4" % v(vt))
    A("v_mov_b32 %s, %d" % (v(vt + 1), val))
    A("ds_write_b32 %s, %s offset:%d" % (v(vt), v(vt + 1), CTRL + base))


def u_store(A):
    A("s_xor_b32 s4, s12, 1")
    A("s_lshl_b32 s4, s4, 2")
    A("v_mov_b32 v5, s4")
    lds_wait(A, CTRL + C_TRD, "lg", 0, 6, 5, "s10")
    A("s_and_b32 s5, s12, 1")
    A("s_mul_i32 s4, s5, %d" % (AUXSZ + 2048))
    A("s_add_u32 s4, s4, s69")
    A("v_lshrrev_b32 v5, 1, v1")
    A("v_lshlrev_b32 v5, 4, v5")
    A("v_and_b32 v6, 1, v1")
    A("v_mul_u32_u24 v6, %d, v6" % AUXSZ)
    A("v_sub_u32 v5, v5, v6")
    A("v_add_u32 v5, s4, v5")
    for i in range(4):
        A("s_waitcnt vmcnt(%d)" % (3 - i))
        A("ds_write_b128 v5, %s offset:%d" % (v(232 + 4 * i, 4), AUX_U + 512 + 512 * i))


def krdy_wait(A):
    pl, ok = A.newl("Lkw"), A.newl("Lko")
    A("s_and_b32 s4, s12, 2")
    A("s_lshl_b32 s4, s4, 2")
    A("v_mov_b32 v16, s4")
    A.label(pl)
    guard(A)
    A("ds_read_b64 v[14:15], v16 offset:%d" % (CTRL + C_KRDY))
    A("s_waitcnt lgkmcnt(0)")
    A("v_and_b32 v14, v14, v15")
    A("s_nop 0")
    A("v_readfirstlane_b32 s10, v14")
    A("s_cmp_lg_u32 s10, 0")
    A("s_cbranch_scc1 %s" % ok)
    A("s_sleep 1")
    A("s_branch %s" % pl)
    A.label(ok)


def conv_core(A):
    AF, BF, ACC = 64, 128, CV_ACC
    vK, vU = 2, 3
    A.label("Lconv")
    A("v_and_b32 v6, 15, v1")
    A("v_lshrrev_b32 v7, 4, v1")
    A("v_add_u32 v8, 1, v6")
    A("v_and_b32 v9, 3, v8")
    A("v_mul_u32_u24 %s, %d, v9" % (v(vK), KSTR))
    A("v_lshrrev_b32 v8, 2, v8")
    A("v_lshlrev_b32 v8, 3, v8")
    A("v_sub_u32 %s, %s, v8" % (v(vK), v(vK)))
    A("v_lshl_add_u32 %s, v7, 4, %s" % (v(vK), v(vK)))
    A("s_lshl_b32 s5, s13, 6")
    A("s_sub_u32 s5, s69, s5")
    A("s_add_u32 s4, s5, %d" % (32 + 256))
    A("v_add_u32 %s, s4, %s" % (v(vK), v(vK)))
    A("v_lshlrev_b32 %s, 5, v6" % v(vU))
    A("v_lshl_add_u32 %s, v7, 4, %s" % (v(vU), v(vU)))
    A("v_add_u32 %s, s5, %s" % (v(vU), v(vU)))
    for r in range(32):
        A("v_mov_b32 %s, 0" % v(ACC + r))
    epi_wait(A)
    A("s_setprio %d" % OPT.get("pc", 3))
    A.ts(7)
    top = A.newl("Lcv")
    A.label(top)
    lg = Cnt(A, "lgkmcnt", 15)

    def rdA(ph, p):
        r = AF + 32 * (ph & 1) + 4 * p
        off = 64 * (3 - ph) + 512 * (7 - p)
        A("ds_read_b64 %s, %s offset:%d" % (v(r, 2), v(vK), off))
        lg.issue(("a0", ph, p))
        A("ds_read_b64 %s, %s offset:%d" % (v(r + 2, 2), v(vK), off + 8))
        lg.issue(("a", ph, p))

    def rdB(ph, m):
        r = BF + 32 * (ph & 1) + 4 * m
        A("ds_read_b128 %s, %s offset:%d" % (v(r, 4), v(vU), AUX_U + 480 - 64 * ph + 512 * m))
        lg.issue(("b", ph, m))

    def reads(ph):
        L = []
        for i in range(8):
            L.append((rdA, ph, i))
            L.append((rdB, ph, i))
        return L
    pairs = sorted([(p, m) for p in range(8) for m in range(8) if p + m <= 7], key=lambda x: (max(x), x))
    pend = reads(0)
    for _ in range(8):
        f, a1, a2 = pend.pop(0)
        f(a1, a2)
    for ph in range(4):
        if ph + 1 < 4:
            pend += reads(ph + 1)
        for n, (p, m) in enumerate(pairs):
            while any((f is rdA and a1 == ph and a2 == p) or (f is rdB and a1 == ph and a2 == m) for (f, a1, a2) in pend):
                f, a1, a2 = pend.pop(0)
                f(a1, a2)
            lg.wait(("a", ph, p))
            lg.wait(("b", ph, m))
            q = p + m
            A("v_mfma_f32_16x16x32_bf16 %s, %s, %s, %s" % (v(ACC + 4 * q, 4), v(AF + 32 * (ph & 1) + 4 * p, 4), v(BF + 32 * (ph & 1) + 4 * m, 4), v(ACC + 4 * q, 4)))
            if pend and (n & 1) == 0 and len(lg.q) <= 12:
                f, a1, a2 = pend.pop(0)
                f(a1, a2)
    A("v_subrev_u32 %s, 256, %s" % (v(vK), v(vK)))
    A("v_subrev_u32 %s, 256, %s" % (v(vU), v(vU)))
    A("s_sub_u32 s14, s14, 1")
    A("s_cmp_lg_u32 s14, 0")
    A("s_cbranch_scc1 %s" % top)
    A.ts(10)
    A("s_setpc_b64 s[34:35]")


def conv_out(A):
    ACC = CV_ACC
    A("v_lshrrev_b32 v4, 2, v6")
    A("v_lshlrev_b32 v4, 7, v4")
    A("v_and_b32 v5, 3, v6")
    A("v_lshl_add_u32 v4, v5, 4, v4")
    A("v_lshrrev_b32 v5, 1, v7")
    A("v_lshl_add_u32 v4, v5, 6, v4")
    A("v_and_b32 v5, 1, v7")
    A("v_lshl_add_u32 v4, v5, 9, v4")
    A("s_lshl_b32 s4, s68, 12")
    A("s_add_u32 s4, s4, 0x%x" % WS_AT)
    for q in range(8):
        A("v_cvt_pk_bf16_f32 %s, %s, %s" % (v(16 + 2 * q), v(ACC + 4 * q), v(ACC + 4 * q + 1)))
        A("v_cvt_pk_bf16_f32 %s, %s, %s" % (v(17 + 2 * q), v(ACC + 4 * q + 2), v(ACC + 4 * q + 3)))
    A("s_nop 1")
    for i in range(4):
        A("v_permlane16_swap_b32 %s, %s" % (v(16 + 4 * i), v(18 + 4 * i)))
        A("v_permlane16_swap_b32 %s, %s" % (v(17 + 4 * i), v(19 + 4 * i)))
        A("buffer_store_dwordx4 %s, v4, s[48:51], s4 offen offset:%d%s" % (v(16 + 4 * i, 4), 1024 * i, SC1))
    A.ts(11)


def a_flag(A):
    A("s_lshl_b32 s6, s68, 7")
    A("s_add_u32 s6, s6, 0x%x" % FL_A)
    A("s_waitcnt vmcnt(0)")
    signal(A, 6, 10)


def conv_helper(A):
    ACC = CV_ACC
    A("s_sub_u32 s12, s3, 6")
    A("s_add_u32 s4, s12, 1")
    A("s_mul_i32 s4, s4, %d" % AUXSZ)
    A("s_sub_u32 s69, %d, s4" % LDS_TOTAL)
    A("s_lshl_b32 s4, s12, 2")
    A("v_mov_b32 v12, s4")
    krdy_wait(A)
    A("s_mov_b32 s13, 4")
    A("s_mov_b32 s14, 1")
    A("s_call_b64 s[34:35], Lconv")
    lds_wait(A, CTRL + C_CRD, "lg", 0, 13, 12, "s10", False, 0)
    A("v_lshlrev_b32 v5, 4, v1")
    A("v_add_u32 v5, s69, v5")
    A("s_nop 4")
    for q in range(8):
        A("ds_write_b128 v5, %s offset:%d" % (v(ACC + 4 * q, 4), 1024 * q))
    A("v_mov_b32 v13, 1")
    A("ds_write_b32 v12, v13 offset:%d" % (CTRL + C_CPT))
    A("s_waitcnt lgkmcnt(0)")


def conv_owner(A):
    ACC = CV_ACC
    solo, sk6 = A.newl("Lsolo"), A.newl("Lsk")
    u_store(A)
    lds_set(A, 12, C_KRDY, 1, 12)
    krdy_wait(A)
    A.ts(9)
    A("s_mov_b32 s13, 0")
    A("s_sub_u32 s14, 2, s15")
    A("s_call_b64 s[34:35], Lconv")
    A("v_mov_b32 v14, 0")
    A("s_cmp_lt_u32 s3, 6")
    A("s_cbranch_scc1 %s" % sk6)
    A("ds_write_b32 v12, v14 offset:%d" % (PF + 16 * 20))
    A("ds_write_b32 v12, v14 offset:%d" % (PF + 16 * 21))
    A.label(sk6)
    A("s_cmp_eq_u32 s15, 0")
    A("s_cbranch_scc1 %s" % solo)
    A("ds_write_b32 v12, v13 offset:%d" % (CTRL + C_CRD))
    A("v_lshlrev_b32 v5, 4, v1")
    A("v_add_u32 v5, s69, v5")
    lds_wait(A, CTRL + C_CPT, "lg", 0, 14, 12, "s10", False, 0)
    for q in range(8):
        A("ds_read_b128 %s, v5 offset:%d" % (v(64 + 4 * q, 4), 1024 * q))
    for q in range(8):
        A("s_waitcnt lgkmcnt(%d)" % (7 - q))
        for e in range(4):
            A("v_add_f32 %s, %s, %s" % (v(ACC + 4 * q + e), v(ACC + 4 * q + e), v(64 + 4 * q + e)))
    A.label(solo)
    conv_out(A)


def a_fetch(A):
    sk = A.newl("Laf")
    A("s_cmp_eq_u32 s3, 6")
    A("s_cselect_b32 s69, %d, s69" % MAIN)
    A("s_sub_u32 s8, s3, 4")
    A("s_mul_i32 s4, s63, 80")
    A("s_lshl_b32 s5, s8, 5")
    A("s_add_u32 s4, s4, s5")
    A("s_lshl_b32 s6, s4, 12")
    A("s_lshl_b32 s5, s62, 7")
    A("s_add_u32 s6, s6, s5")
    A("s_add_u32 s6, s6, 0x%x" % WS_AT)
    A("v_lshrrev_b32 v2, 3, v1")
    A("v_and_b32 v3, 7, v1")
    A("v_lshlrev_b32 v4, 12, v2")
    A("v_lshl_add_u32 v4, v3, 4, v4")
    A("v_lshlrev_b32 v13, 7, v1")
    A("s_lshl_b32 s9, s4, 7")
    A("s_add_u32 s9, s9, 0x%x" % FL_A)
    A("s_cmp_eq_u32 s3, 6")
    A("s_cselect_b32 exec_lo, 0xffff, -1")
    A("s_mov_b32 exec_hi, 0")
    poll_flags(A, [(14, 1, 13, 9, 0)], [14], 15, OPT.get("asl", 4))
    A("s_mov_b64 exec, -1")
    A.ts(13)
    for i in range(4):
        if i == 2:
            A("s_cmp_eq_u32 s3, 6")
            A("s_cbranch_scc1 %s" % sk)
        A("s_add_u32 m0, s69, %d" % (1024 * i))
        A("s_nop 0")
        A("buffer_load_dwordx4 v4, s[48:51], s6 offen sc1 lds")
        A("s_add_u32 s6, s6, %d" % (8 * 4096))
    A.label(sk)
    A("s_waitcnt vmcnt(0)")


def gemm2(A):
    ACC = 176
    vH, vL, vWo, vC = 12, 16, G_vXo, G_vC
    pool = [r for r in range(24, ACC, 4) if r not in G2_RREGS]
    lg = Cnt(A, "lgkmcnt", 15)
    vm = Cnt(A, "vmcnt", 63)
    Wr, Hr = {(k // 5, k % 5): r for k, r in enumerate(G2_RREGS)}, {}

    def wload(j, ct):
        r = Wr[(j, ct)] = pool.pop(0)
        g2_wload(A, r, j, ct)
        vm.issue(("w", j, ct))

    def hload(j, q):
        r = Hr[(j, q)] = pool.pop(0)
        A("buffer_load_dwordx4 %s, %s, s[48:51], s54 offen%s" % (v(r, 4), v(vH + q), LSC))
        vm.issue(("h", j, q))
        if q == 3 and j < 11:
            A("s_add_u32 s54, s54, 2048")
            A("s_cmp_ge_u32 s54, s56")
            A("s_cselect_b32 s54, s55, s54")
    A("v_lshrrev_b32 v9, 4, v1")
    A("v_and_b32 v10, 15, v1")
    A("v_lshlrev_b32 v10, 4, v10")
    A("v_lshl_add_u32 v10, v9, 9, v10")
    for q in range(4):
        A("s_xor_b32 s4, s3, %d" % q)
        A("s_lshr_b32 s5, s4, 1")
        A("s_mul_i32 s5, s5, %d" % (96 * 1024))
        A("s_and_b32 s4, s4, 1")
        A("s_lshl_b32 s4, s4, 8")
        A("s_add_u32 s4, s4, s5")
        A("v_add_u32 %s, s4, v10" % v(vH + q))

    def area(sd, wreg, jl):
        A("s_mov_b32 %s, %d" % (s(sd), G2SLOT[2 * jl + 1][1]))
        A("s_cmp_lt_u32 %s, 2" % s(wreg))
        A("s_cselect_b32 %s, %s, %d" % (s(sd), s(sd), G2SLOT[2 * jl + 2][1]))
        A("s_bitcmp1_b32 %s, 0" % s(wreg))
        A("s_cselect_b32 s7, 5120, 0")
        A("s_add_u32 %s, %s, s7" % (s(sd), s(sd)))
    for jl in range(NL2):
        area(4, 3, jl)
        A("v_add_u32 %s, s4, %s" % (v(vL + jl), v(vWo)))
    sk = A.newl("Lsg")
    A("s_cmp_ge_u32 s2, 192")
    A("s_cbranch_scc1 %s" % sk)
    A("s_waitcnt vmcnt(0)")
    signal(A, 57, 10)
    A.ts(7)
    for k in range(4 * OPT.get("rearly", 0), 20):
        g2_wload(A, G2_RREGS[k], k // 5, k % 5)
    A.label(sk)
    full_wait(A, 20, False)
    A("v_and_b32 v9, 15, v1")
    A("v_mul_u32_u24 v9, 160, v9")
    A("v_lshrrev_b32 v10, 4, v1")
    A("v_lshl_add_u32 v23, v10, 3, v9")
    A("s_mul_i32 s4, s3, %d" % (16 * 160))
    A("s_add_u32 s4, s4, %d" % G2SLOT[0][1])
    A("v_add_u32 v9, s4, v23")
    for ct in range(5):
        A("ds_read_b64 %s, v9 offset:%d" % (v(ACC + 20 + 2 * ct, 2), 32 * ct))
    A("s_waitcnt lgkmcnt(0)")
    for i in range(10):
        A("v_lshlrev_b32 %s, 16, %s" % (v(ACC + 2 * i), v(ACC + 20 + i)))
        A("v_and_b32 %s, 0xffff0000, %s" % (v(ACC + 2 * i + 1), v(ACC + 20 + i)))
    A("v_lshlrev_b32 v9, 7, v1")
    A("s_lshl_b32 s6, s62, 12")
    A("s_mul_i32 s4, s3, 768")
    A("s_add_u32 s6, s6, s4")
    A("s_add_u32 s6, s6, 0x%x" % FL_H)
    setexec(A, 0x3f)
    poll_flags(A, [(21, 1, 9, 6, 0)], [21], 10, OPT.get("sl", 2))
    A("s_mov_b64 exec, -1")
    vm.q = []
    A.ts(12)
    queue = []
    for j in range(12):
        queue += [(hload, j, q) for q in range(4)]
        if j >= NR2 + NL2:
            queue += [(wload, j, ct) for ct in range(5)]

    def fill(n):
        while queue and pool and n > 0:
            f, j, x = queue.pop(0)
            f(j, x)
            n -= 1
    fill(OPT.get("h0", 99))
    XA = {1: 58, 2: 59, 3: 15}
    for q in range(1, 4):
        A("s_xor_b32 s5, s3, %d" % q)
        area(XA[q], 5, q)
    A("s_lshl_b32 s6, s3, 4")
    A("s_add_u32 s6, s6, %d" % MAIN)
    A("v_lshrrev_b32 v9, 1, v1")
    A("v_lshlrev_b32 v9, 6, v9")
    A("v_and_b32 v10, 1, v1")
    A("v_lshl_add_u32 v9, v10, 3, v9")
    A("v_add_u32 v21, s6, v9")
    srd(A, 64, P_OUT, 2048 * 640 * 2)
    area(4, 3, 0)
    A("v_add_u32 v23, s4, v23")
    GO = [2, 3, 6]
    for p in range(3):
        A("v_add_u32 v9, %d, v1" % (64 * p))
        A("v_mul_u32_u24 v10, 52429, v9")
        A("v_lshrrev_b32 v10, 19, v10")
        A("v_mul_u32_u24 v10, %d, v10" % (1280 - 160))
        A("v_lshl_add_u32 %s, v9, 4, v10" % v(GO[p]))
    A("s_lshl_b32 s14, s62, 2")
    A("s_add_u32 s14, s14, s3")
    A("s_mul_i32 s14, s14, %d" % (16 * 1280))
    A("s_mul_i32 s7, s63, 160")
    A("s_add_u32 s14, s14, s7")
    LB = [Wr[(NR2 - 1, ct)] for ct in range(5)]

    def lread(j, ct):
        Wr[(j, ct)] = LB[ct]
        A("ds_read_b128 %s, %s offset:%d" % (v(LB[ct], 4), v(vL + j - NR2), 1024 * ct))
        lg.issue(("w", j, ct))
    for j in range(11):
        for ct in range(5):
            lg.wait(("w", j, ct))
            vm.wait(("w", j, ct))
            for q in range(4):
                vm.wait(("h", j, q))
                if j == 0 and ct == 0 and q == 0:
                    A.ts(13)
                if OPT.get("g2ts") and j in (3, 6, 9) and ct == 0 and q == 3:
                    A.ts(7 + j // 3)
                d = ACC + 20 * q + 4 * ct
                cin = "0" if (j == 0 and q) else v(d, 4)
                A("v_mfma_f32_16x16x32_bf16 %s, %s, %s, %s" % (v(d, 4), v(Wr[(j, ct)], 4), v(Hr[(j, q)], 4), cin))
                if ct == 4:
                    pool.append(Hr[(j, q)])
                if (q & 1) or OPT.get("hf", 0):
                    fill(1)
            if NR2 - 1 <= j < NR2 + NL2 - 1:
                if ct == 0 and j == NR2 - 1:
                    full_wait(A, 20 + 2 * NL2, False)
                    lg.q = []
                if ct == 0 and j == OPT.get("agj", 4):
                    A("v_mov_b32 v10, 0")
                    A("ds_write_b32 %s, v10 offset:%d" % (v(G_vPa), PF + 16 * 22))
                    lg.issue("p")
                lread(j + 1, ct)
            else:
                pool.append(Wr[(j, ct)])
    fill(99)
    assert not queue
    done = []
    for q in (1, 2, 3, 0):
        vm.wait(("h", 11, q))
        for ct in range(5):
            vm.wait(("w", 11, ct))
            d = ACC + 20 * q + 4 * ct
            A("v_mfma_f32_16x16x32_bf16 %s, %s, %s, %s" % (v(d, 4), v(Wr[(11, ct)], 4), v(Hr[(11, q)], 4), v(d, 4)))
            if q:
                done.append((q, ct))
            if len(done) > 8 or (q == 0 and done):
                qq, cc = done.pop(0)
                A("ds_write_b128 %s, %s offset:%d" % (v(vL + qq), v(ACC + 20 * qq + 4 * cc, 4), 1024 * cc))
    A.ts(14)
    for (qq, cc) in done:
        A("ds_write_b128 %s, %s offset:%d" % (v(vL + qq), v(ACC + 20 * qq + 4 * cc, 4), 1024 * cc))
    for q in range(1, 4):
        A("v_add_u32 %s, %s, %s" % (v(vH + q), s(XA[q]), v(vWo)))
    A("v_add_u32 %s, %d, v21" % (v(vH), AUX0 - MAIN))
    A("s_waitcnt lgkmcnt(0)")
    A("s_barrier")
    R = 96
    lg.q = []
    for ct in range(5):
        if ct < 4:
            A("ds_read_b64_tr_b16 %s, %s offset:%d" % (v(R + 16 * ct + 2, 2), v(vH), (1 - (ct >> 1)) * AUXSZ + 2048 * (ct & 1)))
        else:
            A("ds_read_b64_tr_b16 %s, v21" % v(R + 16 * ct + 2, 2))
        lg.issue((ct, 0))
        for q in range(1, 4):
            A("ds_read_b128 %s, %s offset:%d" % (v(R + 16 * ct + 4 * q, 4), v(vH + q), 1024 * ct))
            lg.issue((ct, q))
    for ct in range(5):
        lg.wait((ct, 3))
        d, r = ACC + 4 * ct, R + 16 * ct
        A("v_lshlrev_b32 %s, 16, %s" % (v(r), v(r + 2)))
        A("v_and_b32 %s, 0xffff0000, %s" % (v(r + 1), v(r + 2)))
        A("v_lshlrev_b32 %s, 16, %s" % (v(r + 2), v(r + 3)))
        A("v_and_b32 %s, 0xffff0000, %s" % (v(r + 3), v(r + 3)))
        for h in (0, 2):
            A("v_pk_add_f32 %s, %s, %s" % (v(d + h, 2), v(d + h, 2), v(r + 4 + h, 2)))
            A("v_pk_add_f32 %s, %s, %s" % (v(r + 8 + h, 2), v(r + 8 + h, 2), v(r + 12 + h, 2)))
        for h in (0, 2):
            A("v_pk_add_f32 %s, %s, %s" % (v(d + h, 2), v(d + h, 2), v(r + h, 2)))
        for h in (0, 2):
            A("v_pk_add_f32 %s, %s, %s" % (v(d + h, 2), v(d + h, 2), v(r + 8 + h, 2)))
        A("v_cvt_pk_bf16_f32 %s, %s, %s" % (v(64 + 2 * ct), v(d), v(d + 1)))
        A("v_cvt_pk_bf16_f32 %s, %s, %s" % (v(65 + 2 * ct), v(d + 2), v(d + 3)))
        A("ds_write_b64 v23, %s offset:%d" % (v(64 + 2 * ct, 2), 32 * ct))
        lg.issue(("o", ct))
    for p in range(3):
        A("ds_read_b128 %s, %s offset:%d" % (v(80 + 4 * p, 4), v(vL), 1024 * p))
    for p in range(3):
        A("s_waitcnt lgkmcnt(%d)" % (2 - p))
        if p == 2:
            A("s_mov_b32 exec_hi, 0")
        A("buffer_store_dwordx4 %s, %s, s[64:67], s14 offen%s" % (v(80 + 4 * p, 4), v(GO[p]), ["", " sc1", " nt", " sc0 sc1"][OPT.get("osc", 1)]))
    A("s_mov_b64 exec, -1")
    A.ts(15)


def aux_ids(A):
    A("s_sub_u32 s12, s3, 4")
    A("s_lshr_b32 s5, s2, 3")
    A("s_lshl_b32 s6, s5, 1")
    A("s_lshl_b32 s7, s5, 2")
    A("s_sub_u32 s7, s7, 48")
    A("s_cmp_lt_u32 s5, 24")
    A("s_cselect_b32 s6, s6, s7")
    A("s_cselect_b32 s15, 1, 0")
    A("s_and_b32 s68, s2, 7")
    A("s_mul_i32 s68, s68, 80")
    A("s_add_u32 s68, s68, s6")
    A("s_add_u32 s68, s68, s12")
    A("s_add_u32 s4, s12, 1")
    A("s_mul_i32 s4, s4, %d" % AUXSZ)
    A("s_sub_u32 s69, %d, s4" % LDS_TOTAL)
    A("s_cmp_eq_u32 s12, 0")
    A("s_cselect_b32 s66, %d, s69" % (LDS_TOTAL - STGSZ))


def kdesc(name):
    return """.amdhsa_kernel %s
  .amdhsa_next_free_vgpr 256
  .amdhsa_next_free_sgpr 102
  .amdhsa_accum_offset 256
  .amdhsa_group_segment_fixed_size 0
  .amdhsa_kernarg_size 128
  .amdhsa_user_sgpr_count 2
  .amdhsa_user_sgpr_kernarg_segment_ptr 1
  .amdhsa_system_sgpr_workgroup_id_x 1
.end_amdhsa_kernel
""" % name


def build_fused():
    A = Asm()
    name = NAME + "_kernel"
    prologue(A, name, 0)
    st0 = list(A.stamps)
    lch, lload, lS, lg2, ljob, lfetch = [A.newl(x) for x in ["Lch", "Lload", "LS", "Lg2", "Ljob", "Lfetch"]]
    A("s_cmp_ge_u32 s2, 192")
    A("s_cbranch_scc1 %s" % lS)
    A("s_cmp_eq_u32 s3, 7")
    A("s_cbranch_scc1 %s" % lload)
    A("s_cmp_eq_u32 s3, 6")
    A("s_cbranch_scc1 %s" % ljob)
    A("s_cmp_ge_u32 s3, 4")
    A("s_cbranch_scc1 %s" % lch)
    A("s_setprio %d" % OPT.get("pg", 2))
    gemm1(A)
    if OPT.get("g1only"):
        if OPT.get("kts"):
            A.stamps += [13, 15]
        A.end()
    A.label(lg2)
    A.stamps = sorted(set(A.stamps + [1, 2, 3])) if OPT["ts"] else []
    gemm2(A)
    A.end()
    A.label(lS)
    A.stamps = list(st0)
    A("s_cmp_ge_u32 s3, 4")
    A("s_cbranch_scc1 %s" % lch)
    A("s_setprio 2")
    s_phase0(A)
    if OPT.get("g1only"):
        A.end()
    A.label("Ls_join")
    g2_streams(A)
    lds_wait(A, C_GO, "lg", 0, 10, G_vC, "s10", False, 4)
    for k, r in enumerate(G2_RREGS):
        g2_wload(A, r, k // 5, k % 5)
    A("s_branch %s" % lg2)
    A.flush_cold()
    A.label(lload)
    A.stamps = list(st0)
    A("s_setprio %d" % OPT.get("pl", 1))
    loader1_setup(A)
    if OPT.get("cnt"):
        A.stamps += [11, 14]
    loader_run(A, 0, NB1 if OPT.get("g1only") else NB1 + 2 * NL2 + 1)
    A.label("Lload_end")
    A.ts(4)
    if not OPT.get("g1only"):
        le, lf = A.newl("Lle"), A.newl("Llf")
        A("s_cmp_ge_u32 s2, 192")
        A("s_cbranch_scc1 %s" % lf)
        conv_helper(A)
        A("s_branch %s" % le)
        A.label(lf)
        a_flag(A)
        A.label(le)
        A.stamps = sorted(set(A.stamps + [1, 5, 6, 7, 8, 9, 10, 11, 12])) if OPT["ts"] else []
    A("s_waitcnt vmcnt(0) lgkmcnt(0)")
    A.end()
    A.label(ljob)
    A.stamps = list(st0)
    A("s_and_b32 s68, s2, 7")
    A("s_mul_i32 s68, s68, 80")
    A("s_lshr_b32 s4, s2, 3")
    A("s_lshl_b32 s4, s4, 1")
    A("s_add_u32 s68, s68, s4")
    if OPT.get("par", 0):
        A("s_mov_b32 s66, %d" % HSTG)
        kgen_setup(A, KB)
        A("s_setprio 2")
        ready(A, lambda A: kgen_issue(A, 68, [1], 40, False))
        A("s_waitcnt vmcnt(0)")
        A.ts(1)
        if not OPT.get("auxoff"):
            A("v_mov_b32 v4, 0")
            A("global_load_dword v4, v4, %s sc1" % s(P_DBG, 2))
            kgen_call(A, 40, 46, True)
            A("s_mov_b32 s8, 2")
            kgen_give(A, 66, 8)
            nonce_fetch(A, 4, True)
    else:
        A("s_add_u32 s67, s68, 1")
        A("s_mov_b32 s66, %d" % HSTG)
        kgen_setup(A, KB)

        def early6(A):
            kgen_issue(A, 68, [2], 40, False)
            kgen_issue(A, 67, [2], 48, False)
        A("s_setprio 2")
        ready(A, early6)
        A("s_waitcnt vmcnt(7)")
        A("s_setprio %d" % OPT.get("pa", 0))
        A.ts(1)
        if not OPT.get("auxoff"):
            A("v_mov_b32 v4, 0")
            A("global_load_dword v4, v4, %s sc1" % s(P_DBG, 2))
            kgen_call(A, 40, 46, True)
            nonce_fetch(A, 4, True)
            A("s_nop 7")
            for r in range(12):
                A("v_mov_b32 %s, %s" % (v(220 + r), v(KB + KB_ACC + r)))
            if not OPT.get("nok2"):
                kgen_call(A, 48, 54, True)
            A("s_mov_b32 s7, %d" % (HSTG + 3072))
            A("s_mov_b32 s8, 0")
            kgen_give(A, 7, 8, 220)
            A("s_mov_b32 s7, %d" % HSTG)
            A("s_mov_b32 s8, 1")
            kgen_give(A, 7, 8)
    A.ts(5)
    if OPT.get("g1only"):
        A.end()
    prog_wait(A, OPT.get("jpg", 13), 12, 8)
    if not OPT.get("j5", 1):
        colsum_gather(A)
        A.ts(3)
    poll_all(A, 2, FL_X, C_GO, False, OPT.get("gsl", 12))
    A.ts(2)
    if OPT.get("sdel", 0):
        sk = A.newl("Lh")
        A("s_cmp_ge_u32 s2, 64")
        A("s_cbranch_scc1 %s" % sk)
        prog_wait(A, OPT.get("sdp", 18), 12, 4)
        A("s_lshl_b32 s6, s2, 7")
        A("s_add_u32 s6, s6, 0x%x" % FL_G)
        signal(A, 6, 10)
        A.label(sk)
    if OPT.get("park", 0):
        park(A)
    conv_helper(A)
    A("s_branch %s" % lfetch)
    A.flush_cold()
    A.label(lch)
    A.stamps = list(st0)
    ln = A.newl("Lnn")
    B = KB
    aux_ids(A)
    kgen_setup(A, B)
    l7 = A.newl("L7")
    A("s_cmp_lg_u32 s3, 7")
    A("s_cbranch_scc1 %s" % l7)
    flg_init(A)
    A.label(l7)

    def early(A):
        A("s_cmp_lg_u32 s68, 0")
        A("s_cbranch_scc1 %s" % ln)
        A("s_memrealtime s[4:5]")
        A("s_waitcnt lgkmcnt(0)")
        A("s_or_b32 s4, s4, 1")
        A("v_mov_b32 v2, 0")
        A("v_mov_b32 v3, s4")
        A("s_mov_b64 exec, 1")
        A("global_store_dword v2, v3, %s sc1" % s(P_DBG, 2))
        A("s_mov_b64 exec, -1")
        A.label(ln)
        kgen_issue(A, 68, [0, 1], 40, True)
    A("s_setprio 2")
    ready(A, early)
    if OPT.get("auxoff"):
        A("s_endpgm")
    A("s_waitcnt vmcnt(0)")
    A.ts(1)
    if OPT.get("par", 0):
        lp = A.newl("Lp")
        A("s_cmp_lg_u32 s15, 0")
        A("s_cbranch_scc1 %s" % lp)
        A("s_setprio 0")
        A.label(lp)
        kgen_call(A, 40, 52, True)
        lp, lq = A.newl("Lp"), A.newl("Lq")
        A("s_cmp_lg_u32 s15, 0")
        A("s_cbranch_scc1 %s" % lp)
        kgen_call(A, 46, 52, False)
        A("s_add_u32 s7, s69, 8192")
        kgen_take2(A, 12, 7, False)
        A("s_branch %s" % lq)
        A.label(lp)
        A("s_setprio 2")
        A("s_mul_i32 s7, s12, %d" % STGSZ)
        A("s_add_u32 s7, s7, %d" % XSLOT(2))
        kgen_take2(A, 12, 7, True)
        A("s_add_u32 s8, s12, 2")
        A("s_mov_b32 s7, %d" % HSTG)
        A("s_cmp_eq_u32 s12, 0")
        A("s_cselect_b32 s7, s7, %d" % WSLOT(4))
        kgen_take2(A, 8, 7, True)
        A("s_setprio 0")
        A.label(lq)
    else:
        A("s_setprio %d" % OPT.get("pa", 0))
        kgen_call(A, 40, 52, True)
        if OPT.get("nok2"):
            lz = A.newl("Lz")
            A("s_cmp_lg_u32 s15, 0")
            A("s_cbranch_scc1 %s" % lz)
        kgen_call(A, 46, 52, False)
        if OPT.get("nok2"):
            A.label(lz)
    A.ts(5)
    nonce_lds(A, 4)
    if OPT.get("j5", 1) and not OPT.get("g1only"):
        lj5 = A.newl("Lj5")
        A("s_and_b32 s4, s12, s15")
        A("s_cbranch_scc0 %s" % lj5)
        prog_wait(A, OPT.get("jp1", 10), 12, 8)
        colsum_gather(A)
        A.ts(3)
        A.label(lj5)
    if not OPT.get("par", 0):
        kgen_take(A)
    if OPT.get("g1only"):
        A.ts(6)
        A.end()
    kgen_expand(A, B + KB_ACC)
    A.ts(8)
    conv_owner(A)
    l7 = A.newl("L7")
    A("s_cmp_eq_u32 s3, 7")
    A("s_cbranch_scc1 %s" % l7)
    a_flag(A)
    A.ts(12)
    A("s_branch %s" % lfetch)
    A.label(l7)
    loader_regs(A)
    loader2_setup(A, SPLIT2 // 2)
    lds_wait(A, FLG + 4 * (20 + SPLIT2 - 1), "eq", 0, 38, LV_C, "s4")
    A("s_branch Lload_g2b")
    A.label(lfetch)
    A("s_setprio %d" % OPT.get("pf", 0))
    lgq = A.newl("Lgq")
    if OPT.get("agate", 1) == 0:
        A("s_cmp_lt_u32 s2, 192")
        A("s_cbranch_scc1 %s" % lgq)
    prog_wait(A, 22, 12, 4)
    A.label(lgq)
    prog_wait(A, 21, 12, 4)
    A.stamps = sorted(set(A.stamps + [1, 2, 3, 5, 7, 10])) if OPT["ts"] else []
    a_fetch(A)
    A.ts(14)
    A.end()
    A.label("Lkgen")
    kgen_chunk(A, KB, OPT.get("pkm", 0))
    if OPT.get("kts"):
        A.ts(15)
    A("s_setpc_b64 s[34:35]")
    if not OPT.get("g1only"):
        conv_core(A)
        A.flush_cold()
    else:
        A.label("Lconv")
        A.label("Lload_g2")
        A.label("Lload_g2b")
        A("s_endpgm")
    hdr = "; @launch grid=(256,1,1) block=(512,1,1) lds=%d\n" % LDS_TOTAL
    return hdr, A, [name]


def main():
    hdr, A, names = build_fused()
    out = "; generated by gen.py (hand-written generator)\n" + hdr
    out += '.amdgcn_target "amdgcn-amd-amdhsa--gfx950"\n.text\n'
    out += "\n".join(A.L) + "\nLcode_end:\n"
    out += '.section .rodata,"a"\n'
    for n in names:
        out += ".p2align 6\n" + kdesc(n)
    open(sys.argv[1], "w").write(out)


main()
```

```python
import sys, math, struct

NAME = "parallel_sum__ssm_conv_s4__swiglu_ffn__prompt"
OPT = dict(ts=False)
for a in sys.argv[2:]:
    k, _, v = a.partition("=")
    OPT[k] = int(v) if v else True

WS_ST = 0x000000
WS_CS = 0x010000
WS_XT = 0x280000
WS_HF = 0x500000
WS_AT = 0xB00000
WS_FL = 0xD80000
WS_TS = 0xE00000
WS_WD = 0x1000000
WS_SIZE = 0x1200000
FL_X = WS_FL
FL_W = WS_FL + 0x4000
FL_H = WS_FL + 0x10000
FL_A = WS_FL + 0x40000

WP = 1088
UPOFF = 4 * WP + 16
SLOT1 = 8 * WP + 32
U1 = 2 * SLOT1
U2 = 10240
CTRL = 0
C_NONCE, C_PROG, C_EPI, C_CSOK, C_CNT, C_GO, C_KRDY, C_CRD, C_CPT, C_CNT2, C_GOW = 4, 16, 32, 60, 80, 84, 64, 88, 104, 112, 116
C_TRD = 48
C_KP, C_KPR = 16, 124
CSUM = CTRL + 128
FLG = CSUM + 1024 + 256
PF = FLG + 256
MAIN = PF + 384
KSTR = 4160
AUX_U = 4 * KSTR
AUXSZ = AUX_U + 4608
LDS_TOTAL = 163840
AUX0 = LDS_TOTAL - 2 * AUXSZ
STGSZ = 8192
LNROW = 1312
NW, NXC = OPT.get("nw", 5), 3
XRING = MAIN
WADDR = [XRING + NXC * 16384 + i * U1 for i in range(4)] + [AUX0 + STGSZ]
WHI = WADDR[3]
assert WADDR[3] + U1 <= AUX0 and WADDR[4] + U1 <= LDS_TOTAL - STGSZ
HSTG = WADDR[4] + U1
assert HSTG + STGSZ <= LDS_TOTAL - STGSZ and HSTG >= AUX0 + AUXSZ
FL_G = WS_FL + 0x6000
CONV_PROG = 16
SPRIV = 19072


def WSLOT(u):
    return WADDR[(u + 4) % NW]


def XSLOT(c):
    return XRING + ((9 - c) % NXC) * 16384


NL2 = 5
NS2 = 2 * NL2 + 1
NR2 = 4


def _g2slots():
    areas = [(WSLOT(u), WSLOT(u) + U1, u + 1) for u in range(20 - NW, 20)]
    areas += [(XSLOT(c), XSLOT(c) + 16384, 2 * c + 2) for c in range(10 - NXC, 10)]
    out = []
    for i in range(NS2):
        lo = AUX0 - (i + 1) * U2
        assert lo >= MAIN + 2048
        need = max(n for (a, b, n) in areas if a < lo + U2 and lo < b)
        if lo + U2 > LDS_TOTAL - 4 * AUXSZ:
            need = max(need, 19)
        out.append((need, lo))
    return sorted(out)


G2SLOT = _g2slots()

LOG2E = 1.4426950408889634
BUD, NON = "s0", "s1"

def fbits(x):
    return "0x%08x" % struct.unpack("<I", struct.pack("<f", x))[0]


def v(i, n=1):
    return "v%d" % i if n == 1 else "v[%d:%d]" % (i, i + n - 1)


def s(i, n=1):
    return "s%d" % i if n == 1 else "s[%d:%d]" % (i, i + n - 1)


class Cnt:
    def __init__(self, A, name, mx):
        self.A, self.name, self.mx, self.q = A, name, mx, []

    def issue(self, tag):
        self.q.append(tag)

    def wait(self, tag):
        if tag not in self.q:
            return
        i = len(self.q) - 1 - self.q[::-1].index(tag)
        n = len(self.q) - 1 - i
        self.A("s_waitcnt %s(%d)" % (self.name, min(n, self.mx)))
        self.q = self.q[i + 1:]

    def drain(self):
        self.A("s_waitcnt %s(0)" % self.name)
        self.q = []


class Asm:
    def __init__(self):
        self.L = []
        self.nl = 0
        self.stamps = []
        self.cold = []

    def flush_cold(self):
        for f in self.cold:
            f()
        self.cold = []

    def __call__(self, t):
        self.L.append("  " + t)

    def label(self, l):
        self.L.append(l + ":")

    def newl(self, p="L"):
        self.nl += 1
        return "%s_%d" % (p, self.nl)

    def c(self, t):
        self.L.append("  ; " + t)

    def ts(self, slot):
        if OPT["ts"]:
            self("%s %s" % ("s_memtime" if OPT.get("cyc") else "s_memrealtime", s(70 + 2 * slot, 2)))
            self.stamps.append(slot)

    def end(self):
        if OPT.get("probe") is not None and self.stamps:
            if OPT["probe"] in self.stamps:
                sk, lp = self.newl("Lpr"), self.newl("Lpl")
                self("s_waitcnt lgkmcnt(0)")
                self("s_cmp_lg_u32 s2, %d" % OPT.get("probeg", 17))
                self("s_cbranch_scc1 %s" % sk)
                self("s_cmp_lg_u32 s3, %d" % OPT.get("probew", 0))
                self("s_cbranch_scc1 %s" % sk)
                self("s_sub_u32 s4, %s, s70" % s(70 + 2 * OPT["probe"]))
                self("s_lshl_b32 s4, s4, 2")
                self("s_add_u32 s4, s4, 3000")
                self.label(lp)
                self("s_memrealtime s[6:7]")
                self("s_waitcnt lgkmcnt(0)")
                self("s_sub_u32 s6, s6, s70")
                self("s_cmp_lt_u32 s6, s4")
                self("s_cbranch_scc1 %s" % lp)
                self.label(sk)
        elif OPT.get("dbgts") is not None and self.stamps:
            sk = self.newl("Ldt")
            self("s_waitcnt lgkmcnt(0)")
            self("s_cmp_lg_u32 s2, %d" % OPT.get("dbgwg", 17))
            self("s_cbranch_scc1 %s" % sk)
            self("s_cmp_lg_u32 s3, %d" % OPT["dbgts"])
            self("s_cbranch_scc1 %s" % sk)
            self("s_mov_b64 exec, 1")
            self("v_mov_b32 v2, 0")
            for sl in self.stamps:
                if sl == 0:
                    continue
                self("s_sub_u32 s4, %s, s70" % s(70 + 2 * sl))
                self("v_mov_b32 v0, s4")
                self("global_store_dword v2, v0, %s offset:%d" % (s(44, 2), 4 * sl))
            self.label(sk)
        elif OPT["ts"] and self.stamps:
            self("s_waitcnt lgkmcnt(0)")
            self("s_mov_b64 exec, 1")
            self("s_lshl_b32 s4, s2, 3")
            self("s_add_u32 s4, s4, s3")
            self("s_lshl_b32 s4, s4, 7")
            self("s_add_u32 s4, s4, 0x%x" % WS_TS)
            self("v_mov_b32 v2, 0")
            for sl in self.stamps:
                self("v_mov_b32 v0, %s" % s(70 + 2 * sl))
                self("v_mov_b32 v1, %s" % s(71 + 2 * sl))
                self("buffer_store_dwordx2 v[0:1], v2, s[48:51], s4 offen offset:%d" % (8 * sl))
                self("s_nop 1")
        self("s_endpgm")
        self.flush_cold()


P_X, P_ARE, P_AIM, P_BRE, P_BIM, P_CRE, P_CIM, P_LDT, P_DSK, P_BX, P_WG, P_WU, P_WD, P_OUT, P_DBG, P_WS = [16 + 2 * i for i in range(16)]
SC1 = " sc1"
LSC = " sc1"


def srd(A, d, ptr, size):
    A("s_mov_b32 %s, %s" % (s(d), s(ptr)))
    A("s_mov_b32 %s, %s" % (s(d + 1), s(ptr + 1)))
    A("s_mov_b32 %s, 0x%x" % (s(d + 2), size))
    A("s_mov_b32 %s, 0x20000" % s(d + 3))


def prologue(A, name, tsslot):
    A.L.append(".globl %s" % name)
    A.L.append(".p2align 8")
    A.L.append(".type %s,@function" % name)
    A.label(name)
    A.stamps = []
    ok = A.newl("Lgo")
    A("s_cmp_lt_u32 s2, 256")
    A("s_cbranch_scc1 %s" % ok)
    A.exit = A.newl("Lexit")
    A.label(A.exit)
    A("s_endpgm")
    A.label(ok)
    A("s_load_dwordx16 s[16:31], s[0:1], 0")
    A("s_load_dwordx16 s[32:47], s[0:1], 64")
    if OPT["ts"]:
        for i in range(16):
            A("s_mov_b64 %s, 0" % s(70 + 2 * i, 2))
    A.ts(tsslot)
    A("v_lshrrev_b32 v2, 6, v0")
    A("v_and_b32 v1, 63, v0")
    A("v_readfirstlane_b32 s3, v2")
    A("v_and_b32 v2, 31, v0")
    A("v_lshlrev_b32 v2, 2, v2")
    A("v_add_u32 v2, %d, v2" % CTRL)
    A("v_mov_b32 v3, 0")
    A("ds_write_b32 v2, v3")
    if OPT.get("cpf", 1):
        l2 = A.newl("Lw")
        A("s_cmp_lg_u32 s3, 2")
        A("s_cbranch_scc1 %s" % l2)
        code_prefetch(A)
        A.label(l2)
    map_g1(A)
    map_g2(A)


def ready(A, early=None):
    A("s_waitcnt lgkmcnt(0)")
    if early:
        early(A)
    A("s_barrier")
    A("s_mov_b32 %s, 0x40000" % BUD)
    srd(A, 48, P_WS, WS_SIZE)


def tlb_warm(A, vt):
    ptrs = [P_X, P_WG, P_WU, P_ARE, P_AIM, P_BRE, P_BIM, P_CRE, P_CIM, P_LDT, P_DSK, P_WD, P_DBG, P_WS]
    A("v_mov_b32 %s, %s" % (v(vt), s(P_X)))
    A("v_mov_b32 %s, %s" % (v(vt + 1), s(P_X + 1)))
    for i, p in enumerate(ptrs):
        if i:
            A("v_writelane_b32 %s, %s, %d" % (v(vt), s(p), i))
            A("v_writelane_b32 %s, %s, %d" % (v(vt + 1), s(p + 1), i))
    A("s_mov_b64 exec, 0x%x" % ((1 << len(ptrs)) - 1))
    A("global_load_dword %s, %s, off" % (v(vt + 2), v(vt, 2)))
    A("s_mov_b64 exec, -1")


def guard(A):
    A("s_sub_u32 %s, %s, 1" % (BUD, BUD))
    A("s_cbranch_scc1 %s" % A.exit)


def map_g1(A):
    A("s_and_b32 s4, s2, 7")
    A("s_lshr_b32 s5, s2, 3")
    A("s_and_b32 s60, s4, 1")
    A("s_lshl_b32 s60, s60, 3")
    A("s_and_b32 s6, s5, 7")
    A("s_add_u32 s60, s60, s6")
    A("s_lshr_b32 s61, s4, 1")
    A("s_mul_i32 s61, s61, 3")
    A("s_lshr_b32 s6, s5, 3")
    A("s_add_u32 s61, s61, s6")


def map_g2(A):
    A("s_lshr_b32 s5, s2, 3")
    A("s_and_b32 s62, s2, 1")
    A("s_lshl_b32 s62, s62, 4")
    if OPT.get("m2", 1) == 0:
        A("s_bfe_u32 s4, s2, 0x20001")
        A("s_lshl_b32 s4, s4, 2")
        A("s_add_u32 s62, s62, s4")
        A("s_and_b32 s6, s5, 3")
        A("s_add_u32 s62, s62, s6")
        A("s_lshr_b32 s63, s5, 2")
    else:
        A("s_bfe_u32 s4, s2, 0x10001")
        A("s_lshl_b32 s4, s4, 3")
        A("s_add_u32 s62, s62, s4")
        A("s_and_b32 s6, s5, 7")
        A("s_add_u32 s62, s62, s6")
        A("s_and_b32 s63, s2, 4")
        A("s_lshr_b32 s6, s5, 3")
        A("s_add_u32 s63, s63, s6")


def lds_wait(A, off, cmp, val, vF, vC, sF, have=False, sleep=1):
    ok, poll = A.newl("Lok"), A.newl("Lpoll")

    def loop():
        A.label(poll)
        guard(A)
        if OPT.get("cnt") and have:
            A("s_add_u32 s92, s92, 1")
        A("ds_read_b32 %s, %s offset:%d" % (v(vF), v(vC), off))
        A("s_waitcnt lgkmcnt(0)")
        A("v_readfirstlane_b32 %s, %s" % (sF, v(vF)))
        A("s_cmp_%s_u32 %s, %s" % (cmp, sF, val))
        A("s_cbranch_scc1 %s" % ok)
        A("s_sleep %d" % sleep)
        A("s_branch %s" % poll)
    if have:
        A("v_readfirstlane_b32 %s, %s" % (sF, v(vF)))
        A("s_cmp_%s_u32 %s, %s" % (cmp, sF, val))
        A("s_cbranch_scc0 %s" % poll)
        A.cold.append(loop)
    else:
        loop()
    A.label(ok)


def nonce_lds(A, vt):
    A("v_mov_b32 %s, %d" % (v(vt + 1), CTRL))
    lds_wait(A, C_NONCE, "lg", 0, vt, vt + 1, NON)


def nonce_fetch(A, vt, issued=False):
    poll, chk = A.newl("Lnp"), A.newl("Lnc")
    if issued:
        A("s_branch %s" % chk)
    A.label(poll)
    guard(A)
    A("v_mov_b32 %s, 0" % v(vt))
    A("global_load_dword %s, %s, %s sc1" % (v(vt), v(vt), s(P_DBG, 2)))
    A.label(chk)
    A("s_waitcnt vmcnt(0)")
    A("v_readfirstlane_b32 %s, %s" % (NON, v(vt)))
    A("s_cmp_lg_u32 %s, 0" % NON)
    A("s_cbranch_scc0 %s" % poll)
    A("v_mov_b32 %s, %d" % (v(vt + 1), CTRL))
    A("ds_write_b32 %s, %s offset:%d" % (v(vt + 1), v(vt), C_NONCE))


def signal(A, soff, vt):
    A("v_mov_b32 %s, 0" % v(vt))
    A("v_mov_b32 %s, %s" % (v(vt + 1), NON))
    A("s_mov_b64 exec, 1")
    A("buffer_store_dword %s, %s, s[48:51], %s offen sc1" % (v(vt + 1), v(vt), s(soff)))
    A("s_mov_b64 exec, -1")


def poll_flags(A, loads, tags, vt, sleep=2):
    top, done = A.newl("Lgp"), A.newl("Lgd")
    A.label(top)
    guard(A)
    for (r, n, vo, so, imm) in loads:
        op = {1: "dword", 2: "dwordx2", 4: "dwordx4"}[n]
        A("buffer_load_%s %s, %s, s[48:51], %s offen offset:%d sc1" % (op, v(r, n), v(vo), s(so), imm))
    A("s_waitcnt vmcnt(0)")
    tag_check(A, tags, vt, done)
    A("s_sleep %d" % sleep)
    A("s_branch %s" % top)
    A.label(done)


def tag_check(A, tags, vt, done):
    A("v_xor_b32 %s, %s, %s" % (v(vt), NON, v(tags[0])))
    for x in tags[1:]:
        A("v_xor_b32 %s, %s, %s" % (v(vt + 1), NON, v(x)))
        A("v_or_b32 %s, %s, %s" % (v(vt), v(vt), v(vt + 1)))
    A("v_cmp_ne_u32 s[4:5], 0, %s" % v(vt))
    A("s_cmp_eq_u64 s[4:5], 0")
    A("s_cbranch_scc1 %s" % done)


def setexec(A, m):
    A("s_mov_b32 exec_lo, 0x%x" % (m & 0xffffffff))
    A("s_mov_b32 exec_hi, 0x%x" % (m >> 32))


def poll_all(A, vt, fl, go, dyn=False, sl=6):
    A("v_lshlrev_b32 %s, 7, v1" % v(vt))
    if dyn:
        A("s_add_u32 s6, s7, 0x%x" % fl)
    else:
        A("s_mov_b32 s6, 0x%x" % fl)
    poll_flags(A, [(vt + 4, 1, vt, 6, 0)], [vt + 4], vt + 1, sl)
    A("v_mov_b32 %s, %s" % (v(vt), "s8" if dyn else "0"))
    A("v_mov_b32 %s, 1" % v(vt + 1))
    A("ds_write_b32 %s, %s offset:%d" % (v(vt), v(vt + 1), go))


LN_X, LN_F, LN_T = 216, 64, 24


def ln_issue(A):
    T = LN_T
    A("v_lshrrev_b32 %s, 3, v1" % v(T))
    A("v_and_b32 %s, 7, v1" % v(T + 1))
    A("v_mul_u32_u24 %s, 1280, %s" % (v(T + 2), v(T)))
    A("v_lshl_add_u32 %s, %s, 4, %s" % (v(T + 2), v(T + 1), v(T + 2)))
    A("s_mul_i32 s4, s9, %d" % (8 * 1280))
    for i in range(10):
        A("buffer_load_dwordx4 %s, %s, s[52:55], s4 offen offset:%d" % (v(LN_X + 4 * i, 4), v(T + 2), 128 * i))


def red8(A, r):
    for m in ["quad_perm:[1,0,3,2]", "quad_perm:[2,3,0,1]", "row_half_mirror"]:
        A("s_nop 1")
        A("v_add_f32_dpp %s, %s, %s %s row_mask:0xf bank_mask:0xf" % (v(r), v(r), v(r), m))


def ln8(A):
    X, F, T = LN_X, LN_F, LN_T
    S0, S1, M, R = T + 4, T + 6, T + 8, T + 10
    for i in range(40):
        A("v_lshlrev_b32 %s, 16, %s" % (v(F + 2 * i), v(X + i)))
        A("v_and_b32 %s, 0xffff0000, %s" % (v(F + 2 * i + 1), v(X + i)))
    A("v_pk_add_f32 %s, %s, %s" % (v(S0, 2), v(F, 2), v(F + 2, 2)))
    A("v_pk_add_f32 %s, %s, %s" % (v(S1, 2), v(F + 4, 2), v(F + 6, 2)))
    for i in range(4, 40):
        d = S0 + 2 * (i & 1)
        A("v_pk_add_f32 %s, %s, %s" % (v(d, 2), v(d, 2), v(F + 2 * i, 2)))
    A("v_pk_add_f32 %s, %s, %s" % (v(S0, 2), v(S0, 2), v(S1, 2)))
    A("v_add_f32 %s, %s, %s" % (v(S0), v(S0), v(S0 + 1)))
    red8(A, S0)
    A("v_mul_f32 %s, %s, %s" % (v(M + 1), fbits(1.0 / 640), v(S0)))
    A("v_cvt_pk_bf16_f32 %s, %s, %s" % (v(M), v(M + 1), v(M + 1)))
    A("v_and_b32 %s, 0xffff0000, %s" % (v(M), v(M)))
    for i in range(40):
        A("v_pk_add_f32 %s, %s, %s op_sel_hi:[1,0] neg_lo:[0,1] neg_hi:[0,1]" % (v(F + 2 * i, 2), v(F + 2 * i, 2), v(M, 2)))
    for i in range(40):
        d = S0 + 2 * (i & 1)
        if i < 2:
            A("v_pk_mul_f32 %s, %s, %s" % (v(d, 2), v(F + 2 * i, 2), v(F + 2 * i, 2)))
        else:
            A("v_pk_fma_f32 %s, %s, %s, %s" % (v(d, 2), v(F + 2 * i, 2), v(F + 2 * i, 2), v(d, 2)))
    A("v_pk_add_f32 %s, %s, %s" % (v(S0, 2), v(S0, 2), v(S1, 2)))
    A("v_add_f32 %s, %s, %s" % (v(S0), v(S0), v(S0 + 1)))
    red8(A, S0)
    A("v_sub_f32 %s, %s, %s" % (v(M + 1), v(M + 1), v(M)))
    A("v_mul_f32 %s, %s, %s" % (v(R), fbits(1.0 / 640), v(S0)))
    A("v_fma_f32 %s, -%s, %s, %s" % (v(R), v(M + 1), v(M + 1), v(R)))
    A("v_max_f32 %s, 0, %s" % (v(R), v(R)))
    A("v_cvt_pk_bf16_f32 %s, %s, %s" % (v(R), v(R), v(R)))
    A("v_and_b32 %s, 0xffff0000, %s" % (v(R), v(R)))
    A("v_add_f32 %s, %s, %s" % (v(R), fbits(1e-5), v(R)))
    A("v_cvt_pk_bf16_f32 %s, %s, %s" % (v(R), v(R), v(R)))
    A("v_and_b32 %s, 0xffff0000, %s" % (v(R), v(R)))
    A("v_sqrt_f32 %s, %s" % (v(R), v(R)))
    A("s_nop 0")
    A("v_cvt_pk_bf16_f32 %s, %s, %s" % (v(S0), v(M), v(R)))
    A("v_and_b32 %s, 0xffff0000, %s" % (v(R), v(S0)))
    A("v_rcp_f32 %s, %s" % (v(R), v(R)))
    A("v_mul_u32_u24 %s, %d, %s" % (v(T + 2), LNROW, v(T)))
    A("v_lshl_add_u32 %s, %s, 4, %s" % (v(T + 2), v(T + 1), v(T + 2)))
    A("v_add_u32 %s, s15, %s" % (v(T + 2), v(T + 2)))
    for i in range(11):
        if i < 10:
            for e in range(4):
                A("v_pk_mul_f32 %s, %s, %s op_sel_hi:[1,0]" % (v(F + 8 * i + 2 * e, 2), v(F + 8 * i + 2 * e, 2), v(R, 2)))
        if i:
            A("ds_write_b128 %s, %s offset:%d" % (v(T + 2), v(X + 4 * (i - 1), 4), 128 * (i - 1)))
        if i < 10:
            for e in range(4):
                A("v_cvt_pk_bf16_f32 %s, %s, %s" % (v(X + 4 * i + e), v(F + 8 * i + 2 * e), v(F + 8 * i + 2 * e + 1)))


def ln_store(A):
    F, T = LN_F, LN_T
    S0 = T + 4
    a0, a1, a2 = T + 12, T + 13, T + 14
    A("v_bfe_u32 %s, v1, 2, 2" % v(a0))
    A("v_mul_u32_u24 %s, %d, %s" % (v(a0), LNROW, v(a0)))
    A("v_lshrrev_b32 %s, 4, v1" % v(a1))
    A("v_lshl_add_u32 %s, %s, 5, %s" % (v(a0), v(a1), v(a0)))
    A("v_and_b32 %s, 3, v1" % v(a1))
    A("v_lshl_add_u32 %s, %s, 3, %s" % (v(a0), v(a1), v(a0)))
    A("v_add_u32 %s, s15, %s" % (v(a0), v(a0)))
    for i in range(10):
        A("ds_read_b64_tr_b16 %s, %s offset:%d" % (v(F + 4 * i, 2), v(a0), 128 * i))
        A("ds_read_b64_tr_b16 %s, %s offset:%d" % (v(F + 4 * i + 2, 2), v(a0), 128 * i + 4 * LNROW))
    A("v_mov_b32 %s, %s" % (v(S0 + 1), NON))
    A("s_lshl_b32 s6, s9, 6")
    A("s_add_u32 s6, s6, 0x%x" % WS_ST)
    setexec(A, 0x0101010101010101)
    A("buffer_store_dwordx2 %s, v1, s[48:51], s6 offen sc1" % v(S0, 2))
    A("s_mov_b64 exec, -1")
    A("v_lshlrev_b32 %s, 4, v1" % v(a0))
    A("s_mul_i32 s7, s9, 10240")
    A("s_add_u32 s7, s7, 0x%x" % WS_XT)
    A("s_waitcnt lgkmcnt(0)")
    for i in range(10):
        A("buffer_store_dwordx4 %s, %s, s[48:51], s7 offen offset:%d sc1" % (v(F + 4 * i, 4), v(a0), 1024 * (i % 4)))
        if i % 4 == 3:
            A("s_add_u32 s7, s7, 4096")


def flag_p(A, cnt, fl, vmc=0):
    sk = A.newl("Lf")
    A("v_mov_b32 v10, %d" % CTRL)
    A("v_mov_b32 v11, 1")
    A("s_waitcnt vmcnt(%d)" % vmc)
    A("s_mov_b64 exec, 1")
    A("ds_add_rtn_u32 v11, v10, v11 offset:%d" % cnt)
    A("s_mov_b64 exec, -1")
    A("s_waitcnt lgkmcnt(0)")
    A("v_readfirstlane_b32 s4, v11")
    A("s_cmp_lg_u32 s4, 3")
    A("s_cbranch_scc1 %s" % sk)
    A("s_lshl_b32 s6, s2, 7")
    A("s_add_u32 s6, s6, 0x%x" % (fl - 192 * 128))
    signal(A, 6, 10)
    A.label(sk)


LV_C, LV_T, LV_Q = 36, 37, 40


PAR = OPT.get("par", 0)


def _schedule():
    B = []
    for u in range(20):
        B.append((u, 1, ("w", u, 16, u - NW + 2 if u >= NW - PAR else 0)))
    for h in range(20):
        c = h >> 1
        need = 2 * (c - NXC) + 3 if c >= NXC - PAR else 0
        lead = 1 if 0 < c < NXC - PAR else 0
        B.append((2 * c - lead * (1 - (h & 1)), 0, ("x", h, 8, need)))
    B.sort(key=lambda e: (e[0], e[1]))
    B = [e[2] for e in B]
    for i in range(2 * NL2 + 1):
        B.append(("d", i, 10, G2SLOT[i][0] + 1))
    return B


GAPS = {"cur": 4}


class Dma:
    def __init__(self, A, n):
        self.A, self.n, self.k = A, n, 0

    def __call__(self, t):
        self.A(t)
        self.k += 1
        GAP = GAPS["cur"]
        if GAP and (self.k % GAP == 0 or self.k == self.n):
            self.A("buffer_load_dword v35, v27, s[48:51], 0 offen")


SCHED = _schedule()
CUM = [0]
for e in SCHED:
    CUM.append(CUM[-1] + e[2])
NB1 = 40


def _flagafter():
    out = {}
    for u in range(20 + 2 * NL2 + 1):
        want = [("d", u - 20)] if u >= 20 else [("w", u), ("x", 2 * (u >> 1)), ("x", 2 * (u >> 1) + 1)]
        i = max(i for i, e in enumerate(SCHED) if (e[0], e[1]) in want)
        out.setdefault(i, []).append(u)
    return out


FLAGAFTER = _flagafter()


def loader_run(A, first, last):
    def rdprog(need):
        A("ds_read_b128 %s, %s offset:%d" % (v(LV_Q, 4), v(LV_C), PF + 16 * need))

    def getprog():
        A("s_waitcnt lgkmcnt(0)")
        A("v_or_b32 v39, %s, %s" % (v(LV_Q), v(LV_Q + 1)))
        A("v_or3_b32 v39, v39, %s, %s" % (v(LV_Q + 2), v(LV_Q + 3)))
        A("s_nop 0")
        A("v_readfirstlane_b32 s67, v39")
        A("s_cmp_eq_u32 s67, 0")
    wait = A.newl("Llw")

    def waitfn():
        A.label(wait)
        guard(A)
        if OPT.get("cnt"):
            A("s_add_u32 s92, s92, 1")
        if OPT.get("lsl", 0):
            A("s_sleep %d" % OPT["lsl"])
        A("ds_read_b128 %s, v38" % v(LV_Q, 4))
        getprog()
        A("s_cbranch_scc0 %s" % wait)
        A("s_setpc_b64 s[34:35]")
    A.cold.append(waitfn)
    known = 0
    for i in range(first, last):
        kind, idx, P, need = SCHED[i]
        if i == OPT.get("lbar", 3):
            A("s_barrier")
        if i == NB1:
            A.label("Lload_g2")
            rdprog(need)
        if i == NB1 + SPLIT2:
            A("s_cmp_ge_u32 s2, 192")
            A("s_cbranch_scc1 Ls_join")
            if OPT.get("park", 0):
                A("s_branch Lload_end")
            A.label("Lload_g2b")
            rdprog(need)
        if OPT.get("free") and i < NB1:
            need = 0
        if need > known:
            go = A.newl("Llg")
            getprog()
            A("s_cbranch_scc1 %s" % go)
            A("v_mov_b32 v38, %d" % (PF + 16 * need))
            A("s_call_b64 s[34:35], %s" % wait)
            A.label(go)
            known = need
        if OPT.get("fine") and kind == "w" and idx in (1, 2, 3, 4, 5, 6, 7, 8):
            A.ts(4 + idx)
        elif OPT.get("cnt") and kind == "w" and idx in (1, 5, 8, 12, 16):
            A.ts({1: 6, 5: 7, 8: 8, 12: 9, 16: 10}[idx])
        nxt = i + 1 < last and SCHED[i + 1][3] > known
        GAPS["cur"] = OPT.get("gap0", 4) if i < OPT.get("gapi", 9) else (OPT.get("gap", 2) if i < NB1 else OPT.get("gap2", 2))
        if i > NB1 and OPT.get("dvm", 60) < 60:
            A("s_waitcnt vmcnt(%d)" % OPT.get("dvm", 60))
        if i == NB1 + 1:
            loader2_setup(A)
            lds_wait(A, C_GO, "lg", 0, 38, LV_C, "s4")
            A.ts(3)
        {"w": issue1, "x": issue_x, "d": issue2}[kind](A, idx, (lambda: rdprog(SCHED[i + 1][3])) if nxt else None)
        if i in FLAGAFTER:
            A("s_mov_b32 m0, %d" % (FLG + 4 * max(FLAGAFTER[i]) - 252))
            A("s_nop 0")
            A("buffer_load_dword v27, s[48:51], 0 offen lds")


def rot1(A, sd):
    if OPT.get("rot") == 0:
        A("s_mov_b32 %s, 0" % s(sd))
        return
    if OPT.get("rot") == 4:
        A("s_and_b32 %s, s60, 3" % s(sd))
        A("s_mul_i32 %s, %s, 5" % (s(sd), s(sd)))
        A("s_lshr_b32 %s, %s, 1" % (s(sd), s(sd)))
        return
    if OPT.get("rot") == 5:
        A("s_and_b32 %s, s60, 1" % s(sd))
        A("s_mul_i32 %s, %s, 5" % (s(sd), s(sd)))
        return
    if OPT.get("rot") == 2:
        A("s_xor_b32 %s, s60, s61" % s(sd))
        A("s_and_b32 %s, %s, 1" % (s(sd), s(sd)))
        A("s_mul_i32 %s, %s, 5" % (s(sd), s(sd)))
        return
    A("s_and_b32 %s, s61, 3" % s(sd))
    A("s_mul_i32 %s, %s, %d" % (s(sd), s(sd), OPT.get("rnb", 0)))
    A("s_add_u32 %s, %s, s60" % (s(sd), s(sd)))
    for _ in range(2):
        A("s_cmp_ge_u32 %s, 10" % s(sd))
        A("s_cselect_b32 s5, 10, 0")
        A("s_sub_u32 %s, %s, s5" % (s(sd), s(sd)))


def flg_init(A):
    A("v_lshlrev_b32 v2, 2, v1")
    A("v_mov_b32 v3, 1")
    A("ds_write_b32 v2, v3 offset:%d" % FLG)
    A("ds_write_b32 v2, v3 offset:%d" % PF)
    A("ds_write_b32 v2, v3 offset:%d" % (PF + 128))


def loader_regs(A):
    A("v_mov_b32 %s, %d" % (v(LV_C), CTRL))
    A("v_mov_b32 v27, 0x7ffffff0")
    srd(A, 12, P_X, 2048 * 640 * 2)


def loader1_setup(A):
    A("v_lshrrev_b32 v40, 4, v1")
    A("v_mul_u32_u24 v40, %d, v40" % (4 * 3072))
    A("v_and_b32 v41, 15, v1")
    A("v_lshl_add_u32 v20, v41, 4, v40")
    for p in range(1, 4):
        A("v_add_u32 %s, %d, v20" % (v(20 + p), p * (3072 - WP)))
    A("v_lshrrev_b32 v40, 3, v1")
    A("v_mul_u32_u24 v40, 1280, v40")
    A("v_and_b32 v41, 7, v1")
    A("v_lshrrev_b32 v42, 4, v1")
    A("v_xor_b32 v41, v41, v42")
    A("v_lshl_add_u32 v28, v41, 4, v40")
    A("v_xor_b32 v29, 64, v28")
    A("v_add_u32 v29, %d, v29" % (8 * 1280 - 1024))
    A("v_add_u32 v30, %d, v28" % (16 * 1280 - 2048))
    A("v_add_u32 v31, %d, v29" % (16 * 1280 - 2048))
    rot1(A, 4)
    A("s_lshl_b32 s66, s61, 8")
    A("s_add_u32 s69, s66, %d" % (640 * 3072))
    A("s_mul_i32 s5, s4, %d" % (64 * 3072))
    A("s_add_u32 s64, s66, s5")
    A("s_mul_i32 s10, s60, %d" % (128 * 1280))
    A("s_add_u32 s11, s10, 1280")
    A("s_lshl_b32 s4, s4, 7")
    A("s_add_u32 s65, s10, s4")
    flg_init(A)
    A("s_waitcnt lgkmcnt(0)")
    A("s_mov_b32 %s, 0x40000" % BUD)
    srd(A, 48, P_WS, WS_SIZE)
    loader_regs(A)
    srd(A, 52, P_WG, 640 * 1536 * 2)
    srd(A, 56, P_WU, 640 * 1536 * 2)


def issue_x(A, h, mid):
    base = XSLOT(h >> 1) + (h & 1) * 8192
    D = Dma(A, 8)
    for g in range(2):
        A("s_mov_b32 m0, %d" % (base + 4096 * g))
        A("s_add_u32 s7, s65, %d" % ((64 * (h & 1) + 32 * g) * 1280))
        if g == 1 and mid:
            mid()
        for p in range(4):
            D("buffer_load_dwordx4 %s, s[12:15], s7 offen offset:%d lds" % (v(28 + p), 1024 * p))
    if h & 1:
        A("s_add_u32 s65, s65, 128")
        A("s_cmp_ge_u32 s65, s11")
        A("s_cselect_b32 s65, s10, s65")


def issue1(A, u, mid):
    base = WSLOT(u)
    D = Dma(A, 16)
    for k in range(2):
        so = "s64" if k == 0 else "s6"
        A("s_mov_b32 m0, %d" % (base + k * SLOT1))
        if k == 0:
            A("s_add_u32 s6, s64, %d" % (16 * 3072))
        else:
            A("s_add_u32 s64, s64, %d" % (32 * 3072))
        if k == 1 and mid:
            mid()
        for p in range(4):
            D("buffer_load_dwordx4 %s, s[52:55], %s offen offset:%d lds" % (v(20 + p), so, WP * p))
        A("s_mov_b32 m0, %d" % (base + k * SLOT1 + UPOFF))
        if k == 1 and (u & 1):
            A("s_cmp_ge_u32 s64, s69")
            A("s_cselect_b32 s64, s66, s64")
        else:
            A("s_nop 0")
        for p in range(4):
            D("buffer_load_dwordx4 %s, s[56:59], %s offen offset:%d lds" % (v(20 + p), so, WP * p))


def rot2(A, sd):
    if OPT.get("m2", 1):
        A("s_and_b32 %s, s62, 7" % s(sd))
        A("s_mul_i32 %s, %s, 3" % (s(sd), s(sd)))
        A("s_lshr_b32 %s, %s, 1" % (s(sd), s(sd)))
    else:
        A("s_and_b32 %s, s62, 3" % s(sd))
        A("s_mul_i32 %s, %s, 3" % (s(sd), s(sd)))
    if OPT.get("rcb", 0):
        if OPT.get("m2", 1):
            A("s_and_b32 s5, s63, 3")
            A("s_mul_i32 s5, s5, 3")
        else:
            A("s_mul_i32 s5, s63, 3")
            A("s_lshr_b32 s5, s5, 1")
        A("s_add_u32 %s, %s, s5" % (s(sd), s(sd)))
        A("s_cmp_ge_u32 %s, 12" % s(sd))
        A("s_cselect_b32 s5, 12, 0")
        A("s_sub_u32 %s, %s, s5" % (s(sd), s(sd)))


SPLIT2 = 5
assert G2SLOT[SPLIT2 - 1][0] < 19 <= G2SLOT[SPLIT2][0] and SPLIT2 & 1, G2SLOT


def loader2_setup(A, skip=0):
    rot2(A, 4)
    A("s_add_u32 s4, s4, %d" % (NR2 + skip))
    A("s_cmp_ge_u32 s4, 12")
    A("s_cselect_b32 s5, 12, 0")
    A("s_sub_u32 s4, s4, s5")
    A("s_mul_i32 s66, s63, %d" % (48 * 5120))
    A("s_add_u32 s66, s66, 0x%x" % WS_WD)
    A("s_add_u32 s69, s66, %d" % (12 * 5120))
    A("s_mul_i32 s4, s4, 5120")
    A("s_add_u32 s64, s66, s4")
    A("v_lshlrev_b32 v32, 4, v1")
    A("v_add_u32 v33, 4096, v32")


def issue2(A, u, mid):
    base = G2SLOT[u][1]
    D = Dma(A, 10)
    if u == 0:
        for p in range(5):
            A("v_add_u32 v50, %d, v1" % (64 * p))
            A("v_mul_u32_u24 v51, 52429, v50")
            A("v_lshrrev_b32 v51, 19, v51")
            A("v_mul_u32_u24 v51, %d, v51" % (1280 - 160))
            A("v_lshl_add_u32 %s, v50, 4, v51" % v(44 + p))
        if mid:
            mid()
        A("s_mul_i32 s6, s62, %d" % (64 * 1280))
        A("s_mul_i32 s7, s63, 160")
        A("s_add_u32 s6, s6, s7")
        for h in range(2):
            for p in range(5):
                A("s_mov_b32 m0, %d" % (base + 5120 * h + 1024 * p))
                A("s_nop 0")
                D("buffer_load_dwordx4 %s, s[12:15], s6 offen lds" % v(44 + p))
            A("s_add_u32 s6, s6, %d" % (32 * 1280))
        return
    u -= 1
    for w in range(2):
        A("s_mov_b32 m0, %d" % (base + 5120 * w))
        A("s_add_u32 s6, s64, %d" % ((2 * (u & 1) + w) * 12 * 5120))
        if w == 1 and mid:
            mid()
        for p in range(4):
            D("buffer_load_dwordx4 v32, s[48:51], s6 offen offset:%d%s lds" % (1024 * p, LSC))
        A("s_mov_b32 m0, %d" % (base + 5120 * w + 4096))
        A("s_nop 0")
        D("buffer_load_dwordx4 v33, s[48:51], s6 offen%s lds" % LSC)
    if u & 1:
        A("s_add_u32 s64, s64, 5120")
        A("s_cmp_ge_u32 s64, s69")
        A("s_cselect_b32 s64, s66, s64")


def park(A):
    P0 = 16
    prog_wait(A, OPT.get("pkp", 16), 8, 2)
    loader2_setup(A, SPLIT2 // 2)
    A("v_mov_b32 v2, v32")
    A("v_mov_b32 v3, v33")
    n = 0
    for u in range(SPLIT2 - 1, 2 * NL2):
        for w in range(2):
            A("s_add_u32 s6, s64, %d" % ((2 * (u & 1) + w) * 12 * 5120))
            for p in range(5):
                if p < 4:
                    A("buffer_load_dwordx4 %s, v2, s[48:51], s6 offen offset:%d%s" % (v(P0 + 4 * n, 4), 1024 * p, LSC))
                else:
                    A("buffer_load_dwordx4 %s, v3, s[48:51], s6 offen%s" % (v(P0 + 4 * n, 4), LSC))
                n += 1
        if u & 1:
            A("s_add_u32 s64, s64, 5120")
            A("s_cmp_ge_u32 s64, s69")
            A("s_cselect_b32 s64, s66, s64")
    tot = n
    assert P0 + 4 * tot <= 256
    A.ts(8)
    n, known = 0, 0
    for u in range(SPLIT2, 2 * NL2 + 1):
        need, base = G2SLOT[u]
        if need + 1 > known:
            known = need + 1
            prog_wait(A, known, 8, 1)
        A("v_add_u32 v3, %d, v2" % base)
        A("s_waitcnt vmcnt(%d)" % (tot - n - 10))
        for p in range(10):
            A("ds_write_b128 v3, %s offset:%d" % (v(P0 + 4 * n, 4), 1024 * p))
            n += 1
    A("v_mov_b32 v2, 0")
    lds_wait(A, FLG + 4 * (20 + SPLIT2 - 1), "eq", 0, 3, 2, "s10")
    A("ds_write_b32 v2, v2 offset:%d" % (FLG + 4 * (20 + 2 * NL2)))
    A.ts(9)


def colsum_gather(A):
    R, Q = 180, 220
    A("v_lshlrev_b32 v2, 4, v1")
    A("v_lshlrev_b32 v5, 3, v1")
    A("s_mul_i32 s6, s61, 20480")
    A("s_add_u32 s6, s6, 0x%x" % WS_CS)
    for i in range(1, 5):
        A("s_add_u32 %s, s6, %d" % (s(6 + i), 4096 * i))
    L = [(R + 4 * i, 4, 2, 6 + i // 2, 2048 * (i % 2)) for i in range(10)]
    L += [(Q + 2 * i, 2, 5, 6 + i // 2, 2048 * (i % 2) + 1024) for i in range(10)]
    poll_flags(A, L, [R + 3 + 4 * i for i in range(10)] + [Q + 1 + 2 * i for i in range(10)], 3, 8)
    A("v_mov_b32 %s, %s" % (v(R + 3), v(Q)))
    for i in range(1, 10):
        for e in range(3):
            A("v_add_f32 %s, %s, %s" % (v(R + e), v(R + e), v(R + 4 * i + e)))
        A("v_add_f32 %s, %s, %s" % (v(R + 3), v(R + 3), v(Q + 2 * i)))
    A("v_lshlrev_b32 v2, 2, v1")
    for e in range(4):
        A("ds_write_b32 v2, %s offset:%d" % (v(R + e), CSUM + 256 * e))
    A("v_mov_b32 v2, %d" % CTRL)
    A("v_mov_b32 v3, 1")
    A("ds_write_b32 v2, v3 offset:%d" % C_CSOK)


WDR = 160
WDOFF = 8 * LNROW


def wd_issue(A):
    T = 20
    srd(A, 56, P_WD, 1536 * 640 * 2)
    A("s_sub_u32 s4, s2, 192")
    A("s_lshl_b32 s4, s4, 2")
    A("s_add_u32 s4, s4, s3")
    A("s_mul_i32 s14, s4, 52429")
    A("s_lshr_b32 s14, s14, 18")
    A("s_mul_i32 s5, s14, 5")
    A("s_sub_u32 s13, s4, s5")
    A("s_lshl_b32 s13, s13, 1")
    A("s_mul_i32 s4, s14, %d" % (32 * 1280))
    A("s_lshl_b32 s5, s13, 7")
    A("s_add_u32 s4, s4, s5")
    A("v_lshrrev_b32 %s, 4, v1" % v(T))
    A("v_mul_u32_u24 %s, 1280, %s" % (v(T), v(T)))
    A("v_and_b32 %s, 15, v1" % v(T + 1))
    A("v_lshl_add_u32 %s, %s, 4, %s" % (v(T), v(T + 1), v(T)))
    for p in range(8):
        A("s_add_u32 m0, s15, %d" % (WDOFF + 1024 * p))
        A("s_nop 0")
        A("buffer_load_dwordx4 %s, s[56:59], s4 offen lds" % v(T))
        A("s_add_u32 s4, s4, %d" % (4 * 1280))


def wd_relayout(A):
    skip = A.newl("Lwd")
    T = 20
    A("s_cmp_ge_u32 s14, 48")
    A("s_cbranch_scc1 %s" % skip)
    A("v_lshrrev_b32 %s, 2, v1" % v(T))
    A("v_lshlrev_b32 %s, 8, %s" % (v(T), v(T)))
    A("v_and_b32 %s, 3, v1" % v(T + 1))
    A("v_lshl_add_u32 %s, %s, 3, %s" % (v(T), v(T + 1), v(T)))
    A("v_add_u32 %s, s15, %s" % (v(T), v(T)))
    A("v_lshlrev_b32 %s, 4, v1" % v(T + 1))
    for c in range(8):
        A("ds_read_b64_tr_b16 %s, %s offset:%d" % (v(WDR + 4 * c, 2), v(T), WDOFF + 32 * c))
        A("ds_read_b64_tr_b16 %s, %s offset:%d" % (v(WDR + 2 + 4 * c, 2), v(T), WDOFF + 32 * c + 4096))
    for c in range(8):
        A("s_lshl_b32 s4, s13, 2")
        A("s_add_u32 s4, s4, %d" % c)
        A("s_mul_i32 s5, s4, 52429")
        A("s_lshr_b32 s5, s5, 18")
        A("s_mul_i32 s6, s5, 5")
        A("s_sub_u32 s4, s4, s6")
        A("s_mul_i32 s5, s5, 48")
        A("s_add_u32 s5, s5, s14")
        A("s_mul_i32 s5, s5, 5")
        A("s_add_u32 s4, s4, s5")
        A("s_lshl_b32 s4, s4, 10")
        A("s_add_u32 s4, s4, 0x%x" % WS_WD)
        A("s_waitcnt lgkmcnt(%d)" % (14 - 2 * c))
        A("buffer_store_dwordx4 %s, %s, s[48:51], s4 offen sc1" % (v(WDR + 4 * c, 4), v(T + 1)))
    A.label(skip)


G_vA0, G_vA1, G_vC, G_vF, G_vP, G_vXo, G_vPa = 2, 3, 4, 5, 6, 7, 8


def prog(A, val):
    if OPT.get("pds", 1):
        A("v_mov_b32 v10, 0")
        A("ds_write_b32 %s, v10 offset:%d" % (v(G_vPa), PF + 16 * (val + 1)))
        return
    A("s_add_u32 m0, s13, %d" % (16 * (val + 1)))
    A("s_mov_b64 exec, 1")
    A("buffer_load_dword %s, s[48:51], 0 offen lds" % v(G_vP))
    A("s_mov_b64 exec, -1")


def full_read(A, u):
    A("ds_read_b32 %s, %s offset:%d" % (v(G_vF), v(G_vC), FLG + 4 * u))


def full_wait(A, u, have=True):
    if OPT.get("free"):
        return
    if not getattr(A, "fullfn", None):
        A.fullfn = A.newl("Lfw")

        def fn():
            A.label(A.fullfn)
            guard(A)
            if OPT.get("cnt"):
                A("s_add_u32 s92, s92, 1")
            A("ds_read_b32 %s, v11" % v(G_vF))
            A("s_waitcnt lgkmcnt(0)")
            A("v_readfirstlane_b32 s10, %s" % v(G_vF))
            A("s_cmp_eq_u32 s10, 0")
            A("s_cbranch_scc0 %s" % A.fullfn)
            A("s_setpc_b64 s[34:35]")
        A.cold.append(fn)
    ok = A.newl("Lok")
    if have and u >= OPT.get("coldu", 6):
        st = A.newl("Lfs")
        if have != 2:
            A("v_readfirstlane_b32 s10, %s" % v(G_vF))
        A("s_cmp_eq_u32 s10, 0")
        A("s_cbranch_scc0 %s" % st)

        def stub():
            A.label(st)
            A("v_mov_b32 v11, %d" % (FLG + 4 * u))
            A("s_call_b64 s[34:35], %s" % A.fullfn)
            A("s_branch %s" % ok)
        A.cold.append(stub)
        A.label(ok)
        return
    if have:
        if have != 2:
            A("v_readfirstlane_b32 s10, %s" % v(G_vF))
        A("s_cmp_eq_u32 s10, 0")
        A("s_cbranch_scc1 %s" % ok)
    A("v_mov_b32 v11, %d" % (FLG + 4 * u))
    A("s_call_b64 s[34:35], %s" % A.fullfn)
    A.label(ok)


def wfrag_addr(A, d, t):
    A("v_bfe_u32 %s, v1, 2, 2" % v(t))
    A("v_mul_u32_u24 %s, %d, %s" % (v(d), WP, v(t)))
    A("v_lshrrev_b32 %s, 5, v1" % v(t))
    A("v_lshl_add_u32 %s, %s, 9, %s" % (v(d), v(t), v(d)))
    A("v_bfe_u32 %s, v1, 4, 1" % v(t))
    A("v_lshl_add_u32 %s, %s, 5, %s" % (v(d), v(t), v(d)))
    A("v_and_b32 %s, 1, v1" % v(t))
    A("v_lshl_add_u32 %s, %s, 3, %s" % (v(d), v(t), v(d)))
    A("v_bfe_u32 %s, v1, 1, 1" % v(t))
    A("v_mul_u32_u24 %s, %d, %s" % (v(t), UPOFF, v(t)))
    A("v_add_u32 %s, %s, %s" % (v(d), v(t), v(d)))


def gemm_regs(A):
    A("v_mov_b32 %s, %d" % (v(G_vC), CTRL))
    A("s_lshl_b32 s4, s3, 2")
    A("v_mov_b32 %s, s4" % v(G_vPa))
    A("s_add_u32 s13, s4, %d" % PF)
    A("v_mov_b32 %s, 0x7ffffff0" % v(G_vP))


def code_prefetch(A):
    A("s_getpc_b64 s[4:5]")
    here = A.newl("Lpc")
    A.label(here)
    A("s_sub_u32 s4, s4, %s-%s" % (here, NAME + "_kernel"))
    A("s_subb_u32 s5, s5, 0")
    A("s_lshr_b32 s6, s2, 3")
    A("s_lshl_b32 s6, s6, 11")
    A("v_lshlrev_b32 v254, 7, v1")
    A("v_add_u32 v254, s6, v254")
    A("s_mov_b32 s6, Lcode_end-%s-4" % (NAME + "_kernel"))
    A("v_min_u32 v254, s6, v254")
    A("s_mov_b64 exec, 0xffff")
    A("global_load_dword v57, v254, s[4:5]")
    A("s_mov_b64 exec, -1")


def l2_prefetch(A):
    m1 = OPT.get("m2", 1)
    n = 5 if m1 else 10
    A("s_bfe_u32 s7, s2, 0x30003")
    A("s_mul_i32 s7, s7, 3")
    A("s_add_u32 s7, s7, s3")
    A("s_sub_u32 s7, s7, 1")
    A("s_lshl_b32 s4, s7, 6")
    A("v_add_u32 v12, s4, v1")
    A("v_mul_u32_u24 v13, 43691, v12")
    A("v_lshrrev_b32 v13, 18, v13")
    A("v_mul_u32_u24 v13, %d, v13" % (10240 - 768))
    A("v_lshl_add_u32 v12, v12, 7, v13")
    A("s_and_b32 s4, s2, 7")
    A("s_mul_i32 s4, s4, 1280")
    A("s_add_u32 s4, s4, 0x%x" % WS_XT)
    A("buffer_load_dword v14, v12, s[48:51], s4 offen sc1")
    A("v_lshlrev_b32 v12, 7, v1")
    A("s_mul_i32 s4, s7, %d" % (n * 8192))
    if m1:
        A("s_and_b32 s5, s2, 4")
        A("s_mul_i32 s5, s5, %d" % (48 * 5120))
        A("s_add_u32 s4, s4, s5")
    A("s_add_u32 s4, s4, 0x%x" % WS_WD)
    for i in range(n):
        A("buffer_load_dword v14, v12, s[48:51], s4 offen sc1")
        A("s_add_u32 s4, s4, 8192")
    A("s_waitcnt vmcnt(0)")


def s_phase0(A):
    gemm_regs(A)
    A("s_mul_i32 s15, s3, %d" % SPRIV)
    A("s_add_u32 s15, s15, %d" % MAIN)
    A("s_and_b32 s4, s2, 1")
    A("s_lshl_b32 s9, s4, 7")
    A("s_bfe_u32 s4, s2, 0x20001")
    A("s_lshl_b32 s4, s4, 5")
    A("s_add_u32 s9, s9, s4")
    A("s_bfe_u32 s4, s2, 0x30003")
    A("s_lshl_b32 s4, s4, 2")
    A("s_add_u32 s9, s9, s4")
    A("s_add_u32 s9, s9, s3")

    A("s_and_b32 s68, s2, 7")
    A("s_mul_i32 s68, s68, 80")
    A("s_lshr_b32 s4, s2, 3")
    A("s_lshl_b32 s4, s4, 2")
    A("s_add_u32 s68, s68, s4")
    A("s_add_u32 s68, s68, s3")
    A("s_sub_u32 s68, s68, 48")
    A("s_mov_b32 s66, s15")
    kgen_setup(A, KB)
    ready(A, lambda A: kgen_issue(A, 68, [2], 40, False))
    srd(A, 52, P_X, 2048 * 640 * 2)
    ln_issue(A)
    A("s_waitcnt vmcnt(10)")
    A.ts(1)
    kgen_call(A, 40, 46, True)
    A("s_setprio 2")
    wd_issue(A)
    A("v_mov_b32 v22, 0")
    A("global_load_dword v22, v22, %s sc1" % s(P_DBG, 2))
    A("s_add_u32 s4, s3, 1")
    A("s_mul_i32 s4, s4, %d" % AUXSZ)
    A("s_sub_u32 s7, %d, s4" % (LDS_TOTAL + 8192))
    kgen_give(A, 7, 3)
    A.ts(8)
    A("s_waitcnt vmcnt(9)")
    ln8(A)
    nonce_fetch(A, 22, True)
    ln_store(A)
    wd_relayout(A)
    A("s_cmp_lt_u32 s3, 2")
    A("s_mov_b32 s4, 0xfffff")
    A("s_cselect_b32 s4, 0x3fffff, s4")
    A("v_lshl_add_u32 v10, v1, 4, %s" % v(G_vPa))
    A("v_mov_b32 v11, 0")
    A("s_mov_b32 exec_lo, s4")
    A("s_mov_b32 exec_hi, 0")
    A("ds_write_b32 v10, v11 offset:%d" % PF)
    A("s_mov_b64 exec, -1")
    flag_p(A, C_CNT, FL_X)
    A.ts(2)
    sk, s1 = A.newl("Ls0"), A.newl("Ls1")
    A("s_cmp_eq_u32 s3, 1")
    A("s_cbranch_scc1 %s" % s1)
    A("s_cmp_lg_u32 s3, 0")
    A("s_cbranch_scc1 %s" % sk)
    A("s_sleep %d" % OPT.get("ss0", 8))
    poll_all(A, 12, FL_X, C_GO, False, OPT.get("ss1", 3))
    if not OPT.get("g1only"):
        lds_wait(A, CTRL + C_KRDY, "lg", 0, 12, G_vPa, "s10", False, 4)
        loader_regs(A)
        A("s_branch Lload_g2")
    A.label(s1)
    if OPT.get("sdel", 0) and not OPT.get("g1only"):
        A("s_lshl_b32 s6, s2, 7")
        A("s_add_u32 s6, s6, 0x%x" % (FL_G - 192 * 128))
        A("v_mov_b32 v12, 0")
        A("s_mov_b64 exec, 1")
        poll_flags(A, [(16, 1, 12, 6, 0)], [16], 13, 8)
        A("s_mov_b64 exec, -1")
    A("v_lshlrev_b32 v12, 2, v1")
    A("v_mov_b32 v13, 1")
    A("s_mov_b64 exec, 15")
    A("ds_write_b32 v12, v13 offset:%d" % (CTRL + C_EPI))
    A("s_mov_b64 exec, -1")
    A.label(sk)
    if not OPT.get("g1only"):
        lds_wait(A, CTRL + C_KRDY, "lg", 0, 12, G_vPa, "s10", False, 4)
        if OPT.get("l2pf", 0):
            l2_prefetch(A)
    A.ts(3)


G2_ACC = 176
G2_RREGS = [128, 132, 136, 140, 24, 28, 32, 36, 144, 148, 152, 156, 40, 44, 48, 52, 160, 164, 168, 172]


def g2_streams(A):
    rot2(A, 4)
    A("s_mul_i32 s53, s63, 48")
    A("s_mul_i32 s5, s3, 12")
    A("s_add_u32 s53, s53, s5")
    A("s_mul_i32 s53, s53, 5120")
    A("s_add_u32 s53, s53, 0x%x" % WS_WD)
    A("s_mul_i32 s5, s4, 5120")
    A("s_add_u32 s52, s53, s5")
    A("s_add_u32 s53, s53, %d" % (12 * 5120))
    A("s_mul_i32 s55, s62, %d" % (192 * 1024))
    A("s_mul_i32 s5, s3, %d" % (24 * 1024))
    A("s_add_u32 s55, s55, s5")
    A("s_add_u32 s55, s55, 0x%x" % WS_HF)
    A("s_add_u32 s56, s55, %d" % (24 * 1024))
    A("s_lshl_b32 s5, s4, 11")
    A("s_add_u32 s54, s55, s5")
    A("v_lshlrev_b32 %s, 4, v1" % v(G_vXo))
    A("v_add_u32 v22, 4096, %s" % v(G_vXo))


def g2_wload(A, r, j, ct):
    if (OPT.get("noS") and j >= NR2) or (OPT.get("noR") and j < NR2):
        A("buffer_load_dword v0, v0, s[48:51], s53 offen")
        return
    if ct < 4:
        A("buffer_load_dwordx4 %s, %s, s[48:51], s52 offen offset:%d%s" % (v(r, 4), v(G_vXo), 1024 * ct, LSC))
    else:
        A("buffer_load_dwordx4 %s, v22, s[48:51], s52 offen%s" % (v(r, 4), LSC))
    if ct == 4 and j < 11:
        A("s_add_u32 s52, s52, %d" % (5120 * (1 + (NL2 if j == NR2 - 1 else 0))))
        A("s_cmp_ge_u32 s52, s53")
        A("s_cselect_b32 s5, %d, 0" % (12 * 5120))
        A("s_sub_u32 s52, s52, s5")


def gemm1(A):
    ACC, FB = 128, 80
    SEL, CSD = 24, 40
    ST = 16
    vX = 12
    CR = [24, 40, 64, 80]
    NM, C1 = [56, 60], [58, 62]
    vA0, vC, vF, vP, vXo, vPa = G_vA0, G_vC, G_vF, G_vP, G_vXo, G_vPa
    lg = Cnt(A, "lgkmcnt", 15)
    vm = Cnt(A, "vmcnt", 63)
    A("s_and_b32 s11, s3, 1")
    A("s_lshr_b32 s12, s3, 1")
    A("s_lshl_b32 s8, s60, 1")
    A("s_add_u32 s8, s8, s11")
    wfrag_addr(A, vA0, 9)
    A("s_lshl_b32 s4, s12, 4")
    A("s_add_u32 s4, s4, %d" % WADDR[0])
    A("v_add_u32 %s, s4, %s" % (v(vA0), v(vA0)))
    A("v_add_u32 %s, %d, %s" % (v(G_vA1), WHI - WADDR[0], v(vA0)))
    A("v_and_b32 v9, 31, v1")
    A("v_bfe_u32 v10, v1, 1, 3")
    A("v_lshrrev_b32 v11, 5, v1")
    A("v_xor_b32 v10, v10, v11")
    A("v_lshlrev_b32 v10, 4, v10")
    A("v_lshl_add_u32 v10, v9, 7, v10")
    A("s_lshl_b32 s4, s11, 13")
    A("s_add_u32 s4, s4, %d" % XRING)
    for j in range(4):
        A("v_xor_b32 %s, %d, v10" % (v(vX + j), 32 * j))
        A("v_add_u32 %s, s4, %s" % (v(vX + j), v(vX + j)))
    gemm_regs(A)
    def late_setup():
        A("v_and_b32 v9, 31, v1")
        A("s_lshl_b32 s4, s12, 2")
        A("v_subrev_u32 v9, s4, v9")
        A("v_mov_b32 v10, 0x3f803f80")
        for t in range(4):
            A("v_cmp_eq_u32 vcc, %d, v9" % [0, 1, 2, 8][t])
            A("s_nop 1")
            for d in range(4):
                A("v_cndmask_b32 %s, 0, v10, vcc" % v(SEL + 4 * t + d))
        g2_streams(A)

    if OPT.get("par", 0) and not OPT.get("auxoff"):
        l2, lj = A.newl("Lh"), A.newl("Lh")
        A("s_cmp_eq_u32 s3, 2")
        A("s_cbranch_scc1 %s" % l2)
        A("s_and_b32 s68, s2, 7")
        A("s_mul_i32 s68, s68, 80")
        A("s_lshr_b32 s4, s2, 3")
        A("s_lshl_b32 s4, s4, 1")
        A("s_add_u32 s68, s68, s4")
        A("s_add_u32 s68, s68, s11")
        A("s_mul_i32 s66, s3, %d" % STGSZ)
        A("s_add_u32 s66, s66, %d" % XSLOT(2))
        A("s_cmp_eq_u32 s3, 3")
        A("s_cselect_b32 s66, %d, s66" % WSLOT(4))
        A("s_cselect_b32 s67, 128, 0")
        kgen_setup(A, KB)
        ready(A, lambda A: kgen_issue(A, 68, [2], 40, False, 67))
        late_setup()
        A("s_waitcnt vmcnt(0)")
        A.ts(1)
        kgen_call(A, 40, 46, True)
        kgen_give(A, 66, 3)
        A("s_setprio %d" % OPT.get("pg", 2))
        A.ts(2)
        A("s_branch %s" % lj)
        A.label(l2)
        ready(A)
        late_setup()
        if OPT.get("pkm"):
            lds_wait(A, CTRL + C_KP + 8, "lg", 0, 10, vC, "s10", False, 2)
        A("s_waitcnt vmcnt(0)")
        A.label(lj)
    else:
        ready(A)
        late_setup()
        prog(A, 0)
        A("s_waitcnt vmcnt(0)")

    def W(ks, t):
        return FB + 24 * (ks & 1) + 4 * t

    def X(ks, a):
        return FB + 24 * (ks & 1) + 16 + 4 * a

    def wread(ks, t):
        off, b = WSLOT(ks >> 1) + (ks & 1) * SLOT1 + 64 * t - WADDR[0], vA0
        if WSLOT(ks >> 1) >= WHI:
            off, b = off - (WHI - WADDR[0]), G_vA1
        A("ds_read_b64_tr_b16 %s, %s offset:%d" % (v(W(ks, t), 2), v(b), off))
        lg.issue(("w", ks, t, 0))
        A("ds_read_b64_tr_b16 %s, %s offset:%d" % (v(W(ks, t) + 2, 2), v(b), off + 256))
        lg.issue(("w", ks, t))

    def xread(ks, a):
        A("ds_read_b128 %s, %s offset:%d" % (v(X(ks, a), 4), v(vX + ks % 4), XSLOT(ks >> 2) - XRING + 4096 * a))
        lg.issue(("x", ks, a))

    def reads(ks):
        return [lambda: xread(ks, 0), lambda: wread(ks, 0), lambda: xread(ks, 1), lambda: wread(ks, 1), lambda: wread(ks, 2), lambda: wread(ks, 3)]
    full_wait(A, 0, False)
    A.ts(4)

    def x_csread():
        A("ds_read_b32 v20, %s offset:%d" % (v(vC), C_CSOK))
        lg.issue("cs")

    def x_cscheck():
        lg.wait("cs")
        lds_wait(A, C_CSOK, "lg", 0, 20, vC, "s10", True)
        A("v_lshrrev_b32 v21, 5, v1")
        A("v_lshlrev_b32 v21, 4, v21")
        A("s_lshl_b32 s4, s12, 7")
        A("s_add_u32 s4, s4, %d" % CSUM)
        A("v_add_u32 v21, s4, v21")

    def x_cs(t, m):
        A("ds_read_b128 %s, v21 offset:%d" % (v(CR[t] + 4 * m, 4), 256 * t + 32 * m))
        lg.issue(("cr", t, m))

    def x_stat():
        ok, slow = A.newl("Lst"), A.newl("Lss")
        vm.wait("st")
        A("v_xor_b32 v10, %s, %s" % (NON, v(ST + 1)))
        A("v_xor_b32 v11, %s, %s" % (NON, v(ST + 3)))
        A("v_or_b32 v10, v10, v11")
        A("v_cmp_ne_u32 s[4:5], 0, v10")
        A("s_cmp_eq_u64 s[4:5], 0")
        A("s_cbranch_scc0 %s" % slow)
        A.label(ok)

        def cold():
            A.label(slow)
            poll_flags(A, [(ST, 2, 9, 6, 0), (ST + 2, 2, 9, 6, 256)], [ST + 1, ST + 3], 10, 2)
            A("s_branch %s" % ok)
        A.cold.append(cold)

    def x_const(a):
        A("v_lshlrev_b32 %s, 16, %s" % (v(NM[a]), v(ST + 2 * a)))
        A("v_and_b32 %s, 0xffff0000, %s" % (v(C1[a]), v(ST + 2 * a)))
        A("v_xor_b32 %s, 0x80000000, %s" % (v(NM[a]), v(NM[a])))
        A("v_mul_f32 %s, %s, %s" % (v(NM[a] + 1), v(C1[a]), v(C1[a])))
        A("v_rcp_f32 %s, %s" % (v(C1[a]), v(C1[a])))

    def x_last():
        for a in range(2):
            A("v_mul_f32 %s, %s, %s" % (v(C1[a]), fbits(-LOG2E), v(C1[a])))
        A("s_mul_i32 s9, s8, 192")
        A("s_lshl_b32 s4, s61, 3")
        A("s_add_u32 s9, s9, s4")
        A("s_add_u32 s9, s9, s12")
        A("s_lshl_b32 s9, s9, 10")
        A("s_add_u32 s9, s9, 0x%x" % WS_HF)
    def x_goread():
        A("ds_read_b32 v23, %s offset:%d" % (v(vC), C_GO))
        lg.issue("go")
    extras = [x_csread, x_stat, lambda: x_const(0), lambda: x_const(1), x_cscheck, x_last]
    extras += [(lambda t=t, m=m: x_cs(t, m)) for t in range(3) for m in range(4)]
    extras += [x_goread]
    if OPT.get("g1only"):
        extras = []
    allr = [(ks, i, f) for ks in range(40) for i, f in enumerate(reads(ks))]
    state = {"g": 0, "prog": 0}

    def next_read():
        if state["g"] >= len(allr):
            return False
        ks, i, f = allr[state["g"]]
        state["g"] += 1
        if i == 0 and ks % 2 == 0 and ks > 0:
            full_wait(A, ks // 2, 2)
        f()
        if i == OPT.get("fn", 2) and ks % 2 == 1 and ks + 1 < 40:
            full_read(A, (ks + 1) // 2)
            lg.issue(("f", ks + 1))
        return True

    def try_prog():
        u = state["prog"]
        if u < 20 and state["g"] > 12 * u + 11 and ("w", 2 * u + 1, 3) not in lg.q:
            prog(A, u + 1)
            if OPT.get("pds", 1):
                lg.issue(("p", u))
            else:
                vm.issue(("p", u))
            state["prog"] += 1
    for _ in range(6):
        next_read()
    for ks in range(40):
        if ks == 26:
            A("v_and_b32 v9, 31, v1")
            A("v_lshlrev_b32 v9, 3, v9")
            A("s_lshl_b32 s6, s8, 9")
            A("s_add_u32 s6, s6, 0x%x" % WS_ST)
            A("buffer_load_dwordx2 %s, v9, s[48:51], s6 offen sc1" % v(ST, 2))
            A("buffer_load_dwordx2 %s, v9, s[48:51], s6 offen offset:256 sc1" % v(ST + 2, 2))
            vm.issue("st")
        if ks == OPT.get("pubks", 7) - 1:
            A("ds_read_b32 v20, %s offset:%d" % (v(vC), C_NONCE))
            lg.issue("non")
        if ks == OPT.get("pubks", 7) and not OPT.get("auxoff"):
            sk = A.newl("Lcs")
            lg.wait("non")
            lds_wait(A, C_NONCE, "lg", 0, 20, vC, NON, True)
            A("s_cmp_ge_u32 s60, 10")
            A("s_cbranch_scc1 %s" % sk)
            A("s_cmp_lg_u32 s11, 0")
            A("s_cbranch_scc1 %s" % sk)
            A("v_mov_b32 %s, %s" % (v(CSD + 3), NON))
            A("v_mov_b32 %s, %s" % (v(CSD + 5), NON))
            A("v_lshlrev_b32 v9, 4, v1")
            A("v_lshlrev_b32 v10, 3, v1")
            A("s_mul_i32 s6, s61, 10")
            A("s_add_u32 s6, s6, s60")
            A("s_lshl_b32 s6, s6, 11")
            A("s_add_u32 s6, s6, 0x%x" % WS_CS)
            A("s_sub_u32 exec_lo, s12, 1")
            A("s_not_b32 exec_hi, exec_lo")
            A("buffer_store_dwordx4 %s, v9, s[48:51], s6 offen sc1" % v(CSD, 4))
            A("buffer_store_dwordx2 %s, v10, s[48:51], s6 offen offset:1024 sc1" % v(CSD + 4, 2))
            A("s_mov_b64 exec, -1")
            A.label(sk)
        if OPT.get("fine"):
            if ks in (2, 4, 6, 8, 10, 12):
                A.ts({2: 6, 4: 7, 6: 8, 8: 9, 10: 10, 12: 12}[ks])
        elif ks in (12, 20, 28):
            A.ts(8 + (ks - 12) // 8)
        n = 0
        for t in range(4):
            for a in range(2):
                lg.wait(("w", ks, t))
                lg.wait(("x", ks, a))
                d = ACC + 64 * a + 16 * t
                cin = "0" if ks == 0 else v(d, 16)
                if OPT.get("fake16"):
                    dd = d + 8 * (ks & 1)
                    A("v_mfma_f32_16x16x32_bf16 %s, %s, %s, %s" % (v(dd, 4), v(W(ks, t), 4), v(X(ks, a), 4), v(dd, 4)))
                    mark = len(A.L)
                else:
                    A("v_mfma_f32_32x32x16_bf16 %s, %s, %s, %s" % (v(d, 16), v(W(ks, t), 4), v(X(ks, a), 4), cin))
                try_prog()
                if n == 7 and ks % 2 == 0 and ks + 2 < 40:
                    lg.wait(("f", ks + 2))
                    A("v_readfirstlane_b32 s15, %s" % v(vF))
                if n == 0 and ks % 2 == 1:
                    A("s_mov_b32 s10, s15")
                did = n < 6 and next_read()
                if not did and ks >= OPT.get("epks", 34) and extras:
                    extras.pop(0)()
                if OPT.get("fake16"):
                    pos = mark + 1 if (len(A.L) > mark and A.L[mark].strip().startswith("ds_read")) else len(A.L)
                    A.L.insert(pos, "  v_mfma_f32_16x16x32_bf16 %s, %s, %s, %s" % (v(dd + 4, 4), v(X(ks, a), 4), v(W(ks, t), 4), v(dd + 4, 4)))
                n += 1
            if ks < OPT.get("csn", 4):
                cin = "0" if ks + t == 0 else v(CSD, 16)
                A("v_mfma_f32_32x32x16_bf16 %s, %s, %s, %s" % (v(CSD, 16), v(SEL + 4 * t, 4), v(W(ks, t), 4), cin))
    while extras:
        extras.pop(0)()
    A.ts(5)
    if OPT.get("cnt"):
        A.stamps += [11, 14]
    if OPT.get("g1only"):
        return
    for m in range(4):
        x_cs(3, m)
    T0 = 96
    n = 0
    A("s_nop 3")
    for t in range(4):
        lg.wait(("cr", t, 3))
        for a in range(2):
            ac = ACC + 64 * a + 16 * t
            tmp = T0 + 16 * (n & 1)
            n += 1
            G = [ac, ac + 2, ac + 8, ac + 10]
            U = [ac + 4, ac + 6, ac + 12, ac + 14]
            for i in range(8):
                A("v_pk_fma_f32 %s, %s, %s, %s op_sel_hi:[1,0,1]" % (v(ac + 2 * i, 2), v(CR[t] + 2 * i, 2), v(NM[a], 2), v(ac + 2 * i, 2)))
            for i in range(4):
                A("v_pk_mul_f32 %s, %s, %s op_sel_hi:[1,0]" % (v(tmp + 2 * i, 2), v(G[i], 2), v(C1[a], 2)))
            for i in range(0 if OPT.get("noexp") else 8):
                A("v_exp_f32 %s, %s" % (v(tmp + i), v(tmp + i)))
            for i in range(4):
                A("v_pk_mul_f32 %s, %s, %s" % (v(G[i], 2), v(G[i], 2), v(U[i], 2)))
            for i in range(4):
                A("v_pk_fma_f32 %s, %s, %s, %s op_sel:[0,1,1] op_sel_hi:[1,1,1]" % (v(tmp + 2 * i, 2), v(tmp + 2 * i, 2), v(NM[a], 2), v(NM[a], 2)))
            for i in range(0 if OPT.get("noexp") else 8):
                A("v_rcp_f32 %s, %s" % (v(tmp + i), v(tmp + i)))
            A("s_add_u32 s4, s9, %d" % (96 * 1024 * a + 2048 * t))
            for i in range(4):
                A("v_pk_mul_f32 %s, %s, %s" % (v(G[i], 2), v(G[i], 2), v(tmp + 2 * i, 2)))
            for i in range(4):
                A("v_cvt_pk_bf16_f32 %s, %s, %s" % (v(tmp + 8 + i), v(G[i]), v(G[i] + 1)))
            A("buffer_store_dwordx4 %s, %s, s[48:51], s4 offen sc1" % (v(tmp + 8, 4), v(vXo)))
            if n == 1:
                lg.wait("go")
                lds_wait(A, C_GO, "lg", 0, 23, vC, "s10", True)
            if n <= OPT.get("rearly", 0):
                for k in range(4 * (n - 1), 4 * n):
                    g2_wload(A, G2_RREGS[k], k // 5, k % 5)
    A("v_mov_b32 v10, 1")
    A("ds_write_b32 %s, v10 offset:%d" % (v(vPa), CTRL + C_EPI))
    A.ts(6)
    A("s_lshl_b32 s57, s8, 4")
    A("s_add_u32 s57, s57, s61")
    A("s_lshl_b32 s57, s57, 1")
    A("s_add_u32 s57, s57, s12")
    A("s_lshl_b32 s57, s57, 7")
    A("s_add_u32 s57, s57, 0x%x" % FL_H)


def cmul(A, d, a, f, t, pk=False):
    assert d != a and d != f
    if pk:
        A("v_pk_mul_f32 %s, %s, %s op_sel:[0,0] op_sel_hi:[1,0]" % (v(d, 2), v(a, 2), v(f, 2)))
        A("v_pk_fma_f32 %s, %s, %s, %s op_sel:[1,1,0] op_sel_hi:[0,1,1] neg_lo:[1,0,0]" % (v(d, 2), v(a, 2), v(f, 2), v(d, 2)))
        return
    A("v_mul_f32 %s, %s, %s" % (v(d), v(a), v(f)))
    A("v_mul_f32 %s, %s, %s" % (v(d + 1), v(a + 1), v(f)))
    A("v_fma_f32 %s, -%s, %s, %s" % (v(d), v(a + 1), v(f + 1), v(d)))
    A("v_fmac_f32 %s, %s, %s" % (v(d + 1), v(a), v(f + 1)))


def kgen_issue(A, sch, chunks, R, dsk, sub=None):
    n = len(chunks)
    for i in range(6 * n + 1):
        A("v_mov_b32 %s, 0" % v(R + i))
    A("s_mul_i32 s4, %s, 384" % s(sch))
    if sub:
        A("s_sub_u32 s4, s4, %s" % s(sub))
    A("v_lshlrev_b32 v60, 1, v1")
    A("v_add_u32 v60, s4, v60")
    A("s_lshl_b32 s4, %s, 1" % s(sch))
    A("v_mov_b32 v61, s4")
    A("global_load_short_d16_hi %s, v61, %s" % (v(R + 6 * n), s(P_LDT, 2)))
    for k, c in enumerate(chunks):
        for i, p in enumerate([P_ARE, P_AIM, P_BRE, P_BIM, P_CRE, P_CIM]):
            A("global_load_short_d16_hi %s, v60, %s offset:%d" % (v(R + 6 * k + i), s(p, 2), 128 * c))
    if dsk:
        A("v_mov_b32 v59, 0")
        A("global_load_short_d16_hi v59, v61, %s" % s(P_DSK, 2))


def kgen_call(A, R, ldt, zero):
    B = KB
    DT = B + KB_DT
    A("v_mul_f32 %s, %s, %s" % (v(DT), fbits(LOG2E), v(ldt)))
    A("v_exp_f32 %s, %s" % (v(DT), v(DT)))
    for i in range(6):
        A("v_mov_b32 %s, %s" % (v(B + i), v(R + i)))
    A("v_cvt_pk_bf16_f32 %s, %s, %s" % (v(DT), v(DT), v(DT)))
    A("v_and_b32 %s, 0xffff0000, %s" % (v(DT), v(DT)))
    if zero:
        for i in range(16):
            A("v_mov_b32 %s, 0" % v(B + KB_ACC + i))
    A("s_call_b64 s[34:35], Lkgen")


def kgen_give(A, saddr, sidx, R=None):
    A("v_lshlrev_b32 v10, 4, v1")
    A("v_add_u32 v10, %s, v10" % s(saddr))
    if R is None:
        A("s_nop 15")
    for q in range(3):
        A("ds_write_b128 v10, %s offset:%d" % (v((R or KB + KB_ACC) + 4 * q, 4), 1024 * q))
    lds_set(A, sidx, C_KP, 1, 10)
    if R is None:
        A("s_waitcnt lgkmcnt(0)")


def kgen_take2(A, sidx, saddr, rel):
    KACC = KB + KB_ACC
    A("s_lshl_b32 s4, %s, 2" % s(sidx))
    A("v_mov_b32 v10, s4")
    lds_wait(A, CTRL + C_KP, "lg", 0, 11, 10, "s10", False, 0)
    A("v_lshlrev_b32 v11, 4, v1")
    A("v_add_u32 v11, %s, v11" % s(saddr))
    for q in range(3):
        A("ds_read_b128 %s, v11 offset:%d" % (v(12 + 4 * q, 4), 1024 * q))
    if rel:
        A("v_mov_b32 v11, 0")
        A("ds_write_b32 v10, v11 offset:%d" % (PF + 16))
    A("s_waitcnt lgkmcnt(%d)" % (1 if rel else 0))
    for r in range(12):
        A("v_add_f32 %s, %s, %s" % (v(KACC + r), v(KACC + r), v(12 + r)))


def kgen_take(A):
    KACC = KB + KB_ACC
    A("s_lshl_b32 s4, s12, 2")
    A("v_mov_b32 v10, s4")
    lds_wait(A, CTRL + C_KP, "lg", 0, 11, 10, "s10")
    A("s_mov_b32 s4, %d" % (HSTG + 3072))
    A("s_cmp_eq_u32 s12, 0")
    A("s_cselect_b32 s4, s4, %d" % HSTG)
    A("s_add_u32 s5, s69, 8192")
    A("s_cmp_eq_u32 s15, 0")
    A("s_cselect_b32 s4, s5, s4")
    A("v_lshlrev_b32 v11, 4, v1")
    A("v_add_u32 v11, s4, v11")
    for q in range(3):
        A("ds_read_b128 %s, v11 offset:%d" % (v(12 + 4 * q, 4), 1024 * q))
    A("v_mov_b32 v11, 1")
    A("ds_write_b32 v10, v11 offset:%d" % (CTRL + C_KPR - 4))
    A("s_waitcnt lgkmcnt(1)")
    for r in range(12):
        A("v_add_f32 %s, %s, %s" % (v(KACC + r), v(KACC + r), v(12 + r)))


HI = list(range(8)) + [256, 258, 260, 262, 512, 516, 768, 772, 1024, 1280, 1536, 1792, 2048]
EROW = 272


KB, KB_DT, KB_ACC = 62, 6, 134


def kgen_setup(A, B):
    vW, vR, ONE, T = B + 150, B + 8, B + 10, B + 20
    A("v_bfe_u32 %s, v1, 1, 2" % v(T))
    A("v_lshlrev_b32 %s, 4, %s" % (v(T), v(T)))
    A("v_lshl_add_u32 %s, v1, 6, %s" % (v(T), v(T)))
    for q in range(4):
        A("v_xor_b32 %s, %d, %s" % (v(vW + q), 16 * q, v(T)))
        A("v_add_u32 %s, s66, %s" % (v(vW + q), v(vW + q)))
    A("v_bfe_u32 %s, v1, 2, 2" % v(T))
    A("v_lshrrev_b32 %s, 5, v1" % v(T + 1))
    A("v_lshl_add_u32 %s, %s, 3, %s" % (v(T), v(T + 1), v(T)))
    A("v_lshlrev_b32 %s, 6, %s" % (v(vR), v(T)))
    A("v_bfe_u32 %s, v1, 4, 1" % v(T))
    A("v_bfe_u32 %s, v1, 1, 1" % v(T + 1))
    A("v_lshl_add_u32 %s, %s, 1, %s" % (v(T), v(T), v(T + 1)))
    A("v_bfe_u32 %s, v1, 3, 1" % v(T + 1))
    A("v_xor_b32 %s, %s, %s" % (v(T), v(T), v(T + 1)))
    A("v_lshl_add_u32 %s, %s, 4, %s" % (v(vR), v(T), v(vR)))
    A("v_and_b32 %s, 1, v1" % v(T))
    A("v_lshl_add_u32 %s, %s, 3, %s" % (v(vR), v(T), v(vR)))
    A("v_xor_b32 %s, 32, %s" % (v(vR + 1), v(vR)))
    A("v_add_u32 %s, s66, %s" % (v(vR), v(vR)))
    A("v_add_u32 %s, s66, %s" % (v(vR + 1), v(vR + 1)))
    A("v_mov_b32 %s, 1.0" % v(ONE))
    A("v_mov_b32 %s, 0" % v(ONE + 1))


def kgen_chunk(A, B, pkm):
    are, aim, bre, bim, cre, cim = [B + i for i in range(6)]
    DT, vW, vR, ONE = B + KB_DT, B + 150, B + 8, B + 10
    E1, E8, E256, E16, TA = B + 12, B + 14, B + 16, B + 18, B + 20
    LO = [B + 26, B + 28, B + 30, B + 32]
    Gs, PR, PI, KACC = B + 34, B + 78, B + 106, B + KB_ACC
    FA, FB = B + 34, B + 78
    G = lambda i: Gs + 2 * i
    A("v_mul_f32 %s, %s, %s" % (v(are), v(DT), v(are)))
    A("v_mul_f32 %s, %s, %s" % (v(aim), v(DT), v(aim)))
    A("v_mul_f32 %s, %s, %s" % (v(are), fbits(LOG2E), v(are)))
    A("v_mul_f32 %s, %s, %s" % (v(aim), fbits(0.5 / math.pi), v(aim)))
    Es = [(E8, 8.0, TA), (E1, 1.0, TA + 2), (E256, 256.0, TA + 4)]
    for (E, l, T) in Es:
        A("v_mul_f32 %s, %s, %s" % (v(T), fbits(l), v(are)))
        A("v_mul_f32 %s, %s, %s" % (v(T + 1), fbits(l), v(aim)))
    for (E, l, T) in Es:
        A("v_fract_f32 %s, %s" % (v(T + 1), v(T + 1)))
    for (E, l, T) in Es:
        A("v_exp_f32 %s, %s" % (v(T), v(T)))
        A("v_cos_f32 %s, %s" % (v(E), v(T + 1)))
        A("v_sin_f32 %s, %s" % (v(E + 1), v(T + 1)))
    A("v_mul_f32 %s, %s, %s" % (v(bre), v(DT), v(bre)))
    A("v_mul_f32 %s, %s, %s" % (v(bim), v(DT), v(bim)))
    for (E, l, T) in Es:
        A("v_mul_f32 %s, %s, %s" % (v(E), v(E), v(T)))
        A("v_mul_f32 %s, %s, %s" % (v(E + 1), v(E + 1), v(T)))
    cmul(A, Gs, cre, bre, TA)
    cmul(A, E16, E8, E8, E16)
    loc = {0: Gs, 24: ONE, 25: E8, 26: E16}
    packed, written = set(), set()
    dsq = []

    def flush():
        for p in range(28):
            if p in packed or p == 11:
                continue
            c0, c1 = 2 * p, 2 * p + 1
            if p == 10:
                c1 = c0
            if c0 in loc and c1 in loc:
                n = "-" if p < 12 else ""
                A("v_cvt_pk_bf16_f32 %s, %s, %s" % (v(PR + p), v(loc[c0]), v(loc[c1])))
                A("v_cvt_pk_bf16_f32 %s, %s%s, %s%s" % (v(PI + p), n, v(loc[c0] + 1), n, v(loc[c1] + 1)))
                packed.add(p)

    def rd(F, ks):
        return ["ds_read_b64_tr_b16 %s, %s offset:%d" % (v(F + 4 * ks, 2), v(vR), 1024 * ks),
                "ds_read_b64_tr_b16 %s, %s offset:%d" % (v(F + 4 * ks + 2, 2), v(vR + 1), 1024 * ks + 256)]

    def wr(old):
        for q in range(7):
            if q in written or (q >= 3 and "A" not in written):
                continue
            if all((p in old or p == 11) for p in range(4 * q, 4 * q + 4)):
                ch = q if q < 3 else q - 3
                dsq.append("ds_write_b128 %s, %s" % (v(vW + ch), v(PR + 4 * q, 4)))
                dsq.append("ds_write_b128 %s, %s offset:4096" % (v(vW + ch), v(PI + 4 * q, 4)))
                written.add(q)
            if q == 2 and {0, 1, 2} <= written and "A" not in written:
                for ks in range(8):
                    dsq.extend(rd(FA, ks))
                written.add("A")
    cur = [E16, E8]
    lo_ops = []
    for j in range(3, 32):
        ch = 1 if (j & 1) else 0
        dst = LO[2 * ch + ((j >> 1) & 1)]
        lo_ops.append((dst, cur[ch], E16, 24 + j))
        cur[ch] = dst
    src = {8: 0, 9: 2, 10: 4, 11: 6, 12: 8, 13: 10, 14: 12, 15: 13, 16: 14, 17: 16, 18: 17, 19: 18, 20: 19}
    groups = [[lo_ops.pop(0)]]
    while lo_ops:
        groups.append([lo_ops.pop(0), lo_ops.pop(0)])
    for i in range(1, 8):
        groups[i - 1].append((G(i), G(i - 1), E1, i))
    for n, i in enumerate([8, 12, 14, 16, 17, 18, 19, 20]):
        groups[n].append((G(i), G(src[i]), E256, i))
    for n, i in [(2, 9), (4, 10), (5, 13), (6, 11), (7, 15)]:
        groups[n].append((G(i), G(src[i]), E256, i))

    def ds(n):
        for _ in range(n):
            if dsq:
                A(dsq.pop(0))
    for gi, grp in enumerate(groups):
        old = set(packed)
        if gi == OPT.get("kpg", 99):
            A("s_setprio 3")
        for (d, a, f, col) in grp:
            if pkm:
                A("v_pk_mul_f32 %s, %s, %s op_sel:[0,0] op_sel_hi:[1,0]" % (v(d, 2), v(a, 2), v(f, 2)))
            else:
                A("v_mul_f32 %s, %s, %s" % (v(d), v(a), v(f)))
                A("v_mul_f32 %s, %s, %s" % (v(d + 1), v(a + 1), v(f)))
        wr(old)
        ds(3)
        flush()
        for (d, a, f, col) in grp:
            if pkm:
                A("v_pk_fma_f32 %s, %s, %s, %s op_sel:[1,1,0] op_sel_hi:[0,1,1] neg_lo:[1,0,0]" % (v(d, 2), v(a, 2), v(f, 2), v(d, 2)))
            else:
                A("v_fma_f32 %s, -%s, %s, %s" % (v(d), v(a + 1), v(f + 1), v(d)))
                A("v_fmac_f32 %s, %s, %s" % (v(d + 1), v(a), v(f + 1)))
        ds(3)
        for (d, a, f, col) in grp:
            loc[col] = d
    flush()
    wr(packed)
    assert len(written) == 8
    if OPT.get("kts"):
        A.ts(13)
    if OPT.get("kpg", 99) == 15:
        A("s_setprio 3")
    ds(99)
    for ks in range(8):
        for t in rd(FB, ks):
            A(t)
    if OPT.get("kp", 1):
        A("s_setprio 3")
    for ks in range(8):
        A("s_waitcnt lgkmcnt(%d)" % (2 * (7 - ks)))
        A("v_mfma_f32_32x32x16_bf16 %s, %s, %s, %s" % (v(KACC, 16), v(FA + 4 * ks, 4), v(FB + 4 * ks, 4), v(KACC, 16)))
    if OPT.get("kp", 1):
        A("s_setprio %d" % OPT.get("pa", 0))


def kgen_expand(A, KACC):
    A("v_and_b32 v2, 31, v1")
    A("v_lshrrev_b32 v3, 5, v1")
    A("v_lshlrev_b32 v4, 5, v2")
    A("v_lshl_add_u32 v4, v3, 4, v4")
    A("v_add_u32 v4, s66, v4")
    A("v_lshlrev_b32 v5, 4, v2")
    A("v_add_u32 v5, s66, v5")
    A("v_lshlrev_b32 v6, 3, v2")
    A("v_add_u32 v6, s66, v6")
    A("v_lshlrev_b32 v7, 2, v2")
    A("v_add_u32 v7, s66, v7")
    A("s_nop 7")
    A("s_mov_b64 exec, 1")
    A("v_add_f32 %s, %s, v59" % (v(KACC), v(KACC)))
    A("s_mov_b64 exec, -1")
    A("ds_write_b128 v4, %s" % v(KACC, 4))
    A("s_mov_b32 exec_hi, 0")
    A("ds_write_b128 v5, %s offset:%d" % (v(KACC + 4, 4), 256 * 4))
    for r in range(4):
        A("ds_write_b32 v7, %s offset:%d" % (v(KACC + 8 + r), (512 + 32 * r) * 4))
    A("s_mov_b32 exec_lo, 0")
    A("s_mov_b32 exec_hi, -1")
    A("ds_write_b64 v6, %s offset:%d" % (v(KACC + 4, 2), 384 * 4))
    A("ds_write_b64 v6, %s offset:%d" % (v(KACC + 6, 2), 448 * 4))
    A("ds_write_b32 v7, %s offset:%d" % (v(KACC + 8), 640 * 4))
    A("s_mov_b64 exec, -1")
    S0, S1, S2, S3 = 10, 16, 20, 24
    A("v_lshlrev_b32 v2, 3, v1")
    A("v_add_u32 v3, s66, v2")
    A("v_lshlrev_b32 v4, 4, v1")
    A("v_add_u32 v4, s66, v4")
    A("ds_read_b128 %s, v4" % v(S0 + 2, 4))
    A("ds_read_b32 %s, v4 offset:16" % v(S0))
    for (S, b) in [(S1, 256), (S2, 384), (S3, 512)]:
        A("ds_read_b64 %s, v3 offset:%d" % (v(S, 2), 4 * b))
        A("ds_read_b32 %s, v3 offset:%d" % (v(S + 2), 4 * b + 8))
    A("v_add_u32 v2, s69, v2")
    A("v_lshrrev_b32 v3, 4, v1")
    A("v_mul_u32_u24 v3, %d, v3" % KSTR)
    A("v_and_b32 v4, 15, v1")
    A("v_lshl_add_u32 v3, v4, 2, v3")
    A("v_add_u32 v3, s69, v3")
    A("v_sub_u32 v5, 63, v1")
    A("v_lshlrev_b32 v6, 5, v5")
    A("v_add_u32 v6, s69, v6")
    A("v_lshlrev_b32 v7, 4, v5")
    A("v_add_u32 v7, s69, v7")
    A("v_lshlrev_b32 v5, 3, v5")
    A("v_add_u32 v5, s69, v5")
    A("v_mov_b32 v8, 0")
    A("v_mov_b32 v9, 0")
    lds_set(A, 12, C_TRD, 1, 76)
    A("s_waitcnt lgkmcnt(1)")
    O = 96

    def val3(o):
        return S3 + (0 if o <= 4 else 1 if o <= 11 else 2)

    def val2(o):
        return S2 + (0 if o <= 2 else 1 if o <= 5 else 2)
    for d in range(4):
        o0 = O + 12 * d
        for w in range(8):
            A("v_cvt_pk_bf16_f32 %s, %s, %s" % (v(o0 + w), v(val3(d + 15 - 2 * w)), v(val3(d + 14 - 2 * w))))
        for w in range(4):
            A("v_cvt_pk_bf16_f32 %s, %s, %s" % (v(o0 + 8 + w), v(val2(d + 7 - 2 * w)), v(val2(d + 6 - 2 * w))))
    A("v_cvt_pk_bf16_f32 v52, %s, %s" % (v(S2), v(S2)))
    a, b, c = S1, S1 + 1, S1 + 2
    t0, t1, t2, t3, t4 = S0 + 2, S0 + 3, S0 + 4, S0 + 5, S0
    prs = [(c, b), (a, a), (c, c), (b, a), (t3, t2), (t1, t0), (t4, t3), (t2, t1)]
    for i, (x, y) in enumerate(prs):
        A("v_cvt_pk_bf16_f32 %s, %s, %s" % (v(64 + i), v(x), v(y)))
    A("v_cvt_pk_bf16_f32 v72, %s, 0" % v(t0))
    A("v_add_u32 v73, %d, v5" % (2 * KSTR + 3072))
    A("v_add_u32 v74, %d, v5" % (3 * KSTR + 3072))
    A.ts(6)
    if OPT.get("ulate", 16):
        prog_wait(A, OPT.get("ulate", 16), 76, 4)
    u_issue(A)
    if not OPT.get("par", 0):
        lds_wait(A, CTRL + C_KPR, "lg", 0, 76, 80, "s10", False, 2)
    sgl = A.newl("Lxg")
    A("s_cmp_eq_u32 s15, 0")
    A("s_cbranch_scc1 %s" % sgl)
    prog_wait(A, OPT.get("xp", 21), 76, 2)
    A.label(sgl)
    A("ds_write_b64 v2, v[8:9] offset:%d" % AUX_U)
    A("ds_write_b32 v3, v8 offset:4096")
    for d in range(4):
        o0 = O + 12 * d
        A("ds_write_b128 v6, %s offset:%d" % (v(o0, 4), d * KSTR))
        A("ds_write_b128 v6, %s offset:%d" % (v(o0 + 4, 4), d * KSTR + 16))
        A("ds_write_b128 v7, %s offset:%d" % (v(o0 + 8, 4), d * KSTR + 2048))
    A("ds_write_b32 v7, v52 offset:%d" % (2 * KSTR + 2048 + 16))
    A("ds_write_b32 v7, v52 offset:%d" % (3 * KSTR + 2048 + 16))
    for d in range(2):
        A("ds_write_b64 v5, %s offset:%d" % (v(64 + 2 * d, 2), d * KSTR + 3072))
        A("ds_write_b64 v5, %s offset:%d" % (v(68 + 2 * d, 2), d * KSTR + 3584))
    for d in range(2):
        A("ds_write2_b32 %s, %s, %s offset0:1 offset1:2" % (v(73 + d), v(64 + 2 * d), v(65 + 2 * d)))
        A("ds_write2_b32 %s, %s, %s offset0:129 offset1:130" % (v(73 + d), v(68 + 2 * d), v(69 + 2 * d)))
    A("s_mov_b64 exec, 1")
    A("ds_write_b32 v5, v72 offset:%d" % (1 * KSTR + 3584 + 8))
    A("ds_write_b32 v5, v72 offset:%d" % (3 * KSTR + 3584 + 12))
    A("s_mov_b64 exec, -1")


def u_issue(A):
    A("v_mov_b32 v80, %d" % CTRL)
    lds_wait(A, C_GO, "lg", 0, 76, 80, "s10", False, 2)
    A("v_lshrrev_b32 v81, 1, v1")
    A("v_mul_u32_u24 v81, 10240, v81")
    A("v_and_b32 v82, 1, v1")
    A("v_lshl_add_u32 v81, v82, 4, v81")
    A("s_and_b32 s4, s68, -2")
    A("s_lshl_b32 s4, s4, 4")
    A("s_and_b32 s5, s12, 1")
    A("s_mul_i32 s5, s5, %d" % (128 * 10240))
    A("s_add_u32 s4, s4, s5")
    A("s_add_u32 s4, s4, 0x%x" % WS_XT)
    for i in range(4):
        A("buffer_load_dwordx4 %s, v81, s[48:51], s4 offen%s" % (v(232 + 4 * i, 4), LSC))
        if i < 3:
            A("s_add_u32 s4, s4, %d" % (32 * 10240))


def prog_wait(A, val, vt, sleep):
    pl, ok = A.newl("Lpw"), A.newl("Lpo")
    A("v_mov_b32 %s, %d" % (v(vt + 4), CTRL))
    A.label(pl)
    guard(A)
    A("ds_read_b128 %s, %s offset:%d" % (v(vt, 4), v(vt + 4), PF + 16 * val))
    A("s_waitcnt lgkmcnt(0)")
    A("v_or_b32 %s, %s, %s" % (v(vt), v(vt), v(vt + 1)))
    A("v_or3_b32 %s, %s, %s, %s" % (v(vt), v(vt), v(vt + 2), v(vt + 3)))
    A("s_nop 0")
    A("v_readfirstlane_b32 s10, %s" % v(vt))
    A("s_cmp_eq_u32 s10, 0")
    A("s_cbranch_scc1 %s" % ok)
    A("s_sleep %d" % sleep)
    A("s_branch %s" % pl)
    A.label(ok)


def epi_wait(A):
    A("s_lshl_b32 s4, s3, 2")
    A("v_mov_b32 v10, s4")
    lds_wait(A, CTRL + C_EPI - 16, "lg", 0, 11, 10, "s10", False, 2)


CV_ACC = 192


def lds_set(A, off_sreg_mul4, base, val, vt):
    A("s_lshl_b32 s4, %s, 2" % s(off_sreg_mul4))
    A("v_mov_b32 %s, s4" % v(vt))
    A("v_mov_b32 %s, %d" % (v(vt + 1), val))
    A("ds_write_b32 %s, %s offset:%d" % (v(vt), v(vt + 1), CTRL + base))


def u_store(A):
    A("s_xor_b32 s4, s12, 1")
    A("s_lshl_b32 s4, s4, 2")
    A("v_mov_b32 v5, s4")
    lds_wait(A, CTRL + C_TRD, "lg", 0, 6, 5, "s10")
    A("s_and_b32 s5, s12, 1")
    A("s_mul_i32 s4, s5, %d" % (AUXSZ + 2048))
    A("s_add_u32 s4, s4, s69")
    A("v_lshrrev_b32 v5, 1, v1")
    A("v_lshlrev_b32 v5, 4, v5")
    A("v_and_b32 v6, 1, v1")
    A("v_mul_u32_u24 v6, %d, v6" % AUXSZ)
    A("v_sub_u32 v5, v5, v6")
    A("v_add_u32 v5, s4, v5")
    for i in range(4):
        A("s_waitcnt vmcnt(%d)" % (3 - i))
        A("ds_write_b128 v5, %s offset:%d" % (v(232 + 4 * i, 4), AUX_U + 512 + 512 * i))


def krdy_wait(A):
    pl, ok = A.newl("Lkw"), A.newl("Lko")
    A("s_and_b32 s4, s12, 2")
    A("s_lshl_b32 s4, s4, 2")
    A("v_mov_b32 v16, s4")
    A.label(pl)
    guard(A)
    A("ds_read_b64 v[14:15], v16 offset:%d" % (CTRL + C_KRDY))
    A("s_waitcnt lgkmcnt(0)")
    A("v_and_b32 v14, v14, v15")
    A("s_nop 0")
    A("v_readfirstlane_b32 s10, v14")
    A("s_cmp_lg_u32 s10, 0")
    A("s_cbranch_scc1 %s" % ok)
    A("s_sleep 1")
    A("s_branch %s" % pl)
    A.label(ok)


def conv_core(A):
    AF, BF, ACC = 64, 128, CV_ACC
    vK, vU = 2, 3
    A.label("Lconv")
    A("v_and_b32 v6, 15, v1")
    A("v_lshrrev_b32 v7, 4, v1")
    A("v_add_u32 v8, 1, v6")
    A("v_and_b32 v9, 3, v8")
    A("v_mul_u32_u24 %s, %d, v9" % (v(vK), KSTR))
    A("v_lshrrev_b32 v8, 2, v8")
    A("v_lshlrev_b32 v8, 3, v8")
    A("v_sub_u32 %s, %s, v8" % (v(vK), v(vK)))
    A("v_lshl_add_u32 %s, v7, 4, %s" % (v(vK), v(vK)))
    A("s_lshl_b32 s5, s13, 6")
    A("s_sub_u32 s5, s69, s5")
    A("s_add_u32 s4, s5, %d" % (32 + 256))
    A("v_add_u32 %s, s4, %s" % (v(vK), v(vK)))
    A("v_lshlrev_b32 %s, 5, v6" % v(vU))
    A("v_lshl_add_u32 %s, v7, 4, %s" % (v(vU), v(vU)))
    A("v_add_u32 %s, s5, %s" % (v(vU), v(vU)))
    for r in range(32):
        A("v_mov_b32 %s, 0" % v(ACC + r))
    epi_wait(A)
    A("s_setprio %d" % OPT.get("pc", 3))
    A.ts(7)
    top = A.newl("Lcv")
    A.label(top)
    lg = Cnt(A, "lgkmcnt", 15)

    def rdA(ph, p):
        r = AF + 32 * (ph & 1) + 4 * p
        off = 64 * (3 - ph) + 512 * (7 - p)
        A("ds_read_b64 %s, %s offset:%d" % (v(r, 2), v(vK), off))
        lg.issue(("a0", ph, p))
        A("ds_read_b64 %s, %s offset:%d" % (v(r + 2, 2), v(vK), off + 8))
        lg.issue(("a", ph, p))

    def rdB(ph, m):
        r = BF + 32 * (ph & 1) + 4 * m
        A("ds_read_b128 %s, %s offset:%d" % (v(r, 4), v(vU), AUX_U + 480 - 64 * ph + 512 * m))
        lg.issue(("b", ph, m))

    def reads(ph):
        L = []
        for i in range(8):
            L.append((rdA, ph, i))
            L.append((rdB, ph, i))
        return L
    pairs = sorted([(p, m) for p in range(8) for m in range(8) if p + m <= 7], key=lambda x: (max(x), x))
    pend = reads(0)
    for _ in range(8):
        f, a1, a2 = pend.pop(0)
        f(a1, a2)
    for ph in range(4):
        if ph + 1 < 4:
            pend += reads(ph + 1)
        for n, (p, m) in enumerate(pairs):
            while any((f is rdA and a1 == ph and a2 == p) or (f is rdB and a1 == ph and a2 == m) for (f, a1, a2) in pend):
                f, a1, a2 = pend.pop(0)
                f(a1, a2)
            lg.wait(("a", ph, p))
            lg.wait(("b", ph, m))
            q = p + m
            A("v_mfma_f32_16x16x32_bf16 %s, %s, %s, %s" % (v(ACC + 4 * q, 4), v(AF + 32 * (ph & 1) + 4 * p, 4), v(BF + 32 * (ph & 1) + 4 * m, 4), v(ACC + 4 * q, 4)))
            if pend and (n & 1) == 0 and len(lg.q) <= 12:
                f, a1, a2 = pend.pop(0)
                f(a1, a2)
    A("v_subrev_u32 %s, 256, %s" % (v(vK), v(vK)))
    A("v_subrev_u32 %s, 256, %s" % (v(vU), v(vU)))
    A("s_sub_u32 s14, s14, 1")
    A("s_cmp_lg_u32 s14, 0")
    A("s_cbranch_scc1 %s" % top)
    A.ts(10)
    A("s_setpc_b64 s[34:35]")


def conv_out(A):
    ACC = CV_ACC
    A("v_lshrrev_b32 v4, 2, v6")
    A("v_lshlrev_b32 v4, 7, v4")
    A("v_and_b32 v5, 3, v6")
    A("v_lshl_add_u32 v4, v5, 4, v4")
    A("v_lshrrev_b32 v5, 1, v7")
    A("v_lshl_add_u32 v4, v5, 6, v4")
    A("v_and_b32 v5, 1, v7")
    A("v_lshl_add_u32 v4, v5, 9, v4")
    A("s_lshl_b32 s4, s68, 12")
    A("s_add_u32 s4, s4, 0x%x" % WS_AT)
    for q in range(8):
        A("v_cvt_pk_bf16_f32 %s, %s, %s" % (v(16 + 2 * q), v(ACC + 4 * q), v(ACC + 4 * q + 1)))
        A("v_cvt_pk_bf16_f32 %s, %s, %s" % (v(17 + 2 * q), v(ACC + 4 * q + 2), v(ACC + 4 * q + 3)))
    A("s_nop 1")
    for i in range(4):
        A("v_permlane16_swap_b32 %s, %s" % (v(16 + 4 * i), v(18 + 4 * i)))
        A("v_permlane16_swap_b32 %s, %s" % (v(17 + 4 * i), v(19 + 4 * i)))
        A("buffer_store_dwordx4 %s, v4, s[48:51], s4 offen offset:%d%s" % (v(16 + 4 * i, 4), 1024 * i, SC1))
    A.ts(11)


def a_flag(A):
    A("s_lshl_b32 s6, s68, 7")
    A("s_add_u32 s6, s6, 0x%x" % FL_A)
    A("s_waitcnt vmcnt(0)")
    signal(A, 6, 10)


def conv_helper(A):
    ACC = CV_ACC
    A("s_sub_u32 s12, s3, 6")
    A("s_add_u32 s4, s12, 1")
    A("s_mul_i32 s4, s4, %d" % AUXSZ)
    A("s_sub_u32 s69, %d, s4" % LDS_TOTAL)
    A("s_lshl_b32 s4, s12, 2")
    A("v_mov_b32 v12, s4")
    krdy_wait(A)
    A("s_mov_b32 s13, 4")
    A("s_mov_b32 s14, 1")
    A("s_call_b64 s[34:35], Lconv")
    lds_wait(A, CTRL + C_CRD, "lg", 0, 13, 12, "s10", False, 0)
    A("v_lshlrev_b32 v5, 4, v1")
    A("v_add_u32 v5, s69, v5")
    A("s_nop 4")
    for q in range(8):
        A("ds_write_b128 v5, %s offset:%d" % (v(ACC + 4 * q, 4), 1024 * q))
    A("v_mov_b32 v13, 1")
    A("ds_write_b32 v12, v13 offset:%d" % (CTRL + C_CPT))
    A("s_waitcnt lgkmcnt(0)")


def conv_owner(A):
    ACC = CV_ACC
    solo, sk6 = A.newl("Lsolo"), A.newl("Lsk")
    u_store(A)
    lds_set(A, 12, C_KRDY, 1, 12)
    krdy_wait(A)
    A.ts(9)
    A("s_mov_b32 s13, 0")
    A("s_sub_u32 s14, 2, s15")
    A("s_call_b64 s[34:35], Lconv")
    A("v_mov_b32 v14, 0")
    A("s_cmp_lt_u32 s3, 6")
    A("s_cbranch_scc1 %s" % sk6)
    A("ds_write_b32 v12, v14 offset:%d" % (PF + 16 * 20))
    A("ds_write_b32 v12, v14 offset:%d" % (PF + 16 * 21))
    A.label(sk6)
    A("s_cmp_eq_u32 s15, 0")
    A("s_cbranch_scc1 %s" % solo)
    A("ds_write_b32 v12, v13 offset:%d" % (CTRL + C_CRD))
    A("v_lshlrev_b32 v5, 4, v1")
    A("v_add_u32 v5, s69, v5")
    lds_wait(A, CTRL + C_CPT, "lg", 0, 14, 12, "s10", False, 0)
    for q in range(8):
        A("ds_read_b128 %s, v5 offset:%d" % (v(64 + 4 * q, 4), 1024 * q))
    for q in range(8):
        A("s_waitcnt lgkmcnt(%d)" % (7 - q))
        for e in range(4):
            A("v_add_f32 %s, %s, %s" % (v(ACC + 4 * q + e), v(ACC + 4 * q + e), v(64 + 4 * q + e)))
    A.label(solo)
    conv_out(A)


def a_fetch(A):
    sk = A.newl("Laf")
    A("s_cmp_eq_u32 s3, 6")
    A("s_cselect_b32 s69, %d, s69" % MAIN)
    A("s_sub_u32 s8, s3, 4")
    A("s_mul_i32 s4, s63, 80")
    A("s_lshl_b32 s5, s8, 5")
    A("s_add_u32 s4, s4, s5")
    A("s_lshl_b32 s6, s4, 12")
    A("s_lshl_b32 s5, s62, 7")
    A("s_add_u32 s6, s6, s5")
    A("s_add_u32 s6, s6, 0x%x" % WS_AT)
    A("v_lshrrev_b32 v2, 3, v1")
    A("v_and_b32 v3, 7, v1")
    A("v_lshlrev_b32 v4, 12, v2")
    A("v_lshl_add_u32 v4, v3, 4, v4")
    A("v_lshlrev_b32 v13, 7, v1")
    A("s_lshl_b32 s9, s4, 7")
    A("s_add_u32 s9, s9, 0x%x" % FL_A)
    A("s_cmp_eq_u32 s3, 6")
    A("s_cselect_b32 exec_lo, 0xffff, -1")
    A("s_mov_b32 exec_hi, 0")
    poll_flags(A, [(14, 1, 13, 9, 0)], [14], 15, OPT.get("asl", 4))
    A("s_mov_b64 exec, -1")
    A.ts(13)
    for i in range(4):
        if i == 2:
            A("s_cmp_eq_u32 s3, 6")
            A("s_cbranch_scc1 %s" % sk)
        A("s_add_u32 m0, s69, %d" % (1024 * i))
        A("s_nop 0")
        A("buffer_load_dwordx4 v4, s[48:51], s6 offen sc1 lds")
        A("s_add_u32 s6, s6, %d" % (8 * 4096))
    A.label(sk)
    A("s_waitcnt vmcnt(0)")


def gemm2(A):
    ACC = 176
    vH, vL, vWo, vC = 12, 16, G_vXo, G_vC
    pool = [r for r in range(24, ACC, 4) if r not in G2_RREGS]
    lg = Cnt(A, "lgkmcnt", 15)
    vm = Cnt(A, "vmcnt", 63)
    Wr, Hr = {(k // 5, k % 5): r for k, r in enumerate(G2_RREGS)}, {}

    def wload(j, ct):
        r = Wr[(j, ct)] = pool.pop(0)
        g2_wload(A, r, j, ct)
        vm.issue(("w", j, ct))

    def hload(j, q):
        r = Hr[(j, q)] = pool.pop(0)
        A("buffer_load_dwordx4 %s, %s, s[48:51], s54 offen%s" % (v(r, 4), v(vH + q), LSC))
        vm.issue(("h", j, q))
        if q == 3 and j < 11:
            A("s_add_u32 s54, s54, 2048")
            A("s_cmp_ge_u32 s54, s56")
            A("s_cselect_b32 s54, s55, s54")
    A("v_lshrrev_b32 v9, 4, v1")
    A("v_and_b32 v10, 15, v1")
    A("v_lshlrev_b32 v10, 4, v10")
    A("v_lshl_add_u32 v10, v9, 9, v10")
    for q in range(4):
        A("s_xor_b32 s4, s3, %d" % q)
        A("s_lshr_b32 s5, s4, 1")
        A("s_mul_i32 s5, s5, %d" % (96 * 1024))
        A("s_and_b32 s4, s4, 1")
        A("s_lshl_b32 s4, s4, 8")
        A("s_add_u32 s4, s4, s5")
        A("v_add_u32 %s, s4, v10" % v(vH + q))

    def area(sd, wreg, jl):
        A("s_mov_b32 %s, %d" % (s(sd), G2SLOT[2 * jl + 1][1]))
        A("s_cmp_lt_u32 %s, 2" % s(wreg))
        A("s_cselect_b32 %s, %s, %d" % (s(sd), s(sd), G2SLOT[2 * jl + 2][1]))
        A("s_bitcmp1_b32 %s, 0" % s(wreg))
        A("s_cselect_b32 s7, 5120, 0")
        A("s_add_u32 %s, %s, s7" % (s(sd), s(sd)))
    for jl in range(NL2):
        area(4, 3, jl)
        A("v_add_u32 %s, s4, %s" % (v(vL + jl), v(vWo)))
    sk = A.newl("Lsg")
    A("s_cmp_ge_u32 s2, 192")
    A("s_cbranch_scc1 %s" % sk)
    A("s_waitcnt vmcnt(0)")
    signal(A, 57, 10)
    A.ts(7)
    for k in range(4 * OPT.get("rearly", 0), 20):
        g2_wload(A, G2_RREGS[k], k // 5, k % 5)
    A.label(sk)
    full_wait(A, 20, False)
    A("v_and_b32 v9, 15, v1")
    A("v_mul_u32_u24 v9, 160, v9")
    A("v_lshrrev_b32 v10, 4, v1")
    A("v_lshl_add_u32 v23, v10, 3, v9")
    A("s_mul_i32 s4, s3, %d" % (16 * 160))
    A("s_add_u32 s4, s4, %d" % G2SLOT[0][1])
    A("v_add_u32 v9, s4, v23")
    for ct in range(5):
        A("ds_read_b64 %s, v9 offset:%d" % (v(ACC + 20 + 2 * ct, 2), 32 * ct))
    A("s_waitcnt lgkmcnt(0)")
    for i in range(10):
        A("v_lshlrev_b32 %s, 16, %s" % (v(ACC + 2 * i), v(ACC + 20 + i)))
        A("v_and_b32 %s, 0xffff0000, %s" % (v(ACC + 2 * i + 1), v(ACC + 20 + i)))
    A("v_lshlrev_b32 v9, 7, v1")
    A("s_lshl_b32 s6, s62, 12")
    A("s_mul_i32 s4, s3, 768")
    A("s_add_u32 s6, s6, s4")
    A("s_add_u32 s6, s6, 0x%x" % FL_H)
    setexec(A, 0x3f)
    poll_flags(A, [(21, 1, 9, 6, 0)], [21], 10, OPT.get("sl", 2))
    A("s_mov_b64 exec, -1")
    vm.q = []
    A.ts(12)
    queue = []
    for j in range(12):
        queue += [(hload, j, q) for q in range(4)]
        if j >= NR2 + NL2:
            queue += [(wload, j, ct) for ct in range(5)]

    def fill(n):
        while queue and pool and n > 0:
            f, j, x = queue.pop(0)
            f(j, x)
            n -= 1
    fill(OPT.get("h0", 99))
    XA = {1: 58, 2: 59, 3: 15}
    for q in range(1, 4):
        A("s_xor_b32 s5, s3, %d" % q)
        area(XA[q], 5, q)
    A("s_lshl_b32 s6, s3, 4")
    A("s_add_u32 s6, s6, %d" % MAIN)
    A("v_lshrrev_b32 v9, 1, v1")
    A("v_lshlrev_b32 v9, 6, v9")
    A("v_and_b32 v10, 1, v1")
    A("v_lshl_add_u32 v9, v10, 3, v9")
    A("v_add_u32 v21, s6, v9")
    srd(A, 64, P_OUT, 2048 * 640 * 2)
    area(4, 3, 0)
    A("v_add_u32 v23, s4, v23")
    GO = [2, 3, 6]
    for p in range(3):
        A("v_add_u32 v9, %d, v1" % (64 * p))
        A("v_mul_u32_u24 v10, 52429, v9")
        A("v_lshrrev_b32 v10, 19, v10")
        A("v_mul_u32_u24 v10, %d, v10" % (1280 - 160))
        A("v_lshl_add_u32 %s, v9, 4, v10" % v(GO[p]))
    A("s_lshl_b32 s14, s62, 2")
    A("s_add_u32 s14, s14, s3")
    A("s_mul_i32 s14, s14, %d" % (16 * 1280))
    A("s_mul_i32 s7, s63, 160")
    A("s_add_u32 s14, s14, s7")
    LB = [Wr[(NR2 - 1, ct)] for ct in range(5)]

    def lread(j, ct):
        Wr[(j, ct)] = LB[ct]
        A("ds_read_b128 %s, %s offset:%d" % (v(LB[ct], 4), v(vL + j - NR2), 1024 * ct))
        lg.issue(("w", j, ct))
    for j in range(11):
        for ct in range(5):
            lg.wait(("w", j, ct))
            vm.wait(("w", j, ct))
            for q in range(4):
                vm.wait(("h", j, q))
                if j == 0 and ct == 0 and q == 0:
                    A.ts(13)
                if OPT.get("g2ts") and j in (3, 6, 9) and ct == 0 and q == 3:
                    A.ts(7 + j // 3)
                d = ACC + 20 * q + 4 * ct
                cin = "0" if (j == 0 and q) else v(d, 4)
                A("v_mfma_f32_16x16x32_bf16 %s, %s, %s, %s" % (v(d, 4), v(Wr[(j, ct)], 4), v(Hr[(j, q)], 4), cin))
                if ct == 4:
                    pool.append(Hr[(j, q)])
                if (q & 1) or OPT.get("hf", 0):
                    fill(1)
            if NR2 - 1 <= j < NR2 + NL2 - 1:
                if ct == 0 and j == NR2 - 1:
                    full_wait(A, 20 + 2 * NL2, False)
                    lg.q = []
                if ct == 0 and j == OPT.get("agj", 4):
                    A("v_mov_b32 v10, 0")
                    A("ds_write_b32 %s, v10 offset:%d" % (v(G_vPa), PF + 16 * 22))
                    lg.issue("p")
                lread(j + 1, ct)
            else:
                pool.append(Wr[(j, ct)])
    fill(99)
    assert not queue
    done = []
    for q in (1, 2, 3, 0):
        vm.wait(("h", 11, q))
        for ct in range(5):
            vm.wait(("w", 11, ct))
            d = ACC + 20 * q + 4 * ct
            A("v_mfma_f32_16x16x32_bf16 %s, %s, %s, %s" % (v(d, 4), v(Wr[(11, ct)], 4), v(Hr[(11, q)], 4), v(d, 4)))
            if q:
                done.append((q, ct))
            if len(done) > 8 or (q == 0 and done):
                qq, cc = done.pop(0)
                A("ds_write_b128 %s, %s offset:%d" % (v(vL + qq), v(ACC + 20 * qq + 4 * cc, 4), 1024 * cc))
    A.ts(14)
    for (qq, cc) in done:
        A("ds_write_b128 %s, %s offset:%d" % (v(vL + qq), v(ACC + 20 * qq + 4 * cc, 4), 1024 * cc))
    for q in range(1, 4):
        A("v_add_u32 %s, %s, %s" % (v(vH + q), s(XA[q]), v(vWo)))
    A("v_add_u32 %s, %d, v21" % (v(vH), AUX0 - MAIN))
    A("s_waitcnt lgkmcnt(0)")
    A("s_barrier")
    R = 96
    lg.q = []
    for ct in range(5):
        if ct < 4:
            A("ds_read_b64_tr_b16 %s, %s offset:%d" % (v(R + 16 * ct + 2, 2), v(vH), (1 - (ct >> 1)) * AUXSZ + 2048 * (ct & 1)))
        else:
            A("ds_read_b64_tr_b16 %s, v21" % v(R + 16 * ct + 2, 2))
        lg.issue((ct, 0))
        for q in range(1, 4):
            A("ds_read_b128 %s, %s offset:%d" % (v(R + 16 * ct + 4 * q, 4), v(vH + q), 1024 * ct))
            lg.issue((ct, q))
    for ct in range(5):
        lg.wait((ct, 3))
        d, r = ACC + 4 * ct, R + 16 * ct
        A("v_lshlrev_b32 %s, 16, %s" % (v(r), v(r + 2)))
        A("v_and_b32 %s, 0xffff0000, %s" % (v(r + 1), v(r + 2)))
        A("v_lshlrev_b32 %s, 16, %s" % (v(r + 2), v(r + 3)))
        A("v_and_b32 %s, 0xffff0000, %s" % (v(r + 3), v(r + 3)))
        for h in (0, 2):
            A("v_pk_add_f32 %s, %s, %s" % (v(d + h, 2), v(d + h, 2), v(r + 4 + h, 2)))
            A("v_pk_add_f32 %s, %s, %s" % (v(r + 8 + h, 2), v(r + 8 + h, 2), v(r + 12 + h, 2)))
        for h in (0, 2):
            A("v_pk_add_f32 %s, %s, %s" % (v(d + h, 2), v(d + h, 2), v(r + h, 2)))
        for h in (0, 2):
            A("v_pk_add_f32 %s, %s, %s" % (v(d + h, 2), v(d + h, 2), v(r + 8 + h, 2)))
        A("v_cvt_pk_bf16_f32 %s, %s, %s" % (v(64 + 2 * ct), v(d), v(d + 1)))
        A("v_cvt_pk_bf16_f32 %s, %s, %s" % (v(65 + 2 * ct), v(d + 2), v(d + 3)))
        A("ds_write_b64 v23, %s offset:%d" % (v(64 + 2 * ct, 2), 32 * ct))
        lg.issue(("o", ct))
    for p in range(3):
        A("ds_read_b128 %s, %s offset:%d" % (v(80 + 4 * p, 4), v(vL), 1024 * p))
    for p in range(3):
        A("s_waitcnt lgkmcnt(%d)" % (2 - p))
        if p == 2:
            A("s_mov_b32 exec_hi, 0")
        A("buffer_store_dwordx4 %s, %s, s[64:67], s14 offen%s" % (v(80 + 4 * p, 4), v(GO[p]), ["", " sc1", " nt", " sc0 sc1"][OPT.get("osc", 0)]))
    A("s_mov_b64 exec, -1")
    A.ts(15)


def aux_ids(A):
    A("s_sub_u32 s12, s3, 4")
    A("s_lshr_b32 s5, s2, 3")
    A("s_lshl_b32 s6, s5, 1")
    A("s_lshl_b32 s7, s5, 2")
    A("s_sub_u32 s7, s7, 48")
    A("s_cmp_lt_u32 s5, 24")
    A("s_cselect_b32 s6, s6, s7")
    A("s_cselect_b32 s15, 1, 0")
    A("s_and_b32 s68, s2, 7")
    A("s_mul_i32 s68, s68, 80")
    A("s_add_u32 s68, s68, s6")
    A("s_add_u32 s68, s68, s12")
    A("s_add_u32 s4, s12, 1")
    A("s_mul_i32 s4, s4, %d" % AUXSZ)
    A("s_sub_u32 s69, %d, s4" % LDS_TOTAL)
    A("s_cmp_eq_u32 s12, 0")
    A("s_cselect_b32 s66, %d, s69" % (LDS_TOTAL - STGSZ))


def kdesc(name):
    return """.amdhsa_kernel %s
  .amdhsa_next_free_vgpr 256
  .amdhsa_next_free_sgpr 102
  .amdhsa_accum_offset 256
  .amdhsa_group_segment_fixed_size 0
  .amdhsa_kernarg_size 128
  .amdhsa_user_sgpr_count 2
  .amdhsa_user_sgpr_kernarg_segment_ptr 1
  .amdhsa_system_sgpr_workgroup_id_x 1
.end_amdhsa_kernel
""" % name


def build_fused():
    A = Asm()
    name = NAME + "_kernel"
    prologue(A, name, 0)
    st0 = list(A.stamps)
    lch, lload, lS, lg2, ljob, lfetch = [A.newl(x) for x in ["Lch", "Lload", "LS", "Lg2", "Ljob", "Lfetch"]]
    A("s_cmp_ge_u32 s2, 192")
    A("s_cbranch_scc1 %s" % lS)
    A("s_cmp_eq_u32 s3, 7")
    A("s_cbranch_scc1 %s" % lload)
    A("s_cmp_eq_u32 s3, 6")
    A("s_cbranch_scc1 %s" % ljob)
    A("s_cmp_ge_u32 s3, 4")
    A("s_cbranch_scc1 %s" % lch)
    A("s_setprio %d" % OPT.get("pg", 2))
    gemm1(A)
    if OPT.get("g1only"):
        if OPT.get("kts"):
            A.stamps += [13, 15]
        A.end()
    A.label(lg2)
    A.stamps = sorted(set(A.stamps + [1, 2, 3])) if OPT["ts"] else []
    gemm2(A)
    A.end()
    A.label(lS)
    A.stamps = list(st0)
    A("s_cmp_ge_u32 s3, 4")
    A("s_cbranch_scc1 %s" % lch)
    A("s_setprio 2")
    s_phase0(A)
    if OPT.get("g1only"):
        A.end()
    A.label("Ls_join")
    g2_streams(A)
    lds_wait(A, C_GO, "lg", 0, 10, G_vC, "s10", False, 4)
    for k, r in enumerate(G2_RREGS):
        g2_wload(A, r, k // 5, k % 5)
    A("s_branch %s" % lg2)
    A.flush_cold()
    A.label(lload)
    A.stamps = list(st0)
    A("s_setprio %d" % OPT.get("pl", 1))
    loader1_setup(A)
    if OPT.get("cnt"):
        A.stamps += [11, 14]
    loader_run(A, 0, NB1 if OPT.get("g1only") else NB1 + 2 * NL2 + 1)
    A.label("Lload_end")
    A.ts(4)
    if not OPT.get("g1only"):
        le, lf = A.newl("Lle"), A.newl("Llf")
        A("s_cmp_ge_u32 s2, 192")
        A("s_cbranch_scc1 %s" % lf)
        conv_helper(A)
        A("s_branch %s" % le)
        A.label(lf)
        a_flag(A)
        A.label(le)
        A.stamps = sorted(set(A.stamps + [1, 5, 6, 7, 8, 9, 10, 11, 12])) if OPT["ts"] else []
    A("s_waitcnt vmcnt(0) lgkmcnt(0)")
    A.end()
    A.label(ljob)
    A.stamps = list(st0)
    A("s_and_b32 s68, s2, 7")
    A("s_mul_i32 s68, s68, 80")
    A("s_lshr_b32 s4, s2, 3")
    A("s_lshl_b32 s4, s4, 1")
    A("s_add_u32 s68, s68, s4")
    if OPT.get("par", 0):
        A("s_mov_b32 s66, %d" % HSTG)
        kgen_setup(A, KB)
        A("s_setprio 2")
        ready(A, lambda A: kgen_issue(A, 68, [1], 40, False))
        A("s_waitcnt vmcnt(0)")
        A.ts(1)
        if not OPT.get("auxoff"):
            A("v_mov_b32 v4, 0")
            A("global_load_dword v4, v4, %s sc1" % s(P_DBG, 2))
            kgen_call(A, 40, 46, True)
            A("s_mov_b32 s8, 2")
            kgen_give(A, 66, 8)
            nonce_fetch(A, 4, True)
    else:
        A("s_add_u32 s67, s68, 1")
        A("s_mov_b32 s66, %d" % HSTG)
        kgen_setup(A, KB)

        def early6(A):
            kgen_issue(A, 68, [2], 40, False)
            kgen_issue(A, 67, [2], 48, False)
        A("s_setprio 2")
        ready(A, early6)
        A("s_waitcnt vmcnt(7)")
        A("s_setprio %d" % OPT.get("pa", 0))
        A.ts(1)
        if not OPT.get("auxoff"):
            A("v_mov_b32 v4, 0")
            A("global_load_dword v4, v4, %s sc1" % s(P_DBG, 2))
            kgen_call(A, 40, 46, True)
            nonce_fetch(A, 4, True)
            A("s_nop 7")
            for r in range(12):
                A("v_mov_b32 %s, %s" % (v(220 + r), v(KB + KB_ACC + r)))
            if not OPT.get("nok2"):
                kgen_call(A, 48, 54, True)
            A("s_mov_b32 s7, %d" % (HSTG + 3072))
            A("s_mov_b32 s8, 0")
            kgen_give(A, 7, 8, 220)
            A("s_mov_b32 s7, %d" % HSTG)
            A("s_mov_b32 s8, 1")
            kgen_give(A, 7, 8)
    A.ts(5)
    if OPT.get("g1only"):
        A.end()
    prog_wait(A, OPT.get("jp1", 9), 12, 8)
    colsum_gather(A)
    A.ts(3)
    poll_all(A, 2, FL_X, C_GO)
    A.ts(2)
    if OPT.get("sdel", 0):
        sk = A.newl("Lh")
        A("s_cmp_ge_u32 s2, 64")
        A("s_cbranch_scc1 %s" % sk)
        prog_wait(A, OPT.get("sdp", 18), 12, 4)
        A("s_lshl_b32 s6, s2, 7")
        A("s_add_u32 s6, s6, 0x%x" % FL_G)
        signal(A, 6, 10)
        A.label(sk)
    if OPT.get("park", 0):
        park(A)
    conv_helper(A)
    A("s_branch %s" % lfetch)
    A.flush_cold()
    A.label(lch)
    A.stamps = list(st0)
    ln = A.newl("Lnn")
    B = KB
    aux_ids(A)
    kgen_setup(A, B)
    l7 = A.newl("L7")
    A("s_cmp_lg_u32 s3, 7")
    A("s_cbranch_scc1 %s" % l7)
    flg_init(A)
    A.label(l7)

    def early(A):
        A("s_cmp_lg_u32 s68, 0")
        A("s_cbranch_scc1 %s" % ln)
        A("s_memrealtime s[4:5]")
        A("s_waitcnt lgkmcnt(0)")
        A("s_or_b32 s4, s4, 1")
        A("v_mov_b32 v2, 0")
        A("v_mov_b32 v3, s4")
        A("s_mov_b64 exec, 1")
        A("global_store_dword v2, v3, %s sc1" % s(P_DBG, 2))
        A("s_mov_b64 exec, -1")
        A.label(ln)
        kgen_issue(A, 68, [0, 1], 40, True)
    A("s_setprio 2")
    ready(A, early)
    if OPT.get("auxoff"):
        A("s_endpgm")
    A("s_waitcnt vmcnt(0)")
    A.ts(1)
    if OPT.get("par", 0):
        lp = A.newl("Lp")
        A("s_cmp_lg_u32 s15, 0")
        A("s_cbranch_scc1 %s" % lp)
        A("s_setprio 0")
        A.label(lp)
        kgen_call(A, 40, 52, True)
        lp, lq = A.newl("Lp"), A.newl("Lq")
        A("s_cmp_lg_u32 s15, 0")
        A("s_cbranch_scc1 %s" % lp)
        kgen_call(A, 46, 52, False)
        A("s_add_u32 s7, s69, 8192")
        kgen_take2(A, 12, 7, False)
        A("s_branch %s" % lq)
        A.label(lp)
        A("s_setprio 2")
        A("s_mul_i32 s7, s12, %d" % STGSZ)
        A("s_add_u32 s7, s7, %d" % XSLOT(2))
        kgen_take2(A, 12, 7, True)
        A("s_add_u32 s8, s12, 2")
        A("s_mov_b32 s7, %d" % HSTG)
        A("s_cmp_eq_u32 s12, 0")
        A("s_cselect_b32 s7, s7, %d" % WSLOT(4))
        kgen_take2(A, 8, 7, True)
        A("s_setprio 0")
        A.label(lq)
    else:
        A("s_setprio %d" % OPT.get("pa", 0))
        kgen_call(A, 40, 52, True)
        if OPT.get("nok2"):
            lz = A.newl("Lz")
            A("s_cmp_lg_u32 s15, 0")
            A("s_cbranch_scc1 %s" % lz)
        kgen_call(A, 46, 52, False)
        if OPT.get("nok2"):
            A.label(lz)
    A.ts(5)
    nonce_lds(A, 4)
    if not OPT.get("par", 0):
        kgen_take(A)
    if OPT.get("g1only"):
        A.ts(6)
        A.end()
    kgen_expand(A, B + KB_ACC)
    A.ts(8)
    conv_owner(A)
    l7 = A.newl("L7")
    A("s_cmp_eq_u32 s3, 7")
    A("s_cbranch_scc1 %s" % l7)
    a_flag(A)
    A.ts(12)
    A("s_branch %s" % lfetch)
    A.label(l7)
    loader_regs(A)
    loader2_setup(A, SPLIT2 // 2)
    lds_wait(A, FLG + 4 * (20 + SPLIT2 - 1), "eq", 0, 38, LV_C, "s4")
    A("s_branch Lload_g2b")
    A.label(lfetch)
    A("s_setprio %d" % OPT.get("pf", 0))
    lgq = A.newl("Lgq")
    if OPT.get("agate", 1) == 0:
        A("s_cmp_lt_u32 s2, 192")
        A("s_cbranch_scc1 %s" % lgq)
    prog_wait(A, 22, 12, 4)
    A.label(lgq)
    prog_wait(A, 21, 12, 4)
    A.stamps = sorted(set(A.stamps + [1, 2, 3, 5, 7, 10])) if OPT["ts"] else []
    a_fetch(A)
    A.ts(14)
    A.end()
    A.label("Lkgen")
    kgen_chunk(A, KB, OPT.get("pkm", 0))
    if OPT.get("kts"):
        A.ts(15)
    A("s_setpc_b64 s[34:35]")
    if not OPT.get("g1only"):
        conv_core(A)
        A.flush_cold()
    else:
        A.label("Lconv")
        A.label("Lload_g2")
        A.label("Lload_g2b")
        A("s_endpgm")
    hdr = "; @launch grid=(256,1,1) block=(512,1,1) lds=%d\n" % LDS_TOTAL
    return hdr, A, [name]


def main():
    hdr, A, names = build_fused()
    out = "; generated by gen.py (hand-written generator)\n" + hdr
    out += '.amdgcn_target "amdgcn-amd-amdhsa--gfx950"\n.text\n'
    out += "\n".join(A.L) + "\nLcode_end:\n"
    out += '.section .rodata,"a"\n'
    for n in names:
        out += ".p2align 6\n" + kdesc(n)
    open(sys.argv[1], "w").write(out)


main()
```

```python
import sys, os, math, struct

NAME = "parallel_sum__ssm_conv_s4__swiglu_ffn__prompt"
OPT = dict(ts=False)
for a in sys.argv[2:]:
    k, _, v = a.partition("=")
    OPT[k] = int(v) if v else True

WS_ST = 0x000000
WS_CS = 0x010000
WS_XT = 0x280000
WS_HF = 0x500000
WS_AT = 0xB00000
WS_FL = 0xD80000
WS_TS = 0xE00000
WS_WD = 0x1000000
WS_SIZE = 0x1200000
FL_X = WS_FL
FL_W = WS_FL + 0x4000
FL_H = WS_FL + 0x10000
FL_A = WS_FL + 0x40000

WP = 1088
UPOFF = 4 * WP + 16
SLOT1 = 8 * WP + 32
U1 = 2 * SLOT1
U2 = 10240
CTRL = 0
C_NONCE, C_PROG, C_EPI, C_CSOK, C_CNT, C_GO, C_KRDY, C_CRD, C_CPT, C_CNT2, C_GOW = 4, 16, 32, 60, 80, 84, 64, 88, 104, 112, 116
C_TRD = 48
C_KP, C_KPR = 16, 124
CSUM = CTRL + 128
FLG = CSUM + 1024 + 256
PF = FLG + 256
MAIN = PF + 384
KSTR = 4160
AUX_U = 4 * KSTR
AUXSZ = AUX_U + 4608
LDS_TOTAL = 163840
AUX0 = LDS_TOTAL - 2 * AUXSZ
STGSZ = 8192
LNROW = 1312
NW, NXC = OPT.get("nw", 5), 3
XRING = MAIN
WADDR = [XRING + NXC * 16384 + i * U1 for i in range(4)] + [AUX0 + STGSZ]
WHI = WADDR[3]
assert WADDR[3] + U1 <= AUX0 and WADDR[4] + U1 <= LDS_TOTAL - STGSZ
HSTG = WADDR[4] + U1
assert HSTG + STGSZ <= LDS_TOTAL - STGSZ and HSTG >= AUX0 + AUXSZ
FL_G = WS_FL + 0x6000
CONV_PROG = 16
SPRIV = 19072


def WSLOT(u):
    return WADDR[(u + 4) % NW]


def XSLOT(c):
    return XRING + ((9 - c) % NXC) * 16384


NL2 = 5
NS2 = 2 * NL2 + 1
NR2 = 4


def _g2slots():
    areas = [(WSLOT(u), WSLOT(u) + U1, u + 1) for u in range(20 - NW, 20)]
    areas += [(XSLOT(c), XSLOT(c) + 16384, 2 * c + 2) for c in range(10 - NXC, 10)]
    out = []
    for i in range(NS2):
        lo = AUX0 - (i + 1) * U2
        assert lo >= MAIN + 2048
        need = max(n for (a, b, n) in areas if a < lo + U2 and lo < b)
        if lo + U2 > LDS_TOTAL - 4 * AUXSZ:
            need = max(need, 19)
        out.append((need, lo))
    return sorted(out)


G2SLOT = _g2slots()

LOG2E = 1.4426950408889634
BUD, NON = "s0", "s1"

def fbits(x):
    return "0x%08x" % struct.unpack("<I", struct.pack("<f", x))[0]


def v(i, n=1):
    return "v%d" % i if n == 1 else "v[%d:%d]" % (i, i + n - 1)


def s(i, n=1):
    return "s%d" % i if n == 1 else "s[%d:%d]" % (i, i + n - 1)


class Cnt:
    def __init__(self, A, name, mx):
        self.A, self.name, self.mx, self.q = A, name, mx, []

    def issue(self, tag):
        self.q.append(tag)

    def wait(self, tag):
        if tag not in self.q:
            return
        i = len(self.q) - 1 - self.q[::-1].index(tag)
        n = len(self.q) - 1 - i
        self.A("s_waitcnt %s(%d)" % (self.name, min(n, self.mx)))
        self.q = self.q[i + 1:]

    def drain(self):
        self.A("s_waitcnt %s(0)" % self.name)
        self.q = []


class Asm:
    def __init__(self):
        self.L = []
        self.nl = 0
        self.stamps = []
        self.cold = []

    def flush_cold(self):
        for f in self.cold:
            f()
        self.cold = []

    def __call__(self, t):
        self.L.append("  " + t)

    def label(self, l):
        self.L.append(l + ":")

    def newl(self, p="L"):
        self.nl += 1
        return "%s_%d" % (p, self.nl)

    def c(self, t):
        self.L.append("  ; " + t)

    def ts(self, slot):
        if OPT["ts"]:
            self("%s %s" % ("s_memtime" if OPT.get("cyc") else "s_memrealtime", s(70 + 2 * slot, 2)))
            self.stamps.append(slot)

    def end(self):
        if OPT.get("probe") is not None and self.stamps:
            if OPT["probe"] in self.stamps:
                sk, lp = self.newl("Lpr"), self.newl("Lpl")
                self("s_waitcnt lgkmcnt(0)")
                self("s_cmp_lg_u32 s2, %d" % OPT.get("probeg", 17))
                self("s_cbranch_scc1 %s" % sk)
                self("s_cmp_lg_u32 s3, %d" % OPT.get("probew", 0))
                self("s_cbranch_scc1 %s" % sk)
                self("s_sub_u32 s4, %s, s70" % s(70 + 2 * OPT["probe"]))
                self("s_lshl_b32 s4, s4, 2")
                self("s_add_u32 s4, s4, 3000")
                self.label(lp)
                self("s_memrealtime s[6:7]")
                self("s_waitcnt lgkmcnt(0)")
                self("s_sub_u32 s6, s6, s70")
                self("s_cmp_lt_u32 s6, s4")
                self("s_cbranch_scc1 %s" % lp)
                self.label(sk)
        elif OPT.get("dbgts") is not None and self.stamps:
            sk = self.newl("Ldt")
            self("s_waitcnt lgkmcnt(0)")
            self("s_cmp_lg_u32 s2, %d" % OPT.get("dbgwg", 17))
            self("s_cbranch_scc1 %s" % sk)
            self("s_cmp_lg_u32 s3, %d" % OPT["dbgts"])
            self("s_cbranch_scc1 %s" % sk)
            self("s_mov_b64 exec, 1")
            self("v_mov_b32 v2, 0")
            for sl in self.stamps:
                if sl == 0:
                    continue
                self("s_sub_u32 s4, %s, s70" % s(70 + 2 * sl))
                self("v_mov_b32 v0, s4")
                self("global_store_dword v2, v0, %s offset:%d" % (s(44, 2), 4 * sl))
            self.label(sk)
        elif OPT["ts"] and self.stamps:
            self("s_waitcnt lgkmcnt(0)")
            self("s_mov_b64 exec, 1")
            self("s_lshl_b32 s4, s2, 3")
            self("s_add_u32 s4, s4, s3")
            self("s_lshl_b32 s4, s4, 7")
            self("s_add_u32 s4, s4, 0x%x" % WS_TS)
            self("v_mov_b32 v2, 0")
            for sl in self.stamps:
                self("v_mov_b32 v0, %s" % s(70 + 2 * sl))
                self("v_mov_b32 v1, %s" % s(71 + 2 * sl))
                self("buffer_store_dwordx2 v[0:1], v2, s[48:51], s4 offen offset:%d" % (8 * sl))
                self("s_nop 1")
        self("s_endpgm")
        self.flush_cold()


P_X, P_ARE, P_AIM, P_BRE, P_BIM, P_CRE, P_CIM, P_LDT, P_DSK, P_BX, P_WG, P_WU, P_WD, P_OUT, P_DBG, P_WS = [16 + 2 * i for i in range(16)]
SC1 = " sc1"
LSC = " sc1"


def srd(A, d, ptr, size):
    if ptr == P_WS and OPT.get("wsoff"):
        A("s_add_u32 %s, %s, 0x%x" % (s(d), s(ptr), OPT["wsoff"] << 20))
        A("s_addc_u32 %s, %s, 0" % (s(d + 1), s(ptr + 1)))
    else:
        A("s_mov_b32 %s, %s" % (s(d), s(ptr)))
        A("s_mov_b32 %s, %s" % (s(d + 1), s(ptr + 1)))
    A("s_mov_b32 %s, 0x%x" % (s(d + 2), size))
    A("s_mov_b32 %s, 0x20000" % s(d + 3))


def prologue(A, name, tsslot):
    A.L.append(".globl %s" % name)
    A.L.append(".p2align 8")
    A.L.append(".type %s,@function" % name)
    A.label(name)
    A.stamps = []
    ok = A.newl("Lgo")
    A("s_cmp_lt_u32 s2, 256")
    A("s_cbranch_scc1 %s" % ok)
    A.exit = A.newl("Lexit")
    A.label(A.exit)
    A("s_endpgm")
    A.label(ok)
    A("s_load_dwordx16 s[16:31], s[0:1], 0")
    A("s_load_dwordx16 s[32:47], s[0:1], 64")
    if OPT["ts"]:
        for i in range(16):
            A("s_mov_b64 %s, 0" % s(70 + 2 * i, 2))
    A.ts(tsslot)
    A("v_lshrrev_b32 v2, 6, v0")
    A("v_and_b32 v1, 63, v0")
    A("v_readfirstlane_b32 s3, v2")
    A("v_and_b32 v2, 31, v0")
    A("v_lshlrev_b32 v2, 2, v2")
    A("v_add_u32 v2, %d, v2" % CTRL)
    A("v_mov_b32 v3, 0")
    A("ds_write_b32 v2, v3")
    if OPT.get("cpf", 1):
        l2 = A.newl("Lw")
        A("s_cmp_lg_u32 s3, 2")
        A("s_cbranch_scc1 %s" % l2)
        code_prefetch(A)
        A.label(l2)


def ready(A, early=None):
    A("s_waitcnt lgkmcnt(0)")
    if early:
        early(A)
    A("s_barrier")
    A("s_mov_b32 %s, 0x40000" % BUD)
    srd(A, 48, P_WS, WS_SIZE)


def tlb_warm(A, vt):
    ptrs = [P_X, P_WG, P_WU, P_ARE, P_AIM, P_BRE, P_BIM, P_CRE, P_CIM, P_LDT, P_DSK, P_WD, P_DBG, P_WS]
    A("v_mov_b32 %s, %s" % (v(vt), s(P_X)))
    A("v_mov_b32 %s, %s" % (v(vt + 1), s(P_X + 1)))
    for i, p in enumerate(ptrs):
        if i:
            A("v_writelane_b32 %s, %s, %d" % (v(vt), s(p), i))
            A("v_writelane_b32 %s, %s, %d" % (v(vt + 1), s(p + 1), i))
    A("s_mov_b64 exec, 0x%x" % ((1 << len(ptrs)) - 1))
    A("global_load_dword %s, %s, off" % (v(vt + 2), v(vt, 2)))
    A("s_mov_b64 exec, -1")


def guard(A):
    A("s_sub_u32 %s, %s, 1" % (BUD, BUD))
    A("s_cbranch_scc1 %s" % A.exit)


def map_g1(A):
    A("s_and_b32 s4, s2, 7")
    A("s_lshr_b32 s5, s2, 3")
    A("s_and_b32 s60, s4, 1")
    A("s_lshl_b32 s60, s60, 3")
    A("s_and_b32 s6, s5, 7")
    A("s_add_u32 s60, s60, s6")
    A("s_lshr_b32 s61, s4, 1")
    A("s_mul_i32 s61, s61, 3")
    A("s_lshr_b32 s6, s5, 3")
    A("s_add_u32 s61, s61, s6")


def map_g2(A):
    A("s_lshr_b32 s5, s2, 3")
    A("s_and_b32 s62, s2, 1")
    A("s_lshl_b32 s62, s62, 4")
    if OPT.get("m2", 1) == 0:
        A("s_bfe_u32 s4, s2, 0x20001")
        A("s_lshl_b32 s4, s4, 2")
        A("s_add_u32 s62, s62, s4")
        A("s_and_b32 s6, s5, 3")
        A("s_add_u32 s62, s62, s6")
        A("s_lshr_b32 s63, s5, 2")
    else:
        A("s_bfe_u32 s4, s2, 0x10001")
        A("s_lshl_b32 s4, s4, 3")
        A("s_add_u32 s62, s62, s4")
        A("s_and_b32 s6, s5, 7")
        A("s_add_u32 s62, s62, s6")
        A("s_and_b32 s63, s2, 4")
        A("s_lshr_b32 s6, s5, 3")
        A("s_add_u32 s63, s63, s6")


def lds_wait(A, off, cmp, val, vF, vC, sF, have=False, sleep=1):
    ok, poll = A.newl("Lok"), A.newl("Lpoll")

    def loop():
        A.label(poll)
        guard(A)
        if OPT.get("cnt") and have:
            A("s_add_u32 s92, s92, 1")
        A("ds_read_b32 %s, %s offset:%d" % (v(vF), v(vC), off))
        A("s_waitcnt lgkmcnt(0)")
        A("v_readfirstlane_b32 %s, %s" % (sF, v(vF)))
        A("s_cmp_%s_u32 %s, %s" % (cmp, sF, val))
        A("s_cbranch_scc1 %s" % ok)
        A("s_sleep %d" % sleep)
        A("s_branch %s" % poll)
    if have:
        A("v_readfirstlane_b32 %s, %s" % (sF, v(vF)))
        A("s_cmp_%s_u32 %s, %s" % (cmp, sF, val))
        A("s_cbranch_scc0 %s" % poll)
        A.cold.append(loop)
    else:
        loop()
    A.label(ok)


def nonce_lds(A, vt):
    A("v_mov_b32 %s, %d" % (v(vt + 1), CTRL))
    lds_wait(A, C_NONCE, "lg", 0, vt, vt + 1, NON)


def nonce_fetch(A, vt, issued=False):
    poll, chk = A.newl("Lnp"), A.newl("Lnc")
    if issued:
        A("s_branch %s" % chk)
    A.label(poll)
    guard(A)
    A("v_mov_b32 %s, 0" % v(vt))
    A("global_load_dword %s, %s, %s sc1" % (v(vt), v(vt), s(P_DBG, 2)))
    A.label(chk)
    A("s_waitcnt vmcnt(0)")
    A("v_readfirstlane_b32 %s, %s" % (NON, v(vt)))
    A("s_cmp_lg_u32 %s, 0" % NON)
    A("s_cbranch_scc0 %s" % poll)
    A("v_mov_b32 %s, %d" % (v(vt + 1), CTRL))
    A("ds_write_b32 %s, %s offset:%d" % (v(vt + 1), v(vt), C_NONCE))


def signal(A, soff, vt):
    A("v_mov_b32 %s, 0" % v(vt))
    A("v_mov_b32 %s, %s" % (v(vt + 1), NON))
    A("s_mov_b64 exec, 1")
    A("buffer_store_dword %s, %s, s[48:51], %s offen sc1" % (v(vt + 1), v(vt), s(soff)))
    A("s_mov_b64 exec, -1")


def poll_flags(A, loads, tags, vt, sleep=2):
    top, done = A.newl("Lgp"), A.newl("Lgd")
    A.label(top)
    guard(A)
    for (r, n, vo, so, imm) in loads:
        op = {1: "dword", 2: "dwordx2", 4: "dwordx4"}[n]
        A("buffer_load_%s %s, %s, s[48:51], %s offen offset:%d sc1" % (op, v(r, n), v(vo), s(so), imm))
    A("s_waitcnt vmcnt(0)")
    tag_check(A, tags, vt, done)
    A("s_sleep %d" % sleep)
    A("s_branch %s" % top)
    A.label(done)


def tag_check(A, tags, vt, done):
    A("v_xor_b32 %s, %s, %s" % (v(vt), NON, v(tags[0])))
    for x in tags[1:]:
        A("v_xor_b32 %s, %s, %s" % (v(vt + 1), NON, v(x)))
        A("v_or_b32 %s, %s, %s" % (v(vt), v(vt), v(vt + 1)))
    A("v_cmp_ne_u32 s[4:5], 0, %s" % v(vt))
    A("s_cmp_eq_u64 s[4:5], 0")
    A("s_cbranch_scc1 %s" % done)


def setexec(A, m):
    A("s_mov_b32 exec_lo, 0x%x" % (m & 0xffffffff))
    A("s_mov_b32 exec_hi, 0x%x" % (m >> 32))


def poll_all(A, vt, fl, go, dyn=False, sl=6):
    A("v_lshlrev_b32 %s, 7, v1" % v(vt))
    if dyn:
        A("s_add_u32 s6, s7, 0x%x" % fl)
    else:
        A("s_mov_b32 s6, 0x%x" % fl)
    poll_flags(A, [(vt + 4, 1, vt, 6, 0)], [vt + 4], vt + 1, sl)
    A("v_mov_b32 %s, %s" % (v(vt), "s8" if dyn else "0"))
    A("v_mov_b32 %s, 1" % v(vt + 1))
    A("ds_write_b32 %s, %s offset:%d" % (v(vt), v(vt + 1), go))


LN_X, LN_F, LN_T = 216, 64, 24


def ln_issue(A):
    T = LN_T
    A("v_lshrrev_b32 %s, 3, v1" % v(T))
    A("v_and_b32 %s, 7, v1" % v(T + 1))
    A("v_mul_u32_u24 %s, 1280, %s" % (v(T + 2), v(T)))
    A("v_lshl_add_u32 %s, %s, 4, %s" % (v(T + 2), v(T + 1), v(T + 2)))
    A("s_mul_i32 s4, s9, %d" % (8 * 1280))
    for i in range(10):
        A("buffer_load_dwordx4 %s, %s, s[52:55], s4 offen offset:%d" % (v(LN_X + 4 * i, 4), v(T + 2), 128 * i))


def red8(A, r):
    for m in ["quad_perm:[1,0,3,2]", "quad_perm:[2,3,0,1]", "row_half_mirror"]:
        A("s_nop 1")
        A("v_add_f32_dpp %s, %s, %s %s row_mask:0xf bank_mask:0xf" % (v(r), v(r), v(r), m))


def ln8(A):
    X, F, T = LN_X, LN_F, LN_T
    S0, S1, M, R = T + 4, T + 6, T + 8, T + 10
    for i in range(40):
        A("v_lshlrev_b32 %s, 16, %s" % (v(F + 2 * i), v(X + i)))
        A("v_and_b32 %s, 0xffff0000, %s" % (v(F + 2 * i + 1), v(X + i)))
    A("v_pk_add_f32 %s, %s, %s" % (v(S0, 2), v(F, 2), v(F + 2, 2)))
    A("v_pk_add_f32 %s, %s, %s" % (v(S1, 2), v(F + 4, 2), v(F + 6, 2)))
    for i in range(4, 40):
        d = S0 + 2 * (i & 1)
        A("v_pk_add_f32 %s, %s, %s" % (v(d, 2), v(d, 2), v(F + 2 * i, 2)))
    A("v_pk_add_f32 %s, %s, %s" % (v(S0, 2), v(S0, 2), v(S1, 2)))
    A("v_add_f32 %s, %s, %s" % (v(S0), v(S0), v(S0 + 1)))
    red8(A, S0)
    A("v_mul_f32 %s, %s, %s" % (v(M + 1), fbits(1.0 / 640), v(S0)))
    A("v_cvt_pk_bf16_f32 %s, %s, %s" % (v(M), v(M + 1), v(M + 1)))
    A("v_and_b32 %s, 0xffff0000, %s" % (v(M), v(M)))
    for i in range(40):
        A("v_pk_add_f32 %s, %s, %s op_sel_hi:[1,0] neg_lo:[0,1] neg_hi:[0,1]" % (v(F + 2 * i, 2), v(F + 2 * i, 2), v(M, 2)))
    for i in range(40):
        d = S0 + 2 * (i & 1)
        if i < 2:
            A("v_pk_mul_f32 %s, %s, %s" % (v(d, 2), v(F + 2 * i, 2), v(F + 2 * i, 2)))
        else:
            A("v_pk_fma_f32 %s, %s, %s, %s" % (v(d, 2), v(F + 2 * i, 2), v(F + 2 * i, 2), v(d, 2)))
    A("v_pk_add_f32 %s, %s, %s" % (v(S0, 2), v(S0, 2), v(S1, 2)))
    A("v_add_f32 %s, %s, %s" % (v(S0), v(S0), v(S0 + 1)))
    red8(A, S0)
    A("v_sub_f32 %s, %s, %s" % (v(M + 1), v(M + 1), v(M)))
    A("v_mul_f32 %s, %s, %s" % (v(R), fbits(1.0 / 640), v(S0)))
    A("v_fma_f32 %s, -%s, %s, %s" % (v(R), v(M + 1), v(M + 1), v(R)))
    A("v_max_f32 %s, 0, %s" % (v(R), v(R)))
    A("v_cvt_pk_bf16_f32 %s, %s, %s" % (v(R), v(R), v(R)))
    A("v_and_b32 %s, 0xffff0000, %s" % (v(R), v(R)))
    A("v_add_f32 %s, %s, %s" % (v(R), fbits(1e-5), v(R)))
    A("v_cvt_pk_bf16_f32 %s, %s, %s" % (v(R), v(R), v(R)))
    A("v_and_b32 %s, 0xffff0000, %s" % (v(R), v(R)))
    A("v_sqrt_f32 %s, %s" % (v(R), v(R)))
    A("s_nop 0")
    A("v_cvt_pk_bf16_f32 %s, %s, %s" % (v(S0), v(M), v(R)))
    A("v_and_b32 %s, 0xffff0000, %s" % (v(R), v(S0)))
    A("v_rcp_f32 %s, %s" % (v(R), v(R)))
    A("v_mul_u32_u24 %s, %d, %s" % (v(T + 2), LNROW, v(T)))
    A("v_lshl_add_u32 %s, %s, 4, %s" % (v(T + 2), v(T + 1), v(T + 2)))
    A("v_add_u32 %s, s15, %s" % (v(T + 2), v(T + 2)))
    for i in range(11):
        if i < 10:
            for e in range(4):
                A("v_pk_mul_f32 %s, %s, %s op_sel_hi:[1,0]" % (v(F + 8 * i + 2 * e, 2), v(F + 8 * i + 2 * e, 2), v(R, 2)))
        if i:
            A("ds_write_b128 %s, %s offset:%d" % (v(T + 2), v(X + 4 * (i - 1), 4), 128 * (i - 1)))
        if i < 10:
            for e in range(4):
                A("v_cvt_pk_bf16_f32 %s, %s, %s" % (v(X + 4 * i + e), v(F + 8 * i + 2 * e), v(F + 8 * i + 2 * e + 1)))


def ln_store(A):
    F, T = LN_F, LN_T
    S0 = T + 4
    a0, a1, a2 = T + 12, T + 13, T + 14
    A("v_bfe_u32 %s, v1, 2, 2" % v(a0))
    A("v_mul_u32_u24 %s, %d, %s" % (v(a0), LNROW, v(a0)))
    A("v_lshrrev_b32 %s, 4, v1" % v(a1))
    A("v_lshl_add_u32 %s, %s, 5, %s" % (v(a0), v(a1), v(a0)))
    A("v_and_b32 %s, 3, v1" % v(a1))
    A("v_lshl_add_u32 %s, %s, 3, %s" % (v(a0), v(a1), v(a0)))
    A("v_add_u32 %s, s15, %s" % (v(a0), v(a0)))
    for i in range(10):
        A("ds_read_b64_tr_b16 %s, %s offset:%d" % (v(F + 4 * i, 2), v(a0), 128 * i))
        A("ds_read_b64_tr_b16 %s, %s offset:%d" % (v(F + 4 * i + 2, 2), v(a0), 128 * i + 4 * LNROW))
    A("v_mov_b32 %s, %s" % (v(S0 + 1), NON))
    A("s_lshl_b32 s6, s9, 6")
    A("s_add_u32 s6, s6, 0x%x" % WS_ST)
    setexec(A, 0x0101010101010101)
    A("buffer_store_dwordx2 %s, v1, s[48:51], s6 offen sc1" % v(S0, 2))
    A("s_mov_b64 exec, -1")
    A("v_lshlrev_b32 %s, 4, v1" % v(a0))
    A("s_mul_i32 s7, s9, 10240")
    A("s_add_u32 s7, s7, 0x%x" % WS_XT)
    A("s_waitcnt lgkmcnt(0)")
    for i in range(10):
        A("buffer_store_dwordx4 %s, %s, s[48:51], s7 offen offset:%d sc1" % (v(F + 4 * i, 4), v(a0), 1024 * (i % 4)))
        if i % 4 == 3:
            A("s_add_u32 s7, s7, 4096")


def flag_p(A, cnt, fl, vmc=0):
    sk = A.newl("Lf")
    A("v_mov_b32 v10, %d" % CTRL)
    A("v_mov_b32 v11, 1")
    A("s_waitcnt vmcnt(%d)" % vmc)
    A("s_mov_b64 exec, 1")
    A("ds_add_rtn_u32 v11, v10, v11 offset:%d" % cnt)
    A("s_mov_b64 exec, -1")
    A("s_waitcnt lgkmcnt(0)")
    A("v_readfirstlane_b32 s4, v11")
    A("s_cmp_lg_u32 s4, 3")
    A("s_cbranch_scc1 %s" % sk)
    A("s_lshl_b32 s6, s2, 7")
    A("s_add_u32 s6, s6, 0x%x" % (fl - 192 * 128))
    signal(A, 6, 10)
    A.label(sk)


LV_C, LV_T, LV_Q = 36, 37, 40


PAR = OPT.get("par", 0)


def _schedule():
    B = []
    for u in range(20):
        B.append((u, 1, ("w", u, 16, u - NW + 2 if u >= NW - PAR else 0)))
    for h in range(20):
        c = h >> 1
        need = 2 * (c - NXC) + 3 if c >= NXC else (0.5 if (PAR and c == NXC - 1) else 0)
        lead = 1 if 0 < c < NXC - PAR else 0
        B.append((2 * c - lead * (1 - (h & 1)), 0, ("x", h, 8, need)))
    B.sort(key=lambda e: (e[0], e[1]))
    B = [e[2] for e in B]
    for i in range(2 * NL2 + 1):
        B.append(("d", i, 10, G2SLOT[i][0] + 1))
    return B


GAPS = {"cur": 4}


class Dma:
    def __init__(self, A, n):
        self.A, self.n, self.k = A, n, 0

    def __call__(self, t):
        self.A(t)
        self.k += 1
        GAP = GAPS["cur"]
        if GAP and (self.k % GAP == 0 or self.k == self.n):
            self.A("buffer_load_dword v35, v27, s[48:51], 0 offen")


SCHED = _schedule()
CUM = [0]
for e in SCHED:
    CUM.append(CUM[-1] + e[2])
NB1 = 40


def _flagafter():
    out = {}
    for u in range(20 + 2 * NL2 + 1):
        want = [("d", u - 20)] if u >= 20 else [("w", u), ("x", 2 * (u >> 1)), ("x", 2 * (u >> 1) + 1)]
        i = max(i for i, e in enumerate(SCHED) if (e[0], e[1]) in want)
        out.setdefault(i, []).append(u)
    return out


FLAGAFTER = _flagafter()


def loader_run(A, first, last):
    def rdprog(need):
        A("ds_read_b128 %s, %s offset:%d" % (v(LV_Q, 4), v(LV_C), PF + 16 * (23 if need == 0.5 else need)))

    def getprog():
        A("s_waitcnt lgkmcnt(0)")
        A("v_or_b32 v39, %s, %s" % (v(LV_Q), v(LV_Q + 1)))
        A("v_or3_b32 v39, v39, %s, %s" % (v(LV_Q + 2), v(LV_Q + 3)))
        A("s_nop 0")
        A("v_readfirstlane_b32 s67, v39")
        A("s_cmp_eq_u32 s67, 0")
    wait = A.newl("Llw")

    def waitfn():
        A.label(wait)
        guard(A)
        if OPT.get("cnt"):
            A("s_add_u32 s92, s92, 1")
        if OPT.get("lsl", 0):
            A("s_sleep %d" % OPT["lsl"])
        A("ds_read_b128 %s, v38" % v(LV_Q, 4))
        getprog()
        A("s_cbranch_scc0 %s" % wait)
        A("s_setpc_b64 s[34:35]")
    A.cold.append(waitfn)
    known = 0
    for i in range(first, last):
        kind, idx, P, need = SCHED[i]
        if i == OPT.get("lbar", 1):
            A("s_barrier")
            map_g2(A)
        if i == NB1:
            A.label("Lload_g2")
            rdprog(need)
        if i == NB1 + SPLIT2:
            A("s_cmp_ge_u32 s2, 192")
            A("s_cbranch_scc1 Ls_join")
            if OPT.get("park", 0):
                A("s_branch Lload_end")
            A.label("Lload_g2b")
            rdprog(need)
        if OPT.get("free") and i < NB1:
            need = 0
        if need > known:
            go = A.newl("Llg")
            getprog()
            A("s_cbranch_scc1 %s" % go)
            A("v_mov_b32 v38, %d" % (PF + 16 * (23 if need == 0.5 else need)))
            A("s_call_b64 s[34:35], %s" % wait)
            A.label(go)
            known = need
        if OPT.get("fine") and kind == "w" and idx in (1, 2, 3, 4, 5, 6, 7, 8):
            A.ts(4 + idx)
        elif OPT.get("cnt") and kind == "w" and idx in (1, 5, 8, 12, 16):
            A.ts({1: 6, 5: 7, 8: 8, 12: 9, 16: 10}[idx])
        nxt = i + 1 < last and SCHED[i + 1][3] > known
        GAPS["cur"] = OPT.get("gap0", 4) if i < OPT.get("gapi", 9) else (OPT.get("gap", 2) if i < NB1 else OPT.get("gap2", 2))
        if i > NB1 and OPT.get("dvm", 60) < 60:
            A("s_waitcnt vmcnt(%d)" % OPT.get("dvm", 60))
        if i == NB1 + 1:
            loader2_setup(A)
            lds_wait(A, C_GOW, "lg", 0, 38, LV_C, "s4")
            A.ts(3)
        {"w": issue1, "x": issue_x, "d": issue2}[kind](A, idx, (lambda: rdprog(SCHED[i + 1][3])) if nxt else None)
        if i in FLAGAFTER:
            A("s_mov_b32 m0, %d" % (FLG + 4 * max(FLAGAFTER[i]) - 252))
            A("s_nop 0")
            A("buffer_load_dword v27, s[48:51], 0 offen lds")


def rot1(A, sd):
    if OPT.get("rot") == 0:
        A("s_mov_b32 %s, 0" % s(sd))
        return
    if OPT.get("rot") == 4:
        A("s_and_b32 %s, s60, 3" % s(sd))
        A("s_mul_i32 %s, %s, 5" % (s(sd), s(sd)))
        A("s_lshr_b32 %s, %s, 1" % (s(sd), s(sd)))
        return
    if OPT.get("rot") == 5:
        A("s_and_b32 %s, s60, 1" % s(sd))
        A("s_mul_i32 %s, %s, 5" % (s(sd), s(sd)))
        return
    if OPT.get("rot") == 2:
        A("s_xor_b32 %s, s60, s61" % s(sd))
        A("s_and_b32 %s, %s, 1" % (s(sd), s(sd)))
        A("s_mul_i32 %s, %s, 5" % (s(sd), s(sd)))
        return
    A("s_cmp_ge_u32 s60, 10")
    A("s_cselect_b32 s5, 10, 0")
    A("s_sub_u32 %s, s60, s5" % s(sd))


def flg_init(A):
    A("v_lshlrev_b32 v2, 2, v1")
    A("v_mov_b32 v3, 1")
    A("ds_write_b32 v2, v3 offset:%d" % FLG)
    A("ds_write_b32 v2, v3 offset:%d" % PF)
    A("ds_write_b32 v2, v3 offset:%d" % (PF + 128))


def loader_regs(A):
    A("v_mov_b32 %s, %d" % (v(LV_C), CTRL))
    A("v_mov_b32 v27, 0x7ffffff0")
    srd(A, 12, P_X, 2048 * 640 * 2)


def loader1_setup(A):
    A("v_lshrrev_b32 v40, 4, v1")
    A("v_mul_u32_u24 v40, %d, v40" % (4 * 3072))
    A("v_and_b32 v41, 15, v1")
    A("v_lshl_add_u32 v20, v41, 4, v40")
    for p in range(1, 4):
        A("v_add_u32 %s, %d, v20" % (v(20 + p), p * (3072 - WP)))
    A("v_lshrrev_b32 v40, 3, v1")
    A("v_mul_u32_u24 v40, 1280, v40")
    A("v_and_b32 v41, 7, v1")
    A("v_lshrrev_b32 v42, 4, v1")
    A("v_xor_b32 v41, v41, v42")
    A("v_lshl_add_u32 v28, v41, 4, v40")
    A("v_xor_b32 v29, 64, v28")
    A("v_add_u32 v29, %d, v29" % (8 * 1280 - 1024))
    A("v_add_u32 v30, %d, v28" % (16 * 1280 - 2048))
    A("v_add_u32 v31, %d, v29" % (16 * 1280 - 2048))
    rot1(A, 4)
    A("s_lshl_b32 s66, s61, 8")
    A("s_add_u32 s69, s66, %d" % (640 * 3072))
    A("s_mul_i32 s5, s4, %d" % (64 * 3072))
    A("s_add_u32 s64, s66, s5")
    A("s_mul_i32 s10, s60, %d" % (128 * 1280))
    A("s_add_u32 s11, s10, 1280")
    A("s_lshl_b32 s4, s4, 7")
    A("s_add_u32 s65, s10, s4")
    flg_init(A)
    A("s_waitcnt lgkmcnt(0)")
    A("s_mov_b32 %s, 0x40000" % BUD)
    srd(A, 48, P_WS, WS_SIZE)
    loader_regs(A)
    srd(A, 52, P_WG, 640 * 1536 * 2)
    srd(A, 56, P_WU, 640 * 1536 * 2)


def issue_x(A, h, mid):
    base = XSLOT(h >> 1) + (h & 1) * 8192
    D = Dma(A, 8)
    for g in range(2):
        A("s_mov_b32 m0, %d" % (base + 4096 * g))
        A("s_add_u32 s7, s65, %d" % ((64 * (h & 1) + 32 * g) * 1280))
        if g == 1 and mid:
            mid()
        for p in range(4):
            D("buffer_load_dwordx4 %s, s[12:15], s7 offen offset:%d lds" % (v(28 + p), 1024 * p))
    if h & 1:
        A("s_add_u32 s65, s65, 128")
        A("s_cmp_ge_u32 s65, s11")
        A("s_cselect_b32 s65, s10, s65")


def issue1(A, u, mid):
    base = WSLOT(u)
    D = Dma(A, 16)
    for k in range(2):
        so = "s64" if k == 0 else "s6"
        A("s_mov_b32 m0, %d" % (base + k * SLOT1))
        if k == 0:
            A("s_add_u32 s6, s64, %d" % (16 * 3072))
        else:
            A("s_add_u32 s64, s64, %d" % (32 * 3072))
        if k == 1 and mid:
            mid()
        for p in range(4):
            D("buffer_load_dwordx4 %s, s[52:55], %s offen offset:%d lds" % (v(20 + p), so, WP * p))
        A("s_mov_b32 m0, %d" % (base + k * SLOT1 + UPOFF))
        if k == 1 and (u & 1):
            A("s_cmp_ge_u32 s64, s69")
            A("s_cselect_b32 s64, s66, s64")
        else:
            A("s_nop 0")
        for p in range(4):
            D("buffer_load_dwordx4 %s, s[56:59], %s offen offset:%d lds" % (v(20 + p), so, WP * p))


def rot2(A, sd):
    if OPT.get("m2", 1):
        A("s_and_b32 %s, s62, 7" % s(sd))
        A("s_mul_i32 %s, %s, 3" % (s(sd), s(sd)))
        A("s_lshr_b32 %s, %s, 1" % (s(sd), s(sd)))
    else:
        A("s_and_b32 %s, s62, 3" % s(sd))
        A("s_mul_i32 %s, %s, 3" % (s(sd), s(sd)))
    if OPT.get("rcb", 0):
        if OPT.get("m2", 1):
            A("s_and_b32 s5, s63, 3")
            A("s_mul_i32 s5, s5, 3")
        else:
            A("s_mul_i32 s5, s63, 3")
            A("s_lshr_b32 s5, s5, 1")
        A("s_add_u32 %s, %s, s5" % (s(sd), s(sd)))
        A("s_cmp_ge_u32 %s, 12" % s(sd))
        A("s_cselect_b32 s5, 12, 0")
        A("s_sub_u32 %s, %s, s5" % (s(sd), s(sd)))


SPLIT2 = 5
assert G2SLOT[SPLIT2 - 1][0] < 19 <= G2SLOT[SPLIT2][0] and SPLIT2 & 1, G2SLOT


def loader2_setup(A, skip=0):
    rot2(A, 4)
    A("s_add_u32 s4, s4, %d" % (NR2 + skip))
    A("s_cmp_ge_u32 s4, 12")
    A("s_cselect_b32 s5, 12, 0")
    A("s_sub_u32 s4, s4, s5")
    A("s_mul_i32 s66, s63, %d" % (48 * 5120))
    A("s_add_u32 s66, s66, 0x%x" % WS_WD)
    A("s_add_u32 s69, s66, %d" % (12 * 5120))
    A("s_mul_i32 s4, s4, 5120")
    A("s_add_u32 s64, s66, s4")
    A("v_lshlrev_b32 v32, 4, v1")
    A("v_add_u32 v33, 4096, v32")


def issue2(A, u, mid):
    base = G2SLOT[u][1]
    D = Dma(A, 10)
    if u == 0:
        for p in range(5):
            A("v_add_u32 v50, %d, v1" % (64 * p))
            A("v_mul_u32_u24 v51, 52429, v50")
            A("v_lshrrev_b32 v51, 19, v51")
            A("v_mul_u32_u24 v51, %d, v51" % (1280 - 160))
            A("v_lshl_add_u32 %s, v50, 4, v51" % v(44 + p))
        if mid:
            mid()
        A("s_mul_i32 s6, s62, %d" % (64 * 1280))
        A("s_mul_i32 s7, s63, 160")
        A("s_add_u32 s6, s6, s7")
        for h in range(2):
            for p in range(5):
                A("s_mov_b32 m0, %d" % (base + 5120 * h + 1024 * p))
                A("s_nop 0")
                D("buffer_load_dwordx4 %s, s[12:15], s6 offen lds" % v(44 + p))
            A("s_add_u32 s6, s6, %d" % (32 * 1280))
        return
    u -= 1
    for w in range(2):
        A("s_mov_b32 m0, %d" % (base + 5120 * w))
        A("s_add_u32 s6, s64, %d" % ((2 * (u & 1) + w) * 12 * 5120))
        if w == 1 and mid:
            mid()
        for p in range(4):
            D("buffer_load_dwordx4 v32, s[48:51], s6 offen offset:%d%s lds" % (1024 * p, LSC))
        A("s_mov_b32 m0, %d" % (base + 5120 * w + 4096))
        A("s_nop 0")
        D("buffer_load_dwordx4 v33, s[48:51], s6 offen%s lds" % LSC)
    if u & 1:
        A("s_add_u32 s64, s64, 5120")
        A("s_cmp_ge_u32 s64, s69")
        A("s_cselect_b32 s64, s66, s64")


def park(A):
    P0 = 16
    prog_wait(A, OPT.get("pkp", 16), 8, 2)
    loader2_setup(A, SPLIT2 // 2)
    A("v_mov_b32 v2, v32")
    A("v_mov_b32 v3, v33")
    n = 0
    for u in range(SPLIT2 - 1, 2 * NL2):
        for w in range(2):
            A("s_add_u32 s6, s64, %d" % ((2 * (u & 1) + w) * 12 * 5120))
            for p in range(5):
                if p < 4:
                    A("buffer_load_dwordx4 %s, v2, s[48:51], s6 offen offset:%d%s" % (v(P0 + 4 * n, 4), 1024 * p, LSC))
                else:
                    A("buffer_load_dwordx4 %s, v3, s[48:51], s6 offen%s" % (v(P0 + 4 * n, 4), LSC))
                n += 1
        if u & 1:
            A("s_add_u32 s64, s64, 5120")
            A("s_cmp_ge_u32 s64, s69")
            A("s_cselect_b32 s64, s66, s64")
    tot = n
    assert P0 + 4 * tot <= 256
    A.ts(8)
    n, known = 0, 0
    for u in range(SPLIT2, 2 * NL2 + 1):
        need, base = G2SLOT[u]
        if need + 1 > known:
            known = need + 1
            prog_wait(A, known, 8, 1)
        A("v_add_u32 v3, %d, v2" % base)
        A("s_waitcnt vmcnt(%d)" % (tot - n - 10))
        for p in range(10):
            A("ds_write_b128 v3, %s offset:%d" % (v(P0 + 4 * n, 4), 1024 * p))
            n += 1
    A("v_mov_b32 v2, 0")
    lds_wait(A, FLG + 4 * (20 + SPLIT2 - 1), "eq", 0, 3, 2, "s10")
    A("ds_write_b32 v2, v2 offset:%d" % (FLG + 4 * (20 + 2 * NL2)))
    A.ts(9)


def colsum_gather(A):
    R, Q = 96, 136
    A("v_lshlrev_b32 v2, 4, v1")
    A("v_lshlrev_b32 v5, 3, v1")
    A("s_mul_i32 s6, s61, 20480")
    A("s_add_u32 s6, s6, 0x%x" % WS_CS)
    for i in range(1, 5):
        A("s_add_u32 %s, s6, %d" % (s(6 + i), 4096 * i))
    L = [(R + 4 * i, 4, 2, 6 + i // 2, 2048 * (i % 2)) for i in range(10)]
    L += [(Q + 2 * i, 2, 5, 6 + i // 2, 2048 * (i % 2) + 1024) for i in range(10)]
    poll_flags(A, L, [R + 3 + 4 * i for i in range(10)] + [Q + 1 + 2 * i for i in range(10)], 3, 8)
    A("v_mov_b32 %s, %s" % (v(R + 3), v(Q)))
    for i in range(1, 10):
        for e in range(3):
            A("v_add_f32 %s, %s, %s" % (v(R + e), v(R + e), v(R + 4 * i + e)))
        A("v_add_f32 %s, %s, %s" % (v(R + 3), v(R + 3), v(Q + 2 * i)))
    A("v_lshlrev_b32 v2, 2, v1")
    for e in range(4):
        A("ds_write_b32 v2, %s offset:%d" % (v(R + e), CSUM + 256 * e))
    A("v_mov_b32 v2, %d" % CTRL)
    A("v_mov_b32 v3, 1")
    A("ds_write_b32 v2, v3 offset:%d" % C_CSOK)


WDR = 160
WDOFF = 8 * LNROW


def wd_issue(A):
    T = 20
    srd(A, 56, P_WD, 1536 * 640 * 2)
    A("s_sub_u32 s4, s2, 192")
    A("s_lshl_b32 s4, s4, 2")
    A("s_add_u32 s4, s4, s3")
    A("s_mul_i32 s14, s4, 52429")
    A("s_lshr_b32 s14, s14, 18")
    A("s_mul_i32 s5, s14, 5")
    A("s_sub_u32 s13, s4, s5")
    A("s_lshl_b32 s13, s13, 1")
    A("s_mul_i32 s4, s14, %d" % (32 * 1280))
    A("s_lshl_b32 s5, s13, 7")
    A("s_add_u32 s4, s4, s5")
    A("v_lshrrev_b32 %s, 4, v1" % v(T))
    A("v_mul_u32_u24 %s, 1280, %s" % (v(T), v(T)))
    A("v_and_b32 %s, 15, v1" % v(T + 1))
    A("v_lshl_add_u32 %s, %s, 4, %s" % (v(T), v(T + 1), v(T)))
    for p in range(8):
        A("s_add_u32 m0, s15, %d" % (WDOFF + 1024 * p))
        A("s_nop 0")
        A("buffer_load_dwordx4 %s, s[56:59], s4 offen lds" % v(T))
        A("s_add_u32 s4, s4, %d" % (4 * 1280))


def wd_relayout(A, mid):
    skip = A.newl("Lwd")
    T = 20
    A("v_lshrrev_b32 %s, 2, v1" % v(T))
    A("v_lshlrev_b32 %s, 8, %s" % (v(T), v(T)))
    A("v_and_b32 %s, 3, v1" % v(T + 1))
    A("v_lshl_add_u32 %s, %s, 3, %s" % (v(T), v(T + 1), v(T)))
    A("v_add_u32 %s, s15, %s" % (v(T), v(T)))
    A("v_lshlrev_b32 %s, 4, v1" % v(T + 1))
    for c in range(8):
        A("ds_read_b64_tr_b16 %s, %s offset:%d" % (v(WDR + 4 * c, 2), v(T), WDOFF + 32 * c))
        A("ds_read_b64_tr_b16 %s, %s offset:%d" % (v(WDR + 2 + 4 * c, 2), v(T), WDOFF + 32 * c + 4096))
    A("s_lshl_b32 s4, s13, 2")
    A("s_mul_i32 s5, s4, 52429")
    A("s_lshr_b32 s5, s5, 18")
    A("s_mul_i32 s6, s5, 5")
    A("s_sub_u32 s13, s4, s6")
    A("s_mul_i32 s5, s5, 240")
    A("s_mul_i32 s6, s14, 5")
    A("s_add_u32 s5, s5, s6")
    A("s_add_u32 s5, s5, s13")
    A("s_lshl_b32 s5, s5, 10")
    A("s_add_u32 s8, s5, 0x%x" % WS_WD)
    mid()
    A("s_cmp_ge_u32 s14, 48")
    A("s_cbranch_scc1 %s" % skip)
    for c in range(8):
        A("buffer_store_dwordx4 %s, %s, s[48:51], s8 offen sc1" % (v(WDR + 4 * c, 4), v(T + 1)))
        if c < 7:
            A("s_add_u32 s13, s13, 1")
            A("s_cmp_eq_u32 s13, 5")
            A("s_cselect_b32 s13, 0, s13")
            A("s_cselect_b32 s4, %d, 0" % (235 * 1024))
            A("s_add_u32 s8, s8, s4")
            A("s_add_u32 s8, s8, 1024")
    A.label(skip)


G_vA0, G_vA1, G_vC, G_vF, G_vP, G_vXo, G_vPa = 2, 3, 4, 5, 6, 7, 8


def prog(A, val):
    if OPT.get("pds", 1):
        A("v_mov_b32 v10, 0")
        A("ds_write_b32 %s, v10 offset:%d" % (v(G_vPa), PF + 16 * (val + 1)))
        return
    A("s_add_u32 m0, s13, %d" % (16 * (val + 1)))
    A("s_mov_b64 exec, 1")
    A("buffer_load_dword %s, s[48:51], 0 offen lds" % v(G_vP))
    A("s_mov_b64 exec, -1")


def full_read(A, u):
    A("ds_read_b32 %s, %s offset:%d" % (v(G_vF), v(G_vC), FLG + 4 * u))


def full_wait(A, u, have=True):
    if OPT.get("free"):
        return
    if not getattr(A, "fullfn", None):
        A.fullfn = A.newl("Lfw")

        def fn():
            A.label(A.fullfn)
            guard(A)
            if OPT.get("cnt"):
                A("s_add_u32 s92, s92, 1")
            A("ds_read_b32 %s, v11" % v(G_vF))
            A("s_waitcnt lgkmcnt(0)")
            A("v_readfirstlane_b32 s10, %s" % v(G_vF))
            A("s_cmp_eq_u32 s10, 0")
            A("s_cbranch_scc0 %s" % A.fullfn)
            A("s_setpc_b64 s[34:35]")
        A.cold.append(fn)
    ok = A.newl("Lok")
    if have and u >= OPT.get("coldu", 6):
        st = A.newl("Lfs")
        if have != 2:
            A("v_readfirstlane_b32 s10, %s" % v(G_vF))
        A("s_cmp_eq_u32 s10, 0")
        A("s_cbranch_scc0 %s" % st)

        def stub():
            A.label(st)
            A("v_mov_b32 v11, %d" % (FLG + 4 * u))
            A("s_call_b64 s[34:35], %s" % A.fullfn)
            A("s_branch %s" % ok)
        A.cold.append(stub)
        A.label(ok)
        return
    if have:
        if have != 2:
            A("v_readfirstlane_b32 s10, %s" % v(G_vF))
        A("s_cmp_eq_u32 s10, 0")
        A("s_cbranch_scc1 %s" % ok)
    A("v_mov_b32 v11, %d" % (FLG + 4 * u))
    A("s_call_b64 s[34:35], %s" % A.fullfn)
    A.label(ok)


def wfrag_addr(A, d, t):
    A("v_bfe_u32 %s, v1, 2, 2" % v(t))
    A("v_mul_u32_u24 %s, %d, %s" % (v(d), WP, v(t)))
    A("v_lshrrev_b32 %s, 5, v1" % v(t))
    A("v_lshl_add_u32 %s, %s, 9, %s" % (v(d), v(t), v(d)))
    A("v_bfe_u32 %s, v1, 4, 1" % v(t))
    A("v_lshl_add_u32 %s, %s, 5, %s" % (v(d), v(t), v(d)))
    A("v_and_b32 %s, 1, v1" % v(t))
    A("v_lshl_add_u32 %s, %s, 3, %s" % (v(d), v(t), v(d)))
    A("v_bfe_u32 %s, v1, 1, 1" % v(t))
    A("v_mul_u32_u24 %s, %d, %s" % (v(t), UPOFF, v(t)))
    A("v_add_u32 %s, %s, %s" % (v(d), v(t), v(d)))


def gemm_regs(A):
    A("v_mov_b32 %s, %d" % (v(G_vC), CTRL))
    A("s_lshl_b32 s4, s3, 2")
    A("v_mov_b32 %s, s4" % v(G_vPa))
    A("s_add_u32 s13, s4, %d" % PF)
    A("v_mov_b32 %s, 0x7ffffff0" % v(G_vP))


def code_prefetch(A):
    A("s_getpc_b64 s[4:5]")
    here = A.newl("Lpc")
    A.label(here)
    A("s_sub_u32 s4, s4, %s-%s" % (here, NAME + "_kernel"))
    A("s_subb_u32 s5, s5, 0")
    A("s_lshr_b32 s6, s2, 3")
    A("s_lshl_b32 s6, s6, 11")
    A("v_lshlrev_b32 v254, 7, v1")
    A("v_add_u32 v254, s6, v254")
    A("s_mov_b32 s6, Lcode_end-%s-4" % (NAME + "_kernel"))
    A("v_min_u32 v254, s6, v254")
    A("s_mov_b64 exec, 0xffff")
    A("global_load_dword v57, v254, s[4:5]")
    A("s_mov_b64 exec, -1")


def l2_prefetch(A):
    m1 = OPT.get("m2", 1)
    n = 5 if m1 else 10
    A("s_bfe_u32 s7, s2, 0x30003")
    A("s_mul_i32 s7, s7, 3")
    A("s_add_u32 s7, s7, s3")
    A("s_sub_u32 s7, s7, 1")
    A("s_lshl_b32 s4, s7, 6")
    A("v_add_u32 v12, s4, v1")
    A("v_mul_u32_u24 v13, 43691, v12")
    A("v_lshrrev_b32 v13, 18, v13")
    A("v_mul_u32_u24 v13, %d, v13" % (10240 - 768))
    A("v_lshl_add_u32 v12, v12, 7, v13")
    A("s_and_b32 s4, s2, 7")
    A("s_mul_i32 s4, s4, 1280")
    A("s_add_u32 s4, s4, 0x%x" % WS_XT)
    A("buffer_load_dword v14, v12, s[48:51], s4 offen sc1")
    A("v_lshlrev_b32 v12, 7, v1")
    A("s_mul_i32 s4, s7, %d" % (n * 8192))
    if m1:
        A("s_and_b32 s5, s2, 4")
        A("s_mul_i32 s5, s5, %d" % (48 * 5120))
        A("s_add_u32 s4, s4, s5")
    A("s_add_u32 s4, s4, 0x%x" % WS_WD)
    for i in range(n):
        A("buffer_load_dword v14, v12, s[48:51], s4 offen sc1")
        A("s_add_u32 s4, s4, 8192")
    A("s_waitcnt vmcnt(0)")


def s_phase0(A):
    gemm_regs(A)
    A("s_mul_i32 s15, s3, %d" % SPRIV)
    A("s_add_u32 s15, s15, %d" % MAIN)
    A("s_and_b32 s4, s2, 1")
    A("s_lshl_b32 s9, s4, 7")
    A("s_bfe_u32 s4, s2, 0x20001")
    A("s_lshl_b32 s4, s4, 5")
    A("s_add_u32 s9, s9, s4")
    A("s_bfe_u32 s4, s2, 0x30003")
    A("s_lshl_b32 s4, s4, 2")
    A("s_add_u32 s9, s9, s4")
    A("s_add_u32 s9, s9, s3")

    A("s_and_b32 s68, s2, 7")
    A("s_mul_i32 s68, s68, 80")
    A("s_lshr_b32 s4, s2, 3")
    A("s_lshl_b32 s4, s4, 2")
    A("s_add_u32 s68, s68, s4")
    A("s_add_u32 s68, s68, s3")
    A("s_sub_u32 s68, s68, 48")
    A("s_mov_b32 s66, s15")
    kgen_issue(A, 68, [2], 40, False, None, 1)
    ready(A, lambda A: kgen_issue(A, 68, [2], 40, False, None, 2))
    kgen_setup(A, KB)
    map_g2(A)
    srd(A, 52, P_X, 2048 * 640 * 2)
    if OPT.get("lnl", 2) == 0:
        ln_issue(A)
        A("s_waitcnt vmcnt(10)")
    else:
        A("s_waitcnt vmcnt(0)")
    if OPT.get("lnl", 2) == 1:
        ln_issue(A)
    A.ts(1)
    kgen_call(A, 40, 46, True)
    A("s_setprio 2")
    if OPT.get("lnl", 2) == 2:
        ln_issue(A)
    wd_issue(A)
    A("v_mov_b32 v22, 0")
    A("global_load_dword v22, v22, %s sc1" % s(P_DBG, 2))
    A("s_add_u32 s4, s3, 1")
    A("s_mul_i32 s4, s4, %d" % AUXSZ)
    A("s_sub_u32 s7, %d, s4" % (LDS_TOTAL + 8192))
    kgen_give(A, 7, 3)
    A.ts(8)
    A("s_waitcnt vmcnt(9)")
    A.ts(4)
    ln8(A)
    A.ts(5)
    nonce_fetch(A, 22, True)
    A.ts(6)
    ln_store(A)
    A.ts(9)
    wd_relayout(A, lambda: flag_p(A, C_CNT, FL_X))
    A.ts(10)
    A("s_cmp_lt_u32 s3, 2")
    A("s_mov_b32 s4, 0xfffff")
    A("s_cselect_b32 s4, 0x3fffff, s4")
    A("v_lshl_add_u32 v10, v1, 4, %s" % v(G_vPa))
    A("v_mov_b32 v11, 0")
    A("s_mov_b32 exec_lo, s4")
    A("s_mov_b32 exec_hi, 0")
    A("ds_write_b32 v10, v11 offset:%d" % PF)
    A("s_mov_b64 exec, -1")
    flag_p(A, C_CNT2, FL_W)
    A.ts(2)
    if OPT.get("hpf"):
        A("s_sub_u32 s4, s2, 192")
        A("s_lshl_b32 s4, s4, 2")
        A("s_add_u32 s4, s4, s3")
        A("s_mul_i32 s4, s4, %d" % (4 * 8192 + 2048))
        A("s_add_u32 s4, s4, 0x%x" % WS_HF)
        A("v_lshlrev_b32 v12, 7, v1")
        for i in range(5):
            if i == 4:
                A("s_mov_b64 exec, 0xffff")
            A("buffer_load_dword v14, v12, s[48:51], s4 offen%s" % ["", " sc1", " nt", " sc1 nt"][OPT["hpf"]])
            A("s_add_u32 s4, s4, 8192")
        A("s_mov_b64 exec, -1")
        A("s_waitcnt vmcnt(0)")
    sk, s1 = A.newl("Ls0"), A.newl("Ls1")
    A("s_cmp_eq_u32 s3, 1")
    A("s_cbranch_scc1 %s" % s1)
    A("s_cmp_lg_u32 s3, 0")
    A("s_cbranch_scc1 %s" % sk)
    poll_all(A, 12, FL_X, C_GO, False, OPT.get("ss1", 3))
    if not OPT.get("g1only"):
        lds_wait(A, CTRL + C_KRDY, "lg", 0, 12, G_vPa, "s10", False, 4)
        poll_all(A, 12, FL_W, C_GOW, False, OPT.get("ss1", 3))
        loader_regs(A)
        A("s_branch Lload_g2")
    A.label(s1)
    if OPT.get("sdel", 0) and not OPT.get("g1only"):
        A("s_lshl_b32 s6, s2, 7")
        A("s_add_u32 s6, s6, 0x%x" % (FL_G - 192 * 128))
        A("v_mov_b32 v12, 0")
        A("s_mov_b64 exec, 1")
        poll_flags(A, [(16, 1, 12, 6, 0)], [16], 13, 8)
        A("s_mov_b64 exec, -1")
    A("v_lshlrev_b32 v12, 2, v1")
    A("v_mov_b32 v13, 1")
    A("s_mov_b64 exec, 15")
    A("ds_write_b32 v12, v13 offset:%d" % (CTRL + C_EPI))
    A("s_mov_b64 exec, -1")
    A.label(sk)
    if not OPT.get("g1only"):
        lds_wait(A, CTRL + C_KRDY, "lg", 0, 12, G_vPa, "s10", False, 4)
        if OPT.get("l2pf", 0):
            l2_prefetch(A)
    A.ts(3)


G2_ACC = 176
G2_RREGS = [128, 132, 136, 140, 24, 28, 32, 36, 144, 148, 152, 156, 40, 44, 48, 52, 160, 164, 168, 172]


def g2_streams(A):
    rot2(A, 4)
    A("s_mul_i32 s53, s63, 48")
    A("s_mul_i32 s5, s3, 12")
    A("s_add_u32 s53, s53, s5")
    A("s_mul_i32 s53, s53, 5120")
    A("s_add_u32 s53, s53, 0x%x" % WS_WD)
    A("s_mul_i32 s5, s4, 5120")
    A("s_add_u32 s52, s53, s5")
    A("s_add_u32 s53, s53, %d" % (12 * 5120))
    A("s_mul_i32 s55, s62, %d" % (192 * 1024))
    A("s_mul_i32 s5, s3, %d" % (24 * 1024))
    A("s_add_u32 s55, s55, s5")
    A("s_add_u32 s55, s55, 0x%x" % WS_HF)
    A("s_add_u32 s56, s55, %d" % (24 * 1024))
    A("s_lshl_b32 s5, s4, 11")
    A("s_add_u32 s54, s55, s5")
    A("v_lshlrev_b32 %s, 4, v1" % v(G_vXo))
    A("v_add_u32 v22, 4096, %s" % v(G_vXo))


def g2_wload(A, r, j, ct):
    if (OPT.get("noS") and j >= NR2) or (OPT.get("noR") and j < NR2):
        A("buffer_load_dword v0, v0, s[48:51], s53 offen")
        return
    if ct < 4:
        A("buffer_load_dwordx4 %s, %s, s[48:51], s52 offen offset:%d%s" % (v(r, 4), v(G_vXo), 1024 * ct, LSC))
    else:
        A("buffer_load_dwordx4 %s, v22, s[48:51], s52 offen%s" % (v(r, 4), LSC))
    if ct == 4 and j < 11:
        A("s_add_u32 s52, s52, %d" % (5120 * (1 + (NL2 if j == NR2 - 1 else 0))))
        A("s_cmp_ge_u32 s52, s53")
        A("s_cselect_b32 s5, %d, 0" % (12 * 5120))
        A("s_sub_u32 s52, s52, s5")


def par_start(A):
    l2 = A.newl("Lh")
    A("s_and_b32 s68, s2, 7")
    A("s_mul_i32 s68, s68, 80")
    A("s_lshr_b32 s4, s2, 3")
    A("s_lshl_b32 s4, s4, 1")
    A("s_add_u32 s68, s68, s4")
    A("s_and_b32 s4, s3, 1")
    A("s_add_u32 s68, s68, s4")
    A("s_mul_i32 s66, s3, %d" % STGSZ)
    A("s_add_u32 s66, s66, %d" % XSLOT(2))
    A("s_cmp_eq_u32 s3, 3")
    A("s_cselect_b32 s66, %d, s66" % WSLOT(4))
    A("s_cselect_b32 s67, 128, 0")
    kgen_issue(A, 68, [2], 40, False, 67, 1)

    def early(A):
        A("s_cmp_eq_u32 s3, 2")
        A("s_cbranch_scc1 %s" % l2)
        kgen_issue(A, 68, [2], 40, False, 67, 2)
        A.label(l2)
    ready(A, early)
    kgen_setup(A, KB)


def gemm1(A):
    ACC, FB = 128, 80
    SEL, CSD = 24, 40
    ST = 16
    vX = 12
    CR = [24, 40, 64, 80]
    NM, C1 = [56, 60], [58, 62]
    vA0, vC, vF, vP, vXo, vPa = G_vA0, G_vC, G_vF, G_vP, G_vXo, G_vPa
    lg = Cnt(A, "lgkmcnt", 15)
    vm = Cnt(A, "vmcnt", 63)
    A("s_and_b32 s11, s3, 1")
    A("s_lshr_b32 s12, s3, 1")
    A("s_lshl_b32 s8, s60, 1")
    A("s_add_u32 s8, s8, s11")
    wfrag_addr(A, vA0, 9)
    A("s_lshl_b32 s4, s12, 4")
    A("s_add_u32 s4, s4, %d" % WADDR[0])
    A("v_add_u32 %s, s4, %s" % (v(vA0), v(vA0)))
    A("v_add_u32 %s, %d, %s" % (v(G_vA1), WHI - WADDR[0], v(vA0)))
    A("v_and_b32 v9, 31, v1")
    A("v_bfe_u32 v10, v1, 1, 3")
    A("v_lshrrev_b32 v11, 5, v1")
    A("v_xor_b32 v10, v10, v11")
    A("v_lshlrev_b32 v10, 4, v10")
    A("v_lshl_add_u32 v10, v9, 7, v10")
    A("s_lshl_b32 s4, s11, 13")
    A("s_add_u32 s4, s4, %d" % XRING)
    for j in range(4):
        A("v_xor_b32 %s, %d, v10" % (v(vX + j), 32 * j))
        A("v_add_u32 %s, s4, %s" % (v(vX + j), v(vX + j)))
    gemm_regs(A)
    def late_setup():
        A("v_and_b32 v9, 31, v1")
        A("s_lshl_b32 s4, s12, 2")
        A("v_subrev_u32 v9, s4, v9")
        A("v_mov_b32 v10, 0x3f803f80")
        for t in range(4):
            A("v_cmp_eq_u32 vcc, %d, v9" % [0, 1, 2, 8][t])
            A("s_nop 1")
            for d in range(4):
                A("v_cndmask_b32 %s, 0, v10, vcc" % v(SEL + 4 * t + d))
        g2_streams(A)

    if OPT.get("par", 0) and not OPT.get("auxoff"):
        l2 = A.newl("Lh")
        late_setup()
        A("s_waitcnt vmcnt(0)")
        A("s_cmp_eq_u32 s3, 2")
        A("s_cbranch_scc1 %s" % l2)
        A.ts(1)
        kgen_call(A, 40, 46, True)
        A("s_setprio %d" % OPT.get("pg", 2))
        A("s_min_u32 s7, s3, 2")
        A("s_mul_i32 s7, s7, 3072")
        A("s_add_u32 s7, s7, %d" % (WSLOT(4) + STGSZ))
        kgen_give(A, 7, 3)
        A.ts(2)
        A.label(l2)
        prog(A, 22)
        if OPT.get("pkm"):
            lds_wait(A, CTRL + C_PKD, "lg", 0, 10, vPa, "s10", False, 1)
    else:
        ready(A)
        late_setup()
        prog(A, 0)
        A("s_waitcnt vmcnt(0)")

    def W(ks, t):
        return FB + 24 * (ks & 1) + 4 * t

    def X(ks, a):
        return FB + 24 * (ks & 1) + 16 + 4 * a

    def wread(ks, t):
        off, b = WSLOT(ks >> 1) + (ks & 1) * SLOT1 + 64 * t - WADDR[0], vA0
        if WSLOT(ks >> 1) >= WHI:
            off, b = off - (WHI - WADDR[0]), G_vA1
        A("ds_read_b64_tr_b16 %s, %s offset:%d" % (v(W(ks, t), 2), v(b), off))
        lg.issue(("w", ks, t, 0))
        A("ds_read_b64_tr_b16 %s, %s offset:%d" % (v(W(ks, t) + 2, 2), v(b), off + 256))
        lg.issue(("w", ks, t))

    def xread(ks, a):
        A("ds_read_b128 %s, %s offset:%d" % (v(X(ks, a), 4), v(vX + ks % 4), XSLOT(ks >> 2) - XRING + 4096 * a))
        lg.issue(("x", ks, a))

    def reads(ks):
        if OPT.get("mo") == 1:
            return [lambda: xread(ks, 0), lambda: wread(ks, 0), lambda: wread(ks, 1), lambda: wread(ks, 2), lambda: xread(ks, 1), lambda: wread(ks, 3)]
        return [lambda: xread(ks, 0), lambda: wread(ks, 0), lambda: xread(ks, 1), lambda: wread(ks, 1), lambda: wread(ks, 2), lambda: wread(ks, 3)]
    full_wait(A, 0, False)
    A.ts(4)

    def x_csread():
        A("ds_read_b32 v20, %s offset:%d" % (v(vC), C_CSOK))
        lg.issue("cs")

    def x_cscheck():
        lg.wait("cs")
        lds_wait(A, C_CSOK, "lg", 0, 20, vC, "s10", True)
        A("v_lshrrev_b32 v21, 5, v1")
        A("v_lshlrev_b32 v21, 4, v21")
        A("s_lshl_b32 s4, s12, 7")
        A("s_add_u32 s4, s4, %d" % CSUM)
        A("v_add_u32 v21, s4, v21")

    def x_cs(t, m):
        A("ds_read_b128 %s, v21 offset:%d" % (v(CR[t] + 4 * m, 4), 256 * t + 32 * m))
        lg.issue(("cr", t, m))

    def x_stat():
        ok, slow = A.newl("Lst"), A.newl("Lss")
        vm.wait("st")
        A("v_xor_b32 v10, %s, %s" % (NON, v(ST + 1)))
        A("v_xor_b32 v11, %s, %s" % (NON, v(ST + 3)))
        A("v_or_b32 v10, v10, v11")
        A("v_cmp_ne_u32 s[4:5], 0, v10")
        A("s_cmp_eq_u64 s[4:5], 0")
        A("s_cbranch_scc0 %s" % slow)
        A.label(ok)

        def cold():
            A.label(slow)
            poll_flags(A, [(ST, 2, 9, 6, 0), (ST + 2, 2, 9, 6, 256)], [ST + 1, ST + 3], 10, 2)
            A("s_branch %s" % ok)
        A.cold.append(cold)

    def x_const(a):
        A("v_lshlrev_b32 %s, 16, %s" % (v(NM[a]), v(ST + 2 * a)))
        A("v_and_b32 %s, 0xffff0000, %s" % (v(C1[a]), v(ST + 2 * a)))
        A("v_xor_b32 %s, 0x80000000, %s" % (v(NM[a]), v(NM[a])))
        A("v_mul_f32 %s, %s, %s" % (v(NM[a] + 1), v(C1[a]), v(C1[a])))
        A("v_rcp_f32 %s, %s" % (v(C1[a]), v(C1[a])))

    def x_last():
        for a in range(2):
            A("v_mul_f32 %s, %s, %s" % (v(C1[a]), fbits(-LOG2E), v(C1[a])))
        A("s_mul_i32 s9, s8, 192")
        A("s_lshl_b32 s4, s61, 3")
        A("s_add_u32 s9, s9, s4")
        A("s_add_u32 s9, s9, s12")
        A("s_lshl_b32 s9, s9, 10")
        A("s_add_u32 s9, s9, 0x%x" % WS_HF)
    def x_goread():
        A("ds_read_b32 v23, %s offset:%d" % (v(vC), C_GOW))
        lg.issue("go")
    extras = [x_csread, x_stat, lambda: x_const(0), lambda: x_const(1), x_cscheck, x_last]
    extras += [(lambda t=t, m=m: x_cs(t, m)) for t in range(3) for m in range(4)]
    extras += [x_goread]
    if OPT.get("g1only"):
        extras = []
    allr = [(ks, i, f) for ks in range(40) for i, f in enumerate(reads(ks))]
    state = {"g": 0, "prog": 0}

    def next_read():
        if state["g"] >= len(allr):
            return False
        ks, i, f = allr[state["g"]]
        state["g"] += 1
        if i == 0 and ks % 2 == 0 and ks > 0:
            full_wait(A, ks // 2, 2)
        f()
        if i == OPT.get("fn", 2) and ks % 2 == 1 and ks + 1 < 40:
            full_read(A, (ks + 1) // 2)
            lg.issue(("f", ks + 1))
        return True

    def try_prog():
        u = state["prog"]
        if u < 20 and state["g"] > 12 * u + 11 and ("w", 2 * u + 1, 3) not in lg.q:
            prog(A, u + 1)
            if OPT.get("pds", 1):
                lg.issue(("p", u))
            else:
                vm.issue(("p", u))
            state["prog"] += 1
    for _ in range(6):
        next_read()
    for ks in range(40):
        if ks == 26:
            A("v_and_b32 v9, 31, v1")
            A("v_lshlrev_b32 v9, 3, v9")
            A("s_lshl_b32 s6, s8, 9")
            A("s_add_u32 s6, s6, 0x%x" % WS_ST)
            A("buffer_load_dwordx2 %s, v9, s[48:51], s6 offen sc1" % v(ST, 2))
            A("buffer_load_dwordx2 %s, v9, s[48:51], s6 offen offset:256 sc1" % v(ST + 2, 2))
            vm.issue("st")
        if ks == OPT.get("pubks", 7) - 1:
            A("ds_read_b32 v20, %s offset:%d" % (v(vC), C_NONCE))
            lg.issue("non")
        if ks == OPT.get("pubks", 7) and not OPT.get("auxoff"):
            sk = A.newl("Lcs")
            lg.wait("non")
            lds_wait(A, C_NONCE, "lg", 0, 20, vC, NON, True)
            A("s_cmp_ge_u32 s60, 10")
            A("s_cbranch_scc1 %s" % sk)
            A("s_cmp_lg_u32 s11, 0")
            A("s_cbranch_scc1 %s" % sk)
            A("v_mov_b32 %s, %s" % (v(CSD + 3), NON))
            A("v_mov_b32 %s, %s" % (v(CSD + 5), NON))
            A("v_lshlrev_b32 v9, 4, v1")
            A("v_lshlrev_b32 v10, 3, v1")
            A("s_mul_i32 s6, s61, 10")
            A("s_add_u32 s6, s6, s60")
            A("s_lshl_b32 s6, s6, 11")
            A("s_add_u32 s6, s6, 0x%x" % WS_CS)
            A("s_sub_u32 exec_lo, s12, 1")
            A("s_not_b32 exec_hi, exec_lo")
            A("buffer_store_dwordx4 %s, v9, s[48:51], s6 offen sc1" % v(CSD, 4))
            A("buffer_store_dwordx2 %s, v10, s[48:51], s6 offen offset:1024 sc1" % v(CSD + 4, 2))
            A("s_mov_b64 exec, -1")
            A.label(sk)
        if OPT.get("fine"):
            if ks in (2, 4, 6, 8, 10, 12):
                A.ts({2: 6, 4: 7, 6: 8, 8: 9, 10: 10, 12: 12}[ks])
        elif ks in (12, 20, 28):
            A.ts(8 + (ks - 12) // 8)
        n = 0
        for t0 in range(4):
            for a0 in range(2):
                t, a = t0, a0
                if OPT.get("mo") == 1:
                    t, a = n & 3, n >> 2
                if OPT.get("mo") == 2:
                    a = a0 ^ (t0 & 1)
                lg.wait(("w", ks, t))
                lg.wait(("x", ks, a))
                d = ACC + 64 * a + 16 * t
                cin = "0" if ks == 0 else v(d, 16)
                if OPT.get("fake16"):
                    dd = d + 8 * (ks & 1)
                    A("v_mfma_f32_16x16x32_bf16 %s, %s, %s, %s" % (v(dd, 4), v(W(ks, t), 4), v(X(ks, a), 4), v(dd, 4)))
                    mark = len(A.L)
                else:
                    A("v_mfma_f32_32x32x16_bf16 %s, %s, %s, %s" % (v(d, 16), v(W(ks, t), 4), v(X(ks, a), 4), cin))
                try_prog()
                if n == 7 and ks % 2 == 0 and ks + 2 < 40:
                    lg.wait(("f", ks + 2))
                    A("v_readfirstlane_b32 s15, %s" % v(vF))
                if n == 0 and ks % 2 == 1:
                    A("s_mov_b32 s10, s15")
                did = n < 6 and next_read()
                if not did and ks >= OPT.get("epks", 34) and extras:
                    extras.pop(0)()
                if OPT.get("fake16"):
                    pos = mark + 1 if (len(A.L) > mark and A.L[mark].strip().startswith("ds_read")) else len(A.L)
                    A.L.insert(pos, "  v_mfma_f32_16x16x32_bf16 %s, %s, %s, %s" % (v(dd + 4, 4), v(X(ks, a), 4), v(W(ks, t), 4), v(dd + 4, 4)))
                n += 1
            if ks < OPT.get("csn", 4):
                t = t0
                lg.wait(("w", ks, t))
                cin = "0" if ks + t == 0 else v(CSD, 16)
                A("v_mfma_f32_32x32x16_bf16 %s, %s, %s, %s" % (v(CSD, 16), v(SEL + 4 * t, 4), v(W(ks, t), 4), cin))
    while extras:
        extras.pop(0)()
    A.ts(5)
    if OPT.get("cnt"):
        A.stamps += [11, 14]
    if OPT.get("g1only"):
        return
    for m in range(4):
        x_cs(3, m)
    T0 = 96
    n = 0
    A("s_nop 3")
    for t in range(4):
        lg.wait(("cr", t, 3))
        for a in range(2):
            ac = ACC + 64 * a + 16 * t
            tmp = T0 + 16 * (n & 1)
            n += 1
            G = [ac, ac + 2, ac + 8, ac + 10]
            U = [ac + 4, ac + 6, ac + 12, ac + 14]
            for i in range(8):
                A("v_pk_fma_f32 %s, %s, %s, %s op_sel_hi:[1,0,1]" % (v(ac + 2 * i, 2), v(CR[t] + 2 * i, 2), v(NM[a], 2), v(ac + 2 * i, 2)))
            for i in range(4):
                A("v_pk_mul_f32 %s, %s, %s op_sel_hi:[1,0]" % (v(tmp + 2 * i, 2), v(G[i], 2), v(C1[a], 2)))
            for i in range(0 if OPT.get("noexp") else 8):
                A("v_exp_f32 %s, %s" % (v(tmp + i), v(tmp + i)))
            for i in range(4):
                A("v_pk_mul_f32 %s, %s, %s" % (v(G[i], 2), v(G[i], 2), v(U[i], 2)))
            for i in range(4):
                A("v_pk_fma_f32 %s, %s, %s, %s op_sel:[0,1,1] op_sel_hi:[1,1,1]" % (v(tmp + 2 * i, 2), v(tmp + 2 * i, 2), v(NM[a], 2), v(NM[a], 2)))
            for i in range(0 if OPT.get("noexp") else 8):
                A("v_rcp_f32 %s, %s" % (v(tmp + i), v(tmp + i)))
            A("s_add_u32 s4, s9, %d" % (96 * 1024 * a + 2048 * t))
            for i in range(4):
                A("v_pk_mul_f32 %s, %s, %s" % (v(G[i], 2), v(G[i], 2), v(tmp + 2 * i, 2)))
            for i in range(4):
                A("v_cvt_pk_bf16_f32 %s, %s, %s" % (v(tmp + 8 + i), v(G[i]), v(G[i] + 1)))
            A("buffer_store_dwordx4 %s, %s, s[48:51], s4 offen %s" % (v(tmp + 8, 4), v(vXo), ["sc1", "sc0 sc1", "sc1 nt"][OPT.get("hsc", 0)]))
            if n == 1:
                lg.wait("go")
                lds_wait(A, C_GOW, "lg", 0, 23, vC, "s10", True)
            if n <= OPT.get("rearly", 0):
                for k in range(4 * (n - 1), 4 * n):
                    g2_wload(A, G2_RREGS[k], k // 5, k % 5)
    A("v_mov_b32 v10, 1")
    A("ds_write_b32 %s, v10 offset:%d" % (v(vPa), CTRL + C_EPI))
    A.ts(6)
    A("s_lshl_b32 s57, s8, 4")
    A("s_add_u32 s57, s57, s61")
    A("s_lshl_b32 s57, s57, 1")
    A("s_add_u32 s57, s57, s12")
    A("s_lshl_b32 s57, s57, 7")
    A("s_add_u32 s57, s57, 0x%x" % FL_H)


def cmul(A, d, a, f, t, pk=False):
    assert d != a and d != f
    if pk:
        A("v_pk_mul_f32 %s, %s, %s op_sel:[0,0] op_sel_hi:[1,0]" % (v(d, 2), v(a, 2), v(f, 2)))
        A("v_pk_fma_f32 %s, %s, %s, %s op_sel:[1,1,0] op_sel_hi:[0,1,1] neg_lo:[1,0,0]" % (v(d, 2), v(a, 2), v(f, 2), v(d, 2)))
        return
    A("v_mul_f32 %s, %s, %s" % (v(d), v(a), v(f)))
    A("v_mul_f32 %s, %s, %s" % (v(d + 1), v(a + 1), v(f)))
    A("v_fma_f32 %s, -%s, %s, %s" % (v(d), v(a + 1), v(f + 1), v(d)))
    A("v_fmac_f32 %s, %s, %s" % (v(d + 1), v(a), v(f + 1)))


def kgen_issue(A, sch, chunks, R, dsk, sub=None, part=3, T=60):
    n = len(chunks)
    if part & 1:
        for i in range(6 * n + 1):
            A("v_mov_b32 %s, 0" % v(R + i))
        A("s_mul_i32 s4, %s, 384" % s(sch))
        if sub:
            A("s_sub_u32 s4, s4, %s" % s(sub))
        A("v_lshlrev_b32 %s, 1, v1" % v(T))
        A("v_add_u32 %s, s4, %s" % (v(T), v(T)))
        A("s_lshl_b32 s4, %s, 1" % s(sch))
        A("v_mov_b32 %s, s4" % v(T + 1))
        if dsk:
            A("v_mov_b32 v59, 0")
    if part & 2:
        A("global_load_short_d16_hi %s, %s, %s" % (v(R + 6 * n), v(T + 1), s(P_LDT, 2)))
        for k, c in enumerate(chunks):
            for i, p in enumerate([P_ARE, P_AIM, P_BRE, P_BIM, P_CRE, P_CIM]):
                A("global_load_short_d16_hi %s, %s, %s offset:%d" % (v(R + 6 * k + i), v(T), s(p, 2), 128 * c))
        if dsk:
            A("global_load_short_d16_hi v59, %s, %s" % (v(T + 1), s(P_DSK, 2)))


def kgen_call(A, R, ldt, zero):
    B = KB
    DT = B + KB_DT
    A("v_mul_f32 %s, %s, %s" % (v(DT), fbits(LOG2E), v(ldt)))
    A("v_exp_f32 %s, %s" % (v(DT), v(DT)))
    for i in range(6):
        A("v_mov_b32 %s, %s" % (v(B + i), v(R + i)))
    A("v_cvt_pk_bf16_f32 %s, %s, %s" % (v(DT), v(DT), v(DT)))
    A("v_and_b32 %s, 0xffff0000, %s" % (v(DT), v(DT)))
    if zero:
        for i in range(16):
            A("v_mov_b32 %s, 0" % v(B + KB_ACC + i))
    A("s_call_b64 s[34:35], Lkgen")


def kgen_give(A, saddr, sidx, R=None):
    A("v_lshlrev_b32 v10, 4, v1")
    A("v_add_u32 v10, %s, v10" % s(saddr))
    if R is None:
        A("s_nop 15")
    for q in range(3):
        A("ds_write_b128 v10, %s offset:%d" % (v((R or KB + KB_ACC) + 4 * q, 4), 1024 * q))
    lds_set(A, sidx, C_KP, 1, 10)
    if R is None:
        A("s_waitcnt lgkmcnt(0)")


def kgen_take2(A, sidx, saddr, rel):
    KACC = KB + KB_ACC
    A("s_lshl_b32 s4, %s, 2" % s(sidx))
    A("v_mov_b32 v10, s4")
    lds_wait(A, CTRL + C_KP, "lg", 0, 11, 10, "s10", False, 0)
    A("v_lshlrev_b32 v11, 4, v1")
    A("v_add_u32 v11, %s, v11" % s(saddr))
    for q in range(3):
        A("ds_read_b128 %s, v11 offset:%d" % (v(12 + 4 * q, 4), 1024 * q))
    if rel:
        A("v_mov_b32 v11, 0")
        A("ds_write_b32 v10, v11 offset:%d" % (PF + 16))
    A("s_waitcnt lgkmcnt(%d)" % (1 if rel else 0))
    for r in range(12):
        A("v_add_f32 %s, %s, %s" % (v(KACC + r), v(KACC + r), v(12 + r)))


def kgen_take(A):
    KACC = KB + KB_ACC
    A("s_lshl_b32 s4, s12, 2")
    A("v_mov_b32 v10, s4")
    lds_wait(A, CTRL + C_KP, "lg", 0, 11, 10, "s10")
    A("s_mov_b32 s4, %d" % (HSTG + 3072))
    A("s_cmp_eq_u32 s12, 0")
    A("s_cselect_b32 s4, s4, %d" % HSTG)
    A("s_add_u32 s5, s69, 8192")
    A("s_cmp_eq_u32 s15, 0")
    A("s_cselect_b32 s4, s5, s4")
    A("v_lshlrev_b32 v11, 4, v1")
    A("v_add_u32 v11, s4, v11")
    for q in range(3):
        A("ds_read_b128 %s, v11 offset:%d" % (v(12 + 4 * q, 4), 1024 * q))
    A("v_mov_b32 v11, 1")
    A("ds_write_b32 v10, v11 offset:%d" % (CTRL + C_KPR - 4))
    A("s_waitcnt lgkmcnt(1)")
    for r in range(12):
        A("v_add_f32 %s, %s, %s" % (v(KACC + r), v(KACC + r), v(12 + r)))


HI = list(range(8)) + [256, 258, 260, 262, 512, 516, 768, 772, 1024, 1280, 1536, 1792, 2048]
EROW = 272


KB, KB_DT, KB_ACC = 62, 6, 134


def kgen_setup(A, B):
    vW, vR, ONE, T = B + 150, B + 8, B + 10, B + 20
    A("v_bfe_u32 %s, v1, 1, 2" % v(T))
    A("v_lshlrev_b32 %s, 4, %s" % (v(T), v(T)))
    A("v_lshl_add_u32 %s, v1, 6, %s" % (v(T), v(T)))
    for q in range(4):
        A("v_xor_b32 %s, %d, %s" % (v(vW + q), 16 * q, v(T)))
        A("v_add_u32 %s, s66, %s" % (v(vW + q), v(vW + q)))
    A("v_bfe_u32 %s, v1, 2, 2" % v(T))
    A("v_lshrrev_b32 %s, 5, v1" % v(T + 1))
    A("v_lshl_add_u32 %s, %s, 3, %s" % (v(T), v(T + 1), v(T)))
    A("v_lshlrev_b32 %s, 6, %s" % (v(vR), v(T)))
    A("v_bfe_u32 %s, v1, 4, 1" % v(T))
    A("v_bfe_u32 %s, v1, 1, 1" % v(T + 1))
    A("v_lshl_add_u32 %s, %s, 1, %s" % (v(T), v(T), v(T + 1)))
    A("v_bfe_u32 %s, v1, 3, 1" % v(T + 1))
    A("v_xor_b32 %s, %s, %s" % (v(T), v(T), v(T + 1)))
    A("v_lshl_add_u32 %s, %s, 4, %s" % (v(vR), v(T), v(vR)))
    A("v_and_b32 %s, 1, v1" % v(T))
    A("v_lshl_add_u32 %s, %s, 3, %s" % (v(vR), v(T), v(vR)))
    A("v_xor_b32 %s, 32, %s" % (v(vR + 1), v(vR)))
    A("v_add_u32 %s, s66, %s" % (v(vR), v(vR)))
    A("v_add_u32 %s, s66, %s" % (v(vR + 1), v(vR + 1)))
    A("v_mov_b32 %s, 1.0" % v(ONE))
    A("v_mov_b32 %s, 0" % v(ONE + 1))


def kgen_chunk(A, B, pkm):
    are, aim, bre, bim, cre, cim = [B + i for i in range(6)]
    DT, vW, vR, ONE = B + KB_DT, B + 150, B + 8, B + 10
    E1, E8, E256, E16, TA = B + 12, B + 14, B + 16, B + 18, B + 20
    LO = [B + 26, B + 28, B + 30, B + 32]
    Gs, PR, PI, KACC = B + 34, B + 78, B + 106, B + KB_ACC
    FA, FB = B + 34, B + 78
    G = lambda i: Gs + 2 * i
    A("v_mul_f32 %s, %s, %s" % (v(are), v(DT), v(are)))
    A("v_mul_f32 %s, %s, %s" % (v(aim), v(DT), v(aim)))
    A("v_mul_f32 %s, %s, %s" % (v(are), fbits(LOG2E), v(are)))
    A("v_mul_f32 %s, %s, %s" % (v(aim), fbits(0.5 / math.pi), v(aim)))
    Es = [(E8, 8.0, TA), (E1, 1.0, TA + 2), (E256, 256.0, TA + 4)]
    for (E, l, T) in Es:
        A("v_mul_f32 %s, %s, %s" % (v(T), fbits(l), v(are)))
        A("v_mul_f32 %s, %s, %s" % (v(T + 1), fbits(l), v(aim)))
    for (E, l, T) in Es:
        A("v_fract_f32 %s, %s" % (v(T + 1), v(T + 1)))
    for (E, l, T) in Es:
        A("v_exp_f32 %s, %s" % (v(T), v(T)))
        A("v_cos_f32 %s, %s" % (v(E), v(T + 1)))
        A("v_sin_f32 %s, %s" % (v(E + 1), v(T + 1)))
    A("v_mul_f32 %s, %s, %s" % (v(bre), v(DT), v(bre)))
    A("v_mul_f32 %s, %s, %s" % (v(bim), v(DT), v(bim)))
    for (E, l, T) in Es:
        A("v_mul_f32 %s, %s, %s" % (v(E), v(E), v(T)))
        A("v_mul_f32 %s, %s, %s" % (v(E + 1), v(E + 1), v(T)))
    cmul(A, Gs, cre, bre, TA)
    cmul(A, E16, E8, E8, E16)
    loc = {0: Gs, 24: ONE, 25: E8, 26: E16}
    packed, written = set(), set()
    dsq = []

    def flush():
        for p in range(28):
            if p in packed or p == 11:
                continue
            c0, c1 = 2 * p, 2 * p + 1
            if p == 10:
                c1 = c0
            if c0 in loc and c1 in loc:
                n = "-" if p < 12 else ""
                A("v_cvt_pk_bf16_f32 %s, %s, %s" % (v(PR + p), v(loc[c0]), v(loc[c1])))
                A("v_cvt_pk_bf16_f32 %s, %s%s, %s%s" % (v(PI + p), n, v(loc[c0] + 1), n, v(loc[c1] + 1)))
                packed.add(p)

    def rd(F, ks):
        return ["ds_read_b64_tr_b16 %s, %s offset:%d" % (v(F + 4 * ks, 2), v(vR), 1024 * ks),
                "ds_read_b64_tr_b16 %s, %s offset:%d" % (v(F + 4 * ks + 2, 2), v(vR + 1), 1024 * ks + 256)]

    def wr(old):
        for q in range(7):
            if q in written or (q >= 3 and "A" not in written):
                continue
            if all((p in old or p == 11) for p in range(4 * q, 4 * q + 4)):
                ch = q if q < 3 else q - 3
                dsq.append("ds_write_b128 %s, %s" % (v(vW + ch), v(PR + 4 * q, 4)))
                dsq.append("ds_write_b128 %s, %s offset:4096" % (v(vW + ch), v(PI + 4 * q, 4)))
                written.add(q)
            if q == 2 and {0, 1, 2} <= written and "A" not in written:
                for ks in range(8):
                    dsq.extend(rd(FA, ks))
                written.add("A")
    cur = [E16, E8]
    lo_ops = []
    for j in range(3, 32):
        ch = 1 if (j & 1) else 0
        dst = LO[2 * ch + ((j >> 1) & 1)]
        lo_ops.append((dst, cur[ch], E16, 24 + j))
        cur[ch] = dst
    src = {8: 0, 9: 2, 10: 4, 11: 6, 12: 8, 13: 10, 14: 12, 15: 13, 16: 14, 17: 16, 18: 17, 19: 18, 20: 19}
    groups = [[lo_ops.pop(0)]]
    while lo_ops:
        groups.append([lo_ops.pop(0), lo_ops.pop(0)])
    for i in range(1, 8):
        groups[i - 1].append((G(i), G(i - 1), E1, i))
    for n, i in enumerate([8, 12, 14, 16, 17, 18, 19, 20]):
        groups[n].append((G(i), G(src[i]), E256, i))
    for n, i in [(2, 9), (4, 10), (5, 13), (6, 11), (7, 15)]:
        groups[n].append((G(i), G(src[i]), E256, i))

    def ds(n):
        for _ in range(n):
            if dsq:
                A(dsq.pop(0))
    for gi, grp in enumerate(groups):
        old = set(packed)
        if gi == OPT.get("kpg", 99):
            A("s_setprio 3")
        for (d, a, f, col) in grp:
            if pkm:
                A("v_pk_mul_f32 %s, %s, %s op_sel:[0,0] op_sel_hi:[1,0]" % (v(d, 2), v(a, 2), v(f, 2)))
            else:
                A("v_mul_f32 %s, %s, %s" % (v(d), v(a), v(f)))
                A("v_mul_f32 %s, %s, %s" % (v(d + 1), v(a + 1), v(f)))
        wr(old)
        ds(3)
        flush()
        for (d, a, f, col) in grp:
            if pkm:
                A("v_pk_fma_f32 %s, %s, %s, %s op_sel:[1,1,0] op_sel_hi:[0,1,1] neg_lo:[1,0,0]" % (v(d, 2), v(a, 2), v(f, 2), v(d, 2)))
            else:
                A("v_fma_f32 %s, -%s, %s, %s" % (v(d), v(a + 1), v(f + 1), v(d)))
                A("v_fmac_f32 %s, %s, %s" % (v(d + 1), v(a), v(f + 1)))
        ds(3)
        for (d, a, f, col) in grp:
            loc[col] = d
    flush()
    wr(packed)
    assert len(written) == 8
    if OPT.get("kts"):
        A.ts(13)
    if OPT.get("kpg", 99) == 15:
        A("s_setprio 3")
    ds(99)
    for ks in range(8):
        for t in rd(FB, ks):
            A(t)
    if OPT.get("kp", 1):
        A("s_setprio 3")
    for ks in range(8):
        A("s_waitcnt lgkmcnt(%d)" % (2 * (7 - ks)))
        A("v_mfma_f32_32x32x16_bf16 %s, %s, %s, %s" % (v(KACC, 16), v(FA + 4 * ks, 4), v(FB + 4 * ks, 4), v(KACC, 16)))
    if OPT.get("kp", 1):
        A("s_setprio %d" % OPT.get("pa", 0))


def kgen_expand(A, KACC):
    A("v_and_b32 v2, 31, v1")
    A("v_lshrrev_b32 v3, 5, v1")
    A("v_lshlrev_b32 v4, 5, v2")
    A("v_lshl_add_u32 v4, v3, 4, v4")
    A("v_add_u32 v4, s66, v4")
    A("v_lshlrev_b32 v5, 4, v2")
    A("v_add_u32 v5, s66, v5")
    A("v_lshlrev_b32 v6, 3, v2")
    A("v_add_u32 v6, s66, v6")
    A("v_lshlrev_b32 v7, 2, v2")
    A("v_add_u32 v7, s66, v7")
    A("s_nop 7")
    A("s_mov_b64 exec, 1")
    A("v_add_f32 %s, %s, v59" % (v(KACC), v(KACC)))
    A("s_mov_b64 exec, -1")
    A("ds_write_b128 v4, %s" % v(KACC, 4))
    A("s_mov_b32 exec_hi, 0")
    A("ds_write_b128 v5, %s offset:%d" % (v(KACC + 4, 4), 256 * 4))
    for r in range(4):
        A("ds_write_b32 v7, %s offset:%d" % (v(KACC + 8 + r), (512 + 32 * r) * 4))
    A("s_mov_b32 exec_lo, 0")
    A("s_mov_b32 exec_hi, -1")
    A("ds_write_b64 v6, %s offset:%d" % (v(KACC + 4, 2), 384 * 4))
    A("ds_write_b64 v6, %s offset:%d" % (v(KACC + 6, 2), 448 * 4))
    A("ds_write_b32 v7, %s offset:%d" % (v(KACC + 8), 640 * 4))
    A("s_mov_b64 exec, -1")
    S0, S1, S2, S3 = 10, 16, 20, 24
    A("v_lshlrev_b32 v2, 3, v1")
    A("v_add_u32 v3, s66, v2")
    A("v_lshlrev_b32 v4, 4, v1")
    A("v_add_u32 v4, s66, v4")
    A("ds_read_b128 %s, v4" % v(S0 + 2, 4))
    A("ds_read_b32 %s, v4 offset:16" % v(S0))
    for (S, b) in [(S1, 256), (S2, 384), (S3, 512)]:
        A("ds_read_b64 %s, v3 offset:%d" % (v(S, 2), 4 * b))
        A("ds_read_b32 %s, v3 offset:%d" % (v(S + 2), 4 * b + 8))
    A("v_add_u32 v2, s69, v2")
    A("v_lshrrev_b32 v3, 4, v1")
    A("v_mul_u32_u24 v3, %d, v3" % KSTR)
    A("v_and_b32 v4, 15, v1")
    A("v_lshl_add_u32 v3, v4, 2, v3")
    A("v_add_u32 v3, s69, v3")
    A("v_sub_u32 v5, 63, v1")
    A("v_lshlrev_b32 v6, 5, v5")
    A("v_add_u32 v6, s69, v6")
    A("v_lshlrev_b32 v7, 4, v5")
    A("v_add_u32 v7, s69, v7")
    A("v_lshlrev_b32 v5, 3, v5")
    A("v_add_u32 v5, s69, v5")
    A("v_mov_b32 v8, 0")
    A("v_mov_b32 v9, 0")
    lds_set(A, 12, C_TRD, 1, 76)
    A("s_waitcnt lgkmcnt(1)")
    O = 96

    def val3(o):
        return S3 + (0 if o <= 4 else 1 if o <= 11 else 2)

    def val2(o):
        return S2 + (0 if o <= 2 else 1 if o <= 5 else 2)
    for d in range(4):
        o0 = O + 12 * d
        for w in range(8):
            A("v_cvt_pk_bf16_f32 %s, %s, %s" % (v(o0 + w), v(val3(d + 15 - 2 * w)), v(val3(d + 14 - 2 * w))))
        for w in range(4):
            A("v_cvt_pk_bf16_f32 %s, %s, %s" % (v(o0 + 8 + w), v(val2(d + 7 - 2 * w)), v(val2(d + 6 - 2 * w))))
    A("v_cvt_pk_bf16_f32 v52, %s, %s" % (v(S2), v(S2)))
    a, b, c = S1, S1 + 1, S1 + 2
    t0, t1, t2, t3, t4 = S0 + 2, S0 + 3, S0 + 4, S0 + 5, S0
    prs = [(c, b), (a, a), (c, c), (b, a), (t3, t2), (t1, t0), (t4, t3), (t2, t1)]
    for i, (x, y) in enumerate(prs):
        A("v_cvt_pk_bf16_f32 %s, %s, %s" % (v(64 + i), v(x), v(y)))
    A("v_cvt_pk_bf16_f32 v72, %s, 0" % v(t0))
    A("v_add_u32 v73, %d, v5" % (2 * KSTR + 3072))
    A("v_add_u32 v74, %d, v5" % (3 * KSTR + 3072))
    conv_setup(A, 0)
    A.ts(6)
    sgl = A.newl("Lxg")
    A("s_cmp_eq_u32 s15, 0")
    A("s_cbranch_scc1 %s" % sgl)
    prog_wait(A, OPT.get("ulate", 16), 76, 4)
    u_issue(A)
    if not OPT.get("par", 0):
        lds_wait(A, CTRL + C_KPR, "lg", 0, 76, 80, "s10", False, 2)
    prog_wait(A, OPT.get("xp", 21), 76, 2)
    A.label(sgl)
    A("ds_write_b64 v2, v[8:9] offset:%d" % AUX_U)
    A("ds_write_b32 v3, v8 offset:4096")
    for d in range(4):
        o0 = O + 12 * d
        A("ds_write_b128 v6, %s offset:%d" % (v(o0, 4), d * KSTR))
        A("ds_write_b128 v6, %s offset:%d" % (v(o0 + 4, 4), d * KSTR + 16))
        A("ds_write_b128 v7, %s offset:%d" % (v(o0 + 8, 4), d * KSTR + 2048))
    A("ds_write_b32 v7, v52 offset:%d" % (2 * KSTR + 2048 + 16))
    A("ds_write_b32 v7, v52 offset:%d" % (3 * KSTR + 2048 + 16))
    for d in range(2):
        A("ds_write_b64 v5, %s offset:%d" % (v(64 + 2 * d, 2), d * KSTR + 3072))
        A("ds_write_b64 v5, %s offset:%d" % (v(68 + 2 * d, 2), d * KSTR + 3584))
    for d in range(2):
        A("ds_write2_b32 %s, %s, %s offset0:1 offset1:2" % (v(73 + d), v(64 + 2 * d), v(65 + 2 * d)))
        A("ds_write2_b32 %s, %s, %s offset0:129 offset1:130" % (v(73 + d), v(68 + 2 * d), v(69 + 2 * d)))
    A("s_mov_b64 exec, 1")
    A("ds_write_b32 v5, v72 offset:%d" % (1 * KSTR + 3584 + 8))
    A("ds_write_b32 v5, v72 offset:%d" % (3 * KSTR + 3584 + 12))
    A("s_mov_b64 exec, -1")


def u_issue(A):
    A("v_mov_b32 v80, %d" % CTRL)
    lds_wait(A, C_GO, "lg", 0, 76, 80, "s10", False, 2)
    A("v_lshrrev_b32 v81, 1, v1")
    A("v_mul_u32_u24 v81, 10240, v81")
    A("v_and_b32 v82, 1, v1")
    A("v_lshl_add_u32 v81, v82, 4, v81")
    A("s_and_b32 s4, s68, -2")
    A("s_lshl_b32 s4, s4, 4")
    A("s_and_b32 s5, s12, 1")
    A("s_mul_i32 s5, s5, %d" % (128 * 10240))
    A("s_add_u32 s4, s4, s5")
    A("s_add_u32 s4, s4, 0x%x" % WS_XT)
    for i in range(4):
        A("buffer_load_dwordx4 %s, v81, s[48:51], s4 offen%s" % (v(232 + 4 * i, 4), LSC))
        if i < 3:
            A("s_add_u32 s4, s4, %d" % (32 * 10240))


def prog_wait(A, val, vt, sleep):
    sleep = sleep * OPT.get("slm", 1)
    pl, ok = A.newl("Lpw"), A.newl("Lpo")
    A("v_mov_b32 %s, %d" % (v(vt + 4), CTRL))
    A.label(pl)
    guard(A)
    A("ds_read_b128 %s, %s offset:%d" % (v(vt, 4), v(vt + 4), PF + 16 * val))
    A("s_waitcnt lgkmcnt(0)")
    A("v_or_b32 %s, %s, %s" % (v(vt), v(vt), v(vt + 1)))
    A("v_or3_b32 %s, %s, %s, %s" % (v(vt), v(vt), v(vt + 2), v(vt + 3)))
    A("s_nop 0")
    A("v_readfirstlane_b32 s10, %s" % v(vt))
    A("s_cmp_eq_u32 s10, 0")
    A("s_cbranch_scc1 %s" % ok)
    A("s_sleep %d" % sleep)
    A("s_branch %s" % pl)
    A.label(ok)


def epi_wait(A):
    A("s_lshl_b32 s4, s3, 2")
    A("v_mov_b32 v10, s4")
    lds_wait(A, CTRL + C_EPI - 16, "lg", 0, 11, 10, "s10", False, 2)


CV_ACC = 192


def lds_set(A, off_sreg_mul4, base, val, vt):
    A("s_lshl_b32 s4, %s, 2" % s(off_sreg_mul4))
    A("v_mov_b32 %s, s4" % v(vt))
    A("v_mov_b32 %s, %d" % (v(vt + 1), val))
    A("ds_write_b32 %s, %s offset:%d" % (v(vt), v(vt + 1), CTRL + base))


def u_store(A):
    A("s_xor_b32 s4, s12, 1")
    A("s_lshl_b32 s4, s4, 2")
    A("v_mov_b32 v5, s4")
    lds_wait(A, CTRL + C_TRD, "lg", 0, 6, 5, "s10")
    A("s_and_b32 s5, s12, 1")
    A("s_mul_i32 s4, s5, %d" % (AUXSZ + 2048))
    A("s_add_u32 s4, s4, s69")
    A("v_lshrrev_b32 v5, 1, v1")
    A("v_lshlrev_b32 v5, 4, v5")
    A("v_and_b32 v6, 1, v1")
    A("v_mul_u32_u24 v6, %d, v6" % AUXSZ)
    A("v_sub_u32 v5, v5, v6")
    A("v_add_u32 v5, s4, v5")
    for i in range(4):
        A("s_waitcnt vmcnt(%d)" % (3 - i))
        A("ds_write_b128 v5, %s offset:%d" % (v(232 + 4 * i, 4), AUX_U + 512 + 512 * i))


def krdy_wait(A):
    pl, ok = A.newl("Lkw"), A.newl("Lko")
    A("s_and_b32 s4, s12, 2")
    A("s_lshl_b32 s4, s4, 2")
    A("v_mov_b32 v16, s4")
    A.label(pl)
    guard(A)
    A("ds_read_b64 v[14:15], v16 offset:%d" % (CTRL + C_KRDY))
    A("s_waitcnt lgkmcnt(0)")
    A("v_and_b32 v14, v14, v15")
    A("s_nop 0")
    A("v_readfirstlane_b32 s10, v14")
    A("s_cmp_lg_u32 s10, 0")
    A("s_cbranch_scc1 %s" % ok)
    A("s_sleep 1")
    A("s_branch %s" % pl)
    A.label(ok)


def conv_setup(A, ph0):
    A("v_and_b32 v50, 15, v1")
    A("v_lshrrev_b32 v51, 4, v1")
    A("v_add_u32 v46, 1, v50")
    A("v_and_b32 v47, 3, v46")
    A("v_mul_u32_u24 v48, %d, v47" % KSTR)
    A("v_lshrrev_b32 v46, 2, v46")
    A("v_lshlrev_b32 v46, 3, v46")
    A("v_sub_u32 v48, v48, v46")
    A("v_lshl_add_u32 v48, v51, 4, v48")
    A("s_sub_u32 s5, s69, %d" % (64 * ph0))
    A("s_add_u32 s4, s5, %d" % (32 + 256))
    A("v_add_u32 v48, s4, v48")
    A("v_lshlrev_b32 v49, 5, v50")
    A("v_lshl_add_u32 v49, v51, 4, v49")
    A("v_add_u32 v49, s5, v49")
    for r in range(32):
        A("v_mov_b32 %s, 0" % v(CV_ACC + r))


def conv_core(A):
    AF, BF, ACC = 64, 128, CV_ACC
    vK, vU = 48, 49
    A.label("Lconv")
    krdy_wait(A)
    epi_wait(A)
    A("s_setprio %d" % OPT.get("pc", 3))
    A.ts(7)
    top = A.newl("Lcv")
    A.label(top)
    lg = Cnt(A, "lgkmcnt", 15)

    def rdA(ph, p):
        r = AF + 32 * (ph & 1) + 4 * p
        off = 64 * (3 - ph) + 512 * (7 - p)
        A("ds_read_b64 %s, %s offset:%d" % (v(r, 2), v(vK), off))
        lg.issue(("a0", ph, p))
        A("ds_read_b64 %s, %s offset:%d" % (v(r + 2, 2), v(vK), off + 8))
        lg.issue(("a", ph, p))

    def rdB(ph, m):
        r = BF + 32 * (ph & 1) + 4 * m
        A("ds_read_b128 %s, %s offset:%d" % (v(r, 4), v(vU), AUX_U + 480 - 64 * ph + 512 * m))
        lg.issue(("b", ph, m))

    def reads(ph):
        L = []
        for i in range(8):
            L.append((rdA, ph, i))
            L.append((rdB, ph, i))
        return L
    pairs = sorted([(p, m) for p in range(8) for m in range(8) if p + m <= 7], key=lambda x: (max(x), x))
    pend = reads(0)
    for _ in range(8):
        f, a1, a2 = pend.pop(0)
        f(a1, a2)
    for ph in range(4):
        if ph + 1 < 4:
            pend += reads(ph + 1)
        for n, (p, m) in enumerate(pairs):
            while any((f is rdA and a1 == ph and a2 == p) or (f is rdB and a1 == ph and a2 == m) for (f, a1, a2) in pend):
                f, a1, a2 = pend.pop(0)
                f(a1, a2)
            lg.wait(("a", ph, p))
            lg.wait(("b", ph, m))
            q = p + m
            A("v_mfma_f32_16x16x32_bf16 %s, %s, %s, %s" % (v(ACC + 4 * q, 4), v(AF + 32 * (ph & 1) + 4 * p, 4), v(BF + 32 * (ph & 1) + 4 * m, 4), v(ACC + 4 * q, 4)))
            if pend and (n & 1) == 0 and len(lg.q) <= 12:
                f, a1, a2 = pend.pop(0)
                f(a1, a2)
    A("v_subrev_u32 %s, 256, %s" % (v(vK), v(vK)))
    A("v_subrev_u32 %s, 256, %s" % (v(vU), v(vU)))
    A("s_sub_u32 s14, s14, 1")
    A("s_cmp_lg_u32 s14, 0")
    A("s_cbranch_scc1 %s" % top)
    A.ts(10)
    A("s_setpc_b64 s[34:35]")


def conv_out(A):
    ACC = CV_ACC
    A("v_lshrrev_b32 v4, 2, v50")
    A("v_lshlrev_b32 v4, 7, v4")
    A("v_and_b32 v5, 3, v50")
    A("v_lshl_add_u32 v4, v5, 4, v4")
    A("v_lshrrev_b32 v5, 1, v51")
    A("v_lshl_add_u32 v4, v5, 6, v4")
    A("v_and_b32 v5, 1, v51")
    A("v_lshl_add_u32 v4, v5, 9, v4")
    A("s_lshl_b32 s4, s68, 12")
    A("s_add_u32 s4, s4, 0x%x" % WS_AT)
    for q in range(8):
        A("v_cvt_pk_bf16_f32 %s, %s, %s" % (v(16 + 2 * q), v(ACC + 4 * q), v(ACC + 4 * q + 1)))
        A("v_cvt_pk_bf16_f32 %s, %s, %s" % (v(17 + 2 * q), v(ACC + 4 * q + 2), v(ACC + 4 * q + 3)))
    A("s_nop 1")
    for i in range(4):
        A("v_permlane16_swap_b32 %s, %s" % (v(16 + 4 * i), v(18 + 4 * i)))
        A("v_permlane16_swap_b32 %s, %s" % (v(17 + 4 * i), v(19 + 4 * i)))
        A("buffer_store_dwordx4 %s, v4, s[48:51], s4 offen offset:%d%s" % (v(16 + 4 * i, 4), 1024 * i, SC1))
    A.ts(11)


def a_flag(A):
    A("s_lshl_b32 s6, s68, 7")
    A("s_add_u32 s6, s6, 0x%x" % FL_A)
    A("s_waitcnt vmcnt(0)")
    signal(A, 6, 10)


def conv_helper(A):
    ACC = CV_ACC
    A("s_sub_u32 s12, s3, 6")
    A("s_add_u32 s4, s12, 1")
    A("s_mul_i32 s4, s4, %d" % AUXSZ)
    A("s_sub_u32 s69, %d, s4" % LDS_TOTAL)
    A("s_lshl_b32 s4, s12, 2")
    A("v_mov_b32 v12, s4")
    conv_setup(A, 4)
    A("s_mov_b32 s14, 1")
    A("s_call_b64 s[34:35], Lconv")
    lds_wait(A, CTRL + C_CRD, "lg", 0, 13, 12, "s10", False, 0)
    A("v_lshlrev_b32 v5, 4, v1")
    A("v_add_u32 v5, s69, v5")
    A("s_nop 4")
    for q in range(8):
        A("ds_write_b128 v5, %s offset:%d" % (v(ACC + 4 * q, 4), 1024 * q))
    A("v_mov_b32 v13, 1")
    A("ds_write_b32 v12, v13 offset:%d" % (CTRL + C_CPT))
    A("s_waitcnt lgkmcnt(0)")


def conv_owner(A):
    ACC = CV_ACC
    solo, sk6, sku = A.newl("Lsolo"), A.newl("Lsk"), A.newl("Lsu")
    A("s_cmp_lg_u32 s15, 0")
    A("s_cbranch_scc1 %s" % sku)
    u_issue(A)
    A.label(sku)
    u_store(A)
    lds_set(A, 12, C_KRDY, 1, 12)
    A.ts(9)
    A("s_sub_u32 s14, 2, s15")
    A("s_call_b64 s[34:35], Lconv")
    A("v_mov_b32 v14, 0")
    A("s_cmp_lt_u32 s3, 6")
    A("s_cbranch_scc1 %s" % sk6)
    A("ds_write_b32 v12, v14 offset:%d" % (PF + 16 * 20))
    A("ds_write_b32 v12, v14 offset:%d" % (PF + 16 * 21))
    A.label(sk6)
    A("s_cmp_eq_u32 s15, 0")
    A("s_cbranch_scc1 %s" % solo)
    A("ds_write_b32 v12, v13 offset:%d" % (CTRL + C_CRD))
    A("v_lshlrev_b32 v5, 4, v1")
    A("v_add_u32 v5, s69, v5")
    lds_wait(A, CTRL + C_CPT, "lg", 0, 14, 12, "s10", False, 0)
    for q in range(8):
        A("ds_read_b128 %s, v5 offset:%d" % (v(64 + 4 * q, 4), 1024 * q))
    for q in range(8):
        A("s_waitcnt lgkmcnt(%d)" % (7 - q))
        for e in range(4):
            A("v_add_f32 %s, %s, %s" % (v(ACC + 4 * q + e), v(ACC + 4 * q + e), v(64 + 4 * q + e)))
    A.label(solo)
    conv_out(A)


def a_fetch(A):
    sk = A.newl("Laf")
    A("s_cmp_eq_u32 s3, 6")
    A("s_cselect_b32 s69, %d, s69" % MAIN)
    A("s_sub_u32 s8, s3, 4")
    A("s_mul_i32 s4, s63, 80")
    A("s_lshl_b32 s5, s8, 5")
    A("s_add_u32 s4, s4, s5")
    A("s_lshl_b32 s6, s4, 12")
    A("s_lshl_b32 s5, s62, 7")
    A("s_add_u32 s6, s6, s5")
    A("s_add_u32 s6, s6, 0x%x" % WS_AT)
    A("v_lshrrev_b32 v2, 3, v1")
    A("v_and_b32 v3, 7, v1")
    A("v_lshlrev_b32 v4, 12, v2")
    A("v_lshl_add_u32 v4, v3, 4, v4")
    A("v_lshlrev_b32 v13, 7, v1")
    A("s_lshl_b32 s9, s4, 7")
    A("s_add_u32 s9, s9, 0x%x" % FL_A)
    A("s_cmp_eq_u32 s3, 6")
    A("s_cselect_b32 exec_lo, 0xffff, -1")
    A("s_mov_b32 exec_hi, 0")
    poll_flags(A, [(14, 1, 13, 9, 0)], [14], 15, OPT.get("asl", 4))
    A("s_mov_b64 exec, -1")
    A.ts(13)
    for i in range(4):
        if i == 2:
            A("s_cmp_eq_u32 s3, 6")
            A("s_cbranch_scc1 %s" % sk)
        A("s_add_u32 m0, s69, %d" % (1024 * i))
        A("s_nop 0")
        A("buffer_load_dwordx4 v4, s[48:51], s6 offen sc1 lds")
        A("s_add_u32 s6, s6, %d" % (8 * 4096))
    A.label(sk)
    A("s_waitcnt vmcnt(0)")


def gemm2(A):
    ACC = 176
    vH, vL, vWo, vC = 12, 16, G_vXo, G_vC
    pool = [r for r in range(24, ACC, 4) if r not in G2_RREGS]
    lg = Cnt(A, "lgkmcnt", 15)
    vm = Cnt(A, "vmcnt", 63)
    Wr, Hr = {(k // 5, k % 5): r for k, r in enumerate(G2_RREGS)}, {}

    def wload(j, ct):
        r = Wr[(j, ct)] = pool.pop(0)
        g2_wload(A, r, j, ct)
        vm.issue(("w", j, ct))

    def hload(j, q):
        r = Hr[(j, q)] = pool.pop(0)
        A("buffer_load_dwordx4 %s, %s, s[48:51], s54 offen%s" % (v(r, 4), v(vH + q), LSC))
        vm.issue(("h", j, q))
        if q == 3 and j < 11:
            A("s_add_u32 s54, s54, 2048")
            A("s_cmp_ge_u32 s54, s56")
            A("s_cselect_b32 s54, s55, s54")
    A("v_lshrrev_b32 v9, 4, v1")
    A("v_and_b32 v10, 15, v1")
    A("v_lshlrev_b32 v10, 4, v10")
    A("v_lshl_add_u32 v10, v9, 9, v10")
    for q in range(4):
        A("s_xor_b32 s4, s3, %d" % q)
        A("s_lshr_b32 s5, s4, 1")
        A("s_mul_i32 s5, s5, %d" % (96 * 1024))
        A("s_and_b32 s4, s4, 1")
        A("s_lshl_b32 s4, s4, 8")
        A("s_add_u32 s4, s4, s5")
        A("v_add_u32 %s, s4, v10" % v(vH + q))

    def area(sd, wreg, jl):
        A("s_mov_b32 %s, %d" % (s(sd), G2SLOT[2 * jl + 1][1]))
        A("s_cmp_lt_u32 %s, 2" % s(wreg))
        A("s_cselect_b32 %s, %s, %d" % (s(sd), s(sd), G2SLOT[2 * jl + 2][1]))
        A("s_bitcmp1_b32 %s, 0" % s(wreg))
        A("s_cselect_b32 s7, 5120, 0")
        A("s_add_u32 %s, %s, s7" % (s(sd), s(sd)))
    for jl in range(NL2):
        area(4, 3, jl)
        A("v_add_u32 %s, s4, %s" % (v(vL + jl), v(vWo)))
    sk = A.newl("Lsg")
    A("s_cmp_ge_u32 s2, 192")
    A("s_cbranch_scc1 %s" % sk)
    A("s_waitcnt vmcnt(0)")
    signal(A, 57, 10)
    A.ts(7)
    for k in range(4 * OPT.get("rearly", 0), 20):
        g2_wload(A, G2_RREGS[k], k // 5, k % 5)
    A.label(sk)
    full_wait(A, 20, False)
    A("v_and_b32 v9, 15, v1")
    A("v_mul_u32_u24 v9, 160, v9")
    A("v_lshrrev_b32 v10, 4, v1")
    A("v_lshl_add_u32 v23, v10, 3, v9")
    A("s_mul_i32 s4, s3, %d" % (16 * 160))
    A("s_add_u32 s4, s4, %d" % G2SLOT[0][1])
    A("v_add_u32 v9, s4, v23")
    for ct in range(5):
        A("ds_read_b64 %s, v9 offset:%d" % (v(ACC + 20 + 2 * ct, 2), 32 * ct))
    A("s_waitcnt lgkmcnt(0)")
    for i in range(10):
        A("v_lshlrev_b32 %s, 16, %s" % (v(ACC + 2 * i), v(ACC + 20 + i)))
        A("v_and_b32 %s, 0xffff0000, %s" % (v(ACC + 2 * i + 1), v(ACC + 20 + i)))
    A("v_lshlrev_b32 v9, 7, v1")
    A("s_lshl_b32 s6, s62, 12")
    A("s_mul_i32 s4, s3, 768")
    A("s_add_u32 s6, s6, s4")
    A("s_add_u32 s6, s6, 0x%x" % FL_H)
    setexec(A, 0x3f)
    poll_flags(A, [(21, 1, 9, 6, 0)], [21], 10, OPT.get("sl", 2))
    A("s_mov_b64 exec, -1")
    vm.q = []
    A.ts(12)
    queue = []
    for j in range(12):
        queue += [(hload, j, q) for q in range(4)]
        if j >= NR2 + NL2:
            queue += [(wload, j, ct) for ct in range(5)]

    def fill(n):
        while queue and pool and n > 0:
            f, j, x = queue.pop(0)
            f(j, x)
            n -= 1
    fill(OPT.get("h0", 99))
    XA = {1: 58, 2: 59, 3: 15}
    for q in range(1, 4):
        A("s_xor_b32 s5, s3, %d" % q)
        area(XA[q], 5, q)
    A("s_lshl_b32 s6, s3, 4")
    A("s_add_u32 s6, s6, %d" % MAIN)
    A("v_lshrrev_b32 v9, 1, v1")
    A("v_lshlrev_b32 v9, 6, v9")
    A("v_and_b32 v10, 1, v1")
    A("v_lshl_add_u32 v9, v10, 3, v9")
    A("v_add_u32 v21, s6, v9")
    srd(A, 64, P_OUT, 2048 * 640 * 2)
    area(4, 3, 0)
    A("v_add_u32 v23, s4, v23")
    GO = [2, 3, 6]
    for p in range(3):
        A("v_add_u32 v9, %d, v1" % (64 * p))
        A("v_mul_u32_u24 v10, 52429, v9")
        A("v_lshrrev_b32 v10, 19, v10")
        A("v_mul_u32_u24 v10, %d, v10" % (1280 - 160))
        A("v_lshl_add_u32 %s, v9, 4, v10" % v(GO[p]))
    A("s_lshl_b32 s14, s62, 2")
    A("s_add_u32 s14, s14, s3")
    A("s_mul_i32 s14, s14, %d" % (16 * 1280))
    A("s_mul_i32 s7, s63, 160")
    A("s_add_u32 s14, s14, s7")
    LB = [Wr[(NR2 - 1, ct)] for ct in range(5)]

    def lread(j, ct):
        Wr[(j, ct)] = LB[ct]
        A("ds_read_b128 %s, %s offset:%d" % (v(LB[ct], 4), v(vL + j - NR2), 1024 * ct))
        lg.issue(("w", j, ct))
    for j in range(11):
        for ct in range(5):
            lg.wait(("w", j, ct))
            vm.wait(("w", j, ct))
            for q in range(4):
                vm.wait(("h", j, q))
                if j == 0 and ct == 0 and q == 0:
                    A.ts(13)
                if OPT.get("g2ts") and j in (3, 6, 9) and ct == 0 and q == 3:
                    A.ts(7 + j // 3)
                d = ACC + 20 * q + 4 * ct
                cin = "0" if (j == 0 and q) else v(d, 4)
                A("v_mfma_f32_16x16x32_bf16 %s, %s, %s, %s" % (v(d, 4), v(Wr[(j, ct)], 4), v(Hr[(j, q)], 4), cin))
                if ct == 4:
                    pool.append(Hr[(j, q)])
                if (q & 1) or OPT.get("hf", 0):
                    fill(1)
            if NR2 - 1 <= j < NR2 + NL2 - 1:
                if ct == 0 and j == NR2 - 1:
                    full_wait(A, 20 + 2 * NL2, False)
                    lg.q = []
                if ct == 0 and j == OPT.get("agj", 4):
                    A("v_mov_b32 v10, 0")
                    A("ds_write_b32 %s, v10 offset:%d" % (v(G_vPa), PF + 16 * 22))
                    lg.issue("p")
                lread(j + 1, ct)
            else:
                pool.append(Wr[(j, ct)])
    fill(99)
    assert not queue
    done = []
    for q in (1, 2, 3, 0):
        vm.wait(("h", 11, q))
        for ct in range(5):
            vm.wait(("w", 11, ct))
            d = ACC + 20 * q + 4 * ct
            A("v_mfma_f32_16x16x32_bf16 %s, %s, %s, %s" % (v(d, 4), v(Wr[(11, ct)], 4), v(Hr[(11, q)], 4), v(d, 4)))
            if q:
                done.append((q, ct))
            if len(done) > 8 or (q == 0 and done):
                qq, cc = done.pop(0)
                A("ds_write_b128 %s, %s offset:%d" % (v(vL + qq), v(ACC + 20 * qq + 4 * cc, 4), 1024 * cc))
    A.ts(14)
    for (qq, cc) in done:
        A("ds_write_b128 %s, %s offset:%d" % (v(vL + qq), v(ACC + 20 * qq + 4 * cc, 4), 1024 * cc))
    for q in range(1, 4):
        A("v_add_u32 %s, %s, %s" % (v(vH + q), s(XA[q]), v(vWo)))
    A("v_add_u32 %s, %d, v21" % (v(vH), AUX0 - MAIN))
    A("s_waitcnt lgkmcnt(0)")
    A("s_barrier")
    R = 96
    lg.q = []
    for ct in range(5):
        if ct < 4:
            A("ds_read_b64_tr_b16 %s, %s offset:%d" % (v(R + 16 * ct + 2, 2), v(vH), (1 - (ct >> 1)) * AUXSZ + 2048 * (ct & 1)))
        else:
            A("ds_read_b64_tr_b16 %s, v21" % v(R + 16 * ct + 2, 2))
        lg.issue((ct, 0))
        for q in range(1, 4):
            A("ds_read_b128 %s, %s offset:%d" % (v(R + 16 * ct + 4 * q, 4), v(vH + q), 1024 * ct))
            lg.issue((ct, q))
    for ct in range(5):
        lg.wait((ct, 3))
        d, r = ACC + 4 * ct, R + 16 * ct
        A("v_lshlrev_b32 %s, 16, %s" % (v(r), v(r + 2)))
        A("v_and_b32 %s, 0xffff0000, %s" % (v(r + 1), v(r + 2)))
        A("v_lshlrev_b32 %s, 16, %s" % (v(r + 2), v(r + 3)))
        A("v_and_b32 %s, 0xffff0000, %s" % (v(r + 3), v(r + 3)))
        for h in (0, 2):
            A("v_pk_add_f32 %s, %s, %s" % (v(d + h, 2), v(d + h, 2), v(r + 4 + h, 2)))
            A("v_pk_add_f32 %s, %s, %s" % (v(r + 8 + h, 2), v(r + 8 + h, 2), v(r + 12 + h, 2)))
        for h in (0, 2):
            A("v_pk_add_f32 %s, %s, %s" % (v(d + h, 2), v(d + h, 2), v(r + h, 2)))
        for h in (0, 2):
            A("v_pk_add_f32 %s, %s, %s" % (v(d + h, 2), v(d + h, 2), v(r + 8 + h, 2)))
        A("v_cvt_pk_bf16_f32 %s, %s, %s" % (v(64 + 2 * ct), v(d), v(d + 1)))
        A("v_cvt_pk_bf16_f32 %s, %s, %s" % (v(65 + 2 * ct), v(d + 2), v(d + 3)))
        A("ds_write_b64 v23, %s offset:%d" % (v(64 + 2 * ct, 2), 32 * ct))
        lg.issue(("o", ct))
    for p in range(3):
        A("ds_read_b128 %s, %s offset:%d" % (v(80 + 4 * p, 4), v(vL), 1024 * p))
    for p in range(3):
        A("s_waitcnt lgkmcnt(%d)" % (2 - p))
        if p == 2:
            A("s_mov_b32 exec_hi, 0")
        A("buffer_store_dwordx4 %s, %s, s[64:67], s14 offen%s" % (v(80 + 4 * p, 4), v(GO[p]), ["", " sc1", " nt", " sc0 sc1"][OPT.get("osc", 0)]))
    A("s_mov_b64 exec, -1")
    A.ts(15)


def aux_ids(A):
    A("s_sub_u32 s12, s3, 4")
    A("s_lshr_b32 s5, s2, 3")
    A("s_lshl_b32 s6, s5, 1")
    A("s_lshl_b32 s7, s5, 2")
    A("s_sub_u32 s7, s7, 48")
    A("s_cmp_lt_u32 s5, 24")
    A("s_cselect_b32 s6, s6, s7")
    A("s_cselect_b32 s15, 1, 0")
    A("s_and_b32 s68, s2, 7")
    A("s_mul_i32 s68, s68, 80")
    A("s_add_u32 s68, s68, s6")
    A("s_add_u32 s68, s68, s12")
    A("s_add_u32 s4, s12, 1")
    A("s_mul_i32 s4, s4, %d" % AUXSZ)
    A("s_sub_u32 s69, %d, s4" % LDS_TOTAL)
    A("s_cmp_eq_u32 s12, 0")
    A("s_cselect_b32 s66, %d, s69" % (LDS_TOTAL - STGSZ))


def kdesc(name):
    return """.amdhsa_kernel %s
  .amdhsa_next_free_vgpr 256
  .amdhsa_next_free_sgpr 102
  .amdhsa_accum_offset 256
  .amdhsa_group_segment_fixed_size 0
  .amdhsa_kernarg_size 128
  .amdhsa_user_sgpr_count 2
  .amdhsa_user_sgpr_kernarg_segment_ptr 1
  .amdhsa_system_sgpr_workgroup_id_x 1
.end_amdhsa_kernel
""" % name


def build_fused():
    A = Asm()
    name = NAME + "_kernel"
    prologue(A, name, 0)
    st0 = list(A.stamps)
    lch, lload, lS, lg2, ljob, lfetch = [A.newl(x) for x in ["Lch", "Lload", "LS", "Lg2", "Ljob", "Lfetch"]]
    lrest = A.newl("Lrest")
    A("s_cmp_ge_u32 s2, 192")
    A("s_cbranch_scc1 %s" % lS)
    A("s_cmp_lt_u32 s3, 4")
    A("s_cbranch_scc1 %s" % lrest)
    A("s_cmp_eq_u32 s3, 6")
    A("s_cbranch_scc1 %s" % ljob)
    A("s_cmp_lg_u32 s3, 7")
    A("s_cbranch_scc1 %s" % lch)
    A.label(lload)
    A.stamps = list(st0)
    A("s_setprio %d" % OPT.get("pl", 1))
    map_g1(A)
    loader1_setup(A)
    if OPT.get("cnt"):
        A.stamps += [11, 14]
    loader_run(A, 0, NB1 if OPT.get("g1only") else NB1 + 2 * NL2 + 1)
    A.label("Lload_end")
    A.ts(4)
    if not OPT.get("g1only"):
        le, lf = A.newl("Lle"), A.newl("Llf")
        A("s_cmp_ge_u32 s2, 192")
        A("s_cbranch_scc1 %s" % lf)
        conv_helper(A)
        A("s_branch %s" % le)
        A.label(lf)
        a_flag(A)
        A.label(le)
        A.stamps = sorted(set(A.stamps + [1, 5, 6, 7, 8, 9, 10, 11, 12])) if OPT["ts"] else []
    A("s_waitcnt vmcnt(0) lgkmcnt(0)")
    A.end()
    A.label(lrest)
    A.stamps = list(st0)
    A("s_setprio %d" % OPT.get("pg", 2))
    if OPT.get("par", 0) and not OPT.get("auxoff"):
        par_start(A)
    map_g1(A)
    map_g2(A)
    gemm1(A)
    if OPT.get("g1only"):
        if OPT.get("kts"):
            A.stamps += [13, 15]
        A.end()
    A.label(lg2)
    A.stamps = sorted(set(A.stamps + [1, 2, 3])) if OPT["ts"] else []
    gemm2(A)
    A.end()
    A.label(lS)
    A.stamps = list(st0)
    A("s_cmp_ge_u32 s3, 4")
    A("s_cbranch_scc1 %s" % lch)
    A("s_setprio 2")
    s_phase0(A)
    if OPT.get("g1only"):
        A.end()
    A.label("Ls_join")
    g2_streams(A)
    lds_wait(A, C_GOW, "lg", 0, 10, G_vC, "s10", False, 4)
    for k, r in enumerate(G2_RREGS):
        g2_wload(A, r, k // 5, k % 5)
    A("s_branch %s" % lg2)
    A.flush_cold()
    A.label(ljob)
    A.stamps = list(st0)
    A("s_and_b32 s68, s2, 7")
    A("s_mul_i32 s68, s68, 80")
    A("s_lshr_b32 s4, s2, 3")
    A("s_lshl_b32 s4, s4, 1")
    A("s_add_u32 s68, s68, s4")
    if OPT.get("par", 0):
        A("s_mov_b32 s66, %d" % HSTG)
        kgen_issue(A, 68, [1], 40, False, None, 1)
        A("s_setprio 2")

        def early6(A):
            kgen_issue(A, 68, [1], 40, False, None, 2)
            kgen_setup(A, KB)
        ready(A, early6)
        A("s_waitcnt vmcnt(0)")
        A.ts(1)
        if not OPT.get("auxoff"):
            A("v_mov_b32 v4, 0")
            A("global_load_dword v4, v4, %s sc1" % s(P_DBG, 2))
            kgen_call(A, 40, 46, True)
            A("s_mov_b32 s8, 2")
            kgen_give(A, 66, 8)
            nonce_fetch(A, 4, True)
    else:
        A("s_add_u32 s67, s68, 1")
        A("s_mov_b32 s66, %d" % HSTG)

        kgen_issue(A, 68, [2], 40, False, None, 1)
        kgen_issue(A, 67, [2], 48, False, None, 1, 58)

        def early6(A):
            kgen_issue(A, 68, [2], 40, False, None, 2)
            kgen_issue(A, 67, [2], 48, False, None, 2, 58)
            kgen_setup(A, KB)
        A("s_setprio 2")
        ready(A, early6)
        A("s_waitcnt vmcnt(7)")
        A("s_setprio %d" % OPT.get("pa", 0))
        A.ts(1)
        if not OPT.get("auxoff"):
            A("v_mov_b32 v4, 0")
            A("global_load_dword v4, v4, %s sc1" % s(P_DBG, 2))
            kgen_call(A, 40, 46, True)
            nonce_fetch(A, 4, True)
            A("s_nop 7")
            for r in range(12):
                A("v_mov_b32 %s, %s" % (v(220 + r), v(KB + KB_ACC + r)))
            if not OPT.get("nok2"):
                kgen_call(A, 48, 54, True)
            A("s_mov_b32 s7, %d" % (HSTG + 3072))
            A("s_mov_b32 s8, 0")
            kgen_give(A, 7, 8, 220)
            A("s_mov_b32 s7, %d" % HSTG)
            A("s_mov_b32 s8, 1")
            kgen_give(A, 7, 8)
    A.ts(5)
    if OPT.get("g1only"):
        A.end()
    map_g1(A)
    map_g2(A)
    prog_wait(A, OPT.get("jpg", 13), 12, 8)
    if not OPT.get("j5", 1):
        colsum_gather(A)
        A.ts(3)
    poll_all(A, 2, FL_W, C_GO, False, OPT.get("gsl", 12))
    A("ds_write_b32 v2, v3 offset:%d" % C_GOW)
    A.ts(2)
    if OPT.get("sdel", 0):
        sk = A.newl("Lh")
        A("s_cmp_ge_u32 s2, 64")
        A("s_cbranch_scc1 %s" % sk)
        prog_wait(A, OPT.get("sdp", 18), 12, 4)
        A("s_lshl_b32 s6, s2, 7")
        A("s_add_u32 s6, s6, 0x%x" % FL_G)
        signal(A, 6, 10)
        A.label(sk)
    if OPT.get("park", 0):
        park(A)
    conv_helper(A)
    A("s_branch %s" % lfetch)
    A.flush_cold()
    A.label(lch)
    A.stamps = list(st0)
    ln = A.newl("Lnn")
    B = KB
    aux_ids(A)
    l7 = A.newl("L7")
    A("s_cmp_lg_u32 s3, 7")
    A("s_cbranch_scc1 %s" % l7)
    flg_init(A)
    A.label(l7)

    def early(A):
        A("s_cmp_lg_u32 s68, 0")
        A("s_cbranch_scc1 %s" % ln)
        A("s_memrealtime s[4:5]")
        A("s_waitcnt lgkmcnt(0)")
        A("s_or_b32 s4, s4, 1")
        A("v_mov_b32 v2, 0")
        A("v_mov_b32 v3, s4")
        A("s_mov_b64 exec, 1")
        A("global_store_dword v2, v3, %s sc1" % s(P_DBG, 2))
        A("s_mov_b64 exec, -1")
        A.label(ln)
        kgen_issue(A, 68, [0, 1], 40, True, None, 2)
        kgen_setup(A, B)
    kgen_issue(A, 68, [0, 1], 40, True, None, 1)
    A("s_setprio 2")
    ready(A, early)
    if OPT.get("auxoff"):
        A("s_endpgm")
    A("s_waitcnt vmcnt(7)")
    A.ts(1)
    if OPT.get("par", 0):
        lp = A.newl("Lp")
        A("s_cmp_lg_u32 s15, 0")
        if OPT.get("po", 2) != 2:
            A("s_setprio %d" % OPT["po"])
        A("s_cbranch_scc1 %s" % lp)
        A("s_setprio 0")
        A.label(lp)
        kgen_call(A, 40, 52, True)
        A("s_waitcnt vmcnt(0)")
        lp, lq = A.newl("Lp"), A.newl("Lq")
        A("s_cmp_lg_u32 s15, 0")
        A("s_cbranch_scc1 %s" % lp)
        kgen_call(A, 46, 52, False)
        A("s_add_u32 s7, s69, 8192")
        kgen_take2(A, 12, 7, False)
        A("s_branch %s" % lq)
        A.label(lp)
        A("s_setprio 2")
        A("s_mul_i32 s7, s12, 3072")
        A("s_add_u32 s7, s7, %d" % (WSLOT(4) + STGSZ))
        kgen_take2(A, 12, 7, True)
        A("s_add_u32 s8, s12, 2")
        A("s_mov_b32 s7, %d" % HSTG)
        A("s_cmp_eq_u32 s12, 0")
        A("s_cselect_b32 s7, s7, %d" % (WSLOT(4) + STGSZ + 6144))
        kgen_take2(A, 8, 7, True)
        A("s_setprio 0")
        A.label(lq)
    else:
        A("s_setprio %d" % OPT.get("pa", 0))
        kgen_call(A, 40, 52, True)
        A("s_waitcnt vmcnt(0)")
        if OPT.get("nok2"):
            lz = A.newl("Lz")
            A("s_cmp_lg_u32 s15, 0")
            A("s_cbranch_scc1 %s" % lz)
        kgen_call(A, 46, 52, False)
        if OPT.get("nok2"):
            A.label(lz)
    A.ts(5)
    map_g1(A)
    map_g2(A)
    nonce_lds(A, 4)
    if OPT.get("j5", 1) and not OPT.get("g1only"):
        lj5 = A.newl("Lj5")
        A("s_and_b32 s4, s12, s15")
        A("s_cbranch_scc0 %s" % lj5)
        prog_wait(A, OPT.get("jp1", 10), 12, 8)
        colsum_gather(A)
        A.ts(3)
        A.label(lj5)
    if not OPT.get("par", 0):
        kgen_take(A)
    if OPT.get("g1only"):
        A.ts(6)
        A.end()
    kgen_expand(A, B + KB_ACC)
    A.ts(8)
    conv_owner(A)
    l7 = A.newl("L7")
    A("s_cmp_eq_u32 s3, 7")
    A("s_cbranch_scc1 %s" % l7)
    a_flag(A)
    A.ts(12)
    A("s_branch %s" % lfetch)
    A.label(l7)
    loader_regs(A)
    loader2_setup(A, SPLIT2 // 2)
    lds_wait(A, FLG + 4 * (20 + SPLIT2 - 1), "eq", 0, 38, LV_C, "s4")
    A("s_branch Lload_g2b")
    A.label(lfetch)
    A("s_setprio %d" % OPT.get("pf", 0))
    lgq = A.newl("Lgq")
    if OPT.get("agate", 1) == 0:
        A("s_cmp_lt_u32 s2, 192")
        A("s_cbranch_scc1 %s" % lgq)
    prog_wait(A, 22, 12, 4)
    A.label(lgq)
    prog_wait(A, 21, 12, 4)
    A.stamps = sorted(set(A.stamps + [1, 2, 3, 5, 7, 10])) if OPT["ts"] else []
    a_fetch(A)
    A.ts(14)
    A.end()
    A.label("Lkgen")
    kgen_chunk(A, KB, OPT.get("pkm", 0))
    if OPT.get("kts"):
        A.ts(15)
    A("s_setpc_b64 s[34:35]")
    if not OPT.get("g1only"):
        conv_core(A)
        A.flush_cold()
    else:
        A.label("Lconv")
        A.label("Lload_g2")
        A.label("Lload_g2b")
        A("s_endpgm")
    hdr = "; @launch grid=(256,1,1) block=(512,1,1) lds=%d\n" % LDS_TOTAL
    return hdr, A, [name]


DOC = """; One persistent launch, 256 workgroups of 8 waves (one per CU), written with a hand-made generator script.
;  S workgroups (id >= 192): LayerNorm rows (transposed xn + statistics), w_down in fragment order, 4 channels each.
"""


def main():
    hdr, A, names = build_fused()
    ref = open("cdna_kernels/%s.s.ref" % NAME).read().splitlines() if os.path.exists("cdna_kernels/%s.s.ref" % NAME) else []
    out = "".join(l + "\n" for l in ref if l.startswith(";") and "@launch" not in l and "Override" not in l and "grid=ceil" not in l)
    out += DOC + hdr
    out += '.amdgcn_target "amdgcn-amd-amdhsa--gfx950"\n.text\n'
    out += "\n".join(A.L) + "\nLcode_end:\n"
    out += '.section .rodata,"a"\n'
    for n in names:
        out += ".p2align 6\n" + kdesc(n)
    open(sys.argv[1], "w").write(out)


main()
```
